```python
import torch

def _softmax(x, axis=-1):
    return torch.softmax(x, dim=axis)
def _gelu(x):
    return torch.nn.functional.gelu(x, approximate="tanh")
def _silu(x):
    return torch.nn.functional.silu(x)
def _sigmoid(x):
    return torch.sigmoid(x)
def _layernorm(x, axis=-1, eps=1e-5):
    m = x.mean(dim=axis, keepdim=True)
    v = x.var(dim=axis, keepdim=True, unbiased=False)
    return (x - m) / torch.sqrt(v + eps)
def _scatter_add(tgt, idx, src, axis=0):
    return tgt.clone().index_add_(axis, idx, src)
def _segment_sum(src, seg, n):
    out = torch.zeros((n,) + src.shape[1:], dtype=src.dtype)
    return out.index_add_(0, seg, src)
def _pad(x, pw):
    flat = tuple(v for pair in reversed(pw) for v in pair)
    return torch.nn.functional.pad(x, flat)

kernel_name = 'parallel_sum__linear_kernel_hedgehog__glu_gated_glu__prompt'

def setup_inputs():

    _w = (lambda a: (lambda t: t.to(torch.bfloat16) if t.is_floating_point() else t)(torch.as_tensor(a)))
    def _A_setup():
        B, S, D, H = 1, 2048, 512, 32
        Dh = D // H
        return {
            "x": _w((lambda *s: torch.randn(*s, dtype=torch.bfloat16) * 0.05)(B, S, D)),
            "wqkv": _w((lambda *s: torch.randn(*s, dtype=torch.bfloat16) * 0.4)(D, 3 * D)),
            "w_phi": _w((lambda *s: torch.randn(*s, dtype=torch.bfloat16) * 0.4)(H, Dh, Dh) * (Dh ** -0.5)),
            "wo": _w((lambda *s: torch.randn(*s, dtype=torch.bfloat16) * 0.1)(D, D)),
        }
    _A_in = _A_setup()

    def _B_setup():
        B, S, D, F = 1, 2048, 512, 1376
        return {
            "x": _w((lambda *s: torch.randn(*s, dtype=torch.bfloat16) * 0.05)(B, S, D)),
            "w_gate": _w((lambda *s: torch.randn(*s, dtype=torch.bfloat16) * 0.05)(D, F)),
            "w_up": _w((lambda *s: torch.randn(*s, dtype=torch.bfloat16) * 0.05)(D, F)),
            "w_down": _w((lambda *s: torch.randn(*s, dtype=torch.bfloat16) * 0.05)(F, D)),
        }
    _B_in = _B_setup()

    return {
        "A_x": _A_in["x"],
        "A_wqkv": _A_in["wqkv"],
        "A_w_phi": _A_in["w_phi"],
        "A_wo": _A_in["wo"],
        "B_x": _B_in["x"],
        "B_w_gate": _B_in["w_gate"],
        "B_w_up": _B_in["w_up"],
        "B_w_down": _B_in["w_down"],
    }

def reference(A_x, A_wqkv, A_w_phi, A_wo, B_x, B_w_gate, B_w_up, B_w_down):
    def _A_ref(x, wqkv, w_phi, wo):
        B, S, D = x.shape
        H = 32; Dh = D // H
        qkv = (lambda x, *d: x.permute(*d))((x @ wqkv).reshape(B, S, 3, H, Dh), 2, 0, 3, 1, 4)
        q, k, v = qkv[0], qkv[1], qkv[2]
        pq = torch.einsum("bhsd,hdf->bhsf", q, w_phi)
        pk = torch.einsum("bhsd,hdf->bhsf", k, w_phi)
        phi_q = torch.concatenate([_softmax(pq, axis=-1), _softmax(-pq, axis=-1)], axis=-1)
        phi_k = torch.concatenate([_softmax(pk, axis=-1), _softmax(-pk, axis=-1)], axis=-1)
        kv = torch.einsum("bhsf,bhsd->bhfd", phi_k, v)
        z  = torch.einsum("bhsf->bhf", phi_k)
        num = torch.einsum("bhqf,bhfd->bhqd", phi_q, kv)
        den = torch.einsum("bhqf,bhf->bhq", phi_q, z)[..., None] + 1e-6
        o = num / den
        return (lambda x, *d: x.permute(*d))(o, 0, 2, 1, 3).reshape(B, S, D) @ wo

    def _B_ref(x, w_gate, w_up, w_down):
        g = torch.einsum("bsd,df->bsf", x, w_gate)
        u = torch.einsum("bsd,df->bsf", x, w_up)
        h = _sigmoid(g) * u
        return torch.einsum("bsf,fd->bsd", h, w_down)

    x = A_x
    xn = _layernorm(x, axis=-1)
    return x + _A_ref(xn, A_wqkv, A_w_phi, A_wo) + _B_ref(xn, B_w_gate, B_w_up, B_w_down)
```

```python
import re, copy

TRANS = ("v_exp_f32", "v_log_f32", "v_rcp_f32", "v_rsq_f32", "v_sqrt_f32", "v_sin_f32", "v_cos_f32")

def regs_of(tok):
    tok = tok.strip()
    neg = tok.lstrip("-|").rstrip("|")
    m = re.fullmatch(r"([vsa])(\d+)", neg)
    if m: return m.group(1), {int(m.group(2))}
    m = re.fullmatch(r"([vsa])\[(\d+):(\d+)\]", neg)
    if m: return m.group(1), set(range(int(m.group(2)), int(m.group(3)) + 1))
    if neg == "vcc": return "s", {106, 107}
    if neg == "vcc_lo": return "s", {106}
    if neg == "vcc_hi": return "s", {107}
    if neg == "m0": return "s", {124}
    if neg == "exec": return "s", {126, 127}
    return None, set()

def split_ops(s):
    out, depth, cur = [], 0, ""
    for ch in s:
        if ch == "[": depth += 1
        if ch == "]": depth -= 1
        if ch == "," and depth == 0:
            out.append(cur.strip()); cur = ""
        else: cur += ch
    if cur.strip(): out.append(cur.strip())
    return out

class Ins:
    __slots__ = ("text", "op", "cls", "vw", "vr", "sw", "sr", "A", "B", "C", "D", "passes", "states", "wide", "dma")
    def __init__(self, text):
        self.text = text
        parts = text.split(None, 1)
        op = parts[0]; self.op = op
        rest = parts[1] if len(parts) > 1 else ""
        ops = split_ops(rest)
        toks = []
        for o in ops:
            toks.append(o.split()[0] if o.split() else o)
        mods = " ".join(" ".join(o.split()[1:]) for o in ops)
        self.vw, self.vr, self.sw, self.sr = set(), set(), set(), set()
        self.A = self.B = self.C = self.D = set(); self.passes = 0; self.states = 1; self.wide = False; self.dma = False
        def rd(t):
            k, r = regs_of(t)
            if k == "v": self.vr |= r
            elif k == "a": self.vr |= {x + 256 for x in r}
            elif k == "s": self.sr |= r
        def wr(t):
            k, r = regs_of(t)
            if k == "v": self.vw |= r
            elif k == "a": self.vw |= {x + 256 for x in r}
            elif k == "s": self.sw |= r
        def vset(t):
            k, r = regs_of(t)
            if k == "v": return set(r)
            if k == "a": return {x + 256 for x in r}
            return set()
        if op.startswith("v_mfma") or op.startswith("v_smfmac"):
            self.cls = "mfma"
            self.D, self.A, self.B, self.C = vset(toks[0]), vset(toks[1]), vset(toks[2]), vset(toks[3])
            if op.startswith("v_smfmac"):
                self.B = self.B | self.C; self.C = set(self.D)
            self.vw = set(self.D); self.vr = self.A | self.B | self.C
            self.passes = 8 if "32x32" in op else 4
        elif op.startswith("v_"):
            self.cls = "trans" if op.startswith(TRANS) else ("dot" if op.startswith("v_dot") else "valu")
            if op == "v_nop": pass
            elif op.startswith("v_permlane") and "swap" in op:
                for t in toks[:2]: rd(t); wr(t)
            elif op.startswith("v_cmp"):
                wr(toks[0])
                for t in toks[1:]: rd(t)
                if op.startswith("v_cmpx"): self.sw |= {126, 127}
            else:
                wr(toks[0])
                st = 1
                if "_co_" in op: wr(toks[1]); st = 2
                for t in toks[st:]: rd(t)
                if op.startswith(("v_fmac", "v_dot2c", "v_mac", "v_writelane")) : rd(toks[0])
        elif op.startswith("ds_"):
            self.cls = "ds"
            if op.startswith(("ds_read", "ds_bpermute", "ds_permute", "ds_swizzle")) or "_rtn" in op:
                wr(toks[0])
                for t in toks[1:]: rd(t)
            else:
                for t in toks: rd(t)
        elif op.startswith(("buffer_", "global_")):
            self.cls = "vmem"
            allmods = (" " + mods + " ")
            if op.startswith("buffer_load") and " lds " in allmods:
                self.dma = True
                for t in toks: rd(t)
                self.sr |= {124}
            elif op.startswith("global_load_lds"):
                self.dma = True
                for t in toks: rd(t)
                self.sr |= {124}
            elif "_load" in op:
                wr(toks[0])
                for t in toks[1:]: rd(t)
            elif "atomic" in op and " sc0 " in allmods:
                wr(toks[0])
                for t in toks: rd(t)
            else:
                for t in toks: rd(t)
                if "x3" in op or "x4" in op:
                    self.wide = vset(toks[0]) if op.startswith("buffer") else vset(toks[1])
        elif op.startswith("s_"):
            self.cls = "salu"
            if op == "s_nop": self.states = int(toks[0], 0) + 1
            elif op.startswith(("s_load", "s_memtime", "s_memrealtime", "s_buffer_load")):
                self.cls = "smem"; wr(toks[0])
                for t in toks[1:]: rd(t)
            elif op.startswith(("s_waitcnt", "s_barrier", "s_branch", "s_cbranch", "s_endpgm", "s_setprio", "s_sleep")): pass
            elif op.startswith("s_cmp"):
                for t in toks: rd(t)
            else:
                wr(toks[0])
                for t in toks[1:]: rd(t)
                if "saveexec" in op: self.sw |= {126, 127}
        else:
            raise ValueError("unknown op " + text)

def need(p, c):
    n = 0
    pv = p.cls in ("valu", "trans", "dot")
    cv = c.cls in ("valu", "trans", "dot")
    if p.cls == "mfma":
        big = 12 if p.passes == 8 else 8
        if c.cls == "mfma":
            if c.C & p.D:
                if not (c.C == p.D and c.passes == p.passes): n = max(n, big - 2)
            if (c.A | c.B) & p.D: n = max(n, big)
            if (c.D & p.D) and not (c.C & p.D): n = max(n, big)
        else:
            if (c.vr | c.vw) & p.D: n = max(n, big)
            if (cv or c.cls in ("ds", "vmem")) and (c.vw & p.C): n = max(n, 7 if p.passes == 8 else 3)
    if pv:
        if c.cls == "mfma" and (c.vr & p.vw): n = max(n, 3 if p.cls == "dot" else 2)
        if c.cls == "mfma" and (p.sw & {126, 127}): n = max(n, 4)
        if p.cls == "dot" and ((c.vr | c.vw) & p.vw):
            same_acc = (c.op == p.op and c.cls == "dot" and c.vw == p.vw)
            if not same_acc: n = max(n, 3)
        if p.cls == "trans" and (c.vr & p.vw) and c.cls != "trans": n = max(n, 1)
        if c.op.startswith("v_permlane") and (c.vr & p.vw): n = max(n, 2)
        if ("_dpp" in c.op or " row_" in c.text or "quad_perm" in c.text) and (c.vr & p.vw): n = max(n, 2)
        if c.op.startswith(("v_readfirstlane", "v_readlane")) and (c.vr & p.vw): n = max(n, 1)
        if p.sw:
            if c.cls == "vmem" and (c.sr & p.sw): n = max(n, 5)
            if cv and (c.sr & p.sw): n = max(n, 2)
            if cv and c.op.startswith("v_cndmask") and (p.sw & {106, 107}): n = max(n, 2)
            if (p.sw & {126, 127}) and c.op.startswith(("v_readfirstlane", "v_readlane", "v_permlane")): n = max(n, 4)
        if "sdwa" in p.op and cv and ((c.vr | c.vw) & p.vw): n = max(n, 1)
    if p.cls == "salu" and (124 in p.sw) and c.dma: n = max(n, 1)
    if p.cls == "vmem" and p.wide and (c.vw & p.wide): n = max(n, 2)
    return n

class Prog:
    def __init__(self):
        self.out = []
        self.hist = []
        self.lg = []
        self.vm = []
        self.smem = False
        self.nnop = 0
        self.count = {}
    def raw(self, t): self.out.append(t)
    def comment(self, t): self.out.append("    ; " + t)
    def label(self, n): self.out.append(n + ":")
    def snapshot(self): return (list(self.hist), list(self.lg), list(self.vm), self.smem)
    def restore(self, s): self.hist, self.lg, self.vm, self.smem = list(s[0]), list(s[1]), list(s[2]), s[3]
    def _emit(self, ins):
        self.out.append("    " + ins.text)
        self.hist.append(ins)
        if len(self.hist) > 24: self.hist.pop(0)
        self.count[ins.cls] = self.count.get(ins.cls, 0) + 1
    def _wait(self, vm=None, lg=None):
        parts = []
        if vm is not None:
            vm = min(vm, 63)
            if vm < len(self.vm):
                parts.append(f"vmcnt({vm})"); self.vm = self.vm[len(self.vm) - vm:] if vm else []
        if lg is not None:
            lg = min(lg, 15)
            if lg < len(self.lg) or (lg == 0 and self.smem):
                parts.append(f"lgkmcnt({lg})"); self.lg = self.lg[len(self.lg) - lg:] if lg else []
                if lg == 0: self.smem = False
        if parts: self._emit(Ins("s_waitcnt " + " ".join(parts)))
    def wait_vm(self, tag=None, lg=None):
        n = None
        if tag is None: n = 0
        else:
            for i in range(len(self.vm) - 1, -1, -1):
                if self.vm[i][1] == tag:
                    n = len(self.vm) - 1 - i; break
        self._wait(n, lg)
    def wait_lg(self, tag=None):
        n = None
        if tag is None: n = 0
        else:
            for i in range(len(self.lg) - 1, -1, -1):
                if self.lg[i][1] == tag:
                    n = len(self.lg) - 1 - i; break
        self._wait(None, n)
    def I(self, text, tag=None):
        for t in text.split("\n"):
            t = t.strip()
            if t: self._one(t, tag)
    def _one(self, text, tag):
        ins = Ins(text)
        touch = ins.vr | ins.vw
        vm = lg = None
        for i in range(len(self.vm) - 1, -1, -1):
            if self.vm[i][0] & touch: vm = len(self.vm) - 1 - i; break
        for i in range(len(self.lg) - 1, -1, -1):
            if self.lg[i][0] & touch: lg = len(self.lg) - 1 - i; break
        if self.smem and ins.cls == "ds": lg = 0
        if vm is not None or lg is not None: self._wait(vm, lg)
        dist = 0; req = 0
        for p in reversed(self.hist):
            r = need(p, ins) - dist
            if r > req: req = r
            dist += p.states
            if dist >= 20: break
        while req > 0:
            k = min(req, 16)
            self._emit(Ins(f"s_nop {k-1}")); self.nnop += k; req -= k
        if ins.op == "s_waitcnt":
            m = re.search(r"vmcnt\((\d+)\)", text)
            if m:
                n = int(m.group(1)); self.vm = self.vm[max(0, len(self.vm) - n):] if n else []
            m = re.search(r"lgkmcnt\((\d+)\)", text)
            if m:
                n = int(m.group(1)); self.lg = self.lg[max(0, len(self.lg) - n):] if n else []
                if n == 0: self.smem = False
        self._emit(ins)
        if ins.cls == "ds": self.lg.append((set(ins.vw), tag))
        elif ins.cls == "vmem":
            self.vm.append((set(ins.vw), tag))
            assert len(self.vm) <= 63, "too many outstanding VMEM ops"
        elif ins.cls == "smem": self.smem = True
    def text(self): return "\n".join(self.out) + "\n"

def v(a, n=1): return f"v{a}" if n == 1 else f"v[{a}:{a+n-1}]"
def s(a, n=1): return f"s{a}" if n == 1 else f"s[{a}:{a+n-1}]"
```

```python
import sys
from k1 import gen_k1, LDS_BYTES
HDR = open("parallel_sum__linear_kernel_hedgehog__glu_gated_glu__prompt.s.ref").read().split("; Override launch")[0]
KD = """.amdhsa_kernel {name}
  .amdhsa_next_free_vgpr {nv}
  .amdhsa_next_free_sgpr 102
  .amdhsa_accum_offset {ao}
  .amdhsa_group_segment_fixed_size 0
  .amdhsa_kernarg_size 88
  .amdhsa_user_sgpr_count 2
  .amdhsa_user_sgpr_kernarg_segment_ptr 1
  .amdhsa_system_sgpr_workgroup_id_x 1
.end_amdhsa_kernel
"""
def build(kernels, path):
    t = HDR
    for (name, P, grid, block, lds, nv) in kernels:
        t += f"; @launch kernel={name} grid=({grid},1,1) block=({block},1,1) lds={lds}\n"
    t += '.amdgcn_target "amdgcn-amd-amdhsa--gfx950"\n.text\n'
    for k in kernels: t += k[1].text()
    t += '.section .rodata,"a"\n'
    for (name, P, grid, block, lds, nv) in kernels:
        t += ".p2align 6\n" + KD.format(name=name, nv=nv, ao=min(256, (nv + 3) // 4 * 4))
    open(path, "w").write(t)
if __name__ == "__main__":
    import k1
    k1.PROF = "prof" in sys.argv
    k1.KN = set(sys.argv[1:])
    out = "k1only.s" if len(sys.argv) <= 2 else "k1_" + "_".join(sys.argv[2:]) + ".s"
    P = gen_k1("k1_kernel")
    print(P.count, "nops", P.nnop)
    build([("k1_kernel", P, 256, 512, LDS_BYTES, 256)], out)
```

```python
from asmlib import Prog, v, s

HF_OFF = 0
PHI_OFF = 0x800000
KVP_OFF = 0xC00000
WS_BYTES = 0x1000000
MISC = 131072
PH = MISC
ST = MISC
CSP = MISC + 24576
WPH = CSP + 4096
LDS_BYTES = 163840
LOG2E = 1.4426950408889634

SX, SWQ, SWG, SWU, SWS, SWP, SDB = 8, 12, 16, 20, 24, 28, 4
sW, sT, sA, sTY, sR, sI, sG = 32, 33, 34, 35, 36, 37, 38
sMX, sMW, sMG = 40, 41, 42
sO1, sO2, sO3, sC = 43, 44, 45, 46
sHF, sPHI, sONE, sHI, sVO, sB0 = 47, 48, 50, 51, 52, 53
sT0, sT1, sT2, sT3 = 54, 55, 56, 57
vL16, vGO, vUO = 0, 1, 2
vAG = [3, 4, 5]
vCG = 6
vLN = 7
vMU = 8
vC1, vSTD, vRS = 10, 11, 12
vT = [13, 14, 15]
TA, TB = 16, 20
CP, CD = 24, 28
FR = [32, 36, 40, 44]
AK, AV = 48, 64
GA = [80, 96, 112]
vXO, vWO = 80, 81
vAX = [[84, 85, 86, 87], [88, 89, 90, 91]]
vAA = [92, 93]
vCA = [94, 95]
vST = 96
def XR(i, kk): return 128 + (4 * i + kk) * 4

def fbits(x):
    import struct
    return "0x%08x" % struct.unpack("<I", struct.pack("<f", x))[0]

def cost(t):
    op = t.split()[0]
    if op.startswith(("v_exp", "v_rcp", "v_rsq", "v_log")): return 8
    if op.startswith("v_mfma"): return 8
    if op.startswith("v_"): return 4.5
    if op == "GAP": return float(t.split()[1])
    return 1

def dma_p1(P, step, typ, first=False):
    slot = (step % 4) * 32768
    tag = f"d{step}"
    P.I(f"s_add_u32 s{sC}, s{sR}, {step}")
    P.I(f"s_and_b32 s{sC}, s{sC}, 7")
    P.I(f"s_lshl_b32 s{sO1}, s{sC}, 7")
    P.I(f"s_add_u32 m0, s{sMX}, {slot}")
    P.I(f"s_add_u32 s{sO2}, s{sO1}, {16384 - 2048}")
    P.I(f"buffer_load_dwordx4 v{vXO}, {s(SX,4)}, s{sO1} offen lds", tag)
    P.I(f"buffer_load_dwordx4 v{vXO}, {s(SX,4)}, s{sO2} offen offset:2048 lds", tag)
    P.I(f"s_add_u32 m0, s{sMW}, {slot}")
    P.I(f"s_mul_i32 s{sO3}, s{sC}, {64*3072}")
    P.I(f"buffer_load_dwordx4 v{vWO}, {s(SWQ,4)}, s{sO3} offen lds", tag)
    if first or typ == 0:
        P.I(f"s_add_u32 m0, s{sMW}, {slot + 8192}")
        P.I(f"s_add_u32 s{sO3}, s{sO3}, s{sVO}")
        P.I(f"buffer_load_dwordx4 v{vWO}, {s(SWQ,4)}, s{sO3} offen lds", tag)

def dma_g(P, step):
    slot = (step % 4) * 32768
    tag = f"d{step}"
    P.I(f"s_add_u32 s{sC}, s{sR}, {step}")
    P.I(f"s_and_b32 s{sC}, s{sC}, 7")
    P.I(f"s_mul_i32 s{sO1}, s{sC}, {64*2752}")
    P.I(f"s_add_u32 m0, s{sMG}, {slot}")
    P.I(f"s_add_u32 s{sO2}, s{sO1}, {4*2752 - 1024}")
    P.I(f"buffer_load_dwordx4 v{vGO}, {s(SWG,4)}, s{sO1} offen lds", tag)
    P.I(f"buffer_load_dwordx4 v{vGO}, {s(SWG,4)}, s{sO2} offen offset:1024 lds", tag)
    P.I(f"s_add_u32 m0, s{sMG}, {slot + 16384}")
    P.I(f"buffer_load_dwordx4 v{vUO}, {s(SWU,4)}, s{sO1} offen lds", tag)
    P.I(f"buffer_load_dwordx4 v{vUO}, {s(SWU,4)}, s{sO2} offen offset:1024 lds", tag)

PROF = False
KN = set()
PROF_OFF = 0xE00000
def stamp(P, k):
    if PROF: P.raw(f"    s_memtime s[{60+2*k}:{61+2*k}]")
def dump_stamps(P, n, sws, sw, waves):
    if not PROF: return
    I = P.I
    I("s_waitcnt vmcnt(0) lgkmcnt(0)")
    P.raw(f"    s_memtime s[{60+2*(n-1)}:{61+2*(n-1)}]")
    P.raw("    s_waitcnt lgkmcnt(0)")
    I(f"s_mul_i32 s58, s2, {waves}")
    I(f"s_add_u32 s58, s58, s{sw}")
    I(f"s_lshl_b32 s58, s58, 7")
    I(f"s_add_u32 s58, s58, {PROF_OFF}")
    I("s_mov_b64 exec, 1")
    I("v_mov_b32 v1, 0")
    for k in range(n):
        I(f"v_mov_b32 v2, s{60+2*k}")
        I(f"buffer_store_dword v2, v1, {s(sws,4)}, s58 offen offset:{4*k}")
    I("s_waitcnt vmcnt(0)")

def prologue(P, name):
    I = P.I
    stamp(P, 0)
    I("s_cmp_ge_u32 s2, 256")
    I(f"s_cbranch_scc1 L_{name}_end")
    I(f"s_load_dwordx2 {s(SX,2)}, s[0:1], 0")
    I(f"s_load_dwordx2 {s(SWQ,2)}, s[0:1], 8")
    I(f"s_load_dwordx2 {s(SWP,2)}, s[0:1], 16")
    I(f"s_load_dwordx2 {s(SWG,2)}, s[0:1], 40")
    I(f"s_load_dwordx2 {s(SWU,2)}, s[0:1], 48")
    I(f"s_load_dwordx2 {s(SWS,2)}, s[0:1], 80")
    I(f"s_load_dwordx2 {s(SDB,2)}, s[0:1], 72")
    I(f"v_lshrrev_b32 v1, 6, v0")
    I(f"v_and_b32 v{vLN}, 63, v0")
    I(f"v_readfirstlane_b32 s{sW}, v1")
    I(f"s_and_b32 s{sT0}, s2, 1")
    I(f"s_bfe_u32 s{sT1}, s2, 0x30003")
    I(f"s_lshl3_add_u32 s{sT}, s{sT0}, s{sT1}")
    I(f"s_lshr_b32 s{sT2}, s2, 6")
    I(f"s_lshr_b32 s{sTY}, s{sT2}, 1")
    I(f"s_and_b32 s{sT0}, s2, 6")
    I(f"s_and_b32 s{sT1}, s{sT2}, 1")
    I(f"s_add_u32 s{sA}, s{sT0}, s{sT1}")
    I(f"s_lshl1_add_u32 s{sR}, s{sT2}, s{sT}")
    I(f"s_and_b32 s{sI}, s{sW}, 3")
    I(f"s_lshr_b32 s{sG}, s{sW}, 2")
    for r, n in ((SX, 2097152), (SWQ, 512*3072), (SWP, 16384), (SWG, 512*2752), (SWU, 512*2752), (SWS, WS_BYTES), (SDB, 256)):
        I(f"s_mov_b32 s{r+2}, {n}")
        I(f"s_mov_b32 s{r+3}, 0x20000")
    I(f"s_and_b32 s{sT0}, s{sW}, 1")
    I(f"s_lshr_b32 s{sT1}, s{sW}, 1")
    I(f"s_lshl2_add_u32 s{sT1}, s{sT1}, s{sT0}")
    I(f"s_lshl_b32 s{sMX}, s{sT1}, 10")
    I(f"s_lshl4_add_u32 s{sT1}, s{sT}, s{sT1}")
    I(f"s_lshl_b32 s{sT1}, s{sT1}, 13")
    I(f"s_lshl_b32 s{sT0}, s{sT0}, 2")
    I(f"v_lshrrev_b32 v2, 4, v{vLN}")
    I(f"v_lshrrev_b32 v3, 3, v{vLN}")
    I(f"v_and_b32 v4, 7, v{vLN}")
    I(f"v_or_b32 v5, s{sT0}, v2")
    I(f"v_xor_b32 v5, v5, v4")
    I(f"v_lshlrev_b32 v5, 4, v5")
    I(f"v_lshl_add_u32 v5, v3, 10, v5")
    I(f"v_add_u32 v{vXO}, s{sT1}, v5")
    I(f"s_lshl_b32 s{sMW}, s{sW}, 10")
    I(f"s_add_u32 s{sMW}, s{sMW}, 16384")
    I(f"s_mul_i32 s{sT0}, s{sW}, {8*3072}")
    I(f"s_lshl_b32 s{sT1}, s{sA}, 7")
    I(f"s_add_u32 s{sT0}, s{sT0}, s{sT1}")
    I(f"s_cmp_eq_u32 s{sTY}, 0")
    I(f"s_cselect_b32 s{sT1}, 1024, 0")
    I(f"s_cselect_b32 s{sVO}, s{sT1}, 0x7f000000")
    I(f"s_add_u32 s{sT0}, s{sT0}, s{sT1}")
    I(f"v_and_b32 v5, 1, v2")
    I(f"v_lshlrev_b32 v5, 2, v5")
    I(f"v_xor_b32 v5, v5, v4")
    I(f"v_lshlrev_b32 v5, 4, v5")
    I(f"v_mul_u32_u24 v6, 3072, v3")
    I(f"v_add3_u32 v{vWO}, v5, v6, s{sT0}")
    I("s_waitcnt lgkmcnt(0)")
    dma_p1(P, 0, 0, True)
    dma_p1(P, 1, 0, True)
    I(f"v_lshlrev_b32 v5, 2, v{vLN}")
    I(f"s_lshl_b32 s{sT0}, s{sW}, 8")
    I(f"s_add_u32 m0, s{sT0}, {WPH}")
    I(f"s_lshl_b32 s{sT1}, s{sA}, 11")
    I(f"s_add_u32 s{sT1}, s{sT1}, s{sT0}")
    I(f"buffer_load_dword v5, {s(SWP,4)}, s{sT1} offen lds", "d2")
    dma_p1(P, 2, 0, True)
    dma_p1(P, 3, 0, True)

def setup2(P):
    I = P.I
    a, b, c, d, e = 13, 14, 15, 16, 17
    I(f"s_mov_b32 s{sONE}, 0x3f803f80")
    I(f"s_mov_b32 s{sHI}, 0xffff0000")
    I(f"s_lshl_b32 s{sMG}, s{sW}, 11")
    I(f"s_mul_i32 s{sT0}, s{sA}, 5")
    I(f"s_min_u32 s{sT0}, s{sT0}, 33")
    I(f"s_add_u32 s{sT0}, s{sT0}, 48")
    I(f"s_mul_i32 s{sT1}, s{sA}, 6")
    I(f"s_cmp_eq_u32 s{sTY}, 0")
    I(f"s_cselect_b32 s{sB0}, s{sT0}, s{sT1}")
    I(f"s_add_u32 s{sT2}, s{sTY}, 5")
    I(f"s_mul_i32 s{sT0}, s{sW}, {8*2752}")
    I(f"s_lshl_b32 s{sT1}, s{sB0}, 5")
    I(f"s_add_u32 s{sT0}, s{sT0}, s{sT1}")
    I(f"v_mov_b32 v{e}, v2")
    I(f"v_mul_u32_u24 v{a}, 2752, v{e}")
    I(f"v_and_b32 v{b}, 1, v{vLN}")
    I(f"v_lshlrev_b32 v{b}, 4, v{b}")
    I(f"v_add3_u32 v{a}, v{a}, v{b}, s{sT0}")
    I(f"v_bfe_u32 v{b}, v{vLN}, 1, 3")
    I(f"v_lshlrev_b32 v{c}, 1, v{e}")
    I(f"v_xor_b32 v{b}, v{b}, v{c}")
    I(f"v_xor_b32 v{c}, 1, v{b}")
    I(f"v_mov_b32 v{d}, 0x7f000000")
    I(f"v_cmp_gt_u32 vcc, s{sT2}, v{b}")
    I(f"v_lshl_add_u32 v{b}, v{b}, 5, v{a}")
    I(f"v_cndmask_b32 v{vGO}, v{d}, v{b}, vcc")
    I(f"v_cmp_gt_u32 vcc, s{sT2}, v{c}")
    I(f"v_lshl_add_u32 v{c}, v{c}, 5, v{a}")
    I(f"v_cndmask_b32 v{vUO}, v{d}, v{c}, vcc")
    h, sb, r, sw = 18, 19, 20, 21
    I(f"v_lshrrev_b32 v{h}, 5, v{vLN}")
    I(f"v_bfe_u32 v{sb}, v{vLN}, 4, 1")
    I(f"v_bfe_u32 v{r}, v{vLN}, 2, 2")
    I(f"v_bfe_u32 v{a}, v{vLN}, 1, 1")
    I(f"v_and_b32 v{b}, 1, v{vLN}")
    I(f"v_lshl_or_b32 v{sw}, v{b}, 1, v{a}")
    I(f"v_lshlrev_b32 v{sw}, 3, v{sw}")
    I(f"v_lshl_add_u32 v{a}, v{h}, 3, v{r}")
    I(f"v_and_b32 v{b}, 2, v{r}")
    I(f"v_or_b32 v{b}, v{b}, v{sb}")
    I(f"v_lshl_add_u32 v{b}, v{b}, 5, v{sw}")
    I(f"v_lshl_add_u32 v{b}, v{a}, 7, v{b}")
    I(f"v_add_u32 v{b}, 16384, v{b}")
    I(f"s_lshl_b32 s{sT0}, s{sG}, 6")
    I(f"v_xor_b32 v{vAA[0]}, s{sT0}, v{b}")
    I(f"v_add_u32 v{vAA[1]}, 65536, v{vAA[0]}")
    I(f"s_and_b32 s{sT0}, s{sI}, 1")
    I(f"s_lshl_b32 s{sT0}, s{sT0}, 6")
    I(f"s_lshr_b32 s{sT1}, s{sI}, 1")
    I(f"s_cmp_eq_u32 s{sTY}, 0")
    I(f"s_cselect_b32 s{sT3}, 13, 11")
    I(f"s_lshl_b32 s{sT1}, s{sT1}, s{sT3}")
    I(f"v_xor_b32 v{b}, s{sT0}, v{b}")
    I(f"v_add_u32 v{vCA[0]}, s{sT1}, v{b}")
    I(f"v_add_u32 v{vCA[1]}, 65536, v{vCA[0]}")
    I(f"v_lshl_or_b32 v{b}, v{r}, 1, v{sb}")
    I(f"v_lshl_add_u32 v{b}, v{b}, 5, v{sw}")
    I(f"v_lshl_add_u32 v{b}, v{a}, 8, v{b}")
    I(f"v_lshl_add_u32 v{22}, v{sb}, 14, v{b}")
    I(f"v_and_b32 v{a}, 31, v{vLN}")
    I(f"v_bfe_u32 v{b}, v{vLN}, 1, 3")
    I(f"v_xor_b32 v{b}, v{b}, v{h}")
    I(f"v_lshlrev_b32 v{b}, 4, v{b}")
    I(f"v_lshl_add_u32 v{b}, v{a}, 7, v{b}")
    I(f"s_lshl_b32 s{sT0}, s{sI}, 12")
    I(f"v_add_u32 v{vAX[0][0]}, s{sT0}, v{b}")
    for kk in range(1, 4): I(f"v_xor_b32 v{vAX[0][kk]}, {kk*32}, v{vAX[0][0]}")
    for kk in range(4): I(f"v_add_u32 v{vAX[1][kk]}, 65536, v{vAX[0][kk]}")
    I(f"v_and_b32 v{a}, 15, v{vLN}")
    I(f"v_lshlrev_b32 v{b}, 2, v{e}")
    I(f"v_mov_b32 v{c}, s{sONE}")
    I(f"v_cmp_eq_u32 vcc, v{a}, v{b}")
    I(f"v_cndmask_b32 v{CP}, 0, v{c}, vcc")
    for k in range(1, 4): I(f"v_mov_b32 v{CP+k}, v{CP}")
    I(f"v_mov_b32 v{vST}, 0")
    I(f"v_mov_b32 v{vST+1}, 0")
    I(f"v_lshlrev_b32 v{vL16}, 4, v{vLN}")
    I(f"s_lshl2_add_u32 s{sT0}, s{sT}, s{sI}")
    I(f"s_mul_i32 s{sT1}, s{sT0}, 118")
    I(f"s_add_u32 s{sT1}, s{sT1}, s{sB0}")
    I(f"s_mul_i32 s{sT2}, s{sG}, 3")
    I(f"s_add_u32 s{sT1}, s{sT1}, s{sT2}")
    I(f"s_add_u32 s{sT1}, s{sT1}, 32")
    I(f"s_lshl_b32 s{sHF}, s{sT1}, 10")
    I(f"s_mul_i32 s{sT1}, s{sT0}, 118")
    I(f"s_lshl1_add_u32 s{sT2}, s{sA}, s{sG}")
    I(f"s_lshl1_add_u32 s{sT1}, s{sT2}, s{sT1}")
    I(f"s_lshl_b32 s{sPHI}, s{sT1}, 10")

def csp_layout(typ):
    L = {}
    o = CSP
    if typ == 0:
        for n in ("K0", "K1", "V0", "V1"): L[n] = (o, 2); o += 512
        for p in range(4): L[p] = (o, 1); o += 256
        L[4] = (o, 4); o += 1024
    else:
        for n in ("K0", "K1"): L[n] = (o, 4); o += 1024
        for p in range(4): L[p] = (o, 1); o += 256
        for p in (4, 5): L[p] = (o, 2); o += 512
    assert o <= CSP + 4096
    return L

def corr(acc, off, Pn, T, ta):
    sh = {1: 2, 2: 3, 4: 4}[Pn]
    rd = []
    if Pn == 4:
        rd.append(f"v_add_u32 v{ta}, {off}, v{vL16}")
    else:
        rd.append(f"v_lshlrev_b32 v{ta}, {sh}, v{vLN}")
        rd.append(f"v_add_u32 v{ta}, {off}, v{ta}")
    rd.append({1: f"ds_read_b32 v{T}, v{ta}", 2: f"ds_read_b64 {v(T,2)}, v{ta}", 4: f"ds_read_b128 {v(T,4)}, v{ta}"}[Pn])
    o = []
    if Pn >= 2: o.append(f"v_add_f32 v{T}, v{T}, v{T+1}")
    if Pn == 4:
        o.append(f"v_add_f32 v{T+2}, v{T+2}, v{T+3}")
        o.append(f"v_add_f32 v{T}, v{T}, v{T+2}")
    o.append(f"v_and_b32 v{T+2}, s{sHI}, v{T}")
    o.append(f"v_sub_f32 v{T+1}, v{T}, v{T+2}")
    o.append(f"v_cvt_pk_bf16_f32 v{T}, v{T+2}, v{T+2}")
    o.append(f"v_cvt_pk_bf16_f32 v{T+1}, v{T+1}, v{T+1}")
    o.append(f"v_mfma_f32_32x32x8_bf16 {v(acc,16)}, {v(T,2)}, {v(vMU,2)}, {v(acc,16)}")
    return rd, o

def stats_read():
    a = vT[0]
    return [f"v_and_b32 v{a}, 31, v{vLN}",
            f"s_lshl_b32 s{sT0}, s{sI}, 10",
            f"s_add_u32 s{sT0}, s{sT0}, {ST}",
            f"v_lshlrev_b32 v{a}, 5, v{a}",
            f"v_add_u32 v{a}, s{sT0}, v{a}",
            f"ds_read_b128 {v(TA,4)}, v{a}",
            f"ds_read_b128 {v(TB,4)}, v{a} offset:16"]
def stats_calc():
    m, q = TA, TA + 1
    return [f"v_add_f32 v{TA}, v{TA}, v{TA+2}", f"v_add_f32 v{TA+1}, v{TA+1}, v{TA+3}",
            f"v_add_f32 v{TB}, v{TB}, v{TB+2}", f"v_add_f32 v{TB+1}, v{TB+1}, v{TB+3}",
            f"v_add_f32 v{m}, v{TA}, v{TB}", f"v_add_f32 v{q}, v{TA+1}, v{TB+1}",
            f"v_mul_f32 v{m}, {fbits(-1.0/512)}, v{m}",
            f"v_mul_f32 v{q}, {fbits(1.0/512)}, v{q}",
            f"v_fma_f32 v{q}, -v{m}, v{m}, v{q}",
            f"v_max_f32 v{q}, 0, v{q}",
            f"v_add_f32 v{q}, {fbits(1e-5)}, v{q}",
            f"v_rsq_f32 v{vRS}, v{q}",
            f"v_and_b32 v{TA+2}, s{sHI}, v{m}",
            f"v_sub_f32 v{TA+3}, v{m}, v{TA+2}",
            f"v_cvt_pk_bf16_f32 v{vMU}, v{TA+2}, v{TA+3}",
            f"v_mul_f32 v{vSTD}, v{q}, v{vRS}",
            f"v_mov_b32 v{vMU+1}, v{vMU}",
            f"v_mul_f32 v{vC1}, {fbits(-LOG2E)}, v{vRS}"]

def wphi_read(g, rho, T):
    a, b = vT[0], vT[1]
    return [f"v_lshrrev_b32 v{a}, 5, v{vLN}",
            f"v_bfe_u32 v{b}, v{vLN}, 2, 2",
            f"v_lshl_add_u32 v{a}, v{a}, 3, v{b}",
            f"v_lshlrev_b32 v{a}, 5, v{a}",
            f"v_and_b32 v{b}, 16, v{vLN}",
            f"v_add_u32 v{a}, v{a}, v{b}",
            f"v_and_b32 v{b}, 2, v{vLN}",
            f"v_lshl_add_u32 v{a}, v{b}, 2, v{a}",
            f"v_add_u32 v{a}, {WPH + (2*g+rho)*512}, v{a}",
            f"ds_read_b64_tr_b16 {v(T,2)}, v{a}",
            f"ds_read_b64_tr_b16 {v(T+2,2)}, v{a} offset:128",
            f"v_bfe_i32 v{b}, v{vLN}, 2, 1",
            f"v_and_b32 v{b}, 0x80008000, v{b}"]
def wphi_sign(T):
    return [f"v_xor_b32 v{T+k}, v{vT[1]}, v{T+k}" for k in range(4)]

def softmax(W, O=None):
    m, sm = vT[0], vT[2]
    if O is None: O = W
    o = [f"v_max3_f32 v{m}, v{W}, v{W+1}, v{W+2}"]
    for k in range(3, 15, 2): o.append(f"v_max3_f32 v{m}, v{m}, v{W+k}, v{W+k+1}")
    o.append(f"v_max_f32 v{m}, v{m}, v{W+15}")
    o.append(f"v_mul_f32 v{m}, v{m}, v{vC1}")
    for k in range(16):
        o.append(f"v_fma_f32 v{W+k}, v{W+k}, -v{vC1}, v{m}")
    for k in range(16):
        o.append(f"v_exp_f32 v{W+k}, v{W+k}")
        if k == 2: o.append(f"v_add_f32 v{sm}, v{W}, v{W+1}")
        if k > 2: o.append(f"v_add_f32 v{sm}, v{sm}, v{W+k-1}")
    o.append(f"v_add_f32 v{sm}, v{sm}, v{W+15}")
    o.append(f"v_rcp_f32 v{sm}, v{sm}")
    for k in range(8):
        o.append(f"v_mul_f32 v{W+2*k}, v{W+2*k}, v{sm}")
        o.append(f"v_mul_f32 v{W+2*k+1}, v{W+2*k+1}, v{sm}")
        o.append(f"v_cvt_pk_bf16_f32 v{O+k}, v{W+2*k}, v{W+2*k+1}")
    return o

def glu_epi(acc, b):
    o = []
    for k in range(8): o.append(f"v_mul_f32 v{acc+k}, v{acc+k}, v{vC1}")
    for k in range(8): o.append(f"v_exp_f32 v{acc+k}, v{acc+k}")
    for k in range(8): o.append(f"v_fma_f32 v{acc+k}, v{acc+k}, v{vSTD}, v{vSTD}")
    for k in range(8): o.append(f"v_rcp_f32 v{acc+k}, v{acc+k}")
    for k in range(4):
        o.append(f"v_mul_f32 v{acc+2*k}, v{acc+2*k}, v{acc+8+2*k}")
        o.append(f"v_mul_f32 v{acc+2*k+1}, v{acc+2*k+1}, v{acc+9+2*k}")
    for k in range(4):
        o.append(f"v_cvt_pk_bf16_f32 v{acc+k}, v{acc+2*k}, v{acc+2*k+1}")
    o.append(f"buffer_store_dwordx4 {v(acc,4)}, v{vL16}, {s(SWS,4)}, s{sHF} offen offset:{b*1024}")
    return o

def stream(P, typ, g, name, M=2, D=3):
    I = P.I
    L = csp_layout(typ)
    nb = 3 if (typ == 1 or g == 0) else 2
    for b in range(nb): I(f"v_xor_b32 v{vAG[b]}, {(3*g+b)*32}, v22")
    if g == 1:
        I(f"s_lshl_b32 s{sT0}, s{sI}, 5")
        I(f"v_xor_b32 v{vCG}, s{sT0}, v22")
        ckk = [0, 1, 2, 3]
    elif typ == 1:
        I(f"s_lshr_b32 s{sT0}, s{sI}, 1")
        I(f"s_add_u32 s{sT0}, s{sT0}, 4")
        I(f"s_lshl_b32 s{sT0}, s{sT0}, 5")
        I(f"s_and_b32 s{sT1}, s{sI}, 1")
        I(f"s_lshl_b32 s{sT1}, s{sT1}, 13")
        I(f"v_xor_b32 v{vCG}, s{sT0}, v22")
        I(f"v_add_u32 v{vCG}, s{sT1}, v{vCG}")
        ckk = [0, 1]
    else:
        I(f"s_lshl_b32 s{sT1}, s{sI}, 12")
        I(f"v_xor_b32 v{vCG}, {4*32}, v22")
        I(f"v_add_u32 v{vCG}, s{sT1}, v{vCG}")
        ckk = [0]
    items = []
    def item(bar, addr, imm, second, mf, pre=()):
        items.append(dict(bar=bar, addr=addr, imm=imm, second=second, mf=mf, pre=list(pre)))
    def mm(acc, x, first): return lambda f: f"v_mfma_f32_32x32x16_bf16 {v(acc,16)}, {v(f,4)}, {v(x,4)}, {'0' if first else v(acc,16)}"
    def cm(first): return lambda f: f"v_mfma_f32_16x16x32_bf16 {v(CD,4)}, {v(CP,4)}, {v(f,4)}, {'0' if first else v(CD,4)}"
    first_item = {}
    for st in range(8):
        hi = (st % 4) >> 1; so = (st & 1) * 32768
        first_item[st] = len(items)
        xr = [f"ds_read_b128 {v(XR(st,kk),4)}, v{vAX[hi][kk]} offset:{so}" for kk in range(4)]
        pre = xr
        cks = [2*g, 2*g+1] if typ == 0 else [2*g]
        for n, kk in enumerate(cks):
            item(st if n == 0 else None, vCA[hi], so + kk*2048, 512, cm(st == 0 and n == 0), pre if n == 0 else ())
        for kk in range(4):
            item(None, vAA[hi], so + kk*2048, 512, mm(AK, XR(st,kk), st == 0 and kk == 0))
            if typ == 0: item(None, vAA[hi], so + kk*2048 + 8192, 512, mm(AV, XR(st,kk), st == 0 and kk == 0))
    tog = [f"v_xor_b32 v{r}, 0x10000, v{r}" for r in vAG[:nb] + [vCG]]
    for st in range(8, 16 - M):
        so = (st & 1) * 32768
        first_item[st] = len(items)
        seq = []
        for kk in range(4):
            if kk in ckk: seq.append((vCG, so + kk*4096, cm(st == 8 and kk == 0)))
            for b in range(nb): seq.append((vAG[b], so + kk*4096, mm(GA[b], XR(st-8,kk), st == 8 and kk == 0)))
        for n, (ad, im, mf) in enumerate(seq):
            item(st if n == 0 else None, ad, im, 1024, mf, tog if (n == 0 and st in (10, 12, 14)) else ())
    assert M == 2
    first_item[14] = len(items)
    n = 0
    for st in (14, 15):
        for kk in ckk:
            item(14 if n == 0 else None, vCG, (st & 1)*32768 + kk*4096, 1024, cm(False), tog if n == 0 else ()); n += 1
    last_cs = len(items) - 1
    blk_first = []
    for b in range(nb):
        blk_first.append(len(items))
        for st in (14, 15):
            for kk in range(4):
                item(None, vAG[b], (st & 1)*32768 + kk*4096, 1024, mm(GA[b], XR(st-8,kk), False))
    N = len(items)
    blk_first.append(N)
    def bslot(st): return first_item[st] - D
    fill = {n: [] for n in range(N + 1)}
    def spread(ins, n0, n1):
        tot = sum(cost(t) for t in ins); per = tot / (n1 - n0); acc = 0.0
        for t in ins:
            k = min(n0 + int(acc / per), n1 - 1)
            if not t.startswith("GAP"): fill[k].append(t)
            acc += cost(t)
    prebar = {}
    for st in range(8):
        d = []
        for kk in (2*g, 2*g+1):
            for j in range(4):
                x = XR(st, kk) + j
                d.append(f"v_dot2c_f32_bf16 v{vST}, s{sONE}, v{x}")
                d.append(f"v_dot2c_f32_bf16 v{vST+1}, v{x}, v{x}")
        sl = first_item[st] + (1 if typ == 0 else 0)
        fill[sl] += d
        if st == 7:
            a, b = vT[0], vT[1]
            w = []
            if typ == 0:
                w += [f"s_lshl_b32 s{sT0}, s{sI}, 9", f"s_add_u32 s{sT0}, s{sT0}, {CSP + 4*g}", f"v_lshlrev_b32 v{a}, 3, v{vLN}", f"v_add_u32 v{a}, s{sT0}, v{a}"]
            else:
                w += [f"s_and_b32 s{sT0}, s{sI}, 1", f"s_lshl_b32 s{sT0}, s{sT0}, 10", f"s_and_b32 s{sT1}, s{sI}, 2", f"s_lshl1_add_u32 s{sT0}, s{sT1}, s{sT0}",
                      f"s_add_u32 s{sT0}, s{sT0}, {CSP + 8*g}", f"v_add_u32 v{a}, s{sT0}, v{vL16}"]
            w += [f"ds_write_b32 v{a}, v{CD}"]
            w += [f"v_and_b32 v{b}, 31, v{vLN}", f"v_lshlrev_b32 v{b}, 5, v{b}", f"v_lshrrev_b32 v{a}, 5, v{vLN}", f"v_lshl_add_u32 v{b}, v{a}, 3, v{b}",
                  f"s_lshl_b32 s{sT0}, s{sI}, 10", f"s_add_u32 s{sT0}, s{sT0}, {ST + 16*g}", f"v_add_u32 v{b}, s{sT0}, v{b}",
                  f"ds_write_b64 v{b}, {v(vST,2)} #pub"]
            fill[sl] += w
            assert sl < bslot(8)
            prebar[8] = "pub"
    p1_end = first_item[8]
    fill[bslot(8)] += stats_read()
    kn = "K%d" % g; vn = "V%d" % g
    rdK, coK = corr(AK, *L[kn], TB, vT[2])
    seg = stats_calc() + rdK
    if typ == 0:
        rdV, coV = corr(AV, *L[vn], TA, vT[2])
        seg += rdV + coK + coV
    else:
        seg += coK
    seg += wphi_read(g, 0, TB)
    seg += [f"v_cvt_pk_bf16_f32 v{AK+k}, v{AK+2*k}, v{AK+2*k+1}" for k in range(8)]
    if typ == 0:
        for k in range(8):
            seg += [f"v_mul_f32 v{AV+2*k}, v{AV+2*k}, v{vRS}", f"v_mul_f32 v{AV+2*k+1}, v{AV+2*k+1}, v{vRS}",
                    f"v_cvt_pk_bf16_f32 v{AK+8+k}, v{AV+2*k}, v{AV+2*k+1}"]
    seg += wphi_sign(TB)
    pk = lambda rho: f"v_mfma_f32_32x32x16_bf16 {v(AV,16)}, {v(TB,4)}, {v(AK+4*rho,4)}, 0"
    seg += [pk(0), "GAP 40"] + softmax(AV, AK + 8 if typ == 1 else None)
    def phi_out(rho):
        if typ == 1:
            return []
        a, b = vT[0], vT[1]
        return [f"v_and_b32 v{a}, 31, v{vLN}", f"v_mul_u32_u24 v{a}, 96, v{a}", f"s_mul_i32 s{sT0}, s{sI}, {32*96}", f"s_add_u32 s{sT0}, s{sT0}, {PH + g*12288}",
                f"v_and_b32 v{b}, 32, v{vLN}", f"v_add3_u32 v{a}, v{a}, v{b}, s{sT0}", f"v_lshrrev_b32 v{b}, 1, v{b}", f"v_sub_u32 v{b}, v{a}, v{b}",
                f"ds_write_b128 v{a}, {v(AV,4)}", f"ds_write_b128 v{a}, {v(AV+4,4)} offset:16",
                f"ds_write_b128 v{b}, {v(AK+8+4*rho,4)} offset:64 #ph{rho}"]
    seg2 = wphi_read(g, 1, TB) + wphi_sign(TB) + [pk(1), "GAP 40"] + softmax(AV)
    def kvround(rho):
        Wk = GA[2]; a, b = vT[0], vT[1]; A0, B0, DK, DZ = Wk, Wk + 4, Wk + 8, Wk + 12
        o = [f"v_lshrrev_b32 v{a}, 5, v{vLN}", f"v_bfe_u32 v{b}, v{vLN}, 2, 3", f"v_lshl_add_u32 v{a}, v{a}, 4, v{b}", f"v_mul_u32_u24 v{a}, 96, v{a}",
             f"v_and_b32 v{b}, 3, v{vLN}", f"v_lshl_add_u32 v{a}, v{b}, 3, v{a}",
             f"s_lshr_b32 s{sT0}, s{sI}, 1", f"s_mul_i32 s{sT0}, s{sT0}, 12288", f"s_add_u32 s{sT0}, s{sT0}, {PH}",
             f"s_and_b32 s{sT1}, s{sI}, 1", f"s_lshl_b32 s{sT1}, s{sT1}, 5",
             f"v_add_u32 v{b}, s{sT0}, v{a}", f"v_add_u32 v{a}, s{sT1}, v{b}"]
        o += [f"v_mov_b32 v{TA+k}, s{sONE}" for k in range(4)]
        for u in range(4):
            base = u * 32 * 96
            o += [f"ds_read_b64_tr_b16 {v(A0,2)}, v{a} offset:{base}", f"ds_read_b64_tr_b16 {v(A0+2,2)}, v{a} offset:{base+768}",
                  f"ds_read_b64_tr_b16 {v(B0,2)}, v{b} offset:{base+64}", f"ds_read_b64_tr_b16 {v(B0+2,2)}, v{b} offset:{base+64+768}" + (f" #kv{rho}" if u == 3 else ""),
                  "GAP 30",
                  f"v_mfma_f32_16x16x32_bf16 {v(DK,4)}, {v(A0,4)}, {v(B0,4)}, {'0' if u == 0 else v(DK,4)}",
                  f"v_mfma_f32_16x16x32_bf16 {v(DZ,4)}, {v(A0,4)}, {v(TA,4)}, {'0' if u == 0 else v(DZ,4)}"]
        o += [f"v_and_b32 v{a}, 15, v{vLN}", f"v_cmp_eq_u32 vcc, 0, v{a}", f"v_lshlrev_b32 v{a}, 4, v{a}", f"v_lshrrev_b32 v{b}, 5, v{vLN}", f"v_lshl_add_u32 v{a}, v{b}, 8, v{a}",
              f"v_bfe_u32 v{b}, v{vLN}, 4, 1", f"v_lshl_add_u32 v{a}, v{b}, 3, v{a}",
              f"v_lshrrev_b32 v{b}, 1, v{vLN}", f"v_and_b32 v{b}, 24, v{b}", f"v_mov_b32 v{TA}, 0x7f000000", f"v_cndmask_b32 v{b}, v{TA}, v{b}, vcc",
              f"s_and_b32 s{sT0}, s{sI}, 2", f"s_lshl2_add_u32 s{sT0}, s{sA}, s{sT0}", f"s_add_u32 s{sT0}, s{sT0}, {rho}", f"s_mul_i32 s{sT0}, s{sT0}, 17408",
              f"s_add_u32 s{sT0}, s{sT0}, {KVP_OFF}", f"s_and_b32 s{sT1}, s{sI}, 1",
              f"s_lshl1_add_u32 s{sT2}, s{sT}, s{sT1}",
              f"s_lshl_b32 s{sT3}, s{sT2}, 9", f"s_add_u32 s{sT3}, s{sT3}, s{sT0}",
              f"s_lshl_b32 s{sT2}, s{sT2}, 5", f"s_add_u32 s{sT2}, s{sT2}, s{sT0}", f"s_add_u32 s{sT2}, s{sT2}, 16384",
              f"v_cvt_pk_bf16_f32 v{DK}, v{DK}, v{DK+1}", f"v_cvt_pk_bf16_f32 v{DK+1}, v{DK+2}, v{DK+3}",
              f"v_cvt_pk_bf16_f32 v{DZ}, v{DZ}, v{DZ+1}", f"v_cvt_pk_bf16_f32 v{DZ+1}, v{DZ+2}, v{DZ+3}",
              f"buffer_store_dwordx2 {v(DK,2)}, v{a}, {s(SWS,4)}, s{sT3} offen sc1",
              f"buffer_store_dwordx2 {v(DZ,2)}, v{b}, {s(SWS,4)}, s{sT2} offen sc1 #kvs{rho}"]
        return o
    if typ == 1:
        spread(seg + phi_out(0) + seg2 + phi_out(1), p1_end, bslot(14))
    else:
        spread(seg + phi_out(0), p1_end, bslot(11)); prebar[11] = "ph0"
        if g == 1:
            spread(kvround(0), bslot(11), bslot(12)); prebar[12] = "kv0"
            spread(seg2 + phi_out(1), bslot(12), bslot(14))
        else:
            spread(seg2, bslot(11), bslot(13))
            spread(phi_out(1), bslot(13), bslot(13) + 2)
        prebar[14] = "ph1"
    a = vT[0]
    if g == 1:
        w = [f"s_lshl_b32 s{sT0}, s{sI}, 8", f"s_add_u32 s{sT0}, s{sT0}, {L[0][0]}", f"v_lshlrev_b32 v{a}, 2, v{vLN}", f"v_add_u32 v{a}, s{sT0}, v{a}"]
    elif typ == 1:
        w = [f"s_lshr_b32 s{sT0}, s{sI}, 1", f"s_lshl_b32 s{sT0}, s{sT0}, 9", f"s_and_b32 s{sT1}, s{sI}, 1", f"s_lshl2_add_u32 s{sT0}, s{sT1}, s{sT0}",
             f"s_add_u32 s{sT0}, s{sT0}, {L[4][0]}", f"v_lshlrev_b32 v{a}, 3, v{vLN}", f"v_add_u32 v{a}, s{sT0}, v{a}"]
    else:
        w = [f"s_lshl_b32 s{sT0}, s{sI}, 2", f"s_add_u32 s{sT0}, s{sT0}, {L[4][0]}", f"v_add_u32 v{a}, s{sT0}, v{vL16}"]
    fill[last_cs] += w
    fill[last_cs + 2] += [f"ds_write_b32 v{a}, v{CD} #cs2"]
    cbar = last_cs + 4
    fill[cbar] += ["WAITLG cs2", "s_barrier"]
    if typ == 0 and g == 1:
        spread(kvround(1), cbar + 1, blk_first[1])
    for b in range(nb):
        rd, co = corr(GA[b], *L[3*g+b], TB, vT[2])
        e = blk_first[b+1] - 1
        fill[max(e - 3, cbar)] += rd
        fill[e - 1] += co[:-1]
        fill[e] += co[-1:]
        if b + 1 < nb: spread(["GAP 30"] + glu_epi(GA[b], b), e + 1, blk_first[b+2] - 4)
        else: fill[N] += glu_epi(GA[b], b)
    def emit(t):
        if t.startswith("WAITLG"): P.wait_lg(t.split()[1]); return
        if t.startswith("STAMP"): stamp(P, int(t.split()[1])); return
        tag = None
        if "#" in t: t, tag = t.split("#"); t = t.strip()
        P.I(t, tag)
    for n in range(-D, N):
        m = n + D
        if m < N:
            it = items[m]
            if it["bar"] is not None:
                st = it["bar"]
                P.wait_vm("d15" if st == 14 else f"d{st}")
                if st in prebar: P.wait_lg(prebar[st])
                I("s_barrier")
                stamp(P, 1 + st)
                nxt = st + 2
                if "nodma" in KN: pass
                elif 4 <= nxt < 8: dma_p1(P, nxt, typ)
                elif 8 <= nxt < 16: dma_g(P, nxt)
            for t in it["pre"]: I(t)
            f = FR[m % 4]
            I(f"ds_read_b64_tr_b16 {v(f,2)}, v{it['addr']} offset:{it['imm']}")
            I(f"ds_read_b64_tr_b16 {v(f+2,2)}, v{it['addr']} offset:{it['imm'] + it['second']}")
        if n >= 0:
            mt = items[n]["mf"](FR[n % 4])
            if not ("nocs" in KN and "16x16x32" in mt) and not "nomfma" in KN: I(mt)
            for t in fill[n]:
                if "nofill" in KN and t != "s_barrier": continue
                if "nodot" in KN and "dot2c" in t: continue
                emit(t)
    stamp(P, 16)
    for t in fill[N]: emit(t)
    if typ == 0: kv_signal(P, g, name)
    else: o_phase(P, g, name)
    dump_stamps(P, 18, SWS, sW, 8)
    I("s_endpgm")

def kv_signal(P, g, name):
    I = P.I
    if g == 1: P.wait_vm("kvs1")
    I("s_barrier")
    if g == 1:
        I(f"s_cmp_lg_u32 s{sI}, 0")
        I(f"s_cbranch_scc1 L_{name}_sig_done")
        I(f"s_lshl_b32 s{sT0}, s{sA}, 5")
        I("s_mov_b64 exec, 1")
        I("v_mov_b32 v128, 0")
        I("v_mov_b32 v129, 1")
        I(f"buffer_atomic_add v129, v128, {s(SDB,4)}, s{sT0} offen sc1")
        I("s_mov_b64 exec, -1")
        P.label(f"L_{name}_sig_done")

OT = PH
def o_phase(P, g, name):
    I = P.I
    a, b, c = 128, 129, 130
    SEL, DD, ZZ, LD = 132, 136, 140, 144
    lab = f"L_{name}_poll{g}"
    I(f"s_lshl_b32 s{sT0}, s{sA}, 5")
    I(f"v_mov_b32 v{a}, 0")
    I(f"s_mov_b32 s{sT1}, 0")
    I("s_waitcnt vmcnt(0)")
    P.label(lab)
    I(f"buffer_load_dword v{b}, v{a}, {s(SDB,4)}, s{sT0} offen sc1")
    I(f"s_add_u32 s{sT1}, s{sT1}, 1")
    I(f"v_readfirstlane_b32 s{sT2}, v{b}")
    I(f"s_cmp_ge_u32 s{sT2}, 16")
    I(f"s_cbranch_scc1 {lab}_ok")
    I("s_sleep 2")
    I(f"s_cmp_lt_u32 s{sT1}, 20000")
    I(f"s_cbranch_scc1 {lab}")
    P.label(lab + "_ok")
    I("s_barrier")
    I(f"s_lshr_b32 s{sT0}, s{sW}, 1")
    I(f"s_lshl2_add_u32 s{sT1}, s{sA}, s{sT0}")
    I(f"s_mul_i32 s{sT1}, s{sT1}, 17408")
    I(f"s_add_u32 s{sT1}, s{sT1}, {KVP_OFF}")
    I(f"s_and_b32 s{sT2}, s{sW}, 1")
    I(f"s_lshl_b32 s{sT3}, s{sT2}, 9")
    I(f"s_add_u32 s{sT3}, s{sT3}, s{sT1}")
    I(f"s_add_u32 s{sT1}, s{sT1}, 16384")
    I(f"v_and_b32 v{a}, 31, v{vLN}")
    I(f"v_lshrrev_b32 v{b}, 5, v{vLN}")
    I(f"v_lshlrev_b32 v{a}, 4, v{a}")
    I(f"v_lshl_add_u32 v{a}, v{b}, 10, v{a}")
    I(f"buffer_load_dwordx4 {v(ZZ,4)}, v{vL16}, {s(SWS,4)}, s{sT1} offen sc1")
    for p in range(8):
        if p and p % 2 == 0: I(f"s_add_u32 s{sT3}, s{sT3}, 4096")
        I(f"buffer_load_dwordx4 {v(LD+4*p,4)}, v{a}, {s(SWS,4)}, s{sT3} offen offset:{(p%2)*2048} sc1")
    I(f"v_and_b32 v{a}, 15, v{vLN}")
    I(f"v_lshrrev_b32 v{b}, 1, v{vLN}")
    I(f"v_and_b32 v{b}, 8, v{b}")
    I(f"v_xor_b32 v{b}, v{a}, v{b}")
    I(f"v_and_b32 v{c}, 1, v{b}")
    I(f"v_lshlrev_b32 v{c}, 4, v{c}")
    I(f"v_mov_b32 v{131}, 0x3f80")
    I(f"v_lshlrev_b32 v{c}, v{c}, v131")
    I(f"v_lshrrev_b32 v{b}, 1, v{b}")
    for r in range(4):
        I(f"v_cmp_eq_u32 vcc, {r}, v{b}")
        I(f"v_cndmask_b32 v{SEL+r}, 0, v{c}, vcc")
    I(f"s_lshl_b32 s{sT0}, s{sT0}, 11")
    I(f"s_add_u32 s{sT0}, s{sT0}, {OT}")
    I(f"v_add_u32 v{b}, s{sT0}, v{vL16}")
    I(f"ds_write_b128 v{b}, {v(ZZ,4)} offset:1024")
    I(f"s_lshl_b32 s{sT2}, s{sT2}, 5")
    I(f"s_add_u32 s{sT0}, s{sT0}, s{sT2}")
    I(f"v_lshrrev_b32 v{c}, 4, v{vLN}")
    I(f"v_lshlrev_b32 v{c}, 3, v{c}")
    I(f"v_lshl_add_u32 v{c}, v{a}, 6, v{c}")
    I(f"v_add_u32 v{c}, s{sT0}, v{c}")
    for p in range(8):
        I(f"v_mfma_f32_16x16x32_bf16 {v(DD,4)}, {v(SEL,4)}, {v(LD+4*p,4)}, {'0' if p == 0 else v(DD,4)}")
    I(f"v_cvt_pk_bf16_f32 v{DD}, v{DD}, v{DD+1}")
    I(f"v_cvt_pk_bf16_f32 v{DD+1}, v{DD+2}, v{DD+3}")
    I(f"ds_write_b64 v{c}, {v(DD,2)}")
    I(f"v_and_b32 v{a}, 19, v{vLN}")
    I(f"v_bfe_u32 v{b}, v{vLN}, 2, 1")
    I(f"v_lshl_or_b32 v{a}, v{b}, 3, v{a}")
    I(f"v_bfe_u32 v{b}, v{vLN}, 3, 1")
    I(f"v_lshl_or_b32 v{a}, v{b}, 2, v{a}")
    I(f"v_lshlrev_b32 v{a}, 6, v{a}")
    I(f"v_and_b32 v{b}, 32, v{vLN}")
    I(f"v_add_u32 v{a}, v{a}, v{b}")
    I(f"v_add_u32 v{a}, {OT + g*4096}, v{a}")
    P.wait_lg()
    I("s_barrier")
    AO = 144; DO = [160, 176]
    for rho in range(2):
        for f in range(2):
            I(f"ds_read_b128 {v(AO+8*rho+4*f,4)}, v{a} offset:{rho*2048+16*f}")
    for rho in range(2):
        ph = AK + 8 if rho == 0 else AV
        for f in range(2):
            I(f"v_mfma_f32_32x32x16_bf16 {v(DO[rho],16)}, {v(AO+8*rho+4*f,4)}, {v(ph+4*f,4)}, {'0' if f == 0 else v(DO[rho],16)}")
    for rho in range(2):
        D = DO[rho]
        for k in range(4): I(f"v_add_f32 v{D+8+k}, v{D+8+k}, v{D+12+k}")
        I(f"v_add_f32 v{D+8}, v{D+8}, v{D+9}")
        I(f"v_add_f32 v{D+10}, v{D+10}, v{D+11}")
        I(f"v_add_f32 v{D+8}, v{D+8}, v{D+10}")
        I(f"v_mov_b32 v{D+9}, v{D+8}")
        I(f"v_permlane32_swap_b32 v{D+8}, v{D+9}")
        I(f"v_add_f32 v{D+8}, v{D+8}, v{D+9}")
        I(f"v_add_f32 v{D+8}, {fbits(1e-6)}, v{D+8}")
        I(f"v_rcp_f32 v{D+8}, v{D+8}")
        for k in range(8): I(f"v_mul_f32 v{D+k}, v{D+k}, v{D+8}")
        for k in range(4): I(f"v_cvt_pk_bf16_f32 v{D+k}, v{D+2*k}, v{D+2*k+1}")
        I(f"buffer_store_dwordx4 {v(D,4)}, v{vL16}, {s(SWS,4)}, s{sPHI} offen offset:{rho*1024}")

def gen_k1(name):
    P = Prog()
    P.raw(f".globl {name}\n.p2align 8\n.type {name},@function\n{name}:")
    prologue(P, name)
    setup2(P)
    P.I(f"s_lshl1_add_u32 s{sT0}, s{sTY}, s{sG}")
    for k in (1, 2, 3):
        P.I(f"s_cmp_eq_u32 s{sT0}, {k}")
        P.I(f"s_cbranch_scc1 L_{name}_r{k}")
    snap = P.snapshot()
    for k in range(4):
        P.restore(snap)
        if k: P.raw(".p2align 6"); P.label(f"L_{name}_r{k}")
        stream(P, k >> 1, k & 1, name)
    P.label(f"L_{name}_end")
    P.I("s_endpgm")
    return P
```

```python
from asmlib import Prog, v, s
import k1
from k1 import HF_OFF, WS_BYTES, stamp, dump_stamps

SX, SWO, SWD, SOUT, SWS = 8, 12, 16, 20, 24
sW, sH, sWF, sM, sXO = 32, 33, 34, 35, 36
sT0, sT1, sT2, sT3 = 40, 41, 42, 43
vLN, vL16, vH1, vWa, vWb, vRD0, vRD1, vXA = 1, 2, 3, 4, 5, 6, 7, 8
vX = 12
WF = [20, 28]
ACC = [36, 52, 68, 84]
HR = 100
NS = 30

def gen_k2(name, D=8):
    P = Prog(); I = P.I
    SLOT = 2048; RING = max(D * SLOT, 16384)
    lds = 4 * RING
    P.raw(f".globl {name}\n.p2align 8\n.type {name},@function\n{name}:")
    stamp(P, 0)
    I("s_cmp_ge_u32 s2, 256")
    I(f"s_cbranch_scc1 L_{name}_end")
    I(f"s_load_dwordx2 {s(SWS,2)}, s[0:1], 80")
    I(f"s_load_dwordx2 {s(SWO,2)}, s[0:1], 24")
    I(f"s_load_dwordx2 {s(SWD,2)}, s[0:1], 56")
    I(f"s_load_dwordx2 {s(SX,2)}, s[0:1], 0")
    I(f"s_load_dwordx2 {s(SOUT,2)}, s[0:1], 64")
    I("v_lshrrev_b32 v2, 6, v0")
    I(f"v_and_b32 v{vLN}, 63, v0")
    I(f"v_readfirstlane_b32 s{sW}, v2")
    for r, n in ((SX, 2097152), (SWO, 512*1024), (SWD, 1376*1024), (SOUT, 2097152), (SWS, WS_BYTES)):
        I(f"s_mov_b32 s{r+2}, {n}")
        I(f"s_mov_b32 s{r+3}, 0x20000")
    I(f"s_and_b32 s{sT0}, s2, 7")
    I(f"s_lshr_b32 s{sT1}, s2, 6")
    I(f"s_lshl2_add_u32 s{sT0}, s{sT0}, s{sT1}")
    I(f"s_bfe_u32 s{sT1}, s2, 0x30003")
    I(f"s_mul_i32 s{sH}, s{sT0}, 236")
    I(f"s_add_u32 s{sH}, s{sH}, s{sW}")
    I(f"s_lshl_b32 s{sH}, s{sH}, 10")
    I(f"s_lshl_b32 s{sT1}, s{sT1}, 7")
    I(f"s_lshl_b32 s{sWF}, s{sW}, 14")
    I(f"s_add_u32 s{sWF}, s{sWF}, s{sT1}")
    I(f"s_mul_i32 s{sM}, s{sW}, {RING}")
    I(f"s_lshl2_add_u32 s{sT0}, s{sT0}, s{sW}")
    I(f"s_lshl_b32 s{sXO}, s{sT0}, 14")
    I(f"s_add_u32 s{sXO}, s{sXO}, s{sT1}")
    I(f"v_lshlrev_b32 v{vL16}, 4, v{vLN}")
    I(f"v_add_u32 v{vH1}, {118*1024}, v{vL16}")
    I(f"v_lshrrev_b32 v9, 3, v{vLN}")
    I(f"v_and_b32 v10, 7, v{vLN}")
    I(f"v_lshlrev_b32 v{vXA}, 4, v10")
    I(f"v_lshl_add_u32 v{vXA}, v9, 10, v{vXA}")
    I(f"v_and_b32 v11, 16, v{vLN}")
    I(f"v_lshlrev_b32 v11, 2, v11")
    I(f"v_xor_b32 v{vWa}, v11, v{vXA}")
    I(f"v_add_u32 v{vWb}, {8192-1024}, v{vWa}")
    I("s_waitcnt lgkmcnt(0)")
    def loads(i):
        o = []
        if i == 8: o.append(f"s_sub_u32 s{sWF}, s{sWF}, {8*65536}")
        if i == NS - 1:
            o += [f"s_cmp_ge_u32 s{sW}, 2", f"s_cselect_b32 s{sT0}, 4096, 0", f"s_sub_u32 s{sH}, s{sH}, s{sT0}"]
        W = SWO if i < 8 else SWD
        h = HR + (i % D) * 8
        o.append(f"s_add_u32 m0, s{sM}, {(i % D) * SLOT}")
        o.append(f"buffer_load_dwordx4 v{vWa}, {s(W,4)}, s{sWF} offen lds #d{i}")
        o.append(f"buffer_load_dwordx4 v{vWb}, {s(W,4)}, s{sWF} offen offset:1024 lds #d{i}")
        o.append(f"buffer_load_dwordx4 {v(h,4)}, v{vL16}, {s(SWS,4)}, s{sH} offen #d{i}")
        o.append(f"buffer_load_dwordx4 {v(h+4,4)}, v{vH1}, {s(SWS,4)}, s{sH} offen #d{i}")
        o.append(f"s_add_u32 s{sWF}, s{sWF}, 65536")
        o.append(f"s_add_u32 s{sH}, s{sH}, 4096")
        return o
    def emit(t):
        tag = None
        if "#" in t: t, tag = t.split("#"); t = t.strip()
        P.I(t, tag)
    for i in range(D - 1):
        for t in loads(i): emit(t)
        if i == 1:
            h, sb, r, a, b = 20, 21, 22, 23, 24
            I(f"v_lshrrev_b32 v{h}, 5, v{vLN}")
            I(f"v_bfe_u32 v{sb}, v{vLN}, 4, 1")
            I(f"v_bfe_u32 v{r}, v{vLN}, 2, 2")
            I(f"v_bfe_u32 v{a}, v{vLN}, 1, 1")
            I(f"v_and_b32 v{b}, 1, v{vLN}")
            I(f"v_lshl_or_b32 v{a}, v{b}, 1, v{a}")
            I(f"v_lshlrev_b32 v{a}, 3, v{a}")
            I(f"v_and_b32 v{b}, 2, v{r}")
            I(f"v_or_b32 v{b}, v{b}, v{sb}")
            I(f"v_lshl_add_u32 v{a}, v{b}, 5, v{a}")
            I(f"v_lshl_add_u32 v{r}, v{h}, 3, v{r}")
            I(f"v_lshl_add_u32 v{a}, v{r}, 7, v{a}")
            I(f"v_add_u32 v{vRD0}, s{sM}, v{a}")
            I(f"v_xor_b32 v{vRD1}, 64, v{vRD0}")
    stamp(P, 1)
    def reads(i):
        f = WF[i & 1]; o = (i % D) * SLOT
        for cb, ad in enumerate((vRD0, vRD1)):
            I(f"ds_read_b64_tr_b16 {v(f+4*cb,2)}, v{ad} offset:{o}")
            I(f"ds_read_b64_tr_b16 {v(f+4*cb+2,2)}, v{ad} offset:{o+512}")
    P.wait_vm("d0"); reads(0)
    for i in range(NS):
        if i + 1 < NS:
            P.wait_vm(f"d{i+1}"); reads(i + 1)
        if i % 4 == 0: stamp(P, 2 + i // 4)
        ld = loads(i - 1 + D) if i - 1 + D < NS else []
        if i - 1 + D == NS:
            ld = [f"buffer_load_dwordx4 {v(vX,4)}, v{vXA}, {s(SX,4)}, s{sXO} offen",
                  f"s_add_u32 s{sT1}, s{sXO}, 8192",
                  f"buffer_load_dwordx4 {v(vX+4,4)}, v{vXA}, {s(SX,4)}, s{sT1} offen"]
        f = WF[i & 1]; h = HR + (i % D) * 8
        parts = [[], [], [], []]; k = 0
        for t in ld:
            parts[min(k, 3)].append(t)
            if t.startswith("buffer"): k += 1
        for n, (tb, cb) in enumerate(((0, 0), (1, 0), (0, 1), (1, 1))):
            A = ACC[tb*2+cb]
            I(f"v_mfma_f32_32x32x16_bf16 {v(A,16)}, {v(f+4*cb,4)}, {v(h+4*tb,4)}, {'0' if i == 0 else v(A,16)}")
            for t in parts[n]: emit(t)
    stamp(P, 10)
    a, b, c = 20, 21, 22
    I(f"v_and_b32 v{a}, 31, v{vLN}")
    I(f"v_lshrrev_b32 v{b}, 4, v{vLN}")
    I(f"v_and_b32 v{b}, 2, v{b}")
    I(f"v_xor_b32 v{b}, v{b}, v10")
    I(f"v_lshlrev_b32 v{b}, 4, v{b}")
    I(f"v_lshl_add_u32 v{a}, v{a}, 8, v{b}")
    I(f"v_add_u32 v{a}, s{sM}, v{a}")
    wa = [a, 23, 24, 25]
    for k, x in ((1, 1), (2, 4), (3, 5)): I(f"v_xor_b32 v{wa[k]}, {x*16}, v{a}")
    for tb, cb in ((0, 0), (1, 0), (0, 1), (1, 1)):
        for i in range(4):
            I(f"ds_write_b128 v{wa[i]}, {v(ACC[tb*2+cb]+4*i,4)} offset:{tb*8192+cb*128}")
    I(f"v_lshlrev_b32 v{b}, 1, v10")
    I(f"v_xor_b32 v{b}, v{b}, v9")
    I(f"v_lshlrev_b32 v{b}, 4, v{b}")
    I(f"v_lshl_add_u32 v{b}, v9, 8, v{b}")
    I(f"s_lshl_b32 s{sT0}, s{sW}, 12")
    I(f"v_add_u32 v{b}, s{sT0}, v{b}")
    I(f"v_xor_b32 v{c}, 16, v{b}")
    hi = []
    if RING * 3 + 2048 > 65535:
        I(f"v_add_u32 v26, {2*RING}, v{b}"); I(f"v_add_u32 v27, {2*RING}, v{c}")
    XU = HR + 64 - 64
    for u in range(2):
        for k in range(4):
            I(f"v_lshlrev_b32 v{HR+8*u+2*k}, 16, v{vX+4*u+k}")
            I(f"v_and_b32 v{HR+8*u+2*k+1}, 0xffff0000, v{vX+4*u+k}")
    P.wait_lg()
    I("s_barrier")
    stamp(P, 11)
    R = ACC[0]
    for u in range(2):
        for p in range(4):
            for e in range(2):
                if RING * 3 + 2048 > 65535 and p >= 2: ad, off = (26, 27)[e], (p - 2) * RING
                else: ad, off = (b, c)[e], p * RING
                I(f"ds_read_b128 {v(R+32*u+8*p+4*e,4)}, v{ad} offset:{off+u*2048}")
    for u in range(2):
        for p in range(4):
            for k in range(8):
                I(f"v_add_f32 v{HR+8*u+k}, v{HR+8*u+k}, v{R+32*u+8*p+k}")
        for k in range(4):
            I(f"v_cvt_pk_bf16_f32 v{HR+8*u+k}, v{HR+8*u+2*k}, v{HR+8*u+2*k+1}")
        I(f"buffer_store_dwordx4 {v(HR+8*u,4)}, v{vXA}, {s(SOUT,4)}, s{(sXO, sT1)[u]} offen")
    dump_stamps(P, 13, SWS, sW, 4)
    P.label(f"L_{name}_end")
    I("s_endpgm")
    return P, lds, HR + 8 * D
```

```python
import sys
import k1, k2
from gen import build
args = sys.argv[1:]
out = args[0]; fl = set(args[1:])
k1.KN = fl
k1.PROF = "prof" in fl
P1 = k1.gen_k1("k1_kernel")
k1.PROF_ADD = 0x80000
D = 8
for f in fl:
    if f.startswith("D="): D = int(f[2:])
P2, lds2, nv2 = k2.gen_k2("k2_kernel", D)
print(P1.count, P1.nnop, P2.count, P2.nnop, lds2, nv2)
build([("k1_kernel", P1, 256, 512, k1.LDS_BYTES, 256), ("k2_kernel", P2, 256, 256, lds2, nv2)], out)
```

```python
import sys,re
src=sys.argv[1]; t=open(src).read(); base=src[:-2]
ls=re.findall(r"; @launch kernel=.*\n", t)
l1,l2=ls
open(base+'_112.s','w').write(t.replace(l1+l2,l1+l1+l2))
open(base+'_122.s','w').write(t.replace(l1+l2,l1+l2+l2))
open(base+'_1212.s','w').write(t.replace(l1+l2,l1+l2+l1+l2))
KD='''.p2align 6
.amdhsa_kernel {n}
  .amdhsa_next_free_vgpr 8
  .amdhsa_next_free_sgpr 96
  .amdhsa_accum_offset 8
  .amdhsa_group_segment_fixed_size 0
  .amdhsa_kernarg_size 88
  .amdhsa_user_sgpr_count 2
  .amdhsa_user_sgpr_kernarg_segment_ptr 1
  .amdhsa_system_sgpr_workgroup_id_x 1
.end_amdhsa_kernel
'''
k0='''.globl k0_kernel
.p2align 8
.type k0_kernel,@function
k0_kernel:
    s_memrealtime s[10:11]
    s_cmp_lg_u32 s2, 0
    s_cbranch_scc1 L_k0_end
    s_load_dwordx2 s[4:5], s[0:1], 80
    s_mov_b32 s6, 0x2000000
    s_mov_b32 s7, 0x20000
    s_waitcnt lgkmcnt(0)
    v_mov_b32 v1, 0x1800000
    v_mov_b32 v2, s10
    buffer_store_dword v2, v1, s[4:7], 0 offen
    s_waitcnt vmcnt(0)
L_k0_end:
    s_endpgm
.globl k3_kernel
.p2align 8
.type k3_kernel,@function
k3_kernel:
    s_cmp_lg_u32 s2, 0
    s_cbranch_scc1 L_k3_end
    s_load_dwordx2 s[4:5], s[0:1], 80
    s_mov_b32 s6, 0x2000000
    s_mov_b32 s7, 0x20000
    s_waitcnt lgkmcnt(0)
    v_mov_b32 v1, 0x1800000
    buffer_load_dword v2, v1, s[4:7], 0 offen
    s_waitcnt vmcnt(0)
    v_readfirstlane_b32 s12, v2
    s_mov_b32 s14, 0
L_k3_spin:
    s_memrealtime s[10:11]
    s_add_u32 s14, s14, 1
    s_waitcnt lgkmcnt(0)
    s_sub_u32 s13, s10, s12
    s_cmp_ge_u32 s13, 10000
    s_cbranch_scc1 L_k3_end
    s_cmp_lt_u32 s14, 100000
    s_cbranch_scc1 L_k3_spin
L_k3_end:
    s_endpgm
'''
l0="; @launch kernel=k0_kernel grid=(1,1,1) block=(64,1,1) lds=0\n"
l3="; @launch kernel=k3_kernel grid=(1,1,1) block=(64,1,1) lds=0\n"
e=t.replace(l1+l2,l0+l1+l2+l3).replace('.section .rodata,"a"\n',k0+'.section .rodata,"a"\n'+KD.format(n='k0_kernel')+KD.format(n='k3_kernel'))
open(base+'_fix.s','w').write(e)
```

```python
from asmlib import Prog, v, s

HF_OFF = 0
PHI_OFF = 0x800000
KVP_OFF = 0xC00000
WS_BYTES = 0x1000000
MISC = 131072
PH = MISC
ST = MISC
CSP = MISC + 24576
WPH = CSP + 4096
LDS_BYTES = 163840
LOG2E = 1.4426950408889634

SX, SWQ, SWG, SWU, SWS, SWP, SDB = 8, 12, 16, 20, 24, 28, 4
sW, sT, sA, sTY, sR, sI, sG = 32, 33, 34, 35, 36, 37, 38
sMX, sMW, sMG = 40, 41, 42
sO1, sO2, sO3, sC = 43, 44, 45, 46
sHF, sPHI, sONE, sHI, sVO, sB0 = 47, 48, 50, 51, 52, 53
sT0, sT1, sT2, sT3 = 54, 55, 56, 57
vL16, vGO, vUO = 0, 1, 2
vAG = [3, 4, 5]
vCG = 6
vLN = 7
vMU = 8
vC1, vSTD, vRS = 10, 11, 12
vT = [13, 14, 15]
TA, TB = 16, 20
CP, CD = 24, 28
FR = [32, 36, 40, 44]
AK, AV = 48, 64
GA = [80, 96, 112]
vXO, vWO = 80, 81
vAX = [[84, 85, 86, 87], [88, 89, 90, 91]]
vAA = [92, 93]
vCA = [94, 95]
vST = 96
def XR(i, kk): return 128 + (4 * i + kk) * 4

def fbits(x):
    import struct
    return "0x%08x" % struct.unpack("<I", struct.pack("<f", x))[0]

def cost(t):
    op = t.split()[0]
    if op.startswith(("v_exp", "v_rcp", "v_rsq", "v_log")): return 8
    if op.startswith("v_mfma"): return 8
    if op.startswith("v_"): return 4.5
    if op == "GAP": return float(t.split()[1])
    return 1

def dma_p1(P, step, typ, first=False):
    slot = (step % 4) * 32768
    tag = f"d{step}"
    P.I(f"s_add_u32 s{sC}, s{sR}, {step}")
    P.I(f"s_and_b32 s{sC}, s{sC}, 7")
    P.I(f"s_lshl_b32 s{sO1}, s{sC}, 7")
    P.I(f"s_add_u32 m0, s{sMX}, {slot}")
    P.I(f"s_add_u32 s{sO2}, s{sO1}, {16384 - 2048}")
    P.I(f"buffer_load_dwordx4 v{vXO}, {s(SX,4)}, s{sO1} offen lds", tag)
    P.I(f"buffer_load_dwordx4 v{vXO}, {s(SX,4)}, s{sO2} offen offset:2048 lds", tag)
    P.I(f"s_add_u32 m0, s{sMW}, {slot}")
    P.I(f"s_mul_i32 s{sO3}, s{sC}, {64*3072}")
    P.I(f"buffer_load_dwordx4 v{vWO}, {s(SWQ,4)}, s{sO3} offen lds", tag)
    if first or typ == 0:
        P.I(f"s_add_u32 m0, s{sMW}, {slot + 8192}")
        P.I(f"s_add_u32 s{sO3}, s{sO3}, s{sVO}")
        P.I(f"buffer_load_dwordx4 v{vWO}, {s(SWQ,4)}, s{sO3} offen lds", tag)

def dma_g(P, step):
    slot = (step % 4) * 32768
    tag = f"d{step}"
    P.I(f"s_add_u32 s{sC}, s{sR}, {step}")
    P.I(f"s_and_b32 s{sC}, s{sC}, 7")
    P.I(f"s_mul_i32 s{sO1}, s{sC}, {64*2752}")
    P.I(f"s_add_u32 m0, s{sMG}, {slot}")
    P.I(f"s_add_u32 s{sO2}, s{sO1}, {4*2752 - 1024}")
    P.I(f"buffer_load_dwordx4 v{vGO}, {s(SWG,4)}, s{sO1} offen lds", tag)
    P.I(f"buffer_load_dwordx4 v{vGO}, {s(SWG,4)}, s{sO2} offen offset:1024 lds", tag)
    P.I(f"s_add_u32 m0, s{sMG}, {slot + 16384}")
    P.I(f"buffer_load_dwordx4 v{vUO}, {s(SWU,4)}, s{sO1} offen lds", tag)
    P.I(f"buffer_load_dwordx4 v{vUO}, {s(SWU,4)}, s{sO2} offen offset:1024 lds", tag)

PROF = False
KN = set()
PROF_OFF = 0xE00000
PROF_ADD = 0
def pstamp(P, k):
    if PROF and "pro" in KN: P.raw(f"    s_memtime s[{60+2*k}:{61+2*k}]")
def stamp(P, k):
    if "pro" in KN and k:
        k += 6
        if k > 17: return
    if PROF:
        P.raw(f"    s_memtime s[{60+2*k}:{61+2*k}]")
        if k == 0: P.raw("    s_memrealtime s[98:99]")
def dump_stamps(P, n, sws, sw, waves):
    if not PROF: return
    I = P.I
    I("s_waitcnt vmcnt(0) lgkmcnt(0)")
    P.raw(f"    s_memtime s[{60+2*(n-1)}:{61+2*(n-1)}]")
    P.raw("    s_memrealtime s[100:101]")
    P.raw("    s_waitcnt lgkmcnt(0)")
    I(f"s_mul_i32 s58, s2, {waves}")
    I(f"s_add_u32 s58, s58, s{sw}")
    I(f"s_lshl_b32 s58, s58, 7")
    I(f"s_add_u32 s58, s58, {PROF_OFF + PROF_ADD}")
    I("s_mov_b64 exec, 1")
    I("v_mov_b32 v1, 0")
    for k in range(n):
        I(f"v_mov_b32 v2, s{60+2*k}")
        I(f"buffer_store_dword v2, v1, {s(sws,4)}, s58 offen offset:{4*k}")
    for k, r in ((30, 98), (31, 100)):
        I(f"v_mov_b32 v2, s{r}")
        I(f"buffer_store_dword v2, v1, {s(sws,4)}, s58 offen offset:{4*k}")
    I("s_waitcnt vmcnt(0)")

def prologue(P, name):
    I = P.I
    stamp(P, 0)
    I("s_cmp_ge_u32 s2, 256")
    I(f"s_cbranch_scc1 L_{name}_end")
    I(f"s_load_dwordx2 {s(SX,2)}, s[0:1], 0")
    I(f"s_load_dwordx2 {s(SWQ,2)}, s[0:1], 8")
    I(f"s_load_dwordx2 {s(SWP,2)}, s[0:1], 16")
    I(f"s_load_dwordx2 {s(SWG,2)}, s[0:1], 40")
    I(f"s_load_dwordx2 {s(SWU,2)}, s[0:1], 48")
    I(f"s_load_dwordx2 {s(SWS,2)}, s[0:1], 80")
    I(f"s_load_dwordx2 {s(SDB,2)}, s[0:1], 72")
    I(f"v_lshrrev_b32 v1, 6, v0")
    I(f"v_and_b32 v{vLN}, 63, v0")
    I(f"v_readfirstlane_b32 s{sW}, v1")
    I(f"s_and_b32 s{sT0}, s2, 1")
    I(f"s_bfe_u32 s{sT1}, s2, 0x30003")
    I(f"s_lshl3_add_u32 s{sT}, s{sT0}, s{sT1}")
    I(f"s_lshr_b32 s{sT2}, s2, 6")
    I(f"s_lshr_b32 s{sTY}, s{sT2}, 1")
    I(f"s_and_b32 s{sT0}, s2, 6")
    I(f"s_and_b32 s{sT1}, s{sT2}, 1")
    I(f"s_add_u32 s{sA}, s{sT0}, s{sT1}")
    I(f"s_lshl1_add_u32 s{sR}, s{sT2}, s{sT}")
    I(f"s_and_b32 s{sI}, s{sW}, 3")
    I(f"s_lshr_b32 s{sG}, s{sW}, 2")
    for r, n in ((SX, 2097152), (SWQ, 512*3072), (SWP, 16384), (SWG, 512*2752), (SWU, 512*2752), (SWS, WS_BYTES), (SDB, 256)):
        I(f"s_mov_b32 s{r+2}, {n}")
        I(f"s_mov_b32 s{r+3}, 0x20000")
    I(f"s_and_b32 s{sT0}, s{sW}, 1")
    I(f"s_lshr_b32 s{sT1}, s{sW}, 1")
    I(f"s_lshl2_add_u32 s{sT1}, s{sT1}, s{sT0}")
    I(f"s_lshl_b32 s{sMX}, s{sT1}, 10")
    I(f"s_lshl4_add_u32 s{sT1}, s{sT}, s{sT1}")
    I(f"s_lshl_b32 s{sT1}, s{sT1}, 13")
    I(f"s_lshl_b32 s{sT0}, s{sT0}, 2")
    I(f"v_lshrrev_b32 v2, 4, v{vLN}")
    I(f"v_lshrrev_b32 v3, 3, v{vLN}")
    I(f"v_and_b32 v4, 7, v{vLN}")
    I(f"v_or_b32 v5, s{sT0}, v2")
    I(f"v_xor_b32 v5, v5, v4")
    I(f"v_lshlrev_b32 v5, 4, v5")
    I(f"v_lshl_add_u32 v5, v3, 10, v5")
    I(f"v_add_u32 v{vXO}, s{sT1}, v5")
    I(f"s_lshl_b32 s{sMW}, s{sW}, 10")
    I(f"s_add_u32 s{sMW}, s{sMW}, 16384")
    I(f"s_mul_i32 s{sT0}, s{sW}, {8*3072}")
    I(f"s_lshl_b32 s{sT1}, s{sA}, 7")
    I(f"s_add_u32 s{sT0}, s{sT0}, s{sT1}")
    I(f"s_cmp_eq_u32 s{sTY}, 0")
    I(f"s_cselect_b32 s{sT1}, 1024, 0")
    I(f"s_cselect_b32 s{sVO}, s{sT1}, 0x7f000000")
    I(f"s_add_u32 s{sT0}, s{sT0}, s{sT1}")
    I(f"v_and_b32 v5, 1, v2")
    I(f"v_lshlrev_b32 v5, 2, v5")
    I(f"v_xor_b32 v5, v5, v4")
    I(f"v_lshlrev_b32 v5, 4, v5")
    I(f"v_mul_u32_u24 v6, 3072, v3")
    I(f"v_add3_u32 v{vWO}, v5, v6, s{sT0}")
    pstamp(P, 1)
    I("s_waitcnt lgkmcnt(0)")
    pstamp(P, 2)
    dma_p1(P, 0, 0, True)
    pstamp(P, 3)
    dma_p1(P, 1, 0, True)
    pstamp(P, 4)
    I(f"v_lshlrev_b32 v5, 2, v{vLN}")
    I(f"s_lshl_b32 s{sT0}, s{sW}, 8")
    I(f"s_add_u32 m0, s{sT0}, {WPH}")
    I(f"s_lshl_b32 s{sT1}, s{sA}, 11")
    I(f"s_add_u32 s{sT1}, s{sT1}, s{sT0}")
    I(f"buffer_load_dword v5, {s(SWP,4)}, s{sT1} offen lds", "d2")
    dma_p1(P, 2, 0, True)
    dma_p1(P, 3, 0, True)
    pstamp(P, 5)

def setup2(P):
    I = P.I
    a, b, c, d, e = 13, 14, 15, 16, 17
    I(f"s_mov_b32 s{sONE}, 0x3f803f80")
    I(f"s_mov_b32 s{sHI}, 0xffff0000")
    I(f"s_lshl_b32 s{sMG}, s{sW}, 11")
    I(f"s_mul_i32 s{sT0}, s{sA}, 5")
    I(f"s_min_u32 s{sT0}, s{sT0}, 33")
    I(f"s_add_u32 s{sT0}, s{sT0}, 48")
    I(f"s_mul_i32 s{sT1}, s{sA}, 6")
    I(f"s_cmp_eq_u32 s{sTY}, 0")
    I(f"s_cselect_b32 s{sB0}, s{sT0}, s{sT1}")
    I(f"s_add_u32 s{sT2}, s{sTY}, 5")
    I(f"s_mul_i32 s{sT0}, s{sW}, {8*2752}")
    I(f"s_lshl_b32 s{sT1}, s{sB0}, 5")
    I(f"s_add_u32 s{sT0}, s{sT0}, s{sT1}")
    I(f"v_mov_b32 v{e}, v2")
    I(f"v_mul_u32_u24 v{a}, 2752, v{e}")
    I(f"v_and_b32 v{b}, 1, v{vLN}")
    I(f"v_lshlrev_b32 v{b}, 4, v{b}")
    I(f"v_add3_u32 v{a}, v{a}, v{b}, s{sT0}")
    I(f"v_bfe_u32 v{b}, v{vLN}, 1, 3")
    I(f"v_lshlrev_b32 v{c}, 1, v{e}")
    I(f"v_xor_b32 v{b}, v{b}, v{c}")
    I(f"v_xor_b32 v{c}, 1, v{b}")
    I(f"v_mov_b32 v{d}, 0x7f000000")
    I(f"v_cmp_gt_u32 vcc, s{sT2}, v{b}")
    I(f"v_lshl_add_u32 v{b}, v{b}, 5, v{a}")
    I(f"v_cndmask_b32 v{vGO}, v{d}, v{b}, vcc")
    I(f"v_cmp_gt_u32 vcc, s{sT2}, v{c}")
    I(f"v_lshl_add_u32 v{c}, v{c}, 5, v{a}")
    I(f"v_cndmask_b32 v{vUO}, v{d}, v{c}, vcc")
    h, sb, r, sw = 18, 19, 20, 21
    I(f"v_lshrrev_b32 v{h}, 5, v{vLN}")
    I(f"v_bfe_u32 v{sb}, v{vLN}, 4, 1")
    I(f"v_bfe_u32 v{r}, v{vLN}, 2, 2")
    I(f"v_bfe_u32 v{a}, v{vLN}, 1, 1")
    I(f"v_and_b32 v{b}, 1, v{vLN}")
    I(f"v_lshl_or_b32 v{sw}, v{b}, 1, v{a}")
    I(f"v_lshlrev_b32 v{sw}, 3, v{sw}")
    I(f"v_lshl_add_u32 v{a}, v{h}, 3, v{r}")
    I(f"v_and_b32 v{b}, 2, v{r}")
    I(f"v_or_b32 v{b}, v{b}, v{sb}")
    I(f"v_lshl_add_u32 v{b}, v{b}, 5, v{sw}")
    I(f"v_lshl_add_u32 v{b}, v{a}, 7, v{b}")
    I(f"v_add_u32 v{b}, 16384, v{b}")
    I(f"s_lshl_b32 s{sT0}, s{sG}, 6")
    I(f"v_xor_b32 v{vAA[0]}, s{sT0}, v{b}")
    I(f"v_add_u32 v{vAA[1]}, 65536, v{vAA[0]}")
    I(f"s_and_b32 s{sT0}, s{sI}, 1")
    I(f"s_lshl_b32 s{sT0}, s{sT0}, 6")
    I(f"s_lshr_b32 s{sT1}, s{sI}, 1")
    I(f"s_cmp_eq_u32 s{sTY}, 0")
    I(f"s_cselect_b32 s{sT3}, 13, 11")
    I(f"s_lshl_b32 s{sT1}, s{sT1}, s{sT3}")
    I(f"v_xor_b32 v{b}, s{sT0}, v{b}")
    I(f"v_add_u32 v{vCA[0]}, s{sT1}, v{b}")
    I(f"v_add_u32 v{vCA[1]}, 65536, v{vCA[0]}")
    I(f"v_lshl_or_b32 v{b}, v{r}, 1, v{sb}")
    I(f"v_lshl_add_u32 v{b}, v{b}, 5, v{sw}")
    I(f"v_lshl_add_u32 v{b}, v{a}, 8, v{b}")
    I(f"v_lshl_add_u32 v{22}, v{sb}, 14, v{b}")
    I(f"v_and_b32 v{a}, 31, v{vLN}")
    I(f"v_bfe_u32 v{b}, v{vLN}, 1, 3")
    I(f"v_xor_b32 v{b}, v{b}, v{h}")
    I(f"v_lshlrev_b32 v{b}, 4, v{b}")
    I(f"v_lshl_add_u32 v{b}, v{a}, 7, v{b}")
    I(f"s_lshl_b32 s{sT0}, s{sI}, 12")
    I(f"v_add_u32 v{vAX[0][0]}, s{sT0}, v{b}")
    for kk in range(1, 4): I(f"v_xor_b32 v{vAX[0][kk]}, {kk*32}, v{vAX[0][0]}")
    for kk in range(4): I(f"v_add_u32 v{vAX[1][kk]}, 65536, v{vAX[0][kk]}")
    I(f"v_and_b32 v{a}, 15, v{vLN}")
    I(f"v_lshlrev_b32 v{b}, 2, v{e}")
    I(f"v_mov_b32 v{c}, s{sONE}")
    I(f"v_cmp_eq_u32 vcc, v{a}, v{b}")
    I(f"v_cndmask_b32 v{CP}, 0, v{c}, vcc")
    for k in range(1, 4): I(f"v_mov_b32 v{CP+k}, v{CP}")
    I(f"v_mov_b32 v{vST}, 0")
    I(f"v_mov_b32 v{vST+1}, 0")
    I(f"v_lshlrev_b32 v{vL16}, 4, v{vLN}")
    I(f"s_lshl2_add_u32 s{sT0}, s{sT}, s{sI}")
    I(f"s_mul_i32 s{sT1}, s{sT0}, 118")
    I(f"s_add_u32 s{sT1}, s{sT1}, s{sB0}")
    I(f"s_mul_i32 s{sT2}, s{sG}, 3")
    I(f"s_add_u32 s{sT1}, s{sT1}, s{sT2}")
    I(f"s_add_u32 s{sT1}, s{sT1}, 32")
    I(f"s_lshl_b32 s{sHF}, s{sT1}, 10")
    I(f"s_mul_i32 s{sT1}, s{sT0}, 118")
    I(f"s_lshl1_add_u32 s{sT2}, s{sA}, s{sG}")
    I(f"s_lshl1_add_u32 s{sT1}, s{sT2}, s{sT1}")
    I(f"s_lshl_b32 s{sPHI}, s{sT1}, 10")

def csp_layout(typ):
    L = {}
    o = CSP
    if typ == 0:
        for n in ("K0", "K1", "V0", "V1"): L[n] = (o, 2); o += 512
        for p in range(4): L[p] = (o, 1); o += 256
        L[4] = (o, 4); o += 1024
    else:
        for n in ("K0", "K1"): L[n] = (o, 4); o += 1024
        for p in range(4): L[p] = (o, 1); o += 256
        for p in (4, 5): L[p] = (o, 2); o += 512
    assert o <= CSP + 4096
    return L

def corr(acc, off, Pn, T, ta):
    sh = {1: 2, 2: 3, 4: 4}[Pn]
    rd = []
    if Pn == 4:
        rd.append(f"v_add_u32 v{ta}, {off}, v{vL16}")
    else:
        rd.append(f"v_lshlrev_b32 v{ta}, {sh}, v{vLN}")
        rd.append(f"v_add_u32 v{ta}, {off}, v{ta}")
    rd.append({1: f"ds_read_b32 v{T}, v{ta}", 2: f"ds_read_b64 {v(T,2)}, v{ta}", 4: f"ds_read_b128 {v(T,4)}, v{ta}"}[Pn])
    o = []
    if Pn >= 2: o.append(f"v_add_f32 v{T}, v{T}, v{T+1}")
    if Pn == 4:
        o.append(f"v_add_f32 v{T+2}, v{T+2}, v{T+3}")
        o.append(f"v_add_f32 v{T}, v{T}, v{T+2}")
    o.append(f"v_and_b32 v{T+2}, s{sHI}, v{T}")
    o.append(f"v_sub_f32 v{T+1}, v{T}, v{T+2}")
    o.append(f"v_cvt_pk_bf16_f32 v{T}, v{T+2}, v{T+2}")
    o.append(f"v_cvt_pk_bf16_f32 v{T+1}, v{T+1}, v{T+1}")
    o.append(f"v_mfma_f32_32x32x8_bf16 {v(acc,16)}, {v(T,2)}, {v(vMU,2)}, {v(acc,16)}")
    return rd, o

def stats_read():
    a = vT[0]
    return [f"v_and_b32 v{a}, 31, v{vLN}",
            f"s_lshl_b32 s{sT0}, s{sI}, 10",
            f"s_add_u32 s{sT0}, s{sT0}, {ST}",
            f"v_lshlrev_b32 v{a}, 5, v{a}",
            f"v_add_u32 v{a}, s{sT0}, v{a}",
            f"ds_read_b128 {v(TA,4)}, v{a}",
            f"ds_read_b128 {v(TB,4)}, v{a} offset:16"]
def stats_calc():
    m, q = TA, TA + 1
    return [f"v_add_f32 v{TA}, v{TA}, v{TA+2}", f"v_add_f32 v{TA+1}, v{TA+1}, v{TA+3}",
            f"v_add_f32 v{TB}, v{TB}, v{TB+2}", f"v_add_f32 v{TB+1}, v{TB+1}, v{TB+3}",
            f"v_add_f32 v{m}, v{TA}, v{TB}", f"v_add_f32 v{q}, v{TA+1}, v{TB+1}",
            f"v_mul_f32 v{m}, {fbits(-1.0/512)}, v{m}",
            f"v_mul_f32 v{q}, {fbits(1.0/512)}, v{q}",
            f"v_fma_f32 v{q}, -v{m}, v{m}, v{q}",
            f"v_max_f32 v{q}, 0, v{q}",
            f"v_add_f32 v{q}, {fbits(1e-5)}, v{q}",
            f"v_rsq_f32 v{vRS}, v{q}",
            f"v_and_b32 v{TA+2}, s{sHI}, v{m}",
            f"v_sub_f32 v{TA+3}, v{m}, v{TA+2}",
            f"v_cvt_pk_bf16_f32 v{vMU}, v{TA+2}, v{TA+3}",
            f"v_mul_f32 v{vSTD}, v{q}, v{vRS}",
            f"v_mov_b32 v{vMU+1}, v{vMU}",
            f"v_mul_f32 v{vC1}, {fbits(-LOG2E)}, v{vRS}"]

def wphi_read(g, rho, T):
    a, b = vT[0], vT[1]
    return [f"v_lshrrev_b32 v{a}, 5, v{vLN}",
            f"v_bfe_u32 v{b}, v{vLN}, 2, 2",
            f"v_lshl_add_u32 v{a}, v{a}, 3, v{b}",
            f"v_lshlrev_b32 v{a}, 5, v{a}",
            f"v_and_b32 v{b}, 16, v{vLN}",
            f"v_add_u32 v{a}, v{a}, v{b}",
            f"v_and_b32 v{b}, 2, v{vLN}",
            f"v_lshl_add_u32 v{a}, v{b}, 2, v{a}",
            f"v_add_u32 v{a}, {WPH + (2*g+rho)*512}, v{a}",
            f"ds_read_b64_tr_b16 {v(T,2)}, v{a}",
            f"ds_read_b64_tr_b16 {v(T+2,2)}, v{a} offset:128",
            f"v_bfe_i32 v{b}, v{vLN}, 2, 1",
            f"v_and_b32 v{b}, 0x80008000, v{b}"]
def wphi_sign(T):
    return [f"v_xor_b32 v{T+k}, v{vT[1]}, v{T+k}" for k in range(4)]

def softmax(W, O=None):
    m, sm = vT[0], vT[2]
    if O is None: O = W
    o = [f"v_max3_f32 v{m}, v{W}, v{W+1}, v{W+2}"]
    for k in range(3, 15, 2): o.append(f"v_max3_f32 v{m}, v{m}, v{W+k}, v{W+k+1}")
    o.append(f"v_max_f32 v{m}, v{m}, v{W+15}")
    o.append(f"v_mul_f32 v{m}, v{m}, v{vC1}")
    for k in range(16):
        o.append(f"v_fma_f32 v{W+k}, v{W+k}, -v{vC1}, v{m}")
    for k in range(16):
        o.append(f"v_exp_f32 v{W+k}, v{W+k}")
        if k == 2: o.append(f"v_add_f32 v{sm}, v{W}, v{W+1}")
        if k > 2: o.append(f"v_add_f32 v{sm}, v{sm}, v{W+k-1}")
    o.append(f"v_add_f32 v{sm}, v{sm}, v{W+15}")
    o.append(f"v_rcp_f32 v{sm}, v{sm}")
    for k in range(8):
        o.append(f"v_mul_f32 v{W+2*k}, v{W+2*k}, v{sm}")
        o.append(f"v_mul_f32 v{W+2*k+1}, v{W+2*k+1}, v{sm}")
        o.append(f"v_cvt_pk_bf16_f32 v{O+k}, v{W+2*k}, v{W+2*k+1}")
    return o

def glu_epi(acc, b):
    o = []
    for k in range(8): o.append(f"v_mul_f32 v{acc+k}, v{acc+k}, v{vC1}")
    for k in range(8): o.append(f"v_exp_f32 v{acc+k}, v{acc+k}")
    for k in range(8): o.append(f"v_fma_f32 v{acc+k}, v{acc+k}, v{vSTD}, v{vSTD}")
    for k in range(8): o.append(f"v_rcp_f32 v{acc+k}, v{acc+k}")
    for k in range(4):
        o.append(f"v_mul_f32 v{acc+2*k}, v{acc+2*k}, v{acc+8+2*k}")
        o.append(f"v_mul_f32 v{acc+2*k+1}, v{acc+2*k+1}, v{acc+9+2*k}")
    for k in range(4):
        o.append(f"v_cvt_pk_bf16_f32 v{acc+k}, v{acc+2*k}, v{acc+2*k+1}")
    o.append(f"buffer_store_dwordx4 {v(acc,4)}, v{vL16}, {s(SWS,4)}, s{sHF} offen offset:{b*1024}")
    return o

def stream(P, typ, g, name, M=2, D=3):
    I = P.I
    L = csp_layout(typ)
    nb = 3 if (typ == 1 or g == 0) else 2
    for b in range(nb): I(f"v_xor_b32 v{vAG[b]}, {(3*g+b)*32}, v22")
    if g == 1:
        I(f"s_lshl_b32 s{sT0}, s{sI}, 5")
        I(f"v_xor_b32 v{vCG}, s{sT0}, v22")
        ckk = [0, 1, 2, 3]
    elif typ == 1:
        I(f"s_lshr_b32 s{sT0}, s{sI}, 1")
        I(f"s_add_u32 s{sT0}, s{sT0}, 4")
        I(f"s_lshl_b32 s{sT0}, s{sT0}, 5")
        I(f"s_and_b32 s{sT1}, s{sI}, 1")
        I(f"s_lshl_b32 s{sT1}, s{sT1}, 13")
        I(f"v_xor_b32 v{vCG}, s{sT0}, v22")
        I(f"v_add_u32 v{vCG}, s{sT1}, v{vCG}")
        ckk = [0, 1]
    else:
        I(f"s_lshl_b32 s{sT1}, s{sI}, 12")
        I(f"v_xor_b32 v{vCG}, {4*32}, v22")
        I(f"v_add_u32 v{vCG}, s{sT1}, v{vCG}")
        ckk = [0]
    pstamp(P, 6)
    items = []
    def item(bar, addr, imm, second, mf, pre=()):
        items.append(dict(bar=bar, addr=addr, imm=imm, second=second, mf=mf, pre=list(pre)))
    def mm(acc, x, first): return lambda f: f"v_mfma_f32_32x32x16_bf16 {v(acc,16)}, {v(f,4)}, {v(x,4)}, {'0' if first else v(acc,16)}"
    def cm(first): return lambda f: f"v_mfma_f32_16x16x32_bf16 {v(CD,4)}, {v(CP,4)}, {v(f,4)}, {'0' if first else v(CD,4)}"
    first_item = {}
    for st in range(8):
        hi = (st % 4) >> 1; so = (st & 1) * 32768
        first_item[st] = len(items)
        xr = [f"ds_read_b128 {v(XR(st,kk),4)}, v{vAX[hi][kk]} offset:{so}" for kk in range(4)]
        pre = xr
        cks = [2*g, 2*g+1] if typ == 0 else [2*g]
        for n, kk in enumerate(cks):
            item(st if n == 0 else None, vCA[hi], so + kk*2048, 512, cm(st == 0 and n == 0), pre if n == 0 else ())
        for kk in range(4):
            item(None, vAA[hi], so + kk*2048, 512, mm(AK, XR(st,kk), st == 0 and kk == 0))
            if typ == 0: item(None, vAA[hi], so + kk*2048 + 8192, 512, mm(AV, XR(st,kk), st == 0 and kk == 0))
    tog = [f"v_xor_b32 v{r}, 0x10000, v{r}" for r in vAG[:nb] + [vCG]]
    for st in range(8, 16 - M):
        so = (st & 1) * 32768
        first_item[st] = len(items)
        seq = []
        for kk in range(4):
            if kk in ckk: seq.append((vCG, so + kk*4096, cm(st == 8 and kk == 0)))
            for b in range(nb): seq.append((vAG[b], so + kk*4096, mm(GA[b], XR(st-8,kk), st == 8 and kk == 0)))
        for n, (ad, im, mf) in enumerate(seq):
            item(st if n == 0 else None, ad, im, 1024, mf, tog if (n == 0 and st in (10, 12, 14)) else ())
    assert M == 2
    first_item[14] = len(items)
    n = 0
    for st in (14, 15):
        for kk in ckk:
            item(14 if n == 0 else None, vCG, (st & 1)*32768 + kk*4096, 1024, cm(False), tog if n == 0 else ()); n += 1
    last_cs = len(items) - 1
    blk_first = []
    for b in range(nb):
        blk_first.append(len(items))
        for st in (14, 15):
            for kk in range(4):
                item(None, vAG[b], (st & 1)*32768 + kk*4096, 1024, mm(GA[b], XR(st-8,kk), False))
    N = len(items)
    blk_first.append(N)
    def bslot(st): return first_item[st] - D
    fill = {n: [] for n in range(N + 1)}
    def spread(ins, n0, n1):
        tot = sum(cost(t) for t in ins); per = tot / (n1 - n0); acc = 0.0
        for t in ins:
            k = min(n0 + int(acc / per), n1 - 1)
            if not t.startswith("GAP"): fill[k].append(t)
            acc += cost(t)
    prebar = {}
    for st in range(8):
        d = []
        for kk in (2*g, 2*g+1):
            for j in range(4):
                x = XR(st, kk) + j
                d.append(f"v_dot2c_f32_bf16 v{vST}, s{sONE}, v{x}")
                d.append(f"v_dot2c_f32_bf16 v{vST+1}, v{x}, v{x}")
        sl = first_item[st] + (1 if typ == 0 else 0)
        fill[sl] += d
        if st == 7:
            a, b = vT[0], vT[1]
            w = []
            if typ == 0:
                w += [f"s_lshl_b32 s{sT0}, s{sI}, 9", f"s_add_u32 s{sT0}, s{sT0}, {CSP + 4*g}", f"v_lshlrev_b32 v{a}, 3, v{vLN}", f"v_add_u32 v{a}, s{sT0}, v{a}"]
            else:
                w += [f"s_and_b32 s{sT0}, s{sI}, 1", f"s_lshl_b32 s{sT0}, s{sT0}, 10", f"s_and_b32 s{sT1}, s{sI}, 2", f"s_lshl1_add_u32 s{sT0}, s{sT1}, s{sT0}",
                      f"s_add_u32 s{sT0}, s{sT0}, {CSP + 8*g}", f"v_add_u32 v{a}, s{sT0}, v{vL16}"]
            w += [f"ds_write_b32 v{a}, v{CD}"]
            w += [f"v_and_b32 v{b}, 31, v{vLN}", f"v_lshlrev_b32 v{b}, 5, v{b}", f"v_lshrrev_b32 v{a}, 5, v{vLN}", f"v_lshl_add_u32 v{b}, v{a}, 3, v{b}",
                  f"s_lshl_b32 s{sT0}, s{sI}, 10", f"s_add_u32 s{sT0}, s{sT0}, {ST + 16*g}", f"v_add_u32 v{b}, s{sT0}, v{b}",
                  f"ds_write_b64 v{b}, {v(vST,2)} #pub"]
            fill[sl] += w
            assert sl < bslot(8)
            prebar[8] = "pub"
    p1_end = first_item[8]
    fill[bslot(8)] += stats_read()
    kn = "K%d" % g; vn = "V%d" % g
    rdK, coK = corr(AK, *L[kn], TB, vT[2])
    seg = stats_calc() + rdK
    if typ == 0:
        rdV, coV = corr(AV, *L[vn], TA, vT[2])
        seg += rdV + coK + coV
    else:
        seg += coK
    seg += wphi_read(g, 0, TB)
    seg += [f"v_cvt_pk_bf16_f32 v{AK+k}, v{AK+2*k}, v{AK+2*k+1}" for k in range(8)]
    if typ == 0:
        for k in range(8):
            seg += [f"v_mul_f32 v{AV+2*k}, v{AV+2*k}, v{vRS}", f"v_mul_f32 v{AV+2*k+1}, v{AV+2*k+1}, v{vRS}",
                    f"v_cvt_pk_bf16_f32 v{AK+8+k}, v{AV+2*k}, v{AV+2*k+1}"]
    seg += wphi_sign(TB)
    pk = lambda rho: f"v_mfma_f32_32x32x16_bf16 {v(AV,16)}, {v(TB,4)}, {v(AK+4*rho,4)}, 0"
    seg += [pk(0), "GAP 40"] + softmax(AV, AK + 8 if typ == 1 else None)
    def phi_out(rho):
        if typ == 1:
            return []
        a, b = vT[0], vT[1]
        return [f"v_and_b32 v{a}, 31, v{vLN}", f"v_mul_u32_u24 v{a}, 96, v{a}", f"s_mul_i32 s{sT0}, s{sI}, {32*96}", f"s_add_u32 s{sT0}, s{sT0}, {PH + g*12288}",
                f"v_and_b32 v{b}, 32, v{vLN}", f"v_add3_u32 v{a}, v{a}, v{b}, s{sT0}", f"v_lshrrev_b32 v{b}, 1, v{b}", f"v_sub_u32 v{b}, v{a}, v{b}",
                f"ds_write_b128 v{a}, {v(AV,4)}", f"ds_write_b128 v{a}, {v(AV+4,4)} offset:16",
                f"ds_write_b128 v{b}, {v(AK+8+4*rho,4)} offset:64 #ph{rho}"]
    seg2 = wphi_read(g, 1, TB) + wphi_sign(TB) + [pk(1), "GAP 40"] + softmax(AV)
    def kvround(rho):
        Wk = GA[2]; a, b = vT[0], vT[1]; A0, B0, DK, DZ = Wk, Wk + 4, Wk + 8, Wk + 12
        o = [f"v_lshrrev_b32 v{a}, 5, v{vLN}", f"v_bfe_u32 v{b}, v{vLN}, 2, 3", f"v_lshl_add_u32 v{a}, v{a}, 4, v{b}", f"v_mul_u32_u24 v{a}, 96, v{a}",
             f"v_and_b32 v{b}, 3, v{vLN}", f"v_lshl_add_u32 v{a}, v{b}, 3, v{a}",
             f"s_lshr_b32 s{sT0}, s{sI}, 1", f"s_mul_i32 s{sT0}, s{sT0}, 12288", f"s_add_u32 s{sT0}, s{sT0}, {PH}",
             f"s_and_b32 s{sT1}, s{sI}, 1", f"s_lshl_b32 s{sT1}, s{sT1}, 5",
             f"v_add_u32 v{b}, s{sT0}, v{a}", f"v_add_u32 v{a}, s{sT1}, v{b}"]
        o += [f"v_mov_b32 v{TA+k}, s{sONE}" for k in range(4)]
        for u in range(4):
            base = u * 32 * 96
            o += [f"ds_read_b64_tr_b16 {v(A0,2)}, v{a} offset:{base}", f"ds_read_b64_tr_b16 {v(A0+2,2)}, v{a} offset:{base+768}",
                  f"ds_read_b64_tr_b16 {v(B0,2)}, v{b} offset:{base+64}", f"ds_read_b64_tr_b16 {v(B0+2,2)}, v{b} offset:{base+64+768}" + (f" #kv{rho}" if u == 3 else ""),
                  "GAP 30",
                  f"v_mfma_f32_16x16x32_bf16 {v(DK,4)}, {v(A0,4)}, {v(B0,4)}, {'0' if u == 0 else v(DK,4)}",
                  f"v_mfma_f32_16x16x32_bf16 {v(DZ,4)}, {v(A0,4)}, {v(TA,4)}, {'0' if u == 0 else v(DZ,4)}"]
        o += [f"v_and_b32 v{a}, 15, v{vLN}", f"v_cmp_eq_u32 vcc, 0, v{a}", f"v_lshlrev_b32 v{a}, 4, v{a}", f"v_lshrrev_b32 v{b}, 5, v{vLN}", f"v_lshl_add_u32 v{a}, v{b}, 8, v{a}",
              f"v_bfe_u32 v{b}, v{vLN}, 4, 1", f"v_lshl_add_u32 v{a}, v{b}, 3, v{a}",
              f"v_lshrrev_b32 v{b}, 1, v{vLN}", f"v_and_b32 v{b}, 24, v{b}", f"v_mov_b32 v{TA}, 0x7f000000", f"v_cndmask_b32 v{b}, v{TA}, v{b}, vcc",
              f"s_and_b32 s{sT0}, s{sI}, 2", f"s_lshl2_add_u32 s{sT0}, s{sA}, s{sT0}", f"s_add_u32 s{sT0}, s{sT0}, {rho}", f"s_mul_i32 s{sT0}, s{sT0}, 17408",
              f"s_add_u32 s{sT0}, s{sT0}, {KVP_OFF}", f"s_and_b32 s{sT1}, s{sI}, 1",
              f"s_lshl1_add_u32 s{sT2}, s{sT}, s{sT1}",
              f"s_lshl_b32 s{sT3}, s{sT2}, 9", f"s_add_u32 s{sT3}, s{sT3}, s{sT0}",
              f"s_lshl_b32 s{sT2}, s{sT2}, 5", f"s_add_u32 s{sT2}, s{sT2}, s{sT0}", f"s_add_u32 s{sT2}, s{sT2}, 16384",
              f"v_cvt_pk_bf16_f32 v{DK}, v{DK}, v{DK+1}", f"v_cvt_pk_bf16_f32 v{DK+1}, v{DK+2}, v{DK+3}",
              f"v_cvt_pk_bf16_f32 v{DZ}, v{DZ}, v{DZ+1}", f"v_cvt_pk_bf16_f32 v{DZ+1}, v{DZ+2}, v{DZ+3}",
              f"buffer_store_dwordx2 {v(DK,2)}, v{a}, {s(SWS,4)}, s{sT3} offen sc1",
              f"buffer_store_dwordx2 {v(DZ,2)}, v{b}, {s(SWS,4)}, s{sT2} offen sc1 #kvs{rho}"]
        return o
    if typ == 1:
        spread(seg + phi_out(0) + seg2 + phi_out(1), p1_end, bslot(14))
    else:
        spread(seg + phi_out(0), p1_end, bslot(11)); prebar[11] = "ph0"
        if g == 1:
            spread(kvround(0), bslot(11), bslot(12)); prebar[12] = "kv0"
            spread(seg2 + phi_out(1), bslot(12), bslot(14))
        else:
            spread(seg2, bslot(11), bslot(13))
            spread(phi_out(1), bslot(13), bslot(13) + 2)
        prebar[14] = "ph1"
    a = vT[0]
    if g == 1:
        w = [f"s_lshl_b32 s{sT0}, s{sI}, 8", f"s_add_u32 s{sT0}, s{sT0}, {L[0][0]}", f"v_lshlrev_b32 v{a}, 2, v{vLN}", f"v_add_u32 v{a}, s{sT0}, v{a}"]
    elif typ == 1:
        w = [f"s_lshr_b32 s{sT0}, s{sI}, 1", f"s_lshl_b32 s{sT0}, s{sT0}, 9", f"s_and_b32 s{sT1}, s{sI}, 1", f"s_lshl2_add_u32 s{sT0}, s{sT1}, s{sT0}",
             f"s_add_u32 s{sT0}, s{sT0}, {L[4][0]}", f"v_lshlrev_b32 v{a}, 3, v{vLN}", f"v_add_u32 v{a}, s{sT0}, v{a}"]
    else:
        w = [f"s_lshl_b32 s{sT0}, s{sI}, 2", f"s_add_u32 s{sT0}, s{sT0}, {L[4][0]}", f"v_add_u32 v{a}, s{sT0}, v{vL16}"]
    fill[last_cs] += w
    fill[last_cs + 2] += [f"ds_write_b32 v{a}, v{CD} #cs2"]
    cbar = last_cs + 4
    fill[cbar] += ["WAITLG cs2", "s_barrier"]
    if typ == 0 and g == 1:
        spread(kvround(1), cbar + 1, blk_first[1])
    for b in range(nb):
        rd, co = corr(GA[b], *L[3*g+b], TB, vT[2])
        e = blk_first[b+1] - 1
        fill[max(e - 3, cbar)] += rd
        fill[e - 1] += co[:-1]
        fill[e] += co[-1:]
        if b + 1 < nb: spread(["GAP 30"] + glu_epi(GA[b], b), e + 1, blk_first[b+2] - 4)
        else: fill[N] += glu_epi(GA[b], b)
    def emit(t):
        if t.startswith("WAITLG"): P.wait_lg(t.split()[1]); return
        if t.startswith("STAMP"): stamp(P, int(t.split()[1])); return
        tag = None
        if "#" in t: t, tag = t.split("#"); t = t.strip()
        P.I(t, tag)
    for n in range(-D, N):
        m = n + D
        if m < N:
            it = items[m]
            if it["bar"] is not None:
                st = it["bar"]
                P.wait_vm("d15" if st == 14 else f"d{st}")
                if st in prebar: P.wait_lg(prebar[st])
                I("s_barrier")
                stamp(P, 1 + st)
                nxt = st + 2
                if st == 6 and ("pfx" in KN or "pfg" in KN): touch(P)
                if "nodma" in KN: pass
                elif 4 <= nxt < 8: dma_p1(P, nxt, typ)
                elif 8 <= nxt < 16: dma_g(P, nxt)
            for t in it["pre"]: I(t)
            f = FR[m % 4]
            I(f"ds_read_b64_tr_b16 {v(f,2)}, v{it['addr']} offset:{it['imm']}")
            I(f"ds_read_b64_tr_b16 {v(f+2,2)}, v{it['addr']} offset:{it['imm'] + it['second']}")
        if n >= 0:
            mt = items[n]["mf"](FR[n % 4])
            if not ("nocs" in KN and "16x16x32" in mt) and not "nomfma" in KN: I(mt)
            for t in fill[n]:
                if "nofill" in KN and t != "s_barrier": continue
                if "nodot" in KN and "dot2c" in t: continue
                emit(t)
    stamp(P, 16)
    for t in fill[N]: emit(t)
    stamp(P, 17)
    if typ == 0: kv_signal(P, g, name)
    else: o_phase(P, g, name)
    dump_stamps(P, 19, SWS, sW, 8)
    I("s_endpgm")

def touch(P):
    I = P.I
    a = vT[0]
    I(f"s_load_dwordx2 {s(SWP,2)}, s[0:1], 24")
    I(f"s_load_dwordx2 {s(SX,2)}, s[0:1], 56")
    I(f"s_mov_b32 s{SWP+2}, {512*1024}")
    I(f"s_mov_b32 s{SX+2}, {1376*1024}")
    I(f"v_lshlrev_b32 v{a}, 7, v{vLN}")
    if "pfx" in KN:
        I(f"s_lshr_b32 s{sT0}, s2, 3")
        I(f"s_lshl3_add_u32 s{sT0}, s{sT0}, s{sW}")
        I(f"s_lshl_b32 s{sT0}, s{sT0}, 13")
    else:
        I(f"s_lshl3_add_u32 s{sT0}, s2, s{sW}")
        I(f"s_lshl_b32 s{sT0}, s{sT0}, 10")
        I(f"v_mov_b32 v{a+1}, 0x7f000000")
        I(f"v_cmp_gt_u32 vcc, 8, v{vLN}")
        I(f"v_cndmask_b32 v{a}, v{a+1}, v{a}, vcc")
    I(f"v_add_u32 v{a}, s{sT0}, v{a}")
    I(f"v_subrev_u32 v{a+1}, {512*1024}, v{a}")
    I("s_waitcnt lgkmcnt(0)")
    P.raw(f"    buffer_load_dword v{TA}, v{a}, {s(SWP,4)}, 0 offen")
    P.vm.append((set(), "pf"))
    P.raw(f"    buffer_load_dword v{TA+1}, v{a+1}, {s(SX,4)}, 0 offen")
    P.vm.append((set(), "pf"))

def kv_signal(P, g, name):
    I = P.I
    if g == 1: P.wait_vm("kvs1")
    I("s_barrier")
    if g == 1:
        I(f"s_cmp_lg_u32 s{sI}, 0")
        I(f"s_cbranch_scc1 L_{name}_sig_done")
        I(f"s_lshl_b32 s{sT0}, s{sA}, 5")
        I("s_mov_b64 exec, 1")
        I("v_mov_b32 v128, 0")
        I("v_mov_b32 v129, 1")
        I(f"buffer_atomic_add v129, v128, {s(SDB,4)}, s{sT0} offen sc1")
        I("s_mov_b64 exec, -1")
        P.label(f"L_{name}_sig_done")

OT = PH
def o_phase(P, g, name):
    I = P.I
    a, b, c = 128, 129, 130
    SEL, DD, ZZ, LD = 132, 136, 140, 144
    lab = f"L_{name}_poll{g}"
    I(f"s_lshl_b32 s{sT0}, s{sA}, 5")
    I(f"v_mov_b32 v{a}, 0")
    I(f"s_mov_b32 s{sT1}, 0")
    I("s_waitcnt vmcnt(0)")
    I(f"s_cmp_lg_u32 s{sW}, 0")
    I(f"s_cbranch_scc1 {lab}_ok")
    P.label(lab)
    I(f"buffer_load_dword v{b}, v{a}, {s(SDB,4)}, s{sT0} offen sc1")
    I(f"s_add_u32 s{sT1}, s{sT1}, 1")
    I(f"v_readfirstlane_b32 s{sT2}, v{b}")
    I(f"s_cmp_ge_u32 s{sT2}, 16")
    I(f"s_cbranch_scc1 {lab}_ok")
    I("s_sleep 4")
    I(f"s_cmp_lt_u32 s{sT1}, 20000")
    I(f"s_cbranch_scc1 {lab}")
    P.label(lab + "_ok")
    I("s_barrier")
    I(f"s_lshr_b32 s{sT0}, s{sW}, 1")
    I(f"s_lshl2_add_u32 s{sT1}, s{sA}, s{sT0}")
    I(f"s_mul_i32 s{sT1}, s{sT1}, 17408")
    I(f"s_add_u32 s{sT1}, s{sT1}, {KVP_OFF}")
    I(f"s_and_b32 s{sT2}, s{sW}, 1")
    I(f"s_lshl_b32 s{sT3}, s{sT2}, 9")
    I(f"s_add_u32 s{sT3}, s{sT3}, s{sT1}")
    I(f"s_add_u32 s{sT1}, s{sT1}, 16384")
    I(f"v_and_b32 v{a}, 31, v{vLN}")
    I(f"v_lshrrev_b32 v{b}, 5, v{vLN}")
    I(f"v_lshlrev_b32 v{a}, 4, v{a}")
    I(f"v_lshl_add_u32 v{a}, v{b}, 10, v{a}")
    I(f"buffer_load_dwordx4 {v(ZZ,4)}, v{vL16}, {s(SWS,4)}, s{sT1} offen sc1")
    for p in range(8):
        if p and p % 2 == 0: I(f"s_add_u32 s{sT3}, s{sT3}, 4096")
        I(f"buffer_load_dwordx4 {v(LD+4*p,4)}, v{a}, {s(SWS,4)}, s{sT3} offen offset:{(p%2)*2048} sc1")
    I(f"v_and_b32 v{a}, 15, v{vLN}")
    I(f"v_lshrrev_b32 v{b}, 1, v{vLN}")
    I(f"v_and_b32 v{b}, 8, v{b}")
    I(f"v_xor_b32 v{b}, v{a}, v{b}")
    I(f"v_and_b32 v{c}, 1, v{b}")
    I(f"v_lshlrev_b32 v{c}, 4, v{c}")
    I(f"v_mov_b32 v{131}, 0x3f80")
    I(f"v_lshlrev_b32 v{c}, v{c}, v131")
    I(f"v_lshrrev_b32 v{b}, 1, v{b}")
    for r in range(4):
        I(f"v_cmp_eq_u32 vcc, {r}, v{b}")
        I(f"v_cndmask_b32 v{SEL+r}, 0, v{c}, vcc")
    I(f"s_lshl_b32 s{sT0}, s{sT0}, 11")
    I(f"s_add_u32 s{sT0}, s{sT0}, {OT}")
    I(f"v_add_u32 v{b}, s{sT0}, v{vL16}")
    I(f"ds_write_b128 v{b}, {v(ZZ,4)} offset:1024")
    I(f"s_lshl_b32 s{sT2}, s{sT2}, 5")
    I(f"s_add_u32 s{sT0}, s{sT0}, s{sT2}")
    I(f"v_lshrrev_b32 v{c}, 4, v{vLN}")
    I(f"v_lshlrev_b32 v{c}, 3, v{c}")
    I(f"v_lshl_add_u32 v{c}, v{a}, 6, v{c}")
    I(f"v_add_u32 v{c}, s{sT0}, v{c}")
    for p in range(8):
        I(f"v_mfma_f32_16x16x32_bf16 {v(DD,4)}, {v(SEL,4)}, {v(LD+4*p,4)}, {'0' if p == 0 else v(DD,4)}")
    I(f"v_cvt_pk_bf16_f32 v{DD}, v{DD}, v{DD+1}")
    I(f"v_cvt_pk_bf16_f32 v{DD+1}, v{DD+2}, v{DD+3}")
    I(f"ds_write_b64 v{c}, {v(DD,2)}")
    I(f"v_and_b32 v{a}, 19, v{vLN}")
    I(f"v_bfe_u32 v{b}, v{vLN}, 2, 1")
    I(f"v_lshl_or_b32 v{a}, v{b}, 3, v{a}")
    I(f"v_bfe_u32 v{b}, v{vLN}, 3, 1")
    I(f"v_lshl_or_b32 v{a}, v{b}, 2, v{a}")
    I(f"v_lshlrev_b32 v{a}, 6, v{a}")
    I(f"v_and_b32 v{b}, 32, v{vLN}")
    I(f"v_add_u32 v{a}, v{a}, v{b}")
    I(f"v_add_u32 v{a}, {OT + g*4096}, v{a}")
    P.wait_lg()
    I("s_barrier")
    AO = 144; DO = [160, 176]
    for rho in range(2):
        for f in range(2):
            I(f"ds_read_b128 {v(AO+8*rho+4*f,4)}, v{a} offset:{rho*2048+16*f}")
    for rho in range(2):
        ph = AK + 8 if rho == 0 else AV
        for f in range(2):
            I(f"v_mfma_f32_32x32x16_bf16 {v(DO[rho],16)}, {v(AO+8*rho+4*f,4)}, {v(ph+4*f,4)}, {'0' if f == 0 else v(DO[rho],16)}")
    for rho in range(2):
        D = DO[rho]
        for k in range(4): I(f"v_add_f32 v{D+8+k}, v{D+8+k}, v{D+12+k}")
        I(f"v_add_f32 v{D+8}, v{D+8}, v{D+9}")
        I(f"v_add_f32 v{D+10}, v{D+10}, v{D+11}")
        I(f"v_add_f32 v{D+8}, v{D+8}, v{D+10}")
        I(f"v_mov_b32 v{D+9}, v{D+8}")
        I(f"v_permlane32_swap_b32 v{D+8}, v{D+9}")
        I(f"v_add_f32 v{D+8}, v{D+8}, v{D+9}")
        I(f"v_add_f32 v{D+8}, {fbits(1e-6)}, v{D+8}")
        I(f"v_rcp_f32 v{D+8}, v{D+8}")
        for k in range(8): I(f"v_mul_f32 v{D+k}, v{D+k}, v{D+8}")
        for k in range(4): I(f"v_cvt_pk_bf16_f32 v{D+k}, v{D+2*k}, v{D+2*k+1}")
        I(f"buffer_store_dwordx4 {v(D,4)}, v{vL16}, {s(SWS,4)}, s{sPHI} offen offset:{rho*1024}")

def gen_k1(name):
    P = Prog()
    P.raw(f".globl {name}\n.p2align 8\n.type {name},@function\n{name}:")
    prologue(P, name)
    setup2(P)
    P.I(f"s_lshl1_add_u32 s{sT0}, s{sTY}, s{sG}")
    for k in (1, 2, 3):
        P.I(f"s_cmp_eq_u32 s{sT0}, {k}")
        P.I(f"s_cbranch_scc1 L_{name}_r{k}")
    snap = P.snapshot()
    for k in range(4):
        P.restore(snap)
        if k: P.raw(".p2align 6"); P.label(f"L_{name}_r{k}")
        stream(P, k >> 1, k & 1, name)
    P.label(f"L_{name}_end")
    P.I("s_endpgm")
    return P
```

```python
from asmlib import Prog, v, s
import k1
from k1 import HF_OFF, WS_BYTES, stamp, pstamp, dump_stamps

SX, SWO, SWD, SOUT, SWS = 8, 12, 16, 20, 24
sW, sH, sWF, sM, sXO = 32, 33, 34, 35, 36
sT0, sT1, sT2, sT3 = 40, 41, 42, 43
vLN, vL16, vH1, vWa, vWb, vRD0, vRD1, vXA = 1, 2, 3, 4, 5, 6, 7, 8
vX = 12
WF = [20, 28]
ACC = [36, 52, 68, 84]
HR = 100
NS = 30

def gen_k2(name, D=8, HF=0):
    P = Prog(); I = P.I
    SLOT = 2048; RING = max(D * SLOT, 16384)
    lds = 4 * RING
    P.raw(f".globl {name}\n.p2align 8\n.type {name},@function\n{name}:")
    stamp(P, 0)
    I("s_cmp_ge_u32 s2, 256")
    I(f"s_cbranch_scc1 L_{name}_end")
    I(f"s_load_dwordx2 {s(SWS,2)}, s[0:1], 80")
    I(f"s_load_dwordx2 {s(SWO,2)}, s[0:1], 24")
    I(f"s_load_dwordx2 {s(SWD,2)}, s[0:1], 56")
    I(f"s_load_dwordx2 {s(SX,2)}, s[0:1], 0")
    I(f"s_load_dwordx2 {s(SOUT,2)}, s[0:1], 64")
    I("v_lshrrev_b32 v2, 6, v0")
    I(f"v_and_b32 v{vLN}, 63, v0")
    I(f"v_readfirstlane_b32 s{sW}, v2")
    for r, n in ((SX, 2097152), (SWO, 512*1024), (SWD, 1376*1024), (SOUT, 2097152), (SWS, WS_BYTES)):
        I(f"s_mov_b32 s{r+2}, {n}")
        I(f"s_mov_b32 s{r+3}, 0x20000")
    I(f"s_and_b32 s{sT0}, s2, 7")
    I(f"s_lshr_b32 s{sT1}, s2, 6")
    I(f"s_lshl2_add_u32 s{sT0}, s{sT0}, s{sT1}")
    I(f"s_bfe_u32 s{sT1}, s2, 0x30003")
    I(f"s_mul_i32 s{sH}, s{sT0}, 236")
    I(f"s_add_u32 s{sH}, s{sH}, s{sW}")
    I(f"s_lshl_b32 s{sH}, s{sH}, 10")
    if HF: I(f"s_add_u32 s{sH}, s{sH}, {HF}")
    I(f"s_lshl_b32 s{sT1}, s{sT1}, 7")
    I(f"s_lshl_b32 s{sWF}, s{sW}, 14")
    I(f"s_add_u32 s{sWF}, s{sWF}, s{sT1}")
    I(f"s_mul_i32 s{sM}, s{sW}, {RING}")
    I(f"s_lshl2_add_u32 s{sT0}, s{sT0}, s{sW}")
    I(f"s_lshl_b32 s{sXO}, s{sT0}, 14")
    I(f"s_add_u32 s{sXO}, s{sXO}, s{sT1}")
    I(f"v_lshlrev_b32 v{vL16}, 4, v{vLN}")
    I(f"v_add_u32 v{vH1}, {118*1024}, v{vL16}")
    I(f"v_lshrrev_b32 v9, 3, v{vLN}")
    I(f"v_and_b32 v10, 7, v{vLN}")
    I(f"v_lshlrev_b32 v{vXA}, 4, v10")
    I(f"v_lshl_add_u32 v{vXA}, v9, 10, v{vXA}")
    I(f"v_and_b32 v11, 16, v{vLN}")
    I(f"v_lshlrev_b32 v11, 2, v11")
    I(f"v_xor_b32 v{vWa}, v11, v{vXA}")
    I(f"v_add_u32 v{vWb}, {8192-1024}, v{vWa}")
    pstamp(P, 1)
    I("s_waitcnt lgkmcnt(0)")
    pstamp(P, 2)
    def loads(i):
        o = []
        if i == 8: o.append(f"s_sub_u32 s{sWF}, s{sWF}, {8*65536}")
        if i == NS - 1:
            o += [f"s_cmp_ge_u32 s{sW}, 2", f"s_cselect_b32 s{sT0}, 4096, 0", f"s_sub_u32 s{sH}, s{sH}, s{sT0}"]
        W = SWO if i < 8 else SWD
        h = HR + (i % D) * 8
        o.append(f"s_add_u32 m0, s{sM}, {(i % D) * SLOT}")
        o.append(f"buffer_load_dwordx4 v{vWa}, {s(W,4)}, s{sWF} offen lds #d{i}")
        o.append(f"buffer_load_dwordx4 v{vWb}, {s(W,4)}, s{sWF} offen offset:1024 lds #d{i}")
        o.append(f"buffer_load_dwordx4 {v(h,4)}, v{vL16}, {s(SWS,4)}, s{sH} offen #d{i}")
        o.append(f"buffer_load_dwordx4 {v(h+4,4)}, v{vH1}, {s(SWS,4)}, s{sH} offen #d{i}")
        o.append(f"s_add_u32 s{sWF}, s{sWF}, 65536")
        o.append(f"s_add_u32 s{sH}, s{sH}, 4096")
        return o
    def emit(t):
        tag = None
        if "#" in t: t, tag = t.split("#"); t = t.strip()
        P.I(t, tag)
    for i in range(D - 1):
        for t in loads(i): emit(t)
        if i < 4: pstamp(P, 3 + i)
        if i == 1:
            h, sb, r, a, b = 20, 21, 22, 23, 24
            I(f"v_lshrrev_b32 v{h}, 5, v{vLN}")
            I(f"v_bfe_u32 v{sb}, v{vLN}, 4, 1")
            I(f"v_bfe_u32 v{r}, v{vLN}, 2, 2")
            I(f"v_bfe_u32 v{a}, v{vLN}, 1, 1")
            I(f"v_and_b32 v{b}, 1, v{vLN}")
            I(f"v_lshl_or_b32 v{a}, v{b}, 1, v{a}")
            I(f"v_lshlrev_b32 v{a}, 3, v{a}")
            I(f"v_and_b32 v{b}, 2, v{r}")
            I(f"v_or_b32 v{b}, v{b}, v{sb}")
            I(f"v_lshl_add_u32 v{a}, v{b}, 5, v{a}")
            I(f"v_lshl_add_u32 v{r}, v{h}, 3, v{r}")
            I(f"v_lshl_add_u32 v{a}, v{r}, 7, v{a}")
            I(f"v_add_u32 v{vRD0}, s{sM}, v{a}")
            I(f"v_xor_b32 v{vRD1}, 64, v{vRD0}")
    stamp(P, 1)
    def reads(i):
        f = WF[i & 1]; o = (i % D) * SLOT
        for cb, ad in enumerate((vRD0, vRD1)):
            I(f"ds_read_b64_tr_b16 {v(f+4*cb,2)}, v{ad} offset:{o}")
            I(f"ds_read_b64_tr_b16 {v(f+4*cb+2,2)}, v{ad} offset:{o+512}")
    P.wait_vm("d0"); reads(0)
    for i in range(NS):
        if i + 1 < NS:
            P.wait_vm(f"d{i+1}"); reads(i + 1)
        if i % 4 == 0: stamp(P, 2 + i // 4)
        ld = loads(i - 1 + D) if i - 1 + D < NS else []
        if i - 1 + D == NS:
            ld = [f"buffer_load_dwordx4 {v(vX,4)}, v{vXA}, {s(SX,4)}, s{sXO} offen",
                  f"s_add_u32 s{sT1}, s{sXO}, 8192",
                  f"buffer_load_dwordx4 {v(vX+4,4)}, v{vXA}, {s(SX,4)}, s{sT1} offen"]
        f = WF[i & 1]; h = HR + (i % D) * 8
        parts = [[], [], [], []]; k = 0
        for t in ld:
            parts[min(k, 3)].append(t)
            if t.startswith("buffer"): k += 1
        for n, (tb, cb) in enumerate(((0, 0), (1, 0), (0, 1), (1, 1))):
            A = ACC[tb*2+cb]
            I(f"v_mfma_f32_32x32x16_bf16 {v(A,16)}, {v(f+4*cb,4)}, {v(h+4*tb,4)}, {'0' if i == 0 else v(A,16)}")
            for t in parts[n]: emit(t)
    stamp(P, 10)
    a, b, c = 20, 21, 22
    I(f"v_and_b32 v{a}, 31, v{vLN}")
    I(f"v_lshrrev_b32 v{b}, 4, v{vLN}")
    I(f"v_and_b32 v{b}, 2, v{b}")
    I(f"v_xor_b32 v{b}, v{b}, v10")
    I(f"v_lshlrev_b32 v{b}, 4, v{b}")
    I(f"v_lshl_add_u32 v{a}, v{a}, 8, v{b}")
    I(f"v_add_u32 v{a}, s{sM}, v{a}")
    wa = [a, 23, 24, 25]
    for k, x in ((1, 1), (2, 4), (3, 5)): I(f"v_xor_b32 v{wa[k]}, {x*16}, v{a}")
    for tb, cb in ((0, 0), (1, 0), (0, 1), (1, 1)):
        for i in range(4):
            I(f"ds_write_b128 v{wa[i]}, {v(ACC[tb*2+cb]+4*i,4)} offset:{tb*8192+cb*128}")
    I(f"v_lshlrev_b32 v{b}, 1, v10")
    I(f"v_xor_b32 v{b}, v{b}, v9")
    I(f"v_lshlrev_b32 v{b}, 4, v{b}")
    I(f"v_lshl_add_u32 v{b}, v9, 8, v{b}")
    I(f"s_lshl_b32 s{sT0}, s{sW}, 12")
    I(f"v_add_u32 v{b}, s{sT0}, v{b}")
    I(f"v_xor_b32 v{c}, 16, v{b}")
    hi = []
    if RING * 3 + 2048 > 65535:
        I(f"v_add_u32 v26, {2*RING}, v{b}"); I(f"v_add_u32 v27, {2*RING}, v{c}")
    XU = HR + 64 - 64
    for u in range(2):
        for k in range(4):
            I(f"v_lshlrev_b32 v{HR+8*u+2*k}, 16, v{vX+4*u+k}")
            I(f"v_and_b32 v{HR+8*u+2*k+1}, 0xffff0000, v{vX+4*u+k}")
    P.wait_lg()
    I("s_barrier")
    stamp(P, 11)
    R = ACC[0]
    for u in range(2):
        for p in range(4):
            for e in range(2):
                if RING * 3 + 2048 > 65535 and p >= 2: ad, off = (26, 27)[e], (p - 2) * RING
                else: ad, off = (b, c)[e], p * RING
                I(f"ds_read_b128 {v(R+32*u+8*p+4*e,4)}, v{ad} offset:{off+u*2048}")
    for u in range(2):
        for p in range(4):
            for k in range(8):
                I(f"v_add_f32 v{HR+8*u+k}, v{HR+8*u+k}, v{R+32*u+8*p+k}")
        for k in range(4):
            I(f"v_cvt_pk_bf16_f32 v{HR+8*u+k}, v{HR+8*u+2*k}, v{HR+8*u+2*k+1}")
        I(f"buffer_store_dwordx4 {v(HR+8*u,4)}, v{vXA}, {s(SOUT,4)}, s{(sXO, sT1)[u]} offen")
    dump_stamps(P, 19 if 'pro' in k1.KN else 13, SWS, sW, 4)
    P.label(f"L_{name}_end")
    I("s_endpgm")
    return P, lds, HR + 8 * D
```

```python
import re, copy

TRANS = ("v_exp_f32", "v_log_f32", "v_rcp_f32", "v_rsq_f32", "v_sqrt_f32", "v_sin_f32", "v_cos_f32")

def regs_of(tok):
    tok = tok.strip()
    neg = tok.lstrip("-|").rstrip("|")
    m = re.fullmatch(r"([vsa])(\d+)", neg)
    if m: return m.group(1), {int(m.group(2))}
    m = re.fullmatch(r"([vsa])\[(\d+):(\d+)\]", neg)
    if m: return m.group(1), set(range(int(m.group(2)), int(m.group(3)) + 1))
    if neg == "vcc": return "s", {106, 107}
    if neg == "vcc_lo": return "s", {106}
    if neg == "vcc_hi": return "s", {107}
    if neg == "m0": return "s", {124}
    if neg == "exec": return "s", {126, 127}
    if neg == "exec_lo": return "s", {126}
    if neg == "exec_hi": return "s", {127}
    return None, set()

def split_ops(s):
    out, depth, cur = [], 0, ""
    for ch in s:
        if ch == "[": depth += 1
        if ch == "]": depth -= 1
        if ch == "," and depth == 0:
            out.append(cur.strip()); cur = ""
        else: cur += ch
    if cur.strip(): out.append(cur.strip())
    return out

class Ins:
    __slots__ = ("text", "op", "cls", "vw", "vr", "sw", "sr", "A", "B", "C", "D", "passes", "states", "wide", "dma")
    def __init__(self, text):
        self.text = text
        parts = text.split(None, 1)
        op = parts[0]; self.op = op
        rest = parts[1] if len(parts) > 1 else ""
        ops = split_ops(rest)
        toks = []
        for o in ops:
            toks.append(o.split()[0] if o.split() else o)
        mods = " ".join(" ".join(o.split()[1:]) for o in ops)
        self.vw, self.vr, self.sw, self.sr = set(), set(), set(), set()
        self.A = self.B = self.C = self.D = set(); self.passes = 0; self.states = 1; self.wide = False; self.dma = False
        def rd(t):
            k, r = regs_of(t)
            if k == "v": self.vr |= r
            elif k == "a": self.vr |= {x + 256 for x in r}
            elif k == "s": self.sr |= r
        def wr(t):
            k, r = regs_of(t)
            if k == "v": self.vw |= r
            elif k == "a": self.vw |= {x + 256 for x in r}
            elif k == "s": self.sw |= r
        def vset(t):
            k, r = regs_of(t)
            if k == "v": return set(r)
            if k == "a": return {x + 256 for x in r}
            return set()
        if op.startswith("v_mfma") or op.startswith("v_smfmac"):
            self.cls = "mfma"
            self.D, self.A, self.B, self.C = vset(toks[0]), vset(toks[1]), vset(toks[2]), vset(toks[3])
            if op.startswith("v_smfmac"):
                self.B = self.B | self.C; self.C = set(self.D)
            self.vw = set(self.D); self.vr = self.A | self.B | self.C
            self.passes = 8 if "32x32" in op else 4
        elif op.startswith("v_"):
            self.cls = "trans" if op.startswith(TRANS) else ("dot" if op.startswith("v_dot") else "valu")
            if op == "v_nop": pass
            elif op.startswith("v_permlane") and "swap" in op:
                for t in toks[:2]: rd(t); wr(t)
            elif op.startswith("v_cmp"):
                wr(toks[0])
                for t in toks[1:]: rd(t)
                if op.startswith("v_cmpx"): self.sw |= {126, 127}
            else:
                wr(toks[0])
                st = 1
                if "_co_" in op: wr(toks[1]); st = 2
                for t in toks[st:]: rd(t)
                if op.startswith(("v_fmac", "v_dot2c", "v_mac", "v_writelane")) : rd(toks[0])
        elif op.startswith("ds_"):
            self.cls = "ds"
            if op.startswith(("ds_read", "ds_bpermute", "ds_permute", "ds_swizzle")) or "_rtn" in op:
                wr(toks[0])
                for t in toks[1:]: rd(t)
            else:
                for t in toks: rd(t)
        elif op.startswith(("buffer_", "global_")):
            self.cls = "vmem"
            allmods = (" " + mods + " ")
            if op.startswith("buffer_load") and " lds " in allmods:
                self.dma = True
                for t in toks: rd(t)
                self.sr |= {124}
            elif op.startswith("global_load_lds"):
                self.dma = True
                for t in toks: rd(t)
                self.sr |= {124}
            elif "_load" in op:
                wr(toks[0])
                for t in toks[1:]: rd(t)
            elif "atomic" in op and " sc0 " in allmods:
                wr(toks[0])
                for t in toks: rd(t)
            else:
                for t in toks: rd(t)
                if "x3" in op or "x4" in op:
                    self.wide = vset(toks[0]) if op.startswith("buffer") else vset(toks[1])
        elif op.startswith("s_"):
            self.cls = "salu"
            if op == "s_nop": self.states = int(toks[0], 0) + 1
            elif op.startswith(("s_load", "s_memtime", "s_memrealtime", "s_buffer_load")):
                self.cls = "smem"; wr(toks[0])
                for t in toks[1:]: rd(t)
            elif op.startswith(("s_waitcnt", "s_barrier", "s_branch", "s_cbranch", "s_endpgm", "s_setprio", "s_sleep")): pass
            elif op.startswith("s_cmp"):
                for t in toks: rd(t)
            else:
                wr(toks[0])
                for t in toks[1:]: rd(t)
                if "saveexec" in op: self.sw |= {126, 127}
        else:
            raise ValueError("unknown op " + text)

def need(p, c):
    n = 0
    pv = p.cls in ("valu", "trans", "dot")
    cv = c.cls in ("valu", "trans", "dot")
    if p.cls == "mfma":
        big = 12 if p.passes == 8 else 8
        if c.cls == "mfma":
            if c.C & p.D:
                if not (c.C == p.D and c.passes == p.passes): n = max(n, big - 2)
            if (c.A | c.B) & p.D: n = max(n, big)
            if (c.D & p.D) and not (c.C & p.D): n = max(n, big)
        else:
            if (c.vr | c.vw) & p.D: n = max(n, big)
            if (cv or c.cls in ("ds", "vmem")) and (c.vw & p.C): n = max(n, 7 if p.passes == 8 else 3)
    if pv:
        if c.cls == "mfma" and (c.vr & p.vw): n = max(n, 3 if p.cls == "dot" else 2)
        if c.cls == "mfma" and (p.sw & {126, 127}): n = max(n, 4)
        if p.cls == "dot" and ((c.vr | c.vw) & p.vw):
            same_acc = (c.op == p.op and c.cls == "dot" and c.vw == p.vw)
            if not same_acc: n = max(n, 3)
        if p.cls == "trans" and (c.vr & p.vw) and c.cls != "trans": n = max(n, 1)
        if c.op.startswith("v_permlane") and (c.vr & p.vw): n = max(n, 2)
        if ("_dpp" in c.op or " row_" in c.text or "quad_perm" in c.text) and (c.vr & p.vw): n = max(n, 2)
        if c.op.startswith(("v_readfirstlane", "v_readlane")) and (c.vr & p.vw): n = max(n, 1)
        if p.sw:
            if c.cls == "vmem" and (c.sr & p.sw): n = max(n, 5)
            if cv and (c.sr & p.sw): n = max(n, 2)
            if cv and c.op.startswith("v_cndmask") and (p.sw & {106, 107}): n = max(n, 2)
            if (p.sw & {126, 127}) and c.op.startswith(("v_readfirstlane", "v_readlane", "v_permlane")): n = max(n, 4)
        if "sdwa" in p.op and cv and ((c.vr | c.vw) & p.vw): n = max(n, 1)
    if p.cls == "salu" and (124 in p.sw) and c.dma: n = max(n, 1)
    if p.cls == "vmem" and p.wide and (c.vw & p.wide): n = max(n, 2)
    return n

class Prog:
    def __init__(self):
        self.out = []
        self.hist = []
        self.lg = []
        self.vm = []
        self.smem = False
        self.nnop = 0
        self.count = {}
    def raw(self, t): self.out.append(t)
    def comment(self, t): self.out.append("    ; " + t)
    def label(self, n): self.out.append(n + ":")
    def snapshot(self): return (list(self.hist), list(self.lg), list(self.vm), self.smem)
    def restore(self, s): self.hist, self.lg, self.vm, self.smem = list(s[0]), list(s[1]), list(s[2]), s[3]
    def _emit(self, ins):
        self.out.append("    " + ins.text)
        self.hist.append(ins)
        if len(self.hist) > 24: self.hist.pop(0)
        self.count[ins.cls] = self.count.get(ins.cls, 0) + 1
    def _wait(self, vm=None, lg=None):
        parts = []
        if vm is not None:
            vm = min(vm, 63)
            if vm < len(self.vm):
                parts.append(f"vmcnt({vm})"); self.vm = self.vm[len(self.vm) - vm:] if vm else []
        if lg is not None:
            lg = min(lg, 15)
            if lg < len(self.lg) or (lg == 0 and self.smem):
                parts.append(f"lgkmcnt({lg})"); self.lg = self.lg[len(self.lg) - lg:] if lg else []
                if lg == 0: self.smem = False
        if parts: self._emit(Ins("s_waitcnt " + " ".join(parts)))
    def wait_vm(self, tag=None, lg=None):
        n = None
        if tag is None: n = 0
        else:
            for i in range(len(self.vm) - 1, -1, -1):
                if self.vm[i][1] == tag:
                    n = len(self.vm) - 1 - i; break
        self._wait(n, lg)
    def wait_lg(self, tag=None):
        n = None
        if tag is None: n = 0
        else:
            for i in range(len(self.lg) - 1, -1, -1):
                if self.lg[i][1] == tag:
                    n = len(self.lg) - 1 - i; break
        self._wait(None, n)
    def wait_regs(self, touch):
        vm = lg = None
        for i in range(len(self.vm) - 1, -1, -1):
            if self.vm[i][0] & touch: vm = len(self.vm) - 1 - i; break
        for i in range(len(self.lg) - 1, -1, -1):
            if self.lg[i][0] & touch: lg = len(self.lg) - 1 - i; break
        if vm is not None or lg is not None: self._wait(vm, lg)
    def I(self, text, tag=None):
        for t in text.split("\n"):
            t = t.strip()
            if t: self._one(t, tag)
    def _one(self, text, tag):
        ins = Ins(text)
        touch = ins.vr | ins.vw
        vm = lg = None
        for i in range(len(self.vm) - 1, -1, -1):
            if self.vm[i][0] & touch: vm = len(self.vm) - 1 - i; break
        for i in range(len(self.lg) - 1, -1, -1):
            if self.lg[i][0] & touch: lg = len(self.lg) - 1 - i; break
        if self.smem and ins.cls == "ds": lg = 0
        if vm is not None or lg is not None: self._wait(vm, lg)
        dist = 0; req = 0
        for p in reversed(self.hist):
            r = need(p, ins) - dist
            if r > req: req = r
            dist += p.states
            if dist >= 20: break
        while req > 0:
            k = min(req, 16)
            self._emit(Ins(f"s_nop {k-1}")); self.nnop += k; req -= k
        if ins.op == "s_waitcnt":
            m = re.search(r"vmcnt\((\d+)\)", text)
            if m:
                n = int(m.group(1)); self.vm = self.vm[max(0, len(self.vm) - n):] if n else []
            m = re.search(r"lgkmcnt\((\d+)\)", text)
            if m:
                n = int(m.group(1)); self.lg = self.lg[max(0, len(self.lg) - n):] if n else []
                if n == 0: self.smem = False
        self._emit(ins)
        if ins.cls == "ds": self.lg.append((set(ins.vw), tag))
        elif ins.cls == "vmem":
            self.vm.append((set(ins.vw), tag))
            assert len(self.vm) <= 63, "too many outstanding VMEM ops"
        elif ins.cls == "smem": self.smem = True
    def text(self): return "\n".join(self.out) + "\n"

def v(a, n=1): return f"v{a}" if n == 1 else f"v[{a}:{a+n-1}]"
def s(a, n=1): return f"s{a}" if n == 1 else f"s[{a}:{a+n-1}]"
```

```python
from asmlib import Prog, v, s

HF_OFF = 0
PHI_OFF = 0x800000
KVP_OFF = 0xC00000
WS_BYTES = 0x1000000
MISC = 131072
PH = MISC
ST = MISC
CSP = MISC + 24576
WPH = CSP + 4096
LDS_BYTES = 163840
LOG2E = 1.4426950408889634

SX, SWQ, SWG, SWU, SWS, SWP, SDB = 8, 12, 16, 20, 24, 28, 4
sW, sT, sA, sTY, sR, sI, sG = 32, 33, 34, 35, 36, 37, 38
sMX, sMW, sMG = 40, 41, 42
sO1, sO2, sO3, sC = 43, 44, 45, 46
sHF, sPHI, sONE, sHI, sVO, sB0 = 47, 48, 50, 51, 52, 53
sT0, sT1, sT2, sT3 = 54, 55, 56, 57
vL16, vGO, vUO = 0, 1, 2
vAG = [3, 4, 5]
vCG = 6
vLN = 7
vMU = 8
vC1, vSTD, vRS = 10, 11, 12
vT = [13, 14, 15]
TA, TB = 16, 20
CP, CD = 24, 28
FR = [32, 36, 40, 44]
AK, AV = 48, 64
GA = [80, 96, 112]
vXO, vWO = 80, 81
vAX = [[84, 85, 86, 87], [88, 89, 90, 91]]
vAA = [92, 93]
vCA = [94, 95]
vST = 96
def XR(i, kk): return 128 + (4 * i + kk) * 4

def fbits(x):
    import struct
    return "0x%08x" % struct.unpack("<I", struct.pack("<f", x))[0]

def cost(t):
    op = t.split()[0]
    if op.startswith(("v_exp", "v_rcp", "v_rsq", "v_log")): return 8
    if op.startswith("v_mfma"): return 8
    if op.startswith("v_"): return 4.5
    if op == "GAP": return float(t.split()[1])
    return 1

def dma_p1(P, step, typ, first=False):
    slot = (step % 4) * 32768
    tag = f"d{step}"
    P.I(f"s_add_u32 s{sC}, s{sR}, {step}")
    P.I(f"s_and_b32 s{sC}, s{sC}, 7")
    P.I(f"s_lshl_b32 s{sO1}, s{sC}, 7")
    P.I(f"s_add_u32 m0, s{sMX}, {slot}")
    P.I(f"s_add_u32 s{sO2}, s{sO1}, {16384 - 2048}")
    P.I(f"buffer_load_dwordx4 v{vXO}, {s(SX,4)}, s{sO1} offen lds", tag)
    P.I(f"buffer_load_dwordx4 v{vXO}, {s(SX,4)}, s{sO2} offen offset:2048 lds", tag)
    P.I(f"s_add_u32 m0, s{sMW}, {slot}")
    P.I(f"s_mul_i32 s{sO3}, s{sC}, {64*3072}")
    P.I(f"buffer_load_dwordx4 v{vWO}, {s(SWQ,4)}, s{sO3} offen lds", tag)
    if first or typ == 0:
        P.I(f"s_add_u32 m0, s{sMW}, {slot + 8192}")
        P.I(f"s_add_u32 s{sO3}, s{sO3}, s{sVO}")
        P.I(f"buffer_load_dwordx4 v{vWO}, {s(SWQ,4)}, s{sO3} offen lds", tag)

def dma_g(P, step):
    slot = (step % 4) * 32768
    tag = f"d{step}"
    P.I(f"s_add_u32 s{sC}, s{sR}, {step}")
    P.I(f"s_and_b32 s{sC}, s{sC}, 7")
    P.I(f"s_mul_i32 s{sO1}, s{sC}, {64*2752}")
    P.I(f"s_add_u32 m0, s{sMG}, {slot}")
    P.I(f"s_add_u32 s{sO2}, s{sO1}, {4*2752 - 1024}")
    P.I(f"buffer_load_dwordx4 v{vGO}, {s(SWG,4)}, s{sO1} offen lds", tag)
    P.I(f"buffer_load_dwordx4 v{vGO}, {s(SWG,4)}, s{sO2} offen offset:1024 lds", tag)
    P.I(f"s_add_u32 m0, s{sMG}, {slot + 16384}")
    P.I(f"buffer_load_dwordx4 v{vUO}, {s(SWU,4)}, s{sO1} offen lds", tag)
    P.I(f"buffer_load_dwordx4 v{vUO}, {s(SWU,4)}, s{sO2} offen offset:1024 lds", tag)

def HM(): return " sc1" if "hsc1" in KN else (" nt" if "hnt" in KN else (" sc0 sc1" if "hsc01" in KN else ""))
PROF = False
KN = set()
PROF_OFF = 0xE00000
PROF_ADD = 0
def pstamp(P, k):
    if PROF and "pro" in KN: P.raw(f"    s_memtime s[{60+2*k}:{61+2*k}]")
def stamp(P, k):
    if "pro" in KN and k:
        k += 6
        if k > 17: return
    if PROF:
        P.raw(f"    s_memtime s[{60+2*k}:{61+2*k}]")
        if k == 0: P.raw("    s_memrealtime s[98:99]")
def dump_stamps(P, n, sws, sw, waves, extra=None):
    if not PROF: return
    I = P.I
    I("s_waitcnt vmcnt(0) lgkmcnt(0)")
    P.raw(f"    s_memtime s[{60+2*(n-1)}:{61+2*(n-1)}]")
    P.raw("    s_memrealtime s[100:101]")
    P.raw("    s_waitcnt lgkmcnt(0)")
    I(f"s_mul_i32 s58, s2, {waves}")
    I(f"s_add_u32 s58, s58, s{sw}")
    I(f"s_lshl_b32 s58, s58, 7")
    I(f"s_add_u32 s58, s58, {PROF_OFF + PROF_ADD}")
    I("s_mov_b64 exec, 1")
    I("v_mov_b32 v1, 0")
    for k in range(n):
        I(f"v_mov_b32 v2, s{60+2*k}")
        I(f"buffer_store_dword v2, v1, {s(sws,4)}, s58 offen offset:{4*k}")
    for k, r in ((30, 98), (31, 100)) + (((29, extra),) if extra else ()):
        I(f"v_mov_b32 v2, s{r}")
        I(f"buffer_store_dword v2, v1, {s(sws,4)}, s58 offen offset:{4*k}")
    I("s_waitcnt vmcnt(0)")

def prologue(P, name):
    I = P.I
    stamp(P, 0)
    I("s_cmp_ge_u32 s2, 256")
    I(f"s_cbranch_scc1 L_{name}_end")
    I(f"s_load_dwordx2 {s(SX,2)}, s[0:1], 0")
    I(f"s_load_dwordx2 {s(SWQ,2)}, s[0:1], 8")
    I(f"s_load_dwordx2 {s(SWP,2)}, s[0:1], 16")
    I(f"s_load_dwordx2 {s(SWG,2)}, s[0:1], 40")
    I(f"s_load_dwordx2 {s(SWU,2)}, s[0:1], 48")
    I(f"s_load_dwordx2 {s(SWS,2)}, s[0:1], 80")
    I(f"s_load_dwordx2 {s(SDB,2)}, s[0:1], 72")
    I(f"v_lshrrev_b32 v1, 6, v0")
    I(f"v_and_b32 v{vLN}, 63, v0")
    I(f"v_readfirstlane_b32 s{sW}, v1")
    I(f"s_and_b32 s{sT0}, s2, 1")
    I(f"s_bfe_u32 s{sT1}, s2, 0x30003")
    I(f"s_lshl3_add_u32 s{sT}, s{sT0}, s{sT1}")
    I(f"s_lshr_b32 s{sT2}, s2, 6")
    I(f"s_lshr_b32 s{sTY}, s{sT2}, 1")
    I(f"s_and_b32 s{sT0}, s2, 6")
    I(f"s_and_b32 s{sT1}, s{sT2}, 1")
    I(f"s_add_u32 s{sA}, s{sT0}, s{sT1}")
    I(f"s_lshl1_add_u32 s{sR}, s{sT2}, s{sT}")
    I(f"s_and_b32 s{sI}, s{sW}, 3")
    I(f"s_lshr_b32 s{sG}, s{sW}, 2")
    for r, n in ((SX, 2097152), (SWQ, 512*3072), (SWP, 16384), (SWG, 512*2752), (SWU, 512*2752), (SWS, WS_BYTES), (SDB, 256)):
        I(f"s_mov_b32 s{r+2}, {n}")
        I(f"s_mov_b32 s{r+3}, 0x20000")
    I(f"s_and_b32 s{sT0}, s{sW}, 1")
    I(f"s_lshr_b32 s{sT1}, s{sW}, 1")
    I(f"s_lshl2_add_u32 s{sT1}, s{sT1}, s{sT0}")
    I(f"s_lshl_b32 s{sMX}, s{sT1}, 10")
    I(f"s_lshl4_add_u32 s{sT1}, s{sT}, s{sT1}")
    I(f"s_lshl_b32 s{sT1}, s{sT1}, 13")
    I(f"s_lshl_b32 s{sT0}, s{sT0}, 2")
    I(f"v_lshrrev_b32 v2, 4, v{vLN}")
    I(f"v_lshrrev_b32 v3, 3, v{vLN}")
    I(f"v_and_b32 v4, 7, v{vLN}")
    I(f"v_or_b32 v5, s{sT0}, v2")
    I(f"v_xor_b32 v5, v5, v4")
    I(f"v_lshlrev_b32 v5, 4, v5")
    I(f"v_lshl_add_u32 v5, v3, 10, v5")
    I(f"v_add_u32 v{vXO}, s{sT1}, v5")
    I(f"s_lshl_b32 s{sMW}, s{sW}, 10")
    I(f"s_add_u32 s{sMW}, s{sMW}, 16384")
    I(f"s_mul_i32 s{sT0}, s{sW}, {8*3072}")
    I(f"s_lshl_b32 s{sT1}, s{sA}, 7")
    I(f"s_add_u32 s{sT0}, s{sT0}, s{sT1}")
    I(f"s_cmp_eq_u32 s{sTY}, 0")
    I(f"s_cselect_b32 s{sT1}, 1024, 0")
    I(f"s_cselect_b32 s{sVO}, s{sT1}, 0x7f000000")
    I(f"s_add_u32 s{sT0}, s{sT0}, s{sT1}")
    I(f"v_and_b32 v5, 1, v2")
    I(f"v_lshlrev_b32 v5, 2, v5")
    I(f"v_xor_b32 v5, v5, v4")
    I(f"v_lshlrev_b32 v5, 4, v5")
    I(f"v_mul_u32_u24 v6, 3072, v3")
    I(f"v_add3_u32 v{vWO}, v5, v6, s{sT0}")
    pstamp(P, 1)
    I("s_waitcnt lgkmcnt(0)")
    pstamp(P, 2)
    dma_p1(P, 0, 0, True)
    pstamp(P, 3)
    dma_p1(P, 1, 0, True)
    pstamp(P, 4)
    I(f"v_lshlrev_b32 v5, 2, v{vLN}")
    I(f"s_lshl_b32 s{sT0}, s{sW}, 8")
    I(f"s_add_u32 m0, s{sT0}, {WPH}")
    I(f"s_lshl_b32 s{sT1}, s{sA}, 11")
    I(f"s_add_u32 s{sT1}, s{sT1}, s{sT0}")
    I(f"buffer_load_dword v5, {s(SWP,4)}, s{sT1} offen lds", "d2")
    dma_p1(P, 2, 0, True)
    dma_p1(P, 3, 0, True)
    pstamp(P, 5)

def setup2(P):
    I = P.I
    a, b, c, d, e = 13, 14, 15, 16, 17
    I(f"s_mov_b32 s{sONE}, 0x3f803f80")
    I(f"s_mov_b32 s{sHI}, 0xffff0000")
    I(f"s_lshl_b32 s{sMG}, s{sW}, 11")
    I(f"s_mul_i32 s{sT0}, s{sA}, 5")
    I(f"s_min_u32 s{sT0}, s{sT0}, 33")
    I(f"s_add_u32 s{sT0}, s{sT0}, 48")
    I(f"s_mul_i32 s{sT1}, s{sA}, 6")
    I(f"s_cmp_eq_u32 s{sTY}, 0")
    I(f"s_cselect_b32 s{sB0}, s{sT0}, s{sT1}")
    I(f"s_add_u32 s{sT2}, s{sTY}, 5")
    I(f"s_mul_i32 s{sT0}, s{sW}, {8*2752}")
    I(f"s_lshl_b32 s{sT1}, s{sB0}, 5")
    I(f"s_add_u32 s{sT0}, s{sT0}, s{sT1}")
    I(f"v_mov_b32 v{e}, v2")
    I(f"v_mul_u32_u24 v{a}, 2752, v{e}")
    I(f"v_and_b32 v{b}, 1, v{vLN}")
    I(f"v_lshlrev_b32 v{b}, 4, v{b}")
    I(f"v_add3_u32 v{a}, v{a}, v{b}, s{sT0}")
    I(f"v_bfe_u32 v{b}, v{vLN}, 1, 3")
    I(f"v_lshlrev_b32 v{c}, 1, v{e}")
    I(f"v_xor_b32 v{b}, v{b}, v{c}")
    I(f"v_xor_b32 v{c}, 1, v{b}")
    I(f"v_mov_b32 v{d}, 0x7f000000")
    I(f"v_cmp_gt_u32 vcc, s{sT2}, v{b}")
    I(f"v_lshl_add_u32 v{b}, v{b}, 5, v{a}")
    I(f"v_cndmask_b32 v{vGO}, v{d}, v{b}, vcc")
    I(f"v_cmp_gt_u32 vcc, s{sT2}, v{c}")
    I(f"v_lshl_add_u32 v{c}, v{c}, 5, v{a}")
    I(f"v_cndmask_b32 v{vUO}, v{d}, v{c}, vcc")
    h, sb, r, sw = 18, 19, 20, 21
    I(f"v_lshrrev_b32 v{h}, 5, v{vLN}")
    I(f"v_bfe_u32 v{sb}, v{vLN}, 4, 1")
    I(f"v_bfe_u32 v{r}, v{vLN}, 2, 2")
    I(f"v_bfe_u32 v{a}, v{vLN}, 1, 1")
    I(f"v_and_b32 v{b}, 1, v{vLN}")
    I(f"v_lshl_or_b32 v{sw}, v{b}, 1, v{a}")
    I(f"v_lshlrev_b32 v{sw}, 3, v{sw}")
    I(f"v_lshl_add_u32 v{a}, v{h}, 3, v{r}")
    I(f"v_and_b32 v{b}, 2, v{r}")
    I(f"v_or_b32 v{b}, v{b}, v{sb}")
    I(f"v_lshl_add_u32 v{b}, v{b}, 5, v{sw}")
    I(f"v_lshl_add_u32 v{b}, v{a}, 7, v{b}")
    I(f"v_add_u32 v{b}, 16384, v{b}")
    I(f"s_lshl_b32 s{sT0}, s{sG}, 6")
    I(f"v_xor_b32 v{vAA[0]}, s{sT0}, v{b}")
    I(f"v_add_u32 v{vAA[1]}, 65536, v{vAA[0]}")
    I(f"s_and_b32 s{sT0}, s{sI}, 1")
    I(f"s_lshl_b32 s{sT0}, s{sT0}, 6")
    I(f"s_lshr_b32 s{sT1}, s{sI}, 1")
    I(f"s_cmp_eq_u32 s{sTY}, 0")
    I(f"s_cselect_b32 s{sT3}, 13, 11")
    I(f"s_lshl_b32 s{sT1}, s{sT1}, s{sT3}")
    I(f"v_xor_b32 v{b}, s{sT0}, v{b}")
    I(f"v_add_u32 v{vCA[0]}, s{sT1}, v{b}")
    I(f"v_add_u32 v{vCA[1]}, 65536, v{vCA[0]}")
    I(f"v_lshl_or_b32 v{b}, v{r}, 1, v{sb}")
    I(f"v_lshl_add_u32 v{b}, v{b}, 5, v{sw}")
    I(f"v_lshl_add_u32 v{b}, v{a}, 8, v{b}")
    I(f"v_lshl_add_u32 v{22}, v{sb}, 14, v{b}")
    I(f"v_and_b32 v{a}, 31, v{vLN}")
    I(f"v_bfe_u32 v{b}, v{vLN}, 1, 3")
    I(f"v_xor_b32 v{b}, v{b}, v{h}")
    I(f"v_lshlrev_b32 v{b}, 4, v{b}")
    I(f"v_lshl_add_u32 v{b}, v{a}, 7, v{b}")
    I(f"s_lshl_b32 s{sT0}, s{sI}, 12")
    I(f"v_add_u32 v{vAX[0][0]}, s{sT0}, v{b}")
    for kk in range(1, 4): I(f"v_xor_b32 v{vAX[0][kk]}, {kk*32}, v{vAX[0][0]}")
    for kk in range(4): I(f"v_add_u32 v{vAX[1][kk]}, 65536, v{vAX[0][kk]}")
    I(f"v_and_b32 v{a}, 15, v{vLN}")
    I(f"v_lshlrev_b32 v{b}, 2, v{e}")
    I(f"v_mov_b32 v{c}, s{sONE}")
    I(f"v_cmp_eq_u32 vcc, v{a}, v{b}")
    I(f"v_cndmask_b32 v{CP}, 0, v{c}, vcc")
    for k in range(1, 4): I(f"v_mov_b32 v{CP+k}, v{CP}")
    I(f"v_mov_b32 v{vST}, 0")
    I(f"v_mov_b32 v{vST+1}, 0")
    I(f"v_lshlrev_b32 v{vL16}, 4, v{vLN}")
    I(f"s_lshl2_add_u32 s{sT0}, s{sT}, s{sI}")
    I(f"s_mul_i32 s{sT1}, s{sT0}, 118")
    I(f"s_add_u32 s{sT1}, s{sT1}, s{sB0}")
    I(f"s_mul_i32 s{sT2}, s{sG}, 3")
    I(f"s_add_u32 s{sT1}, s{sT1}, s{sT2}")
    I(f"s_add_u32 s{sT1}, s{sT1}, 32")
    I(f"s_lshl_b32 s{sHF}, s{sT1}, 10")
    I(f"s_mul_i32 s{sT1}, s{sT0}, 118")
    I(f"s_lshl1_add_u32 s{sT2}, s{sA}, s{sG}")
    I(f"s_lshl1_add_u32 s{sT1}, s{sT2}, s{sT1}")
    I(f"s_lshl_b32 s{sPHI}, s{sT1}, 10")

def csp_layout(typ):
    L = {}
    o = CSP
    if typ == 0:
        for n in ("K0", "K1", "V0", "V1"): L[n] = (o, 2); o += 512
        for p in range(4): L[p] = (o, 1); o += 256
        L[4] = (o, 4); o += 1024
    else:
        for n in ("K0", "K1"): L[n] = (o, 4); o += 1024
        for p in range(4): L[p] = (o, 1); o += 256
        for p in (4, 5): L[p] = (o, 2); o += 512
    assert o <= CSP + 4096
    return L

def corr(acc, off, Pn, T, ta):
    sh = {1: 2, 2: 3, 4: 4}[Pn]
    rd = []
    if Pn == 4:
        rd.append(f"v_add_u32 v{ta}, {off}, v{vL16}")
    else:
        rd.append(f"v_lshlrev_b32 v{ta}, {sh}, v{vLN}")
        rd.append(f"v_add_u32 v{ta}, {off}, v{ta}")
    rd.append({1: f"ds_read_b32 v{T}, v{ta}", 2: f"ds_read_b64 {v(T,2)}, v{ta}", 4: f"ds_read_b128 {v(T,4)}, v{ta}"}[Pn])
    o = []
    if Pn >= 2: o.append(f"v_add_f32 v{T}, v{T}, v{T+1}")
    if Pn == 4:
        o.append(f"v_add_f32 v{T+2}, v{T+2}, v{T+3}")
        o.append(f"v_add_f32 v{T}, v{T}, v{T+2}")
    o.append(f"v_and_b32 v{T+2}, s{sHI}, v{T}")
    o.append(f"v_sub_f32 v{T+1}, v{T}, v{T+2}")
    o.append(f"v_cvt_pk_bf16_f32 v{T}, v{T+2}, v{T+2}")
    o.append(f"v_cvt_pk_bf16_f32 v{T+1}, v{T+1}, v{T+1}")
    o.append(f"v_mfma_f32_32x32x8_bf16 {v(acc,16)}, {v(T,2)}, {v(vMU,2)}, {v(acc,16)}")
    return rd, o

def stats_read():
    a = vT[0]
    return [f"v_and_b32 v{a}, 31, v{vLN}",
            f"s_lshl_b32 s{sT0}, s{sI}, 10",
            f"s_add_u32 s{sT0}, s{sT0}, {ST}",
            f"v_lshlrev_b32 v{a}, 5, v{a}",
            f"v_add_u32 v{a}, s{sT0}, v{a}",
            f"ds_read_b128 {v(TA,4)}, v{a}",
            f"ds_read_b128 {v(TB,4)}, v{a} offset:16"]
def stats_calc():
    m, q = TA, TA + 1
    return [f"v_add_f32 v{TA}, v{TA}, v{TA+2}", f"v_add_f32 v{TA+1}, v{TA+1}, v{TA+3}",
            f"v_add_f32 v{TB}, v{TB}, v{TB+2}", f"v_add_f32 v{TB+1}, v{TB+1}, v{TB+3}",
            f"v_add_f32 v{m}, v{TA}, v{TB}", f"v_add_f32 v{q}, v{TA+1}, v{TB+1}",
            f"v_mul_f32 v{m}, {fbits(-1.0/512)}, v{m}",
            f"v_mul_f32 v{q}, {fbits(1.0/512)}, v{q}",
            f"v_fma_f32 v{q}, -v{m}, v{m}, v{q}",
            f"v_max_f32 v{q}, 0, v{q}",
            f"v_add_f32 v{q}, {fbits(1e-5)}, v{q}",
            f"v_rsq_f32 v{vRS}, v{q}",
            f"v_and_b32 v{TA+2}, s{sHI}, v{m}",
            f"v_sub_f32 v{TA+3}, v{m}, v{TA+2}",
            f"v_cvt_pk_bf16_f32 v{vMU}, v{TA+2}, v{TA+3}",
            f"v_mul_f32 v{vSTD}, v{q}, v{vRS}",
            f"v_mov_b32 v{vMU+1}, v{vMU}",
            f"v_mul_f32 v{vC1}, {fbits(-LOG2E)}, v{vRS}"]

def wphi_read(g, rho, T):
    a, b = vT[0], vT[1]
    return [f"v_lshrrev_b32 v{a}, 5, v{vLN}",
            f"v_bfe_u32 v{b}, v{vLN}, 2, 2",
            f"v_lshl_add_u32 v{a}, v{a}, 3, v{b}",
            f"v_lshlrev_b32 v{a}, 5, v{a}",
            f"v_and_b32 v{b}, 16, v{vLN}",
            f"v_add_u32 v{a}, v{a}, v{b}",
            f"v_and_b32 v{b}, 2, v{vLN}",
            f"v_lshl_add_u32 v{a}, v{b}, 2, v{a}",
            f"v_add_u32 v{a}, {WPH + (2*g+rho)*512}, v{a}",
            f"ds_read_b64_tr_b16 {v(T,2)}, v{a}",
            f"ds_read_b64_tr_b16 {v(T+2,2)}, v{a} offset:128",
            f"v_bfe_i32 v{b}, v{vLN}, 2, 1",
            f"v_and_b32 v{b}, 0x80008000, v{b}"]
def wphi_sign(T):
    return [f"v_xor_b32 v{T+k}, v{vT[1]}, v{T+k}" for k in range(4)]

def softmax(W, O=None):
    m, sm = vT[0], vT[2]
    if O is None: O = W
    o = [f"v_max3_f32 v{m}, v{W}, v{W+1}, v{W+2}"]
    for k in range(3, 15, 2): o.append(f"v_max3_f32 v{m}, v{m}, v{W+k}, v{W+k+1}")
    o.append(f"v_max_f32 v{m}, v{m}, v{W+15}")
    o.append(f"v_mul_f32 v{m}, v{m}, v{vC1}")
    for k in range(16):
        o.append(f"v_fma_f32 v{W+k}, v{W+k}, -v{vC1}, v{m}")
    for k in range(16):
        o.append(f"v_exp_f32 v{W+k}, v{W+k}")
        if k == 2: o.append(f"v_add_f32 v{sm}, v{W}, v{W+1}")
        if k > 2: o.append(f"v_add_f32 v{sm}, v{sm}, v{W+k-1}")
    o.append(f"v_add_f32 v{sm}, v{sm}, v{W+15}")
    o.append(f"v_rcp_f32 v{sm}, v{sm}")
    for k in range(8):
        o.append(f"v_mul_f32 v{W+2*k}, v{W+2*k}, v{sm}")
        o.append(f"v_mul_f32 v{W+2*k+1}, v{W+2*k+1}, v{sm}")
        o.append(f"v_cvt_pk_bf16_f32 v{O+k}, v{W+2*k}, v{W+2*k+1}")
    return o

def glu_epi(acc, b):
    o = []
    for k in range(8): o.append(f"v_mul_f32 v{acc+k}, v{acc+k}, v{vC1}")
    for k in range(8): o.append(f"v_exp_f32 v{acc+k}, v{acc+k}")
    for k in range(8): o.append(f"v_fma_f32 v{acc+k}, v{acc+k}, v{vSTD}, v{vSTD}")
    for k in range(8): o.append(f"v_rcp_f32 v{acc+k}, v{acc+k}")
    for k in range(4):
        o.append(f"v_mul_f32 v{acc+2*k}, v{acc+2*k}, v{acc+8+2*k}")
        o.append(f"v_mul_f32 v{acc+2*k+1}, v{acc+2*k+1}, v{acc+9+2*k}")
    for k in range(4):
        o.append(f"v_cvt_pk_bf16_f32 v{acc+k}, v{acc+2*k}, v{acc+2*k+1}")
    o.append(f"buffer_store_dwordx4 {v(acc,4)}, v{vL16}, {s(SWS,4)}, s{sHF} offen offset:{b*1024}" + HM())
    return o

def stream(P, typ, g, name, M=2, D=3):
    I = P.I
    L = csp_layout(typ)
    nb = 3 if (typ == 1 or g == 0) else 2
    for b in range(nb): I(f"v_xor_b32 v{vAG[b]}, {(3*g+b)*32}, v22")
    if g == 1:
        I(f"s_lshl_b32 s{sT0}, s{sI}, 5")
        I(f"v_xor_b32 v{vCG}, s{sT0}, v22")
        ckk = [0, 1, 2, 3]
    elif typ == 1:
        I(f"s_lshr_b32 s{sT0}, s{sI}, 1")
        I(f"s_add_u32 s{sT0}, s{sT0}, 4")
        I(f"s_lshl_b32 s{sT0}, s{sT0}, 5")
        I(f"s_and_b32 s{sT1}, s{sI}, 1")
        I(f"s_lshl_b32 s{sT1}, s{sT1}, 13")
        I(f"v_xor_b32 v{vCG}, s{sT0}, v22")
        I(f"v_add_u32 v{vCG}, s{sT1}, v{vCG}")
        ckk = [0, 1]
    else:
        I(f"s_lshl_b32 s{sT1}, s{sI}, 12")
        I(f"v_xor_b32 v{vCG}, {4*32}, v22")
        I(f"v_add_u32 v{vCG}, s{sT1}, v{vCG}")
        ckk = [0]
    pstamp(P, 6)
    items = []
    def item(bar, addr, imm, second, mf, pre=()):
        items.append(dict(bar=bar, addr=addr, imm=imm, second=second, mf=mf, pre=list(pre)))
    def mm(acc, x, first): return lambda f: f"v_mfma_f32_32x32x16_bf16 {v(acc,16)}, {v(f,4)}, {v(x,4)}, {'0' if first else v(acc,16)}"
    def cm(first): return lambda f: f"v_mfma_f32_16x16x32_bf16 {v(CD,4)}, {v(CP,4)}, {v(f,4)}, {'0' if first else v(CD,4)}"
    first_item = {}
    for st in range(8):
        hi = (st % 4) >> 1; so = (st & 1) * 32768
        first_item[st] = len(items)
        xr = [f"ds_read_b128 {v(XR(st,kk),4)}, v{vAX[hi][kk]} offset:{so}" for kk in range(4)]
        pre = xr
        cks = [2*g, 2*g+1] if typ == 0 else [2*g]
        for n, kk in enumerate(cks):
            item(st if n == 0 else None, vCA[hi], so + kk*2048, 512, cm(st == 0 and n == 0), pre if n == 0 else ())
        for kk in range(4):
            item(None, vAA[hi], so + kk*2048, 512, mm(AK, XR(st,kk), st == 0 and kk == 0))
            if typ == 0: item(None, vAA[hi], so + kk*2048 + 8192, 512, mm(AV, XR(st,kk), st == 0 and kk == 0))
    tog = [f"v_xor_b32 v{r}, 0x10000, v{r}" for r in vAG[:nb] + [vCG]]
    for st in range(8, 16 - M):
        so = (st & 1) * 32768
        first_item[st] = len(items)
        seq = []
        for kk in range(4):
            if kk in ckk: seq.append((vCG, so + kk*4096, cm(st == 8 and kk == 0)))
            for b in range(nb): seq.append((vAG[b], so + kk*4096, mm(GA[b], XR(st-8,kk), st == 8 and kk == 0)))
        for n, (ad, im, mf) in enumerate(seq):
            item(st if n == 0 else None, ad, im, 1024, mf, tog if (n == 0 and st in (10, 12, 14)) else ())
    assert M == 2
    first_item[14] = len(items)
    n = 0
    for st in (14, 15):
        for kk in ckk:
            item(14 if n == 0 else None, vCG, (st & 1)*32768 + kk*4096, 1024, cm(False), tog if n == 0 else ()); n += 1
    last_cs = len(items) - 1
    blk_first = []
    for b in range(nb):
        blk_first.append(len(items))
        for st in (14, 15):
            for kk in range(4):
                item(None, vAG[b], (st & 1)*32768 + kk*4096, 1024, mm(GA[b], XR(st-8,kk), False))
    N = len(items)
    blk_first.append(N)
    def bslot(st): return first_item[st] - D
    fill = {n: [] for n in range(N + 1)}
    def spread(ins, n0, n1):
        tot = sum(cost(t) for t in ins); per = tot / (n1 - n0); acc = 0.0
        for t in ins:
            k = min(n0 + int(acc / per), n1 - 1)
            if not t.startswith("GAP"): fill[k].append(t)
            acc += cost(t)
    prebar = {}
    for st in range(8):
        d = []
        for kk in (2*g, 2*g+1):
            for j in range(4):
                x = XR(st, kk) + j
                d.append(f"v_dot2c_f32_bf16 v{vST}, s{sONE}, v{x}")
                d.append(f"v_dot2c_f32_bf16 v{vST+1}, v{x}, v{x}")
        sl = first_item[st] + (1 if typ == 0 else 0)
        fill[sl] += d
        if st == 7:
            a, b = vT[0], vT[1]
            w = []
            if typ == 0:
                w += [f"s_lshl_b32 s{sT0}, s{sI}, 9", f"s_add_u32 s{sT0}, s{sT0}, {CSP + 4*g}", f"v_lshlrev_b32 v{a}, 3, v{vLN}", f"v_add_u32 v{a}, s{sT0}, v{a}"]
            else:
                w += [f"s_and_b32 s{sT0}, s{sI}, 1", f"s_lshl_b32 s{sT0}, s{sT0}, 10", f"s_and_b32 s{sT1}, s{sI}, 2", f"s_lshl1_add_u32 s{sT0}, s{sT1}, s{sT0}",
                      f"s_add_u32 s{sT0}, s{sT0}, {CSP + 8*g}", f"v_add_u32 v{a}, s{sT0}, v{vL16}"]
            w += [f"ds_write_b32 v{a}, v{CD}"]
            w += [f"v_and_b32 v{b}, 31, v{vLN}", f"v_lshlrev_b32 v{b}, 5, v{b}", f"v_lshrrev_b32 v{a}, 5, v{vLN}", f"v_lshl_add_u32 v{b}, v{a}, 3, v{b}",
                  f"s_lshl_b32 s{sT0}, s{sI}, 10", f"s_add_u32 s{sT0}, s{sT0}, {ST + 16*g}", f"v_add_u32 v{b}, s{sT0}, v{b}",
                  f"ds_write_b64 v{b}, {v(vST,2)} #pub"]
            fill[sl] += w
            assert sl < bslot(8)
            prebar[8] = "pub"
    p1_end = first_item[8]
    fill[bslot(8)] += stats_read()
    kn = "K%d" % g; vn = "V%d" % g
    rdK, coK = corr(AK, *L[kn], TB, vT[2])
    seg = stats_calc() + rdK
    if typ == 0:
        rdV, coV = corr(AV, *L[vn], TA, vT[2])
        seg += rdV + coK + coV
    else:
        seg += coK
    seg += wphi_read(g, 0, TB)
    seg += [f"v_cvt_pk_bf16_f32 v{AK+k}, v{AK+2*k}, v{AK+2*k+1}" for k in range(8)]
    if typ == 0:
        for k in range(8):
            seg += [f"v_mul_f32 v{AV+2*k}, v{AV+2*k}, v{vRS}", f"v_mul_f32 v{AV+2*k+1}, v{AV+2*k+1}, v{vRS}",
                    f"v_cvt_pk_bf16_f32 v{AK+8+k}, v{AV+2*k}, v{AV+2*k+1}"]
    seg += wphi_sign(TB)
    pk = lambda rho: f"v_mfma_f32_32x32x16_bf16 {v(AV,16)}, {v(TB,4)}, {v(AK+4*rho,4)}, 0"
    seg += [pk(0), "GAP 40"] + softmax(AV, AK + 8 if typ == 1 else None)
    def phi_out(rho):
        if typ == 1:
            return []
        a, b = vT[0], vT[1]
        return [f"v_and_b32 v{a}, 31, v{vLN}", f"v_mul_u32_u24 v{a}, 96, v{a}", f"s_mul_i32 s{sT0}, s{sI}, {32*96}", f"s_add_u32 s{sT0}, s{sT0}, {PH + g*12288}",
                f"v_and_b32 v{b}, 32, v{vLN}", f"v_add3_u32 v{a}, v{a}, v{b}, s{sT0}", f"v_lshrrev_b32 v{b}, 1, v{b}", f"v_sub_u32 v{b}, v{a}, v{b}",
                f"ds_write_b128 v{a}, {v(AV,4)}", f"ds_write_b128 v{a}, {v(AV+4,4)} offset:16",
                f"ds_write_b128 v{b}, {v(AK+8+4*rho,4)} offset:64 #ph{rho}"]
    seg2 = wphi_read(g, 1, TB) + wphi_sign(TB) + [pk(1), "GAP 40"] + softmax(AV)
    def kvround(rho):
        Wk = GA[2]; a, b = vT[0], vT[1]; A0, B0, DK, DZ = Wk, Wk + 4, Wk + 8, Wk + 12
        o = [f"v_lshrrev_b32 v{a}, 5, v{vLN}", f"v_bfe_u32 v{b}, v{vLN}, 2, 3", f"v_lshl_add_u32 v{a}, v{a}, 4, v{b}", f"v_mul_u32_u24 v{a}, 96, v{a}",
             f"v_and_b32 v{b}, 3, v{vLN}", f"v_lshl_add_u32 v{a}, v{b}, 3, v{a}",
             f"s_lshr_b32 s{sT0}, s{sI}, 1", f"s_mul_i32 s{sT0}, s{sT0}, 12288", f"s_add_u32 s{sT0}, s{sT0}, {PH}",
             f"s_and_b32 s{sT1}, s{sI}, 1", f"s_lshl_b32 s{sT1}, s{sT1}, 5",
             f"v_add_u32 v{b}, s{sT0}, v{a}", f"v_add_u32 v{a}, s{sT1}, v{b}"]
        o += [f"v_mov_b32 v{TA+k}, s{sONE}" for k in range(4)]
        for u in range(4):
            base = u * 32 * 96
            o += [f"ds_read_b64_tr_b16 {v(A0,2)}, v{a} offset:{base}", f"ds_read_b64_tr_b16 {v(A0+2,2)}, v{a} offset:{base+768}",
                  f"ds_read_b64_tr_b16 {v(B0,2)}, v{b} offset:{base+64}", f"ds_read_b64_tr_b16 {v(B0+2,2)}, v{b} offset:{base+64+768}" + (f" #kv{rho}" if u == 3 else ""),
                  "GAP 30",
                  f"v_mfma_f32_16x16x32_bf16 {v(DK,4)}, {v(A0,4)}, {v(B0,4)}, {'0' if u == 0 else v(DK,4)}",
                  f"v_mfma_f32_16x16x32_bf16 {v(DZ,4)}, {v(A0,4)}, {v(TA,4)}, {'0' if u == 0 else v(DZ,4)}"]
        o += [f"v_and_b32 v{a}, 15, v{vLN}", f"v_cmp_eq_u32 vcc, 0, v{a}", f"v_lshlrev_b32 v{a}, 4, v{a}", f"v_lshrrev_b32 v{b}, 5, v{vLN}", f"v_lshl_add_u32 v{a}, v{b}, 8, v{a}",
              f"v_bfe_u32 v{b}, v{vLN}, 4, 1", f"v_lshl_add_u32 v{a}, v{b}, 3, v{a}",
              f"v_lshrrev_b32 v{b}, 1, v{vLN}", f"v_and_b32 v{b}, 24, v{b}", f"v_mov_b32 v{TA}, 0x7f000000", f"v_cndmask_b32 v{b}, v{TA}, v{b}, vcc",
              f"s_and_b32 s{sT0}, s{sI}, 2", f"s_lshl2_add_u32 s{sT0}, s{sA}, s{sT0}", f"s_add_u32 s{sT0}, s{sT0}, {rho}", f"s_mul_i32 s{sT0}, s{sT0}, 17408",
              f"s_add_u32 s{sT0}, s{sT0}, {KVP_OFF}", f"s_and_b32 s{sT1}, s{sI}, 1",
              f"s_lshl1_add_u32 s{sT2}, s{sT}, s{sT1}",
              f"s_lshl_b32 s{sT3}, s{sT2}, 9", f"s_add_u32 s{sT3}, s{sT3}, s{sT0}",
              f"s_lshl_b32 s{sT2}, s{sT2}, 5", f"s_add_u32 s{sT2}, s{sT2}, s{sT0}", f"s_add_u32 s{sT2}, s{sT2}, 16384",
              f"v_cvt_pk_bf16_f32 v{DK}, v{DK}, v{DK+1}", f"v_cvt_pk_bf16_f32 v{DK+1}, v{DK+2}, v{DK+3}",
              f"v_cvt_pk_bf16_f32 v{DZ}, v{DZ}, v{DZ+1}", f"v_cvt_pk_bf16_f32 v{DZ+1}, v{DZ+2}, v{DZ+3}",
              f"buffer_store_dwordx2 {v(DK,2)}, v{a}, {s(SWS,4)}, s{sT3} offen sc1",
              f"buffer_store_dwordx2 {v(DZ,2)}, v{b}, {s(SWS,4)}, s{sT2} offen sc1 #kvs{rho}"]
        return o
    if typ == 1:
        spread(seg + phi_out(0) + seg2 + phi_out(1), p1_end, bslot(14))
    else:
        spread(seg + phi_out(0), p1_end, bslot(11)); prebar[11] = "ph0"
        if g == 1:
            spread(kvround(0), bslot(11), bslot(12)); prebar[12] = "kv0"
            spread(seg2 + phi_out(1), bslot(12), bslot(14))
        else:
            spread(seg2, bslot(11), bslot(13))
            spread(phi_out(1), bslot(13), bslot(13) + 2)
        prebar[14] = "ph1"
    a = vT[0]
    if g == 1:
        w = [f"s_lshl_b32 s{sT0}, s{sI}, 8", f"s_add_u32 s{sT0}, s{sT0}, {L[0][0]}", f"v_lshlrev_b32 v{a}, 2, v{vLN}", f"v_add_u32 v{a}, s{sT0}, v{a}"]
    elif typ == 1:
        w = [f"s_lshr_b32 s{sT0}, s{sI}, 1", f"s_lshl_b32 s{sT0}, s{sT0}, 9", f"s_and_b32 s{sT1}, s{sI}, 1", f"s_lshl2_add_u32 s{sT0}, s{sT1}, s{sT0}",
             f"s_add_u32 s{sT0}, s{sT0}, {L[4][0]}", f"v_lshlrev_b32 v{a}, 3, v{vLN}", f"v_add_u32 v{a}, s{sT0}, v{a}"]
    else:
        w = [f"s_lshl_b32 s{sT0}, s{sI}, 2", f"s_add_u32 s{sT0}, s{sT0}, {L[4][0]}", f"v_add_u32 v{a}, s{sT0}, v{vL16}"]
    fill[last_cs] += w
    fill[last_cs + 2] += [f"ds_write_b32 v{a}, v{CD} #cs2"]
    cbar = last_cs + 4
    fill[cbar] += ["WAITLG cs2", "s_barrier"]
    if typ == 0 and g == 1:
        spread(kvround(1), cbar + 1, blk_first[1])
    for b in range(nb):
        rd, co = corr(GA[b], *L[3*g+b], TB, vT[2])
        e = blk_first[b+1] - 1
        fill[max(e - 3, cbar)] += rd
        fill[e - 1] += co[:-1]
        fill[e] += co[-1:]
        if b + 1 < nb: spread(["GAP 30"] + glu_epi(GA[b], b), e + 1, blk_first[b+2] - 4)
        else: fill[N] += glu_epi(GA[b], b)
    def emit(t):
        if t.startswith("WAITLG"): P.wait_lg(t.split()[1]); return
        if t.startswith("STAMP"): stamp(P, int(t.split()[1])); return
        tag = None
        if "#" in t: t, tag = t.split("#"); t = t.strip()
        P.I(t, tag)
    for n in range(-D, N):
        m = n + D
        if m < N:
            it = items[m]
            if it["bar"] is not None:
                st = it["bar"]
                P.wait_vm("d15" if st == 14 else f"d{st}")
                if st in prebar: P.wait_lg(prebar[st])
                I("s_barrier")
                stamp(P, 1 + st)
                nxt = st + 2
                if st == 6 and ("pfx" in KN or "pfg" in KN): touch(P)
                if "nodma" in KN: pass
                elif 4 <= nxt < 8: dma_p1(P, nxt, typ)
                elif 8 <= nxt < 16: dma_g(P, nxt)
            for t in it["pre"]: I(t)
            f = FR[m % 4]
            I(f"ds_read_b64_tr_b16 {v(f,2)}, v{it['addr']} offset:{it['imm']}")
            I(f"ds_read_b64_tr_b16 {v(f+2,2)}, v{it['addr']} offset:{it['imm'] + it['second']}")
        if n >= 0:
            mt = items[n]["mf"](FR[n % 4])
            if not ("nocs" in KN and "16x16x32" in mt) and not "nomfma" in KN: I(mt)
            for t in fill[n]:
                if "nofill" in KN and t != "s_barrier": continue
                if "nodot" in KN and "dot2c" in t: continue
                emit(t)
    stamp(P, 16)
    for t in fill[N]: emit(t)
    stamp(P, 17)
    if typ == 0: kv_signal(P, g, name)
    else: o_phase(P, g, name)
    dump_stamps(P, 19, SWS, sW, 8)
    I("s_endpgm")

def touch(P):
    I = P.I
    a = vT[0]
    I(f"s_load_dwordx2 {s(SWP,2)}, s[0:1], 24")
    I(f"s_load_dwordx2 {s(SX,2)}, s[0:1], 56")
    I(f"s_mov_b32 s{SWP+2}, {512*1024}")
    I(f"s_mov_b32 s{SX+2}, {1376*1024}")
    I(f"v_lshlrev_b32 v{a}, 7, v{vLN}")
    if "pfx" in KN:
        I(f"s_lshr_b32 s{sT0}, s2, 3")
        I(f"s_lshl3_add_u32 s{sT0}, s{sT0}, s{sW}")
        I(f"s_lshl_b32 s{sT0}, s{sT0}, 13")
    else:
        I(f"s_lshl3_add_u32 s{sT0}, s2, s{sW}")
        I(f"s_lshl_b32 s{sT0}, s{sT0}, 10")
        I(f"v_mov_b32 v{a+1}, 0x7f000000")
        I(f"v_cmp_gt_u32 vcc, 8, v{vLN}")
        I(f"v_cndmask_b32 v{a}, v{a+1}, v{a}, vcc")
    I(f"v_add_u32 v{a}, s{sT0}, v{a}")
    I(f"v_subrev_u32 v{a+1}, {512*1024}, v{a}")
    I("s_waitcnt lgkmcnt(0)")
    P.raw(f"    buffer_load_dword v{TA}, v{a}, {s(SWP,4)}, 0 offen")
    P.vm.append((set(), "pf"))
    P.raw(f"    buffer_load_dword v{TA+1}, v{a+1}, {s(SX,4)}, 0 offen")
    P.vm.append((set(), "pf"))

def kv_signal(P, g, name):
    I = P.I
    if g == 1: P.wait_vm("kvs1")
    I("s_barrier")
    if g == 1:
        I(f"s_cmp_lg_u32 s{sI}, 0")
        I(f"s_cbranch_scc1 L_{name}_sig_done")
        I(f"s_lshl_b32 s{sT0}, s{sA}, 5")
        I("s_mov_b64 exec, 1")
        I("v_mov_b32 v128, 0")
        I("v_mov_b32 v129, 1")
        I(f"buffer_atomic_add v129, v128, {s(SDB,4)}, s{sT0} offen sc1")
        I("s_mov_b64 exec, -1")
        P.label(f"L_{name}_sig_done")

OT = PH
def o_phase(P, g, name):
    I = P.I
    a, b, c = 128, 129, 130
    SEL, DD, ZZ, LD = 132, 136, 140, 144
    lab = f"L_{name}_poll{g}"
    I(f"s_lshl_b32 s{sT0}, s{sA}, 5")
    I(f"v_mov_b32 v{a}, 0")
    I(f"s_mov_b32 s{sT1}, 0")
    I("s_waitcnt vmcnt(0)")
    I(f"s_cmp_lg_u32 s{sW}, 0")
    I(f"s_cbranch_scc1 {lab}_ok")
    P.label(lab)
    I(f"buffer_load_dword v{b}, v{a}, {s(SDB,4)}, s{sT0} offen sc1")
    I(f"s_add_u32 s{sT1}, s{sT1}, 1")
    I(f"v_readfirstlane_b32 s{sT2}, v{b}")
    I(f"s_cmp_ge_u32 s{sT2}, 16")
    I(f"s_cbranch_scc1 {lab}_ok")
    I("s_sleep 4")
    I(f"s_cmp_lt_u32 s{sT1}, 20000")
    I(f"s_cbranch_scc1 {lab}")
    P.label(lab + "_ok")
    I("s_barrier")
    I(f"s_lshr_b32 s{sT0}, s{sW}, 1")
    I(f"s_lshl2_add_u32 s{sT1}, s{sA}, s{sT0}")
    I(f"s_mul_i32 s{sT1}, s{sT1}, 17408")
    I(f"s_add_u32 s{sT1}, s{sT1}, {KVP_OFF}")
    I(f"s_and_b32 s{sT2}, s{sW}, 1")
    I(f"s_lshl_b32 s{sT3}, s{sT2}, 9")
    I(f"s_add_u32 s{sT3}, s{sT3}, s{sT1}")
    I(f"s_add_u32 s{sT1}, s{sT1}, 16384")
    I(f"v_and_b32 v{a}, 31, v{vLN}")
    I(f"v_lshrrev_b32 v{b}, 5, v{vLN}")
    I(f"v_lshlrev_b32 v{a}, 4, v{a}")
    I(f"v_lshl_add_u32 v{a}, v{b}, 10, v{a}")
    I(f"buffer_load_dwordx4 {v(ZZ,4)}, v{vL16}, {s(SWS,4)}, s{sT1} offen sc1")
    for p in range(8):
        if p and p % 2 == 0: I(f"s_add_u32 s{sT3}, s{sT3}, 4096")
        I(f"buffer_load_dwordx4 {v(LD+4*p,4)}, v{a}, {s(SWS,4)}, s{sT3} offen offset:{(p%2)*2048} sc1")
    I(f"v_and_b32 v{a}, 15, v{vLN}")
    I(f"v_lshrrev_b32 v{b}, 1, v{vLN}")
    I(f"v_and_b32 v{b}, 8, v{b}")
    I(f"v_xor_b32 v{b}, v{a}, v{b}")
    I(f"v_and_b32 v{c}, 1, v{b}")
    I(f"v_lshlrev_b32 v{c}, 4, v{c}")
    I(f"v_mov_b32 v{131}, 0x3f80")
    I(f"v_lshlrev_b32 v{c}, v{c}, v131")
    I(f"v_lshrrev_b32 v{b}, 1, v{b}")
    for r in range(4):
        I(f"v_cmp_eq_u32 vcc, {r}, v{b}")
        I(f"v_cndmask_b32 v{SEL+r}, 0, v{c}, vcc")
    I(f"s_lshl_b32 s{sT0}, s{sT0}, 11")
    I(f"s_add_u32 s{sT0}, s{sT0}, {OT}")
    I(f"v_add_u32 v{b}, s{sT0}, v{vL16}")
    I(f"ds_write_b128 v{b}, {v(ZZ,4)} offset:1024")
    I(f"s_lshl_b32 s{sT2}, s{sT2}, 5")
    I(f"s_add_u32 s{sT0}, s{sT0}, s{sT2}")
    I(f"v_lshrrev_b32 v{c}, 4, v{vLN}")
    I(f"v_lshlrev_b32 v{c}, 3, v{c}")
    I(f"v_lshl_add_u32 v{c}, v{a}, 6, v{c}")
    I(f"v_add_u32 v{c}, s{sT0}, v{c}")
    for p in range(8):
        I(f"v_mfma_f32_16x16x32_bf16 {v(DD,4)}, {v(SEL,4)}, {v(LD+4*p,4)}, {'0' if p == 0 else v(DD,4)}")
    I(f"v_cvt_pk_bf16_f32 v{DD}, v{DD}, v{DD+1}")
    I(f"v_cvt_pk_bf16_f32 v{DD+1}, v{DD+2}, v{DD+3}")
    I(f"ds_write_b64 v{c}, {v(DD,2)}")
    I(f"v_and_b32 v{a}, 19, v{vLN}")
    I(f"v_bfe_u32 v{b}, v{vLN}, 2, 1")
    I(f"v_lshl_or_b32 v{a}, v{b}, 3, v{a}")
    I(f"v_bfe_u32 v{b}, v{vLN}, 3, 1")
    I(f"v_lshl_or_b32 v{a}, v{b}, 2, v{a}")
    I(f"v_lshlrev_b32 v{a}, 6, v{a}")
    I(f"v_and_b32 v{b}, 32, v{vLN}")
    I(f"v_add_u32 v{a}, v{a}, v{b}")
    I(f"v_add_u32 v{a}, {OT + g*4096}, v{a}")
    P.wait_lg()
    I("s_barrier")
    AO = 144; DO = [160, 176]
    for rho in range(2):
        for f in range(2):
            I(f"ds_read_b128 {v(AO+8*rho+4*f,4)}, v{a} offset:{rho*2048+16*f}")
    for rho in range(2):
        ph = AK + 8 if rho == 0 else AV
        for f in range(2):
            I(f"v_mfma_f32_32x32x16_bf16 {v(DO[rho],16)}, {v(AO+8*rho+4*f,4)}, {v(ph+4*f,4)}, {'0' if f == 0 else v(DO[rho],16)}")
    for rho in range(2):
        D = DO[rho]
        for k in range(4): I(f"v_add_f32 v{D+8+k}, v{D+8+k}, v{D+12+k}")
        I(f"v_add_f32 v{D+8}, v{D+8}, v{D+9}")
        I(f"v_add_f32 v{D+10}, v{D+10}, v{D+11}")
        I(f"v_add_f32 v{D+8}, v{D+8}, v{D+10}")
        I(f"v_mov_b32 v{D+9}, v{D+8}")
        I(f"v_permlane32_swap_b32 v{D+8}, v{D+9}")
        I(f"v_add_f32 v{D+8}, v{D+8}, v{D+9}")
        I(f"v_add_f32 v{D+8}, {fbits(1e-6)}, v{D+8}")
        I(f"v_rcp_f32 v{D+8}, v{D+8}")
        for k in range(8): I(f"v_mul_f32 v{D+k}, v{D+k}, v{D+8}")
        for k in range(4): I(f"v_cvt_pk_bf16_f32 v{D+k}, v{D+2*k}, v{D+2*k+1}")
        I(f"buffer_store_dwordx4 {v(D,4)}, v{vL16}, {s(SWS,4)}, s{sPHI} offen offset:{rho*1024}" + HM())

def gen_k1(name):
    P = Prog()
    P.raw(f".globl {name}\n.p2align 8\n.type {name},@function\n{name}:")
    prologue(P, name)
    setup2(P)
    P.I(f"s_lshl1_add_u32 s{sT0}, s{sTY}, s{sG}")
    for k in (1, 2, 3):
        P.I(f"s_cmp_eq_u32 s{sT0}, {k}")
        P.I(f"s_cbranch_scc1 L_{name}_r{k}")
    snap = P.snapshot()
    for k in range(4):
        P.restore(snap)
        if k: P.raw(".p2align 6"); P.label(f"L_{name}_r{k}")
        stream(P, k >> 1, k & 1, name)
    P.label(f"L_{name}_end")
    P.I("s_endpgm")
    return P
```

```python
from asmlib import Prog, Ins, v, s
from sched import Sched, Item, Op
import k1
from k1 import fbits, LOG2E, stamp, pstamp, dump_stamps

MB = 122880
HF_OFF = MB
KVP_OFF = 0xC00000
WS_BYTES = 0x1000000
PH = 103040; ST = 131072; OT = 131072; WPH = 152192; CSP = 156288
LDS_BYTES = 163840
SDB, SX, SWQ, SWG, SWU, SWS, SWP, SWO, SWD = 4, 8, 12, 16, 20, 24, 28, 44, 48
sW, sT, sA, sTY, sR, sI, sMX, sMW, sMG, sC, sO1, sO2 = range(32, 44)
sHF, sK1, sK2, sHI, sT0, sT1, sT2, sT3 = range(52, 60)
sI4, sEX = 3, 35
vM16 = 0; vGO = [1, 2, 3]; vAG = [4, 5, 6, 7]; vMU = 8; CP = 12; CD = [16, 18, 20]
vC1, vSTD, vRS, vWF, vPH, vKA, vKB, vSM = range(24, 32)
vMX = vRS
FR = [32, 36, 40, 44]
AK, AV = 48, 64
GA = [80, 96, 112]
vXO, vWO, vLN, vST, vSQ = 80, 81, 82, 83, 84
vU = [85, 86, 87, 88]
vSTW, vSTR, vWPV, vWPA, vTCH, vCW = 89, 90, 91, 92, 93, 94
vAX = [[96, 97, 98, 99], [100, 101, 102, 103]]
vAA = [[104, 105, 106, 107], [108, 109, 110, 111]]
def XR(i, p): return 128 + (4 * i + p) * 4
CFG = dict(ns=([1]*8, [2]*8), phbar=10, qload=8, b0=8, hm="", qb=6, qpb=6, qpub=10)
def HM(): return CFG["hm"]

class T:
    def __init__(s, typ):
        s.typ = typ
        s.RB = 192 if typ else 160; s.NP = 12 if typ else 10; s.MUL = 171 if typ else 205
        s.UP = 64 * s.RB + (32 if typ else 128); s.SL = 2 * 64 * s.RB + (64 if typ else 128)
        s.HI = 3 * s.SL if typ else 65536
    def p1(s, st): return ((st + 2) % 5) * s.SL if s.typ else (st % 4) * 32768
    def p1s(s, st):
        o = s.p1(st); return (1, o - s.HI) if o >= s.HI else (0, o)
    def g(s, st): return ((st - 8) % 5) * s.SL

def dma_x(t, st):
    return [[f"s_add_u32 s{sC}, s{sR}, {st}", f"s_and_b32 s{sC}, s{sC}, 7", f"s_add_u32 m0, s{sMX}, {t.p1(st)}", f"s_lshl_b32 s{sO1}, s{sC}, 7",
             f"buffer_load_dwordx4 v{vXO}, {s(SX,4)}, s{sO1} offen lds #x{st}"],
            [f"s_add_u32 s{sO1}, s{sO1}, {16384 - 2048}", f"buffer_load_dwordx4 v{vXO}, {s(SX,4)}, s{sO1} offen offset:2048 lds #x{st}"]]
def dma_w(t, st):
    o = [[f"s_add_u32 s{sC}, s{sR}, {st}", f"s_and_b32 s{sC}, s{sC}, 7", f"s_add_u32 m0, s{sMW}, {t.p1(st)}", f"s_mul_i32 s{sO2}, s{sC}, {64*3072}",
          f"buffer_load_dwordx4 v{vWO}, {s(SWQ,4)}, s{sO2} offen lds #w{st}"]]
    if t.typ == 0:
        o.append([f"s_add_u32 m0, s{sMW}, {t.p1(st) + 8192 - 1024}", "s_nop 0", f"buffer_load_dwordx4 v{vWO}, {s(SWQ,4)}, s{sO2} offen offset:1024 lds #w{st}"])
    return o
def dma_g(t, g, st):
    S = s(SWU if g else SWG, 4)
    o = [[f"s_add_u32 s{sC}, s{sR}, {st}", f"s_and_b32 s{sC}, s{sC}, 7", f"s_add_u32 m0, s{sMG}, {t.g(st)}", f"s_mul_i32 s{sO2}, s{sC}, {64*2752}",
          f"buffer_load_dwordx4 v{vGO[0]}, {S}, s{sO2} offen lds #w{st}"],
         [f"buffer_load_dwordx4 v{vGO[1]}, {S}, s{sO2} offen offset:1024 lds #w{st}"]]
    l = f"buffer_load_dwordx4 v{vGO[2]}, {S}, s{sO2} offen offset:2048 lds #w{st}"
    o.append([l] if t.typ else ["s_mov_b32 exec_hi, 0", l, "s_mov_b32 exec_hi, -1"])
    return o

def emit(P, t):
    tag = None
    if "#" in t: t, tag = t.split("#"); t = t.strip()
    P.I(t, tag)

def prologue(P, name):
    I = P.I
    stamp(P, 0)
    I("s_cmp_ge_u32 s2, 256")
    I(f"s_cbranch_scc1 L_{name}_end")
    I(f"s_load_dwordx4 s[8:11], s[0:1], 0")
    I(f"v_lshrrev_b32 v1, 6, v0")
    I(f"v_and_b32 v{vLN}, 63, v0")
    I(f"v_readfirstlane_b32 s{sW}, v1")
    I(f"s_and_b32 s{sT0}, s2, 1")
    I(f"s_bfe_u32 s{sT1}, s2, 0x30003")
    I(f"s_lshl3_add_u32 s{sT}, s{sT0}, s{sT1}")
    I(f"s_lshr_b32 s{sT2}, s2, 6")
    I(f"s_and_b32 s{sT0}, s2, 6")
    I(f"s_and_b32 s{sT1}, s{sT2}, 1")
    I(f"s_add_u32 s{sA}, s{sT0}, s{sT1}")
    I(f"s_lshl1_add_u32 s{sR}, s{sT2}, s{sT}")
    I(f"v_lshrrev_b32 v2, 4, v{vLN}")
    I(f"v_lshrrev_b32 v3, 3, v{vLN}")
    I(f"v_and_b32 v4, 7, v{vLN}")
    I(f"s_and_b32 s{sT0}, s{sW}, 1")
    I(f"s_lshr_b32 s{sT1}, s{sW}, 1")
    I(f"s_lshl2_add_u32 s{sT1}, s{sT1}, s{sT0}")
    I(f"s_lshl_b32 s{sMX}, s{sT1}, 10")
    I(f"s_lshl4_add_u32 s{sT1}, s{sT}, s{sT1}")
    I(f"s_lshl_b32 s{sT1}, s{sT1}, 13")
    I(f"s_lshl_b32 s{sT0}, s{sT0}, 2")
    I(f"v_or_b32 v5, s{sT0}, v2")
    I(f"v_xor_b32 v5, v5, v4")
    I(f"v_lshlrev_b32 v5, 4, v5")
    I(f"v_lshl_add_u32 v5, v3, 10, v5")
    I(f"v_add_u32 v{vXO}, s{sT1}, v5")
    I(f"s_lshl_b32 s{sMW}, s{sW}, 10")
    I(f"s_add_u32 s{sMW}, s{sMW}, 16384")
    I(f"s_mul_i32 s{sT0}, s{sW}, {8*3072}")
    I(f"s_lshl_b32 s{sT1}, s{sA}, 7")
    I(f"s_add_u32 s{sT0}, s{sT0}, s{sT1}")
    I(f"s_and_b32 s{sC}, s{sR}, 7")
    I(f"s_lshl_b32 s{sO1}, s{sC}, 7")
    I(f"s_mul_i32 s{sO2}, s{sC}, {64*3072}")
    I(f"s_cmp_lt_u32 s2, 128")
    I(f"s_cselect_b32 s{sT1}, 1024, 0")
    I(f"s_cselect_b32 s{sT3}, 0, {T(1).p1(0)}")
    I(f"s_add_u32 s{sT0}, s{sT0}, s{sT1}")
    I(f"v_and_b32 v5, 1, v2")
    I(f"v_lshlrev_b32 v5, 2, v5")
    I(f"v_xor_b32 v5, v5, v4")
    I(f"v_lshlrev_b32 v5, 4, v5")
    I(f"v_mul_u32_u24 v6, 3072, v3")
    I(f"v_add3_u32 v{vWO}, v5, v6, s{sT0}")
    I(f"s_add_u32 m0, s{sMX}, s{sT3}")
    I(f"s_add_u32 s{sT1}, s{sO1}, {16384 - 2048}")
    I(f"s_mov_b32 s{SWQ+2}, {512*3072}")
    I(f"s_mov_b32 s{SWQ+3}, 0x20000")
    pstamp(P, 1)
    I("s_waitcnt lgkmcnt(0)")
    pstamp(P, 2)
    I(f"s_mov_b32 s{SWQ}, s10")
    I(f"s_mov_b32 s{SWQ+1}, s11")
    I(f"s_mov_b32 s{SX+2}, 2097152")
    I(f"s_mov_b32 s{SX+3}, 0x20000")
    I(f"buffer_load_dwordx4 v{vXO}, {s(SX,4)}, s{sO1} offen lds", "x0")
    I(f"buffer_load_dwordx4 v{vXO}, {s(SX,4)}, s{sT1} offen offset:2048 lds", "x0")
    I(f"s_add_u32 m0, s{sMW}, s{sT3}")
    I(f"s_cmp_ge_u32 s2, 128")
    I(f"buffer_load_dwordx4 v{vWO}, {s(SWQ,4)}, s{sO2} offen lds", "w0")
    I(f"s_cbranch_scc1 L_{name}_nov")
    I(f"s_add_u32 m0, s{sMW}, {8192 - 1024}")
    I(f"buffer_load_dwordx4 v{vWO}, {s(SWQ,4)}, s{sO2} offen offset:1024 lds", "w0")
    P.label(f"L_{name}_nov")
    for r, o in ((SWP, 16), (SWG, 40), (SWU, 48), (SWS, 80), (SDB, 72), (SWO, 24), (SWD, 56)):
        I(f"s_load_dwordx2 {s(r,2)}, s[0:1], {o}")
    pstamp(P, 3)
    I(f"s_and_b32 s{sI}, s{sW}, 3")
    I(f"s_lshr_b32 s{sT0}, s{sW}, 2")
    I(f"s_lshr_b32 s{sT1}, s2, 7")
    I(f"s_lshl1_add_u32 s{sT0}, s{sT1}, s{sT0}")
    for k in (1, 2, 3):
        I(f"s_cmp_eq_u32 s{sT0}, {k}")
        I(f"s_cbranch_scc1 L_{name}_r{k}")

def setup(P, t, g):
    I = P.I; typ = t.typ
    a, b, c, d, h, sb, r, sw, row, j4 = range(112, 122)
    for R, n in ((SWP, 16384), (SWG, 512*2752), (SWU, 512*2752), (SWS, WS_BYTES), (SDB, 256), (SWO, 512*1024), (SWD, 1376*1024)):
        if R == (SWG if g else SWU): continue
        I(f"s_mov_b32 s{R+2}, {n}")
        I(f"s_mov_b32 s{R+3}, 0x20000")
    I(f"s_mov_b32 s{sHI}, 0xffff0000")
    I(f"s_lshl_b32 s{sI4}, s{sI}, 2")
    I(f"v_mov_b32 v{j4}, v2")
    I(f"v_lshrrev_b32 v{h}, 5, v{vLN}")
    I(f"v_and_b32 v{sb}, 1, v2")
    I(f"v_bfe_u32 v{r}, v{vLN}, 2, 2")
    I(f"v_bfe_u32 v{a}, v{vLN}, 1, 1")
    I(f"v_and_b32 v{b}, 1, v{vLN}")
    I(f"v_lshl_or_b32 v{sw}, v{b}, 1, v{a}")
    I(f"v_lshlrev_b32 v{sw}, 3, v{sw}")
    I(f"v_lshl_add_u32 v{row}, v{h}, 3, v{r}")
    I(f"v_lshl_or_b32 v{c}, v{sb}, 1, v{a}")
    I(f"v_lshlrev_b32 v{c}, 3, v{c}")
    I(f"v_lshl_add_u32 v{c}, v{row}, 5, v{c}")
    I(f"v_lshl_add_u32 v{c}, v{b}, 11, v{c}")
    I(f"v_add_u32 v{vWF}, {WPH + g*1024}, v{c}")
    if typ == 0:
        I(f"v_bfe_u32 v{c}, v{vLN}, 2, 3")
        I(f"v_lshl_add_u32 v{c}, v{h}, 4, v{c}")
        I(f"v_mul_u32_u24 v{c}, 96, v{c}")
        I(f"v_lshl_add_u32 v{c}, v{b}, 3, v{c}")
        I(f"s_lshr_b32 s{sT0}, s{sI}, 1")
        I(f"s_mul_i32 s{sT0}, s{sT0}, 12288")
        I(f"s_add_u32 s{sT0}, s{sT0}, {PH + 2*g*12288}")
        I(f"s_and_b32 s{sT1}, s{sI}, 1")
        I(f"s_mul_i32 s{sT1}, s{sT1}, 48")
        I(f"s_add_u32 s{sT1}, s{sT1}, s{sT0}")
        I(f"s_add_u32 s{sT0}, s{sT0}, 32")
        I(f"v_lshlrev_b32 v{d}, 4, v{a}")
        I(f"v_add3_u32 v{vKA}, v{c}, v{d}, s{sT1}")
        I(f"v_mul_u32_u24 v{d}, 48, v{a}")
        I(f"v_add3_u32 v{vKB}, v{c}, v{d}, s{sT0}")
    I(f"v_and_b32 v{b}, 2, v{r}")
    I(f"v_or_b32 v{b}, v{b}, v{sb}")
    I(f"v_lshl_add_u32 v{b}, v{b}, 5, v{sw}")
    I(f"v_lshl_add_u32 v{b}, v{row}, 7, v{b}")
    I(f"s_lshl_b32 s{sT0}, s{sI}, 11")
    I(f"s_add_u32 s{sT0}, s{sT0}, {16384 + 64*g}")
    I(f"v_xor_b32 v{vAA[0][0]}, s{sT0}, v{b}")
    I(f"v_and_b32 v{a}, 31, v{vLN}")
    I(f"v_bfe_u32 v{b}, v{vLN}, 1, 3")
    I(f"v_xor_b32 v{b}, v{b}, v{h}")
    I(f"v_lshlrev_b32 v{b}, 4, v{b}")
    I(f"v_lshl_add_u32 v{b}, v{a}, 7, v{b}")
    I(f"s_mul_i32 s{sT0}, s{sI}, {4096 + 32}")
    I(f"v_xor_b32 v{vAX[0][0]}, s{sT0}, v{b}")
    for p in range(1, 4):
        I(f"v_xor_b32 v{vAX[0][p]}, {p*32}, v{vAX[0][0]}")
        I(f"v_xor_b32 v{vAA[0][p]}, {p*2048}, v{vAA[0][0]}")
    for p in range(4):
        I(f"v_add_u32 v{vAX[1][p]}, {t.HI}, v{vAX[0][p]}")
        I(f"v_add_u32 v{vAA[1][p]}, {t.HI}, v{vAA[0][p]}")
    I(f"s_lshl_b32 s{sT0}, s{sI}, 9")
    I(f"s_add_u32 s{sT0}, s{sT0}, {ST}")
    I(f"v_lshlrev_b32 v{b}, 4, v{a}")
    I(f"v_add_u32 v{vSTR}, s{sT0}, v{b}")
    I(f"v_lshl_add_u32 v{vSTW}, v{h}, 2, v{vSTR}")
    if typ == 0:
        I(f"v_mul_u32_u24 v{b}, 96, v{a}")
        I(f"v_mul_u32_u24 v{c}, 48, v{h}")
        I(f"s_mul_i32 s{sT0}, s{sI}, 3072")
        I(f"s_add_u32 s{sT0}, s{sT0}, {PH + 2*g*12288}")
        I(f"v_add3_u32 v{vPH}, v{b}, v{c}, s{sT0}")
    I(f"v_mul_u32_u24 v{b}, {t.RB}, v{row}")
    I(f"v_mul_u32_u24 v{c}, {t.UP}, v{sb}")
    I(f"v_add3_u32 v{b}, v{b}, v{c}, v{sw}")
    for p in range(4):
        I(f"s_xor_b32 s{sT0}, s{sI}, {p}")
        I(f"s_mul_i32 s{sT0}, s{sT0}, {16*t.RB}")
        I(f"v_add_u32 v{vAG[p]}, s{sT0}, v{b}")
    I(f"s_mul_i32 s{sMG}, s{sI}, {16*t.RB}")
    if g: I(f"s_add_u32 s{sMG}, s{sMG}, {t.UP}")
    if typ == 0:
        I(f"s_mul_i32 s{sT2}, s{sA}, 5")
        I(f"s_min_u32 s{sT2}, s{sT2}, 33")
        I(f"s_add_u32 s{sT2}, s{sT2}, 48")
    else: I(f"s_mul_i32 s{sT2}, s{sA}, 6")
    I(f"s_mul_i32 s{sT0}, s{sI}, {16*2752}")
    I(f"s_lshl_b32 s{sT1}, s{sT2}, 5")
    I(f"s_add_u32 s{sT0}, s{sT0}, s{sT1}")
    I(f"s_mov_b32 s{sT1}, {2752 - 16*t.NP}")
    I(f"v_lshlrev_b32 v{a}, 4, v{vLN}")
    I(f"v_add_u32 v{vM16}, {MB}, v{a}")
    I(f"v_add_u32 v{a}, s{sT0}, v{a}")
    I(f"v_mul_u32_u24 v{b}, {t.MUL}, v{vLN}")
    for j in range(3):
        if j: I(f"v_add_u32 v{b}, {64*t.MUL}, v{b}")
        I(f"v_lshrrev_b32 v{c}, 11, v{b}")
        I(f"v_mad_u32_u24 v{vGO[j]}, v{c}, s{sT1}, v{a}")
    I(f"v_and_b32 v{a}, 15, v{vLN}")
    I(f"v_lshlrev_b32 v{b}, 2, v{j4}")
    I(f"v_mov_b32 v{c}, 0x3f803f80")
    I(f"v_cmp_eq_u32 vcc, v{a}, v{b}")
    I(f"v_mov_b32 v{vST}, 0")
    I(f"v_mov_b32 v{vSQ}, 0")
    for k in range(4): I(f"v_cndmask_b32 v{CP+k}, 0, v{c}, vcc")
    I(f"v_add_u32 v{vCW}, s{sI4}, v{vM16}")
    I(f"s_lshl2_add_u32 s{sT0}, s{sT}, s{sI}")
    I(f"s_mul_i32 s{sT0}, s{sT0}, 118")
    I(f"s_add_u32 s{sT1}, s{sT0}, s{sT2}")
    I(f"s_add_u32 s{sT1}, s{sT1}, {32 + (3*g if typ else 2*g)}")
    I(f"s_lshl_b32 s{sHF}, s{sT1}, 10")
    I(f"s_lshr_b32 s{sT1}, s{sW}, 1")
    I(f"s_lshl2_add_u32 s{sT1}, s{sA}, s{sT1}")
    I(f"s_mul_i32 s{sT1}, s{sT1}, 17408")
    I(f"s_and_b32 s{sT2}, s{sW}, 1")
    if typ == 0:
        I(f"s_lshl4_add_u32 s{sT3}, s{sT2}, s{sT}")
        I(f"s_lshl_b32 s{sT3}, s{sT3}, 9")
        I(f"s_add_u32 s{sK1}, s{sT1}, s{sT3}")
        I(f"s_add_u32 s{sK1}, s{sK1}, {KVP_OFF - MB//2}")
        I(f"s_lshl1_add_u32 s{sT3}, s{sT}, s{sT2}")
        I(f"s_lshl_b32 s{sT3}, s{sT3}, 5")
        I(f"s_add_u32 s{sK2}, s{sT1}, s{sT3}")
        I(f"s_add_u32 s{sK2}, s{sK2}, {KVP_OFF + 16384 - MB//32}")
        I(f"s_lshl_b32 s{sEX}, s{sI}, 11")
        I(f"s_sub_u32 s{sEX}, s{sEX}, {MB - 3*t.SL}")
    else:
        I(f"s_add_u32 s{sK2}, s{sT1}, {KVP_OFF + 16384 - MB}")
        I(f"s_lshl_b32 s{sT2}, s{sT2}, 13")
        I(f"s_add_u32 s{sK1}, s{sT1}, s{sT2}")
        I(f"s_add_u32 s{sK1}, s{sK1}, {KVP_OFF - MB}")
        I(f"s_lshl2_add_u32 s{sT0}, s{sA}, s{sT0}")
        I(f"s_add_u32 s{sT0}, s{sT0}, {2*g}")
        I(f"s_lshl_b32 s{sEX}, s{sT0}, 10")
    I(f"v_lshlrev_b32 v{a}, 2, v{vLN}")
    I(f"s_lshl_b32 s{sT0}, s{sW}, 8")
    I(f"s_lshl_b32 s{sT1}, s{sA}, 11")
    I(f"s_add_u32 s{sT1}, s{sT1}, s{sT0}")
    I(f"s_add_u32 s{sT0}, s{sT0}, {WPH}")
    I(f"v_add_u32 v{vWPA}, s{sT0}, v{a}")
    I(f"s_lshl2_add_u32 s{sT0}, s2, s{sI}")
    I(f"s_mul_i32 s{sT0}, s{sT0}, {11*128}")
    I(f"v_lshlrev_b32 v{b}, 7, v{vLN}")
    if typ == 0:
        I(f"v_mov_b32 v{h}, -1")
        I(f"v_mov_b32 v{h+1}, -1")
        I(f"v_lshrrev_b32 v{c}, 1, v{vM16}")
        I(f"v_lshrrev_b32 v{d}, 5, v{vM16}")
    pstamp(P, 4)
    I("s_waitcnt lgkmcnt(0)")
    for x in dma_x(t, 1) + dma_w(t, 1) + dma_x(t, 2):
        for y in x: emit(P, y)
    I(f"buffer_load_dword v{vWPV}, v{a}, {s(SWP,4)}, s{sT1} offen")
    for x in dma_w(t, 2) + dma_x(t, 3) + dma_w(t, 3):
        for y in x: emit(P, y)
    if typ == 0:
        I(f"buffer_store_dwordx2 {v(h,2)}, v{c}, {s(SWS,4)}, s{sK1} offen sc1")
        I("s_mov_b32 exec_lo, 0x10001")
        I("s_mov_b32 exec_hi, 0x10001")
        I(f"buffer_store_dwordx2 {v(h,2)}, v{d}, {s(SWS,4)}, s{sK2} offen sc1")
    if "notouch" not in k1.KN:
        I("s_mov_b64 exec, 0x7ff")
        I(f"buffer_load_dword v{vTCH}, v{b}, {s(SWU if g else SWG,4)}, s{sT0} offen")
    I("s_mov_b64 exec, -1")
    pstamp(P, 5)

def softmax(W, O, m=vMX, sm=vSM):
    o = [f"v_max_f32 v{m}, v{W}, v{W+1}", f"v_max_f32 v{sm}, v{W+2}, v{W+3}"]
    for k in range(4, 16, 4):
        o.append(f"v_max3_f32 v{m}, v{m}, v{W+k}, v{W+k+1}")
        o.append(f"v_max3_f32 v{sm}, v{sm}, v{W+k+2}, v{W+k+3}")
    o.append(f"v_max_f32 v{m}, v{m}, v{sm}")
    o.append(f"v_mul_f32 v{m}, v{m}, v{vC1}")
    for k in range(16): o.append(f"v_fma_f32 v{W+k}, v{W+k}, -v{vC1}, v{m}")
    for k in range(16):
        o.append(f"v_exp_f32 v{W+k}, v{W+k}")
        if k == 2: o.append(f"v_add_f32 v{sm}, v{W}, v{W+1}")
        if k > 2: o.append(f"v_add_f32 v{sm}, v{sm}, v{W+k-1}")
    o.append(f"v_add_f32 v{sm}, v{sm}, v{W+15}")
    o.append(f"v_rcp_f32 v{sm}, v{sm}")
    for k in range(8):
        o.append(f"v_mul_f32 v{W+2*k}, v{W+2*k}, v{sm}")
        o.append(f"v_mul_f32 v{W+2*k+1}, v{W+2*k+1}, v{sm}")
        o.append(f"v_cvt_pk_bf16_f32 v{O+k}, v{W+2*k}, v{W+2*k+1}")
    return o

def glu(G, U, n):
    o = []
    for k in range(n): o.append(f"v_mul_f32 v{G+k}, v{G+k}, v{vC1}")
    for k in range(n): o.append(f"v_exp_f32 v{G+k}, v{G+k}")
    for k in range(n): o.append(f"v_fma_f32 v{G+k}, v{G+k}, v{vSTD}, v{vSTD}")
    for k in range(n): o.append(f"v_rcp_f32 v{G+k}, v{G+k}")
    for k in range(n): o.append(f"v_mul_f32 v{G+k}, v{G+k}, v{U+k}")
    for k in range(n // 2): o.append(f"v_cvt_pk_bf16_f32 v{G+k}, v{G+2*k}, v{G+2*k+1}")
    return o

def publish(c, t0, t1, addr, blk, tag):
    return [f"v_and_b32 v{t0}, s{sHI}, v{c}", f"v_sub_f32 v{t1}, v{c}, v{t0}", f"v_cvt_pk_bf16_f32 v{t0}, v{t0}, v{t1}",
            f"ds_write_b32 v{addr}, v{t0} offset:{CSP - MB + blk*1024} #{tag}"]

def stream(P, typ, g, name):
    global vST, vSQ, vU, vSTW, vSTR, vCW
    I = P.I; t = T(typ); D = 3
    o_ = AV if typ else 83
    vST, vSQ, vU, vSTW, vSTR = o_, o_ + 1, [o_ + 2, o_ + 3, o_ + 4, o_ + 5], o_ + 6, o_ + 7
    vCW = AV + 8 if typ else 94
    PB = CFG["qpub"] if typ else 8
    setup(P, t, g)
    S = Sched(D)
    F = "v[32:35]"
    def mm(acc, x, first): return lambda f: f"v_mfma_f32_32x32x16_bf16 {v(acc,16)}, {f}, {v(x,4)}, {'0' if first else v(acc,16)}"
    def cm(c, first): return lambda f: f"v_mfma_f32_16x16x32_bf16 {v(c,4)}, {v(CP,4)}, {f}, {'0' if first else v(c,4)}"
    def tr(ad, im, sec): return [("tr", ad, im), ("tr2", ad, im + sec)]
    main = []; first = {}
    P1 = {}
    for st in range(8):
        hi, so = t.p1s(st)
        for p in range(4):
            for m, acc in enumerate((AK, AV)[:2 - typ]):
                it = Item(mm(acc, XR(st, p), st == 0 and p == 0), tr(vAA[hi][p], so + 8192*m, 512), cm(CD[m], st == 0) if p == 0 else None, name=f"{st}p{p}m{m}")
                if p == 0 and m == 0:
                    it.bar = st; first[st] = it
                    if st < 2: it.pre = [f"ds_read_b128 {v(XR(st,q),4)}, v{vAX[hi][q]} offset:{so}" for q in range(4)]
                main.append(it); P1[st, p, m] = it
    nb = 3
    blk = [3*g, 3*g+1, 3*g+2] if typ else [3*g, 3*g+1, 2]
    def gi(st, p, b):
        o = t.g(st)
        if o >= 3 * t.SL: o -= 3 * t.SL
        fst = st == 8 and (p == 0 or (typ == 0 and b == 2 and p == 2*g))
        sm = cm(CD[b], st == 8) if p == 0 else None
        return Item(mm(GA[b], XR(st-8, p), fst), tr(vAG[p], o + blk[b]*32, 4*t.RB), sm, name=f"{st}p{p}b{b}")
    def has(p, b): return typ == 1 or b < 2 or (p >> 1) == g
    G = {}
    for st in range(8, 16):
        for p in range(4):
            for b in range(nb):
                if has(p, b): G[st, p, b] = gi(st, p, b)
    for st in range(8, 13):
        l = [G[st, p, b] for p in range(4) for b in range(nb) if has(p, b)]
        l[0].bar = st; first[st] = l[0]; main += l
    first[PB].pre = [f"ds_read_b128 {v(vMU,4)}, v{vSTR}"]
    def corr(acc, cb, nbar, nm):
        return Item(mm(acc, vMU, False), [("b128", vM16, CSP - MB + cb*1024)], needbar=nbar, name=nm)
    C = [corr(GA[b], blk[b], "cs", f"corr{b}") for b in range(nb)]
    rest = lambda b, sts: [G[st, p, b] for st in sts for p in (1, 2, 3)]
    if typ == 0:
        sh = lambda st: [G[st, 2*g, 2], G[st, 2*g+1, 2]]
        t13 = [G[13,0,0], G[13,0,1]] + sh(13) + rest(0, [13])
        t15 = [G[14,0,0], G[14,0,1]] + sh(14) + sh(15) + [G[15,0,0], G[15,0,1]]
        r0 = rest(0, [14, 15]); r1 = rest(1, [13, 14, 15])
        tail = r0[:5] + [C[2]] + r0[5:] + [C[0]] + r1 + [C[1]]
        C[2].bar = "cs"
    else:
        t13 = [G[13,0,b] for b in range(3)] + rest(0, [13])
        t15 = [G[st,0,b] for st in (14, 15) for b in range(3)]
        r0 = rest(0, [14, 15])
        tail = r0[:5] + [C[0]] + r0[5:] + rest(1, [13, 14, 15]) + [C[1]] + rest(2, [13, 14, 15]) + [C[2]]
        C[0].bar = "cs"
    t13[0].bar = 13; t15[0].bar = 15; first[13] = t13[0]; first[15] = t15[0]
    main += t13 + t15 + tail
    barwait = {0: ["x0", "w0"], 1: ["x1", "w1", "x2"], 7: ["w7"], 15: ["w14", "w15"], "cs": []}
    for st in range(2, 7): barwait[st] = [f"w{st}", f"x{st+1}"]
    for st in range(8, 14): barwait[st] = [f"w{st}"]
    barlg = {PB: ["pub"], "cs": ["cs"]}
    if typ == 0:
        dm = {1: dma_x(t,4), 2: dma_w(t,4) + dma_x(t,5), 3: dma_w(t,5) + dma_x(t,6), 4: dma_w(t,6) + dma_x(t,7), 5: dma_w(t,7), 6: dma_g(t,g,8) + dma_g(t,g,9)}
        for b in range(7, 13): dm[b] = dma_g(t, g, b + 3)
    else:
        dm = {0: dma_x(t,4), 1: dma_w(t,4) + dma_x(t,5), 2: dma_w(t,5) + dma_x(t,6), 3: dma_w(t,6) + dma_x(t,7), 4: dma_w(t,7)}
        for b in range(5, 13): dm[b] = dma_g(t, g, b + 3)
    nxt = lambda b: b + 1
    for b in sorted(dm):
        for x in dm[b]: S.add(x, after=b, before=nxt(b), kind="misc")
        if b == 3 and typ == 0 and g == 0:
            S.add([f"s_cmp_eq_u32 s{sI}, 0", "s_cselect_b32 exec_lo, 1, 0", "s_mov_b32 exec_hi, 0", f"s_lshl_b32 s{sT0}, s{sA}, 5",
                   f"buffer_atomic_add v95, off, {s(SDB,4)}, s{sT0} sc1", "s_mov_b64 exec, -1"], after=3)
    if typ == 0 and g == 0: P.I(f"v_mov_b32 v95, 1")
    for p in range(4):
        bs = [b for b in range(nb) if has(p, b)]
        S.add(f"v_add_u32 v{vAG[p]}, {3*t.SL}, v{vAG[p]}", lo=(G[10,p,bs[-1]], -D), hi=(G[11,p,0], -D-1))
        nx = G[13,p,0] if not (typ == 0 and p and (p >> 1) == g) else G[13,p,2]
        S.add(f"v_subrev_u32 v{vAG[p]}, {3*t.SL}, v{vAG[p]}", lo=(G[12,p,bs[-1]], -D), hi=(nx, -D-1))
    ns = CFG["ns"][typ]; u = 0; fs = True
    S.node(P1[0,0,0], cm(CD[0], True)(F))
    if typ == 0: S.node(P1[0,0,1], cm(CD[1], True)(F))
    sp = [2*g, 2*g+1]
    for st in range(8):
        if 1 <= st < 7:
            hi, so = t.p1s(st + 1)
            for q in sp + [x for x in range(4) if x not in sp]:
                S.add(f"ds_read_b128 {v(XR(st+1,q),4)}, v{vAX[hi][q]} offset:{so}", after=st, lo=(first[st], -2 if st > 1 else 0), hi=(P1[st+1,q,0], -2))
        if st == 2:
            S.add(f"ds_write_b32 v{vWPA}, v{vWPV}", after=2)
            S.add(f"v_xor_b32 v{vWPV}, 0x80008000, v{vWPV}", after=2)
            S.add(f"ds_write_b32 v{vWPA}, v{vWPV} offset:2048", after=2, before=7)
    for st in range(8):
        for n, q in enumerate(sp):
            if n < ns[st]:
                S.add(cm(CD[2], fs)(v(XR(st, q), 4)), lo=(first[st], 1) if st < 2 else None); fs = False
    if typ == 1:
        if not fs: S.add(f"v_mov_b32 v{AV+11}, v{CD[2]}", hi=(first[8], -1))
        S.node(P1[7,0,0], cm(CD[0], False)(F))
        S.adds(publish(CD[0], AV+9, AV+10, vCW, g, "pub"), hi=(first[8], -1))
    for st in range(8):
        lo = (first[st], 0) if st < 2 else None
        for n, q in enumerate(sp):
            ms = n < ns[st]
            for j in range(4):
                x = XR(st, q) + j; a, b = vU[u], vU[u+1]; u ^= 2
                o = [f"v_lshlrev_b32 v{a}, 16, v{x}", f"v_and_b32 v{b}, s{sHI}, v{x}"]
                if not ms: o += [f"v_add_f32 v{vST}, v{vST}, v{a}", f"v_add_f32 v{vST}, v{vST}, v{b}"]
                o += [f"v_fmac_f32 v{vSQ}, v{a}, v{a}", f"v_fmac_f32 v{vSQ}, v{b}, v{b}"]
                S.adds(o, lo=lo)
    if typ == 0:
        S.node(P1[7,0,0], cm(CD[0], False)(F))
        S.node(P1[7,0,1], cm(CD[1], False)(F))
        if not fs: S.add(f"v_add_f32 v{vST}, v{vST}, v{CD[2]}")
        S.adds(publish(CD[0], 112, 113, vCW, g, "pub"), before=8)
        S.add(f"v_permlane32_swap_b32 v{vST}, v{vSQ}")
        S.adds(publish(CD[1], 114, 115, vCW, 2 + g, "pub"), before=8)
    else:
        if not fs: S.add(f"v_add_f32 v{vST}, v{vST}, v{AV+11}")
        S.add(f"v_permlane32_swap_b32 v{vST}, v{vSQ}")
    S.adds([f"v_add_f32 v{vST}, v{vST}, v{vSQ}", f"ds_write_b32 v{vSTW}, v{vST} offset:{8*g} #pub"], before=PB)
    if "notouch" not in k1.KN:
        a = XR(1, 0)
        S.adds([f"v_subrev_u32 v{a}, {MB}, v{vM16}", f"v_lshlrev_b32 v{a}, 3, v{a}"], lo=(first[10], 0))
        S.add([f"s_lshl3_add_u32 s{sT0}, s2, s{sW}", f"s_lshl_b32 s{sT1}, s{sT0}, 8", "s_mov_b64 exec, 3",
               f"buffer_load_dword v{a+1}, v{a}, {s(SWO,4)}, s{sT1} offen", "s_mov_b64 exec, -1"], lo=(first[10], 0))
        S.add([f"s_mul_i32 s{sT1}, s{sT0}, 768", "s_mov_b64 exec, 63",
               f"buffer_load_dword v{a+2}, v{a}, {s(SWD,4)}, s{sT1} offen", "s_mov_b64 exec, -1"], lo=(first[10], 0))
    m, q = vMU, vC1
    l8 = (first[PB], -1)
    S.adds([f"v_add_f32 v{m}, v{vMU}, v{vMU+2}", f"v_add_f32 v{q}, v{vMU+1}, v{vMU+3}",
            f"v_mul_f32 v{vSTD}, {fbits(-1.0/512)}, v{m}", f"v_mul_f32 v{q}, {fbits(1.0/512)}, v{q}"], lo=l8)
    S.adds([f"v_cvt_pk_bf16_f32 v{vMU+k}, v{vSTD}, v{vSTD}" for k in range(4)])
    S.adds([f"v_fma_f32 v{q}, -v{vSTD}, v{vSTD}, v{q}", f"v_max_f32 v{q}, 0, v{q}", f"v_add_f32 v{q}, {fbits(1e-5)}, v{q}",
            f"v_rsq_f32 v{vRS}, v{q}", f"v_mul_f32 v{vSTD}, v{q}, v{vRS}", f"v_mul_f32 v{vC1}, {fbits(-LOG2E)}, v{vRS}"])
    ex = []
    S.node(P1[7,3,0], mm(AK, XR(7,3), False)(F))
    ex.append(S.node(corr(AK, g, PB, "corrK"), mm(AK, vMU, False)(F)))
    if typ == 0:
        S.node(P1[7,3,1], mm(AV, XR(7,3), False)(F))
        ex.append(S.node(corr(AV, 2 + g, 8, "corrV"), mm(AV, vMU, False)(F)))
    S.adds([f"v_cvt_pk_bf16_f32 v{AK+k}, v{AK+2*k}, v{AK+2*k+1}" for k in range(8)])
    if typ == 0:
        for k in range(8):
            S.adds([f"v_mul_f32 v{AV+2*k}, v{AV+2*k}, v{vRS}", f"v_mul_f32 v{AV+2*k+1}, v{AV+2*k+1}, v{vRS}",
                    f"v_cvt_pk_bf16_f32 v{AK+8+k}, v{AV+2*k}, v{AV+2*k+1}"])
    pb = "ph"
    if typ == 0:
        W = [AV, XR(0, 0)]
        for rho in range(2):
            pk = mm(W[rho], AK + 4*rho, True)
            if rho: S.node(G[8,3,1], mm(GA[1], XR(0,3), False)(F)); S.node(G[8,2*g+1,2], mm(GA[2], XR(0,2*g+1), False)(F))
            ex.append(S.node(Item(pk, tr(vWF, 512*rho, 128), needbar=8, name=f"phi{rho}"), pk(F)))
            S.add(f"ds_write_b128 v{vPH}, {v(AK+8+4*rho,4)} offset:{rho*12288+32} #ph", after=9, before=pb)
        for rho in range(2):
            S.adds(softmax(W[rho], W[rho], *((vMX, vSM), (AK, AK + 1))[rho]))
            S.add(f"ds_write_b128 v{vPH}, {v(W[rho],4)} offset:{rho*12288} #ph", after=9, before=pb)
            S.add(f"ds_write_b128 v{vPH}, {v(W[rho]+4,4)} offset:{rho*12288+16} #ph", after=9, before=pb)
    else:
        for rho in range(2):
            pk = mm(AV, AK + 4*rho, True)
            ex.append(S.node(Item(pk, tr(vWF, 512*rho, 128), needbar=8, name=f"phi{rho}"), pk(F)))
            S.adds(softmax(AV, AK + 8 if rho == 0 else AV))
    if typ == 0:
        pi = main[main.index(first[12]) + CFG["phbar"]]
        if pi.bar is None: pi.bar = pb; barwait[pb] = []
        else:
            for o in S.ops:
                if o.before == pb: o.before = pi.bar
            pb = pi.bar
        barlg[pb] = ["ph"]
        DK, DZ, ON = AK, AK + 4, AK + 8
        S.adds([f"v_mov_b32 v{ON+k}, 0x3f803f80" for k in range(4)])
        S.adds([f"v_lshrrev_b32 v{AK+12}, 1, v{vM16}", f"v_lshrrev_b32 v{AK+13}, 5, v{vM16}"])
        for u4 in range(4):
            A0 = W[u4 >> 1] + 8*(u4 & 1); B0 = A0 + 4; o = u4 * 3072
            S.add([f"ds_read_b64_tr_b16 {v(A0,2)}, v{vKA} offset:{o}", f"ds_read_b64_tr_b16 {v(A0+2,2)}, v{vKA} offset:{o+768}"], after=pb)
            S.add([f"ds_read_b64_tr_b16 {v(B0,2)}, v{vKB} offset:{o}", f"ds_read_b64_tr_b16 {v(B0+2,2)}, v{vKB} offset:{o+768}"], after=pb)
            S.add(f"v_mfma_f32_16x16x32_bf16 {v(DZ,4)}, {v(A0,4)}, {v(ON,4)}, {'0' if u4 == 0 else v(DZ,4)}")
            S.add(f"v_mfma_f32_16x16x32_bf16 {v(DK,4)}, {v(A0,4)}, {v(B0,4)}, {'0' if u4 == 0 else v(DK,4)}")
        S.adds([f"v_cvt_pk_bf16_f32 v{DZ}, v{DZ}, v{DZ+1}", f"v_cvt_pk_bf16_f32 v{DZ+1}, v{DZ+2}, v{DZ+3}"])
        S.add(["s_mov_b32 exec_lo, 0x10001", "s_mov_b32 exec_hi, 0x10001", f"buffer_store_dwordx2 {v(DZ,2)}, v{AK+13}, {s(SWS,4)}, s{sK2} offen sc1", "s_mov_b64 exec, -1"])
        S.adds([f"v_cvt_pk_bf16_f32 v{DK}, v{DK}, v{DK+1}", f"v_cvt_pk_bf16_f32 v{DK+1}, v{DK+2}, v{DK+3}"])
        kvst = S.add(f"buffer_store_dwordx2 {v(DK,2)}, v{AK+12}, {s(SWS,4)}, s{sK1} offen sc1", kind="misc")
    SEL, DD, ZZ, LD = 132, 136, 140, 144
    vTW, vTZ, vTR, vCT = 128, 129, 130, 131
    if typ == 1:
        a, b, c, ln = 136, 137, 138, 139
        S.add([f"s_lshl_b32 s{sT2}, s{sA}, 5", f"buffer_load_dword v{vCT}, off, {s(SDB,4)}, s{sT2} sc1"], after=12, lo=(first[12], 0))
        o = [f"v_bfe_u32 v{ln}, v{vM16}, 4, 6", f"v_and_b32 v{a}, 15, v{ln}", f"v_lshrrev_b32 v{b}, 1, v{ln}", f"v_and_b32 v{b}, 8, v{b}", f"v_xor_b32 v{b}, v{a}, v{b}",
             f"v_and_b32 v{c}, 1, v{b}", f"v_lshlrev_b32 v{c}, 4, v{c}", f"v_mov_b32 v{a}, 0x3f80", f"v_lshlrev_b32 v{c}, v{c}, v{a}", f"v_lshrrev_b32 v{b}, 1, v{b}"]
        for r in range(4): o += [f"v_cmp_eq_u32 vcc, {r}, v{b}", f"v_cndmask_b32 v{SEL+r}, 0, v{c}, vcc"]
        S.adds(o, lo=(first[9], 0))
        S.add([f"s_lshr_b32 s{sT0}, s{sW}, 1", f"s_lshl_b32 s{sT0}, s{sT0}, 11", f"s_and_b32 s{sT1}, s{sW}, 1", f"s_lshl_b32 s{sT1}, s{sT1}, 5",
               f"s_add_u32 s{sT1}, s{sT1}, s{sT0}", f"s_add_u32 s{sT1}, s{sT1}, {OT}"], lo=(first[9], 0))
        S.adds([f"v_add_u32 v{vTZ}, s{sT0}, v{vM16}", f"v_and_b32 v{a}, 7, v{ln}", f"v_lshlrev_b32 v{a}, 7, v{a}", f"v_and_b32 v{b}, 16, v{ln}", f"v_lshl_add_u32 v{a}, v{b}, 2, v{a}",
                f"v_and_b32 v{b}, 8, v{ln}", f"v_add_u32 v{a}, v{a}, v{b}", f"v_lshrrev_b32 v{b}, 1, v{ln}", f"v_and_b32 v{b}, 16, v{b}", f"v_add3_u32 v{vTW}, v{a}, v{b}, s{sT1}",
                f"v_and_b32 v{a}, 19, v{ln}", f"v_bfe_u32 v{b}, v{ln}, 2, 1", f"v_lshl_or_b32 v{a}, v{b}, 3, v{a}", f"v_bfe_u32 v{b}, v{ln}, 3, 1", f"v_lshl_or_b32 v{a}, v{b}, 2, v{a}",
                f"v_lshlrev_b32 v{a}, 6, v{a}", f"v_and_b32 v{b}, 32, v{ln}", f"v_add_u32 v{a}, v{a}, v{b}", f"v_add_u32 v{vTR}, {OT + g*4096}, v{a}"], lo=(first[9], 0))
        chk = S.add([f"v_readfirstlane_b32 s{sT3}, v{vCT}", f"s_cmp_lt_u32 s{sT3}, 16", f"s_cbranch_scc1 L_{name}_cp{g}", f"LABEL L_{name}_cb{g}"], lo=(first[15], 0))
        chk.R |= {("s", sT2)}; chk.W |= {("s", sT1), ("x", 0)}
    vCW2, vEX, t0, t1 = 184, 185, 186, 188
    S.add(f"v_add_u32 v{vCW2}, s{sI4}, v{vM16}", lo=(first[13], 0))
    if typ == 0:
        S.add(f"v_add_u32 v{vEX}, s{sEX}, v{vM16}", lo=(first[13], 0))
        own = 4*g; oth = 4 - own
        if g == 0: S.node(G[15,0,2], cm(CD[2], False)(F))
        S.node(G[15,2*g+1,2], mm(GA[2], XR(7,0), False)(F))
        S.add(f"ds_write_b128 v{vEX}, {v(GA[2]+oth,4)} offset:{g*8192} #cs", before="cs")
        S.add(f"ds_write_b128 v{vEX}, {v(GA[2]+8+oth,4)} offset:{g*8192+1024} #cs", before="cs")
        S.node(G[15,0,0], cm(CD[0], False)(F)); S.node(G[15,0,1], cm(CD[1], False)(F))
        for b in range(3 - g): S.adds(publish(CD[b], t0 + 2*b, t0 + 2*b + 1, vCW2, blk[b], "cs"), before="cs")
        X = 192
        S.add(f"ds_read_b128 {v(X,4)}, v{vEX} offset:{(1-g)*8192}", after="cs")
        S.add(f"ds_read_b128 {v(X+4,4)}, v{vEX} offset:{(1-g)*8192+1024}", after="cs")
        S.node(C[2], mm(GA[2], vMU, False)(F))
        S.adds([f"v_add_f32 v{X+4*hh+k}, v{X+4*hh+k}, v{GA[2]+8*hh+own+k}" for hh in range(2) for k in range(4)])
        S.adds(glu(X, X + 4, 4))
        S.add(f"buffer_store_dwordx2 {v(X,2)}, v{vM16}, {s(SWS,4)}, s{sHF} offen offset:{(1-g)*2048+8*g}" + HM(), kind="misc")
        fin = [(0, C[0], g*1024), (1, C[1], (1+g)*1024)]
    else:
        for b in range(3): S.node(G[15,0,b], cm(CD[b], False)(F))
        for b in range(3): S.adds(publish(CD[b], t0 + 2*b, t0 + 2*b + 1, vCW2, blk[b], "cs"), before="cs")
        fin = [(0, r0[-1], 0), (1, C[1], 1024), (2, C[2], 2048)]
        def loads():
            o = [[f"buffer_load_dwordx4 {v(ZZ,4)}, v{vM16}, {s(SWS,4)}, s{sK2} offen sc1"]]
            for p in range(8):
                o.append(([f"s_add_u32 s{sT2}, s{sK1}, 4096"] if p == 4 else []) + [f"buffer_load_dwordx4 {v(LD+4*p,4)}, v{vM16}, {s(SWS,4)}, s{sK1 if p < 4 else sT2} offen offset:{(p%4)*1024} sc1"])
            return o
        for x in loads(): S.add(x, kind="misc", lo=lambda: C[2].idx - CFG["qload"]).R |= {("x", 0)}
    for b, it, off in fin:
        S.node(it, mm(GA[b], vMU, False)(F))
        S.adds(glu(GA[b], GA[b] + 8, 8))
        S.add(f"buffer_store_dwordx4 {v(GA[b],4)}, v{vM16}, {s(SWS,4)}, s{sHF} offen offset:{off}" + HM(), kind="misc")
    def budget(n, it):
        if n < first[8].idx:
            if typ == 1: return CFG["qb"]
            if n < first[2].idx: return CFG["b0"]
        return 6
    S.budget = budget
    S.dbl = lambda n: n >= first[12].idx
    if typ == 1:
        for b in range(1, 9): S.prebar_budget[b] = CFG["qpb"]
    S.prebar_budget["cs"] = 6
    if typ == 0: S.prebar_budget[8] = 6
    S.dump = "dump" in k1.KN
    S.solve(main, ex)
    order = S.order; N = len(order)
    info = [f"typ{typ} g{g} N={N} bars={S.bs} extras={[(e.item.name, e.item.idx) for e in ex]} slots={len(S.slots)-D}"]
    if typ == 0: info.append(f"kvstore@{kvst.slot}")
    print(" ".join(info))
    nst = [1]
    def em(x):
        if x.startswith("LABEL"): P.label(x.split()[1])
        else: emit(P, x)
    for n, it, sm, va, mi in S.slots:
        m_ = n + D
        if m_ < N:
            nx = order[m_]
            if nx.bar is not None:
                P.comment(f"--- barrier {nx.bar}")
                for tg in barwait[nx.bar]: P.wait_vm(tg)
                for tg in barlg.get(nx.bar, []): P.wait_lg(tg)
                I("s_barrier")
                if nx.bar not in (3, 'ph'): stamp(P, nst[0]); nst[0] += 1
            f = FR[m_ % 4]
            rd = []
            for k, ad, im in nx.reads:
                rd.append({"tr": f"ds_read_b64_tr_b16 {v(f,2)}, v{ad} offset:{im}", "tr2": f"ds_read_b64_tr_b16 {v(f+2,2)}, v{ad} offset:{im}",
                           "b128": f"ds_read_b128 {v(f,4)}, v{ad} offset:{im}"}[k])
            for x in nx.pre[:1] + rd + nx.pre[1:]: I(x)
        body = []
        if it is not None:
            f = v(FR[n % 4], 4)
            if it.small: body.append(it.small(f))
            if sm: body += sm.texts
            body.append(it.mf(f))
        elif sm: body += sm.texts
        for o in va: body += o.texts
        if it is not None:
            touch = set()
            for x in body:
                i_ = Ins(x); touch |= i_.vr | i_.vw
            P.wait_regs(touch)
        for x in body: em(x)
        for o in mi:
            for x in o.texts: em(x)
        if n == N - 1: stamp(P, nst[0]); nst[0] += 1
    if typ == 1:
        stamp(P, nst[0]); nst[0] += 1
        I(f"s_mov_b32 s{sT0}, 0")
        snap = P.snapshot()
        P.label(f"L_{name}_pre{g}")
        for p in range(8): I(f"v_mfma_f32_16x16x32_bf16 {v(DD,4)}, {v(SEL,4)}, {v(LD+4*p,4)}, {'0' if p == 0 else v(DD,4)}")
        I(f"ds_write_b128 v{vTZ}, {v(ZZ,4)} offset:{OT - MB + 1024}")
        I(f"v_mfma_f32_16x16x32_bf16 {v(LD,4)}, {v(SEL,4)}, {v(ZZ,4)}, {v(DD,4)}")
        I(f"v_cvt_pk_bf16_f32 v{LD+4}, v{DD}, v{DD+1}")
        I(f"v_cvt_pk_bf16_f32 v{LD+5}, v{DD+2}, v{DD+3}")
        I(f"ds_write_b64 v{vTW}, {v(LD+4,2)}")
        I(f"v_cmp_u_f32 vcc, v{LD}, v{LD}")
        I("s_nop 1")
        I(f"s_cbranch_vccnz L_{name}_rt{g}")
        P.label(f"L_{name}_go{g}")
        P.wait_lg()
        I("s_barrier")
        AO = 144; DO = [192, 208]
        for rho in range(2):
            for f in range(2): I(f"ds_read_b128 {v(AO+8*rho+4*f,4)}, v{vTR} offset:{rho*2048+16*f}")
        for rho in range(2):
            ph = AK + 8 if rho == 0 else AV
            for f in range(2):
                I(f"v_mfma_f32_32x32x16_bf16 {v(DO[rho],16)}, {v(AO+8*rho+4*f,4)}, {v(ph+4*f,4)}, {'0' if f == 0 else v(DO[rho],16)}")
        for rho in range(2):
            Dd = DO[rho]
            for k in range(4): I(f"v_add_f32 v{Dd+8+k}, v{Dd+8+k}, v{Dd+12+k}")
            I(f"v_add_f32 v{Dd+8}, v{Dd+8}, v{Dd+9}")
            I(f"v_add_f32 v{Dd+10}, v{Dd+10}, v{Dd+11}")
            I(f"v_add_f32 v{Dd+8}, v{Dd+8}, v{Dd+10}")
            I(f"v_mov_b32 v{Dd+9}, v{Dd+8}")
            I(f"v_permlane32_swap_b32 v{Dd+8}, v{Dd+9}")
            I(f"v_add_f32 v{Dd+8}, v{Dd+8}, v{Dd+9}")
            I(f"v_add_f32 v{Dd+8}, {fbits(1e-6)}, v{Dd+8}")
            I(f"v_rcp_f32 v{Dd+8}, v{Dd+8}")
            for k in range(8): I(f"v_mul_f32 v{Dd+k}, v{Dd+k}, v{Dd+8}")
            for k in range(4): I(f"v_cvt_pk_bf16_f32 v{Dd+k}, v{Dd+2*k}, v{Dd+2*k+1}")
            I(f"buffer_store_dwordx4 {v(Dd,4)}, v{vM16}, {s(SWS,4)}, s{sEX} offen offset:{rho*1024}" + HM())
    while nst[0] < 18: stamp(P, nst[0]); nst[0] += 1
    dump_stamps(P, 19, SWS, sW, 8, sT0)
    I("s_endpgm")
    if typ == 1:
        P.restore(([], [], [], False))
        P.label(f"L_{name}_cp{g}")
        I(f"s_mov_b32 s{sT1}, 0")
        P.label(f"L_{name}_cl{g}")
        I("s_sleep 2")
        I(f"buffer_load_dword v{vCT}, off, {s(SDB,4)}, s{sT2} sc1")
        I(f"s_add_u32 s{sT1}, s{sT1}, 1")
        I(f"v_readfirstlane_b32 s{sT3}, v{vCT}")
        I(f"s_cmp_ge_u32 s{sT3}, 16")
        I(f"s_cbranch_scc1 L_{name}_cb{g}")
        I(f"s_cmp_lt_u32 s{sT1}, 30000")
        I(f"s_cbranch_scc1 L_{name}_cl{g}")
        I(f"s_branch L_{name}_cb{g}")
        P.restore(([], [], [], False))
        P.label(f"L_{name}_rt{g}")
        I(f"s_add_u32 s{sT0}, s{sT0}, 1")
        I(f"s_cmp_ge_u32 s{sT0}, 30000")
        I(f"s_cbranch_scc1 L_{name}_go{g}")
        I("s_waitcnt lgkmcnt(0)")
        for x in loads():
            for y in x: I(y)
        I("s_waitcnt vmcnt(0)")
        I(f"s_branch L_{name}_pre{g}")

def gen_k1(name):
    P = Prog()
    P.raw(f".globl {name}\n.p2align 8\n.type {name},@function\n{name}:")
    prologue(P, name)
    snap = P.snapshot()
    for k in range(4):
        P.restore(snap)
        if k >= 2: P.vm.pop()
        if k: P.raw(".p2align 6"); P.label(f"L_{name}_r{k}")
        stream(P, k >> 1, k & 1, name)
    P.label(f"L_{name}_end")
    P.I("s_endpgm")
    return P
```

```python
from asmlib import Ins, TRANS
THREE = ("v_fma_", "v_fmac_", "v_max3", "v_min3", "v_add3", "v_lshl_add", "v_lshl_or", "v_and_or", "v_or3", "v_mad", "v_cndmask", "v_perm_b32", "v_bfi", "v_add_lshl", "v_xad")
SCC = 1000
class Op:
    def __init__(self, texts, tag=None, after=None, before=None, lo=None, hi=None, item=None, lat=None, kind=None):
        if isinstance(texts, str): texts = [texts]
        self.texts = texts; self.tag = tag; self.after = after; self.before = before
        self.lo = lo; self.hi = hi; self.item = item; self.lat = lat
        self.R = set(); self.W = set()
        cl = []
        for t in texts:
            if t.startswith("LABEL"): continue
            i = Ins(t.split("#")[0].strip())
            self.R |= {("v", r) for r in i.vr} | {("s", r) for r in i.sr}
            self.W |= {("v", r) for r in i.vw} | {("s", r) for r in i.sw if r not in (126, 127)}
            if i.op.startswith("v_cndmask") and "vcc" not in t: pass
            cl.append(i)
        i = cl[-1]
        if kind: self.kind = kind
        elif len(texts) == 1 and i.cls in ("valu", "trans"): self.kind = "valu"
        elif len(texts) == 1 and i.cls == "mfma": self.kind = "big" if i.passes == 8 else "small"
        else: self.kind = "misc"
        self.cost = 2 if i.cls == "trans" else 1
        self.trans = i.cls == "trans"
        self.three = i.op.startswith(THREE)
        self.nds = sum(1 for x in cl if x.cls == "ds"); self.nvm = sum(1 for x in cl if x.cls == "vmem")
        self.dsr = any(x.cls == "ds" and x.vw for x in cl)
        self.vml = any(x.cls == "vmem" and x.vw for x in cl)
        self.slot = None; self.deps = []
    def __repr__(self): return f"<{self.kind} {self.texts[-1]} @{self.slot}>"

class Item:
    def __init__(self, mf=None, reads=(), small=None, bar=None, pre=(), name="", needbar=None):
        self.mf = mf; self.reads = list(reads); self.small = small; self.bar = bar; self.pre = list(pre); self.name = name
        self.needbar = needbar; self.idx = None

def latency(p, raw):
    if p.lat is not None and raw: return p.lat
    if p.kind == "big": return 2 if raw else 0
    if p.kind == "small": return 1 if raw else 0
    if raw and p.dsr: return 2
    if raw and p.vml: return 8
    return 0

class Sched:
    def __init__(self, D=3):
        self.D = D; self.items = []; self.ops = []; self.budget = lambda n, it: 6
        self.prebar_budget = {}; self.dbl = lambda n: False
    def add(self, *a, **k):
        o = Op(*a, **k); self.ops.append(o); return o
    def adds(self, lst, **k): return [self.add(t, **k) for t in lst]
    def node(self, item, text, kind=None):
        o = Op(text, item=item, kind=kind); self.ops.append(o); return o
    def mkdeps(self):
        lastw = {}; readers = {}
        for o in self.ops:
            d = {}
            for r in o.R | o.W:
                if r in lastw: d[id(lastw[r])] = (lastw[r], r[0] == "v" or d.get(id(lastw[r]), (0, False))[1])
            for r in o.W:
                for q in readers.get(r, ()):
                    if id(q) not in d: d[id(q)] = (q, False)
            o.deps = [(p, latency(p, raw)) for p, raw in d.values() if p is not o]
            for r in o.R: readers.setdefault(r, []).append(o)
            for r in o.W: lastw[r] = o; readers[r] = []
    def res(self, x):
        if x is None: return None
        if callable(x): return x()
        if isinstance(x, tuple): return x[0].idx + x[1]
        return x
    def run(self, order):
        D = self.D
        for it in self.items_all: it.idx = None
        for n, it in enumerate(order): it.idx = n
        self.bs = {it.bar: n - D for n, it in enumerate(order) if it.bar is not None}
        pre = {b - 1: k for k, b in self.bs.items()}
        for o in self.ops: o.slot = o.item.idx if o.item is not None else None
        pend = [o for o in self.ops if o.item is None]
        for o in pend:
            l = -99
            if o.after is not None: l = max(l, self.bs[o.after])
            if o.lo is not None: l = max(l, self.res(o.lo))
            o._lo = l
        N = len(order); slots = []
        def ready(o, n):
            if o._lo > n: return False
            for p, l in o.deps:
                if p.slot is None or p.slot + l > n: return False
            return True
        n = -D; idle = 0
        while n < N or (pend and idle < 12):
            sm = None; va = []; mi = []
            it = order[n] if 0 <= n < N else None
            if n >= 0 and (it is None or it.small is None or self.dbl(n)):
                for o in pend:
                    if o.kind == "small" and ready(o, n) and all(p.slot < n for p, l in o.deps):
                        sm = o; o.slot = n; pend.remove(o); break
            if n < 0: B = 0
            elif it is None: B = 8
            elif n in pre: B = self.prebar_budget.get(pre[n], 0)
            else: B = self.budget(n, it)
            used = 0
            while used < B:
                c = None; fb = None
                for o in pend:
                    if o.kind != "valu" or not ready(o, n): continue
                    bad = (o.three and used < 2 and it is not None) or (va and va[-1].trans and not o.trans and (va[-1].W & o.R))
                    if used + o.cost > B: continue
                    if not bad: c = o; break
                    if fb is None: fb = o
                if c is None:
                    if fb is None: break
                    c = fb
                    pen = max(used, 2) if c.three else used + 1
                    if pen + c.cost > B: break
                    used = pen
                c.slot = n; pend.remove(c); va.append(c); used += c.cost
            nds = nvm = 0
            for o in list(pend):
                if o.kind != "misc" or not ready(o, n): continue
                if it is not None or n < 0:
                    if o.nds and nds + o.nds > (4 if o.nds == 2 else 2): continue
                    if o.nvm and nvm + o.nvm > 1: continue
                o.slot = n; pend.remove(o); mi.append(o); nds += o.nds; nvm += o.nvm
            slots.append((n, it, sm, va, mi))
            if n >= N: idle = 0 if (sm or va or mi) else idle + 1
            n += 1
        self.slots = slots; self.left = pend
    def ok_item(self, o):
        n = o.item.idx
        for p, l in o.deps:
            if p.slot is None or p.slot + max(l, 1) > n:
                if p.item is not None and p.slot is not None and p.slot < n: continue
                return False
        if o.item.needbar is not None and n - self.D < self.bs[o.item.needbar]: return False
        return True
    def solve(self, main, extras):
        self.items_all = list(main) + [e.item for e in extras]
        self.mkdeps()
        order = list(main); prev = None
        for e in extras:
            self.run(order)
            n = max([p.slot + (1 if p.item is not None else max(l, 1)) for p, l in e.deps] + [0])
            if e.item.needbar is not None: n = max(n, self.bs[e.item.needbar] + self.D + 1)
            n -= 2
            if prev is not None: n = max(n, prev.idx + 1)
            prev = e.item
            while True:
                o2 = order[:n] + [e.item] + order[n:]
                self.run(o2)
                if self.ok_item(e): break
                n += 1
                assert n <= len(order) + 1, ("cannot place", e)
            order = o2
        self.run(order)
        if getattr(self, "dump", False):
            for n, it, sm, va, mi in self.slots:
                print(n, it.name if it else "-", "s" if (sm or (it and it.small)) else " ", "B" if n in self.bs.values() else " ", sum(o.cost for o in va), " ".join(o.texts[-1].split()[0][2:].replace("_f32","").replace("_b32","").replace("_u32","") for o in va), "|", " ".join([x for x in o.texts if not x.startswith("s_")][-1].split()[0] if any(not x.startswith("s_") for x in o.texts) else "salu" for o in mi))
        assert not self.left, self.left[:5]
        for o in self.ops:
            if o.item is not None: assert self.ok_item(o), ("item dep violated", o, [(p, l) for p, l in o.deps])
            if o.before is not None: assert o.slot < self.bs[o.before], ("before", o, o.before, self.bs[o.before])
            if o.hi is not None: assert o.slot <= self.res(o.hi), ("hi", o, self.res(o.hi))
        self.order = order
```

```python
import sys, ast
import k1, k1b, k2
from gen import build
args = sys.argv[1:]
out = args[0]; fl = set(a for a in args[1:] if "=" not in a)
k1.KN = fl
k1.PROF = "prof" in fl
D = 8
for f in args[1:]:
    if "=" in f:
        k, val = f.split("=", 1)
        if k == "D": D = int(val)
        elif k == "rot": k1b.CFG[k] = val
        elif k == "hm": k1b.CFG[k] = " " + val
        else: k1b.CFG[k] = eval(val)
P1 = k1b.gen_k1("k1_kernel")
k1.PROF_ADD = 0x80000
P2, lds2, nv2 = k2.gen_k2("k2_kernel", D, k1b.HF_OFF)
print(P1.count, P1.nnop, P2.count, P2.nnop, lds2, nv2)
build([("k1_kernel", P1, 256, 512, k1.LDS_BYTES, 256), ("k2_kernel", P2, 256, 256, lds2, nv2)], out)
```

```python
from asmlib import Prog, Ins, v, s
from sched import Sched, Item, Op
import k1
from k1 import fbits, LOG2E, stamp, pstamp, dump_stamps

MB = 122880
HF_OFF = MB
KVP_OFF = 0xC00000
WS_BYTES = 0x1000000
PH = 103040; ST = 131072; OT = 131072; WPH = 152192; CSP = 156288
LDS_BYTES = 163840
SDB, SX, SWQ, SWG, SWU, SWS, SWP, SWO, SWD = 4, 8, 12, 16, 20, 24, 28, 44, 48
sW, sT, sA, sTY, sR, sI, sMX, sMW, sMG, sC, sO1, sO2 = range(32, 44)
sHF, sK1, sK2, sHI, sT0, sT1, sT2, sT3 = range(52, 60)
sI4, sEX = 3, 35
vM16 = 0; vGO = [1, 2, 3]; vAG = [4, 5, 6, 7]; vMU = 8; CP = 12; CD = [16, 18, 20]
vC1, vSTD, vRS, vWF, vPH, vKA, vKB, vSM = range(24, 32)
vMX = vRS
FR = [32, 36, 40, 44]
AK, AV = 48, 64
GA = [80, 96, 112]
vXO, vWO, vLN, vST, vSQ = 80, 81, 82, 83, 84
vU = [85, 86, 87, 88]
vSTW, vSTR, vWPV, vWPA, vTCH, vCW = 89, 90, 91, 92, 93, 94
vAX = [[96, 97, 98, 99], [100, 101, 102, 103]]
vAA = [[104, 105, 106, 107], [108, 109, 110, 111]]
def XR(i, p): return 128 + (4 * i + p) * 4
CFG = dict(gb=6, pb=6, paceg=1, b0end=1, pro=3, pace=1, tch=13, gt=1, rot="a", acc2=1, hstag=1, ns=([1]*8, [2]*8), phbar=10, qload=8, b0=8, hm="", qb=6, qpb=6, qpub=10)
def HM(): return CFG["hm"]

class T:
    def __init__(s, typ):
        s.typ = typ
        s.RB = 192 if typ else 160; s.NP = 12 if typ else 10; s.MUL = 171 if typ else 205
        s.UP = 64 * s.RB + (32 if typ else 128); s.SL = 2 * 64 * s.RB + (64 if typ else 128)
        s.HI = 3 * s.SL if typ else 65536
    def p1(s, st): return ((st + 2) % 5) * s.SL if s.typ else (st % 4) * 32768
    def p1s(s, st):
        o = s.p1(st); return (1, o - s.HI) if o >= s.HI else (0, o)
    def g(s, st): return ((st - 8) % 5) * s.SL

def dma_x(t, st):
    return [[f"s_add_u32 s{sC}, s{sR}, {st}", f"s_and_b32 s{sC}, s{sC}, 7", f"s_add_u32 m0, s{sMX}, {t.p1(st)}", f"s_lshl_b32 s{sO1}, s{sC}, 7",
             f"buffer_load_dwordx4 v{vXO}, {s(SX,4)}, s{sO1} offen lds #x{st}"],
            [f"s_add_u32 s{sO1}, s{sO1}, {16384 - 2048}", f"buffer_load_dwordx4 v{vXO}, {s(SX,4)}, s{sO1} offen offset:2048 lds #x{st}"]]
def dma_w(t, st):
    o = [[f"s_add_u32 s{sC}, s{sR}, {st}", f"s_and_b32 s{sC}, s{sC}, 7", f"s_add_u32 m0, s{sMW}, {t.p1(st)}", f"s_mul_i32 s{sO2}, s{sC}, {64*3072}",
          f"buffer_load_dwordx4 v{vWO}, {s(SWQ,4)}, s{sO2} offen lds #w{st}"]]
    if t.typ == 0:
        o.append([f"s_add_u32 m0, s{sMW}, {t.p1(st) + 8192 - 1024}", "s_nop 0", f"buffer_load_dwordx4 v{vWO}, {s(SWQ,4)}, s{sO2} offen offset:1024 lds #w{st}"])
    return o
def dma_g(t, g, st):
    S = s(SWU if g else SWG, 4)
    o = [[f"s_add_u32 s{sC}, s{sR}, {st}", f"s_and_b32 s{sC}, s{sC}, 7", f"s_add_u32 m0, s{sMG}, {t.g(st)}", f"s_mul_i32 s{sO2}, s{sC}, {64*2752}",
          f"buffer_load_dwordx4 v{vGO[0]}, {S}, s{sO2} offen lds #w{st}"],
         [f"buffer_load_dwordx4 v{vGO[1]}, {S}, s{sO2} offen offset:1024 lds #w{st}"]]
    l = f"buffer_load_dwordx4 v{vGO[2]}, {S}, s{sO2} offen offset:2048 lds #w{st}"
    o.append([l] if t.typ else ["s_mov_b32 exec_hi, 0", l, "s_mov_b32 exec_hi, -1"])
    return o

def stream_list(t, g):
    o = []
    for st in range(1, 8): o += [dma_x(t, st), dma_w(t, st)]
    return o

def emit(P, t):
    tag = None
    if "#" in t: t, tag = t.split("#"); t = t.strip()
    P.I(t, tag)

def prologue(P, name):
    I = P.I
    stamp(P, 0)
    I("s_cmp_ge_u32 s2, 256")
    I(f"s_cbranch_scc1 L_{name}_end")
    I(f"s_load_dwordx4 s[8:11], s[0:1], 0")
    I(f"v_lshrrev_b32 v1, 6, v0")
    I(f"v_and_b32 v{vLN}, 63, v0")
    I(f"v_readfirstlane_b32 s{sW}, v1")
    I(f"s_and_b32 s{sT0}, s2, 1")
    I(f"s_bfe_u32 s{sT1}, s2, 0x30003")
    I(f"s_lshl3_add_u32 s{sT}, s{sT0}, s{sT1}")
    I(f"s_lshr_b32 s{sT2}, s2, 6")
    I(f"s_and_b32 s{sT0}, s2, 6")
    I(f"s_and_b32 s{sT1}, s{sT2}, 1")
    I(f"s_add_u32 s{sA}, s{sT0}, s{sT1}")
    I(f"s_lshl1_add_u32 s{sR}, s{sT2}, s{sT}")
    rot = CFG["rot"]
    if rot[0] == "b": I(f"s_add_u32 s{sR}, s{sT2}, s{sT}"); I(f"s_lshl_b32 s{sR}, s{sR}, 1")
    if rot[0] == "c": I(f"s_add_u32 s{sR}, s{sT2}, s{sT}"); I(f"s_lshl_b32 s{sR}, s{sR}, 2")
    if rot[0] == "d": I(f"s_mov_b32 s{sR}, 0")
    if rot[1:] == "x": I(f"s_add_u32 s{sR}, s{sR}, s2")
    if rot[1:] == "y": I(f"s_lshr_b32 s{sC}, s2, 1"); I(f"s_add_u32 s{sR}, s{sR}, s{sC}"); I(f"s_and_b32 s{sC}, s2, 1"); I(f"s_lshl1_add_u32 s{sR}, s{sC}, s{sR}")
    if rot[1:] == "z": I(f"s_add_u32 s{sR}, s{sR}, s{sT0}"); I(f"s_and_b32 s{sC}, s2, 1"); I(f"s_lshl2_add_u32 s{sR}, s{sC}, s{sR}")
    I(f"v_lshrrev_b32 v2, 4, v{vLN}")
    I(f"v_lshrrev_b32 v3, 3, v{vLN}")
    I(f"v_and_b32 v4, 7, v{vLN}")
    I(f"s_and_b32 s{sT0}, s{sW}, 1")
    I(f"s_lshr_b32 s{sT1}, s{sW}, 1")
    I(f"s_lshl2_add_u32 s{sT1}, s{sT1}, s{sT0}")
    I(f"s_lshl_b32 s{sMX}, s{sT1}, 10")
    I(f"s_lshl4_add_u32 s{sT1}, s{sT}, s{sT1}")
    I(f"s_lshl_b32 s{sT1}, s{sT1}, 13")
    I(f"s_lshl_b32 s{sT0}, s{sT0}, 2")
    I(f"v_or_b32 v5, s{sT0}, v2")
    I(f"v_xor_b32 v5, v5, v4")
    I(f"v_lshlrev_b32 v5, 4, v5")
    I(f"v_lshl_add_u32 v5, v3, 10, v5")
    I(f"v_add_u32 v{vXO}, s{sT1}, v5")
    I(f"s_lshl_b32 s{sMW}, s{sW}, 10")
    I(f"s_add_u32 s{sMW}, s{sMW}, 16384")
    I(f"s_mul_i32 s{sT0}, s{sW}, {8*3072}")
    I(f"s_lshl_b32 s{sT1}, s{sA}, 7")
    I(f"s_add_u32 s{sT0}, s{sT0}, s{sT1}")
    I(f"s_and_b32 s{sC}, s{sR}, 7")
    I(f"s_lshl_b32 s{sO1}, s{sC}, 7")
    I(f"s_mul_i32 s{sO2}, s{sC}, {64*3072}")
    I(f"s_cmp_lt_u32 s2, 128")
    I(f"s_cselect_b32 s{sT1}, 1024, 0")
    I(f"s_cselect_b32 s{sT3}, 0, {T(1).p1(0)}")
    I(f"s_add_u32 s{sT0}, s{sT0}, s{sT1}")
    I(f"v_and_b32 v5, 1, v2")
    I(f"v_lshlrev_b32 v5, 2, v5")
    I(f"v_xor_b32 v5, v5, v4")
    I(f"v_lshlrev_b32 v5, 4, v5")
    I(f"v_mul_u32_u24 v6, 3072, v3")
    I(f"v_add3_u32 v{vWO}, v5, v6, s{sT0}")
    I(f"s_add_u32 m0, s{sMX}, s{sT3}")
    I(f"s_add_u32 s{sT1}, s{sO1}, {16384 - 2048}")
    I(f"s_mov_b32 s{SWQ+2}, {512*3072}")
    I(f"s_mov_b32 s{SWQ+3}, 0x20000")
    pstamp(P, 1)
    I("s_waitcnt lgkmcnt(0)")
    pstamp(P, 2)
    I(f"s_mov_b32 s{SWQ}, s10")
    I(f"s_mov_b32 s{SWQ+1}, s11")
    I(f"s_mov_b32 s{SX+2}, 2097152")
    I(f"s_mov_b32 s{SX+3}, 0x20000")
    I(f"buffer_load_dwordx4 v{vXO}, {s(SX,4)}, s{sO1} offen lds", "x0")
    I(f"buffer_load_dwordx4 v{vXO}, {s(SX,4)}, s{sT1} offen offset:2048 lds", "x0")
    I(f"s_add_u32 m0, s{sMW}, s{sT3}")
    I(f"s_cmp_ge_u32 s2, 128")
    I(f"buffer_load_dwordx4 v{vWO}, {s(SWQ,4)}, s{sO2} offen lds", "w0")
    I(f"s_cbranch_scc1 L_{name}_nov")
    I(f"s_add_u32 m0, s{sMW}, {8192 - 1024}")
    I(f"buffer_load_dwordx4 v{vWO}, {s(SWQ,4)}, s{sO2} offen offset:1024 lds", "w0")
    P.label(f"L_{name}_nov")
    for r, o in ((SWP, 16), (SWG, 40), (SWU, 48), (SWS, 80), (SDB, 72), (SWO, 24), (SWD, 56)):
        I(f"s_load_dwordx2 {s(r,2)}, s[0:1], {o}")
    pstamp(P, 3)
    I(f"s_and_b32 s{sI}, s{sW}, 3")
    I(f"s_lshr_b32 s{sT0}, s{sW}, 2")
    I(f"s_lshr_b32 s{sT1}, s2, 7")
    I(f"s_lshl1_add_u32 s{sT0}, s{sT1}, s{sT0}")
    for k in (1, 2, 3):
        I(f"s_cmp_eq_u32 s{sT0}, {k}")
        I(f"s_cbranch_scc1 L_{name}_r{k}")

def setup(P, t, g):
    I = P.I; typ = t.typ
    a, b, c, d, h, sb, r, sw, row, j4 = range(112, 122)
    for R, n in ((SWP, 16384), (SWG, 512*2752), (SWU, 512*2752), (SWS, WS_BYTES), (SDB, 256), (SWO, 512*1024), (SWD, 1376*1024)):
        if R == (SWG if g else SWU): continue
        I(f"s_mov_b32 s{R+2}, {n}")
        I(f"s_mov_b32 s{R+3}, 0x20000")
    I(f"s_mov_b32 s{sHI}, 0xffff0000")
    I(f"s_lshl_b32 s{sI4}, s{sI}, 2")
    I(f"v_mov_b32 v{j4}, v2")
    I(f"v_lshrrev_b32 v{h}, 5, v{vLN}")
    I(f"v_and_b32 v{sb}, 1, v2")
    I(f"v_bfe_u32 v{r}, v{vLN}, 2, 2")
    I(f"v_bfe_u32 v{a}, v{vLN}, 1, 1")
    I(f"v_and_b32 v{b}, 1, v{vLN}")
    I(f"v_lshl_or_b32 v{sw}, v{b}, 1, v{a}")
    I(f"v_lshlrev_b32 v{sw}, 3, v{sw}")
    I(f"v_lshl_add_u32 v{row}, v{h}, 3, v{r}")
    I(f"v_lshl_or_b32 v{c}, v{sb}, 1, v{a}")
    I(f"v_lshlrev_b32 v{c}, 3, v{c}")
    I(f"v_lshl_add_u32 v{c}, v{row}, 5, v{c}")
    I(f"v_lshl_add_u32 v{c}, v{b}, 11, v{c}")
    I(f"v_add_u32 v{vWF}, {WPH + g*1024}, v{c}")
    if typ == 0:
        I(f"v_bfe_u32 v{c}, v{vLN}, 2, 3")
        I(f"v_lshl_add_u32 v{c}, v{h}, 4, v{c}")
        I(f"v_mul_u32_u24 v{c}, 96, v{c}")
        I(f"v_lshl_add_u32 v{c}, v{b}, 3, v{c}")
        I(f"s_lshr_b32 s{sT0}, s{sI}, 1")
        I(f"s_mul_i32 s{sT0}, s{sT0}, 12288")
        I(f"s_add_u32 s{sT0}, s{sT0}, {PH + 2*g*12288}")
        I(f"s_and_b32 s{sT1}, s{sI}, 1")
        I(f"s_mul_i32 s{sT1}, s{sT1}, 48")
        I(f"s_add_u32 s{sT1}, s{sT1}, s{sT0}")
        I(f"s_add_u32 s{sT0}, s{sT0}, 32")
        I(f"v_lshlrev_b32 v{d}, 4, v{a}")
        I(f"v_add3_u32 v{vKA}, v{c}, v{d}, s{sT1}")
        I(f"v_mul_u32_u24 v{d}, 48, v{a}")
        I(f"v_add3_u32 v{vKB}, v{c}, v{d}, s{sT0}")
    I(f"v_and_b32 v{b}, 2, v{r}")
    I(f"v_or_b32 v{b}, v{b}, v{sb}")
    I(f"v_lshl_add_u32 v{b}, v{b}, 5, v{sw}")
    I(f"v_lshl_add_u32 v{b}, v{row}, 7, v{b}")
    I(f"s_lshl_b32 s{sT0}, s{sI}, 11")
    I(f"s_add_u32 s{sT0}, s{sT0}, {16384 + 64*g}")
    I(f"v_xor_b32 v{vAA[0][0]}, s{sT0}, v{b}")
    I(f"v_and_b32 v{a}, 31, v{vLN}")
    I(f"v_bfe_u32 v{b}, v{vLN}, 1, 3")
    I(f"v_xor_b32 v{b}, v{b}, v{h}")
    I(f"v_lshlrev_b32 v{b}, 4, v{b}")
    I(f"v_lshl_add_u32 v{b}, v{a}, 7, v{b}")
    I(f"s_mul_i32 s{sT0}, s{sI}, {4096 + 32}")
    I(f"v_xor_b32 v{vAX[0][0]}, s{sT0}, v{b}")
    for p in range(1, 4):
        I(f"v_xor_b32 v{vAX[0][p]}, {p*32}, v{vAX[0][0]}")
        I(f"v_xor_b32 v{vAA[0][p]}, {p*2048}, v{vAA[0][0]}")
    for p in range(4):
        I(f"v_add_u32 v{vAX[1][p]}, {t.HI}, v{vAX[0][p]}")
        I(f"v_add_u32 v{vAA[1][p]}, {t.HI}, v{vAA[0][p]}")
    I(f"s_lshl_b32 s{sT0}, s{sI}, 9")
    I(f"s_add_u32 s{sT0}, s{sT0}, {ST}")
    I(f"v_lshlrev_b32 v{b}, 4, v{a}")
    I(f"v_add_u32 v{vSTR}, s{sT0}, v{b}")
    I(f"v_lshl_add_u32 v{vSTW}, v{h}, 2, v{vSTR}")
    if typ == 0:
        I(f"v_mul_u32_u24 v{b}, 96, v{a}")
        I(f"v_mul_u32_u24 v{c}, 48, v{h}")
        I(f"s_mul_i32 s{sT0}, s{sI}, 3072")
        I(f"s_add_u32 s{sT0}, s{sT0}, {PH + 2*g*12288}")
        I(f"v_add3_u32 v{vPH}, v{b}, v{c}, s{sT0}")
    I(f"v_mul_u32_u24 v{b}, {t.RB}, v{row}")
    I(f"v_mul_u32_u24 v{c}, {t.UP}, v{sb}")
    I(f"v_add3_u32 v{b}, v{b}, v{c}, v{sw}")
    for p in range(4):
        I(f"s_xor_b32 s{sT0}, s{sI}, {p}")
        I(f"s_mul_i32 s{sT0}, s{sT0}, {16*t.RB}")
        I(f"v_add_u32 v{vAG[p]}, s{sT0}, v{b}")
    I(f"s_mul_i32 s{sMG}, s{sI}, {16*t.RB}")
    if g: I(f"s_add_u32 s{sMG}, s{sMG}, {t.UP}")
    if typ == 0:
        I(f"s_mul_i32 s{sT2}, s{sA}, 5")
        I(f"s_min_u32 s{sT2}, s{sT2}, 33")
        I(f"s_add_u32 s{sT2}, s{sT2}, 48")
    else: I(f"s_mul_i32 s{sT2}, s{sA}, 6")
    I(f"s_mul_i32 s{sT0}, s{sI}, {16*2752}")
    I(f"s_lshl_b32 s{sT1}, s{sT2}, 5")
    I(f"s_add_u32 s{sT0}, s{sT0}, s{sT1}")
    I(f"s_mov_b32 s{sT1}, {2752 - 16*t.NP}")
    I(f"v_lshlrev_b32 v{a}, 4, v{vLN}")
    I(f"v_add_u32 v{vM16}, {MB}, v{a}")
    I(f"v_add_u32 v{a}, s{sT0}, v{a}")
    I(f"v_mul_u32_u24 v{b}, {t.MUL}, v{vLN}")
    for j in range(3):
        if j: I(f"v_add_u32 v{b}, {64*t.MUL}, v{b}")
        I(f"v_lshrrev_b32 v{c}, 11, v{b}")
        I(f"v_mad_u32_u24 v{vGO[j]}, v{c}, s{sT1}, v{a}")
    I(f"v_and_b32 v{a}, 15, v{vLN}")
    I(f"v_lshlrev_b32 v{b}, 2, v{j4}")
    I(f"v_mov_b32 v{c}, 0x3f803f80")
    I(f"v_cmp_eq_u32 vcc, v{a}, v{b}")
    I(f"v_mov_b32 v{vST}, 0")
    I(f"v_mov_b32 v{vSQ}, 0")
    for k in range(4): I(f"v_cndmask_b32 v{CP+k}, 0, v{c}, vcc")
    I(f"v_add_u32 v{vCW}, s{sI4}, v{vM16}")
    I(f"s_lshl2_add_u32 s{sT0}, s{sT}, s{sI}")
    I(f"s_mul_i32 s{sT0}, s{sT0}, 118")
    I(f"s_add_u32 s{sT1}, s{sT0}, s{sT2}")
    I(f"s_add_u32 s{sT1}, s{sT1}, {32 + (3*g if typ else 2*g)}")
    I(f"s_lshl_b32 s{sHF}, s{sT1}, 10")
    I(f"s_lshr_b32 s{sT1}, s{sW}, 1")
    I(f"s_lshl2_add_u32 s{sT1}, s{sA}, s{sT1}")
    I(f"s_mul_i32 s{sT1}, s{sT1}, 17408")
    I(f"s_and_b32 s{sT2}, s{sW}, 1")
    if typ == 0:
        I(f"s_lshl4_add_u32 s{sT3}, s{sT2}, s{sT}")
        I(f"s_lshl_b32 s{sT3}, s{sT3}, 9")
        I(f"s_add_u32 s{sK1}, s{sT1}, s{sT3}")
        I(f"s_add_u32 s{sK1}, s{sK1}, {KVP_OFF - MB//2}")
        I(f"s_lshl1_add_u32 s{sT3}, s{sT}, s{sT2}")
        I(f"s_lshl_b32 s{sT3}, s{sT3}, 5")
        I(f"s_add_u32 s{sK2}, s{sT1}, s{sT3}")
        I(f"s_add_u32 s{sK2}, s{sK2}, {KVP_OFF + 16384 - MB//32}")
        I(f"s_lshl_b32 s{sEX}, s{sI}, 11")
        I(f"s_sub_u32 s{sEX}, s{sEX}, {MB - 3*t.SL}")
    else:
        I(f"s_add_u32 s{sK2}, s{sT1}, {KVP_OFF + 16384 - MB}")
        I(f"s_lshl_b32 s{sT2}, s{sT2}, 13")
        I(f"s_add_u32 s{sK1}, s{sT1}, s{sT2}")
        I(f"s_add_u32 s{sK1}, s{sK1}, {KVP_OFF - MB}")
        I(f"s_lshl2_add_u32 s{sT0}, s{sA}, s{sT0}")
        I(f"s_add_u32 s{sT0}, s{sT0}, {2*g}")
        I(f"s_lshl_b32 s{sEX}, s{sT0}, 10")
    I(f"v_lshlrev_b32 v{a}, 2, v{vLN}")
    I(f"s_lshl_b32 s{sT0}, s{sW}, 8")
    I(f"s_lshl_b32 s{sT1}, s{sA}, 11")
    I(f"s_add_u32 s{sT1}, s{sT1}, s{sT0}")
    I(f"s_add_u32 s{sT0}, s{sT0}, {WPH}")
    I(f"v_add_u32 v{vWPA}, s{sT0}, v{a}")
    I(f"s_lshl2_add_u32 s{sT0}, s2, s{sI}")
    I(f"s_mul_i32 s{sT0}, s{sT0}, {11*128}")
    I(f"v_lshlrev_b32 v{b}, 7, v{vLN}")
    if typ == 0:
        I(f"v_mov_b32 v{h}, -1")
        I(f"v_mov_b32 v{h+1}, -1")
        I(f"v_lshrrev_b32 v{c}, 1, v{vM16}")
        I(f"v_lshrrev_b32 v{d}, 5, v{vM16}")
    pstamp(P, 4)
    I("s_waitcnt lgkmcnt(0)")
    def gtouch():
        if "notouch" not in k1.KN and CFG["gt"]:
            I("s_mov_b64 exec, 0x7ff")
            I(f"buffer_load_dword v{vTCH}, v{b}, {s(SWU if g else SWG,4)}, s{sT0} offen")
            I("s_mov_b64 exec, -1")
    for x in dma_x(t, 1):
        for y in x: emit(P, y)
    I(f"buffer_load_dword v{vWPV}, v{a}, {s(SWP,4)}, s{sT1} offen")
    if CFG["gt"] == 1: gtouch()
    for x in stream_list(t, g)[1:CFG["pro"]]:
        for z in x:
            for y in z: emit(P, y)
    if CFG["gt"] == 2: gtouch()
    if typ == 0:
        I(f"buffer_store_dwordx2 {v(h,2)}, v{c}, {s(SWS,4)}, s{sK1} offen sc1")
        I("s_mov_b32 exec_lo, 0x10001")
        I("s_mov_b32 exec_hi, 0x10001")
        I(f"buffer_store_dwordx2 {v(h,2)}, v{d}, {s(SWS,4)}, s{sK2} offen sc1")
        I("s_mov_b64 exec, -1")
    pstamp(P, 5)

def softmax(W, O, m=vMX, sm=vSM):
    o = [f"v_max_f32 v{m}, v{W}, v{W+1}", f"v_max_f32 v{sm}, v{W+2}, v{W+3}"]
    for k in range(4, 16, 4):
        o.append(f"v_max3_f32 v{m}, v{m}, v{W+k}, v{W+k+1}")
        o.append(f"v_max3_f32 v{sm}, v{sm}, v{W+k+2}, v{W+k+3}")
    o.append(f"v_max_f32 v{m}, v{m}, v{sm}")
    o.append(f"v_mul_f32 v{m}, v{m}, v{vC1}")
    for k in range(16): o.append(f"v_fma_f32 v{W+k}, v{W+k}, -v{vC1}, v{m}")
    for k in range(16):
        o.append(f"v_exp_f32 v{W+k}, v{W+k}")
        if k == 2: o.append(f"v_add_f32 v{sm}, v{W}, v{W+1}")
        if k > 2: o.append(f"v_add_f32 v{sm}, v{sm}, v{W+k-1}")
    o.append(f"v_add_f32 v{sm}, v{sm}, v{W+15}")
    o.append(f"v_rcp_f32 v{sm}, v{sm}")
    for k in range(8):
        o.append(f"v_mul_f32 v{W+2*k}, v{W+2*k}, v{sm}")
        o.append(f"v_mul_f32 v{W+2*k+1}, v{W+2*k+1}, v{sm}")
        o.append(f"v_cvt_pk_bf16_f32 v{O+k}, v{W+2*k}, v{W+2*k+1}")
    return o

def glu(G, U, n):
    o = []
    for k in range(n): o.append(f"v_mul_f32 v{G+k}, v{G+k}, v{vC1}")
    for k in range(n): o.append(f"v_exp_f32 v{G+k}, v{G+k}")
    for k in range(n): o.append(f"v_fma_f32 v{G+k}, v{G+k}, v{vSTD}, v{vSTD}")
    for k in range(n): o.append(f"v_rcp_f32 v{G+k}, v{G+k}")
    for k in range(n): o.append(f"v_mul_f32 v{G+k}, v{G+k}, v{U+k}")
    for k in range(n // 2): o.append(f"v_cvt_pk_bf16_f32 v{G+k}, v{G+2*k}, v{G+2*k+1}")
    return o

def publish(c, t0, t1, addr, blk, tag):
    return [f"v_and_b32 v{t0}, s{sHI}, v{c}", f"v_sub_f32 v{t1}, v{c}, v{t0}", f"v_cvt_pk_bf16_f32 v{t0}, v{t0}, v{t1}",
            f"ds_write_b32 v{addr}, v{t0} offset:{CSP - MB + blk*1024} #{tag}"]

def stream(P, typ, g, name):
    global vST, vSQ, vU, vSTW, vSTR, vCW
    I = P.I; t = T(typ); D = 3
    o_ = AV if typ else 83
    vST, vSQ, vU, vSTW, vSTR = o_, o_ + 1, [o_ + 2, o_ + 3, o_ + 4, o_ + 5], o_ + 6, o_ + 7
    vCW = AV + 8 if typ else 94
    PB = CFG["qpub"] if typ else 8
    setup(P, t, g)
    S = Sched(D)
    F = "v[32:35]"
    def mm(acc, x, first): return lambda f: f"v_mfma_f32_32x32x16_bf16 {v(acc,16)}, {f}, {v(x,4)}, {'0' if first else v(acc,16)}"
    def cm(c, first): return lambda f: f"v_mfma_f32_16x16x32_bf16 {v(c,4)}, {v(CP,4)}, {f}, {'0' if first else v(c,4)}"
    def tr(ad, im, sec): return [("tr", ad, im), ("tr2", ad, im + sec)]
    main = []; first = {}
    P1 = {}
    for st in range(8):
        hi, so = t.p1s(st)
        for p in range(4):
            for m, acc in enumerate((AK, AV)[:2 - typ]):
                it = Item(mm(acc, XR(st, p), st == 0 and p == 0), tr(vAA[hi][p], so + 8192*m, 512), cm(CD[m], st == 0) if p == 0 else None, name=f"{st}p{p}m{m}")
                if p == 0 and m == 0:
                    it.bar = st; first[st] = it
                    if st < 2: it.pre = [f"ds_read_b128 {v(XR(st,q),4)}, v{vAX[hi][q]} offset:{so}" for q in range(4)]
                main.append(it); P1[st, p, m] = it
    nb = 3
    blk = [3*g, 3*g+1, 3*g+2] if typ else [3*g, 3*g+1, 2]
    def gi(st, p, b):
        o = t.g(st)
        if o >= 3 * t.SL: o -= 3 * t.SL
        fst = st == 8 and (p == 0 or (typ == 0 and b == 2 and p == 2*g))
        sm = cm(CD[b], st == 8) if p == 0 else None
        return Item(mm(GA[b], XR(st-8, p), fst), tr(vAG[p], o + blk[b]*32, 4*t.RB), sm, name=f"{st}p{p}b{b}")
    def has(p, b): return typ == 1 or b < 2 or (p >> 1) == g
    G = {}
    for st in range(8, 16):
        for p in range(4):
            for b in range(nb):
                if has(p, b): G[st, p, b] = gi(st, p, b)
    for st in range(8, 13):
        l = [G[st, p, b] for p in range(4) for b in range(nb) if has(p, b)]
        l[0].bar = st; first[st] = l[0]; main += l
    first[PB].pre = [f"ds_read_b128 {v(vMU,4)}, v{vSTR}"]
    def corr(acc, cb, nbar, nm):
        return Item(mm(acc, vMU, False), [("b128", vM16, CSP - MB + cb*1024)], needbar=nbar, name=nm)
    C = [corr(GA[b], blk[b], "cs", f"corr{b}") for b in range(nb)]
    rest = lambda b, sts: [G[st, p, b] for st in sts for p in (1, 2, 3)]
    if typ == 0:
        sh = lambda st: [G[st, 2*g, 2], G[st, 2*g+1, 2]]
        t13 = [G[13,0,0], G[13,0,1]] + sh(13) + rest(0, [13])
        t15 = [G[14,0,0], G[14,0,1]] + sh(14) + sh(15) + [G[15,0,0], G[15,0,1]]
        r0 = rest(0, [14, 15]); r1 = rest(1, [13, 14, 15])
        tail = r0[:5] + [C[2]] + r0[5:] + [C[0]] + r1 + [C[1]]
        C[2].bar = "cs"
    else:
        t13 = [G[13,0,b] for b in range(3)] + rest(0, [13])
        t15 = [G[st,0,b] for st in (14, 15) for b in range(3)]
        r0 = rest(0, [14, 15])
        tail = r0[:5] + [C[0]] + r0[5:] + rest(1, [13, 14, 15]) + [C[1]] + rest(2, [13, 14, 15]) + [C[2]]
        C[0].bar = "cs"
    t13[0].bar = 13; t15[0].bar = 15; first[13] = t13[0]; first[15] = t15[0]
    main += t13 + t15 + tail
    barwait = {0: ["x0", "w0"], 1: ["x1", "w1", "x2"], 7: ["w7"], 15: ["w14", "w15"], "cs": []}
    for st in range(2, 7): barwait[st] = [f"w{st}", f"x{st+1}"]
    for st in range(8, 14): barwait[st] = [f"w{st}"]
    barlg = {PB: ["pub"], "cs": ["cs"]}
    sl = stream_list(t, g); pro = CFG["pro"]
    dm = {b: [] for b in range(13)}
    if typ == 0:
        for k in range(pro, 14): dm[max(0, (k - 3) // 2)] += sl[k]
        dm[6] = dma_g(t,g,8) + dma_g(t,g,9)
        for b in range(7, 13): dm[b] = dma_g(t, g, b + 3)
    else:
        ql = CFG.get("qlead", 2)
        for k in range(pro, 14): dm[max(0, (k + 1 - 2*ql) // 2)] += sl[k]
        if ql == 3:
            for b in range(5, 13): dm[b] += dma_g(t, g, b + 3)
        else:
            g8 = dma_g(t, g, 8); g9 = dma_g(t, g, 9); g10 = dma_g(t, g, 10)
            dm[5] += g8[:2]; dm[6] = g8[2:] + g9[:2]; dm[7] = g9[2:] + g10[:2]; dm[8] = g10[2:] + dma_g(t, g, 11)
            for b in range(9, 13): dm[b] += dma_g(t, g, b + 3)
    if CFG["b0end"]: dm[0] = [sum(dm[0], [])] if dm[0] else []
    nxt = lambda b: b + 1
    heavy = []
    def hok(n):
        if not CFG["hstag"]: return True
        if n % 2 != g or n + 1 in S.bs.values(): return False
        return not any(dpos(b, j, len(dm[b]), gg)() == n for b in dm for j in range(len(dm[b])) for gg in (0, 1))
    def dpos(b, j, k, g=g):
        def f():
            L = S.bs[b + 1] - S.bs[b]; o = S.bs[b]
            if b == 0 and CFG['b0end']: return o + L - 1
            if b == 0: return o + j if typ else o + min(L - 2, 2 * j + g) if k <= 4 else o + j
            if 2 * k <= L: return o + min(L - 2, int((j + 0.5 * g) * L / k + 0.01))
            return o + min(L - 1, int((j + 0.5 * g) * L / k + 0.01))
        return f
    for b in sorted(dm):
        for j, x in enumerate(dm[b]): heavy.append(S.add(x, after=b, before=nxt(b), kind="misc", lo=dpos(b, j, len(dm[b])) if CFG["pace" if b < 6 else "paceg"] else None))
        if b == 3 and typ == 0 and g == 0:
            S.add([f"s_cmp_eq_u32 s{sI}, 0", "s_cselect_b32 exec_lo, 1, 0", "s_mov_b32 exec_hi, 0", f"s_lshl_b32 s{sT0}, s{sA}, 5",
                   f"buffer_atomic_add v95, off, {s(SDB,4)}, s{sT0} sc1", "s_mov_b64 exec, -1"], after=3)
    if typ == 0 and g == 0: P.I(f"v_mov_b32 v95, 1")
    for p in range(4):
        bs = [b for b in range(nb) if has(p, b)]
        S.add(f"v_add_u32 v{vAG[p]}, {3*t.SL}, v{vAG[p]}", lo=(G[10,p,bs[-1]], -D), hi=(G[11,p,0], -D-1))
        nx = G[13,p,0] if not (typ == 0 and p and (p >> 1) == g) else G[13,p,2]
        S.add(f"v_subrev_u32 v{vAG[p]}, {3*t.SL}, v{vAG[p]}", lo=(G[12,p,bs[-1]], -D), hi=(nx, -D-1))
    ns = CFG["ns"][typ]; u = 0; fs = True
    S.node(P1[0,0,0], cm(CD[0], True)(F))
    if typ == 0: S.node(P1[0,0,1], cm(CD[1], True)(F))
    sp = [2*g, 2*g+1]
    for st in range(8):
        if 1 <= st < 7:
            hi, so = t.p1s(st + 1)
            for q in sp + [x for x in range(4) if x not in sp]:
                S.add(f"ds_read_b128 {v(XR(st+1,q),4)}, v{vAX[hi][q]} offset:{so}", after=st, lo=(first[st], -2 if st > 1 else 0), hi=(P1[st+1,q,0], -2))
        if st == 2:
            S.add(f"ds_write_b32 v{vWPA}, v{vWPV}", after=2)
            S.add(f"v_xor_b32 v{vWPV}, 0x80008000, v{vWPV}", after=2)
            S.add(f"ds_write_b32 v{vWPA}, v{vWPV} offset:2048", after=2, before=7)
    for st in range(8):
        for n, q in enumerate(sp):
            if n < ns[st]:
                S.add(cm(CD[2], fs)(v(XR(st, q), 4)), lo=(first[st], 1) if st < 2 else None); fs = False
    if typ == 1:
        if not fs: S.add(f"v_mov_b32 v{AV+11}, v{CD[2]}", hi=(first[8], -1))
        S.node(P1[7,0,0], cm(CD[0], False)(F))
        S.adds(publish(CD[0], AV+9, AV+10, vCW, g, "pub"), hi=(first[8], -1))
    vS2, vQ2 = (AV + 12, AV + 13) if typ else (116, 117)
    if not CFG["acc2"]: vS2, vQ2 = vST, vSQ
    f2 = {vS2: CFG["acc2"], vQ2: CFG["acc2"]}
    for st in range(8):
        lo = (first[st], 0) if st < 2 else None
        for n, q in enumerate(sp):
            ms = n < ns[st]
            for j in range(4):
                x = XR(st, q) + j; a, b = vU[u], vU[u+1]; u ^= 2
                o = [f"v_lshlrev_b32 v{a}, 16, v{x}", f"v_and_b32 v{b}, s{sHI}, v{x}"]
                sq = [f"v_fmac_f32 v{vSQ}, v{a}, v{a}", f"v_mul_f32 v{vQ2}, v{b}, v{b}" if f2[vQ2] else f"v_fmac_f32 v{vQ2}, v{b}, v{b}"]; f2[vQ2] = 0
                if not ms:
                    sm_ = [f"v_add_f32 v{vST}, v{vST}, v{a}", f"v_mov_b32 v{vS2}, v{b}" if f2[vS2] else f"v_add_f32 v{vS2}, v{vS2}, v{b}"]; f2[vS2] = 0
                    o += sm_
                if "nostat" not in k1.KN: S.adds(o + sq, lo=lo)
    if CFG["acc2"]:
        S.add(f"v_add_f32 v{vSQ}, v{vSQ}, v{vQ2}")
        if not f2[vS2]: S.add(f"v_add_f32 v{vST}, v{vST}, v{vS2}")
    if typ == 0:
        S.node(P1[7,0,0], cm(CD[0], False)(F))
        S.node(P1[7,0,1], cm(CD[1], False)(F))
        if not fs: S.add(f"v_add_f32 v{vST}, v{vST}, v{CD[2]}")
        S.adds(publish(CD[0], 112, 113, vCW, g, "pub"), before=8)
        S.add(f"v_permlane32_swap_b32 v{vST}, v{vSQ}")
        S.adds(publish(CD[1], 114, 115, vCW, 2 + g, "pub"), before=8)
    else:
        if not fs: S.add(f"v_add_f32 v{vST}, v{vST}, v{AV+11}")
        S.add(f"v_permlane32_swap_b32 v{vST}, v{vSQ}")
    S.adds([f"v_add_f32 v{vST}, v{vST}, v{vSQ}", f"ds_write_b32 v{vSTW}, v{vST} offset:{8*g} #pub"], before=PB)
    if "notouch" not in k1.KN:
        a = XR(1, 0)
        S.adds([f"v_subrev_u32 v{a}, {MB}, v{vM16}", f"v_lshlrev_b32 v{a}, 3, v{a}"], lo=(first[10], 0))
        S.add([f"s_lshl3_add_u32 s{sT0}, s2, s{sW}", f"s_lshl_b32 s{sT1}, s{sT0}, 8", "s_mov_b64 exec, 3",
               f"buffer_load_dword v{a+1}, v{a}, {s(SWO,4)}, s{sT1} offen", "s_mov_b64 exec, -1"], after=CFG["tch"], lo=(first[10], 0))
        S.add([f"s_mul_i32 s{sT1}, s{sT0}, 768", "s_mov_b64 exec, 63",
               f"buffer_load_dword v{a+2}, v{a}, {s(SWD,4)}, s{sT1} offen", "s_mov_b64 exec, -1"], after=CFG["tch"], lo=(first[10], 0))
    m, q = vMU, vC1
    l8 = (first[PB], -1)
    S.adds([f"v_add_f32 v{m}, v{vMU}, v{vMU+2}", f"v_add_f32 v{q}, v{vMU+1}, v{vMU+3}",
            f"v_mul_f32 v{vSTD}, {fbits(-1.0/512)}, v{m}", f"v_mul_f32 v{q}, {fbits(1.0/512)}, v{q}"], lo=l8)
    S.adds([f"v_cvt_pk_bf16_f32 v{vMU+k}, v{vSTD}, v{vSTD}" for k in range(4)])
    S.adds([f"v_fma_f32 v{q}, -v{vSTD}, v{vSTD}, v{q}", f"v_max_f32 v{q}, 0, v{q}", f"v_add_f32 v{q}, {fbits(1e-5)}, v{q}",
            f"v_rsq_f32 v{vRS}, v{q}", f"v_mul_f32 v{vSTD}, v{q}, v{vRS}", f"v_mul_f32 v{vC1}, {fbits(-LOG2E)}, v{vRS}"])
    ex = []
    S.node(P1[7,3,0], mm(AK, XR(7,3), False)(F))
    ex.append(S.node(corr(AK, g, PB, "corrK"), mm(AK, vMU, False)(F)))
    if typ == 0:
        S.node(P1[7,3,1], mm(AV, XR(7,3), False)(F))
        ex.append(S.node(corr(AV, 2 + g, 8, "corrV"), mm(AV, vMU, False)(F)))
    S.adds([f"v_cvt_pk_bf16_f32 v{AK+k}, v{AK+2*k}, v{AK+2*k+1}" for k in range(8)])
    if typ == 0:
        for k in range(8):
            S.adds([f"v_mul_f32 v{AV+2*k}, v{AV+2*k}, v{vRS}", f"v_mul_f32 v{AV+2*k+1}, v{AV+2*k+1}, v{vRS}",
                    f"v_cvt_pk_bf16_f32 v{AK+8+k}, v{AV+2*k}, v{AV+2*k+1}"])
    pb = "ph"
    if typ == 0:
        W = [AV, XR(0, 0)]
        for rho in range(2):
            pk = mm(W[rho], AK + 4*rho, True)
            if rho: S.node(G[8,3,1], mm(GA[1], XR(0,3), False)(F)); S.node(G[8,2*g+1,2], mm(GA[2], XR(0,2*g+1), False)(F))
            ex.append(S.node(Item(pk, tr(vWF, 512*rho, 128), needbar=8, name=f"phi{rho}"), pk(F)))
            S.add(f"ds_write_b128 v{vPH}, {v(AK+8+4*rho,4)} offset:{rho*12288+32} #ph", after=9, before=pb, ok=hok)
        for rho in range(2):
            S.adds(softmax(W[rho], W[rho], *((vMX, vSM), (AK, AK + 1))[rho]))
            S.add(f"ds_write_b128 v{vPH}, {v(W[rho],4)} offset:{rho*12288} #ph", after=9, before=pb, ok=hok if rho == 0 or CFG["hstag"] > 1 else None)
            S.add(f"ds_write_b128 v{vPH}, {v(W[rho]+4,4)} offset:{rho*12288+16} #ph", after=9, before=pb, ok=hok if rho == 0 else None)
    else:
        for rho in range(2):
            pk = mm(AV, AK + 4*rho, True)
            ex.append(S.node(Item(pk, tr(vWF, 512*rho, 128), needbar=8, name=f"phi{rho}"), pk(F)))
            S.adds(softmax(AV, AK + 8 if rho == 0 else AV))
    if typ == 0:
        pi = main[main.index(first[12]) + CFG["phbar"]]
        if pi.bar is None: pi.bar = pb; barwait[pb] = []
        else:
            for o in S.ops:
                if o.before == pb: o.before = pi.bar
            pb = pi.bar
        barlg[pb] = barlg.get(pb, []) + ["ph"]
        DK, DZ, ON = AK, AK + 4, AK + 8
        S.adds([f"v_mov_b32 v{ON+k}, 0x3f803f80" for k in range(4)])
        S.adds([f"v_lshrrev_b32 v{AK+12}, 1, v{vM16}", f"v_lshrrev_b32 v{AK+13}, 5, v{vM16}"])
        for u4 in range(4):
            A0 = W[u4 >> 1] + 8*(u4 & 1); B0 = A0 + 4; o = u4 * 3072
            S.add([f"ds_read_b64_tr_b16 {v(A0,2)}, v{vKA} offset:{o}", f"ds_read_b64_tr_b16 {v(A0+2,2)}, v{vKA} offset:{o+768}"], after=pb)
            S.add([f"ds_read_b64_tr_b16 {v(B0,2)}, v{vKB} offset:{o}", f"ds_read_b64_tr_b16 {v(B0+2,2)}, v{vKB} offset:{o+768}"], after=pb)
            S.add(f"v_mfma_f32_16x16x32_bf16 {v(DZ,4)}, {v(A0,4)}, {v(ON,4)}, {'0' if u4 == 0 else v(DZ,4)}")
            S.add(f"v_mfma_f32_16x16x32_bf16 {v(DK,4)}, {v(A0,4)}, {v(B0,4)}, {'0' if u4 == 0 else v(DK,4)}")
        S.adds([f"v_cvt_pk_bf16_f32 v{DZ}, v{DZ}, v{DZ+1}", f"v_cvt_pk_bf16_f32 v{DZ+1}, v{DZ+2}, v{DZ+3}"])
        S.add(["s_mov_b32 exec_lo, 0x10001", "s_mov_b32 exec_hi, 0x10001", f"buffer_store_dwordx2 {v(DZ,2)}, v{AK+13}, {s(SWS,4)}, s{sK2} offen sc1", "s_mov_b64 exec, -1"])
        S.adds([f"v_cvt_pk_bf16_f32 v{DK}, v{DK}, v{DK+1}", f"v_cvt_pk_bf16_f32 v{DK+1}, v{DK+2}, v{DK+3}"])
        kvst = S.add(f"buffer_store_dwordx2 {v(DK,2)}, v{AK+12}, {s(SWS,4)}, s{sK1} offen sc1", kind="misc")
    SEL, DD, ZZ, LD = 132, 136, 140, 144
    vTW, vTZ, vTR, vCT = 128, 129, 130, 131
    if typ == 1:
        a, b, c, ln = 136, 137, 138, 139
        S.add([f"s_lshl_b32 s{sT2}, s{sA}, 5", f"buffer_load_dword v{vCT}, off, {s(SDB,4)}, s{sT2} sc1"], after=13)
        o = [f"v_bfe_u32 v{ln}, v{vM16}, 4, 6", f"v_and_b32 v{a}, 15, v{ln}", f"v_lshrrev_b32 v{b}, 1, v{ln}", f"v_and_b32 v{b}, 8, v{b}", f"v_xor_b32 v{b}, v{a}, v{b}",
             f"v_and_b32 v{c}, 1, v{b}", f"v_lshlrev_b32 v{c}, 4, v{c}", f"v_mov_b32 v{a}, 0x3f80", f"v_lshlrev_b32 v{c}, v{c}, v{a}", f"v_lshrrev_b32 v{b}, 1, v{b}"]
        for r in range(4): o += [f"v_cmp_eq_u32 vcc, {r}, v{b}", f"v_cndmask_b32 v{SEL+r}, 0, v{c}, vcc"]
        S.adds(o, lo=(first[9], 0))
        S.add([f"s_lshr_b32 s{sT0}, s{sW}, 1", f"s_lshl_b32 s{sT0}, s{sT0}, 11", f"s_and_b32 s{sT1}, s{sW}, 1", f"s_lshl_b32 s{sT1}, s{sT1}, 5",
               f"s_add_u32 s{sT1}, s{sT1}, s{sT0}", f"s_add_u32 s{sT1}, s{sT1}, {OT}"], lo=(first[9], 0))
        S.adds([f"v_add_u32 v{vTZ}, s{sT0}, v{vM16}", f"v_and_b32 v{a}, 7, v{ln}", f"v_lshlrev_b32 v{a}, 7, v{a}", f"v_and_b32 v{b}, 16, v{ln}", f"v_lshl_add_u32 v{a}, v{b}, 2, v{a}",
                f"v_and_b32 v{b}, 8, v{ln}", f"v_add_u32 v{a}, v{a}, v{b}", f"v_lshrrev_b32 v{b}, 1, v{ln}", f"v_and_b32 v{b}, 16, v{b}", f"v_add3_u32 v{vTW}, v{a}, v{b}, s{sT1}",
                f"v_and_b32 v{a}, 19, v{ln}", f"v_bfe_u32 v{b}, v{ln}, 2, 1", f"v_lshl_or_b32 v{a}, v{b}, 3, v{a}", f"v_bfe_u32 v{b}, v{ln}, 3, 1", f"v_lshl_or_b32 v{a}, v{b}, 2, v{a}",
                f"v_lshlrev_b32 v{a}, 6, v{a}", f"v_and_b32 v{b}, 32, v{ln}", f"v_add_u32 v{a}, v{a}, v{b}", f"v_add_u32 v{vTR}, {OT + g*4096}, v{a}"], lo=(first[9], 0))
        chk = S.add([f"v_readfirstlane_b32 s{sT3}, v{vCT}", f"s_cmp_lt_u32 s{sT3}, 16", f"s_cbranch_scc1 L_{name}_cp{g}", f"LABEL L_{name}_cb{g}"], lo=lambda: C[2].idx - CFG["qload"] - 1)
        chk.R |= {("s", sT2)}; chk.W |= {("s", sT1), ("x", 0)}
    vCW2, vEX, t0, t1 = 184, 185, 186, 188
    S.add(f"v_add_u32 v{vCW2}, s{sI4}, v{vM16}", lo=(first[13], 0))
    if typ == 0:
        S.add(f"v_add_u32 v{vEX}, s{sEX}, v{vM16}", lo=(first[13], 0))
        own = 4*g; oth = 4 - own
        if g == 0: S.node(G[15,0,2], cm(CD[2], False)(F))
        S.node(G[15,2*g+1,2], mm(GA[2], XR(7,0), False)(F))
        S.add(f"ds_write_b128 v{vEX}, {v(GA[2]+oth,4)} offset:{g*8192} #cs", before="cs")
        S.add(f"ds_write_b128 v{vEX}, {v(GA[2]+8+oth,4)} offset:{g*8192+1024} #cs", before="cs")
        S.node(G[15,0,0], cm(CD[0], False)(F)); S.node(G[15,0,1], cm(CD[1], False)(F))
        for b in range(3 - g): S.adds(publish(CD[b], t0 + 2*b, t0 + 2*b + 1, vCW2, blk[b], "cs"), before="cs")
        X = 192
        S.add(f"ds_read_b128 {v(X,4)}, v{vEX} offset:{(1-g)*8192}", after="cs")
        S.add(f"ds_read_b128 {v(X+4,4)}, v{vEX} offset:{(1-g)*8192+1024}", after="cs")
        S.node(C[2], mm(GA[2], vMU, False)(F))
        S.adds([f"v_add_f32 v{X+4*hh+k}, v{X+4*hh+k}, v{GA[2]+8*hh+own+k}" for hh in range(2) for k in range(4)])
        S.adds(glu(X, X + 4, 4))
        S.add(f"buffer_store_dwordx2 {v(X,2)}, v{vM16}, {s(SWS,4)}, s{sHF} offen offset:{(1-g)*2048+8*g}" + HM(), kind="misc")
        fin = [(0, C[0], g*1024), (1, C[1], (1+g)*1024)]
    else:
        for b in range(3): S.node(G[15,0,b], cm(CD[b], False)(F))
        for b in range(3): S.adds(publish(CD[b], t0 + 2*b, t0 + 2*b + 1, vCW2, blk[b], "cs"), before="cs")
        fin = [(0, r0[-1], 0), (1, C[1], 1024), (2, C[2], 2048)]
        def loads():
            o = [[f"buffer_load_dwordx4 {v(ZZ,4)}, v{vM16}, {s(SWS,4)}, s{sK2} offen sc1"]]
            for p in range(8):
                o.append(([f"s_add_u32 s{sT2}, s{sK1}, 4096"] if p == 4 else []) + [f"buffer_load_dwordx4 {v(LD+4*p,4)}, v{vM16}, {s(SWS,4)}, s{sK1 if p < 4 else sT2} offen offset:{(p%4)*1024} sc1"])
            return o
        for x in loads(): S.add(x, kind="misc", lo=lambda: C[2].idx - CFG["qload"]).R |= {("x", 0)}
    for b, it, off in fin:
        S.node(it, mm(GA[b], vMU, False)(F))
        S.adds(glu(GA[b], GA[b] + 8, 8))
        S.add(f"buffer_store_dwordx4 {v(GA[b],4)}, v{vM16}, {s(SWS,4)}, s{sHF} offen offset:{off}" + HM(), kind="misc")
    def budget(n, it):
        if n < first[8].idx:
            if typ == 1: return CFG["qb"]
            if n < first[2].idx: return CFG["b0"]
            return CFG["pb"]
        if n < first[15].idx and typ == 0: return CFG["gb"]
        return 6
    S.budget = budget
    S.dbl = lambda n: n >= first[12].idx
    if typ == 1:
        for b in range(1, 9): S.prebar_budget[b] = CFG["qpb"]
    S.prebar_budget["cs"] = 6
    if typ == 0: S.prebar_budget[8] = 6
    S.dump = "dump" in k1.KN
    S.solve(main, ex)
    order = S.order; N = len(order)
    info = [f"typ{typ} g{g} N={N} bars={S.bs} extras={[(e.item.name, e.item.idx) for e in ex]} slots={len(S.slots)-D}"]
    if typ == 0: info.append(f"kvstore@{kvst.slot}")
    print(" ".join(info))
    nst = [1]
    def em(x):
        if x.startswith("LABEL"): P.label(x.split()[1])
        else: emit(P, x)
    for n, it, sm, va, mi in S.slots:
        m_ = n + D
        if m_ < N:
            nx = order[m_]
            if nx.bar is not None:
                P.comment(f"--- barrier {nx.bar}")
                if not ("nowait" in k1.KN and nx.bar != 0) and not ("nowaitg" in k1.KN and (nx.bar == "cs" or nx.bar >= 8)):
                    for tg in barwait[nx.bar]: P.wait_vm(tg)
                for tg in barlg.get(nx.bar, []): P.wait_lg(tg)
                I("s_barrier")
                if nx.bar not in (3, 'ph'): stamp(P, nst[0]); nst[0] += 1
            f = FR[m_ % 4]
            rd = []
            for k, ad, im in nx.reads:
                rd.append({"tr": f"ds_read_b64_tr_b16 {v(f,2)}, v{ad} offset:{im}", "tr2": f"ds_read_b64_tr_b16 {v(f+2,2)}, v{ad} offset:{im}",
                           "b128": f"ds_read_b128 {v(f,4)}, v{ad} offset:{im}"}[k])
            for x in nx.pre[:1] + rd + nx.pre[1:]: I(x)
        body = []
        if it is not None:
            f = v(FR[n % 4], 4)
            if it.small: body.append(it.small(f))
            if sm: body += sm.texts
            body.append(it.mf(f))
        elif sm: body += sm.texts
        if "nofill" not in k1.KN or n >= N:
            for o in va: body += o.texts
        if it is not None:
            touch = set()
            for x in body:
                i_ = Ins(x); touch |= i_.vr | i_.vw
            P.wait_regs(touch)
        for x in body: em(x)
        for o in mi:
            if "nodma" in k1.KN and any(" lds" in x for x in o.texts): continue
            for x in o.texts: em(x)
        if n == N - 1: stamp(P, nst[0]); nst[0] += 1
    if typ == 1:
        stamp(P, nst[0]); nst[0] += 1
        I(f"s_mov_b32 s{sT0}, 0")
        snap = P.snapshot()
        P.label(f"L_{name}_pre{g}")
        for p in range(8): I(f"v_mfma_f32_16x16x32_bf16 {v(DD,4)}, {v(SEL,4)}, {v(LD+4*p,4)}, {'0' if p == 0 else v(DD,4)}")
        I(f"ds_write_b128 v{vTZ}, {v(ZZ,4)} offset:{OT - MB + 1024}")
        I(f"v_mfma_f32_16x16x32_bf16 {v(LD,4)}, {v(SEL,4)}, {v(ZZ,4)}, {v(DD,4)}")
        I(f"v_cvt_pk_bf16_f32 v{LD+4}, v{DD}, v{DD+1}")
        I(f"v_cvt_pk_bf16_f32 v{LD+5}, v{DD+2}, v{DD+3}")
        I(f"ds_write_b64 v{vTW}, {v(LD+4,2)}")
        I(f"v_cmp_u_f32 vcc, v{LD}, v{LD}")
        I("s_nop 1")
        I(f"s_cbranch_vccnz L_{name}_rt{g}")
        P.label(f"L_{name}_go{g}")
        P.wait_lg()
        I("s_barrier")
        AO = 144; DO = [192, 208]
        for rho in range(2):
            for f in range(2): I(f"ds_read_b128 {v(AO+8*rho+4*f,4)}, v{vTR} offset:{rho*2048+16*f}")
        for rho in range(2):
            ph = AK + 8 if rho == 0 else AV
            for f in range(2):
                I(f"v_mfma_f32_32x32x16_bf16 {v(DO[rho],16)}, {v(AO+8*rho+4*f,4)}, {v(ph+4*f,4)}, {'0' if f == 0 else v(DO[rho],16)}")
        for rho in range(2):
            Dd = DO[rho]
            for k in range(4): I(f"v_add_f32 v{Dd+8+k}, v{Dd+8+k}, v{Dd+12+k}")
            I(f"v_add_f32 v{Dd+8}, v{Dd+8}, v{Dd+9}")
            I(f"v_add_f32 v{Dd+10}, v{Dd+10}, v{Dd+11}")
            I(f"v_add_f32 v{Dd+8}, v{Dd+8}, v{Dd+10}")
            I(f"v_mov_b32 v{Dd+9}, v{Dd+8}")
            I(f"v_permlane32_swap_b32 v{Dd+8}, v{Dd+9}")
            I(f"v_add_f32 v{Dd+8}, v{Dd+8}, v{Dd+9}")
            I(f"v_add_f32 v{Dd+8}, {fbits(1e-6)}, v{Dd+8}")
            I(f"v_rcp_f32 v{Dd+8}, v{Dd+8}")
            for k in range(8): I(f"v_mul_f32 v{Dd+k}, v{Dd+k}, v{Dd+8}")
            for k in range(4): I(f"v_cvt_pk_bf16_f32 v{Dd+k}, v{Dd+2*k}, v{Dd+2*k+1}")
            I(f"buffer_store_dwordx4 {v(Dd,4)}, v{vM16}, {s(SWS,4)}, s{sEX} offen offset:{rho*1024}" + HM())
    while nst[0] < 18: stamp(P, nst[0]); nst[0] += 1
    dump_stamps(P, 19, SWS, sW, 8, sT0)
    I("s_endpgm")
    if typ == 1:
        P.restore(([], [], [], False))
        P.label(f"L_{name}_cp{g}")
        I(f"s_mov_b32 s{sT1}, 0")
        P.label(f"L_{name}_cl{g}")
        I("s_sleep 2")
        I(f"buffer_load_dword v{vCT}, off, {s(SDB,4)}, s{sT2} sc1")
        I(f"s_add_u32 s{sT1}, s{sT1}, 1")
        I(f"v_readfirstlane_b32 s{sT3}, v{vCT}")
        I(f"s_cmp_ge_u32 s{sT3}, 16")
        I(f"s_cbranch_scc1 L_{name}_cb{g}")
        I(f"s_cmp_lt_u32 s{sT1}, 30000")
        I(f"s_cbranch_scc1 L_{name}_cl{g}")
        I(f"s_branch L_{name}_cb{g}")
        P.restore(([], [], [], False))
        P.label(f"L_{name}_rt{g}")
        I(f"s_add_u32 s{sT0}, s{sT0}, 1")
        I(f"s_cmp_ge_u32 s{sT0}, 30000")
        I(f"s_cbranch_scc1 L_{name}_go{g}")
        I("s_waitcnt lgkmcnt(0)")
        for x in loads():
            for y in x: I(y)
        I("s_waitcnt vmcnt(0)")
        I(f"s_branch L_{name}_pre{g}")

def gen_k1(name):
    P = Prog()
    P.raw(f".globl {name}\n.p2align 8\n.type {name},@function\n{name}:")
    prologue(P, name)
    snap = P.snapshot()
    for k in range(4):
        P.restore(snap)
        if k >= 2: P.vm.pop()
        if k: P.raw(".p2align 6"); P.label(f"L_{name}_r{k}")
        stream(P, k >> 1, k & 1, name)
    P.label(f"L_{name}_end")
    P.I("s_endpgm")
    return P
```

```python
from asmlib import Ins, TRANS
THREE = ("v_fma_", "v_fmac_", "v_max3", "v_min3", "v_add3", "v_lshl_add", "v_lshl_or", "v_and_or", "v_or3", "v_mad", "v_cndmask", "v_perm_b32", "v_bfi", "v_add_lshl", "v_xad")
SCC = 1000
class Op:
    def __init__(self, texts, tag=None, after=None, before=None, lo=None, hi=None, item=None, lat=None, kind=None, ok=None):
        if isinstance(texts, str): texts = [texts]
        self.texts = texts; self.tag = tag; self.after = after; self.before = before
        self.ok = ok; self.lo = lo; self.hi = hi; self.item = item; self.lat = lat
        self.R = set(); self.W = set()
        cl = []
        for t in texts:
            if t.startswith("LABEL"): continue
            i = Ins(t.split("#")[0].strip())
            self.R |= {("v", r) for r in i.vr} | {("s", r) for r in i.sr}
            self.W |= {("v", r) for r in i.vw} | {("s", r) for r in i.sw if r not in (126, 127)}
            if i.op.startswith("v_cndmask") and "vcc" not in t: pass
            cl.append(i)
        i = cl[-1]
        if kind: self.kind = kind
        elif len(texts) == 1 and i.cls in ("valu", "trans"): self.kind = "valu"
        elif len(texts) == 1 and i.cls == "mfma": self.kind = "big" if i.passes == 8 else "small"
        else: self.kind = "misc"
        self.cost = 2 if i.cls == "trans" else 1
        self.trans = i.cls == "trans"
        self.three = i.op.startswith(THREE)
        self.nds = sum(1 for x in cl if x.cls == "ds"); self.nvm = sum(1 for x in cl if x.cls == "vmem")
        self.dsr = any(x.cls == "ds" and x.vw for x in cl)
        self.vml = any(x.cls == "vmem" and x.vw for x in cl)
        self.slot = None; self.deps = []
    def __repr__(self): return f"<{self.kind} {self.texts[-1]} @{self.slot}>"

class Item:
    def __init__(self, mf=None, reads=(), small=None, bar=None, pre=(), name="", needbar=None):
        self.mf = mf; self.reads = list(reads); self.small = small; self.bar = bar; self.pre = list(pre); self.name = name
        self.needbar = needbar; self.idx = None

def latency(p, raw):
    if p.lat is not None and raw: return p.lat
    if p.kind == "big": return 2 if raw else 0
    if p.kind == "small": return 1 if raw else 0
    if raw and p.dsr: return 2
    if raw and p.vml: return 8
    return 0

class Sched:
    def __init__(self, D=3):
        self.D = D; self.items = []; self.ops = []; self.budget = lambda n, it: 6
        self.prebar_budget = {}; self.dbl = lambda n: False
    def add(self, *a, **k):
        o = Op(*a, **k); self.ops.append(o); return o
    def adds(self, lst, **k): return [self.add(t, **k) for t in lst]
    def node(self, item, text, kind=None):
        o = Op(text, item=item, kind=kind); self.ops.append(o); return o
    def mkdeps(self):
        lastw = {}; readers = {}
        for o in self.ops:
            d = {}
            for r in o.R | o.W:
                if r in lastw: d[id(lastw[r])] = (lastw[r], r[0] == "v" or d.get(id(lastw[r]), (0, False))[1])
            for r in o.W:
                for q in readers.get(r, ()):
                    if id(q) not in d: d[id(q)] = (q, False)
            o.deps = [(p, latency(p, raw)) for p, raw in d.values() if p is not o]
            for r in o.R: readers.setdefault(r, []).append(o)
            for r in o.W: lastw[r] = o; readers[r] = []
    def res(self, x):
        if x is None: return None
        if callable(x): return x()
        if isinstance(x, tuple): return x[0].idx + x[1]
        return x
    def run(self, order):
        D = self.D
        for it in self.items_all: it.idx = None
        for n, it in enumerate(order): it.idx = n
        self.bs = {it.bar: n - D for n, it in enumerate(order) if it.bar is not None}
        pre = {b - 1: k for k, b in self.bs.items()}
        for o in self.ops: o.slot = o.item.idx if o.item is not None else None
        pend = [o for o in self.ops if o.item is None]
        for o in pend:
            l = -99
            if o.after is not None: l = max(l, self.bs[o.after])
            if o.lo is not None: l = max(l, self.res(o.lo))
            o._lo = l
        N = len(order); slots = []
        def ready(o, n):
            if o._lo > n or (o.ok is not None and not o.ok(n)): return False
            for p, l in o.deps:
                if p.slot is None or p.slot + l > n: return False
            return True
        n = -D; idle = 0
        while n < N or (pend and idle < 12):
            sm = None; va = []; mi = []
            it = order[n] if 0 <= n < N else None
            if n >= 0 and (it is None or it.small is None or self.dbl(n)):
                for o in pend:
                    if o.kind == "small" and ready(o, n) and all(p.slot < n for p, l in o.deps):
                        sm = o; o.slot = n; pend.remove(o); break
            if n < 0: B = 0
            elif it is None: B = 8
            elif n in pre: B = self.prebar_budget.get(pre[n], 0)
            else: B = self.budget(n, it)
            used = 0
            while used < B:
                c = None; fb = None
                for o in pend:
                    if o.kind != "valu" or not ready(o, n): continue
                    bad = (o.three and used < 2 and it is not None) or (va and va[-1].trans and not o.trans and (va[-1].W & o.R))
                    if used + o.cost > B: continue
                    if not bad: c = o; break
                    if fb is None: fb = o
                if c is None:
                    if fb is None: break
                    c = fb
                    pen = max(used, 2) if c.three else used + 1
                    if pen + c.cost > B: break
                    used = pen
                c.slot = n; pend.remove(c); va.append(c); used += c.cost
            nds = nvm = 0
            for o in list(pend):
                if o.kind != "misc" or not ready(o, n): continue
                if it is not None or n < 0:
                    if o.nds and nds + o.nds > (4 if o.nds == 2 else 2): continue
                    if o.nvm and nvm: continue
                o.slot = n; pend.remove(o); mi.append(o); nds += o.nds; nvm += o.nvm
            slots.append((n, it, sm, va, mi))
            if n >= N: idle = 0 if (sm or va or mi) else idle + 1
            n += 1
        self.slots = slots; self.left = pend
    def ok_item(self, o):
        n = o.item.idx
        for p, l in o.deps:
            if p.slot is None or p.slot + max(l, 1) > n:
                if p.item is not None and p.slot is not None and p.slot < n: continue
                return False
        if o.item.needbar is not None and n - self.D < self.bs[o.item.needbar]: return False
        return True
    def solve(self, main, extras):
        self.items_all = list(main) + [e.item for e in extras]
        self.mkdeps()
        order = list(main); prev = None
        for e in extras:
            self.run(order)
            n = max([p.slot + (1 if p.item is not None else max(l, 1)) for p, l in e.deps] + [0])
            if e.item.needbar is not None: n = max(n, self.bs[e.item.needbar] + self.D + 1)
            n -= 2
            if prev is not None: n = max(n, prev.idx + 1)
            prev = e.item
            while True:
                o2 = order[:n] + [e.item] + order[n:]
                self.run(o2)
                if self.ok_item(e): break
                n += 1
                assert n <= len(order) + 1, ("cannot place", e)
            order = o2
        self.run(order)
        if getattr(self, "dump", False):
            for n, it, sm, va, mi in self.slots:
                print(n, it.name if it else "-", "s" if (sm or (it and it.small)) else " ", "B" if n in self.bs.values() else " ", sum(o.cost for o in va), " ".join(o.texts[-1].split()[0][2:].replace("_f32","").replace("_b32","").replace("_u32","") for o in va), "|", " ".join([x for x in o.texts if not x.startswith("s_")][-1].split()[0] if any(not x.startswith("s_") for x in o.texts) else "salu" for o in mi))
        assert not self.left, self.left[:5]
        for o in self.ops:
            if o.item is not None: assert self.ok_item(o), ("item dep violated", o, [(p, l) for p, l in o.deps])
            if o.before is not None: assert o.slot < self.bs[o.before], ("before", o, o.before, self.bs[o.before])
            if o.hi is not None: assert o.slot <= self.res(o.hi), ("hi", o, self.res(o.hi))
        self.order = order
```

```python
from asmlib import Prog, Ins, v, s
from sched import Sched, Item, Op
import k1
from k1 import fbits, LOG2E, stamp, pstamp, dump_stamps

MB = 122880
HF_OFF = MB
KVP_OFF = 0xC00000
WS_BYTES = 0x1000000
PH = 103040; ST = 131072; OT = 131072; WPH = 152192; CSP = 156288
LDS_BYTES = 163840
SDB, SX, SWQ, SWG, SWU, SWS, SWP, SWO, SWD = 4, 8, 12, 16, 20, 24, 28, 44, 48
sW, sT, sA, sTY, sR, sI, sMX, sMW, sMG, sC, sO1, sO2 = range(32, 44)
sHF, sK1, sK2, sHI, sT0, sT1, sT2, sT3 = range(52, 60)
sI4, sEX = 3, 35
vM16 = 0; vGO = [1, 2, 3]; vAG = [4, 5, 6, 7]; vMU = 8; CP = 12; CD = [16, 18, 20]
vC1, vSTD, vRS, vWF, vPH, vKA, vKB, vSM = range(24, 32)
vMX = vRS
FR = [32, 36, 40, 44]
AK, AV = 48, 64
GA = [80, 96, 112]
vXO, vWO, vLN, vST, vSQ = 80, 81, 82, 83, 84
vU = [85, 86, 87, 88]
vSTW, vSTR, vWPV, vWPA, vTCH, vCW = 89, 90, 91, 92, 93, 94
vAX = [[96, 97, 98, 99], [100, 101, 102, 103]]
vAA = [[104, 105, 106, 107], [108, 109, 110, 111]]
def XR(i, p): return 128 + (4 * i + p) * 4
CFG = dict(gb=6, pb=8, ppb=8, vb=6, paceg=1, b0end=1, pro=3, pace=0, tch=13, gt=0, rot="a", acc2=1, hstag=0, ns=([2]*8, [2]*8), phbar=(9, 10), qload=8, b0=8, hm=" sc1", qb=6, qpb=6, qpub=9,
           vdm={4: [0], 5: [1, 2], 6: [3, 4, 5], 7: [6, 7]}, g8=7, sq=[[0], [1], [2, 3], [4], [5], [6], [7], []], wc=0, qct=14, sq7=1, v1=(0, 2), skip=(3, 5, "v3", "ph", 12))
STN = []
def nstamp(P, nm, nst):
    if nm in CFG["skip"]: return
    if nst[0] < 18: stamp(P, nst[0]); nst[0] += 1; nst.append(str(nm))
def HM(): return CFG["hm"]

class T:
    def __init__(s, typ):
        s.typ = typ
        s.RB = 192 if typ else 160; s.NP = 12 if typ else 10; s.MUL = 171 if typ else 205
        s.UP = 64 * s.RB + (32 if typ else 128); s.SL = 2 * 64 * s.RB + (64 if typ else 128)
        s.XB = (0, 3 * s.SL) if typ else (20608, 103040)
        s.WB = (16384, 16384 + 3 * s.SL) if typ else (12416, 82432)
        s.ST = 131072 if typ else 98816
    def xp(s, st): return ((st + 2) % 5) * s.SL if s.typ else (20608, 41216, 119424, 103040, 66048, 82432, 119424, 103040)[st]
    def wp(s, st): return s.xp(st) + 16384 if s.typ else (12416, 57600, 144000, 135808)[st % 4]
    def vp(s, c): return (20608, 41216, 66048, 82432)[c >> 1] + 8192 * (c & 1)
    def sp(s, o, B):
        hi = int(o >= B[1]); assert 0 <= o - B[hi] <= 65000; return hi, o - B[hi]
    def g(s, st): return ((st - 8) % 5) * s.SL

def dma_x(t, st):
    return [[f"s_add_u32 s{sC}, s{sR}, {st}", f"s_and_b32 s{sC}, s{sC}, 7", f"s_add_u32 m0, s{sMX}, {t.xp(st)}", f"s_lshl_b32 s{sO1}, s{sC}, 7",
             f"buffer_load_dwordx4 v{vXO}, {s(SX,4)}, s{sO1} offen lds #x{st}"],
            [f"s_add_u32 s{sO1}, s{sO1}, {16384 - 2048}", f"buffer_load_dwordx4 v{vXO}, {s(SX,4)}, s{sO1} offen offset:2048 lds #x{st}"]]
def dma_w(t, st):
    o = [[f"s_add_u32 s{sC}, s{sR}, {st}", f"s_and_b32 s{sC}, s{sC}, 7", f"s_add_u32 m0, s{sMW}, {t.wp(st)}", f"s_mul_i32 s{sO2}, s{sC}, {64*3072}",
          f"buffer_load_dwordx4 v{vWO}, {s(SWQ,4)}, s{sO2} offen lds #w{st}"]]
    return o
def dma_v(t, c):
    return [[f"s_add_u32 s{sC}, s{sR}, {c}", f"s_and_b32 s{sC}, s{sC}, 7", f"s_add_u32 m0, s{sMW}, {t.vp(c) - 1024}", f"s_mul_i32 s{sO2}, s{sC}, {64*3072}",
          f"buffer_load_dwordx4 v{vWO}, {s(SWQ,4)}, s{sO2} offen offset:1024 lds #v{c}"]]
def dma_g(t, g, st):
    S = s(SWU if g else SWG, 4)
    o = [[f"s_add_u32 s{sC}, s{sR}, {st}", f"s_and_b32 s{sC}, s{sC}, 7", f"s_add_u32 m0, s{sMG}, {t.g(st)}", f"s_mul_i32 s{sO2}, s{sC}, {64*2752}",
          f"buffer_load_dwordx4 v{vGO[0]}, {S}, s{sO2} offen lds #w{st}"],
         [f"buffer_load_dwordx4 v{vGO[1]}, {S}, s{sO2} offen offset:1024 lds #w{st}"]]
    l = f"buffer_load_dwordx4 v{vGO[2]}, {S}, s{sO2} offen offset:2048 lds #w{st}"
    o.append([l] if t.typ else ["s_mov_b32 exec_hi, 0", l, "s_mov_b32 exec_hi, -1"])
    return o

def stream_list(t, g):
    o = []
    for st in range(1, 8): o += [dma_x(t, st), dma_w(t, st)]
    return o

def emit(P, t):
    tag = None
    if "#" in t: t, tag = t.split("#"); t = t.strip()
    P.I(t, tag)

def prologue(P, name):
    I = P.I
    stamp(P, 0)
    I("s_cmp_ge_u32 s2, 256")
    I(f"s_cbranch_scc1 L_{name}_end")
    I(f"s_load_dwordx4 s[8:11], s[0:1], 0")
    I(f"v_lshrrev_b32 v1, 6, v0")
    I(f"v_and_b32 v{vLN}, 63, v0")
    I(f"v_readfirstlane_b32 s{sW}, v1")
    I(f"s_and_b32 s{sT0}, s2, 1")
    I(f"s_bfe_u32 s{sT1}, s2, 0x30003")
    I(f"s_lshl3_add_u32 s{sT}, s{sT0}, s{sT1}")
    I(f"s_lshr_b32 s{sT2}, s2, 6")
    I(f"s_and_b32 s{sT0}, s2, 6")
    I(f"s_and_b32 s{sT1}, s{sT2}, 1")
    I(f"s_add_u32 s{sA}, s{sT0}, s{sT1}")
    I(f"s_lshl1_add_u32 s{sR}, s{sT2}, s{sT}")
    rot = CFG["rot"]
    if rot[0] == "b": I(f"s_add_u32 s{sR}, s{sT2}, s{sT}"); I(f"s_lshl_b32 s{sR}, s{sR}, 1")
    if rot[0] == "c": I(f"s_add_u32 s{sR}, s{sT2}, s{sT}"); I(f"s_lshl_b32 s{sR}, s{sR}, 2")
    if rot[0] == "d": I(f"s_mov_b32 s{sR}, 0")
    if rot[1:] == "x": I(f"s_add_u32 s{sR}, s{sR}, s2")
    if rot[1:] == "y": I(f"s_lshr_b32 s{sC}, s2, 1"); I(f"s_add_u32 s{sR}, s{sR}, s{sC}"); I(f"s_and_b32 s{sC}, s2, 1"); I(f"s_lshl1_add_u32 s{sR}, s{sC}, s{sR}")
    if rot[1:] == "z": I(f"s_add_u32 s{sR}, s{sR}, s{sT0}"); I(f"s_and_b32 s{sC}, s2, 1"); I(f"s_lshl2_add_u32 s{sR}, s{sC}, s{sR}")
    I(f"v_lshrrev_b32 v2, 4, v{vLN}")
    I(f"v_lshrrev_b32 v3, 3, v{vLN}")
    I(f"v_and_b32 v4, 7, v{vLN}")
    I(f"s_and_b32 s{sT0}, s{sW}, 1")
    I(f"s_lshr_b32 s{sT1}, s{sW}, 1")
    I(f"s_lshl2_add_u32 s{sT1}, s{sT1}, s{sT0}")
    I(f"s_lshl_b32 s{sMX}, s{sT1}, 10")
    I(f"s_lshl4_add_u32 s{sT1}, s{sT}, s{sT1}")
    I(f"s_lshl_b32 s{sT1}, s{sT1}, 13")
    I(f"s_lshl_b32 s{sT0}, s{sT0}, 2")
    I(f"v_or_b32 v5, s{sT0}, v2")
    I(f"v_xor_b32 v5, v5, v4")
    I(f"v_lshlrev_b32 v5, 4, v5")
    I(f"v_lshl_add_u32 v5, v3, 10, v5")
    I(f"v_add_u32 v{vXO}, s{sT1}, v5")
    I(f"s_lshl_b32 s{sMW}, s{sW}, 10")
    I(f"s_mul_i32 s{sT0}, s{sW}, {8*3072}")
    I(f"s_lshl_b32 s{sT1}, s{sA}, 7")
    I(f"s_add_u32 s{sT0}, s{sT0}, s{sT1}")
    I(f"s_and_b32 s{sC}, s{sR}, 7")
    I(f"s_lshl_b32 s{sO1}, s{sC}, 7")
    I(f"s_mul_i32 s{sO2}, s{sC}, {64*3072}")
    I(f"s_cmp_lt_u32 s2, 128")
    I(f"s_cselect_b32 s{sT1}, 1024, 0")
    I(f"s_cselect_b32 s{sT3}, 0, {T(1).xp(0) - T(0).xp(0)}")
    I(f"s_cselect_b32 s{sT2}, 0, {T(1).wp(0) - T(0).wp(0)}")
    I(f"s_add_u32 s{sT3}, s{sT3}, {T(0).xp(0)}")
    I(f"s_add_u32 s{sT2}, s{sT2}, {T(0).wp(0)}")
    I(f"s_add_u32 s{sT0}, s{sT0}, s{sT1}")
    I(f"v_and_b32 v5, 1, v2")
    I(f"v_lshlrev_b32 v5, 2, v5")
    I(f"v_xor_b32 v5, v5, v4")
    I(f"v_lshlrev_b32 v5, 4, v5")
    I(f"v_mul_u32_u24 v6, 3072, v3")
    I(f"v_add3_u32 v{vWO}, v5, v6, s{sT0}")
    I(f"s_add_u32 m0, s{sMX}, s{sT3}")
    I(f"s_add_u32 s{sT1}, s{sO1}, {16384 - 2048}")
    I(f"s_mov_b32 s{SWQ+2}, {512*3072}")
    I(f"s_mov_b32 s{SWQ+3}, 0x20000")
    pstamp(P, 1)
    I("s_waitcnt lgkmcnt(0)")
    pstamp(P, 2)
    I(f"s_mov_b32 s{SWQ}, s10")
    I(f"s_mov_b32 s{SWQ+1}, s11")
    I(f"s_mov_b32 s{SX+2}, 2097152")
    I(f"s_mov_b32 s{SX+3}, 0x20000")
    I(f"buffer_load_dwordx4 v{vXO}, {s(SX,4)}, s{sO1} offen lds", "x0")
    I(f"buffer_load_dwordx4 v{vXO}, {s(SX,4)}, s{sT1} offen offset:2048 lds", "x0")
    I(f"s_add_u32 m0, s{sMW}, s{sT2}")
    I(f"buffer_load_dwordx4 v{vWO}, {s(SWQ,4)}, s{sO2} offen lds", "w0")
    for r, o in ((SWP, 16), (SWG, 40), (SWU, 48), (SWS, 80), (SDB, 72), (SWO, 24), (SWD, 56)):
        I(f"s_load_dwordx2 {s(r,2)}, s[0:1], {o}")
    pstamp(P, 3)
    I(f"s_and_b32 s{sI}, s{sW}, 3")
    I(f"s_lshr_b32 s{sT0}, s{sW}, 2")
    I(f"s_lshr_b32 s{sT1}, s2, 7")
    I(f"s_lshl1_add_u32 s{sT0}, s{sT1}, s{sT0}")
    for k in (1, 2, 3):
        I(f"s_cmp_eq_u32 s{sT0}, {k}")
        I(f"s_cbranch_scc1 L_{name}_r{k}")

def setup(P, t, g):
    I = P.I; typ = t.typ
    a, b, c, d, h, sb, r, sw, row, j4 = range(112, 122)
    for R, n in ((SWP, 16384), (SWG, 512*2752), (SWU, 512*2752), (SWS, WS_BYTES), (SDB, 256), (SWO, 512*1024), (SWD, 1376*1024)):
        if R == (SWG if g else SWU): continue
        I(f"s_mov_b32 s{R+2}, {n}")
        I(f"s_mov_b32 s{R+3}, 0x20000")
    I(f"s_mov_b32 s{sHI}, 0xffff0000")
    I(f"s_lshl_b32 s{sI4}, s{sI}, 2")
    I(f"v_mov_b32 v{j4}, v2")
    I(f"v_lshrrev_b32 v{h}, 5, v{vLN}")
    I(f"v_and_b32 v{sb}, 1, v2")
    I(f"v_bfe_u32 v{r}, v{vLN}, 2, 2")
    I(f"v_bfe_u32 v{a}, v{vLN}, 1, 1")
    I(f"v_and_b32 v{b}, 1, v{vLN}")
    I(f"v_lshl_or_b32 v{sw}, v{b}, 1, v{a}")
    I(f"v_lshlrev_b32 v{sw}, 3, v{sw}")
    I(f"v_lshl_add_u32 v{row}, v{h}, 3, v{r}")
    I(f"v_lshl_or_b32 v{c}, v{sb}, 1, v{a}")
    I(f"v_lshlrev_b32 v{c}, 3, v{c}")
    I(f"v_lshl_add_u32 v{c}, v{row}, 5, v{c}")
    I(f"v_lshl_add_u32 v{c}, v{b}, 11, v{c}")
    I(f"v_add_u32 v{vWF}, {WPH + g*1024}, v{c}")
    if typ == 0:
        I(f"v_bfe_u32 v{c}, v{vLN}, 2, 3")
        I(f"v_lshl_add_u32 v{c}, v{h}, 4, v{c}")
        I(f"v_mul_u32_u24 v{c}, 96, v{c}")
        I(f"v_lshl_add_u32 v{c}, v{b}, 3, v{c}")
        I(f"s_lshr_b32 s{sT0}, s{sI}, 1")
        I(f"s_mul_i32 s{sT0}, s{sT0}, 12288")
        I(f"s_add_u32 s{sT0}, s{sT0}, {PH + 2*g*12288}")
        I(f"s_and_b32 s{sT1}, s{sI}, 1")
        I(f"s_lshl_b32 s{sT1}, s{sT1}, 5")
        I(f"s_add_u32 s{sT1}, s{sT1}, s{sT0}")
        I(f"v_xor_b32 v{d}, v{a}, v{sb}")
        I(f"v_lshlrev_b32 v{d}, 4, v{d}")
        I(f"v_add3_u32 v{vKA}, v{c}, v{d}, s{sT1}")
    I(f"v_and_b32 v{b}, 2, v{r}")
    I(f"v_or_b32 v{b}, v{b}, v{sb}")
    I(f"v_lshl_add_u32 v{b}, v{b}, 5, v{sw}")
    I(f"v_lshl_add_u32 v{b}, v{row}, 7, v{b}")
    I(f"s_lshl_b32 s{sT0}, s{sI}, 11")
    if g: I(f"s_add_u32 s{sT0}, s{sT0}, 64")
    I(f"v_xor_b32 v{vAA[0][0]}, s{sT0}, v{b}")
    I(f"v_and_b32 v{a}, 31, v{vLN}")
    I(f"v_bfe_u32 v{b}, v{vLN}, 1, 3")
    I(f"v_xor_b32 v{b}, v{b}, v{h}")
    I(f"v_lshlrev_b32 v{b}, 4, v{b}")
    I(f"v_lshl_add_u32 v{b}, v{a}, 7, v{b}")
    I(f"s_mul_i32 s{sT0}, s{sI}, {4096 + 32}")
    I(f"v_xor_b32 v{vAX[0][0]}, s{sT0}, v{b}")
    for p in range(1, 4):
        I(f"v_xor_b32 v{vAX[0][p]}, {p*32}, v{vAX[0][0]}")
        I(f"v_xor_b32 v{vAA[0][p]}, {p*2048}, v{vAA[0][0]}")
    for p in range(4):
        I(f"v_add_u32 v{vAX[1][p]}, {t.XB[1]}, v{vAX[0][p]}")
        I(f"v_add_u32 v{vAA[1][p]}, {t.WB[1]}, v{vAA[0][p]}")
        if t.XB[0]: I(f"v_add_u32 v{vAX[0][p]}, {t.XB[0]}, v{vAX[0][p]}")
        I(f"v_add_u32 v{vAA[0][p]}, {t.WB[0]}, v{vAA[0][p]}")
    I(f"s_lshl_b32 s{sT0}, s{sI}, 9")
    I(f"s_add_u32 s{sT0}, s{sT0}, {t.ST}")
    I(f"v_lshlrev_b32 v{b}, 4, v{a}")
    I(f"v_add_u32 v{vSTR}, s{sT0}, v{b}")
    I(f"v_lshl_add_u32 v{vSTW}, v{h}, 2, v{vSTR}")
    I(f"v_lshl_add_u32 v{vSTW}, v{sb}, 3, v{vSTW}")
    if g: I(f"v_xor_b32 v{vSTW}, 8, v{vSTW}")
    if typ == 0:
        I(f"v_mul_u32_u24 v{b}, 96, v{a}")
        I(f"v_and_b32 v{c}, 4, v{a}")
        I(f"v_lshlrev_b32 v{c}, 2, v{c}")
        I(f"s_mul_i32 s{sT0}, s{sI}, 3072")
        I(f"s_add_u32 s{sT0}, s{sT0}, {PH + 2*g*12288}")
        I(f"v_add3_u32 v{b}, v{b}, v{c}, s{sT0}")
        I(f"v_lshl_add_u32 v{vPH}, v{h}, 5, v{b}")
        I(f"v_lshlrev_b32 v{c}, 4, v{h}")
        I(f"v_xor_b32 v{vKB}, v{b}, v{c}")
    I(f"v_mul_u32_u24 v{b}, {t.RB}, v{row}")
    I(f"v_mul_u32_u24 v{c}, {t.UP}, v{sb}")
    I(f"v_add3_u32 v{b}, v{b}, v{c}, v{sw}")
    for p in range(4):
        I(f"s_xor_b32 s{sT0}, s{sI}, {p}")
        I(f"s_mul_i32 s{sT0}, s{sT0}, {16*t.RB}")
        I(f"v_add_u32 v{vAG[p]}, s{sT0}, v{b}")
    I(f"s_mul_i32 s{sMG}, s{sI}, {16*t.RB}")
    if g: I(f"s_add_u32 s{sMG}, s{sMG}, {t.UP}")
    if typ == 0:
        I(f"s_mul_i32 s{sT2}, s{sA}, 5")
        I(f"s_min_u32 s{sT2}, s{sT2}, 33")
        I(f"s_add_u32 s{sT2}, s{sT2}, 48")
    else: I(f"s_mul_i32 s{sT2}, s{sA}, 6")
    I(f"s_mul_i32 s{sT0}, s{sI}, {16*2752}")
    I(f"s_lshl_b32 s{sT1}, s{sT2}, 5")
    I(f"s_add_u32 s{sT0}, s{sT0}, s{sT1}")
    I(f"s_mov_b32 s{sT1}, {2752 - 16*t.NP}")
    I(f"v_lshlrev_b32 v{a}, 4, v{vLN}")
    I(f"v_add_u32 v{vM16}, {MB}, v{a}")
    I(f"v_add_u32 v{a}, s{sT0}, v{a}")
    I(f"v_mul_u32_u24 v{b}, {t.MUL}, v{vLN}")
    for j in range(3):
        if j: I(f"v_add_u32 v{b}, {64*t.MUL}, v{b}")
        I(f"v_lshrrev_b32 v{c}, 11, v{b}")
        I(f"v_mad_u32_u24 v{vGO[j]}, v{c}, s{sT1}, v{a}")
    I(f"v_and_b32 v{a}, 15, v{vLN}")
    I(f"v_lshlrev_b32 v{b}, 2, v{j4}")
    I(f"v_mov_b32 v{c}, 0x3f803f80")
    I(f"v_cmp_eq_u32 vcc, v{a}, v{b}")
    for k in range(4): I(f"v_cndmask_b32 v{CP+k}, 0, v{c}, vcc")
    I(f"v_xor_b32 v{b}, s{sI4}, v{b}")
    I(f"v_or_b32 v{vCW}, v{b}, v{vM16}")
    I(f"s_lshl2_add_u32 s{sT0}, s{sT}, s{sI}")
    I(f"s_mul_i32 s{sT0}, s{sT0}, 118")
    I(f"s_add_u32 s{sT1}, s{sT0}, s{sT2}")
    I(f"s_add_u32 s{sT1}, s{sT1}, {32 + (3*g if typ else 2*g)}")
    I(f"s_lshl_b32 s{sHF}, s{sT1}, 10")
    I(f"s_lshr_b32 s{sT1}, s{sW}, 1")
    I(f"s_lshl2_add_u32 s{sT1}, s{sA}, s{sT1}")
    I(f"s_mul_i32 s{sT1}, s{sT1}, 17408")
    I(f"s_and_b32 s{sT2}, s{sW}, 1")
    if typ == 0:
        I(f"s_lshl4_add_u32 s{sT3}, s{sT2}, s{sT}")
        I(f"s_lshl_b32 s{sT3}, s{sT3}, 9")
        I(f"s_add_u32 s{sK1}, s{sT1}, s{sT3}")
        I(f"s_add_u32 s{sK1}, s{sK1}, {KVP_OFF - MB//2}")
        I(f"s_lshl1_add_u32 s{sT3}, s{sT}, s{sT2}")
        I(f"s_lshl_b32 s{sT3}, s{sT3}, 5")
        I(f"s_add_u32 s{sK2}, s{sT1}, s{sT3}")
        I(f"s_add_u32 s{sK2}, s{sK2}, {KVP_OFF + 16384 - MB//32}")
        I(f"s_lshl_b32 s{sEX}, s{sI}, 11")
        I(f"s_sub_u32 s{sEX}, s{sEX}, {MB - 3*t.SL}")
    else:
        I(f"s_add_u32 s{sK2}, s{sT1}, {KVP_OFF + 16384 - MB}")
        I(f"s_lshl_b32 s{sT2}, s{sT2}, 13")
        I(f"s_add_u32 s{sK1}, s{sT1}, s{sT2}")
        I(f"s_add_u32 s{sK1}, s{sK1}, {KVP_OFF - MB}")
        I(f"s_lshl2_add_u32 s{sT0}, s{sA}, s{sT0}")
        I(f"s_add_u32 s{sT0}, s{sT0}, {2*g}")
        I(f"s_lshl_b32 s{sEX}, s{sT0}, 10")
    I(f"v_lshlrev_b32 v{a}, 2, v{vLN}")
    I(f"s_lshl_b32 s{sT0}, s{sW}, 8")
    I(f"s_lshl_b32 s{sT1}, s{sA}, 11")
    I(f"s_add_u32 s{sT1}, s{sT1}, s{sT0}")
    I(f"s_add_u32 s{sT0}, s{sT0}, {WPH}")
    I(f"v_add_u32 v{vWPA}, s{sT0}, v{a}")
    I(f"s_lshl2_add_u32 s{sT0}, s2, s{sI}")
    I(f"s_mul_i32 s{sT0}, s{sT0}, {11*128}")
    I(f"v_lshlrev_b32 v{b}, 7, v{vLN}")
    if typ == 0:
        I(f"v_mov_b32 v{h}, -1")
        I(f"v_mov_b32 v{h+1}, -1")
        I(f"v_lshrrev_b32 v{c}, 1, v{vM16}")
        I(f"v_lshrrev_b32 v{d}, 5, v{vM16}")
    pstamp(P, 4)
    I("s_waitcnt lgkmcnt(0)")
    def gtouch():
        if "notouch" not in k1.KN and CFG["gt"]:
            I("s_mov_b64 exec, 0x7ff")
            I(f"buffer_load_dword v{vTCH}, v{b}, {s(SWU if g else SWG,4)}, s{sT0} offen")
            I("s_mov_b64 exec, -1")
    for x in dma_x(t, 1):
        for y in x: emit(P, y)
    I(f"buffer_load_dword v{vWPV}, v{a}, {s(SWP,4)}, s{sT1} offen")
    if CFG["gt"] == 1: gtouch()
    for x in stream_list(t, g)[1:CFG["pro"]]:
        for z in x:
            for y in z: emit(P, y)
    if CFG["gt"] == 2: gtouch()
    if typ == 0:
        I(f"buffer_store_dwordx2 {v(h,2)}, v{c}, {s(SWS,4)}, s{sK1} offen sc1")
        I("s_mov_b32 exec_lo, 0x10001")
        I("s_mov_b32 exec_hi, 0x10001")
        I(f"buffer_store_dwordx2 {v(h,2)}, v{d}, {s(SWS,4)}, s{sK2} offen sc1")
        I("s_mov_b64 exec, -1")
    for r, m in zip(MS(g), (0xaaaaaaaa, 0xcccccccc, 0xff00ff00, 0xffff0000, 0x0f0f0f0f)):
        I(f"s_mov_b32 s{r}, {m:#x}")
        I(f"s_mov_b32 s{r+1}, {(m if m != 0x0f0f0f0f else 0xf0f0f0f0):#x}")
    pstamp(P, 5)

def MS(g): return [0, SWP, SWP + 2, (SWG if g else SWU), (SWG if g else SWU) + 2]
def softmax(W, O, m=vMX, sm=vSM):
    o = [f"v_max_f32 v{m}, v{W}, v{W+1}", f"v_max_f32 v{sm}, v{W+2}, v{W+3}"]
    for k in range(4, 16, 4):
        o.append(f"v_max3_f32 v{m}, v{m}, v{W+k}, v{W+k+1}")
        o.append(f"v_max3_f32 v{sm}, v{sm}, v{W+k+2}, v{W+k+3}")
    o.append(f"v_max_f32 v{m}, v{m}, v{sm}")
    o.append(f"v_mul_f32 v{m}, v{m}, v{vC1}")
    for k in range(16): o.append(f"v_fma_f32 v{W+k}, v{W+k}, -v{vC1}, v{m}")
    for k in range(16):
        o.append(f"v_exp_f32 v{W+k}, v{W+k}")
        if k == 2: o.append(f"v_add_f32 v{sm}, v{W}, v{W+1}")
        if k > 2: o.append(f"v_add_f32 v{sm}, v{sm}, v{W+k-1}")
    o.append(f"v_add_f32 v{sm}, v{sm}, v{W+15}")
    o.append(f"v_rcp_f32 v{sm}, v{sm}")
    for k in range(8):
        o.append(f"v_mul_f32 v{W+2*k}, v{W+2*k}, v{sm}")
        o.append(f"v_mul_f32 v{W+2*k+1}, v{W+2*k+1}, v{sm}")
        o.append(f"v_cvt_pk_bf16_f32 v{O+k}, v{W+2*k}, v{W+2*k+1}")
    return o

def glu(G, U, n):
    o = []
    for k in range(n): o.append(f"v_mul_f32 v{G+k}, v{G+k}, v{vC1}")
    for k in range(n): o.append(f"v_exp_f32 v{G+k}, v{G+k}")
    for k in range(n): o.append(f"v_fma_f32 v{G+k}, v{G+k}, v{vSTD}, v{vSTD}")
    for k in range(n): o.append(f"v_rcp_f32 v{G+k}, v{G+k}")
    for k in range(n): o.append(f"v_mul_f32 v{G+k}, v{G+k}, v{U+k}")
    for k in range(n // 2): o.append(f"v_cvt_pk_bf16_f32 v{G+k}, v{G+2*k}, v{G+2*k+1}")
    return o

def publish(c, t0, t1, addr, blk, tag):
    return [f"v_and_b32 v{t0}, s{sHI}, v{c}", f"v_sub_f32 v{t1}, v{c}, v{t0}", f"v_cvt_pk_bf16_f32 v{t0}, v{t0}, v{t1}",
            f"ds_write_b32 v{addr}, v{t0} offset:{CSP - MB + blk*1024} #{tag}"]

def stream(P, typ, g, name):
    global vST, vSQ, vU, vSTW, vSTR, vCW
    I = P.I; t = T(typ); D = 3
    o_ = AV if typ else 83
    vST, vSQ, vU, vSTW, vSTR = o_, o_ + 1, [o_ + 2, o_ + 3, o_ + 4, o_ + 5], o_ + 6, o_ + 7
    vCW = AV + 8 if typ else 94
    PB = CFG["qpub"] if typ else "v1"
    setup(P, t, g)
    S = Sched(D)
    F = "v[32:35]"
    def mm(acc, x, first): return lambda f: f"v_mfma_f32_32x32x16_bf16 {v(acc,16)}, {f}, {v(x,4)}, {'0' if first else v(acc,16)}"
    def cm(c, first): return lambda f: f"v_mfma_f32_16x16x32_bf16 {v(c,4)}, {v(CP,4)}, {f}, {'0' if first else v(c,4)}"
    def tr(ad, im, sec): return [("tr", ad, im), ("tr2", ad, im + sec)]
    main = []; first = {}
    P1 = {}; SQ = {}
    for st in range(8):
        hi, so = t.sp(t.wp(st), t.WB)
        for p in range(4):
            it = Item(mm(AK, XR(st, p), st == 0 and p == 0), tr(vAA[hi][p], so, 512), cm(CD[0], st == 0) if p == 0 else None, name=f"{st}p{p}")
            if p == 0:
                it.bar = st; first[st] = it
                xh, xo = t.sp(t.xp(st), t.XB)
                if st < 2: it.pre = [f"ds_read_b128 {v(XR(st,q),4)}, v{vAX[xh][q]} offset:{xo}" for q in range(4)]
            main.append(it); P1[st, p, 0] = it
        for xs in CFG["sq"][st]:
            for q in (2*g, 2*g+1):
                SQ[xs, q] = Item((lambda x, fi: lambda f: f"v_mfma_f32_32x32x16_bf16 {v(GA[2],16)}, {v(x,4)}, {v(x,4)}, {'0' if fi else v(GA[2],16)}")(XR(xs, q), not SQ), name=f"sq{xs}{q}")
                if xs == 7: main.insert(main.index(P1[st, CFG["sq7"], 0]), SQ[xs, q])
                else: main.append(SQ[xs, q])
    V = {}
    if typ == 0:
        for c in range(8):
            hi, so = t.sp(t.vp(c), t.WB)
            for p in range(4): V[c, p] = Item(mm(AV, XR(c, p), c == 0 and p == 0), tr(vAA[hi][p], so, 512), cm(CD[1], False) if p == 0 else None, name=f"v{c}p{p}")
        for c in (1, 3, 6):
            it = V[c, 0] if c > 1 else V[CFG["v1"]]
            it.bar = f"v{c}"; first[f"v{c}"] = it
        main += [V[c, p] for c in range(6) for p in range(4)] + [V[6,0], V[7,0]] + [V[c, p] for c in (6, 7) for p in (1, 2, 3)]
    nb = 3
    blk = [3*g, 3*g+1, 3*g+2] if typ else [3*g, 3*g+1, 2]
    def gi(st, p, b):
        o = t.g(st)
        if o >= 3 * t.SL: o -= 3 * t.SL
        fst = st == 8 and (p == 0 or (typ == 0 and b == 2 and p == 2*g))
        sm = cm(CD[b], st == 8) if p == 0 else None
        return Item(mm(GA[b], XR(st-8, p), fst), tr(vAG[p], o + blk[b]*32, 4*t.RB), sm, name=f"{st}p{p}b{b}")
    def has(p, b): return typ == 1 or b < 2 or (p >> 1) == g
    G = {}
    for st in range(8, 16):
        for p in range(4):
            for b in range(nb):
                if has(p, b): G[st, p, b] = gi(st, p, b)
    for st in range(8, 13):
        l = [G[st, p, b] for p in range(4) for b in range(nb) if has(p, b)]
        l[0].bar = st; first[st] = l[0]; main += l
    first[PB].pre = [f"ds_read_b128 {v(vMU,4)}, v{vSTR}"]
    def corr(acc, cb, nbar, nm):
        return Item(mm(acc, vMU, False), [("b128", vM16, CSP - MB + cb*1024)], needbar=nbar, name=nm)
    C = [corr(GA[b], blk[b], "cs", f"corr{b}") for b in range(nb)]
    rest = lambda b, sts: [G[st, p, b] for st in sts for p in (1, 2, 3)]
    if typ == 0:
        sh = lambda st: [G[st, 2*g, 2], G[st, 2*g+1, 2]]
        t13 = [G[13,0,0], G[13,0,1]] + sh(13) + rest(0, [13])
        t15 = [G[14,0,0], G[14,0,1]] + sh(14) + sh(15) + [G[15,0,0], G[15,0,1]]
        r0 = rest(0, [14, 15]); r1 = rest(1, [13, 14, 15])
        tail = r0[:5] + [C[2]] + r0[5:] + [C[0]] + r1 + [C[1]]
        C[2].bar = "cs"
    else:
        t13 = [G[13,0,b] for b in range(3)] + rest(0, [13])
        t15 = [G[st,0,b] for st in (14, 15) for b in range(3)]
        r0 = rest(0, [14, 15])
        tail = r0[:5] + [C[0]] + r0[5:] + rest(1, [13, 14, 15]) + [C[1]] + rest(2, [13, 14, 15]) + [C[2]]
        C[0].bar = "cs"
    t13[0].bar = 13; t15[0].bar = 15; first[13] = t13[0]; first[15] = t15[0]
    main += t13 + t15 + tail
    barwait = {0: ["x0", "w0"], 1: ["x1", "w1", "x2"], 7: ["w7"], 15: ["w14", "w15"], "cs": []}
    for st in range(2, 7): barwait[st] = [f"w{st}", f"x{st+1}"]
    for st in range(8, 14): barwait[st] = [f"w{st}"]
    barlg = {PB: ["pub"], "cs": ["cs"]}
    BO = list(range(14))
    if typ == 0:
        barwait[7] = ["w7", "v0"]; barwait["v1"] = ["v1", "v2"]; barwait["v3"] = ["v3", "v4", "v5"]; barwait["v6"] = ["v6", "v7"]
        barlg[8] = ["pubv"]
        BO = list(range(8)) + ["v1", "v3", "v6"] + list(range(8, 14))
    sl = stream_list(t, g); pro = CFG["pro"]
    dm = {b: [] for b in BO[:-1]}
    if typ == 0:
        for k in range(pro, 14): dm[max(0, (k - 3) // 2)] += sl[k]
        for b, l in CFG["vdm"].items():
            for c in l: dm[b] += dma_v(t, c)
        dm[CFG["g8"]] += dma_g(t, g, 8)
        dm["v3"] += dma_g(t, g, 9); dm["v6"] += dma_g(t, g, 10)
        for b in range(8, 13): dm[b] = dma_g(t, g, b + 3)
    else:
        ql = CFG.get("qlead", 2)
        for k in range(pro, 14): dm[max(0, (k + 1 - 2*ql) // 2)] += sl[k]
        if ql == 3:
            for b in range(5, 13): dm[b] += dma_g(t, g, b + 3)
        else:
            g8 = dma_g(t, g, 8); g9 = dma_g(t, g, 9); g10 = dma_g(t, g, 10)
            dm[5] += g8[:2]; dm[6] = g8[2:] + g9[:2]; dm[7] = g9[2:] + g10[:2]; dm[8] = g10[2:] + dma_g(t, g, 11)
            for b in range(9, 13): dm[b] += dma_g(t, g, b + 3)
    if CFG["b0end"]: dm[0] = [sum(dm[0], [])] if dm[0] else []
    nxt = lambda b: BO[BO.index(b) + 1]
    heavy = []
    def hok(n):
        if not CFG["hstag"]: return True
        if n % 2 != g or n + 1 in S.bs.values(): return False
        return not any(dpos(b, j, len(dm[b]), gg)() == n for b in dm for j in range(len(dm[b])) for gg in (0, 1))
    def dpos(b, j, k, g=g):
        def f():
            L = S.bs[nxt(b)] - S.bs[b]; o = S.bs[b]
            if b == 0 and CFG['b0end']: return o + L - 1
            if b == 0: return o + j if typ else o + min(L - 2, 2 * j + g) if k <= 4 else o + j
            if 2 * k <= L: return o + min(L - 2, int((j + 0.5 * g) * L / k + 0.01))
            return o + min(L - 1, int((j + 0.5 * g) * L / k + 0.01))
        return f
    for b in BO[:-1]:
        for j, x in enumerate(dm[b]): heavy.append(S.add(x, after=b, before=nxt(b), kind="misc", lo=dpos(b, j, len(dm[b])) if CFG["pace" if BO.index(b) < (6 if typ else 8) else "paceg"] or b == 0 else None))
    if typ == 0 and g == 1:
        S.add(f"v_mov_b32 v95, 1", after=2)
        S.add([f"s_cmp_eq_u32 s{sI}, 0", "s_cselect_b32 exec_lo, 1, 0", "s_mov_b32 exec_hi, 0", f"s_lshl_b32 s{sT3}, s{sA}, 5",
               f"buffer_atomic_add v95, off, {s(SDB,4)}, s{sT3} sc1", "s_mov_b64 exec, -1"], after=3, before=7)
    for p in range(4):
        bs = [b for b in range(nb) if has(p, b)]
        S.add(f"v_add_u32 v{vAG[p]}, {3*t.SL}, v{vAG[p]}", lo=(G[10,p,bs[-1]], -D), hi=(G[11,p,0], -D-1))
        nx = G[13,p,0] if not (typ == 0 and p and (p >> 1) == g) else G[13,p,2]
        S.add(f"v_subrev_u32 v{vAG[p]}, {3*t.SL}, v{vAG[p]}", lo=(G[12,p,bs[-1]], -D), hi=(nx, -D-1))
    ns = CFG["ns"][typ]; u = 0; fs = True
    S.node(P1[0,0,0], cm(CD[0], True)(F))
    sp = [2*g, 2*g+1]
    for st in range(8):
        if 1 <= st < 7:
            hi, so = t.sp(t.xp(st + 1), t.XB)
            for q in sp + [x for x in range(4) if x not in sp]:
                S.add(f"ds_read_b128 {v(XR(st+1,q),4)}, v{vAX[hi][q]} offset:{so}", after=st, lo=(first[st], (-2 if st > 1 else 0) if typ else -3), hi=(P1[st+1,q,0], -2), before=None if typ else st + 1)
        if st == 2:
            S.add(f"ds_write_b32 v{vWPA}, v{vWPV}", after=2)
            S.add(f"v_xor_b32 v{vWPV}, 0x80008000, v{vWPV}", after=2)
            S.add(f"ds_write_b32 v{vWPA}, v{vWPV} offset:2048", after=2, before=7)
    for st in range(8):
        for n, q in enumerate(sp):
            if n < ns[st]:
                S.add(cm(CD[2], fs)(v(XR(st, q), 4)), lo=(first[st], 1) if st < 2 else None); fs = False
    if typ == 1:
        S.add(f"v_mov_b32 v{vST}, v{CD[2]}", hi=(first[8], -1))
        S.node(P1[7,0,0], cm(CD[0], False)(F))
        S.adds(publish(CD[0], AV+9, AV+10, vCW, g, "pub"), hi=(first[8], -1))
    for (xs, q), it in SQ.items(): S.node(it, it.mf(F))
    Q_ = GA[2]; ms = MS(g)
    for lv, (stp, dd) in enumerate(((2, 1), (4, 2), (8, 4), (16, 8))):
        S.adds([f"v_cndmask_b32 v{Q_+k}, v{Q_+k}, v{Q_+k+dd}, {s(ms[lv],2)}" for k in range(0, 16, stp)])
    S.add(f"v_cndmask_b32 v{vSQ}, 0, v{Q_}, {s(ms[4],2)}")
    if typ == 0:
        S.add(f"v_mov_b32 v{vST}, v{CD[2]}")
        S.node(P1[7,0,0], cm(CD[0], False)(F))
        S.adds(publish(CD[0], 85, 86, vCW, g, "pub"), before=PB)
    else: S.node(G[8,0,2], mm(GA[2], XR(0,0), True)(F))
    S.add(f"v_permlane32_swap_b32 v{vST}, v{vSQ}")
    S.adds([f"v_add_f32 v{vST}, v{vST}, v{vSQ}", f"ds_write_b32 v{vSTW}, v{vST} #pub"], before=PB)
    if "notouch" not in k1.KN:
        a = XR(1, 0)
        S.adds([f"v_subrev_u32 v{a}, {MB}, v{vM16}", f"v_lshlrev_b32 v{a}, 3, v{a}"], lo=(first[10], 0))
        S.add([f"s_lshl3_add_u32 s{sT0}, s2, s{sW}", f"s_lshl_b32 s{sT1}, s{sT0}, 8", "s_mov_b64 exec, 3",
               f"buffer_load_dword v{a+1}, v{a}, {s(SWO,4)}, s{sT1} offen", "s_mov_b64 exec, -1"], after=CFG["tch"], lo=(first[10], 0))
        S.add([f"s_mul_i32 s{sT1}, s{sT0}, 768", "s_mov_b64 exec, 63",
               f"buffer_load_dword v{a+2}, v{a}, {s(SWD,4)}, s{sT1} offen", "s_mov_b64 exec, -1"], after=CFG["tch"], lo=(first[10], 0))
    m, q = vMU, vC1
    l8 = (first[PB], -1)
    S.adds([f"v_add_f32 v{m}, v{vMU}, v{vMU+2}", f"v_add_f32 v{q}, v{vMU+1}, v{vMU+3}",
            f"v_mul_f32 v{vSTD}, {fbits(-1.0/512)}, v{m}", f"v_mul_f32 v{q}, {fbits(1.0/512)}, v{q}"], lo=l8)
    S.adds([f"v_cvt_pk_bf16_f32 v{vMU+k}, v{vSTD}, v{vSTD}" for k in range(4)])
    S.adds([f"v_fma_f32 v{q}, -v{vSTD}, v{vSTD}, v{q}", f"v_max_f32 v{q}, 0, v{q}", f"v_add_f32 v{q}, {fbits(1e-5)}, v{q}",
            f"v_rsq_f32 v{vRS}, v{q}", f"v_mul_f32 v{vSTD}, v{q}, v{vRS}", f"v_mul_f32 v{vC1}, {fbits(-LOG2E)}, v{vRS}"])
    ex = []
    S.node(P1[7,3,0], mm(AK, XR(7,3), False)(F))
    ex.append(S.node(corr(AK, g, PB, "corrK"), mm(AK, vMU, False)(F)))
    def w64(w, x, **k):
        return S.add([w] + ([x] if x else []), kind="valu", cost=CFG["wc"] + (1 if x else 0), first=True, **k)
    KB = AK if typ else 96
    S.adds([f"v_cvt_pk_bf16_f32 v{KB+k}, v{AK+2*k}, v{AK+2*k+1}" for k in range(8)])
    pb = "ph"
    if typ == 0:
        W = [GA[2], AK]
        S.node(V[7,0], cm(CD[1], False)(F))
        S.adds(publish(CD[1], 83, 84, vCW, 2 + g, "pubv"), before=8)
        for rho in range(2):
            pk = mm(W[rho], KB + 4*rho, True)
            ex.append(S.node(Item(pk, tr(vWF, 512*rho, 128), needbar=PB, name=f"phi{rho}"), pk(F)))
        for rho in range(2):
            S.adds(softmax(W[rho], W[rho], *((87, 88), (vSM, vWF))[rho]))
            for b_ in range(2):
                w64(f"ds_write_b128 v{vPH}, {v(W[rho]+4*b_,4)} offset:{rho*12288} #ph", None if (rho, b_) == (1, 1) else f"v_xor_b32 v{vPH}, 16, v{vPH}", after="v3", before=pb)
        S.node(G[8,0,0], mm(GA[0], XR(0,0), True)(F)); S.node(G[8,0,1], mm(GA[1], XR(0,0), True)(F)); S.node(G[8,2*g,2], mm(GA[2], XR(0,2*g), True)(F))
        S.node(V[7,3], mm(AV, XR(7,3), False)(F))
        ex.append(S.node(corr(AV, 2 + g, 8, "corrV"), mm(AV, vMU, False)(F)))
        for k in range(8):
            S.adds([f"v_mul_f32 v{AV+2*k}, v{AV+2*k}, v{vRS}", f"v_mul_f32 v{AV+2*k+1}, v{AV+2*k+1}, v{vRS}",
                    f"v_cvt_pk_bf16_f32 v{AV+k}, v{AV+2*k}, v{AV+2*k+1}"])
            if k & 3 == 3: w64(f"ds_write_b128 v{vKB}, {v(AV+k-3,4)} offset:{(k>>2)*12288+64} #ph", None, before=pb)
        S.node(G[8,3,1], mm(GA[1], XR(0,3), False)(F)); S.node(G[8,2*g+1,2], mm(GA[2], XR(0,2*g+1), False)(F))
        W = [AV, XR(0, 0)]
    else:
        for rho in range(2):
            pk = mm(AV, AK + 4*rho, True)
            ex.append(S.node(Item(pk, tr(vWF, 512*rho, 128), needbar=8, name=f"phi{rho}"), pk(F)))
            S.adds(softmax(AV, AK + 8 if rho == 0 else AV))
    if typ == 0:
        pi = main[main.index(first[CFG["phbar"][0]]) + CFG["phbar"][1]]
        if pi.bar is None: pi.bar = pb; barwait[pb] = []
        else:
            for o in S.ops:
                if o.before == pb: o.before = pi.bar
            pb = pi.bar
        barlg[pb] = barlg.get(pb, []) + ["ph"]
        DK, DZ, ON = AK, AK + 4, AK + 8
        S.adds([f"v_mov_b32 v{ON+k}, 0x3f803f80" for k in range(4)])
        S.adds([f"v_lshrrev_b32 v{AK+12}, 1, v{vM16}", f"v_lshrrev_b32 v{AK+13}, 5, v{vM16}"])
        S.add([f"s_and_b32 s{sT3}, s{sI}, 1", f"s_lshl_b32 s{sT3}, s{sT3}, 5"], lo=(first[8], 0))
        S.add(f"v_subrev_u32 v{vPH}, s{sT3}, v{vKA}")
        for u4 in range(4):
            A0 = W[u4 >> 1] + 8*(u4 & 1); B0 = A0 + 4; o = u4 * 3072
            S.add([f"ds_read_b64_tr_b16 {v(A0,2)}, v{vKA} offset:{o}", f"ds_read_b64_tr_b16 {v(A0+2,2)}, v{vKA} offset:{o+768}"], after=pb)
            S.add([f"ds_read_b64_tr_b16 {v(B0,2)}, v{vPH} offset:{o+64}", f"ds_read_b64_tr_b16 {v(B0+2,2)}, v{vPH} offset:{o+768+64}"], after=pb)
            na = f"v_mfma_f32_16x16x32_bf16 {v(DZ,4)}, {v(A0,4)}, {v(ON,4)}, {'0' if u4 == 0 else v(DZ,4)}"
            nb_ = f"v_mfma_f32_16x16x32_bf16 {v(DK,4)}, {v(A0,4)}, {v(B0,4)}, {'0' if u4 == 0 else v(DK,4)}"
            S.adds([na, nb_] if u4 < 3 else [nb_, na])
        S.adds([f"v_cvt_pk_bf16_f32 v{DK}, v{DK}, v{DK+1}", f"v_cvt_pk_bf16_f32 v{DK+1}, v{DK+2}, v{DK+3}"])
        kvst = S.add(f"buffer_store_dwordx2 {v(DK,2)}, v{AK+12}, {s(SWS,4)}, s{sK1} offen sc1", kind="misc")
        S.adds([f"v_cvt_pk_bf16_f32 v{DZ}, v{DZ}, v{DZ+1}", f"v_cvt_pk_bf16_f32 v{DZ+1}, v{DZ+2}, v{DZ+3}"])
        S.add(["s_mov_b32 exec_lo, 0x10001", "s_mov_b32 exec_hi, 0x10001", f"buffer_store_dwordx2 {v(DZ,2)}, v{AK+13}, {s(SWS,4)}, s{sK2} offen sc1", "s_mov_b64 exec, -1"],
              ok=lambda n: kvst.slot is not None and n > kvst.slot)
    SEL, DD, ZZ, LD = 132, 136, 140, 144
    vTW, vTZ, vTR, vCT = 128, 129, 130, 131
    if typ == 1:
        a, b, c, ln = 136, 137, 138, 139
        S.add([f"s_lshl_b32 s{sT2}, s{sA}, 5", f"buffer_load_dword v{vCT}, off, {s(SDB,4)}, s{sT2}"], after=12, lo=(first[13], -4))
        o = [f"v_bfe_u32 v{ln}, v{vM16}, 4, 6", f"v_and_b32 v{a}, 15, v{ln}", f"v_lshrrev_b32 v{b}, 1, v{ln}", f"v_and_b32 v{b}, 8, v{b}", f"v_xor_b32 v{b}, v{a}, v{b}",
             f"v_and_b32 v{c}, 1, v{b}", f"v_lshlrev_b32 v{c}, 4, v{c}", f"v_mov_b32 v{a}, 0x3f80", f"v_lshlrev_b32 v{c}, v{c}, v{a}", f"v_lshrrev_b32 v{b}, 1, v{b}"]
        for r in range(4): o += [f"v_cmp_eq_u32 vcc, {r}, v{b}", f"v_cndmask_b32 v{SEL+r}, 0, v{c}, vcc"]
        S.adds(o, lo=(first[9], 0))
        S.add([f"s_lshr_b32 s{sT0}, s{sW}, 1", f"s_lshl_b32 s{sT0}, s{sT0}, 11", f"s_and_b32 s{sT1}, s{sW}, 1", f"s_lshl_b32 s{sT1}, s{sT1}, 5",
               f"s_add_u32 s{sT1}, s{sT1}, s{sT0}", f"s_add_u32 s{sT1}, s{sT1}, {OT}"], lo=(first[9], 0))
        S.adds([f"v_add_u32 v{vTZ}, s{sT0}, v{vM16}", f"v_and_b32 v{a}, 7, v{ln}", f"v_lshlrev_b32 v{a}, 7, v{a}", f"v_and_b32 v{b}, 16, v{ln}", f"v_lshl_add_u32 v{a}, v{b}, 2, v{a}",
                f"v_and_b32 v{b}, 8, v{ln}", f"v_add_u32 v{a}, v{a}, v{b}", f"v_lshrrev_b32 v{b}, 1, v{ln}", f"v_and_b32 v{b}, 16, v{b}", f"v_add3_u32 v{vTW}, v{a}, v{b}, s{sT1}",
                f"v_and_b32 v{a}, 19, v{ln}", f"v_bfe_u32 v{b}, v{ln}, 2, 1", f"v_lshl_or_b32 v{a}, v{b}, 3, v{a}", f"v_bfe_u32 v{b}, v{ln}, 3, 1", f"v_lshl_or_b32 v{a}, v{b}, 2, v{a}",
                f"v_lshlrev_b32 v{a}, 6, v{a}", f"v_and_b32 v{b}, 32, v{ln}", f"v_add_u32 v{a}, v{a}, v{b}", f"v_add_u32 v{vTR}, {OT + g*4096}, v{a}"], lo=(first[9], 0))
        chk = S.add([f"v_readfirstlane_b32 s{sT3}, v{vCT}", f"s_cmp_lt_u32 s{sT3}, 16", f"s_cbranch_scc1 L_{name}_cp{g}", f"LABEL L_{name}_cb{g}"], after=15)
        chk.R |= {("s", sT2)}; chk.W |= {("s", sT1), ("x", 0)}
    vCW2, vEX, t0, t1 = 184, 185, 186, 188
    S.adds([f"v_lshrrev_b32 v{vCW2}, 6, v{vM16}", f"v_and_b32 v{vCW2}, 12, v{vCW2}", f"v_xor_b32 v{vCW2}, s{sI4}, v{vCW2}", f"v_or_b32 v{vCW2}, v{vCW2}, v{vM16}"], lo=(first[13], 0))
    if typ == 0:
        S.add(f"v_add_u32 v{vEX}, s{sEX}, v{vM16}", lo=(first[13], 0))
        own = 4*g; oth = 4 - own
        if g == 0: S.node(G[15,0,2], cm(CD[2], False)(F))
        S.node(G[15,2*g+1,2], mm(GA[2], XR(7,0), False)(F))
        for k in range(2): w64(f"ds_write_b128 v{vEX}, {v(GA[2]+oth+8*k,4)} offset:{g*8192+1024*k} #cs", None, before="cs")
        S.node(G[15,0,0], cm(CD[0], False)(F)); S.node(G[15,0,1], cm(CD[1], False)(F))
        for b in range(3 - g): S.adds(publish(CD[b], t0 + 2*b, t0 + 2*b + 1, vCW2, blk[b], "cs"), before="cs")
        X = 192
        S.add(f"ds_read_b128 {v(X,4)}, v{vEX} offset:{(1-g)*8192}", after="cs")
        S.add(f"ds_read_b128 {v(X+4,4)}, v{vEX} offset:{(1-g)*8192+1024}", after="cs")
        S.node(C[2], mm(GA[2], vMU, False)(F))
        S.adds([f"v_add_f32 v{X+4*hh+k}, v{X+4*hh+k}, v{GA[2]+8*hh+own+k}" for hh in range(2) for k in range(4)])
        S.adds(glu(X, X + 4, 4))
        S.add(f"buffer_store_dwordx2 {v(X,2)}, v{vM16}, {s(SWS,4)}, s{sHF} offen offset:{(1-g)*2048+8*g}" + HM(), kind="misc")
        fin = [(0, C[0], g*1024), (1, C[1], (1+g)*1024)]
    else:
        for b in range(3): S.node(G[15,0,b], cm(CD[b], False)(F))
        for b in range(3): S.adds(publish(CD[b], t0 + 2*b, t0 + 2*b + 1, vCW2, blk[b], "cs"), before="cs")
        fin = [(0, r0[-1], 0), (1, C[1], 1024), (2, C[2], 2048)]
        def loads(m=" sc1"):
            o = [[f"buffer_load_dwordx4 {v(ZZ,4)}, v{vM16}, {s(SWS,4)}, s{sK2} offen sc1"]]
            for p in range(8):
                o.append(([f"s_add_u32 s{sT2}, s{sK1}, 4096"] if p == 4 else []) + [f"buffer_load_dwordx4 {v(LD+4*p,4)}, v{vM16}, {s(SWS,4)}, s{sK1 if p < 4 else sT2} offen offset:{(p%4)*1024}{m}"])
            return o
        L_ = loads("")
        S.add(L_[0], kind="misc", lo=lambda: C[2].idx - CFG["qload"] - CFG["qct"]).R |= {("x", 0)}
        zc = S.add([f"v_cmp_eq_u32 vcc, -1, v{ZZ}", "s_nop 1", f"s_cbranch_vccnz L_{name}_zp{g}", f"LABEL L_{name}_zb{g}"], lo=lambda: C[2].idx - CFG["qload"] - 1)
        zc.W |= {("s", sT1), ("x", 1)}
        for x in L_[1:]: S.add(x, kind="misc", lo=lambda: C[2].idx - CFG["qload"]).R |= {("x", 1)}
    for b, it, off in fin:
        S.node(it, mm(GA[b], vMU, False)(F))
        S.adds(glu(GA[b], GA[b] + 8, 8))
        S.add(f"buffer_store_dwordx4 {v(GA[b],4)}, v{vM16}, {s(SWS,4)}, s{sHF} offen offset:{off}" + HM(), kind="misc")
    def budget(n, it):
        if n < first[8].idx:
            if typ == 1: return CFG["qb"]
            if n < first["v1"].idx - D: return CFG["pb"]
            return CFG["vb"]
        if n < first[15].idx and typ == 0: return CFG["gb"]
        return 6
    S.budget = budget
    S.dbl = lambda n: n >= first[9].idx
    if typ == 1:
        for b in range(1, 9): S.prebar_budget[b] = CFG["qpb"]
    S.prebar_budget["cs"] = 6
    if typ == 0:
        for b in list(range(1, 8)) + ["v1"]: S.prebar_budget[b] = CFG["ppb"]
        for b in ("v3", "v6", 8): S.prebar_budget[b] = CFG.get("vpb", 0)
    S.dump = "dump" in k1.KN
    S.solve(main, ex)
    order = S.order; N = len(order)
    info = [f"typ{typ} g{g} N={N} bars={S.bs} extras={[(e.item.name, e.item.idx) for e in ex]} slots={len(S.slots)-D}"]
    if typ == 0: info.append(f"kvstore@{kvst.slot}")
    print(" ".join(info))
    nst = [1]
    def em(x):
        if x.startswith("LABEL"): P.label(x.split()[1])
        else: emit(P, x)
    for n, it, sm, va, mi in S.slots:
        m_ = n + D
        if m_ < N:
            nx = order[m_]
            if nx.bar is not None:
                P.comment(f"--- barrier {nx.bar}")
                if not ("nowait" in k1.KN and nx.bar != 0):
                    for tg in barwait[nx.bar]: P.wait_vm(tg)
                for tg in barlg.get(nx.bar, []): P.wait_lg(tg)
                I("s_barrier")
                nstamp(P, nx.bar, nst)
            f = FR[m_ % 4]
            rd = []
            for k, ad, im in nx.reads:
                rd.append({"tr": f"ds_read_b64_tr_b16 {v(f,2)}, v{ad} offset:{im}", "tr2": f"ds_read_b64_tr_b16 {v(f+2,2)}, v{ad} offset:{im}",
                           "b128": f"ds_read_b128 {v(f,4)}, v{ad} offset:{im}"}[k])
            for x in nx.pre[:1] + rd + nx.pre[1:]: I(x)
        body = []
        if it is not None:
            f = v(FR[n % 4], 4)
            if it.small: body.append(it.small(f))
            if sm: body += sm.texts
            body.append(it.mf(f))
        elif sm: body += sm.texts
        if "nofill" not in k1.KN or n >= N:
            for o in va: body += o.texts
        if it is not None:
            touch = set()
            for x in body:
                i_ = Ins(x.split("#")[0].strip()); touch |= i_.vr | i_.vw
            P.wait_regs(touch)
        for x in body: em(x)
        for o in mi:
            if "nodma" in k1.KN and any(" lds" in x for x in o.texts): continue
            for x in o.texts: em(x)
        if n == N - 1: nstamp(P, "last", nst)
    if typ == 1:
        nstamp(P, "oph", nst)
        I(f"s_mov_b32 s{sT0}, 0")
        snap = P.snapshot()
        P.label(f"L_{name}_pre{g}")
        for p in range(8): I(f"v_mfma_f32_16x16x32_bf16 {v(DD,4)}, {v(SEL,4)}, {v(LD+4*p,4)}, {'0' if p == 0 else v(DD,4)}")
        I(f"ds_write_b128 v{vTZ}, {v(ZZ,4)} offset:{OT - MB + 1024}")
        I(f"v_mfma_f32_16x16x32_bf16 {v(LD,4)}, {v(SEL,4)}, {v(ZZ,4)}, {v(DD,4)}")
        I(f"v_cvt_pk_bf16_f32 v{LD+4}, v{DD}, v{DD+1}")
        I(f"v_cvt_pk_bf16_f32 v{LD+5}, v{DD+2}, v{DD+3}")
        I(f"ds_write_b64 v{vTW}, {v(LD+4,2)}")
        I(f"v_cmp_u_f32 vcc, v{LD}, v{LD}")
        I("s_nop 1")
        I(f"s_cbranch_vccnz L_{name}_rt{g}")
        P.label(f"L_{name}_go{g}")
        P.wait_lg()
        I("s_barrier")
        AO = 144; DO = [192, 208]
        for rho in range(2):
            for f in range(2): I(f"ds_read_b128 {v(AO+8*rho+4*f,4)}, v{vTR} offset:{rho*2048+16*f}")
        for rho in range(2):
            ph = AK + 8 if rho == 0 else AV
            for f in range(2):
                I(f"v_mfma_f32_32x32x16_bf16 {v(DO[rho],16)}, {v(AO+8*rho+4*f,4)}, {v(ph+4*f,4)}, {'0' if f == 0 else v(DO[rho],16)}")
        for rho in range(2):
            Dd = DO[rho]
            for k in range(4): I(f"v_add_f32 v{Dd+8+k}, v{Dd+8+k}, v{Dd+12+k}")
            I(f"v_add_f32 v{Dd+8}, v{Dd+8}, v{Dd+9}")
            I(f"v_add_f32 v{Dd+10}, v{Dd+10}, v{Dd+11}")
            I(f"v_add_f32 v{Dd+8}, v{Dd+8}, v{Dd+10}")
            I(f"v_mov_b32 v{Dd+9}, v{Dd+8}")
            I(f"v_permlane32_swap_b32 v{Dd+8}, v{Dd+9}")
            I(f"v_add_f32 v{Dd+8}, v{Dd+8}, v{Dd+9}")
            I(f"v_add_f32 v{Dd+8}, {fbits(1e-6)}, v{Dd+8}")
            I(f"v_rcp_f32 v{Dd+8}, v{Dd+8}")
            for k in range(8): I(f"v_mul_f32 v{Dd+k}, v{Dd+k}, v{Dd+8}")
            for k in range(4): I(f"v_cvt_pk_bf16_f32 v{Dd+k}, v{Dd+2*k}, v{Dd+2*k+1}")
            I(f"buffer_store_dwordx4 {v(Dd,4)}, v{vM16}, {s(SWS,4)}, s{sEX} offen offset:{rho*1024}" + HM())
    while nst[0] < 18: nstamp(P, "-", nst)
    P.comment(f"STAMPS {typ}{g} " + " ".join(nst[1:]) + " end")
    dump_stamps(P, 19, SWS, sW, 8, sT0)
    I("s_endpgm")
    if typ == 1:
        P.restore(([], [], [], False))
        P.label(f"L_{name}_cp{g}")
        I(f"s_mov_b32 s{sT1}, 0")
        P.label(f"L_{name}_cl{g}")
        I("s_sleep 16")
        I(f"buffer_load_dword v{vCT}, off, {s(SDB,4)}, s{sT2} sc1")
        I(f"s_add_u32 s{sT1}, s{sT1}, 1")
        I(f"v_readfirstlane_b32 s{sT3}, v{vCT}")
        I(f"s_cmp_ge_u32 s{sT3}, 16")
        I(f"s_cbranch_scc1 L_{name}_cb{g}")
        I(f"s_cmp_lt_u32 s{sT1}, 30000")
        I(f"s_cbranch_scc1 L_{name}_cl{g}")
        I(f"s_branch L_{name}_cb{g}")
        P.restore(([], [], [], False))
        P.label(f"L_{name}_zp{g}")
        I(f"s_mov_b32 s{sT1}, 0")
        P.label(f"L_{name}_zl{g}")
        I(f"s_sleep {CFG.get('zsl', 4)}")
        I(loads()[0][0])
        I(f"s_add_u32 s{sT1}, s{sT1}, 1")
        I(f"v_cmp_eq_u32 vcc, -1, v{ZZ}")
        I("s_nop 1")
        I(f"s_cbranch_vccz L_{name}_zb{g}")
        I(f"s_cmp_lt_u32 s{sT1}, 30000")
        I(f"s_cbranch_scc1 L_{name}_zl{g}")
        I(f"s_branch L_{name}_zb{g}")
        P.restore(([], [], [], False))
        P.label(f"L_{name}_rt{g}")
        I(f"s_add_u32 s{sT0}, s{sT0}, 1")
        I(f"s_cmp_ge_u32 s{sT0}, 30000")
        I(f"s_cbranch_scc1 L_{name}_go{g}")
        I("s_waitcnt lgkmcnt(0)")
        for x in loads():
            for y in x: I(y)
        I("s_waitcnt vmcnt(0)")
        I(f"s_branch L_{name}_pre{g}")

def gen_k1(name):
    P = Prog()
    P.raw(f".globl {name}\n.p2align 8\n.type {name},@function\n{name}:")
    prologue(P, name)
    snap = P.snapshot()
    for k in range(4):
        P.restore(snap)
        if k: P.raw(".p2align 6"); P.label(f"L_{name}_r{k}")
        stream(P, k >> 1, k & 1, name)
    P.label(f"L_{name}_end")
    P.I("s_endpgm")
    return P
```

```python
from asmlib import Ins, TRANS
THREE = ("v_fma_", "v_fmac_", "v_max3", "v_min3", "v_add3", "v_lshl_add", "v_lshl_or", "v_and_or", "v_or3", "v_mad", "v_cndmask", "v_perm_b32", "v_bfi", "v_add_lshl", "v_xad")
SCC = 1000
class Op:
    def __init__(self, texts, tag=None, after=None, before=None, lo=None, hi=None, item=None, lat=None, kind=None, ok=None, cost=None, first=False):
        if isinstance(texts, str): texts = [texts]
        self.texts = texts; self.tag = tag; self.after = after; self.before = before
        self.first = first; self.ok = ok; self.lo = lo; self.hi = hi; self.item = item; self.lat = lat
        self.R = set(); self.W = set()
        cl = []
        for t in texts:
            if t.startswith("LABEL"): continue
            i = Ins(t.split("#")[0].strip())
            self.R |= {("v", r) for r in i.vr} | {("s", r) for r in i.sr}
            self.W |= {("v", r) for r in i.vw} | {("s", r) for r in i.sw if r not in (126, 127)}
            if i.op.startswith("v_cndmask") and "vcc" not in t: pass
            cl.append(i)
        i = cl[-1]
        if kind: self.kind = kind
        elif len(texts) == 1 and i.cls in ("valu", "trans"): self.kind = "valu"
        elif len(texts) == 1 and i.cls == "mfma": self.kind = "big" if i.passes == 8 else "small"
        else: self.kind = "misc"
        self.cost = cost if cost is not None else (2 if i.cls == "trans" else 1)
        self.trans = i.cls == "trans"
        self.three = i.op.startswith(THREE)
        self.nds = sum(1 for x in cl if x.cls == "ds"); self.nvm = sum(1 for x in cl if x.cls == "vmem")
        self.dsr = any(x.cls == "ds" and x.vw for x in cl)
        self.vml = any(x.cls == "vmem" and x.vw for x in cl)
        self.slot = None; self.deps = []
    def __repr__(self): return f"<{self.kind} {self.texts[-1]} @{self.slot}>"

class Item:
    def __init__(self, mf=None, reads=(), small=None, bar=None, pre=(), name="", needbar=None):
        self.mf = mf; self.reads = list(reads); self.small = small; self.bar = bar; self.pre = list(pre); self.name = name
        self.needbar = needbar; self.idx = None

def latency(p, raw):
    if p.lat is not None and raw: return p.lat
    if p.kind == "big": return 2 if raw else 0
    if p.kind == "small": return 1 if raw else 0
    if raw and p.dsr: return 2
    if raw and p.vml: return 8
    return 0

class Sched:
    def __init__(self, D=3):
        self.D = D; self.items = []; self.ops = []; self.budget = lambda n, it: 6
        self.prebar_budget = {}; self.dbl = lambda n: False
    def add(self, *a, **k):
        o = Op(*a, **k); self.ops.append(o); return o
    def adds(self, lst, **k): return [self.add(t, **k) for t in lst]
    def node(self, item, text, kind=None):
        o = Op(text, item=item, kind=kind); self.ops.append(o); return o
    def mkdeps(self):
        lastw = {}; readers = {}
        for o in self.ops:
            d = {}
            for r in o.R | o.W:
                if r in lastw: d[id(lastw[r])] = (lastw[r], r[0] == "v" or d.get(id(lastw[r]), (0, False))[1])
            for r in o.W:
                for q in readers.get(r, ()):
                    if id(q) not in d: d[id(q)] = (q, False)
            o.deps = [(p, latency(p, raw)) for p, raw in d.values() if p is not o]
            for r in o.R: readers.setdefault(r, []).append(o)
            for r in o.W: lastw[r] = o; readers[r] = []
    def res(self, x):
        if x is None: return None
        if callable(x): return x()
        if isinstance(x, tuple): return x[0].idx + x[1]
        return x
    def run(self, order):
        D = self.D
        for it in self.items_all: it.idx = None
        for n, it in enumerate(order): it.idx = n
        self.bs = {it.bar: n - D for n, it in enumerate(order) if it.bar is not None}
        pre = {b - 1: k for k, b in self.bs.items()}
        for o in self.ops: o.slot = o.item.idx if o.item is not None else None
        pend = [o for o in self.ops if o.item is None]
        for o in pend:
            l = -99
            if o.after is not None: l = max(l, self.bs[o.after])
            if o.lo is not None: l = max(l, self.res(o.lo))
            o._lo = l
        N = len(order); slots = []
        def ready(o, n):
            if o._lo > n or (o.ok is not None and not o.ok(n)): return False
            for p, l in o.deps:
                if p.slot is None or p.slot + l > n: return False
            return True
        n = -D; idle = 0
        while n < N or (pend and idle < 12):
            sm = None; va = []; mi = []
            it = order[n] if 0 <= n < N else None
            if n >= 0 and (it is None or it.small is None or self.dbl(n)):
                for o in pend:
                    if o.kind == "small" and ready(o, n) and all(p.slot < n for p, l in o.deps):
                        sm = o; o.slot = n; pend.remove(o); break
            if n < 0: B = 0
            elif it is None: B = 8
            elif n in pre: B = self.prebar_budget.get(pre[n], 0)
            else: B = self.budget(n, it)
            used = 0
            if B:
                for o in pend:
                    if o.first and ready(o, n) and all(p.slot < n for p, l in o.deps):
                        o.slot = n; pend.remove(o); va.append(o); used += o.cost; break
            while used < B:
                c = None; fb = None
                for o in pend:
                    if o.kind != "valu" or o.first or not ready(o, n): continue
                    bad = (o.three and used < 2 and it is not None) or (va and va[-1].trans and not o.trans and (va[-1].W & o.R))
                    if used + o.cost > B: continue
                    if not bad: c = o; break
                    if fb is None: fb = o
                if c is None:
                    if fb is None: break
                    c = fb
                    pen = max(used, 2) if c.three else used + 1
                    if pen + c.cost > B: break
                    used = pen
                c.slot = n; pend.remove(c); va.append(c); used += c.cost
            nds = nvm = 0
            for o in list(pend):
                if o.kind != "misc" or not ready(o, n): continue
                if it is not None or n < 0:
                    if o.nds and nds + o.nds > (4 if o.nds == 2 else 2): continue
                    if o.nvm and nvm: continue
                o.slot = n; pend.remove(o); mi.append(o); nds += o.nds; nvm += o.nvm
            slots.append((n, it, sm, va, mi))
            if n >= N: idle = 0 if (sm or va or mi) else idle + 1
            n += 1
        self.slots = slots; self.left = pend
    def ok_item(self, o):
        n = o.item.idx
        for p, l in o.deps:
            if p.slot is None or p.slot + max(l, 1) > n:
                if p.item is not None and p.slot is not None and p.slot < n: continue
                return False
        if o.item.needbar is not None and n - self.D < self.bs[o.item.needbar]: return False
        return True
    def solve(self, main, extras):
        self.items_all = list(main) + [e.item for e in extras]
        self.mkdeps()
        order = list(main); prev = None
        for e in extras:
            self.run(order)
            n = max([p.slot + (1 if p.item is not None else max(l, 1)) for p, l in e.deps] + [0])
            if e.item.needbar is not None: n = max(n, self.bs[e.item.needbar] + self.D + 1)
            n -= 2
            if prev is not None: n = max(n, prev.idx + 1)
            prev = e.item
            while True:
                o2 = order[:n] + [e.item] + order[n:]
                self.run(o2)
                if self.ok_item(e): break
                n += 1
                assert n <= len(order) + 1, ("cannot place", e)
            order = o2
        self.run(order)
        if getattr(self, "dump", False):
            for n, it, sm, va, mi in self.slots:
                print(n, it.name if it else "-", "s" if (sm or (it and it.small)) else " ", "B" if n in self.bs.values() else " ", sum(o.cost for o in va), " ".join(o.texts[0].split()[0][2:].replace("_f32","").replace("_b32","").replace("_u32","") for o in va), "|", " ".join([x for x in o.texts if not x.startswith("s_")][-1].split()[0] if any(not x.startswith("s_") for x in o.texts) else "salu" for o in mi))
        assert not self.left, self.left[:5]
        for o in self.ops:
            if o.item is not None: assert self.ok_item(o), ("item dep violated", o, [(p, l) for p, l in o.deps])
            if o.before is not None: assert o.slot < self.bs[o.before], ("before", o, o.before, self.bs[o.before])
            if o.hi is not None: assert o.slot <= self.res(o.hi), ("hi", o, self.res(o.hi))
        self.order = order
```

```python
import sys, ast
import k1, k1c, k2
from gen import build
args = sys.argv[1:]
out = args[0]; fl = set(a for a in args[1:] if "=" not in a)
k1.KN = fl
k1.PROF = "prof" in fl
D = 8
for f in args[1:]:
    if "=" in f:
        k, val = f.split("=", 1)
        if k == "D": D = int(val)
        elif k == "rot": k1c.CFG[k] = val
        elif k == "hm": k1c.CFG[k] = " " + val
        else: k1c.CFG[k] = eval(val)
P1 = k1c.gen_k1("k1_kernel")
k1.PROF_ADD = 0x80000
P2, lds2, nv2 = k2.gen_k2("k2_kernel", D, k1c.HF_OFF)
print(P1.count, P1.nnop, P2.count, P2.nnop, lds2, nv2)
build([("k1_kernel", P1, 256, 512, k1.LDS_BYTES, 256), ("k2_kernel", P2, 256, 256, lds2, nv2)], out)
```

```python
from asmlib import Prog, Ins, v, s
from sched import Sched, Item, Op
import k1
from k1 import fbits, LOG2E, stamp, pstamp, dump_stamps

MB = 122880
HF_OFF = MB
KVP_OFF = 0xC00000
WS_BYTES = 0x1000000
PH = 103040; OT = 106688; CSP = 156288
FLG = 0xD00000
LDS_BYTES = 163840
SDB, SX, SWQ, SWG, SWU, SWS, SWP, SWO, SWD = 4, 8, 12, 16, 20, 24, 28, 44, 48
sW, sT, sA, sTY, sR, sI, sMX, sMW, sMG, sC, sO1, sO2 = range(32, 44)
sHF, sK1, sK2, sHI, sT0, sT1, sT2, sT3 = range(52, 60)
sI4, sEX = 3, 35
sFL = sT; SOUT = SWQ
sHQ, sHO, sHK, sFR = range(SWP, SWP + 4)
sXO, sRB = 0, 1
sXV, sMD = 100, 101
vM16 = 0; vGO = [1, 2, 3]; vAG = [4, 5, 6, 7]; vMU = 8; CP = 12; CD = [16, 18, 20]
vC1, vSTD, vRS, vWF, vPH, vKA, vKB, vSM = range(24, 32)
vMX = vRS
FR = [32, 36, 40, 44]
AK, AV = 48, 64
GA = [80, 96, 112]
vXO, vWO, vLN, vST, vSQ = 80, 81, 82, 83, 84
vU = [85, 86, 87, 88]
vSTW, vSTR, vWPV, vWPA, vTCH, vCW = 89, 90, 91, 92, 93, 94
vAX = [[96, 97, 98, 99], [100, 101, 102, 103]]
vAA = [[104, 105, 106, 107], [108, 109, 110, 111]]
def XR(i, p): return 128 + (4 * i + p) * 4
CFG = dict(gb=6, pb=8, ppb=8, vb=6, paceg=1, b0end=1, pro=3, pace=0, tch=13, gt=0, rot="a", acc2=1, hstag=0, ns=([2]*8, [2]*8), phbar=(9, 10), qload=8, b0=8, hm=" sc1", qb=6, qpb=6, qpub=9,
           vdm={4: [0], 5: [1, 2], 6: [3, 4, 5], 7: [6, 7]}, g8=7, sq=[[0], [1], [2, 3], [4], [5], [6], [7], []], wc=0, qct=14, sq7=1, v1=(0, 2), skip=(3, 5, "v3", "ph", 12))
CFG.update(zd=12, rot="f", thl=((8, 9, 10), (8, 8, 9, 9, 10)), tho=0, th=8, thb=4, xm=1, fm=" sc1", tch=6, phbar=(9, 2), vpb=6, vb=7, gb=7, qload=0, qct=10, zsl=8, fsl=4, wb=(10, 10), wl=10, wg=2, f1=(0, 9, 0), f2=3, s1=12, atm=(7, 6, 2, -9),
           skip=(1, 2, 3, 4, 5, 6, 7, "v1", "v3", "v6", "ph", 9, 10, 11, 12, 15),
           qo=("S2:h1 T1", "D14"),
           p2=("Tp2 B S2:h0 Ts2 Cq3 Tq3 L0 L1 L2 L3 L4 L5 F S3:h1 Ts3 M0 M1 M2 X12 X13 M3 X14 Tm3 Cq4 Tq4 L6 L7 L8 L9 F M4 M5 Ck2 Tk2 L10 L11 L12 F x M6 M7 M8 M9 Tm9 Ck3 Tk3 L13 L14 M10 M11 M12 M13 M14 Td",
               "Tp2 S3:h2 F S4:ho Ts4 Cq3 Tq3 L0 L1 L2 L3 L4 L5 F M0 M1 X10 X11 M2 M3 X12 X13 Tm3 Cq4 Tq4 L6 L7 L8 L9 F M4 M5 X14 Ck2 Tk2 L10 L11 L12 F x M6 M7 M8 M9 Ck3 Tk3 L13 L14 M10 M11 M12 M13 M14 Td"))
STN = []
def nstamp(P, nm, nst):
    if nm in CFG["skip"]: return
    if nst[0] < 18: stamp(P, nst[0]); nst[0] += 1; nst.append(str(nm))
def HM(): return CFG["hm"]

class T:
    def __init__(s, typ):
        s.typ = typ
        s.RB = 192 if typ else 160; s.NP = 12 if typ else 10; s.MUL = 171 if typ else 205
        s.UP = 64 * s.RB + (32 if typ else 128); s.SL = 2 * 64 * s.RB + (64 if typ else 128)
        s.XB = (0, 3 * s.SL) if typ else (20608, 103040)
        s.WB = (16384, 16384 + 3 * s.SL) if typ else (12416, 82432)
        s.ST = 131072 if typ else 98816
        s.WPH = CSP + 2048 if typ else 152192
        s.RG = [0, 16384, 32768, 49152] + ([73920, 90304, 123200, 139584] if typ else [65536, PH, PH + 16384, PH + 32768])
    def xp(s, st): return ((st + 2) % 5) * s.SL if s.typ else (20608, 41216, 119424, 103040, 66048, 82432, 119424, 103040)[st]
    def wp(s, st): return s.xp(st) + 16384 if s.typ else (12416, 57600, 144000, 135808)[st % 4]
    def vp(s, c): return (20608, 41216, 66048, 82432)[c >> 1] + 8192 * (c & 1)
    def sp(s, o, B):
        hi = int(o >= B[1]); assert 0 <= o - B[hi] <= 65000; return hi, o - B[hi]
    def g(s, st): return ((st - 8) % 5) * s.SL

def dma_x(t, st):
    return [[f"s_add_u32 s{sC}, s{sR}, {st}", f"s_and_b32 s{sC}, s{sC}, 7", f"s_add_u32 m0, s{sMX}, {t.xp(st)}", f"s_lshl_b32 s{sO1}, s{sC}, 7",
             f"buffer_load_dwordx4 v{vXO}, {s(SX,4)}, s{sO1} offen lds #x{st}"],
            [f"s_add_u32 s{sO1}, s{sO1}, {16384 - 2048}", f"buffer_load_dwordx4 v{vXO}, {s(SX,4)}, s{sO1} offen offset:2048 lds #x{st}"]]
def dma_w(t, st):
    o = [[f"s_add_u32 s{sC}, s{sR}, {st}", f"s_and_b32 s{sC}, s{sC}, 7", f"s_add_u32 m0, s{sMW}, {t.wp(st)}", f"s_mul_i32 s{sO2}, s{sC}, {64*3072}",
          f"buffer_load_dwordx4 v{vWO}, {s(SWQ,4)}, s{sO2} offen lds #w{st}"]]
    return o
def dma_v(t, c):
    return [[f"s_add_u32 s{sC}, s{sR}, {c}", f"s_and_b32 s{sC}, s{sC}, 7", f"s_add_u32 m0, s{sMW}, {t.vp(c) - 1024}", f"s_mul_i32 s{sO2}, s{sC}, {64*3072}",
          f"buffer_load_dwordx4 v{vWO}, {s(SWQ,4)}, s{sO2} offen offset:1024 lds #v{c}"]]
def dma_g(t, g, st):
    S = s(SWU if g else SWG, 4)
    m = [f"s_add_u32 m0, s{sMG}, {t.g(st)}"] if st >= 12 else []
    o = [[f"s_add_u32 s{sC}, s{sR}, {st}", f"s_and_b32 s{sC}, s{sC}, 7", f"s_add_u32 m0, s{sMG}, {t.g(st)}", f"s_mul_i32 s{sO2}, s{sC}, {64*2752}",
          f"buffer_load_dwordx4 v{vGO[0]}, {S}, s{sO2} offen lds #w{st}"],
         m + [f"buffer_load_dwordx4 v{vGO[1]}, {S}, s{sO2} offen offset:1024 lds #w{st}"]]
    l = f"buffer_load_dwordx4 v{vGO[2]}, {S}, s{sO2} offen offset:2048 lds #w{st}"
    o.append(m + ([l] if t.typ else ["s_mov_b32 exec_hi, 0", l, "s_mov_b32 exec_hi, -1"]))
    return o

def stream_list(t, g):
    o = []
    for st in range(1, 8): o += [dma_x(t, st), dma_w(t, st)]
    return o

def emit(P, t):
    tag = None
    if "#" in t: t, tag = t.split("#"); t = t.strip()
    P.I(t, tag)

def prologue(P, name):
    I = P.I
    stamp(P, 0)
    I("s_cmp_ge_u32 s2, 256")
    I(f"s_cbranch_scc1 L_{name}_end")
    I(f"s_load_dwordx4 s[8:11], s[0:1], 0")
    I(f"v_lshrrev_b32 v1, 6, v0")
    I(f"v_and_b32 v{vLN}, 63, v0")
    I(f"v_readfirstlane_b32 s{sW}, v1")
    I(f"s_and_b32 s{sT0}, s2, 1")
    I(f"s_bfe_u32 s{sT1}, s2, 0x30003")
    I(f"s_lshl3_add_u32 s{sT}, s{sT0}, s{sT1}")
    I(f"s_lshr_b32 s{sT2}, s2, 6")
    I(f"s_and_b32 s{sT0}, s2, 6")
    I(f"s_and_b32 s{sT1}, s{sT2}, 1")
    I(f"s_add_u32 s{sA}, s{sT0}, s{sT1}")
    I(f"s_lshl1_add_u32 s{sR}, s{sT2}, s{sT}")
    rot = CFG["rot"]
    if CFG["xm"]:
        I(f"s_and_b32 s{sT0}, s2, 7")
        I(f"s_bfe_u32 s{sT1}, s2, 0x10006")
        I(f"s_lshl1_add_u32 s{sT}, s{sT0}, s{sT1}")
        I(f"s_bfe_u32 s{sA}, s2, 0x30003")
        if rot[0] == "e": I(f"s_mov_b32 s{sR}, s{sT0}")
        if rot[0] == "f": I(f"s_add_u32 s{sR}, s{sT0}, s{sA}")
        if rot[0] == "g": I(f"s_lshl2_add_u32 s{sR}, s{sT1}, s{sT0}")
        if rot[0] == "h": I(f"s_lshl1_add_u32 s{sR}, s{sT2}, s{sT0}")
        if rot[0] == "i": I(f"s_lshl2_add_u32 s{sR}, s{sT1}, s{sT0}"); I(f"s_add_u32 s{sR}, s{sR}, s{sA}")
    if rot[0] == "b": I(f"s_add_u32 s{sR}, s{sT2}, s{sT}"); I(f"s_lshl_b32 s{sR}, s{sR}, 1")
    if rot[0] == "c": I(f"s_add_u32 s{sR}, s{sT2}, s{sT}"); I(f"s_lshl_b32 s{sR}, s{sR}, 2")
    if rot[0] == "d": I(f"s_mov_b32 s{sR}, 0")
    if rot[1:] == "x": I(f"s_add_u32 s{sR}, s{sR}, s2")
    if rot[1:] == "y": I(f"s_lshr_b32 s{sC}, s2, 1"); I(f"s_add_u32 s{sR}, s{sR}, s{sC}"); I(f"s_and_b32 s{sC}, s2, 1"); I(f"s_lshl1_add_u32 s{sR}, s{sC}, s{sR}")
    if rot[1:] == "z": I(f"s_add_u32 s{sR}, s{sR}, s{sT0}"); I(f"s_and_b32 s{sC}, s2, 1"); I(f"s_lshl2_add_u32 s{sR}, s{sC}, s{sR}")
    I(f"v_lshrrev_b32 v2, 4, v{vLN}")
    I(f"v_lshrrev_b32 v3, 3, v{vLN}")
    I(f"v_and_b32 v4, 7, v{vLN}")
    I(f"s_and_b32 s{sT0}, s{sW}, 1")
    I(f"s_lshr_b32 s{sT1}, s{sW}, 1")
    I(f"s_lshl2_add_u32 s{sT1}, s{sT1}, s{sT0}")
    I(f"s_lshl_b32 s{sMX}, s{sT1}, 10")
    I(f"s_lshl4_add_u32 s{sT1}, s{sT}, s{sT1}")
    I(f"s_lshl_b32 s{sT1}, s{sT1}, 13")
    I(f"s_lshl_b32 s{sT0}, s{sT0}, 2")
    I(f"v_or_b32 v5, s{sT0}, v2")
    I(f"v_xor_b32 v5, v5, v4")
    I(f"v_lshlrev_b32 v5, 4, v5")
    I(f"v_lshl_add_u32 v5, v3, 10, v5")
    I(f"v_add_u32 v{vXO}, s{sT1}, v5")
    I(f"s_lshl_b32 s{sMW}, s{sW}, 10")
    I(f"s_mul_i32 s{sT0}, s{sW}, {8*3072}")
    I(f"s_lshl_b32 s{sT1}, s{sA}, 7")
    I(f"s_add_u32 s{sT0}, s{sT0}, s{sT1}")
    I(f"s_and_b32 s{sC}, s{sR}, 7")
    I(f"s_lshl_b32 s{sO1}, s{sC}, 7")
    I(f"s_mul_i32 s{sO2}, s{sC}, {64*3072}")
    I(f"s_cmp_lt_u32 s2, 128")
    I(f"s_cselect_b32 s{sT1}, 1024, 0")
    I(f"s_cselect_b32 s{sT3}, 0, {T(1).xp(0) - T(0).xp(0)}")
    I(f"s_cselect_b32 s{sT2}, 0, {T(1).wp(0) - T(0).wp(0)}")
    I(f"s_add_u32 s{sT3}, s{sT3}, {T(0).xp(0)}")
    I(f"s_add_u32 s{sT2}, s{sT2}, {T(0).wp(0)}")
    I(f"s_add_u32 s{sT0}, s{sT0}, s{sT1}")
    I(f"v_and_b32 v5, 1, v2")
    I(f"v_lshlrev_b32 v5, 2, v5")
    I(f"v_xor_b32 v5, v5, v4")
    I(f"v_lshlrev_b32 v5, 4, v5")
    I(f"v_mul_u32_u24 v6, 3072, v3")
    I(f"v_add3_u32 v{vWO}, v5, v6, s{sT0}")
    I(f"s_add_u32 m0, s{sMX}, s{sT3}")
    I(f"s_add_u32 s{sT1}, s{sO1}, {16384 - 2048}")
    I(f"s_mov_b32 s{SWQ+2}, {512*3072}")
    I(f"s_mov_b32 s{SWQ+3}, 0x20000")
    pstamp(P, 1)
    I("s_waitcnt lgkmcnt(0)")
    pstamp(P, 2)
    I(f"s_mov_b32 s{SWQ}, s10")
    I(f"s_mov_b32 s{SWQ+1}, s11")
    I(f"s_mov_b32 s{SX+2}, 2097152")
    I(f"s_mov_b32 s{SX+3}, 0x20000")
    I(f"buffer_load_dwordx4 v{vXO}, {s(SX,4)}, s{sO1} offen lds", "x0")
    I(f"buffer_load_dwordx4 v{vXO}, {s(SX,4)}, s{sT1} offen offset:2048 lds", "x0")
    I(f"s_add_u32 m0, s{sMW}, s{sT2}")
    I(f"buffer_load_dwordx4 v{vWO}, {s(SWQ,4)}, s{sO2} offen lds", "w0")
    for r, o in ((SWP, 16), (SWG, 40), (SWU, 48), (SWS, 80), (SDB, 72), (SWO, 24), (SWD, 56), (SWO + 2, 64)):
        I(f"s_load_dwordx2 {s(r,2)}, s[0:1], {o}")
    pstamp(P, 3)
    I(f"s_and_b32 s{sI}, s{sW}, 3")
    I(f"s_lshr_b32 s{sT0}, s{sW}, 2")
    I(f"s_lshr_b32 s{sT1}, s2, 7")
    I(f"s_lshl1_add_u32 s{sT0}, s{sT1}, s{sT0}")
    for k in (1, 2, 3):
        I(f"s_cmp_eq_u32 s{sT0}, {k}")
        I(f"s_cbranch_scc1 L_{name}_r{k}")

def setup(P, t, g):
    I = P.I; typ = t.typ
    a, b, c, d, h, sb, r, sw, row, j4 = range(112, 122)
    for R, n in ((SWP, 16384), (SWG, 512*2752), (SWU, 512*2752), (SWS, WS_BYTES), (SDB, 256), (SWD, 1376*1024)):
        if R == (SWG if g else SWU): continue
        I(f"s_mov_b32 s{R+2}, {n}")
        I(f"s_mov_b32 s{R+3}, 0x20000")
    I(f"s_mov_b32 s{sHI}, 0xffff0000")
    I(f"s_getreg_b32 s{sXV}, hwreg(HW_REG_XCC_ID, 0, 4)")
    I(f"s_mul_i32 s{sMD}, s{sXV}, s{sXV}")
    I(f"s_lshl_b32 s{sMD}, s{sMD}, 9")
    I(f"s_add_u32 s{sXV}, s{sXV}, s{sMD}")
    I(f"s_lshl_b32 s{sXV}, s{sXV}, 8")
    I(f"s_add_u32 s{sXV}, s{sXV}, 1")
    I(f"s_lshl_b32 s{sI4}, s{sI}, 2")
    I(f"v_mov_b32 v{j4}, v2")
    I(f"v_lshrrev_b32 v{h}, 5, v{vLN}")
    I(f"v_and_b32 v{sb}, 1, v2")
    I(f"v_bfe_u32 v{r}, v{vLN}, 2, 2")
    I(f"v_bfe_u32 v{a}, v{vLN}, 1, 1")
    I(f"v_and_b32 v{b}, 1, v{vLN}")
    I(f"v_lshl_or_b32 v{sw}, v{b}, 1, v{a}")
    I(f"v_lshlrev_b32 v{sw}, 3, v{sw}")
    I(f"v_lshl_add_u32 v{row}, v{h}, 3, v{r}")
    I(f"v_lshl_or_b32 v{c}, v{sb}, 1, v{a}")
    I(f"v_lshlrev_b32 v{c}, 3, v{c}")
    I(f"v_lshl_add_u32 v{c}, v{row}, 5, v{c}")
    I(f"v_lshl_add_u32 v{c}, v{b}, 11, v{c}")
    I(f"v_add_u32 v{vWF}, {t.WPH + g*1024}, v{c}")
    if typ == 0:
        I(f"v_bfe_u32 v{c}, v{vLN}, 2, 3")
        I(f"v_lshl_add_u32 v{c}, v{h}, 4, v{c}")
        I(f"v_mul_u32_u24 v{c}, 96, v{c}")
        I(f"v_lshl_add_u32 v{c}, v{b}, 3, v{c}")
        I(f"s_lshr_b32 s{sT0}, s{sI}, 1")
        I(f"s_mul_i32 s{sT0}, s{sT0}, 12288")
        I(f"s_add_u32 s{sT0}, s{sT0}, {PH + 2*g*12288}")
        I(f"s_and_b32 s{sT1}, s{sI}, 1")
        I(f"s_lshl_b32 s{sT1}, s{sT1}, 5")
        I(f"s_add_u32 s{sT1}, s{sT1}, s{sT0}")
        I(f"v_xor_b32 v{d}, v{a}, v{sb}")
        I(f"v_lshlrev_b32 v{d}, 4, v{d}")
        I(f"v_add3_u32 v{vKA}, v{c}, v{d}, s{sT1}")
    I(f"v_and_b32 v{b}, 2, v{r}")
    I(f"v_or_b32 v{b}, v{b}, v{sb}")
    I(f"v_lshl_add_u32 v{b}, v{b}, 5, v{sw}")
    I(f"v_lshl_add_u32 v{b}, v{row}, 7, v{b}")
    I(f"s_lshl_b32 s{sT0}, s{sI}, 11")
    if g: I(f"s_add_u32 s{sT0}, s{sT0}, 64")
    I(f"v_xor_b32 v{vAA[0][0]}, s{sT0}, v{b}")
    I(f"v_and_b32 v{a}, 31, v{vLN}")
    I(f"v_bfe_u32 v{b}, v{vLN}, 1, 3")
    I(f"v_xor_b32 v{b}, v{b}, v{h}")
    I(f"v_lshlrev_b32 v{b}, 4, v{b}")
    I(f"v_lshl_add_u32 v{b}, v{a}, 7, v{b}")
    I(f"s_mul_i32 s{sT0}, s{sI}, {4096 + 32}")
    I(f"v_xor_b32 v{vAX[0][0]}, s{sT0}, v{b}")
    for p in range(1, 4):
        I(f"v_xor_b32 v{vAX[0][p]}, {p*32}, v{vAX[0][0]}")
        I(f"v_xor_b32 v{vAA[0][p]}, {p*2048}, v{vAA[0][0]}")
    for p in range(4):
        I(f"v_add_u32 v{vAX[1][p]}, {t.XB[1]}, v{vAX[0][p]}")
        I(f"v_add_u32 v{vAA[1][p]}, {t.WB[1]}, v{vAA[0][p]}")
        if t.XB[0]: I(f"v_add_u32 v{vAX[0][p]}, {t.XB[0]}, v{vAX[0][p]}")
        I(f"v_add_u32 v{vAA[0][p]}, {t.WB[0]}, v{vAA[0][p]}")
    I(f"s_lshl_b32 s{sT0}, s{sI}, 9")
    I(f"s_add_u32 s{sT0}, s{sT0}, {t.ST}")
    I(f"v_lshlrev_b32 v{b}, 4, v{a}")
    I(f"v_add_u32 v{vSTR}, s{sT0}, v{b}")
    I(f"v_lshl_add_u32 v{vSTW}, v{h}, 2, v{vSTR}")
    I(f"v_lshl_add_u32 v{vSTW}, v{sb}, 3, v{vSTW}")
    if g: I(f"v_xor_b32 v{vSTW}, 8, v{vSTW}")
    if typ == 0:
        I(f"v_mul_u32_u24 v{b}, 96, v{a}")
        I(f"v_and_b32 v{c}, 4, v{a}")
        I(f"v_lshlrev_b32 v{c}, 2, v{c}")
        I(f"s_mul_i32 s{sT0}, s{sI}, 3072")
        I(f"s_add_u32 s{sT0}, s{sT0}, {PH + 2*g*12288}")
        I(f"v_add3_u32 v{b}, v{b}, v{c}, s{sT0}")
        I(f"v_lshl_add_u32 v{vPH}, v{h}, 5, v{b}")
        I(f"v_lshlrev_b32 v{c}, 4, v{h}")
        I(f"v_xor_b32 v{vKB}, v{b}, v{c}")
    I(f"v_mul_u32_u24 v{b}, {t.RB}, v{row}")
    I(f"v_mul_u32_u24 v{c}, {t.UP}, v{sb}")
    I(f"v_add3_u32 v{b}, v{b}, v{c}, v{sw}")
    for p in range(4):
        I(f"s_xor_b32 s{sT0}, s{sI}, {p}")
        I(f"s_mul_i32 s{sT0}, s{sT0}, {16*t.RB}")
        I(f"v_add_u32 v{vAG[p]}, s{sT0}, v{b}")
    I(f"s_mul_i32 s{sMG}, s{sI}, {16*t.RB}")
    if g: I(f"s_add_u32 s{sMG}, s{sMG}, {t.UP}")
    if typ == 0:
        I(f"s_mul_i32 s{sT2}, s{sA}, 5")
        I(f"s_min_u32 s{sT2}, s{sT2}, 33")
        I(f"s_add_u32 s{sT2}, s{sT2}, 48")
    else: I(f"s_mul_i32 s{sT2}, s{sA}, 6")
    I(f"s_mul_i32 s{sT0}, s{sI}, {16*2752}")
    I(f"s_lshl_b32 s{sT1}, s{sT2}, 5")
    I(f"s_add_u32 s{sT0}, s{sT0}, s{sT1}")
    I(f"s_mov_b32 s{sT1}, {2752 - 16*t.NP}")
    I(f"v_lshlrev_b32 v{a}, 4, v{vLN}")
    I(f"v_add_u32 v{vM16}, {MB}, v{a}")
    I(f"v_add_u32 v{a}, s{sT0}, v{a}")
    I(f"v_mul_u32_u24 v{b}, {t.MUL}, v{vLN}")
    for j in range(3):
        if j: I(f"v_add_u32 v{b}, {64*t.MUL}, v{b}")
        I(f"v_lshrrev_b32 v{c}, 11, v{b}")
        I(f"v_mad_u32_u24 v{vGO[j]}, v{c}, s{sT1}, v{a}")
    I(f"v_and_b32 v{a}, 15, v{vLN}")
    I(f"v_lshlrev_b32 v{b}, 2, v{j4}")
    I(f"v_mov_b32 v{c}, 0x3f803f80")
    I(f"v_cmp_eq_u32 vcc, v{a}, v{b}")
    for k in range(4): I(f"v_cndmask_b32 v{CP+k}, 0, v{c}, vcc")
    I(f"v_xor_b32 v{b}, s{sI4}, v{b}")
    I(f"v_or_b32 v{vCW}, v{b}, v{vM16}")
    I(f"s_lshl2_add_u32 s{sT0}, s{sT}, s{sI}")
    I(f"s_mul_i32 s{sT0}, s{sT0}, 118")
    I(f"s_add_u32 s{sT1}, s{sT0}, s{sT2}")
    I(f"s_add_u32 s{sT1}, s{sT1}, {32 + (3*g if typ else 2*g)}")
    I(f"s_lshl_b32 s{sHF}, s{sT1}, 10")
    I(f"s_lshr_b32 s{sT1}, s{sW}, 1")
    I(f"s_lshl2_add_u32 s{sT1}, s{sA}, s{sT1}")
    I(f"s_mul_i32 s{sT1}, s{sT1}, 17408")
    I(f"s_and_b32 s{sT2}, s{sW}, 1")
    if typ == 0:
        I(f"s_lshl4_add_u32 s{sT3}, s{sT2}, s{sT}")
        I(f"s_lshl_b32 s{sT3}, s{sT3}, 9")
        I(f"s_add_u32 s{sK1}, s{sT1}, s{sT3}")
        I(f"s_add_u32 s{sK1}, s{sK1}, {KVP_OFF - MB//2}")
        I(f"s_lshl1_add_u32 s{sT3}, s{sT}, s{sT2}")
        I(f"s_lshl_b32 s{sT3}, s{sT3}, 5")
        I(f"s_add_u32 s{sK2}, s{sT1}, s{sT3}")
        I(f"s_add_u32 s{sK2}, s{sK2}, {KVP_OFF + 16384 - MB//32}")
        I(f"s_lshl_b32 s{sEX}, s{sI}, 11")
        I(f"s_sub_u32 s{sEX}, s{sEX}, {MB - 3*t.SL}")
    else:
        I(f"s_add_u32 s{sK2}, s{sT1}, {KVP_OFF + 16384 - MB}")
        I(f"s_lshl_b32 s{sT2}, s{sT2}, 13")
        I(f"s_add_u32 s{sK1}, s{sT1}, s{sT2}")
        I(f"s_add_u32 s{sK1}, s{sK1}, {KVP_OFF - MB}")
        I(f"s_lshl2_add_u32 s{sT0}, s{sA}, s{sT0}")
        I(f"s_add_u32 s{sT0}, s{sT0}, {2*g}")
        I(f"s_lshl_b32 s{sEX}, s{sT0}, 10")
    I(f"v_lshlrev_b32 v{a}, 2, v{vLN}")
    I(f"s_lshl_b32 s{sT0}, s{sW}, 8")
    I(f"s_lshl_b32 s{sT1}, s{sA}, 11")
    I(f"s_add_u32 s{sT1}, s{sT1}, s{sT0}")
    I(f"s_add_u32 s{sT0}, s{sT0}, {t.WPH}")
    I(f"v_add_u32 v{vWPA}, s{sT0}, v{a}")
    I(f"s_lshr_b32 s{sT0}, s{sI}, 1")
    I(f"s_lshl1_add_u32 s{sT0}, s{sT}, s{sT0}")
    I(f"s_lshl3_add_u32 s{sT0}, s{sT0}, s{sA}")
    I(f"s_lshl_b32 s{sT0}, s{sT0}, 7")
    I(f"s_and_b32 s{sT2}, s{sI}, 1")
    I(f"s_lshl2_add_u32 s{sT0}, s{sT2}, s{sT0}")
    I(f"s_add_u32 s{sFL}, s{sT0}, {FLG + 16*typ + 8*g}")
    I(f"v_mov_b32 v{b}, 0")
    if typ == 1:
        for x in p2addr(t, vLN, c, d): I(x)
    I(f"v_lshlrev_b32 v{vTCH}, 7, v{vLN}")
    if typ == 0:
        I(f"v_mov_b32 v{h}, -1")
        I(f"v_mov_b32 v{h+1}, -1")
        I(f"v_lshrrev_b32 v{c}, 1, v{vM16}")
        I(f"v_lshrrev_b32 v{d}, 5, v{vM16}")
    pstamp(P, 4)
    I("s_waitcnt lgkmcnt(0)")
    for x in dma_x(t, 1):
        for y in x: emit(P, y)
    I(f"buffer_load_dword v{vWPV}, v{a}, {s(SWP,4)}, s{sT1} offen")
    for x in stream_list(t, g)[1:CFG["pro"]]:
        for z in x:
            for y in z: emit(P, y)
    I("s_mov_b64 exec, 1")
    I(f"buffer_store_dword v{b}, off, {s(SWS,4)}, s{sFL} sc1")
    I("s_mov_b64 exec, -1")
    if typ == 0:
        I(f"buffer_store_dwordx2 {v(h,2)}, v{c}, {s(SWS,4)}, s{sK1} offen sc1")
        I("s_mov_b32 exec_lo, 0x10001")
        I("s_mov_b32 exec_hi, 0x10001")
        I(f"buffer_store_dwordx2 {v(h,2)}, v{d}, {s(SWS,4)}, s{sK2} offen sc1")
        I("s_mov_b64 exec, -1")
    for r, m in zip(MS(g), (0xaaaaaaaa, 0xcccccccc, 0xff00ff00, 0xffff0000, 0x0f0f0f0f)):
        I(f"s_mov_b32 s{r}, {m:#x}")
        I(f"s_mov_b32 s{r+1}, {(m if m != 0x0f0f0f0f else 0xf0f0f0f0):#x}")
    pstamp(P, 5)

def P2R(typ): return (28, 29, 30, 31, 26) if typ else (27, 31, 26, 28, 29)
def p2addr(t, ln, a, b):
    vWa, vRD0, vRD1 = P2R(t.typ)[:3]
    base = t.RG[5] if t.typ else PH
    return [f"v_and_b32 v{a}, 7, v{ln}", f"v_lshlrev_b32 v{a}, 4, v{a}", f"v_and_b32 v{b}, 16, v{ln}", f"v_lshlrev_b32 v{b}, 2, v{b}", f"v_xor_b32 v{a}, v{a}, v{b}",
            f"v_lshrrev_b32 v{b}, 3, v{ln}", f"v_lshl_add_u32 v{vWa}, v{b}, 10, v{a}",
            f"v_bfe_u32 v{a}, v{ln}, 1, 1", f"v_and_b32 v{b}, 1, v{ln}", f"v_lshl_or_b32 v{a}, v{b}, 1, v{a}", f"v_lshlrev_b32 v{a}, 3, v{a}",
            f"v_bfe_u32 v{b}, v{ln}, 4, 1", f"v_lshl_add_u32 v{a}, v{b}, 5, v{a}", f"v_and_b32 v{b}, 8, v{ln}", f"v_lshl_add_u32 v{a}, v{b}, 3, v{a}",
            f"v_bfe_u32 v{b}, v{ln}, 2, 2", f"v_lshl_add_u32 v{a}, v{b}, 7, v{a}", f"v_lshrrev_b32 v{b}, 5, v{ln}", f"v_lshl_add_u32 v{a}, v{b}, 10, v{a}",
            f"v_lshl_add_u32 v{a}, s{sMW}, 1, v{a}", f"v_xor_b32 v{b}, 64, v{a}", f"v_add_u32 v{vRD0}, {base}, v{a}", f"v_add_u32 v{vRD1}, {base}, v{b}"]
def MS(g): return [0, SWP, SWP + 2, (SWG if g else SWU), (SWG if g else SWU) + 2]
def softmax(W, O, m=vMX, sm=vSM):
    o = [f"v_max_f32 v{m}, v{W}, v{W+1}", f"v_max_f32 v{sm}, v{W+2}, v{W+3}"]
    for k in range(4, 16, 4):
        o.append(f"v_max3_f32 v{m}, v{m}, v{W+k}, v{W+k+1}")
        o.append(f"v_max3_f32 v{sm}, v{sm}, v{W+k+2}, v{W+k+3}")
    o.append(f"v_max_f32 v{m}, v{m}, v{sm}")
    o.append(f"v_mul_f32 v{m}, v{m}, v{vC1}")
    for k in range(16): o.append(f"v_fma_f32 v{W+k}, v{W+k}, -v{vC1}, v{m}")
    for k in range(16):
        o.append(f"v_exp_f32 v{W+k}, v{W+k}")
        if k == 2: o.append(f"v_add_f32 v{sm}, v{W}, v{W+1}")
        if k > 2: o.append(f"v_add_f32 v{sm}, v{sm}, v{W+k-1}")
    o.append(f"v_add_f32 v{sm}, v{sm}, v{W+15}")
    o.append(f"v_rcp_f32 v{sm}, v{sm}")
    for k in range(8):
        o.append(f"v_mul_f32 v{W+2*k}, v{W+2*k}, v{sm}")
        o.append(f"v_mul_f32 v{W+2*k+1}, v{W+2*k+1}, v{sm}")
        o.append(f"v_cvt_pk_bf16_f32 v{O+k}, v{W+2*k}, v{W+2*k+1}")
    return o

def glu(G, U, n):
    o = []
    for k in range(n): o.append(f"v_mul_f32 v{G+k}, v{G+k}, v{vC1}")
    for k in range(n): o.append(f"v_exp_f32 v{G+k}, v{G+k}")
    for k in range(n): o.append(f"v_fma_f32 v{G+k}, v{G+k}, v{vSTD}, v{vSTD}")
    for k in range(n): o.append(f"v_rcp_f32 v{G+k}, v{G+k}")
    for k in range(n): o.append(f"v_mul_f32 v{G+k}, v{G+k}, v{U+k}")
    for k in range(n // 2): o.append(f"v_cvt_pk_bf16_f32 v{G+k}, v{G+2*k}, v{G+2*k+1}")
    return o

def publish(c, t0, t1, addr, blk, tag):
    return [f"v_and_b32 v{t0}, s{sHI}, v{c}", f"v_sub_f32 v{t1}, v{c}, v{t0}", f"v_cvt_pk_bf16_f32 v{t0}, v{t0}, v{t1}",
            f"ds_write_b32 v{addr}, v{t0} offset:{CSP - MB + blk*1024} #{tag}"]

def stream(P, typ, g, name):
    global vST, vSQ, vU, vSTW, vSTR, vCW
    I = P.I; t = T(typ); D = 3; sn = f"{name}_{typ}{g}"
    o_ = AV if typ else 83
    vST, vSQ, vU, vSTW, vSTR = o_, o_ + 1, [o_ + 2, o_ + 3, o_ + 4, o_ + 5], o_ + 6, o_ + 7
    vCW = AV + 8 if typ else 94
    PB = CFG["qpub"] if typ else "v1"
    setup(P, t, g)
    S = Sched(D)
    F = "v[32:35]"
    def mm(acc, x, first): return lambda f: f"v_mfma_f32_32x32x16_bf16 {v(acc,16)}, {f}, {v(x,4)}, {'0' if first else v(acc,16)}"
    def cm(c, first): return lambda f: f"v_mfma_f32_16x16x32_bf16 {v(c,4)}, {v(CP,4)}, {f}, {'0' if first else v(c,4)}"
    def tr(ad, im, sec): return [("tr", ad, im), ("tr2", ad, im + sec)]
    main = []; first = {}
    P1 = {}; SQ = {}
    for st in range(8):
        hi, so = t.sp(t.wp(st), t.WB)
        for p in range(4):
            it = Item(mm(AK, XR(st, p), st == 0 and p == 0), tr(vAA[hi][p], so, 512), cm(CD[0], st == 0) if p == 0 else None, name=f"{st}p{p}")
            if p == 0:
                it.bar = st; first[st] = it
                xh, xo = t.sp(t.xp(st), t.XB)
                if st < 2: it.pre = [f"ds_read_b128 {v(XR(st,q),4)}, v{vAX[xh][q]} offset:{xo}" for q in range(4)]
            main.append(it); P1[st, p, 0] = it
        for xs in CFG["sq"][st]:
            for q in (2*g, 2*g+1):
                SQ[xs, q] = Item((lambda x, fi: lambda f: f"v_mfma_f32_32x32x16_bf16 {v(GA[2],16)}, {v(x,4)}, {v(x,4)}, {'0' if fi else v(GA[2],16)}")(XR(xs, q), not SQ), name=f"sq{xs}{q}")
                if xs == 7: main.insert(main.index(P1[st, CFG["sq7"], 0]), SQ[xs, q])
                else: main.append(SQ[xs, q])
    V = {}
    if typ == 0:
        for c in range(8):
            hi, so = t.sp(t.vp(c), t.WB)
            for p in range(4): V[c, p] = Item(mm(AV, XR(c, p), c == 0 and p == 0), tr(vAA[hi][p], so, 512), cm(CD[1], False) if p == 0 else None, name=f"v{c}p{p}")
        for c in (1, 3, 6):
            it = V[c, 0] if c > 1 else V[CFG["v1"]]
            it.bar = f"v{c}"; first[f"v{c}"] = it
        main += [V[c, p] for c in range(6) for p in range(4)] + [V[6,0], V[7,0]] + [V[c, p] for c in (6, 7) for p in (1, 2, 3)]
    nb = 3
    blk = [3*g, 3*g+1, 3*g+2] if typ else [3*g, 3*g+1, 2]
    def gi(st, p, b):
        o = t.g(st)
        if o >= 3 * t.SL: o -= 3 * t.SL
        fst = st == 8 and (p == 0 or (typ == 0 and b == 2 and p == 2*g))
        sm = cm(CD[b], st == 8) if p == 0 else None
        return Item(mm(GA[b], XR(st-8, p), fst), tr(vAG[p], o + blk[b]*32, 4*t.RB), sm, name=f"{st}p{p}b{b}")
    def has(p, b): return typ == 1 or b < 2 or (p >> 1) == g
    G = {}
    for st in range(8, 16):
        for p in range(4):
            for b in range(nb):
                if has(p, b): G[st, p, b] = gi(st, p, b)
    for st in range(8, 13):
        l = [G[st, p, b] for p in range(4) for b in range(nb) if has(p, b)]
        l[0].bar = st; first[st] = l[0]; main += l
    first[PB].pre = [f"ds_read_b128 {v(vMU,4)}, v{vSTR}"]
    def corr(acc, cb, nbar, nm):
        return Item(mm(acc, vMU, False), [("b128", vM16, CSP - MB + cb*1024)], needbar=nbar, name=nm)
    C = [corr(GA[b], blk[b], "cs", f"corr{b}") for b in range(nb)]
    rest = lambda b, sts: [G[st, p, b] for st in sts for p in (1, 2, 3)]
    if typ == 0:
        sh = lambda st: [G[st, 2*g, 2], G[st, 2*g+1, 2]]
        t13 = [G[13,0,0], G[13,0,1]] + sh(13) + rest(0, [13])
        t15 = [G[14,0,0], G[14,0,1]] + sh(14) + sh(15) + [G[15,0,0], G[15,0,1]]
        r0 = rest(0, [14, 15]); r1 = rest(1, [13, 14, 15])
        tail = r0[:5] + [C[2]] + r0[5:] + [C[0]] + r1 + [C[1]]
        C[2].bar = "cs"
    else:
        t13 = [G[13,0,b] for b in range(3)] + rest(0, [13])
        t15 = [G[st,0,b] for st in (14, 15) for b in range(3)]
        r0 = rest(0, [14, 15])
        tail = r0[:5] + [C[0]] + r0[5:] + rest(1, [13, 14, 15]) + [C[1]] + rest(2, [13, 14, 15]) + [C[2]]
        C[0].bar = "cs"
    t13[0].bar = 13; t15[0].bar = 15; first[13] = t13[0]; first[15] = t15[0]
    main += t13 + t15 + tail
    barwait = {0: ["x0", "w0"], 1: ["x1", "w1", "x2"], 7: ["w7"], 15: ["w14", "w15"], "cs": []}
    for st in range(2, 7): barwait[st] = [f"w{st}", f"x{st+1}"]
    for st in range(8, 14): barwait[st] = [f"w{st}"]
    barlg = {PB: ["pub"], "cs": ["cs"]}
    BO = list(range(14))
    if typ == 0:
        barwait[7] = ["w7", "v0"]; barwait["v1"] = ["v1", "v2"]; barwait["v3"] = ["v3", "v4", "v5"]; barwait["v6"] = ["v6", "v7"]
        barlg[8] = ["pubv"]
        BO = list(range(8)) + ["v1", "v3", "v6"] + list(range(8, 14))
    sl = stream_list(t, g); pro = CFG["pro"]
    dm = {b: [] for b in BO[:-1]}
    if typ == 0:
        for k in range(pro, 14): dm[max(0, (k - 3) // 2)] += sl[k]
        for b, l in CFG["vdm"].items():
            for c in l: dm[b] += dma_v(t, c)
        dm[CFG["g8"]] += dma_g(t, g, 8)
        dm["v3"] += dma_g(t, g, 9); dm["v6"] += dma_g(t, g, 10)
        for b in range(8, 13): dm[b] = dma_g(t, g, b + 3)
    else:
        ql = CFG.get("qlead", 2)
        for k in range(pro, 14): dm[max(0, (k + 1 - 2*ql) // 2)] += sl[k]
        if ql == 3:
            for b in range(5, 13): dm[b] += dma_g(t, g, b + 3)
        else:
            g8 = dma_g(t, g, 8); g9 = dma_g(t, g, 9); g10 = dma_g(t, g, 10)
            dm[5] += g8[:2]; dm[6] = g8[2:] + g9[:2]; dm[7] = g9[2:] + g10[:2]; dm[8] = g10[2:] + dma_g(t, g, 11)
            for b in range(9, 13): dm[b] += dma_g(t, g, b + 3)
    if CFG["b0end"]: dm[0] = [sum(dm[0], [])] if dm[0] else []
    nxt = lambda b: BO[BO.index(b) + 1]
    heavy = []
    def hok(n):
        if not CFG["hstag"]: return True
        if n % 2 != g or n + 1 in S.bs.values(): return False
        return not any(dpos(b, j, len(dm[b]), gg)() == n for b in dm for j in range(len(dm[b])) for gg in (0, 1))
    def dpos(b, j, k, g=g):
        def f():
            L = S.bs[nxt(b)] - S.bs[b]; o = S.bs[b]
            if b == 0 and CFG['b0end']: return o + L - 1
            if b == 0: return o + j if typ else o + min(L - 2, 2 * j + g) if k <= 4 else o + j
            if 2 * k <= L: return o + min(L - 2, int((j + 0.5 * g) * L / k + 0.01))
            return o + min(L - 1, int((j + 0.5 * g) * L / k + 0.01))
        return f
    for b in BO[:-1]:
        for j, x in enumerate(dm[b]): heavy.append(S.add(x, after=b, before=nxt(b), kind="misc", lo=dpos(b, j, len(dm[b])) if CFG["pace" if BO.index(b) < (6 if typ else 8) else "paceg"] or b == 0 else None))
    if g == 1:
        S.add(f"v_mov_b32 v95, s{sXV}", after=2)
        S.add([f"s_cmp_eq_u32 s{sI}, 0", "s_cselect_b32 exec_lo, 1, 0", "s_mov_b32 exec_hi, 0", f"s_and_b32 s{sT3}, s2, 7", f"s_lshl_b32 s{sT3}, s{sT3}, 5",
               f"buffer_atomic_add v95, off, {s(SDB,4)}, s{sT3} sc1", "s_mov_b64 exec, -1"], after=CFG["atm"][typ], lo=(first[7], CFG["atm"][2+typ]), before=8)
    for p in range(4):
        bs = [b for b in range(nb) if has(p, b)]
        S.add(f"v_add_u32 v{vAG[p]}, {3*t.SL}, v{vAG[p]}", lo=(G[10,p,bs[-1]], -D), hi=(G[11,p,0], -D-1))
        nx = G[13,p,0] if not (typ == 0 and p and (p >> 1) == g) else G[13,p,2]
        S.add(f"v_subrev_u32 v{vAG[p]}, {3*t.SL}, v{vAG[p]}", lo=(G[12,p,bs[-1]], -D), hi=(nx, -D-1))
    ns = CFG["ns"][typ]; u = 0; fs = True
    S.node(P1[0,0,0], cm(CD[0], True)(F))
    sp = [2*g, 2*g+1]
    for st in range(8):
        if 1 <= st < 7:
            hi, so = t.sp(t.xp(st + 1), t.XB)
            for q in sp + [x for x in range(4) if x not in sp]:
                S.add(f"ds_read_b128 {v(XR(st+1,q),4)}, v{vAX[hi][q]} offset:{so}", after=st, lo=(first[st], (-2 if st > 1 else 0) if typ else -3), hi=(P1[st+1,q,0], -2), before=None if typ else st + 1)
        if st == 2:
            S.add(f"ds_write_b32 v{vWPA}, v{vWPV}", after=2)
            S.add(f"v_xor_b32 v{vWPV}, 0x80008000, v{vWPV}", after=2)
            S.add(f"ds_write_b32 v{vWPA}, v{vWPV} offset:2048", after=2, before=7)
    for st in range(8):
        for n, q in enumerate(sp):
            if n < ns[st]:
                S.add(cm(CD[2], fs)(v(XR(st, q), 4)), lo=(first[st], 1) if st < 2 else None); fs = False
    if typ == 1:
        S.add(f"v_mov_b32 v{vST}, v{CD[2]}", hi=(first[8], -1))
        S.node(P1[7,0,0], cm(CD[0], False)(F))
        S.adds(publish(CD[0], AV+9, AV+10, vCW, g, "pub"), hi=(first[8], -1))
    for (xs, q), it in SQ.items(): S.node(it, it.mf(F))
    Q_ = GA[2]; ms = MS(g)
    for lv, (stp, dd) in enumerate(((2, 1), (4, 2), (8, 4), (16, 8))):
        S.adds([f"v_cndmask_b32 v{Q_+k}, v{Q_+k}, v{Q_+k+dd}, {s(ms[lv],2)}" for k in range(0, 16, stp)])
    S.add(f"v_cndmask_b32 v{vSQ}, 0, v{Q_}, {s(ms[4],2)}")
    if typ == 0:
        S.add(f"v_mov_b32 v{vST}, v{CD[2]}")
        S.node(P1[7,0,0], cm(CD[0], False)(F))
        S.adds(publish(CD[0], 85, 86, vCW, g, "pub"), before=PB)
    else: S.node(G[8,0,2], mm(GA[2], XR(0,0), True)(F))
    S.add(f"v_permlane32_swap_b32 v{vST}, v{vSQ}")
    S.adds([f"v_add_f32 v{vST}, v{vST}, v{vSQ}", f"ds_write_b32 v{vSTW}, v{vST} #pub"], before=PB)
    sWQ2, sWO2, sWK2, sWZ2 = range(SWG if g else SWU, (SWG if g else SWU) + 4)
    S.add([f"s_mov_b32 s{SOUT}, s{SWO+2}", f"s_mov_b32 s{SOUT+1}, s{SWO+3}", f"s_mov_b32 s{SOUT+2}, 2097152", f"s_mov_b32 s{SWO+2}, {512*1024}", f"s_mov_b32 s{SWO+3}, 0x20000"])
    J1, J2 = (75, 77) if typ else (26, 24)
    if CFG["th"] & 1:
        S.add([f"s_add_u32 s{sT1}, s{sHF}, {MB}", "s_mov_b64 exec, 0xffffff", f"buffer_load_dword v{J1}, v{vTCH}, {s(SWS,4)}, s{sT1} offen sc1", "s_mov_b64 exec, -1"], after=CFG["thb"], before=8)
        if typ: S.add([f"s_add_u32 s{sT1}, s{sEX}, {MB}", "s_mov_b64 exec, 0xffff", f"buffer_load_dword v76, v{vTCH}, {s(SWS,4)}, s{sT1} offen sc1", "s_mov_b64 exec, -1"], after=CFG["thb"], before=8)
    if CFG["th"] & 4:
        S.add([f"s_add_u32 s{sT1}, s{sHF}, {MB}", "s_mov_b64 exec, 0xffffff", f"buffer_store_dword v{vTCH}, v{vTCH}, {s(SWS,4)}, s{sT1} offen", "s_mov_b64 exec, -1"], after=CFG["thb"], before=8)
        if typ: S.add([f"s_add_u32 s{sT1}, s{sEX}, {MB}", "s_mov_b64 exec, 0xffff", f"buffer_store_dword v{vTCH}, v{vTCH}, {s(SWS,4)}, s{sT1} offen", "s_mov_b64 exec, -1"], after=CFG["thb"], before=8)
    if CFG["th"] & 8:
        for j, b in enumerate(CFG["thl"][typ]):
            S.add(f"buffer_store_dwordx4 {v(CP,4)}, v{vM16}, {s(SWS,4)}, s{sHF if j < 3 else sEX} offen offset:{(j%3)*1024}", after=b, lo=(first[b], CFG["tho"] + 2*g), kind="misc")
    if CFG["th"] & 2 and g == 0:
        S.add([f"s_and_b32 s{sT0}, s2, 7", f"s_lshr_b32 s{sT1}, s2, 6", f"s_lshl2_add_u32 s{sT0}, s{sT0}, s{sT1}", f"s_mul_i32 s{sT1}, s{sT0}, {236*1024}", f"s_add_u32 s{sT1}, s{sT1}, {MB}",
               f"s_lshl_b32 s{sT0}, s{sI}, 16", f"s_add_u32 s{sT1}, s{sT1}, s{sT0}",
               f"v_lshlrev_b32 v{J2}, 5, v{vTCH}", "s_mov_b64 exec, 0xffff", f"buffer_load_dword v{J2}, v{J2}, {s(SWS,4)}, s{sT1} offen sc1", "s_mov_b64 exec, -1"], after=CFG["thb"], before=8)
    if typ == 1 and "notouch" not in k1.KN:
        S.add([f"s_lshl3_add_u32 s{sT0}, s2, s{sW}", f"s_sub_u32 s{sT0}, s{sT0}, 1024", f"s_lshl_b32 s{sT1}, s{sT0}, 9", "s_mov_b64 exec, 15",
               f"buffer_load_dword v26, v{vTCH}, {s(SWO,4)}, s{sT1} offen", "s_mov_b64 exec, -1"], after=CFG["tch"], before=8)
        S.add([f"s_mul_i32 s{sT1}, s{sT0}, 1408", "s_mov_b64 exec, 0x7ff",
               f"buffer_load_dword v31, v{vTCH}, {s(SWD,4)}, s{sT1} offen", "s_mov_b64 exec, -1"], after=CFG["tch"], before=8)
    S.add([f"s_and_b32 s{sT0}, s2, 7", f"s_lshr_b32 s{sT1}, s2, 6", f"s_lshl2_add_u32 s{sT0}, s{sT0}, s{sT1}", f"s_bfe_u32 s{sT1}, s2, 0x30003", f"s_lshl_b32 s{sT1}, s{sT1}, 7",
           f"s_lshl3_add_u32 s{sFR}, s{sT0}, s{sW}", f"s_lshl_b32 s{sFR}, s{sFR}, 7", f"s_add_u32 s{sFR}, s{sFR}, {FLG}",
           f"s_lshl_b32 s{sXO}, s{sT0}, 16", f"s_add_u32 s{sXO}, s{sXO}, s{sT1}", f"s_lshl3_add_u32 s{sXO}, s{sI4}, s{sXO}"] + ([f"s_add_u32 s{sXO}, s{sXO}, 32768"] if g else []), lo=(first[8], 1))
    S.add([f"s_mul_i32 s{sHO}, s{sT0}, {236*1024}", f"s_mul_i32 s{sT2}, s{sW}, 6144", f"s_add_u32 s{sHQ}, s{sHO}, s{sT2}", f"s_add_u32 s{sHQ}, s{sHQ}, 32768",
           f"s_mul_i32 s{sT2}, s{sW}, 5", f"s_min_u32 s{sT2}, s{sT2}, 33", f"s_add_u32 s{sT2}, s{sT2}, 48", f"s_lshl_b32 s{sWK2}, s{sT2}, 14", f"s_add_u32 s{sWK2}, s{sWK2}, s{sT1}",
           f"s_lshl_b32 s{sT2}, s{sT2}, 10", f"s_add_u32 s{sHK}, s{sHO}, s{sT2}", f"s_add_u32 s{sHK}, s{sHK}, 32768", f"s_lshl2_add_u32 s{sHO}, s{sMW}, s{sHO}"], lo=(first[8], 2))
    S.add([f"s_mul_i32 s{sWQ2}, s{sW}, {6*16384}", f"s_add_u32 s{sWQ2}, s{sWQ2}, s{sT1}", f"s_lshl_b32 s{sWO2}, s{sW}, 16", f"s_add_u32 s{sWO2}, s{sWO2}, s{sT1}",
           f"s_cmp_eq_u32 s{sW}, 7", f"s_cselect_b32 s{sWZ2}, 0x2000000, s{sWK2}"] +
          ([f"s_lshl_b32 s{sRB}, s{sI}, 14"] if g == 0 else
           [f"s_cmp_lt_u32 s{sI}, {2 if typ else 1}", f"s_cselect_b32 s{sRB}, 0, {t.RG[7] - t.RG[4] - 49152}", f"s_lshl_b32 s{sT2}, s{sI}, 14", f"s_add_u32 s{sRB}, s{sRB}, s{sT2}", f"s_add_u32 s{sRB}, s{sRB}, {t.RG[4]}"]) +
          [f"s_sub_u32 s{sRB}, s{sRB}, {MB}"], lo=(first[8], 3))
    m, q = vMU, vC1
    l8 = (first[PB], -1)
    S.adds([f"v_add_f32 v{m}, v{vMU}, v{vMU+2}", f"v_add_f32 v{q}, v{vMU+1}, v{vMU+3}",
            f"v_mul_f32 v{vSTD}, {fbits(-1.0/512)}, v{m}", f"v_mul_f32 v{q}, {fbits(1.0/512)}, v{q}"], lo=l8)
    S.adds([f"v_cvt_pk_bf16_f32 v{vMU+k}, v{vSTD}, v{vSTD}" for k in range(4)])
    S.adds([f"v_fma_f32 v{q}, -v{vSTD}, v{vSTD}, v{q}", f"v_max_f32 v{q}, 0, v{q}", f"v_add_f32 v{q}, {fbits(1e-5)}, v{q}",
            f"v_rsq_f32 v{vRS}, v{q}", f"v_mul_f32 v{vSTD}, v{q}, v{vRS}", f"v_mul_f32 v{vC1}, {fbits(-LOG2E)}, v{vRS}"])
    ex = []
    S.node(P1[7,3,0], mm(AK, XR(7,3), False)(F))
    ex.append(S.node(corr(AK, g, PB, "corrK"), mm(AK, vMU, False)(F)))
    def w64(w, x, **k):
        return S.add([w] + ([x] if x else []), kind="valu", cost=CFG["wc"] + (1 if x else 0), first=True, **k)
    KB = AK if typ else 96
    S.adds([f"v_cvt_pk_bf16_f32 v{KB+k}, v{AK+2*k}, v{AK+2*k+1}" for k in range(8)])
    pb = "ph"
    if typ == 0:
        W = [GA[2], AK]
        S.node(V[7,0], cm(CD[1], False)(F))
        S.adds(publish(CD[1], 83, 84, vCW, 2 + g, "pubv"), before=8)
        for rho in range(2):
            pk = mm(W[rho], KB + 4*rho, True)
            ex.append(S.node(Item(pk, tr(vWF, 512*rho, 128), needbar=PB, name=f"phi{rho}"), pk(F)))
        for rho in range(2):
            S.adds(softmax(W[rho], W[rho], *((87, 88), (vSM, vWF))[rho]))
            for b_ in range(2):
                w64(f"ds_write_b128 v{vPH}, {v(W[rho]+4*b_,4)} offset:{rho*12288} #ph", None if (rho, b_) == (1, 1) else f"v_xor_b32 v{vPH}, 16, v{vPH}", after="v3", before=pb)
        S.node(G[8,0,0], mm(GA[0], XR(0,0), True)(F)); S.node(G[8,0,1], mm(GA[1], XR(0,0), True)(F)); S.node(G[8,2*g,2], mm(GA[2], XR(0,2*g), True)(F))
        S.node(V[7,3], mm(AV, XR(7,3), False)(F))
        ex.append(S.node(corr(AV, 2 + g, 8, "corrV"), mm(AV, vMU, False)(F)))
        for k in range(8):
            S.adds([f"v_mul_f32 v{AV+2*k}, v{AV+2*k}, v{vRS}", f"v_mul_f32 v{AV+2*k+1}, v{AV+2*k+1}, v{vRS}",
                    f"v_cvt_pk_bf16_f32 v{AV+k}, v{AV+2*k}, v{AV+2*k+1}"])
            if k & 3 == 3: w64(f"ds_write_b128 v{vKB}, {v(AV+k-3,4)} offset:{(k>>2)*12288+64} #ph", None, before=pb)
        S.node(G[8,3,1], mm(GA[1], XR(0,3), False)(F)); S.node(G[8,2*g+1,2], mm(GA[2], XR(0,2*g+1), False)(F))
        W = [AV, XR(0, 0)]
    else:
        for rho in range(2):
            pk = mm(AV, AK + 4*rho, True)
            ex.append(S.node(Item(pk, tr(vWF, 512*rho, 128), needbar=8, name=f"phi{rho}"), pk(F)))
            S.adds(softmax(AV, AK + 8 if rho == 0 else AV))
    if typ == 0:
        pi = main[main.index(first[CFG["phbar"][0]]) + CFG["phbar"][1]]
        if pi.bar is None: pi.bar = pb; barwait[pb] = []
        else:
            for o in S.ops:
                if o.before == pb: o.before = pi.bar
            pb = pi.bar
        barlg[pb] = barlg.get(pb, []) + ["ph"]
        barlg[CFG["wb"][0]] = barlg.get(CFG["wb"][0], []) + ["kvr"]
        DK, DZ, ON = AK, AK + 4, AK + 8
        S.adds([f"v_mov_b32 v{ON+k}, 0x3f803f80" for k in range(4)])
        S.adds([f"v_lshrrev_b32 v{AK+12}, 1, v{vM16}", f"v_lshrrev_b32 v{AK+13}, 5, v{vM16}"])
        S.add([f"s_and_b32 s{sT3}, s{sI}, 1", f"s_lshl_b32 s{sT3}, s{sT3}, 5"], lo=(first[8], 0))
        S.add(f"v_subrev_u32 v{vPH}, s{sT3}, v{vKA}")
        for u4 in range(4):
            A0 = W[u4 >> 1] + 8*(u4 & 1); B0 = A0 + 4; o = u4 * 3072
            S.add([f"ds_read_b64_tr_b16 {v(A0,2)}, v{vKA} offset:{o}", f"ds_read_b64_tr_b16 {v(A0+2,2)}, v{vKA} offset:{o+768}"], after=pb)
            S.add([f"ds_read_b64_tr_b16 {v(B0,2)}, v{vPH} offset:{o+64}", f"ds_read_b64_tr_b16 {v(B0+2,2)}, v{vPH} offset:{o+768+64} #kvr"], after=pb, before=CFG["wb"][0])
            na = f"v_mfma_f32_16x16x32_bf16 {v(DZ,4)}, {v(A0,4)}, {v(ON,4)}, {'0' if u4 == 0 else v(DZ,4)}"
            nb_ = f"v_mfma_f32_16x16x32_bf16 {v(DK,4)}, {v(A0,4)}, {v(B0,4)}, {'0' if u4 == 0 else v(DK,4)}"
            S.adds([na, nb_] if u4 < 3 else [nb_, na])
        S.adds([f"v_cvt_pk_bf16_f32 v{DK}, v{DK}, v{DK+1}", f"v_cvt_pk_bf16_f32 v{DK+1}, v{DK+2}, v{DK+3}"])
        kvst = S.add(f"buffer_store_dwordx2 {v(DK,2)}, v{AK+12}, {s(SWS,4)}, s{sK1} offen sc1 #kvs", kind="misc")
        S.adds([f"v_cvt_pk_bf16_f32 v{DZ}, v{DZ}, v{DZ+1}", f"v_cvt_pk_bf16_f32 v{DZ+1}, v{DZ+2}, v{DZ+3}"])
        S.add(["WAITVM kvs", "s_mov_b32 exec_lo, 0x10001", "s_mov_b32 exec_hi, 0x10001", f"buffer_store_dwordx2 {v(DZ,2)}, v{AK+13}, {s(SWS,4)}, s{sK2} offen sc1", "s_mov_b64 exec, -1"],
              ok=lambda n: kvst.slot is not None and n >= kvst.slot + CFG["zd"])
    vWa, vRD0, vRD1, vFA, vFL = P2R(typ)
    KS = [("q", 0), ("q", 3), ("q", 1), ("q", 4), ("q", 2), ("q", 5)] + [("o", j) for j in range(4)] + [("k", 2), ("k", 0), ("k", 3), ("k", 1), ("k", 4)]
    NS = 2 if typ else 3; NR = 10 if typ else 12
    WR = [128 + 8*k for k in range(10)] if typ else [128 + 8*k for k in range(8)] + [AV, AV + 8, 192, 200]
    WR += WR[:15 - NR]
    RGN = [6 + k % 2 for k in range(12)] + [4, 5, 3] if typ else [5 + k % 3 for k in range(15)]
    rbase = t.RG[5] if typ else PH
    def wdma(k):
        ty, j = KS[k]
        b_ = {"q": sWQ2, "o": sWO2, "k": sWZ2 if j < 2 else sWK2}[ty]; R_ = s(SWO if ty == "o" else SWD, 4)
        return [[f"s_lshl1_add_u32 m0, s{sMW}, {t.RG[RGN[k]]}", f"s_add_u32 s{sO1}, s{b_}, {j*16384}", f"buffer_load_dwordx4 v{vWa}, {R_}, s{sO1} offen lds #W{k}"],
                [f"s_lshl1_add_u32 m0, s{sMW}, {t.RG[RGN[k]]}", f"s_add_u32 s{sO1}, s{b_}, {j*16384 + 7168}", f"buffer_load_dwordx4 v{vWa}, {R_}, s{sO1} offen offset:1024 lds #W{k}"]]
    def wread(k, ad=(vRD0, vRD1), base=rbase):
        o = t.RG[RGN[k]] - base
        return [[f"WAITVM W{k}"] * (1 - cb) * ("noxw" not in k1.KN) + [f"ds_read_b64_tr_b16 {v(WR[k]+4*cb,2)}, v{ad[cb]} offset:{o}", f"ds_read_b64_tr_b16 {v(WR[k]+4*cb+2,2)}, v{ad[cb]} offset:{o+512} #X{k}"] for cb in range(2)]
    if typ == 0:
        S.add(f"v_bfe_u32 v{AK+14}, v{vM16}, 4, 6")
        S.adds(p2addr(t, AK + 14, AK + 15, vRD1))
    Dk = {}; Xk = {}
    def aft(dd, k, l): return lambda n: dd[k].slot is not None and n >= dd[k].slot + l
    for k in range(14 if typ else 15):
        wd_ = wdma(k)
        if typ and k >= 12: kw = dict(after=13 if k == 12 else 15)
        elif k < NS: kw = dict(after=CFG["wb"][typ])
        else: kw = dict(ok=aft(Xk, k - NS, CFG["wg"])); wd_[0] = [f"WAITLG X{k-NS}"] + wd_[0]
        for x in wd_:
            Dk[k] = S.add(x, kind="misc", **kw); Dk[k].R -= {("s", 124), ("s", sO1)}; Dk[k].W -= {("s", 124), ("s", sO1)}; Dk[k].R.add(("x", 9 + (typ and k >= 12))); Dk[k].W.add(("x", 9 + (typ and k >= 12)))
        if k < NR:
            lo = (G[8 + (WR[k] - 128) // 16, 3, nb - 1 if has(3, nb - 1) else 1], 0) if WR[k] >= 128 else None
            for x in wread(k): Xk[k] = S.add(x, kind="misc", ok=aft(Dk, k, CFG["wl"]), lo=lo)
    S.adds([f"v_lshrrev_b32 v{vFA}, 2, v{vM16}", f"v_and_b32 v{vFA}, 28, v{vFA}"])
    vCT = 27 if typ else 30
    polls = []
    def fload(): return f"buffer_load_dword v{vFL}, v{vFA}, {s(SWS,4)}, s{sFR} offen sc1"
    def fcheck(ty, lv):
        polls.append((ty, lv)); n_ = len(polls)
        return [f"v_cmp_gt_u32 vcc, {lv}, v{vFL}", f"s_and_b32 s{sT1}, vcc_lo, {0xf0 if ty == 'q' else 0x0f}", f"s_cbranch_scc1 L_{sn}_fp{n_}", f"LABEL L_{sn}_fb{n_}"]
    slow = []
    def mst(x, tag=""):
        slow.append(x); n_ = len(slow)
        return [f"s_cmp_lg_u32 s{sMD}, 0", f"s_cbranch_scc1 L_{sn}_ss{n_}", x + (" #" + tag if tag else ""), f"LABEL L_{sn}_sb{n_}"]
    def fstore(lv, tag, r): return [f"v_mov_b32 v{r}, {lv}", f"WAITVM {tag}", "s_mov_b64 exec, 1"] + mst(f"buffer_store_dword v{r}, off, {s(SWS,4)}, s{sFL}") + ["s_mov_b64 exec, -1"]
    HR = [96, 104, 112, 120, 80, 88, 48, 56, 64, 72, 96, 104, 112, 120, 80] if typ else [112, 120, 48, 56, 80, 88, 96, 104, 112, 120, 48, 56, WR[3], 80, 88]
    def hload(k):
        ty, j = KS[k]; b_ = {"q": sHQ, "o": sHO, "k": sHK}[ty]
        return [[f"s_add_u32 s{sO1}, s{b_}, {j*1024 + tb*118*1024}", f"buffer_load_dwordx4 {v(HR[k]+4*tb,4)}, v{vM16}, {s(SWS,4)}, s{sO1} offen"] for tb in range(2)]
    SEL, DD, ZZ, LD = AV + 8, CP, AV + 12, GA[0]
    vTW, vTZ, vTR = 1, 2, 3
    if typ == 1:
        a, b, c, ln = AK + 1, AK + 2, AK + 3, AK + 4
        o = [f"v_bfe_u32 v{ln}, v{vM16}, 4, 6", f"v_and_b32 v{a}, 15, v{ln}", f"v_lshrrev_b32 v{b}, 1, v{ln}", f"v_and_b32 v{b}, 8, v{b}", f"v_xor_b32 v{b}, v{a}, v{b}",
             f"v_and_b32 v{c}, 1, v{b}", f"v_lshlrev_b32 v{c}, 4, v{c}", f"v_mov_b32 v{a}, 0x3f80", f"v_lshlrev_b32 v{c}, v{c}, v{a}", f"v_lshrrev_b32 v{b}, 1, v{b}"]
        for r in range(4): o += [f"v_cmp_eq_u32 vcc, {r}, v{b}", f"v_cndmask_b32 v{SEL+r}, 0, v{c}, vcc"]
        S.adds(o, lo=(first[12], 0))
        S.add([f"s_lshr_b32 s{sT0}, s{sW}, 1", f"s_lshl_b32 s{sT0}, s{sT0}, 11", f"s_and_b32 s{sT2}, s{sW}, 1", f"s_lshl_b32 s{sT2}, s{sT2}, 5",
               f"s_add_u32 s{sT2}, s{sT2}, s{sT0}", f"s_add_u32 s{sT2}, s{sT2}, {OT}", f"s_sub_u32 s{sT0}, s{sT0}, {MB - OT}"], lo=(first[9], 0))
        S.adds([f"v_add_u32 v{vTZ}, s{sT0}, v{vM16}", f"v_and_b32 v{a}, 7, v{ln}", f"v_lshlrev_b32 v{a}, 7, v{a}", f"v_and_b32 v{b}, 16, v{ln}", f"v_lshl_add_u32 v{a}, v{b}, 2, v{a}",
                f"v_and_b32 v{b}, 8, v{ln}", f"v_add_u32 v{a}, v{a}, v{b}", f"v_lshrrev_b32 v{b}, 1, v{ln}", f"v_and_b32 v{b}, 16, v{b}", f"v_add3_u32 v{vTW}, v{a}, v{b}, s{sT2}",
                f"v_and_b32 v{a}, 19, v{ln}", f"v_bfe_u32 v{b}, v{ln}, 2, 1", f"v_lshl_or_b32 v{a}, v{b}, 3, v{a}", f"v_bfe_u32 v{b}, v{ln}, 3, 1", f"v_lshl_or_b32 v{a}, v{b}, 2, v{a}",
                f"v_lshlrev_b32 v{a}, 6, v{a}", f"v_and_b32 v{b}, 32, v{ln}", f"v_add_u32 v{a}, v{a}, v{b}", f"v_add_u32 v{vTR}, {OT + g*4096}, v{a}"])
    S.add(f"v_lshlrev_b32 v{vFL}, 3, v{vFA}")
    S.add(f"buffer_load_dword v{vCT}, v{vFL}, {s(SDB,4)}, 0 offen", after=12, lo=(first[13], -4), kind="misc")
    cck = [f"s_and_b32 s{sMD}, s2, 7", f"v_readlane_b32 s{sMD}, v{vCT}, s{sMD}", f"v_and_b32 v{vCT}, 0xff, v{vCT}", f"v_cmp_gt_u32 vcc, 32, v{vCT}", f"s_lshl_b32 s{sT1}, s{sXV}, 5", f"s_sub_u32 s{sMD}, s{sMD}, s{sT1}"]
    chk = S.add(cck + [f"s_cbranch_vccnz L_{sn}_cp", f"LABEL L_{sn}_cb"], after=15)
    chk.R |= {("v", vFL)}
    chk.W |= {("s", sT1), ("x", 0)}
    vCW2, vEX, t0 = AK, AK + 1, AK + 2
    S.adds([f"v_lshrrev_b32 v{vCW2}, 6, v{vM16}", f"v_and_b32 v{vCW2}, 12, v{vCW2}", f"v_xor_b32 v{vCW2}, s{sI4}, v{vCW2}", f"v_or_b32 v{vCW2}, v{vCW2}, v{vM16}"], lo=(first[12], 0))
    if typ == 0:
        S.add(f"v_add_u32 v{vEX}, s{sEX}, v{vM16}")
        own = 4*g; oth = 4 - own
        if g == 0: S.node(G[15,0,2], cm(CD[2], False)(F))
        S.node(G[15,2*g+1,2], mm(GA[2], XR(7,0), False)(F))
        for k in range(2): w64(f"ds_write_b128 v{vEX}, {v(GA[2]+oth+8*k,4)} offset:{g*8192+1024*k} #cs", None, before="cs")
        S.node(G[15,0,0], cm(CD[0], False)(F)); S.node(G[15,0,1], cm(CD[1], False)(F))
        for b in range(3 - g): S.adds(publish(CD[b], t0 + 2*b, t0 + 2*b + 1, vCW2, blk[b], "cs"), before="cs", prio=2)
        X = AK + 8
        S.add(f"ds_read_b128 {v(X,4)}, v{vEX} offset:{(1-g)*8192}", after="cs")
        S.add(f"ds_read_b128 {v(X+4,4)}, v{vEX} offset:{(1-g)*8192+1024}", after="cs")
        S.node(C[2], mm(GA[2], vMU, False)(F))
        S.adds([f"v_add_f32 v{X+4*hh+k}, v{X+4*hh+k}, v{GA[2]+8*hh+own+k}" for hh in range(2) for k in range(4)])
        S.adds(glu(X, X + 4, 4))
        S.add(mst(f"buffer_store_dwordx2 {v(X,2)}, v{vM16}, {s(SWS,4)}, s{sHF} offen offset:{(1-g)*2048+8*g}", "hs"), kind="misc", prio=1)
        fin = [(0, C[0], g*1024), (1, C[1], (1+g)*1024)]
    else:
        for b in range(3): S.node(G[15,0,b], cm(CD[b], False)(F))
        for b in range(3): S.adds(publish(CD[b], t0 + 2*b, t0 + 2*b + 1, vCW2, blk[b], "cs"), before="cs", prio=2)
        fin = [(0, r0[-1], 0), (1, C[1], 1024), (2, C[2], 2048)]
        def loads(m=" sc1"):
            o = [[f"buffer_load_dwordx4 {v(ZZ,4)}, v{vM16}, {s(SWS,4)}, s{sK2} offen sc1"]]
            for p in range(8):
                o.append(([f"s_add_u32 s{sT2}, s{sK1}, 4096"] if p == 4 else []) + [f"buffer_load_dwordx4 {v(LD+4*p,4)}, v{vM16}, {s(SWS,4)}, s{sK1 if p < 4 else sT2} offen offset:{(p%4)*1024}{m}"])
            return o
        L_ = loads("")
        S.add(L_[0], kind="misc", lo=lambda: C[2].idx - CFG["qload"] - CFG["qct"]).R |= {("x", 0)}
        zc = S.add([f"v_cmp_eq_u32 vcc, -1, v{ZZ}", "s_nop 1", f"s_cbranch_vccnz L_{sn}_zp", f"LABEL L_{sn}_zb"], lo=lambda: C[2].idx - CFG["qload"] - 1)
        zc.W |= {("s", sT1), ("x", 1)}
    if typ == 0 and CFG["f1"][2]:
        S.add(fload(), kind="misc", lo=lambda: C[2].idx + CFG["f1"][0]).R |= {("x", 0)}
        S.add(fcheck("q", CFG["f1"][2]), lo=lambda: C[2].idx + CFG["f1"][1]).W |= {("x", 1)}
        for k in range(2 * CFG["f1"][2]):
            if k < 4:
                for x in hload(k): S.add(x, kind="misc").R |= {("x", 1)}
    HS = {}
    for b, it, off in fin:
        S.node(it, mm(GA[b], vMU, False)(F))
        S.adds(glu(GA[b], GA[b] + 8, 8))
        if typ == 1 and b == 2:
            for x in L_[1:]: HS["l"] = S.add(x, kind="misc", lo=lambda: C[2].idx - CFG["qload"]); HS["l"].R |= {("x", 1)}
            S.add(fstore(1, "h0", vCT), kind="misc", ok=lambda n: aft(HS, 0, CFG["s1"])(n) and aft(HS, "l", 0)(n))
        if b == len(fin) - 1: S.add(fload(), kind="misc").R |= {("v", GA[b] + CFG["f2"]), ("x", 0)}
        HS[b] = S.add(mst(f"buffer_store_dwordx4 {v(GA[b],4)}, v{vM16}, {s(SWS,4)}, s{sHF} offen offset:{off}", f"h{b}"), kind="misc", prio=int(b < len(fin) - 1))
        if typ == 0 and b == 0 and CFG["f1"][2] == 3:
            for k in (4, 5):
                for x in hload(k): S.add(x, kind="misc").R |= {("x", 1)}
    def budget(n, it):
        if n < first[8].idx:
            if typ == 1: return CFG["qb"]
            if n < first["v1"].idx - D: return CFG["pb"]
            return CFG["vb"]
        if n < first[15].idx and typ == 0: return CFG["gb"]
        return 6
    S.budget = budget
    S.dbl = lambda n: n >= first[9].idx
    if typ == 1:
        for b in range(1, 9): S.prebar_budget[b] = CFG["qpb"]
    S.prebar_budget["cs"] = 6
    if typ == 0:
        for b in list(range(1, 8)) + ["v1"]: S.prebar_budget[b] = CFG["ppb"]
        for b in ("v3", "v6", 8): S.prebar_budget[b] = CFG.get("vpb", 0)
    S.dump = "dump" in k1.KN
    S.solve(main, ex)
    order = S.order; N = len(order)
    info = [f"typ{typ} g{g} N={N} bars={S.bs} extras={[(e.item.name, e.item.idx) for e in ex]} slots={len(S.slots)-D}"]
    if typ == 0: info.append(f"kvstore@{kvst.slot}")
    print(" ".join(info))
    nst = [1]
    def em(x):
        if x.startswith("LABEL"): P.label(x.split()[1])
        elif x.startswith("WAITVM"): P.wait_vm(x.split()[1])
        elif x.startswith("WAITLG"): P.wait_lg(x.split()[1])
        else: emit(P, x)
    for n, it, sm, va, mi in S.slots:
        m_ = n + D
        if m_ < N:
            nx = order[m_]
            if nx.bar is not None:
                P.comment(f"--- barrier {nx.bar}")
                if not ("nowait" in k1.KN and nx.bar != 0):
                    for tg in barwait[nx.bar]: P.wait_vm(tg)
                for tg in barlg.get(nx.bar, []): P.wait_lg(tg)
                I("s_barrier")
                nstamp(P, nx.bar, nst)
            f = FR[m_ % 4]
            rd = []
            for k, ad, im in nx.reads:
                rd.append({"tr": f"ds_read_b64_tr_b16 {v(f,2)}, v{ad} offset:{im}", "tr2": f"ds_read_b64_tr_b16 {v(f+2,2)}, v{ad} offset:{im}",
                           "b128": f"ds_read_b128 {v(f,4)}, v{ad} offset:{im}"}[k])
            for x in nx.pre[:1] + rd + nx.pre[1:]: I(x)
        body = []
        if it is not None:
            f = v(FR[n % 4], 4)
            if it.small: body.append(it.small(f))
            if sm: body += sm.texts
            body.append(it.mf(f))
        elif sm: body += sm.texts
        if "nofill" not in k1.KN or n >= N:
            for o in va: body += o.texts
        if it is not None:
            touch = set()
            for x in body:
                i_ = Ins(x.split("#")[0].strip()); touch |= i_.vr | i_.vw
            P.wait_regs(touch)
        for x in body: em(x)
        for o in mi:
            if "nowd" in k1.KN and any("#W" in x for x in o.texts): continue
            if "noxr" in k1.KN and any("#X" in x for x in o.texts): continue
            if "nodma" in k1.KN and any(" lds" in x for x in o.texts): continue
            for x in o.texts: em(x)
        if n == N - 1: nstamp(P, "last", nst)
    ACC = [208, 224, 240, 32]
    vXA, vXD = 4, 8
    def tok(tk):
        c = tk[0]; r = tk[1:]
        if c == "F": I(fload())
        elif c == "C":
            for x in fcheck(r[0], int(r[1:])): em(x)
        elif c == "L":
            for x in hload(int(r)):
                for y in x: em(y)
        elif c == "S":
            lv, tg = r.split(":")
            for x in fstore(int(lv), tg, vCT): em(x)
        elif c == "B": I("s_barrier")
        elif c == "T": nstamp(P, r, nst)
        elif c == "D":
            for x in wdma(int(r)):
                for y in x: em(y)
        elif c == "X":
            k = int(r); ad = (vRD0, vRD1); base = rbase
            if not 0 <= t.RG[RGN[k]] - rbase < 65000:
                ad = (5, 6); base = t.RG[RGN[k]]
                for cb in range(2): I(f"v_add_u32 v{ad[cb]}, {(base - rbase) & 0xffffffff}, v{(vRD0, vRD1)[cb]}")
            for x in wread(k, ad, base):
                for y in x: em(y)
        elif c == "M":
            k = int(r)
            for tb, cb in ((0, 0), (1, 0), (0, 1), (1, 1)):
                A = ACC[tb*2+cb]
                I(f"v_mfma_f32_32x32x16_bf16 {v(A,16)}, {v(WR[k]+4*cb,4)}, {v(HR[k]+4*tb,4)}, {'0' if k == 0 else v(A,16)}")
        elif c == "x":
            I(f"v_bfe_u32 v{vXA}, v{vM16}, 4, 5")
            I(f"v_bfe_u32 v7, v{vM16}, 9, 1")
            I(f"v_lshlrev_b32 v{vXA}, 10, v{vXA}")
            I(f"v_lshl_add_u32 v{vXA}, v7, 4, v{vXA}")
            I(f"buffer_load_dwordx4 {v(vXD,4)}, v{vXA}, {s(SX,4)}, s{sXO} offen")
        else: raise ValueError(tk)
    if typ == 1:
        nstamp(P, "oph", nst)
        I(f"s_mov_b32 s{sT0}, 0")
        P.label(f"L_{sn}_pre")
        for p in range(8): I(f"v_mfma_f32_16x16x32_bf16 {v(DD,4)}, {v(SEL,4)}, {v(LD+4*p,4)}, {'0' if p == 0 else v(DD,4)}")
        I(f"ds_write_b128 v{vTZ}, {v(ZZ,4)} offset:1024")
        I(f"v_mfma_f32_16x16x32_bf16 {v(LD,4)}, {v(SEL,4)}, {v(ZZ,4)}, {v(DD,4)}")
        I(f"v_cvt_pk_bf16_f32 v{LD+4}, v{DD}, v{DD+1}")
        I(f"v_cvt_pk_bf16_f32 v{LD+5}, v{DD+2}, v{DD+3}")
        I(f"ds_write_b64 v{vTW}, {v(LD+4,2)}")
        I(f"v_cmp_u_f32 vcc, v{LD}, v{LD}")
        I("s_nop 1")
        I(f"s_cbranch_vccnz L_{sn}_rt")
        P.label(f"L_{sn}_go")
        for tk in CFG["qo"][0].split(): tok(tk)
        P.wait_lg()
        I("s_barrier")
        AO = GA[0]; DO = [208, 224]
        for rho in range(2):
            for f in range(2): I(f"ds_read_b128 {v(AO+8*rho+4*f,4)}, v{vTR} offset:{rho*2048+16*f}")
        for rho in range(2):
            ph = AK + 8 if rho == 0 else AV
            for f in range(2):
                I(f"v_mfma_f32_32x32x16_bf16 {v(DO[rho],16)}, {v(AO+8*rho+4*f,4)}, {v(ph+4*f,4)}, {'0' if f == 0 else v(DO[rho],16)}")
        for tk in CFG["qo"][1].split(): tok(tk)
        for rho in range(2):
            Dd = DO[rho]
            for k in range(4): I(f"v_add_f32 v{Dd+8+k}, v{Dd+8+k}, v{Dd+12+k}")
            I(f"v_add_f32 v{Dd+8}, v{Dd+8}, v{Dd+9}")
            I(f"v_add_f32 v{Dd+10}, v{Dd+10}, v{Dd+11}")
            I(f"v_add_f32 v{Dd+8}, v{Dd+8}, v{Dd+10}")
            I(f"v_mov_b32 v{Dd+9}, v{Dd+8}")
            I(f"v_permlane32_swap_b32 v{Dd+8}, v{Dd+9}")
            I(f"v_add_f32 v{Dd+8}, v{Dd+8}, v{Dd+9}")
            I(f"v_add_f32 v{Dd+8}, {fbits(1e-6)}, v{Dd+8}")
            I(f"v_rcp_f32 v{Dd+8}, v{Dd+8}")
            for k in range(8): I(f"v_mul_f32 v{Dd+k}, v{Dd+k}, v{Dd+8}")
            for k in range(4): I(f"v_cvt_pk_bf16_f32 v{Dd+k}, v{Dd+2*k}, v{Dd+2*k+1}")
            for x in mst(f"buffer_store_dwordx4 {v(Dd,4)}, v{vM16}, {s(SWS,4)}, s{sEX} offen offset:{rho*1024}", "ho"): em(x)
    for tk in CFG["p2"][typ].split(): tok(tk)
    I(f"s_lshl_b32 s{sT0}, s{sMW}, 1")
    I(f"s_sub_u32 s{sT0}, s{sT0}, {MB}")
    I(f"v_add_u32 v5, s{sT0}, v{vM16}")
    I(f"v_add_u32 v6, {t.RG[4]}, v5")
    I(f"v_add_u32 v7, {t.RG[6]}, v5")
    I(f"v_add_u32 v12, s{sRB}, v{vM16}")
    for q in (0, 2, 1, 3):
        for e in range(4):
            r = 2*q + (e >> 1); ad, bs_ = (5, 0) if r < 4 else (6, t.RG[4]) if r < 6 else (7, t.RG[6])
            I(f"ds_write_b128 v{ad}, {v(ACC[q]+4*e,4)} offset:{t.RG[r] - bs_ + (e & 1)*1024}")
    XU = 16
    for k in range(4):
        I(f"v_lshlrev_b32 v{XU+2*k}, 16, v{vXD+k}")
        I(f"v_and_b32 v{XU+2*k+1}, s{sHI}, v{vXD+k}")
    P.wait_lg()
    I("s_barrier")
    nstamp(P, "red", nst)
    for w_ in range(8):
        for e in range(2): I(f"ds_read_b128 {v(128+8*w_+4*e,4)}, v12 offset:{w_*2048+e*1024}")
        if w_ == 6:
            for k in range(8): I(f"v_add_f32 v{XU+k}, v{XU+k}, v{128+k}")
    for w_ in range(1, 8):
        for k in range(8): I(f"v_add_f32 v{XU+k}, v{XU+k}, v{128+8*w_+k}")
    for k in range(4): I(f"v_cvt_pk_bf16_f32 v{XU+k}, v{XU+2*k}, v{XU+2*k+1}")
    I(f"buffer_store_dwordx4 {v(XU,4)}, v{vXA}, {s(SOUT,4)}, s{sXO} offen")
    while nst[0] < 18: nstamp(P, "-", nst)
    P.comment(f"STAMPS {typ}{g} " + " ".join(nst[1:]) + " end")
    dump_stamps(P, 19, SWS, sW, 8, sT0)
    I("s_endpgm")
    def poll(nm, back, sl, body, done):
        P.restore(([], [], [], False))
        P.label(f"L_{sn}_{nm}")
        I(f"s_mov_b32 s{sC}, 0")
        P.label(f"L_{sn}_{nm}l")
        I(f"s_sleep {sl}")
        for x in body: I(x)
        I(f"{done} L_{sn}_{back}")
        I(f"s_add_u32 s{sC}, s{sC}, 1")
        I(f"s_cmp_lt_u32 s{sC}, 20000")
        I(f"s_cbranch_scc1 L_{sn}_{nm}l")
        I(f"s_branch L_{sn}_{back}")
    for n_, x in enumerate(slow):
        P.restore(([], [], [], False))
        P.label(f"L_{sn}_ss{n_+1}")
        I("s_nop 4"); I(x + " sc1"); I("s_nop 4"); I(f"s_branch L_{sn}_sb{n_+1}")
    poll("cp", "cb", 16, [f"buffer_load_dword v{vCT}, v{vFL}, {s(SDB,4)}, 0 offen sc1"] + cck, "s_cbranch_vccz")
    for n_, (ty, lv) in enumerate(polls):
        poll(f"fp{n_+1}", f"fb{n_+1}", CFG["fsl"], [fload(), f"v_cmp_gt_u32 vcc, {lv}, v{vFL}", f"s_and_b32 s{sT1}, vcc_lo, {0xf0 if ty == 'q' else 0x0f}"], "s_cbranch_scc0")
    if typ == 1:
        poll("zp", "zb", CFG["zsl"], [loads()[0][0], f"v_cmp_eq_u32 vcc, -1, v{ZZ}", "s_nop 1"], "s_cbranch_vccz")
        P.restore(([], [], [], False))
        P.label(f"L_{sn}_rt")
        I(f"s_add_u32 s{sT0}, s{sT0}, 1")
        I(f"s_cmp_ge_u32 s{sT0}, 20000")
        I(f"s_cbranch_scc1 L_{sn}_go")
        I("s_waitcnt lgkmcnt(0)")
        for x in loads():
            for y in x: I(y)
        I("s_waitcnt vmcnt(0)")
        I(f"s_branch L_{sn}_pre")

def gen_k1(name):
    P = Prog()
    P.raw(f".globl {name}\n.p2align 8\n.type {name},@function\n{name}:")
    prologue(P, name)
    snap = P.snapshot()
    for k in range(4):
        P.restore(snap)
        if k: P.raw(".p2align 6"); P.label(f"L_{name}_r{k}")
        stream(P, k >> 1, k & 1, name)
    P.label(f"L_{name}_end")
    P.I("s_endpgm")
    return P
```

```python
from asmlib import Ins, TRANS
THREE = ("v_fma_", "v_fmac_", "v_max3", "v_min3", "v_add3", "v_lshl_add", "v_lshl_or", "v_and_or", "v_or3", "v_mad", "v_cndmask", "v_perm_b32", "v_bfi", "v_add_lshl", "v_xad")
SCC = 1000
class Op:
    def __init__(self, texts, tag=None, after=None, before=None, lo=None, hi=None, item=None, lat=None, kind=None, ok=None, cost=None, first=False, prio=0):
        if isinstance(texts, str): texts = [texts]
        self.texts = texts; self.tag = tag; self.after = after; self.before = before
        self.prio = prio; self.first = first; self.ok = ok; self.lo = lo; self.hi = hi; self.item = item; self.lat = lat
        self.R = set(); self.W = set()
        cl = []
        for t in texts:
            if t.startswith(("LABEL", "WAIT")): continue
            i = Ins(t.split("#")[0].strip())
            self.R |= {("v", r) for r in i.vr} | {("s", r) for r in i.sr}
            self.W |= {("v", r) for r in i.vw} | {("s", r) for r in i.sw if r not in (126, 127)}
            if i.op.startswith("v_cndmask") and "vcc" not in t: pass
            cl.append(i)
        i = cl[-1]
        if kind: self.kind = kind
        elif len(texts) == 1 and i.cls in ("valu", "trans"): self.kind = "valu"
        elif len(texts) == 1 and i.cls == "mfma": self.kind = "big" if i.passes == 8 else "small"
        else: self.kind = "misc"
        self.cost = cost if cost is not None else (2 if i.cls == "trans" else 1)
        self.trans = i.cls == "trans"
        self.three = i.op.startswith(THREE)
        self.nds = sum(1 for x in cl if x.cls == "ds"); self.nvm = sum(1 for x in cl if x.cls == "vmem")
        self.dsr = any(x.cls == "ds" and x.vw for x in cl)
        self.vml = any(x.cls == "vmem" and x.vw for x in cl)
        self.slot = None; self.deps = []
    def __repr__(self): return f"<{self.kind} {self.texts[-1]} @{self.slot}>"

class Item:
    def __init__(self, mf=None, reads=(), small=None, bar=None, pre=(), name="", needbar=None):
        self.mf = mf; self.reads = list(reads); self.small = small; self.bar = bar; self.pre = list(pre); self.name = name
        self.needbar = needbar; self.idx = None

def latency(p, raw):
    if p.lat is not None and raw: return p.lat
    if p.kind == "big": return 2 if raw else 0
    if p.kind == "small": return 1 if raw else 0
    if raw and p.dsr: return 2
    if raw and p.vml: return 8
    return 0

class Sched:
    def __init__(self, D=3):
        self.D = D; self.items = []; self.ops = []; self.budget = lambda n, it: 6
        self.prebar_budget = {}; self.dbl = lambda n: False
    def add(self, *a, **k):
        o = Op(*a, **k); self.ops.append(o); return o
    def adds(self, lst, **k): return [self.add(t, **k) for t in lst]
    def node(self, item, text, kind=None):
        o = Op(text, item=item, kind=kind); self.ops.append(o); return o
    def mkdeps(self):
        lastw = {}; readers = {}
        for o in self.ops:
            d = {}
            for r in o.R | o.W:
                if r in lastw: d[id(lastw[r])] = (lastw[r], r[0] == "v" or d.get(id(lastw[r]), (0, False))[1])
            for r in o.W:
                for q in readers.get(r, ()):
                    if id(q) not in d: d[id(q)] = (q, False)
            o.deps = [(p, latency(p, raw)) for p, raw in d.values() if p is not o]
            for r in o.R: readers.setdefault(r, []).append(o)
            for r in o.W: lastw[r] = o; readers[r] = []
    def res(self, x):
        if x is None: return None
        if callable(x): return x()
        if isinstance(x, tuple): return x[0].idx + x[1]
        return x
    def run(self, order):
        D = self.D
        for it in self.items_all: it.idx = None
        for n, it in enumerate(order): it.idx = n
        self.bs = {it.bar: n - D for n, it in enumerate(order) if it.bar is not None}
        pre = {b - 1: k for k, b in self.bs.items()}
        for o in self.ops: o.slot = o.item.idx if o.item is not None else None
        pend = [o for o in self.ops if o.item is None]
        for o in pend:
            l = -99
            if o.after is not None: l = max(l, self.bs[o.after])
            if o.lo is not None: l = max(l, self.res(o.lo))
            o._lo = l
        N = len(order); slots = []
        def ready(o, n):
            if o._lo > n or (o.ok is not None and not o.ok(n)): return False
            for p, l in o.deps:
                if p.slot is None or p.slot + l > n: return False
            return True
        n = -D; idle = 0
        while n < N or (pend and idle < 12):
            sm = None; va = []; mi = []
            it = order[n] if 0 <= n < N else None
            if n >= 0 and (it is None or it.small is None or self.dbl(n)):
                for o in pend:
                    if o.kind == "small" and ready(o, n) and all(p.slot < n for p, l in o.deps):
                        sm = o; o.slot = n; pend.remove(o); break
            if n < 0: B = 0
            elif it is None: B = 8
            elif n in pre: B = self.prebar_budget.get(pre[n], 0)
            else: B = self.budget(n, it)
            used = 0
            if B:
                for o in pend:
                    if o.first and ready(o, n) and all(p.slot < n for p, l in o.deps):
                        o.slot = n; pend.remove(o); va.append(o); used += o.cost; break
            while used < B:
                c = None; fb = None
                for o in pend:
                    if o.kind != "valu" or o.first or not ready(o, n): continue
                    bad = (o.three and used < 2 and it is not None) or (va and va[-1].trans and not o.trans and (va[-1].W & o.R))
                    if used + o.cost > B: continue
                    if not bad: c = o; break
                    if fb is None: fb = o
                if c is None:
                    if fb is None: break
                    c = fb
                    pen = max(used, 2) if c.three else used + 1
                    if pen + c.cost > B: break
                    used = pen
                c.slot = n; pend.remove(c); va.append(c); used += c.cost
            nds = nvm = 0
            for o in sorted(pend, key=lambda o: -o.prio):
                if o.kind != "misc" or not ready(o, n): continue
                if it is not None or n < 0:
                    if o.nds and nds + o.nds > (4 if o.nds == 2 else 2): continue
                    if o.nvm and nvm: continue
                o.slot = n; pend.remove(o); mi.append(o); nds += o.nds; nvm += o.nvm
            slots.append((n, it, sm, va, mi))
            if n >= N: idle = 0 if (sm or va or mi) else idle + 1
            n += 1
        self.slots = slots; self.left = pend
    def ok_item(self, o):
        n = o.item.idx
        for p, l in o.deps:
            if p.slot is None or p.slot + max(l, 1) > n:
                if p.item is not None and p.slot is not None and p.slot < n: continue
                return False
        if o.item.needbar is not None and n - self.D < self.bs[o.item.needbar]: return False
        return True
    def solve(self, main, extras):
        self.items_all = list(main) + [e.item for e in extras]
        self.mkdeps()
        order = list(main); prev = None
        for e in extras:
            self.run(order)
            n = max([p.slot + (1 if p.item is not None else max(l, 1)) for p, l in e.deps] + [0])
            if e.item.needbar is not None: n = max(n, self.bs[e.item.needbar] + self.D + 1)
            n -= 2
            if prev is not None: n = max(n, prev.idx + 1)
            prev = e.item
            while True:
                o2 = order[:n] + [e.item] + order[n:]
                self.run(o2)
                if self.ok_item(e): break
                n += 1
                assert n <= len(order) + 1, ("cannot place", e)
            order = o2
        self.run(order)
        if getattr(self, "dump", False):
            for n, it, sm, va, mi in self.slots:
                print(n, it.name if it else "-", "s" if (sm or (it and it.small)) else " ", "B" if n in self.bs.values() else " ", sum(o.cost for o in va), " ".join(o.texts[0].split()[0][2:].replace("_f32","").replace("_b32","").replace("_u32","") for o in va), "|", " ".join([x for x in o.texts if not x.startswith("s_")][-1].split()[0] if any(not x.startswith("s_") for x in o.texts) else "salu" for o in mi))
        assert not self.left, self.left[:5]
        for o in self.ops:
            if o.item is not None: assert self.ok_item(o), ("item dep violated", o, [(p, l) for p, l in o.deps])
            if o.before is not None: assert o.slot < self.bs[o.before], ("before", o, o.before, self.bs[o.before])
            if o.hi is not None: assert o.slot <= self.res(o.hi), ("hi", o, self.res(o.hi))
        self.order = order
```

```python
import sys
import k1, k1d
from gen import build
args = sys.argv[1:]
out = args[0]; fl = set(a for a in args[1:] if "=" not in a)
k1.KN = fl
k1.PROF = "prof" in fl
for f in args[1:]:
    if "=" in f:
        k, val = f.split("=", 1)
        if k == "rot": k1d.CFG[k] = val
        elif k in ("hm", "fm"): k1d.CFG[k] = " " + val if val else ""
        else: k1d.CFG[k] = eval(val)
NAME = "parallel_sum__linear_kernel_hedgehog__glu_gated_glu__prompt_kernel" if "final" in fl else "k1_kernel"
P1 = k1d.gen_k1(NAME)
print(P1.count, P1.nnop)
build([(NAME, P1, 256, 512, k1.LDS_BYTES, 256)], out)
if "final" in fl:
    t = open(out).read().replace(f"; @launch kernel={NAME} ", "; @launch ")
    open(out, "w").write(t)
```

```python
from asmlib import Prog, Ins, v, s
from sched import Sched, Item, Op
import k1
from k1 import fbits, LOG2E, stamp, pstamp, dump_stamps

MB = 122880
HF_OFF = MB
KVP_OFF = 0xC00000
WS_BYTES = 0x1000000
PH = 103040; OT = 106688; CSP = 156288
FLG = 0xD00000
LDS_BYTES = 163840
SDB, SX, SWQ, SWG, SWU, SWS, SWP, SWO, SWD = 4, 8, 12, 16, 20, 24, 28, 44, 48
sW, sT, sA, sTY, sR, sI, sMX, sMW, sMG, sC, sO1, sO2 = range(32, 44)
sHF, sK1, sK2, sHI, sT0, sT1, sT2, sT3 = range(52, 60)
sI4, sEX = 3, 35
sFL = sT; SOUT = SWQ
sHQ, sHO, sHK, sFR = range(SWP, SWP + 4)
sXO, sRB = 0, 1
sXV, sMD = 100, 101
vM16 = 0; vGO = [1, 2, 3]; vAG = [4, 5, 6, 7]; vMU = 8; CP = 12; CD = [16, 18, 20]
vC1, vSTD, vRS, vWF, vPH, vKA, vKB, vSM = range(24, 32)
vMX = vRS
FR = [32, 36, 40, 44]
AK, AV = 48, 64
GA = [80, 96, 112]
vXO, vWO, vLN, vST, vSQ = 80, 81, 82, 83, 84
vU = [85, 86, 87, 88]
vSTW, vSTR, vWPV, vWPA, vTCH, vCW = 89, 90, 91, 92, 93, 94
vAX = [[96, 97, 98, 99], [100, 101, 102, 103]]
vAA = [[104, 105, 106, 107], [108, 109, 110, 111]]
def XR(i, p): return 128 + (4 * i + p) * 4
CFG = dict(gb=6, pb=8, ppb=8, vb=6, paceg=1, b0end=1, pro=3, pace=0, tch=13, gt=0, rot="a", acc2=1, hstag=0, ns=([2]*8, [2]*8), phbar=(9, 10), qload=8, b0=8, hm=" sc1", qb=6, qpb=6, qpub=9,
           vdm={4: [0], 5: [1, 2], 6: [3, 4, 5], 7: [6, 7]}, g8=7, sq=[[0], [1], [2, 3], [4], [5], [6], [7], []], wc=0, qct=14, sq7=1, v1=(0, 2), skip=(3, 5, "v3", "ph", 12))
CFG.update(zd=12, rot="f", thl=((8, 9, 10), (8, 8, 9, 9, 10)), tho=0, th=8, thb=4, xm=1, fm=" sc1", tch=6, phbar=(9, 2), vpb=6, vb=7, gb=7, qload=0, qct=10, zsl=8, fsl=4, wb=(10, 10), wl=10, wg=2, f1=(0, 9, 0), f2=3, s1=12, atm=(7, 6, 2, -9),
           skip=(1, 2, 3, 4, 5, 6, 7, "v1", "v3", "v6", "ph", 9, 10, 11, 12, 15),
           st=((), ()),
           qo=("S3:h2 F T1", "D14"),
           p2=("Tp2 S3:h1 Ts3 Cq3 Tq3 L0 L1 F L2 L3 L4 L5 Cq4 Tq4 L6 L7 M0 M1 L8 L9 M2 Ck3 Tk3 L10 M3 L11 L12 M4 L13 M5 L14 X12 X13 X14 x Tb M6 M7 M8 M9 Tm9 B M10 M11 M12 M13 M14 Td",
               "Tp2 S4:ho Ts4 Cq3 L0 L1 F L2 L3 L4 L5 Cq4 Tq4 L6 L7 L8 L9 M0 Ck3 Tk3 L10 M1 L11 X10 X11 M2 L12 M3 L13 M4 L14 M5 X12 X13 X14 x M6 M7 M8 M9 Tm9 M10 M11 M12 M13 M14 Td"))
CFG.update(t3b=1, dup=1, swp=1, t3=4, tx=(None, 9, 2), f1=(0, 5, 0), s1=5, fsl=2, thl=((8, 8, 8), (8, 8, 8, 8, 8)))
STN = []
def nstamp(P, nm, nst):
    if nm in CFG["skip"]: return
    if nst[0] < 18: stamp(P, nst[0]); nst[0] += 1; nst.append(str(nm))
def HM(): return CFG["hm"]

class T:
    def __init__(s, typ):
        s.typ = typ
        s.RB = 192 if typ else 160; s.NP = 12 if typ else 10; s.MUL = 171 if typ else 205
        s.UP = 64 * s.RB + (32 if typ else 128); s.SL = 2 * 64 * s.RB + (64 if typ else 128)
        s.XB = (0, 3 * s.SL) if typ else (20608, 103040)
        s.WB = (16384, 16384 + 3 * s.SL) if typ else (12416, 82432)
        s.ST = 131072 if typ else 98816
        s.WPH = CSP + 2048 if typ else 152192
        s.RG = [0, 16384, 32768, 49152] + ([73920, 90304, 123200, 139584] if typ else [65536, PH, PH + 16384, PH + 32768])
    def xp(s, st): return ((st + 2) % 5) * s.SL if s.typ else (20608, 41216, 119424, 103040, 66048, 82432, 119424, 103040)[st]
    def wp(s, st): return s.xp(st) + 16384 if s.typ else (12416, 57600, 144000, 135808)[st % 4]
    def vp(s, c): return (20608, 41216, 66048, 82432)[c >> 1] + 8192 * (c & 1)
    def sp(s, o, B):
        hi = int(o >= B[1]); assert 0 <= o - B[hi] <= 65000; return hi, o - B[hi]
    def g(s, st): return ((st - 8) % 5) * s.SL

def dma_x(t, st):
    return [[f"s_add_u32 s{sC}, s{sR}, {st}", f"s_and_b32 s{sC}, s{sC}, 7", f"s_add_u32 m0, s{sMX}, {t.xp(st)}", f"s_lshl_b32 s{sO1}, s{sC}, 7",
             f"buffer_load_dwordx4 v{vXO}, {s(SX,4)}, s{sO1} offen lds #x{st}"],
            [f"s_add_u32 s{sO1}, s{sO1}, {16384 - 2048}", f"buffer_load_dwordx4 v{vXO}, {s(SX,4)}, s{sO1} offen offset:2048 lds #x{st}"]]
def dma_w(t, st):
    o = [[f"s_add_u32 s{sC}, s{sR}, {st}", f"s_and_b32 s{sC}, s{sC}, 7", f"s_add_u32 m0, s{sMW}, {t.wp(st)}", f"s_mul_i32 s{sO2}, s{sC}, {64*3072}",
          f"buffer_load_dwordx4 v{vWO}, {s(SWQ,4)}, s{sO2} offen lds #w{st}"]]
    return o
def dma_v(t, c):
    return [[f"s_add_u32 s{sC}, s{sR}, {c}", f"s_and_b32 s{sC}, s{sC}, 7", f"s_add_u32 m0, s{sMW}, {t.vp(c) - 1024}", f"s_mul_i32 s{sO2}, s{sC}, {64*3072}",
          f"buffer_load_dwordx4 v{vWO}, {s(SWQ,4)}, s{sO2} offen offset:1024 lds #v{c}"]]
def dma_g(t, g, st):
    S = s(SWU if g else SWG, 4)
    m = [f"s_add_u32 m0, s{sMG}, {t.g(st)}"] if st >= 12 else []
    o = [[f"s_add_u32 s{sC}, s{sR}, {st}", f"s_and_b32 s{sC}, s{sC}, 7", f"s_add_u32 m0, s{sMG}, {t.g(st)}", f"s_mul_i32 s{sO2}, s{sC}, {64*2752}",
          f"buffer_load_dwordx4 v{vGO[0]}, {S}, s{sO2} offen lds #w{st}"],
         m + [f"buffer_load_dwordx4 v{vGO[1]}, {S}, s{sO2} offen offset:1024 lds #w{st}"]]
    l = f"buffer_load_dwordx4 v{vGO[2]}, {S}, s{sO2} offen offset:2048 lds #w{st}"
    o.append(m + ([l] if t.typ else ["s_mov_b32 exec_hi, 0", l, "s_mov_b32 exec_hi, -1"]))
    return o

def stream_list(t, g):
    o = []
    for st in range(1, 8): o += [dma_x(t, st), dma_w(t, st)]
    return o

def emit(P, t):
    tag = None
    if "#" in t: t, tag = t.split("#"); t = t.strip()
    P.I(t, tag)

def prologue(P, name):
    I = P.I
    stamp(P, 0)
    I("s_cmp_ge_u32 s2, 256")
    I(f"s_cbranch_scc1 L_{name}_end")
    I(f"s_load_dwordx4 s[8:11], s[0:1], 0")
    if CFG.get("ct"):
        I("s_getpc_b64 s[4:5]")
        P.label(f"L_{name}_pc")
        I("s_lshr_b32 s3, s2, 3")
        I("s_lshl_b32 s3, s3, 11")
        I("v_lshrrev_b32 v1, 5, v0")
        I("v_lshl_add_u32 v1, v1, 7, s3")
        I(f"s_mov_b32 s6, L_{name}_end-L_{name}_pc")
        I("s_mov_b32 s7, 0x20000")
        I("buffer_load_dword v127, v1, s[4:7], 0 offen")
    I(f"v_lshrrev_b32 v1, 6, v0")
    I(f"v_and_b32 v{vLN}, 63, v0")
    I(f"v_readfirstlane_b32 s{sW}, v1")
    I(f"s_and_b32 s{sT0}, s2, 1")
    I(f"s_bfe_u32 s{sT1}, s2, 0x30003")
    I(f"s_lshl3_add_u32 s{sT}, s{sT0}, s{sT1}")
    I(f"s_lshr_b32 s{sT2}, s2, 6")
    I(f"s_and_b32 s{sT0}, s2, 6")
    I(f"s_and_b32 s{sT1}, s{sT2}, 1")
    I(f"s_add_u32 s{sA}, s{sT0}, s{sT1}")
    I(f"s_lshl1_add_u32 s{sR}, s{sT2}, s{sT}")
    rot = CFG["rot"]
    if CFG["xm"]:
        I(f"s_and_b32 s{sT0}, s2, 7")
        I(f"s_bfe_u32 s{sT1}, s2, 0x10006")
        I(f"s_lshl1_add_u32 s{sT}, s{sT0}, s{sT1}")
        I(f"s_bfe_u32 s{sA}, s2, 0x30003")
        if CFG.get("ap"): I(f"s_xor_b32 s{sA}, s{sA}, {CFG['ap']}")
        if rot[0] == "e": I(f"s_mov_b32 s{sR}, s{sT0}")
        if rot[0] == "f": I(f"s_add_u32 s{sR}, s{sT0}, s{sA}")
        if rot[0] == "g": I(f"s_lshl2_add_u32 s{sR}, s{sT1}, s{sT0}")
        if rot[0] == "h": I(f"s_lshl1_add_u32 s{sR}, s{sT2}, s{sT0}")
        if rot[0] == "i": I(f"s_lshl2_add_u32 s{sR}, s{sT1}, s{sT0}"); I(f"s_add_u32 s{sR}, s{sR}, s{sA}")
    if rot[0] == "b": I(f"s_add_u32 s{sR}, s{sT2}, s{sT}"); I(f"s_lshl_b32 s{sR}, s{sR}, 1")
    if rot[0] == "c": I(f"s_add_u32 s{sR}, s{sT2}, s{sT}"); I(f"s_lshl_b32 s{sR}, s{sR}, 2")
    if rot[0] == "d": I(f"s_mov_b32 s{sR}, 0")
    if rot[1:] == "x": I(f"s_add_u32 s{sR}, s{sR}, s2")
    if rot[1:] == "y": I(f"s_lshr_b32 s{sC}, s2, 1"); I(f"s_add_u32 s{sR}, s{sR}, s{sC}"); I(f"s_and_b32 s{sC}, s2, 1"); I(f"s_lshl1_add_u32 s{sR}, s{sC}, s{sR}")
    if rot[1:] == "z": I(f"s_add_u32 s{sR}, s{sR}, s{sT0}"); I(f"s_and_b32 s{sC}, s2, 1"); I(f"s_lshl2_add_u32 s{sR}, s{sC}, s{sR}")
    I(f"v_lshrrev_b32 v2, 4, v{vLN}")
    I(f"v_lshrrev_b32 v3, 3, v{vLN}")
    I(f"v_and_b32 v4, 7, v{vLN}")
    I(f"s_and_b32 s{sT0}, s{sW}, 1")
    I(f"s_lshr_b32 s{sT1}, s{sW}, 1")
    I(f"s_lshl2_add_u32 s{sT1}, s{sT1}, s{sT0}")
    I(f"s_lshl_b32 s{sMX}, s{sT1}, 10")
    I(f"s_lshl4_add_u32 s{sT1}, s{sT}, s{sT1}")
    I(f"s_lshl_b32 s{sT1}, s{sT1}, 13")
    I(f"s_lshl_b32 s{sT0}, s{sT0}, 2")
    I(f"v_or_b32 v5, s{sT0}, v2")
    I(f"v_xor_b32 v5, v5, v4")
    I(f"v_lshlrev_b32 v5, 4, v5")
    I(f"v_lshl_add_u32 v5, v3, 10, v5")
    I(f"v_add_u32 v{vXO}, s{sT1}, v5")
    I(f"s_lshl_b32 s{sMW}, s{sW}, 10")
    I(f"s_mul_i32 s{sT0}, s{sW}, {8*3072}")
    I(f"s_lshl_b32 s{sT1}, s{sA}, 7")
    I(f"s_add_u32 s{sT0}, s{sT0}, s{sT1}")
    I(f"s_and_b32 s{sC}, s{sR}, 7")
    I(f"s_lshl_b32 s{sO1}, s{sC}, 7")
    I(f"s_mul_i32 s{sO2}, s{sC}, {64*3072}")
    I(f"s_cmp_lt_u32 s2, 128")
    I(f"s_cselect_b32 s{sT1}, 1024, 0")
    I(f"s_cselect_b32 s{sT3}, 0, {T(1).xp(0) - T(0).xp(0)}")
    I(f"s_cselect_b32 s{sT2}, 0, {T(1).wp(0) - T(0).wp(0)}")
    I(f"s_add_u32 s{sT3}, s{sT3}, {T(0).xp(0)}")
    I(f"s_add_u32 s{sT2}, s{sT2}, {T(0).wp(0)}")
    I(f"s_add_u32 s{sT0}, s{sT0}, s{sT1}")
    I(f"v_and_b32 v5, 1, v2")
    I(f"v_lshlrev_b32 v5, 2, v5")
    I(f"v_xor_b32 v5, v5, v4")
    I(f"v_lshlrev_b32 v5, 4, v5")
    I(f"v_mul_u32_u24 v6, 3072, v3")
    I(f"v_add3_u32 v{vWO}, v5, v6, s{sT0}")
    I(f"s_add_u32 m0, s{sMX}, s{sT3}")
    I(f"s_add_u32 s{sT1}, s{sO1}, {16384 - 2048}")
    I(f"s_mov_b32 s{SWQ+2}, {512*3072}")
    I(f"s_mov_b32 s{SWQ+3}, 0x20000")
    pstamp(P, 1)
    I("s_waitcnt lgkmcnt(0)")
    pstamp(P, 2)
    I(f"s_mov_b32 s{SWQ}, s10")
    I(f"s_mov_b32 s{SWQ+1}, s11")
    I(f"s_mov_b32 s{SX+2}, 2097152")
    I(f"s_mov_b32 s{SX+3}, 0x20000")
    I(f"buffer_load_dwordx4 v{vXO}, {s(SX,4)}, s{sO1} offen lds", "x0")
    I(f"buffer_load_dwordx4 v{vXO}, {s(SX,4)}, s{sT1} offen offset:2048 lds", "x0")
    I(f"s_add_u32 m0, s{sMW}, s{sT2}")
    I(f"buffer_load_dwordx4 v{vWO}, {s(SWQ,4)}, s{sO2} offen lds", "w0")
    for r, o in ((SWP, 16), (SWG, 40), (SWU, 48), (SWS, 80), (SDB, 72), (SWO, 24), (SWD, 56), (SWO + 2, 64)):
        I(f"s_load_dwordx2 {s(r,2)}, s[0:1], {o}")
    pstamp(P, 3)
    I(f"s_and_b32 s{sI}, s{sW}, 3")
    I(f"s_lshr_b32 s{sT0}, s{sW}, 2")
    I(f"s_lshr_b32 s{sT1}, s2, 7")
    I(f"s_lshl1_add_u32 s{sT0}, s{sT1}, s{sT0}")
    for k in (1, 2, 3):
        I(f"s_cmp_eq_u32 s{sT0}, {k}")
        I(f"s_cbranch_scc1 L_{name}_r{k}")

def setup(P, t, g):
    I = P.I; typ = t.typ
    a, b, c, d, h, sb, r, sw, row, j4 = range(112, 122)
    for R, n in ((SWP, 16384), (SWG, 512*2752), (SWU, 512*2752), (SWS, WS_BYTES), (SDB, 256), (SWD, 1376*1024)):
        if R == (SWG if g else SWU): continue
        I(f"s_mov_b32 s{R+2}, {n}")
        I(f"s_mov_b32 s{R+3}, 0x20000")
    I(f"s_mov_b32 s{sHI}, 0xffff0000")
    I(f"s_getreg_b32 s{sXV}, hwreg(HW_REG_XCC_ID, 0, 4)")
    I(f"s_mul_i32 s{sMD}, s{sXV}, s{sXV}")
    I(f"s_lshl_b32 s{sMD}, s{sMD}, 9")
    I(f"s_add_u32 s{sXV}, s{sXV}, s{sMD}")
    I(f"s_lshl_b32 s{sXV}, s{sXV}, 8")
    I(f"s_add_u32 s{sXV}, s{sXV}, 1")
    I(f"s_lshl_b32 s{sI4}, s{sI}, 2")
    I(f"v_mov_b32 v{j4}, v2")
    I(f"v_lshrrev_b32 v{h}, 5, v{vLN}")
    I(f"v_and_b32 v{sb}, 1, v2")
    I(f"v_bfe_u32 v{r}, v{vLN}, 2, 2")
    I(f"v_bfe_u32 v{a}, v{vLN}, 1, 1")
    I(f"v_and_b32 v{b}, 1, v{vLN}")
    I(f"v_lshl_or_b32 v{sw}, v{b}, 1, v{a}")
    I(f"v_lshlrev_b32 v{sw}, 3, v{sw}")
    I(f"v_lshl_add_u32 v{row}, v{h}, 3, v{r}")
    I(f"v_lshl_or_b32 v{c}, v{sb}, 1, v{a}")
    I(f"v_lshlrev_b32 v{c}, 3, v{c}")
    I(f"v_lshl_add_u32 v{c}, v{row}, 5, v{c}")
    I(f"v_lshl_add_u32 v{c}, v{b}, 11, v{c}")
    I(f"v_add_u32 v{vWF}, {t.WPH + g*1024}, v{c}")
    if typ == 0:
        I(f"v_bfe_u32 v{c}, v{vLN}, 2, 3")
        I(f"v_lshl_add_u32 v{c}, v{h}, 4, v{c}")
        I(f"v_mul_u32_u24 v{c}, 96, v{c}")
        I(f"v_lshl_add_u32 v{c}, v{b}, 3, v{c}")
        I(f"s_lshr_b32 s{sT0}, s{sI}, 1")
        I(f"s_mul_i32 s{sT0}, s{sT0}, 12288")
        I(f"s_add_u32 s{sT0}, s{sT0}, {PH + 2*g*12288}")
        I(f"s_and_b32 s{sT1}, s{sI}, 1")
        I(f"s_lshl_b32 s{sT1}, s{sT1}, 5")
        I(f"s_add_u32 s{sT1}, s{sT1}, s{sT0}")
        I(f"v_xor_b32 v{d}, v{a}, v{sb}")
        I(f"v_lshlrev_b32 v{d}, 4, v{d}")
        I(f"v_add3_u32 v{vKA}, v{c}, v{d}, s{sT1}")
    I(f"v_and_b32 v{b}, 2, v{r}")
    I(f"v_or_b32 v{b}, v{b}, v{sb}")
    I(f"v_lshl_add_u32 v{b}, v{b}, 5, v{sw}")
    I(f"v_lshl_add_u32 v{b}, v{row}, 7, v{b}")
    I(f"s_lshl_b32 s{sT0}, s{sI}, 11")
    if g: I(f"s_add_u32 s{sT0}, s{sT0}, 64")
    I(f"v_xor_b32 v{vAA[0][0]}, s{sT0}, v{b}")
    I(f"v_and_b32 v{a}, 31, v{vLN}")
    I(f"v_bfe_u32 v{b}, v{vLN}, 1, 3")
    I(f"v_xor_b32 v{b}, v{b}, v{h}")
    I(f"v_lshlrev_b32 v{b}, 4, v{b}")
    I(f"v_lshl_add_u32 v{b}, v{a}, 7, v{b}")
    I(f"s_mul_i32 s{sT0}, s{sI}, {4096 + 32}")
    I(f"v_xor_b32 v{vAX[0][0]}, s{sT0}, v{b}")
    for p in range(1, 4):
        I(f"v_xor_b32 v{vAX[0][p]}, {p*32}, v{vAX[0][0]}")
        I(f"v_xor_b32 v{vAA[0][p]}, {p*2048}, v{vAA[0][0]}")
    for p in range(4):
        I(f"v_add_u32 v{vAX[1][p]}, {t.XB[1]}, v{vAX[0][p]}")
        I(f"v_add_u32 v{vAA[1][p]}, {t.WB[1]}, v{vAA[0][p]}")
        if t.XB[0]: I(f"v_add_u32 v{vAX[0][p]}, {t.XB[0]}, v{vAX[0][p]}")
        I(f"v_add_u32 v{vAA[0][p]}, {t.WB[0]}, v{vAA[0][p]}")
    I(f"s_lshl_b32 s{sT0}, s{sI}, 9")
    I(f"s_add_u32 s{sT0}, s{sT0}, {t.ST}")
    I(f"v_lshlrev_b32 v{b}, 4, v{a}")
    I(f"v_add_u32 v{vSTR}, s{sT0}, v{b}")
    I(f"v_lshl_add_u32 v{vSTW}, v{h}, 2, v{vSTR}")
    I(f"v_lshl_add_u32 v{vSTW}, v{sb}, 3, v{vSTW}")
    if g: I(f"v_xor_b32 v{vSTW}, 8, v{vSTW}")
    if typ == 0:
        I(f"v_mul_u32_u24 v{b}, 96, v{a}")
        I(f"v_and_b32 v{c}, 4, v{a}")
        I(f"v_lshlrev_b32 v{c}, 2, v{c}")
        I(f"s_mul_i32 s{sT0}, s{sI}, 3072")
        I(f"s_add_u32 s{sT0}, s{sT0}, {PH + 2*g*12288}")
        I(f"v_add3_u32 v{b}, v{b}, v{c}, s{sT0}")
        I(f"v_lshl_add_u32 v{vPH}, v{h}, 5, v{b}")
        I(f"v_lshlrev_b32 v{c}, 4, v{h}")
        I(f"v_xor_b32 v{vKB}, v{b}, v{c}")
    I(f"v_mul_u32_u24 v{b}, {t.RB}, v{row}")
    I(f"v_mul_u32_u24 v{c}, {t.UP}, v{sb}")
    I(f"v_add3_u32 v{b}, v{b}, v{c}, v{sw}")
    for p in range(4):
        I(f"s_xor_b32 s{sT0}, s{sI}, {p}")
        I(f"s_mul_i32 s{sT0}, s{sT0}, {16*t.RB}")
        I(f"v_add_u32 v{vAG[p]}, s{sT0}, v{b}")
    I(f"s_mul_i32 s{sMG}, s{sI}, {16*t.RB}")
    if g: I(f"s_add_u32 s{sMG}, s{sMG}, {t.UP}")
    if typ == 0:
        I(f"s_mul_i32 s{sT2}, s{sA}, 5")
        I(f"s_min_u32 s{sT2}, s{sT2}, 33")
        I(f"s_add_u32 s{sT2}, s{sT2}, 48")
    else: I(f"s_mul_i32 s{sT2}, s{sA}, 6")
    I(f"s_mul_i32 s{sT0}, s{sI}, {16*2752}")
    I(f"s_lshl_b32 s{sT1}, s{sT2}, 5")
    I(f"s_add_u32 s{sT0}, s{sT0}, s{sT1}")
    I(f"s_mov_b32 s{sT1}, {2752 - 16*t.NP}")
    I(f"v_lshlrev_b32 v{a}, 4, v{vLN}")
    I(f"v_add_u32 v{vM16}, {MB}, v{a}")
    I(f"v_add_u32 v{a}, s{sT0}, v{a}")
    I(f"v_mul_u32_u24 v{b}, {t.MUL}, v{vLN}")
    for j in range(3):
        if j: I(f"v_add_u32 v{b}, {64*t.MUL}, v{b}")
        I(f"v_lshrrev_b32 v{c}, 11, v{b}")
        I(f"v_mad_u32_u24 v{vGO[j]}, v{c}, s{sT1}, v{a}")
        if typ == 0 and CFG["dup"]:
            if j == 0:
                I(f"s_cmp_eq_u32 s{sA}, 7")
                I(f"s_cselect_b32 s{sT3}, {4*t.MUL}, 0")
            I(f"v_and_b32 v{c}, 0x7ff, v{b}")
            I(f"v_cmp_gt_u32 vcc, s{sT3}, v{c}")
            I(f"v_cndmask_b32 v{vGO[j]}, v{vGO[j]}, 2.0, vcc")
    I(f"v_and_b32 v{a}, 15, v{vLN}")
    I(f"v_lshlrev_b32 v{b}, 2, v{j4}")
    I(f"v_mov_b32 v{c}, 0x3f803f80")
    I(f"v_cmp_eq_u32 vcc, v{a}, v{b}")
    for k in range(4): I(f"v_cndmask_b32 v{CP+k}, 0, v{c}, vcc")
    I(f"v_xor_b32 v{b}, s{sI4}, v{b}")
    I(f"v_or_b32 v{vCW}, v{b}, v{vM16}")
    I(f"s_lshl2_add_u32 s{sT0}, s{sT}, s{sI}")
    I(f"s_mul_i32 s{sT0}, s{sT0}, 118")
    I(f"s_add_u32 s{sT1}, s{sT0}, s{sT2}")
    I(f"s_add_u32 s{sT1}, s{sT1}, {32 + (3*g if typ else 2*g)}")
    I(f"s_lshl_b32 s{sHF}, s{sT1}, 10")
    I(f"s_lshr_b32 s{sT1}, s{sW}, 1")
    I(f"s_lshl2_add_u32 s{sT1}, s{sA}, s{sT1}")
    I(f"s_mul_i32 s{sT1}, s{sT1}, 17408")
    I(f"s_and_b32 s{sT2}, s{sW}, 1")
    if typ == 0:
        I(f"s_lshl4_add_u32 s{sT3}, s{sT2}, s{sT}")
        I(f"s_lshl_b32 s{sT3}, s{sT3}, 9")
        I(f"s_add_u32 s{sK1}, s{sT1}, s{sT3}")
        I(f"s_add_u32 s{sK1}, s{sK1}, {KVP_OFF - MB//2}")
        I(f"s_lshl1_add_u32 s{sT3}, s{sT}, s{sT2}")
        I(f"s_lshl_b32 s{sT3}, s{sT3}, 5")
        I(f"s_add_u32 s{sK2}, s{sT1}, s{sT3}")
        I(f"s_add_u32 s{sK2}, s{sK2}, {KVP_OFF + 16384 - MB//32}")
        I(f"s_lshl_b32 s{sEX}, s{sI}, 11")
        I(f"s_sub_u32 s{sEX}, s{sEX}, {MB - 3*t.SL}")
    else:
        I(f"s_add_u32 s{sK2}, s{sT1}, {KVP_OFF + 16384 - MB}")
        I(f"s_lshl_b32 s{sT2}, s{sT2}, 13")
        I(f"s_add_u32 s{sK1}, s{sT1}, s{sT2}")
        I(f"s_add_u32 s{sK1}, s{sK1}, {KVP_OFF - MB}")
        I(f"s_lshl2_add_u32 s{sT0}, s{sA}, s{sT0}")
        I(f"s_add_u32 s{sT0}, s{sT0}, {2*g}")
        I(f"s_lshl_b32 s{sEX}, s{sT0}, 10")
    I(f"v_lshlrev_b32 v{a}, 2, v{vLN}")
    I(f"s_lshl_b32 s{sT0}, s{sW}, 8")
    I(f"s_lshl_b32 s{sT1}, s{sA}, 11")
    I(f"s_add_u32 s{sT1}, s{sT1}, s{sT0}")
    I(f"s_add_u32 s{sT0}, s{sT0}, {t.WPH}")
    I(f"v_add_u32 v{vWPA}, s{sT0}, v{a}")
    I(f"s_lshr_b32 s{sT0}, s{sI}, 1")
    I(f"s_lshl1_add_u32 s{sT0}, s{sT}, s{sT0}")
    I(f"s_lshl3_add_u32 s{sT0}, s{sT0}, s{sA}")
    I(f"s_lshl_b32 s{sT0}, s{sT0}, 7")
    I(f"s_and_b32 s{sT2}, s{sI}, 1")
    I(f"s_lshl2_add_u32 s{sT0}, s{sT2}, s{sT0}")
    I(f"s_add_u32 s{sFL}, s{sT0}, {FLG + 16*typ + 8*g}")
    if typ == 0 and g == 0:
        I(f"s_cmp_eq_u32 s{sA}, 7")
        I(f"s_cselect_b32 s{sA}, 2.0, s{sHF}")
    I(f"v_mov_b32 v{b}, 0")
    if typ == 1:
        for x in p2addr(t, vLN, c, d): I(x)
    I(f"v_lshlrev_b32 v{vTCH}, 7, v{vLN}")
    if typ == 0:
        I(f"v_mov_b32 v{h}, -1")
        I(f"v_mov_b32 v{h+1}, -1")
        I(f"v_lshrrev_b32 v{c}, 1, v{vM16}")
        I(f"v_lshrrev_b32 v{d}, 5, v{vM16}")
    pstamp(P, 4)
    I("s_waitcnt lgkmcnt(0)")
    for x in dma_x(t, 1):
        for y in x: emit(P, y)
    I(f"buffer_load_dword v{vWPV}, v{a}, {s(SWP,4)}, s{sT1} offen")
    for x in stream_list(t, g)[1:CFG["pro"]]:
        for z in x:
            for y in z: emit(P, y)
    if CFG["t3"] == 2:
        I(f"s_and_b32 s{sT0}, s2, 0xf8")
        I(f"s_add_u32 s{sT0}, s{sT0}, s{sW}")
        I(f"s_mul_i32 s{sT0}, s{sT0}, {2*3072}")
        I("s_mov_b32 exec_hi, 0xffff")
        I(f"buffer_load_dword v{75 if typ else 26}, v{vTCH}, {s(SWQ,4)}, s{sT0} offen")
    if CFG["t3"] == 3:
        I(f"s_and_b32 s{sT0}, s2, 0xf8")
        I(f"s_add_u32 s{sT0}, s{sT0}, s{sW}")
        I(f"s_mul_i32 s{sT0}, s{sT0}, {2*3072}")
        I("s_mov_b32 exec_lo, 0xff00ffff")
        I("s_mov_b32 exec_hi, 0xff")
        I(f"buffer_load_dword v{75 if typ else 26}, v{vTCH}, {s(SWQ,4)}, s{sT0} offen")
    if CFG["t3"] in (1, 4):
        I(f"s_lshr_b32 s{sT0}, s2, 3")
        I(f"s_lshl2_add_u32 s{sT0}, s{sT0}, s{sI}")
        I(f"s_mul_i32 s{sT0}, s{sT0}, {4*3072}")
        I(f"v_lshlrev_b32 v{a}, 3, v{vTCH}")
        I("s_mov_b64 exec, 0xfff")
        if g or CFG["t3"] == 4: I(f"buffer_load_dword v{75 if typ else 26}, v{a}, {s(SWQ,4)}, s{sT0} offen offset:{384 if g else 896}")
    I("s_mov_b64 exec, 1")
    I(f"buffer_store_dword v{b}, off, {s(SWS,4)}, s{sFL} sc1")
    I("s_mov_b64 exec, -1")
    if typ == 0:
        I(f"buffer_store_dwordx2 {v(h,2)}, v{c}, {s(SWS,4)}, s{sK1} offen sc1")
        I("s_mov_b32 exec_lo, 0x10001")
        I("s_mov_b32 exec_hi, 0x10001")
        I(f"buffer_store_dwordx2 {v(h,2)}, v{d}, {s(SWS,4)}, s{sK2} offen sc1")
        I("s_mov_b64 exec, -1")
    for r, m in zip(MS(g), (0xaaaaaaaa, 0xcccccccc, 0xff00ff00, 0xffff0000, 0x0f0f0f0f)):
        I(f"s_mov_b32 s{r}, {m:#x}")
        I(f"s_mov_b32 s{r+1}, {(m if m != 0x0f0f0f0f else 0xf0f0f0f0):#x}")
    pstamp(P, 5)

def P2R(typ): return (28, 29, 30, 31, 26) if typ else (27, 31, 26, 28, 29)
def p2addr(t, ln, a, b):
    vWa, vRD0, vRD1 = P2R(t.typ)[:3]
    base = t.RG[5] if t.typ else PH
    return [f"v_and_b32 v{a}, 7, v{ln}", f"v_lshlrev_b32 v{a}, 4, v{a}", f"v_and_b32 v{b}, 16, v{ln}", f"v_lshlrev_b32 v{b}, 2, v{b}", f"v_xor_b32 v{a}, v{a}, v{b}",
            f"v_lshrrev_b32 v{b}, 3, v{ln}", f"v_lshl_add_u32 v{vWa}, v{b}, 10, v{a}",
            f"v_bfe_u32 v{a}, v{ln}, 1, 1", f"v_and_b32 v{b}, 1, v{ln}", f"v_lshl_or_b32 v{a}, v{b}, 1, v{a}", f"v_lshlrev_b32 v{a}, 3, v{a}",
            f"v_bfe_u32 v{b}, v{ln}, 4, 1", f"v_lshl_add_u32 v{a}, v{b}, 5, v{a}", f"v_and_b32 v{b}, 8, v{ln}", f"v_lshl_add_u32 v{a}, v{b}, 3, v{a}",
            f"v_bfe_u32 v{b}, v{ln}, 2, 2", f"v_lshl_add_u32 v{a}, v{b}, 7, v{a}", f"v_lshrrev_b32 v{b}, 5, v{ln}", f"v_lshl_add_u32 v{a}, v{b}, 10, v{a}",
            f"v_lshl_add_u32 v{a}, s{sMW}, 1, v{a}", f"v_xor_b32 v{b}, 64, v{a}", f"v_add_u32 v{vRD0}, {base}, v{a}", f"v_add_u32 v{vRD1}, {base}, v{b}"]
def MS(g): return [0, SWP, SWP + 2, (SWG if g else SWU), (SWG if g else SWU) + 2]
def softmax(W, O, m=vMX, sm=vSM):
    o = [f"v_max_f32 v{m}, v{W}, v{W+1}", f"v_max_f32 v{sm}, v{W+2}, v{W+3}"]
    for k in range(4, 16, 4):
        o.append(f"v_max3_f32 v{m}, v{m}, v{W+k}, v{W+k+1}")
        o.append(f"v_max3_f32 v{sm}, v{sm}, v{W+k+2}, v{W+k+3}")
    o.append(f"v_max_f32 v{m}, v{m}, v{sm}")
    o.append(f"v_mul_f32 v{m}, v{m}, v{vC1}")
    for k in range(16): o.append(f"v_fma_f32 v{W+k}, v{W+k}, -v{vC1}, v{m}")
    for k in range(16):
        o.append(f"v_exp_f32 v{W+k}, v{W+k}")
        if k == 2: o.append(f"v_add_f32 v{sm}, v{W}, v{W+1}")
        if k > 2: o.append(f"v_add_f32 v{sm}, v{sm}, v{W+k-1}")
    o.append(f"v_add_f32 v{sm}, v{sm}, v{W+15}")
    o.append(f"v_rcp_f32 v{sm}, v{sm}")
    for k in range(8):
        o.append(f"v_mul_f32 v{W+2*k}, v{W+2*k}, v{sm}")
        o.append(f"v_mul_f32 v{W+2*k+1}, v{W+2*k+1}, v{sm}")
        o.append(f"v_cvt_pk_bf16_f32 v{O+k}, v{W+2*k}, v{W+2*k+1}")
    return o

def glu(G, U, n):
    o = []
    for k in range(n): o.append(f"v_mul_f32 v{G+k}, v{G+k}, v{vC1}")
    for k in range(n): o.append(f"v_exp_f32 v{G+k}, v{G+k}")
    for k in range(n): o.append(f"v_fma_f32 v{G+k}, v{G+k}, v{vSTD}, v{vSTD}")
    for k in range(n): o.append(f"v_rcp_f32 v{G+k}, v{G+k}")
    for k in range(n): o.append(f"v_mul_f32 v{G+k}, v{G+k}, v{U+k}")
    for k in range(n // 2): o.append(f"v_cvt_pk_bf16_f32 v{G+k}, v{G+2*k}, v{G+2*k+1}")
    return o

def publish(c, t0, t1, addr, blk, tag):
    return [f"v_and_b32 v{t0}, s{sHI}, v{c}", f"v_sub_f32 v{t1}, v{c}, v{t0}", f"v_cvt_pk_bf16_f32 v{t0}, v{t0}, v{t1}",
            f"ds_write_b32 v{addr}, v{t0} offset:{CSP - MB + blk*1024} #{tag}"]

def stream(P, typ, g, name):
    global vST, vSQ, vU, vSTW, vSTR, vCW
    I = P.I; t = T(typ); D = 3; sn = f"{name}_{typ}{g}"
    o_ = AV if typ else 83
    vST, vSQ, vU, vSTW, vSTR = o_, o_ + 1, [o_ + 2, o_ + 3, o_ + 4, o_ + 5], o_ + 6, o_ + 7
    vCW = AV + 8 if typ else 94
    PB = CFG["qpub"] if typ else "v1"
    setup(P, t, g)
    S = Sched(D)
    F = "v[32:35]"
    def mm(acc, x, first): return lambda f: f"v_mfma_f32_32x32x16_bf16 {v(acc,16)}, {f}, {v(x,4)}, {'0' if first else v(acc,16)}"
    def cm(c, first): return lambda f: f"v_mfma_f32_16x16x32_bf16 {v(c,4)}, {v(CP,4)}, {f}, {'0' if first else v(c,4)}"
    def tr(ad, im, sec): return [("tr", ad, im), ("tr2", ad, im + sec)]
    main = []; first = {}
    P1 = {}; SQ = {}
    for st in range(8):
        hi, so = t.sp(t.wp(st), t.WB)
        for p in range(4):
            it = Item(mm(AK, XR(st, p), st == 0 and p == 0), tr(vAA[hi][p], so, 512), cm(CD[0], st == 0) if p == 0 else None, name=f"{st}p{p}")
            if p == 0:
                it.bar = st; first[st] = it
                xh, xo = t.sp(t.xp(st), t.XB)
                if st < 2: it.pre = [f"ds_read_b128 {v(XR(st,q),4)}, v{vAX[xh][q]} offset:{xo}" for q in range(4)]
            main.append(it); P1[st, p, 0] = it
        for xs in CFG["sq"][st]:
            for q in (2*g, 2*g+1):
                SQ[xs, q] = Item((lambda x, fi: lambda f: f"v_mfma_f32_32x32x16_bf16 {v(GA[2],16)}, {v(x,4)}, {v(x,4)}, {'0' if fi else v(GA[2],16)}")(XR(xs, q), not SQ), name=f"sq{xs}{q}")
                if xs == 7: main.insert(main.index(P1[st, CFG["sq7"], 0]), SQ[xs, q])
                else: main.append(SQ[xs, q])
    V = {}
    if typ == 0:
        for c in range(8):
            hi, so = t.sp(t.vp(c), t.WB)
            for p in range(4): V[c, p] = Item(mm(AV, XR(c, p), c == 0 and p == 0), tr(vAA[hi][p], so, 512), cm(CD[1], False) if p == 0 else None, name=f"v{c}p{p}")
        for c in (1, 3, 6):
            it = V[c, 0] if c > 1 else V[CFG["v1"]]
            it.bar = f"v{c}"; first[f"v{c}"] = it
        main += [V[c, p] for c in range(6) for p in range(4)] + [V[6,0], V[7,0]] + [V[c, p] for c in (6, 7) for p in (1, 2, 3)]
    nb = 3
    blk = [3*g, 3*g+1, 3*g+2] if typ else [3*g, 3*g+1, 2]
    def gi(st, p, b):
        o = t.g(st)
        if o >= 3 * t.SL: o -= 3 * t.SL
        fst = st == 8 and (p == 0 or (typ == 0 and b == 2 and p == 2*g))
        sm = cm(CD[b], st == 8) if p == 0 else None
        return Item(mm(GA[b], XR(st-8, p), fst), tr(vAG[p], o + blk[b]*32, 4*t.RB), sm, name=f"{st}p{p}b{b}")
    def has(p, b): return typ == 1 or b < 2 or (p >> 1) == g
    G = {}
    for st in range(8, 16):
        for p in range(4):
            for b in range(nb):
                if has(p, b): G[st, p, b] = gi(st, p, b)
    for st in range(8, 13):
        l = [G[st, p, b] for p in range(4) for b in range(nb) if has(p, b)]
        l[0].bar = st; first[st] = l[0]; main += l
    first[PB].pre = [f"ds_read_b128 {v(vMU,4)}, v{vSTR}"]
    def corr(acc, cb, nbar, nm):
        return Item(mm(acc, vMU, False), [("b128", vM16, CSP - MB + cb*1024)], needbar=nbar, name=nm)
    C = [corr(GA[b], blk[b], "cs", f"corr{b}") for b in range(nb)]
    rest = lambda b, sts: [G[st, p, b] for st in sts for p in (1, 2, 3)]
    if typ == 0:
        sh = lambda st: [G[st, 2*g, 2], G[st, 2*g+1, 2]]
        t13 = [G[13,0,0], G[13,0,1]] + sh(13) + rest(0, [13])
        t15 = [G[14,0,0], G[14,0,1]] + sh(14) + sh(15) + [G[15,0,0], G[15,0,1]]
        r0 = rest(0, [14, 15]); r1 = rest(1, [13, 14, 15])
        tail = r0[:5] + [C[2]] + r0[5:] + [C[0]] + r1 + [C[1]]
        C[2].bar = "cs"
    else:
        t13 = [G[13,0,b] for b in range(3)] + rest(0, [13])
        t15 = [G[st,0,b] for st in (14, 15) for b in range(3)]
        r0 = rest(0, [14, 15])
        tail = r0[:5] + [C[0]] + r0[5:] + rest(1, [13, 14, 15]) + [C[1]] + rest(2, [13, 14, 15]) + [C[2]]
        C[0].bar = "cs"
    t13[0].bar = 13; t15[0].bar = 15; first[13] = t13[0]; first[15] = t15[0]
    main += t13 + t15 + tail
    barwait = {0: ["x0", "w0"], 1: ["x1", "w1", "x2"], 7: ["w7"], 15: ["w14", "w15"], "cs": []}
    for st in range(2, 7): barwait[st] = [f"w{st}", f"x{st+1}"]
    for st in range(8, 14): barwait[st] = [f"w{st}"]
    barlg = {PB: ["pub"], "cs": ["cs"]}
    BO = list(range(14))
    if typ == 0:
        barwait[7] = ["w7", "v0"]; barwait["v1"] = ["v1", "v2"]; barwait["v3"] = ["v3", "v4", "v5"]; barwait["v6"] = ["v6", "v7"]
        barlg[8] = ["pubv"]
        BO = list(range(8)) + ["v1", "v3", "v6"] + list(range(8, 14))
    sl = stream_list(t, g); pro = CFG["pro"]
    dm = {b: [] for b in BO[:-1]}
    if typ == 0:
        for k in range(pro, 14): dm[max(0, (k - 3) // 2)] += sl[k]
        for b, l in CFG["vdm"].items():
            for c in l: dm[b] += dma_v(t, c)
        dm[CFG["g8"]] += dma_g(t, g, 8)
        dm["v3"] += dma_g(t, g, 9); dm["v6"] += dma_g(t, g, 10)
        for b in range(8, 13): dm[b] = dma_g(t, g, b + 3)
    else:
        ql = CFG.get("qlead", 2)
        for k in range(pro, 14): dm[max(0, (k + 1 - 2*ql) // 2)] += sl[k]
        if ql == 3:
            for b in range(5, 13): dm[b] += dma_g(t, g, b + 3)
        else:
            g8 = dma_g(t, g, 8); g9 = dma_g(t, g, 9); g10 = dma_g(t, g, 10)
            dm[5] += g8[:2]; dm[6] = g8[2:] + g9[:2]; dm[7] = g9[2:] + g10[:2]; dm[8] = g10[2:] + dma_g(t, g, 11)
            for b in range(9, 13): dm[b] += dma_g(t, g, b + 3)
    if CFG["b0end"]: dm[0] = [sum(dm[0], [])] if dm[0] else []
    nxt = lambda b: BO[BO.index(b) + 1]
    heavy = []
    def hok(n):
        if not CFG["hstag"]: return True
        if n % 2 != g or n + 1 in S.bs.values(): return False
        return not any(dpos(b, j, len(dm[b]), gg)() == n for b in dm for j in range(len(dm[b])) for gg in (0, 1))
    def dpos(b, j, k, g=g):
        def f():
            L = S.bs[nxt(b)] - S.bs[b]; o = S.bs[b]
            if b == 0 and CFG['b0end']: return o + L - 1
            if b == 0: return o + j if typ else o + min(L - 2, 2 * j + g) if k <= 4 else o + j
            if 2 * k <= L: return o + min(L - 2, int((j + 0.5 * g) * L / k + 0.01))
            return o + min(L - 1, int((j + 0.5 * g) * L / k + 0.01))
        return f
    for b in BO[:-1]:
        for j, x in enumerate(dm[b]): heavy.append(S.add(x, after=b, before=nxt(b), kind="misc", lo=dpos(b, j, len(dm[b])) if CFG["pace" if BO.index(b) < (6 if typ else 8) else "paceg"] or b == 0 else None))
    if g == 1:
        S.add(f"v_mov_b32 v95, s{sXV}", after=2)
        S.add([f"s_cmp_eq_u32 s{sI}, 0", "s_cselect_b32 exec_lo, 1, 0", "s_mov_b32 exec_hi, 0", f"s_and_b32 s{sT3}, s2, 7", f"s_lshl_b32 s{sT3}, s{sT3}, 5",
               f"buffer_atomic_add v95, off, {s(SDB,4)}, s{sT3} sc1", "s_mov_b64 exec, -1"], after=CFG["atm"][typ], lo=(first[7], CFG["atm"][2+typ]), before=8)
    for p in range(4):
        bs = [b for b in range(nb) if has(p, b)]
        S.add(f"v_add_u32 v{vAG[p]}, {3*t.SL}, v{vAG[p]}", lo=(G[10,p,bs[-1]], -D), hi=(G[11,p,0], -D-1))
        nx = G[13,p,0] if not (typ == 0 and p and (p >> 1) == g) else G[13,p,2]
        S.add(f"v_subrev_u32 v{vAG[p]}, {3*t.SL}, v{vAG[p]}", lo=(G[12,p,bs[-1]], -D), hi=(nx, -D-1))
    ns = CFG["ns"][typ]; u = 0; fs = True
    S.node(P1[0,0,0], cm(CD[0], True)(F))
    sp = [2*g, 2*g+1]
    for st in range(8):
        if 1 <= st < 7:
            hi, so = t.sp(t.xp(st + 1), t.XB)
            for q in sp + [x for x in range(4) if x not in sp]:
                S.add(f"ds_read_b128 {v(XR(st+1,q),4)}, v{vAX[hi][q]} offset:{so}", after=st, lo=(first[st], (-2 if st > 1 else 0) if typ else -3), hi=(P1[st+1,q,0], -2), before=None if typ else st + 1)
        if st == 2:
            S.add(f"ds_write_b32 v{vWPA}, v{vWPV}", after=2)
            S.add(f"v_xor_b32 v{vWPV}, 0x80008000, v{vWPV}", after=2)
            S.add(f"ds_write_b32 v{vWPA}, v{vWPV} offset:2048", after=2, before=7)
    for st in range(8):
        for n, q in enumerate(sp):
            if n < ns[st]:
                S.add(cm(CD[2], fs)(v(XR(st, q), 4)), lo=(first[st], 1) if st < 2 else None); fs = False
    if typ == 1:
        S.add(f"v_mov_b32 v{vST}, v{CD[2]}", hi=(first[8], -1))
        S.node(P1[7,0,0], cm(CD[0], False)(F))
        S.adds(publish(CD[0], AV+9, AV+10, vCW, g, "pub"), hi=(first[8], -1))
    for (xs, q), it in SQ.items(): S.node(it, it.mf(F))
    Q_ = GA[2]; ms = MS(g)
    for lv, (stp, dd) in enumerate(((2, 1), (4, 2), (8, 4), (16, 8))):
        S.adds([f"v_cndmask_b32 v{Q_+k}, v{Q_+k}, v{Q_+k+dd}, {s(ms[lv],2)}" for k in range(0, 16, stp)])
    S.add(f"v_cndmask_b32 v{vSQ}, 0, v{Q_}, {s(ms[4],2)}")
    if typ == 0:
        S.add(f"v_mov_b32 v{vST}, v{CD[2]}")
        S.node(P1[7,0,0], cm(CD[0], False)(F))
        S.adds(publish(CD[0], 85, 86, vCW, g, "pub"), before=PB)
    else: S.node(G[8,0,2], mm(GA[2], XR(0,0), True)(F))
    S.add(f"v_permlane32_swap_b32 v{vST}, v{vSQ}")
    S.adds([f"v_add_f32 v{vST}, v{vST}, v{vSQ}", f"ds_write_b32 v{vSTW}, v{vST} #pub"], before=PB)
    sWQ2, sWO2, sWK2, sWZ2 = range(SWG if g else SWU, (SWG if g else SWU) + 4)
    J1, J2 = (75, 77) if typ else (26, 24)
    if CFG["t3"] == 3:
        S.add([f"s_and_b32 s{sT0}, s2, 0xf8", f"s_add_u32 s{sT0}, s{sT0}, s{sW}", f"s_mul_i32 s{sT0}, s{sT0}, {2*3072}", "s_mov_b32 exec_lo, 0xff0000", "s_mov_b32 exec_hi, 0xff00",
               f"buffer_load_dword v{J2}, v{vTCH}, {s(SWQ,4)}, s{sT0} offen", "s_mov_b64 exec, -1"], after=CFG["t3b"], before=CFG["t3b"] + 1)
    S.add([f"s_mov_b32 s{SOUT}, s{SWO+2}", f"s_mov_b32 s{SOUT+1}, s{SWO+3}", f"s_mov_b32 s{SOUT+2}, 2097152", f"s_mov_b32 s{SWO+2}, {512*1024}", f"s_mov_b32 s{SWO+3}, 0x20000"])
    if CFG["th"] & 1:
        S.add([f"s_add_u32 s{sT1}, s{sHF}, {MB}", "s_mov_b64 exec, 0xffffff", f"buffer_load_dword v{J1}, v{vTCH}, {s(SWS,4)}, s{sT1} offen sc1", "s_mov_b64 exec, -1"], after=CFG["thb"], before=8)
        if typ: S.add([f"s_add_u32 s{sT1}, s{sEX}, {MB}", "s_mov_b64 exec, 0xffff", f"buffer_load_dword v76, v{vTCH}, {s(SWS,4)}, s{sT1} offen sc1", "s_mov_b64 exec, -1"], after=CFG["thb"], before=8)
    if CFG["th"] & 4:
        S.add([f"s_add_u32 s{sT1}, s{sHF}, {MB}", "s_mov_b64 exec, 0xffffff", f"buffer_store_dword v{vTCH}, v{vTCH}, {s(SWS,4)}, s{sT1} offen", "s_mov_b64 exec, -1"], after=CFG["thb"], before=8)
        if typ: S.add([f"s_add_u32 s{sT1}, s{sEX}, {MB}", "s_mov_b64 exec, 0xffff", f"buffer_store_dword v{vTCH}, v{vTCH}, {s(SWS,4)}, s{sT1} offen", "s_mov_b64 exec, -1"], after=CFG["thb"], before=8)
    if CFG["th"] & 8:
        for j, b in enumerate(CFG["thl"][typ]):
            S.add(f"buffer_store_dwordx4 {v(CP,4)}, v{vM16}, {s(SWS,4)}, s{(sA if (typ, g) == (0, 0) and j < 2 else sHF) if j < 3 else sEX} offen offset:{(j%3)*1024} #dmy", after=b, lo=(first[b], CFG["tho"] + 2*g), kind="misc")
    if CFG["th"] & 2 and g == 0:
        S.add([f"s_and_b32 s{sT0}, s2, 7", f"s_lshr_b32 s{sT1}, s2, 6", f"s_lshl2_add_u32 s{sT0}, s{sT0}, s{sT1}", f"s_mul_i32 s{sT1}, s{sT0}, {236*1024}", f"s_add_u32 s{sT1}, s{sT1}, {MB}",
               f"s_lshl_b32 s{sT0}, s{sI}, 16", f"s_add_u32 s{sT1}, s{sT1}, s{sT0}",
               f"v_lshlrev_b32 v{J2}, 5, v{vTCH}", "s_mov_b64 exec, 0xffff", f"buffer_load_dword v{J2}, v{J2}, {s(SWS,4)}, s{sT1} offen sc1", "s_mov_b64 exec, -1"], after=CFG["thb"], before=8)
    if typ == 1 and "notouch" not in k1.KN:
        S.add([f"s_lshl3_add_u32 s{sT0}, s2, s{sW}", f"s_sub_u32 s{sT0}, s{sT0}, 1024", f"s_lshl_b32 s{sT1}, s{sT0}, 9", "s_mov_b64 exec, 15",
               f"buffer_load_dword v26, v{vTCH}, {s(SWO,4)}, s{sT1} offen", "s_mov_b64 exec, -1"], after=CFG["tch"], before=8)
        S.add([f"s_mul_i32 s{sT1}, s{sT0}, 1408", "s_mov_b64 exec, 0x7ff",
               f"buffer_load_dword v31, v{vTCH}, {s(SWD,4)}, s{sT1} offen", "s_mov_b64 exec, -1"], after=CFG["tch"], before=8)
    if CFG["tx"][typ] is not None:
        J3, J4, vT2 = (78, 79, 77) if typ else (91, 92, vTCH)
        S.add(f"v_lshlrev_b32 v{vT2}, 3, v{vTCH}", before=8)
        kw = dict(after=CFG["tx"][typ], lo=(first[CFG["tx"][typ]], CFG["tx"][2] + 2*g))
        S.add([f"s_and_b32 s{sT0}, s2, 0x78", f"s_add_u32 s{sT0}, s{sT0}, s{sW}", f"s_mul_i32 s{sT1}, s{sT0}, {11*1024}", "s_mov_b64 exec, 0x7ff",
               f"buffer_load_dword v{J4}, v{vT2}, {s(SWD,4)}, s{sT1} offen offset:384", f"s_lshl_b32 s{sT1}, s{sT0}, 12", "s_mov_b64 exec, 15",
               f"buffer_load_dword v{J3}, v{vT2}, {s(SWO,4)}, s{sT1} offen offset:384", "s_mov_b64 exec, -1"], **kw)
    S.add([f"s_and_b32 s{sT0}, s2, 0x38", f"s_cmp_eq_u32 s{sT0}, {(0x18 if typ else 0x38) if CFG['swp'] else 1}", f"s_cselect_b32 s{sT2}, 0xa0, 0", f"s_xor_b32 s{sT2}, s{sT2}, s2",
           f"s_and_b32 s{sT0}, s2, 7", f"s_lshr_b32 s{sT1}, s{sT2}, 6", f"s_lshl2_add_u32 s{sT0}, s{sT0}, s{sT1}", f"s_bfe_u32 s{sT1}, s{sT2}, 0x30003", f"s_lshl_b32 s{sT1}, s{sT1}, 7",
           f"s_lshl3_add_u32 s{sFR}, s{sT0}, s{sW}", f"s_lshl_b32 s{sFR}, s{sFR}, 7", f"s_add_u32 s{sFR}, s{sFR}, {FLG}",
           f"s_lshl_b32 s{sXO}, s{sT0}, 16", f"s_add_u32 s{sXO}, s{sXO}, s{sT1}", f"s_lshl3_add_u32 s{sXO}, s{sI4}, s{sXO}"] + ([f"s_add_u32 s{sXO}, s{sXO}, 32768"] if g else []), lo=(first[8], 1))
    S.add([f"s_mul_i32 s{sHO}, s{sT0}, {236*1024}", f"s_mul_i32 s{sT2}, s{sW}, 6144", f"s_add_u32 s{sHQ}, s{sHO}, s{sT2}", f"s_add_u32 s{sHQ}, s{sHQ}, 32768",
           f"s_mul_i32 s{sT2}, s{sW}, 5", f"s_min_u32 s{sT2}, s{sT2}, 33", f"s_add_u32 s{sT2}, s{sT2}, 48", f"s_lshl_b32 s{sWK2}, s{sT2}, 14", f"s_add_u32 s{sWK2}, s{sWK2}, s{sT1}",
           f"s_lshl_b32 s{sT2}, s{sT2}, 10", f"s_add_u32 s{sHK}, s{sHO}, s{sT2}", f"s_add_u32 s{sHK}, s{sHK}, 32768", f"s_lshl2_add_u32 s{sHO}, s{sMW}, s{sHO}"], lo=(first[8], 2))
    S.add([f"s_mul_i32 s{sWQ2}, s{sW}, {6*16384}", f"s_add_u32 s{sWQ2}, s{sWQ2}, s{sT1}", f"s_lshl_b32 s{sWO2}, s{sW}, 16", f"s_add_u32 s{sWO2}, s{sWO2}, s{sT1}",
           f"s_cmp_eq_u32 s{sW}, 7", f"s_cselect_b32 s{sWZ2}, 0x2000000, s{sWK2}"] +
          ([f"s_lshl_b32 s{sRB}, s{sI}, 14"] if g == 0 else
           [f"s_cmp_lt_u32 s{sI}, {2 if typ else 1}", f"s_cselect_b32 s{sRB}, 0, {t.RG[7] - t.RG[4] - 49152}", f"s_lshl_b32 s{sT2}, s{sI}, 14", f"s_add_u32 s{sRB}, s{sRB}, s{sT2}", f"s_add_u32 s{sRB}, s{sRB}, {t.RG[4]}"]) +
          [f"s_sub_u32 s{sRB}, s{sRB}, {MB}"], lo=(first[8], 3))
    m, q = vMU, vC1
    l8 = (first[PB], -1)
    S.adds([f"v_add_f32 v{m}, v{vMU}, v{vMU+2}", f"v_add_f32 v{q}, v{vMU+1}, v{vMU+3}",
            f"v_mul_f32 v{vSTD}, {fbits(-1.0/512)}, v{m}", f"v_mul_f32 v{q}, {fbits(1.0/512)}, v{q}"], lo=l8)
    S.adds([f"v_cvt_pk_bf16_f32 v{vMU+k}, v{vSTD}, v{vSTD}" for k in range(4)])
    S.adds([f"v_fma_f32 v{q}, -v{vSTD}, v{vSTD}, v{q}", f"v_max_f32 v{q}, 0, v{q}", f"v_add_f32 v{q}, {fbits(1e-5)}, v{q}",
            f"v_rsq_f32 v{vRS}, v{q}", f"v_mul_f32 v{vSTD}, v{q}, v{vRS}", f"v_mul_f32 v{vC1}, {fbits(-LOG2E)}, v{vRS}"])
    ex = []
    S.node(P1[7,3,0], mm(AK, XR(7,3), False)(F))
    ex.append(S.node(corr(AK, g, PB, "corrK"), mm(AK, vMU, False)(F)))
    def w64(w, x, **k):
        return S.add([w] + ([x] if x else []), kind="valu", cost=CFG["wc"] + (1 if x else 0), first=True, **k)
    KB = AK if typ else 96
    S.adds([f"v_cvt_pk_bf16_f32 v{KB+k}, v{AK+2*k}, v{AK+2*k+1}" for k in range(8)])
    pb = "ph"
    if typ == 0:
        W = [GA[2], AK]
        S.node(V[7,0], cm(CD[1], False)(F))
        S.adds(publish(CD[1], 83, 84, vCW, 2 + g, "pubv"), before=8)
        for rho in range(2):
            pk = mm(W[rho], KB + 4*rho, True)
            ex.append(S.node(Item(pk, tr(vWF, 512*rho, 128), needbar=PB, name=f"phi{rho}"), pk(F)))
        for rho in range(2):
            S.adds(softmax(W[rho], W[rho], *((87, 88), (vSM, vWF))[rho]))
            for b_ in range(2):
                w64(f"ds_write_b128 v{vPH}, {v(W[rho]+4*b_,4)} offset:{rho*12288} #ph", None if (rho, b_) == (1, 1) else f"v_xor_b32 v{vPH}, 16, v{vPH}", after="v3", before=pb)
        S.node(G[8,0,0], mm(GA[0], XR(0,0), True)(F)); S.node(G[8,0,1], mm(GA[1], XR(0,0), True)(F)); S.node(G[8,2*g,2], mm(GA[2], XR(0,2*g), True)(F))
        S.node(V[7,3], mm(AV, XR(7,3), False)(F))
        ex.append(S.node(corr(AV, 2 + g, 8, "corrV"), mm(AV, vMU, False)(F)))
        for k in range(8):
            S.adds([f"v_mul_f32 v{AV+2*k}, v{AV+2*k}, v{vRS}", f"v_mul_f32 v{AV+2*k+1}, v{AV+2*k+1}, v{vRS}",
                    f"v_cvt_pk_bf16_f32 v{AV+k}, v{AV+2*k}, v{AV+2*k+1}"])
            if k & 3 == 3: w64(f"ds_write_b128 v{vKB}, {v(AV+k-3,4)} offset:{(k>>2)*12288+64} #ph", None, before=pb)
        S.node(G[8,3,1], mm(GA[1], XR(0,3), False)(F)); S.node(G[8,2*g+1,2], mm(GA[2], XR(0,2*g+1), False)(F))
        W = [AV, XR(0, 0)]
    else:
        for rho in range(2):
            pk = mm(AV, AK + 4*rho, True)
            ex.append(S.node(Item(pk, tr(vWF, 512*rho, 128), needbar=8, name=f"phi{rho}"), pk(F)))
            S.adds(softmax(AV, AK + 8 if rho == 0 else AV))
    if typ == 0:
        pi = main[main.index(first[CFG["phbar"][0]]) + CFG["phbar"][1]]
        if pi.bar is None: pi.bar = pb; barwait[pb] = []
        else:
            for o in S.ops:
                if o.before == pb: o.before = pi.bar
            pb = pi.bar
        barlg[pb] = barlg.get(pb, []) + ["ph"]
        barlg[CFG["wb"][0]] = barlg.get(CFG["wb"][0], []) + ["kvr"]
        DK, DZ, ON = AK, AK + 4, AK + 8
        S.adds([f"v_mov_b32 v{ON+k}, 0x3f803f80" for k in range(4)])
        S.adds([f"v_lshrrev_b32 v{AK+12}, 1, v{vM16}", f"v_lshrrev_b32 v{AK+13}, 5, v{vM16}"])
        S.add([f"s_and_b32 s{sT3}, s{sI}, 1", f"s_lshl_b32 s{sT3}, s{sT3}, 5"], lo=(first[8], 0))
        S.add(f"v_subrev_u32 v{vPH}, s{sT3}, v{vKA}")
        for u4 in range(4):
            A0 = W[u4 >> 1] + 8*(u4 & 1); B0 = A0 + 4; o = u4 * 3072
            S.add([f"ds_read_b64_tr_b16 {v(A0,2)}, v{vKA} offset:{o}", f"ds_read_b64_tr_b16 {v(A0+2,2)}, v{vKA} offset:{o+768}"], after=pb)
            S.add([f"ds_read_b64_tr_b16 {v(B0,2)}, v{vPH} offset:{o+64}", f"ds_read_b64_tr_b16 {v(B0+2,2)}, v{vPH} offset:{o+768+64} #kvr"], after=pb, before=CFG["wb"][0])
            na = f"v_mfma_f32_16x16x32_bf16 {v(DZ,4)}, {v(A0,4)}, {v(ON,4)}, {'0' if u4 == 0 else v(DZ,4)}"
            nb_ = f"v_mfma_f32_16x16x32_bf16 {v(DK,4)}, {v(A0,4)}, {v(B0,4)}, {'0' if u4 == 0 else v(DK,4)}"
            S.adds([na, nb_] if u4 < 3 else [nb_, na])
        S.adds([f"v_cvt_pk_bf16_f32 v{DK}, v{DK}, v{DK+1}", f"v_cvt_pk_bf16_f32 v{DK+1}, v{DK+2}, v{DK+3}"])
        kvst = S.add(f"buffer_store_dwordx2 {v(DK,2)}, v{AK+12}, {s(SWS,4)}, s{sK1} offen sc1 #kvs", kind="misc")
        S.adds([f"v_cvt_pk_bf16_f32 v{DZ}, v{DZ}, v{DZ+1}", f"v_cvt_pk_bf16_f32 v{DZ+1}, v{DZ+2}, v{DZ+3}"])
        S.add(["WAITVM kvs", "s_mov_b32 exec_lo, 0x10001", "s_mov_b32 exec_hi, 0x10001", f"buffer_store_dwordx2 {v(DZ,2)}, v{AK+13}, {s(SWS,4)}, s{sK2} offen sc1", "s_mov_b64 exec, -1"],
              ok=lambda n: kvst.slot is not None and n >= kvst.slot + CFG["zd"])
    vWa, vRD0, vRD1, vFA, vFL = P2R(typ)
    KS = [("q", 0), ("q", 3), ("q", 1), ("q", 4), ("q", 2), ("q", 5)] + [("o", j) for j in range(4)] + [("k", 2), ("k", 0), ("k", 3), ("k", 1), ("k", 4)]
    NS = 2 if typ else 3; NR = 10 if typ else 12
    WR = [128 + 8*k for k in range(10)] if typ else [128 + 8*k for k in range(8)] + [AV, AV + 8, 192, 200]
    WR += WR[:15 - NR]
    RGN = [6 + k % 2 for k in range(12)] + [4, 5, 3] if typ else [5 + k % 3 for k in range(15)]
    rbase = t.RG[5] if typ else PH
    def wdma(k):
        ty, j = KS[k]
        b_ = {"q": sWQ2, "o": sWO2, "k": sWZ2 if j < 2 else sWK2}[ty]; R_ = s(SWO if ty == "o" else SWD, 4)
        return [[f"s_lshl1_add_u32 m0, s{sMW}, {t.RG[RGN[k]]}", f"s_add_u32 s{sO1}, s{b_}, {j*16384}", f"buffer_load_dwordx4 v{vWa}, {R_}, s{sO1} offen lds #W{k}"],
                [f"s_lshl1_add_u32 m0, s{sMW}, {t.RG[RGN[k]]}", f"s_add_u32 s{sO1}, s{b_}, {j*16384 + 7168}", f"buffer_load_dwordx4 v{vWa}, {R_}, s{sO1} offen offset:1024 lds #W{k}"]]
    def wread(k, ad=(vRD0, vRD1), base=rbase):
        o = t.RG[RGN[k]] - base
        return [[f"WAITVM W{k}"] * (1 - cb) * ("noxw" not in k1.KN) + [f"ds_read_b64_tr_b16 {v(WR[k]+4*cb,2)}, v{ad[cb]} offset:{o}", f"ds_read_b64_tr_b16 {v(WR[k]+4*cb+2,2)}, v{ad[cb]} offset:{o+512} #X{k}"] for cb in range(2)]
    if typ == 0:
        S.add(f"v_bfe_u32 v{AK+14}, v{vM16}, 4, 6")
        S.adds(p2addr(t, AK + 14, AK + 15, vRD1))
    Dk = {}; Xk = {}
    def aft(dd, k, l): return lambda n: dd[k].slot is not None and n >= dd[k].slot + l
    for k in range(14 if typ else 15):
        wd_ = wdma(k)
        if typ and k >= 12: kw = dict(after=13 if k == 12 else 15)
        elif k < NS: kw = dict(after=CFG["wb"][typ])
        else: kw = dict(ok=aft(Xk, k - NS, CFG["wg"])); wd_[0] = [f"WAITLG X{k-NS}"] + wd_[0]
        for x in wd_:
            Dk[k] = S.add(x, kind="misc", **kw); Dk[k].R -= {("s", 124), ("s", sO1)}; Dk[k].W -= {("s", 124), ("s", sO1)}; Dk[k].R.add(("x", 9 + (typ and k >= 12))); Dk[k].W.add(("x", 9 + (typ and k >= 12)))
        if k < NR:
            lo = (G[8 + (WR[k] - 128) // 16, 3, nb - 1 if has(3, nb - 1) else 1], 0) if WR[k] >= 128 else None
            for x in wread(k): Xk[k] = S.add(x, kind="misc", ok=aft(Dk, k, CFG["wl"]), lo=lo)
    S.adds([f"v_lshrrev_b32 v{vFA}, 2, v{vM16}", f"v_and_b32 v{vFA}, 28, v{vFA}"])
    vCT = 27 if typ else 30
    polls = []
    def fload(): return f"buffer_load_dword v{vFL}, v{vFA}, {s(SWS,4)}, s{sFR} offen sc1"
    def fcheck(ty, lv):
        polls.append((ty, lv)); n_ = len(polls)
        return [f"v_cmp_gt_u32 vcc, {lv}, v{vFL}", f"s_and_b32 s{sT1}, vcc_lo, {0xf0 if ty == 'q' else 0x0f}", f"s_cbranch_scc1 L_{sn}_fp{n_}", f"LABEL L_{sn}_fb{n_}"]
    slow = []
    def mst(x, tag=""):
        slow.append(x); n_ = len(slow)
        return [f"s_cmp_lg_u32 s{sMD}, 0", f"s_cbranch_scc1 L_{sn}_ss{n_}", x + (" #" + tag if tag else ""), f"LABEL L_{sn}_sb{n_}"]
    def fstore(lv, tag, r): return [f"v_mov_b32 v{r}, {lv}", f"WAITVM {tag}", "s_mov_b64 exec, 1"] + mst(f"buffer_store_dword v{r}, off, {s(SWS,4)}, s{sFL}") + ["s_mov_b64 exec, -1"]
    HR = [96, 104, 112, 120, 80, 88, 48, 56, 64, 72, 96, 104, 112, 120, 80] if typ else [112, 120, 48, 56, 80, 88, 96, 104, 112, 120, 48, 56, WR[3], 80, 88]
    def hload(k):
        ty, j = KS[k]; b_ = {"q": sHQ, "o": sHO, "k": sR if j < 2 else sHK}[ty]
        return [[f"s_add_u32 s{sO1}, s{b_}, {j*1024 + tb*118*1024}", f"buffer_load_dwordx4 {v(HR[k]+4*tb,4)}, v{vM16}, {s(SWS,4)}, s{sO1} offen"] for tb in range(2)]
    S.add([f"s_cmp_eq_u32 s{sW}, 7", f"s_cselect_b32 s{sR}, 2.0, s{sHK}"], after=13)
    SEL, DD, ZZ, LD = AV + 8, CP, AV + 12, GA[0]
    vTW, vTZ, vTR = 1, 2, 3
    if typ == 1:
        a, b, c, ln = AK + 1, AK + 2, AK + 3, AK + 4
        o = [f"v_bfe_u32 v{ln}, v{vM16}, 4, 6", f"v_and_b32 v{a}, 15, v{ln}", f"v_lshrrev_b32 v{b}, 1, v{ln}", f"v_and_b32 v{b}, 8, v{b}", f"v_xor_b32 v{b}, v{a}, v{b}",
             f"v_and_b32 v{c}, 1, v{b}", f"v_lshlrev_b32 v{c}, 4, v{c}", f"v_mov_b32 v{a}, 0x3f80", f"v_lshlrev_b32 v{c}, v{c}, v{a}", f"v_lshrrev_b32 v{b}, 1, v{b}"]
        for r in range(4): o += [f"v_cmp_eq_u32 vcc, {r}, v{b}", f"v_cndmask_b32 v{SEL+r}, 0, v{c}, vcc"]
        S.adds(o, lo=(first[12], 0))
        S.add([f"s_lshr_b32 s{sT0}, s{sW}, 1", f"s_lshl_b32 s{sT0}, s{sT0}, 11", f"s_and_b32 s{sT2}, s{sW}, 1", f"s_lshl_b32 s{sT2}, s{sT2}, 5",
               f"s_add_u32 s{sT2}, s{sT2}, s{sT0}", f"s_add_u32 s{sT2}, s{sT2}, {OT}", f"s_sub_u32 s{sT0}, s{sT0}, {MB - OT}"], lo=(first[9], 0))
        S.adds([f"v_add_u32 v{vTZ}, s{sT0}, v{vM16}", f"v_and_b32 v{a}, 7, v{ln}", f"v_lshlrev_b32 v{a}, 7, v{a}", f"v_and_b32 v{b}, 16, v{ln}", f"v_lshl_add_u32 v{a}, v{b}, 2, v{a}",
                f"v_and_b32 v{b}, 8, v{ln}", f"v_add_u32 v{a}, v{a}, v{b}", f"v_lshrrev_b32 v{b}, 1, v{ln}", f"v_and_b32 v{b}, 16, v{b}", f"v_add3_u32 v{vTW}, v{a}, v{b}, s{sT2}",
                f"v_and_b32 v{a}, 19, v{ln}", f"v_bfe_u32 v{b}, v{ln}, 2, 1", f"v_lshl_or_b32 v{a}, v{b}, 3, v{a}", f"v_bfe_u32 v{b}, v{ln}, 3, 1", f"v_lshl_or_b32 v{a}, v{b}, 2, v{a}",
                f"v_lshlrev_b32 v{a}, 6, v{a}", f"v_and_b32 v{b}, 32, v{ln}", f"v_add_u32 v{a}, v{a}, v{b}", f"v_add_u32 v{vTR}, {OT + g*4096}, v{a}"])
    S.add(f"v_lshlrev_b32 v{vFL}, 3, v{vFA}")
    S.add(f"buffer_load_dword v{vCT}, v{vFL}, {s(SDB,4)}, 0 offen", after=12, lo=(first[13], -4), kind="misc")
    cck = [f"s_and_b32 s{sMD}, s2, 7", f"v_readlane_b32 s{sMD}, v{vCT}, s{sMD}", f"v_and_b32 v{vCT}, 0xff, v{vCT}", f"v_cmp_gt_u32 vcc, 32, v{vCT}", f"s_lshl_b32 s{sT1}, s{sXV}, 5", f"s_sub_u32 s{sMD}, s{sMD}, s{sT1}"]
    chk = S.add(cck + [f"s_cbranch_vccnz L_{sn}_cp", f"LABEL L_{sn}_cb"], after=15)
    chk.R |= {("v", vFL)}
    chk.W |= {("s", sT1), ("x", 0)}
    vCW2, vEX, t0 = AK, AK + 1, AK + 2
    S.adds([f"v_lshrrev_b32 v{vCW2}, 6, v{vM16}", f"v_and_b32 v{vCW2}, 12, v{vCW2}", f"v_xor_b32 v{vCW2}, s{sI4}, v{vCW2}", f"v_or_b32 v{vCW2}, v{vCW2}, v{vM16}"], lo=(first[12], 0))
    if typ == 0:
        S.add(f"v_add_u32 v{vEX}, s{sEX}, v{vM16}")
        own = 4*g; oth = 4 - own
        if g == 0: S.node(G[15,0,2], cm(CD[2], False)(F))
        S.node(G[15,2*g+1,2], mm(GA[2], XR(7,0), False)(F))
        for k in range(2): w64(f"ds_write_b128 v{vEX}, {v(GA[2]+oth+8*k,4)} offset:{g*8192+1024*k} #cs", None, before="cs")
        S.node(G[15,0,0], cm(CD[0], False)(F)); S.node(G[15,0,1], cm(CD[1], False)(F))
        for b in range(3 - g): S.adds(publish(CD[b], t0 + 2*b, t0 + 2*b + 1, vCW2, blk[b], "cs"), before="cs", prio=2)
        X = AK + 8
        S.add(f"ds_read_b128 {v(X,4)}, v{vEX} offset:{(1-g)*8192}", after="cs")
        S.add(f"ds_read_b128 {v(X+4,4)}, v{vEX} offset:{(1-g)*8192+1024}", after="cs")
        S.node(C[2], mm(GA[2], vMU, False)(F))
        S.adds([f"v_add_f32 v{X+4*hh+k}, v{X+4*hh+k}, v{GA[2]+8*hh+own+k}" for hh in range(2) for k in range(4)])
        S.adds(glu(X, X + 4, 4))
        S.add(mst(f"buffer_store_dwordx2 {v(X,2)}, v{vM16}, {s(SWS,4)}, s{sHF} offen offset:{(1-g)*2048+8*g}", "hs"), kind="misc", prio=1)
        fin = [(0, C[0], g*1024), (1, C[1], (1+g)*1024)]
    else:
        for b in range(3): S.node(G[15,0,b], cm(CD[b], False)(F))
        for b in range(3): S.adds(publish(CD[b], t0 + 2*b, t0 + 2*b + 1, vCW2, blk[b], "cs"), before="cs", prio=2)
        fin = [(0, r0[-1], 0), (1, C[1], 1024), (2, C[2], 2048)]
        def loads(m=" sc1"):
            o = [[f"buffer_load_dwordx4 {v(ZZ,4)}, v{vM16}, {s(SWS,4)}, s{sK2} offen sc1"]]
            for p in range(8):
                o.append(([f"s_add_u32 s{sT2}, s{sK1}, 4096"] if p == 4 else []) + [f"buffer_load_dwordx4 {v(LD+4*p,4)}, v{vM16}, {s(SWS,4)}, s{sK1 if p < 4 else sT2} offen offset:{(p%4)*1024}{m}"])
            return o
        L_ = loads("")
        S.add(L_[0], kind="misc", lo=lambda: C[2].idx - CFG["qload"] - CFG["qct"]).R |= {("x", 0)}
        zc = S.add([f"v_cmp_eq_u32 vcc, -1, v{ZZ}", "s_nop 1", f"s_cbranch_vccnz L_{sn}_zp", f"LABEL L_{sn}_zb"], lo=lambda: C[2].idx - CFG["qload"] - 1)
        zc.W |= {("s", sT1), ("x", 1)}
    if typ == 0 and CFG["f1"][2]:
        S.add(fload(), kind="misc", lo=lambda: C[2].idx + CFG["f1"][0]).R |= {("x", 0)}
        S.add(fcheck("q", CFG["f1"][2]), lo=lambda: C[2].idx + CFG["f1"][1]).W |= {("x", 1)}
        for k in range(2 * CFG["f1"][2]):
            if k < 4:
                for x in hload(k): S.add(x, kind="misc").R |= {("x", 1)}
    HS = {}
    for b, it, off in fin:
        S.node(it, mm(GA[b], vMU, False)(F))
        S.adds(glu(GA[b], GA[b] + 8, 8))
        if typ == 1 and b == 2:
            for x in L_[1:]: HS["l"] = S.add(x, kind="misc", lo=lambda: C[2].idx - CFG["qload"]); HS["l"].R |= {("x", 1)}
        if b == len(fin) - 1: S.add(fload(), kind="misc").R |= {("v", GA[b] + CFG["f2"]), ("x", 0)}
        HS[b] = S.add(mst(f"buffer_store_dwordx4 {v(GA[b],4)}, v{vM16}, {s(SWS,4)}, s{sA if (typ, g) == (0, 0) else sHF} offen offset:{off}", f"h{b}"), kind="misc", prio=int(b < len(fin) - 1))
        if b in CFG["st"][typ]: S.add(fstore(b + 2 - typ, f"h{b}", vCT), kind="misc", ok=aft(HS, b, CFG["s1"]))
        if typ == 0 and b == 0 and CFG["f1"][2] == 3:
            for k in (4, 5):
                for x in hload(k): S.add(x, kind="misc").R |= {("x", 1)}
    def budget(n, it):
        if n < first[8].idx:
            if typ == 1: return CFG["qb"]
            if n < first["v1"].idx - D: return CFG["pb"]
            return CFG["vb"]
        if n < first[15].idx and typ == 0: return CFG["gb"]
        return 6
    S.budget = budget
    S.dbl = lambda n: n >= first[9].idx
    if typ == 1:
        for b in range(1, 9): S.prebar_budget[b] = CFG["qpb"]
    S.prebar_budget["cs"] = 6
    if typ == 0:
        for b in list(range(1, 8)) + ["v1"]: S.prebar_budget[b] = CFG["ppb"]
        for b in ("v3", "v6", 8): S.prebar_budget[b] = CFG.get("vpb", 0)
    S.dump = "dump" in k1.KN
    S.solve(main, ex)
    order = S.order; N = len(order)
    info = [f"typ{typ} g{g} N={N} bars={S.bs} extras={[(e.item.name, e.item.idx) for e in ex]} slots={len(S.slots)-D}"]
    if typ == 0: info.append(f"kvstore@{kvst.slot}")
    print(" ".join(info))
    nst = [1]
    def em(x):
        if x.startswith("LABEL"): P.label(x.split()[1])
        elif x.startswith("WAITVM"): P.wait_vm(x.split()[1])
        elif x.startswith("WAITLG"): P.wait_lg(x.split()[1])
        else: emit(P, x)
    for n, it, sm, va, mi in S.slots:
        m_ = n + D
        if m_ < N:
            nx = order[m_]
            if nx.bar is not None:
                P.comment(f"--- barrier {nx.bar}")
                if not ("nowait" in k1.KN and nx.bar != 0):
                    for tg in barwait[nx.bar]: P.wait_vm(tg)
                for tg in barlg.get(nx.bar, []): P.wait_lg(tg)
                I("s_barrier")
                nstamp(P, nx.bar, nst)
            f = FR[m_ % 4]
            rd = []
            for k, ad, im in nx.reads:
                rd.append({"tr": f"ds_read_b64_tr_b16 {v(f,2)}, v{ad} offset:{im}", "tr2": f"ds_read_b64_tr_b16 {v(f+2,2)}, v{ad} offset:{im}",
                           "b128": f"ds_read_b128 {v(f,4)}, v{ad} offset:{im}"}[k])
            for x in nx.pre[:1] + rd + nx.pre[1:]: I(x)
        body = []
        if it is not None:
            f = v(FR[n % 4], 4)
            if it.small: body.append(it.small(f))
            if sm: body += sm.texts
            body.append(it.mf(f))
        elif sm: body += sm.texts
        if "nofill" not in k1.KN or n >= N:
            for o in va: body += o.texts
        if it is not None:
            touch = set()
            for x in body:
                i_ = Ins(x.split("#")[0].strip()); touch |= i_.vr | i_.vw
            P.wait_regs(touch)
        for x in body: em(x)
        for o in mi:
            if "nowd" in k1.KN and any("#W" in x for x in o.texts): continue
            if "noxr" in k1.KN and any("#X" in x for x in o.texts): continue
            if "nodma" in k1.KN and any(" lds" in x for x in o.texts): continue
            for x in o.texts: em(x)
        if n == N - 1: nstamp(P, "last", nst)
    ACC = [208, 224, 240, 32]
    vXA, vXD = 4, 8
    def tok(tk):
        c = tk[0]; r = tk[1:]
        if c == "F": I(fload())
        elif c == "C":
            for x in fcheck(r[0], int(r[1:])): em(x)
        elif c == "L":
            for x in hload(int(r)):
                for y in x: em(y)
        elif c == "S":
            lv, tg = r.split(":")
            for x in fstore(int(lv), tg, vCT): em(x)
        elif c == "B": I("s_barrier")
        elif c == "T": nstamp(P, r, nst)
        elif c == "D":
            for x in wdma(int(r)):
                for y in x: em(y)
        elif c == "X":
            k = int(r); ad = (vRD0, vRD1); base = rbase
            if not 0 <= t.RG[RGN[k]] - rbase < 65000:
                ad = (5, 6); base = t.RG[RGN[k]]
                for cb in range(2): I(f"v_add_u32 v{ad[cb]}, {(base - rbase) & 0xffffffff}, v{(vRD0, vRD1)[cb]}")
            for x in wread(k, ad, base):
                for y in x: em(y)
        elif c == "M":
            k = int(r)
            for tb, cb in ((0, 0), (1, 0), (0, 1), (1, 1)):
                A = ACC[tb*2+cb]
                I(f"v_mfma_f32_32x32x16_bf16 {v(A,16)}, {v(WR[k]+4*cb,4)}, {v(HR[k]+4*tb,4)}, {'0' if k == 0 else v(A,16)}")
        elif c == "x":
            I(f"v_bfe_u32 v{vXA}, v{vM16}, 4, 5")
            I(f"v_bfe_u32 v7, v{vM16}, 9, 1")
            I(f"v_lshlrev_b32 v{vXA}, 10, v{vXA}")
            I(f"v_lshl_add_u32 v{vXA}, v7, 4, v{vXA}")
            I(f"buffer_load_dwordx4 {v(vXD,4)}, v{vXA}, {s(SX,4)}, s{sXO} offen")
        else: raise ValueError(tk)
    if typ == 1:
        nstamp(P, "oph", nst)
        I(f"s_mov_b32 s{sT0}, 0")
        P.label(f"L_{sn}_pre")
        for p in range(8): I(f"v_mfma_f32_16x16x32_bf16 {v(DD,4)}, {v(SEL,4)}, {v(LD+4*p,4)}, {'0' if p == 0 else v(DD,4)}")
        I(f"ds_write_b128 v{vTZ}, {v(ZZ,4)} offset:1024")
        I(f"v_mfma_f32_16x16x32_bf16 {v(LD,4)}, {v(SEL,4)}, {v(ZZ,4)}, {v(DD,4)}")
        I(f"v_cvt_pk_bf16_f32 v{LD+4}, v{DD}, v{DD+1}")
        I(f"v_cvt_pk_bf16_f32 v{LD+5}, v{DD+2}, v{DD+3}")
        I(f"ds_write_b64 v{vTW}, {v(LD+4,2)}")
        I(f"v_cmp_u_f32 vcc, v{LD}, v{LD}")
        I("s_nop 1")
        I(f"s_cbranch_vccnz L_{sn}_rt")
        P.label(f"L_{sn}_go")
        for tk in CFG["qo"][0].split(): tok(tk)
        P.wait_lg()
        I("s_barrier")
        AO = GA[0]; DO = [208, 224]
        for rho in range(2):
            for f in range(2): I(f"ds_read_b128 {v(AO+8*rho+4*f,4)}, v{vTR} offset:{rho*2048+16*f}")
        for rho in range(2):
            ph = AK + 8 if rho == 0 else AV
            for f in range(2):
                I(f"v_mfma_f32_32x32x16_bf16 {v(DO[rho],16)}, {v(AO+8*rho+4*f,4)}, {v(ph+4*f,4)}, {'0' if f == 0 else v(DO[rho],16)}")
        for tk in CFG["qo"][1].split(): tok(tk)
        for rho in range(2):
            Dd = DO[rho]
            for k in range(4): I(f"v_add_f32 v{Dd+8+k}, v{Dd+8+k}, v{Dd+12+k}")
            I(f"v_add_f32 v{Dd+8}, v{Dd+8}, v{Dd+9}")
            I(f"v_add_f32 v{Dd+10}, v{Dd+10}, v{Dd+11}")
            I(f"v_add_f32 v{Dd+8}, v{Dd+8}, v{Dd+10}")
            I(f"v_mov_b32 v{Dd+9}, v{Dd+8}")
            I(f"v_permlane32_swap_b32 v{Dd+8}, v{Dd+9}")
            I(f"v_add_f32 v{Dd+8}, v{Dd+8}, v{Dd+9}")
            I(f"v_add_f32 v{Dd+8}, {fbits(1e-6)}, v{Dd+8}")
            I(f"v_rcp_f32 v{Dd+8}, v{Dd+8}")
            for k in range(8): I(f"v_mul_f32 v{Dd+k}, v{Dd+k}, v{Dd+8}")
            for k in range(4): I(f"v_cvt_pk_bf16_f32 v{Dd+k}, v{Dd+2*k}, v{Dd+2*k+1}")
            for x in mst(f"buffer_store_dwordx4 {v(Dd,4)}, v{vM16}, {s(SWS,4)}, s{sEX} offen offset:{rho*1024}", "ho"): em(x)
    for tk in CFG["p2"][typ].split(): tok(tk)
    I(f"s_lshl_b32 s{sT0}, s{sMW}, 1")
    I(f"s_sub_u32 s{sT0}, s{sT0}, {MB}")
    I(f"v_add_u32 v5, s{sT0}, v{vM16}")
    I(f"v_add_u32 v6, {t.RG[4]}, v5")
    I(f"v_add_u32 v7, {t.RG[6]}, v5")
    I(f"v_add_u32 v12, s{sRB}, v{vM16}")
    for q in (0, 2, 1, 3):
        for e in range(4):
            r = 2*q + (e >> 1); ad, bs_ = (5, 0) if r < 4 else (6, t.RG[4]) if r < 6 else (7, t.RG[6])
            I(f"ds_write_b128 v{ad}, {v(ACC[q]+4*e,4)} offset:{t.RG[r] - bs_ + (e & 1)*1024}")
    XU = 16
    for k in range(4):
        I(f"v_lshlrev_b32 v{XU+2*k}, 16, v{vXD+k}")
        I(f"v_and_b32 v{XU+2*k+1}, s{sHI}, v{vXD+k}")
    P.wait_lg()
    I("s_barrier")
    nstamp(P, "red", nst)
    for w_ in range(8):
        for e in range(2): I(f"ds_read_b128 {v(128+8*w_+4*e,4)}, v12 offset:{w_*2048+e*1024}")
        if w_ == 6:
            for k in range(8): I(f"v_add_f32 v{XU+k}, v{XU+k}, v{128+k}")
    for w_ in range(1, 8):
        for k in range(8): I(f"v_add_f32 v{XU+k}, v{XU+k}, v{128+8*w_+k}")
    for k in range(4): I(f"v_cvt_pk_bf16_f32 v{XU+k}, v{XU+2*k}, v{XU+2*k+1}")
    I(f"buffer_store_dwordx4 {v(XU,4)}, v{vXA}, {s(SOUT,4)}, s{sXO} offen")
    while nst[0] < 18: nstamp(P, "-", nst)
    P.comment(f"STAMPS {typ}{g} " + " ".join(nst[1:]) + " end")
    dump_stamps(P, 19, SWS, sW, 8, sT0)
    I("s_endpgm")
    def poll(nm, back, sl, body, done):
        P.restore(([], [], [], False))
        P.label(f"L_{sn}_{nm}")
        I(f"s_mov_b32 s{sC}, 0")
        P.label(f"L_{sn}_{nm}l")
        I(f"s_sleep {sl}")
        for x in body: I(x)
        I(f"{done} L_{sn}_{back}")
        I(f"s_add_u32 s{sC}, s{sC}, 1")
        I(f"s_cmp_lt_u32 s{sC}, 20000")
        I(f"s_cbranch_scc1 L_{sn}_{nm}l")
        I(f"s_branch L_{sn}_{back}")
    for n_, x in enumerate(slow):
        P.restore(([], [], [], False))
        P.label(f"L_{sn}_ss{n_+1}")
        I("s_nop 4"); I(x + " sc1"); I("s_nop 4"); I(f"s_branch L_{sn}_sb{n_+1}")
    poll("cp", "cb", 16, [f"buffer_load_dword v{vCT}, v{vFL}, {s(SDB,4)}, 0 offen sc1"] + cck, "s_cbranch_vccz")
    for n_, (ty, lv) in enumerate(polls):
        poll(f"fp{n_+1}", f"fb{n_+1}", CFG["fsl"], [fload(), f"v_cmp_gt_u32 vcc, {lv}, v{vFL}", f"s_and_b32 s{sT1}, vcc_lo, {0xf0 if ty == 'q' else 0x0f}"], "s_cbranch_scc0")
    if typ == 1:
        poll("zp", "zb", CFG["zsl"], [loads()[0][0], f"v_cmp_eq_u32 vcc, -1, v{ZZ}", "s_nop 1"], "s_cbranch_vccz")
        P.restore(([], [], [], False))
        P.label(f"L_{sn}_rt")
        I(f"s_add_u32 s{sT0}, s{sT0}, 1")
        I(f"s_cmp_ge_u32 s{sT0}, 20000")
        I(f"s_cbranch_scc1 L_{sn}_go")
        I("s_waitcnt lgkmcnt(0)")
        for x in loads():
            for y in x: I(y)
        I("s_waitcnt vmcnt(0)")
        I(f"s_branch L_{sn}_pre")

def gen_k1(name):
    P = Prog()
    P.raw(f".globl {name}\n.p2align 8\n.type {name},@function\n{name}:")
    prologue(P, name)
    snap = P.snapshot()
    for k in range(4):
        P.restore(snap)
        if k: P.raw(".p2align 6"); P.label(f"L_{name}_r{k}")
        stream(P, k >> 1, k & 1, name)
    P.label(f"L_{name}_end")
    P.I("s_endpgm")
    return P
```

```python
from asmlib import Prog, Ins, v, s
from sched import Sched, Item, Op
import k1
from k1 import fbits, LOG2E, stamp, pstamp, dump_stamps

MB = 122880
HF_OFF = MB
KVP_OFF = 0xC00000
WS_BYTES = 0x1000000
PH = 103040; OT = 106688; CSP = 156288
FLG = 0xD00000
LDS_BYTES = 163840
SDB, SX, SWQ, SWG, SWU, SWS, SWP, SWO, SWD = 4, 8, 12, 16, 20, 24, 28, 44, 48
sW, sT, sA, sTY, sR, sI, sMX, sMW, sMG, sC, sO1, sO2 = range(32, 44)
sHF, sK1, sK2, sHI, sT0, sT1, sT2, sT3 = range(52, 60)
sI4, sEX = 3, 35
sFL = sT; SOUT = SWQ
sHQ, sHO, sHK, sFR = range(SWP, SWP + 4)
sXO, sRB = 0, 1
sXV, sMD = 100, 101
vM16 = 0; vGO = [1, 2, 3]; vAG = [4, 5, 6, 7]; vMU = 8; CP = 12; CD = [16, 18, 20]
vC1, vSTD, vRS, vWF, vPH, vKA, vKB, vSM = range(24, 32)
vMX = vRS
FR = [32, 36, 40, 44]
AK, AV = 48, 64
GA = [80, 96, 112]
vXO, vWO, vLN, vST, vSQ = 80, 81, 82, 83, 84
vU = [85, 86, 87, 88]
vSTW, vSTR, vWPV, vWPA, vTCH, vCW = 89, 90, 91, 92, 93, 94
vAX = [[96, 97, 98, 99], [100, 101, 102, 103]]
vAA = [[104, 105, 106, 107], [108, 109, 110, 111]]
def XR(i, p): return 128 + (4 * i + p) * 4
CFG = dict(gb=6, pb=8, ppb=8, vb=6, paceg=1, b0end=1, pro=3, pace=0, tch=13, gt=0, rot="a", acc2=1, hstag=0, ns=([2]*8, [2]*8), phbar=(9, 10), qload=8, b0=8, hm=" sc1", qb=6, qpb=6, qpub=9,
           vdm={4: [0], 5: [1, 2], 6: [3, 4, 5], 7: [6, 7]}, g8=7, sq=[[0], [1], [2, 3], [4], [5], [6], [7], []], wc=0, qct=14, sq7=1, v1=(0, 2), skip=(3, 5, "v3", "ph", 12))
CFG.update(zd=12, rot="f", thl=((8, 9, 10), (8, 8, 9, 9, 10)), tho=0, th=8, thb=4, xm=1, fm=" sc1", tch=6, phbar=(9, 2), vpb=6, vb=7, gb=7, qload=0, qct=10, zsl=8, fsl=4, wb=(10, 10), wl=10, wg=2, f1=(0, 9, 0), f2=3, s1=12, atm=(7, 6, 2, -9),
           skip=(1, 2, 3, 4, 5, 6, 7, "v1", "v3", "v6", "ph", 9, 10, 11, 12, 15),
           st=((), ()),
           qo=("S3:h2 F T1", "D14"),
           p2=("Tp2 S3:h1 Ts3 Cq3 Tq3 L0 L1 F L2 L3 L4 L5 Cq4 Tq4 L6 L7 M0 M1 L8 L9 M2 Ck3 Tk3 L10 M3 L11 L12 M4 L13 M5 L14 X12 X13 X14 x Tb M6 M7 M8 M9 Tm9 B M10 M11 M12 M13 M14 Td",
               "Tp2 S4:ho Ts4 Cq3 L0 L1 F L2 L3 L4 L5 Cq4 Tq4 L6 L7 L8 L9 M0 Ck3 Tk3 L10 M1 L11 X10 X11 M2 L12 M3 L13 M4 L14 M5 X12 X13 X14 x M6 M7 M8 M9 Tm9 M10 M11 M12 M13 M14 Td"))
CFG.update(t3b=1, dup=1, swp=1, t3=4, tx=(None, 9, 2), f1=(0, 5, 0), s1=5, fsl=2, thl=((8, 8, 8), (8, 8, 8, 8, 8)))
CFG.update(ct=1, bl=1, qo=('S3:h2 T1','F D14'), p2=('Tp2 B0 S3:h1 Ts3 Cq3 Tq3 L0 L1 L2 L3 L4 L5 F M0 M1 M2 M3 Cq4 Tq4 L6 L7 L8 L9 Ck3 Tk3 L10 L11 L12 M4 L13 M5 L14 X12 X13 X14 x Tb M6 M7 M8 M9 Tm9 N10 Td',
           'Tp2 Cq3/4 L0 S4:ho Ts4 L1 L2 L3 L4 L5 F M0 M1 M2 M3 Cq4 Tq4 L6 L7 L8 L9 Ck3 Tk3 L10 L11 L12 L13 M4 L14 X10 X11 M5 X12 X13 X14 x M6 M7 M8 M9 Tm9 N10 Td'))
STN = []
def nstamp(P, nm, nst):
    if nm in CFG["skip"]: return
    if nst[0] < 18: stamp(P, nst[0]); nst[0] += 1; nst.append(str(nm))
def HM(): return CFG["hm"]

class T:
    def __init__(s, typ):
        s.typ = typ
        s.RB = 192 if typ else 160; s.NP = 12 if typ else 10; s.MUL = 171 if typ else 205
        s.UP = 64 * s.RB + (32 if typ else 128); s.SL = 2 * 64 * s.RB + (64 if typ else 128)
        s.XB = (0, 3 * s.SL) if typ else (20608, 103040)
        s.WB = (16384, 16384 + 3 * s.SL) if typ else (12416, 82432)
        s.ST = 131072 if typ else 98816
        s.WPH = CSP + 2048 if typ else 152192
        s.RG = [0, 16384, 32768, 49152] + ([73920, 90304, 123200, 139584] if typ else [65536, PH, PH + 16384, PH + 32768])
    def xp(s, st): return ((st + 2) % 5) * s.SL if s.typ else (20608, 41216, 119424, 103040, 66048, 82432, 119424, 103040)[st]
    def wp(s, st): return s.xp(st) + 16384 if s.typ else (12416, 57600, 144000, 135808)[st % 4]
    def vp(s, c): return (20608, 41216, 66048, 82432)[c >> 1] + 8192 * (c & 1)
    def sp(s, o, B):
        hi = int(o >= B[1]); assert 0 <= o - B[hi] <= 65000; return hi, o - B[hi]
    def g(s, st): return ((st - 8) % 5) * s.SL

def dma_x(t, st):
    return [[f"s_add_u32 s{sC}, s{sR}, {st}", f"s_and_b32 s{sC}, s{sC}, 7", f"s_add_u32 m0, s{sMX}, {t.xp(st)}", f"s_lshl_b32 s{sO1}, s{sC}, 7",
             f"buffer_load_dwordx4 v{vXO}, {s(SX,4)}, s{sO1} offen lds #x{st}"],
            [f"s_add_u32 s{sO1}, s{sO1}, {16384 - 2048}", f"buffer_load_dwordx4 v{vXO}, {s(SX,4)}, s{sO1} offen offset:2048 lds #x{st}"]]
def dma_w(t, st):
    o = [[f"s_add_u32 s{sC}, s{sR}, {st}", f"s_and_b32 s{sC}, s{sC}, 7", f"s_add_u32 m0, s{sMW}, {t.wp(st)}", f"s_mul_i32 s{sO2}, s{sC}, {64*3072}",
          f"buffer_load_dwordx4 v{vWO}, {s(SWQ,4)}, s{sO2} offen lds #w{st}"]]
    return o
def dma_v(t, c):
    return [[f"s_add_u32 s{sC}, s{sR}, {c}", f"s_and_b32 s{sC}, s{sC}, 7", f"s_add_u32 m0, s{sMW}, {t.vp(c) - 1024}", f"s_mul_i32 s{sO2}, s{sC}, {64*3072}",
          f"buffer_load_dwordx4 v{vWO}, {s(SWQ,4)}, s{sO2} offen offset:1024 lds #v{c}"]]
def dma_g(t, g, st):
    S = s(SWU if g else SWG, 4)
    m = [f"s_add_u32 m0, s{sMG}, {t.g(st)}"] if st >= 12 else []
    o = [[f"s_add_u32 s{sC}, s{sR}, {st}", f"s_and_b32 s{sC}, s{sC}, 7", f"s_add_u32 m0, s{sMG}, {t.g(st)}", f"s_mul_i32 s{sO2}, s{sC}, {64*2752}",
          f"buffer_load_dwordx4 v{vGO[0]}, {S}, s{sO2} offen lds #w{st}"],
         m + [f"buffer_load_dwordx4 v{vGO[1]}, {S}, s{sO2} offen offset:1024 lds #w{st}"]]
    l = f"buffer_load_dwordx4 v{vGO[2]}, {S}, s{sO2} offen offset:2048 lds #w{st}"
    o.append(m + ([l] if t.typ else ["s_mov_b32 exec_hi, 0", l, "s_mov_b32 exec_hi, -1"]))
    return o

def stream_list(t, g):
    o = []
    for st in range(1, 8): o += [dma_x(t, st), dma_w(t, st)]
    return o

def emit(P, t):
    tag = None
    if "#" in t: t, tag = t.split("#"); t = t.strip()
    P.I(t, tag)

def prologue(P, name):
    I = P.I
    stamp(P, 0)
    I("s_cmp_ge_u32 s2, 256")
    I(f"s_cbranch_scc1 L_{name}_end")
    I(f"s_load_dwordx4 s[8:11], s[0:1], 0")
    if CFG.get("ct"):
        I("s_getpc_b64 s[4:5]")
        P.label(f"L_{name}_pc")
        I("s_lshr_b32 s3, s2, 3")
        I("s_lshl_b32 s3, s3, 11")
        I("v_lshrrev_b32 v1, 5, v0")
        I("v_lshl_add_u32 v1, v1, 7, s3")
        I(f"s_mov_b32 s6, L_{name}_end-L_{name}_pc")
        I("s_mov_b32 s7, 0x20000")
        I("buffer_load_dword v127, v1, s[4:7], 0 offen")
    I(f"v_lshrrev_b32 v1, 6, v0")
    I(f"v_and_b32 v{vLN}, 63, v0")
    I(f"v_readfirstlane_b32 s{sW}, v1")
    I(f"s_and_b32 s{sT0}, s2, 1")
    I(f"s_bfe_u32 s{sT1}, s2, 0x30003")
    I(f"s_lshl3_add_u32 s{sT}, s{sT0}, s{sT1}")
    I(f"s_lshr_b32 s{sT2}, s2, 6")
    I(f"s_and_b32 s{sT0}, s2, 6")
    I(f"s_and_b32 s{sT1}, s{sT2}, 1")
    I(f"s_add_u32 s{sA}, s{sT0}, s{sT1}")
    I(f"s_lshl1_add_u32 s{sR}, s{sT2}, s{sT}")
    rot = CFG["rot"]
    if CFG["xm"]:
        I(f"s_and_b32 s{sT0}, s2, 7")
        I(f"s_bfe_u32 s{sT1}, s2, 0x10006")
        I(f"s_lshl1_add_u32 s{sT}, s{sT0}, s{sT1}")
        I(f"s_bfe_u32 s{sA}, s2, 0x30003")
        if CFG.get("ap"): I(f"s_xor_b32 s{sA}, s{sA}, {CFG['ap']}")
        if rot[0] == "e": I(f"s_mov_b32 s{sR}, s{sT0}")
        if rot[0] == "f": I(f"s_add_u32 s{sR}, s{sT0}, s{sA}")
        if rot[0] == "g": I(f"s_lshl2_add_u32 s{sR}, s{sT1}, s{sT0}")
        if rot[0] == "h": I(f"s_lshl1_add_u32 s{sR}, s{sT2}, s{sT0}")
        if rot[0] == "i": I(f"s_lshl2_add_u32 s{sR}, s{sT1}, s{sT0}"); I(f"s_add_u32 s{sR}, s{sR}, s{sA}")
    if rot[0] == "b": I(f"s_add_u32 s{sR}, s{sT2}, s{sT}"); I(f"s_lshl_b32 s{sR}, s{sR}, 1")
    if rot[0] == "c": I(f"s_add_u32 s{sR}, s{sT2}, s{sT}"); I(f"s_lshl_b32 s{sR}, s{sR}, 2")
    if rot[0] == "d": I(f"s_mov_b32 s{sR}, 0")
    if rot[1:] == "x": I(f"s_add_u32 s{sR}, s{sR}, s2")
    if rot[1:] == "y": I(f"s_lshr_b32 s{sC}, s2, 1"); I(f"s_add_u32 s{sR}, s{sR}, s{sC}"); I(f"s_and_b32 s{sC}, s2, 1"); I(f"s_lshl1_add_u32 s{sR}, s{sC}, s{sR}")
    if rot[1:] == "z": I(f"s_add_u32 s{sR}, s{sR}, s{sT0}"); I(f"s_and_b32 s{sC}, s2, 1"); I(f"s_lshl2_add_u32 s{sR}, s{sC}, s{sR}")
    I(f"v_lshrrev_b32 v2, 4, v{vLN}")
    I(f"v_lshrrev_b32 v3, 3, v{vLN}")
    I(f"v_and_b32 v4, 7, v{vLN}")
    I(f"s_and_b32 s{sT0}, s{sW}, 1")
    I(f"s_lshr_b32 s{sT1}, s{sW}, 1")
    I(f"s_lshl2_add_u32 s{sT1}, s{sT1}, s{sT0}")
    I(f"s_lshl_b32 s{sMX}, s{sT1}, 10")
    I(f"s_lshl4_add_u32 s{sT1}, s{sT}, s{sT1}")
    I(f"s_lshl_b32 s{sT1}, s{sT1}, 13")
    I(f"s_lshl_b32 s{sT0}, s{sT0}, 2")
    I(f"v_or_b32 v5, s{sT0}, v2")
    I(f"v_xor_b32 v5, v5, v4")
    I(f"v_lshlrev_b32 v5, 4, v5")
    I(f"v_lshl_add_u32 v5, v3, 10, v5")
    I(f"v_add_u32 v{vXO}, s{sT1}, v5")
    I(f"s_lshl_b32 s{sMW}, s{sW}, 10")
    I(f"s_mul_i32 s{sT0}, s{sW}, {8*3072}")
    I(f"s_lshl_b32 s{sT1}, s{sA}, 7")
    I(f"s_add_u32 s{sT0}, s{sT0}, s{sT1}")
    I(f"s_and_b32 s{sC}, s{sR}, 7")
    I(f"s_lshl_b32 s{sO1}, s{sC}, 7")
    I(f"s_mul_i32 s{sO2}, s{sC}, {64*3072}")
    I(f"s_cmp_lt_u32 s2, 128")
    I(f"s_cselect_b32 s{sT1}, 1024, 0")
    I(f"s_cselect_b32 s{sT3}, 0, {T(1).xp(0) - T(0).xp(0)}")
    I(f"s_cselect_b32 s{sT2}, 0, {T(1).wp(0) - T(0).wp(0)}")
    I(f"s_add_u32 s{sT3}, s{sT3}, {T(0).xp(0)}")
    I(f"s_add_u32 s{sT2}, s{sT2}, {T(0).wp(0)}")
    I(f"s_add_u32 s{sT0}, s{sT0}, s{sT1}")
    I(f"v_and_b32 v5, 1, v2")
    I(f"v_lshlrev_b32 v5, 2, v5")
    I(f"v_xor_b32 v5, v5, v4")
    I(f"v_lshlrev_b32 v5, 4, v5")
    I(f"v_mul_u32_u24 v6, 3072, v3")
    I(f"v_add3_u32 v{vWO}, v5, v6, s{sT0}")
    I(f"s_add_u32 m0, s{sMX}, s{sT3}")
    I(f"s_add_u32 s{sT1}, s{sO1}, {16384 - 2048}")
    I(f"s_mov_b32 s{SWQ+2}, {512*3072}")
    I(f"s_mov_b32 s{SWQ+3}, 0x20000")
    pstamp(P, 1)
    I("s_waitcnt lgkmcnt(0)")
    pstamp(P, 2)
    I(f"s_mov_b32 s{SWQ}, s10")
    I(f"s_mov_b32 s{SWQ+1}, s11")
    I(f"s_mov_b32 s{SX+2}, 2097152")
    I(f"s_mov_b32 s{SX+3}, 0x20000")
    I(f"buffer_load_dwordx4 v{vXO}, {s(SX,4)}, s{sO1} offen lds", "x0")
    I(f"buffer_load_dwordx4 v{vXO}, {s(SX,4)}, s{sT1} offen offset:2048 lds", "x0")
    I(f"s_add_u32 m0, s{sMW}, s{sT2}")
    I(f"buffer_load_dwordx4 v{vWO}, {s(SWQ,4)}, s{sO2} offen lds", "w0")
    for r, o in ((SWP, 16), (SWG, 40), (SWU, 48), (SWS, 80), (SDB, 72), (SWO, 24), (SWD, 56), (SWO + 2, 64)):
        I(f"s_load_dwordx2 {s(r,2)}, s[0:1], {o}")
    pstamp(P, 3)
    I(f"s_and_b32 s{sI}, s{sW}, 3")
    I(f"s_lshr_b32 s{sT0}, s{sW}, 2")
    I(f"s_lshr_b32 s{sT1}, s2, 7")
    I(f"s_lshl1_add_u32 s{sT0}, s{sT1}, s{sT0}")
    for k in (1, 2, 3):
        I(f"s_cmp_eq_u32 s{sT0}, {k}")
        I(f"s_cbranch_scc1 L_{name}_r{k}")

def setup(P, t, g):
    I = P.I; typ = t.typ
    a, b, c, d, h, sb, r, sw, row, j4 = range(112, 122)
    def pdm(l):
        for nm in l.split():
            for z in (dma_x if nm[0] == "x" else dma_w)(t, int(nm[1])):
                for y in z: emit(P, y)
    if CFG.get("po"): pdm(CFG["po"][typ][0])
    for R, n in ((SWP, 16384), (SWG, 512*2752), (SWU, 512*2752), (SWS, WS_BYTES), (SDB, 256), (SWD, 1376*1024)):
        if R == (SWG if g else SWU): continue
        I(f"s_mov_b32 s{R+2}, {n}")
        I(f"s_mov_b32 s{R+3}, 0x20000")
    I(f"s_mov_b32 s{sHI}, 0xffff0000")
    I(f"s_getreg_b32 s{sXV}, hwreg(HW_REG_XCC_ID, 0, 4)")
    I(f"s_mul_i32 s{sMD}, s{sXV}, s{sXV}")
    I(f"s_lshl_b32 s{sMD}, s{sMD}, 9")
    I(f"s_add_u32 s{sXV}, s{sXV}, s{sMD}")
    I(f"s_lshl_b32 s{sXV}, s{sXV}, 8")
    I(f"s_add_u32 s{sXV}, s{sXV}, 1")
    I(f"s_lshl_b32 s{sI4}, s{sI}, 2")
    I(f"v_mov_b32 v{j4}, v2")
    I(f"v_lshrrev_b32 v{h}, 5, v{vLN}")
    I(f"v_and_b32 v{sb}, 1, v2")
    I(f"v_bfe_u32 v{r}, v{vLN}, 2, 2")
    I(f"v_bfe_u32 v{a}, v{vLN}, 1, 1")
    I(f"v_and_b32 v{b}, 1, v{vLN}")
    I(f"v_lshl_or_b32 v{sw}, v{b}, 1, v{a}")
    I(f"v_lshlrev_b32 v{sw}, 3, v{sw}")
    I(f"v_lshl_add_u32 v{row}, v{h}, 3, v{r}")
    I(f"v_lshl_or_b32 v{c}, v{sb}, 1, v{a}")
    I(f"v_lshlrev_b32 v{c}, 3, v{c}")
    I(f"v_lshl_add_u32 v{c}, v{row}, 5, v{c}")
    I(f"v_lshl_add_u32 v{c}, v{b}, 11, v{c}")
    I(f"v_add_u32 v{vWF}, {t.WPH + g*1024}, v{c}")
    if typ == 0:
        I(f"v_bfe_u32 v{c}, v{vLN}, 2, 3")
        I(f"v_lshl_add_u32 v{c}, v{h}, 4, v{c}")
        I(f"v_mul_u32_u24 v{c}, 96, v{c}")
        I(f"v_lshl_add_u32 v{c}, v{b}, 3, v{c}")
        I(f"s_lshr_b32 s{sT0}, s{sI}, 1")
        I(f"s_mul_i32 s{sT0}, s{sT0}, 12288")
        I(f"s_add_u32 s{sT0}, s{sT0}, {PH + 2*g*12288}")
        I(f"s_and_b32 s{sT1}, s{sI}, 1")
        I(f"s_lshl_b32 s{sT1}, s{sT1}, 5")
        I(f"s_add_u32 s{sT1}, s{sT1}, s{sT0}")
        I(f"v_xor_b32 v{d}, v{a}, v{sb}")
        I(f"v_lshlrev_b32 v{d}, 4, v{d}")
        I(f"v_add3_u32 v{vKA}, v{c}, v{d}, s{sT1}")
    I(f"v_and_b32 v{b}, 2, v{r}")
    I(f"v_or_b32 v{b}, v{b}, v{sb}")
    I(f"v_lshl_add_u32 v{b}, v{b}, 5, v{sw}")
    I(f"v_lshl_add_u32 v{b}, v{row}, 7, v{b}")
    I(f"s_lshl_b32 s{sT0}, s{sI}, 11")
    if g: I(f"s_add_u32 s{sT0}, s{sT0}, 64")
    I(f"v_xor_b32 v{vAA[0][0]}, s{sT0}, v{b}")
    I(f"v_and_b32 v{a}, 31, v{vLN}")
    I(f"v_bfe_u32 v{b}, v{vLN}, 1, 3")
    I(f"v_xor_b32 v{b}, v{b}, v{h}")
    I(f"v_lshlrev_b32 v{b}, 4, v{b}")
    I(f"v_lshl_add_u32 v{b}, v{a}, 7, v{b}")
    I(f"s_mul_i32 s{sT0}, s{sI}, {4096 + 32}")
    I(f"v_xor_b32 v{vAX[0][0]}, s{sT0}, v{b}")
    for p in range(1, 4):
        I(f"v_xor_b32 v{vAX[0][p]}, {p*32}, v{vAX[0][0]}")
        I(f"v_xor_b32 v{vAA[0][p]}, {p*2048}, v{vAA[0][0]}")
    for p in range(4):
        I(f"v_add_u32 v{vAX[1][p]}, {t.XB[1]}, v{vAX[0][p]}")
        I(f"v_add_u32 v{vAA[1][p]}, {t.WB[1]}, v{vAA[0][p]}")
        if t.XB[0]: I(f"v_add_u32 v{vAX[0][p]}, {t.XB[0]}, v{vAX[0][p]}")
        I(f"v_add_u32 v{vAA[0][p]}, {t.WB[0]}, v{vAA[0][p]}")
    I(f"s_lshl_b32 s{sT0}, s{sI}, 9")
    I(f"s_add_u32 s{sT0}, s{sT0}, {t.ST}")
    I(f"v_lshlrev_b32 v{b}, 4, v{a}")
    I(f"v_add_u32 v{vSTR}, s{sT0}, v{b}")
    I(f"v_lshl_add_u32 v{vSTW}, v{h}, 2, v{vSTR}")
    I(f"v_lshl_add_u32 v{vSTW}, v{sb}, 3, v{vSTW}")
    if g: I(f"v_xor_b32 v{vSTW}, 8, v{vSTW}")
    if typ == 0:
        I(f"v_mul_u32_u24 v{b}, 96, v{a}")
        I(f"v_and_b32 v{c}, 4, v{a}")
        I(f"v_lshlrev_b32 v{c}, 2, v{c}")
        I(f"s_mul_i32 s{sT0}, s{sI}, 3072")
        I(f"s_add_u32 s{sT0}, s{sT0}, {PH + 2*g*12288}")
        I(f"v_add3_u32 v{b}, v{b}, v{c}, s{sT0}")
        I(f"v_lshl_add_u32 v{vPH}, v{h}, 5, v{b}")
        I(f"v_lshlrev_b32 v{c}, 4, v{h}")
        I(f"v_xor_b32 v{vKB}, v{b}, v{c}")
    if CFG.get("po"): pdm(CFG["po"][typ][1])
    I(f"v_mul_u32_u24 v{b}, {t.RB}, v{row}")
    I(f"v_mul_u32_u24 v{c}, {t.UP}, v{sb}")
    I(f"v_add3_u32 v{b}, v{b}, v{c}, v{sw}")
    for p in range(4):
        I(f"s_xor_b32 s{sT0}, s{sI}, {p}")
        I(f"s_mul_i32 s{sT0}, s{sT0}, {16*t.RB}")
        I(f"v_add_u32 v{vAG[p]}, s{sT0}, v{b}")
    I(f"s_mul_i32 s{sMG}, s{sI}, {16*t.RB}")
    if g: I(f"s_add_u32 s{sMG}, s{sMG}, {t.UP}")
    if typ == 0:
        I(f"s_mul_i32 s{sT2}, s{sA}, 5")
        I(f"s_min_u32 s{sT2}, s{sT2}, 33")
        I(f"s_add_u32 s{sT2}, s{sT2}, 48")
    else: I(f"s_mul_i32 s{sT2}, s{sA}, 6")
    I(f"s_mul_i32 s{sT0}, s{sI}, {16*2752}")
    I(f"s_lshl_b32 s{sT1}, s{sT2}, 5")
    I(f"s_add_u32 s{sT0}, s{sT0}, s{sT1}")
    I(f"s_mov_b32 s{sT1}, {2752 - 16*t.NP}")
    I(f"v_lshlrev_b32 v{a}, 4, v{vLN}")
    I(f"v_add_u32 v{vM16}, {MB}, v{a}")
    I(f"v_add_u32 v{a}, s{sT0}, v{a}")
    I(f"v_mul_u32_u24 v{b}, {t.MUL}, v{vLN}")
    for j in range(3):
        if j: I(f"v_add_u32 v{b}, {64*t.MUL}, v{b}")
        I(f"v_lshrrev_b32 v{c}, 11, v{b}")
        I(f"v_mad_u32_u24 v{vGO[j]}, v{c}, s{sT1}, v{a}")
        if typ == 0 and CFG["dup"]:
            if j == 0:
                I(f"s_cmp_eq_u32 s{sA}, 7")
                I(f"s_cselect_b32 s{sT3}, {4*t.MUL}, 0")
            I(f"v_and_b32 v{c}, 0x7ff, v{b}")
            I(f"v_cmp_gt_u32 vcc, s{sT3}, v{c}")
            I(f"v_cndmask_b32 v{vGO[j]}, v{vGO[j]}, 2.0, vcc")
    I(f"v_and_b32 v{a}, 15, v{vLN}")
    I(f"v_lshlrev_b32 v{b}, 2, v{j4}")
    I(f"v_mov_b32 v{c}, 0x3f803f80")
    I(f"v_cmp_eq_u32 vcc, v{a}, v{b}")
    for k in range(4): I(f"v_cndmask_b32 v{CP+k}, 0, v{c}, vcc")
    I(f"v_xor_b32 v{b}, s{sI4}, v{b}")
    I(f"v_or_b32 v{vCW}, v{b}, v{vM16}")
    I(f"s_lshl2_add_u32 s{sT0}, s{sT}, s{sI}")
    I(f"s_mul_i32 s{sT0}, s{sT0}, 118")
    I(f"s_add_u32 s{sT1}, s{sT0}, s{sT2}")
    I(f"s_add_u32 s{sT1}, s{sT1}, {32 + (3*g if typ else 2*g)}")
    I(f"s_lshl_b32 s{sHF}, s{sT1}, 10")
    I(f"s_lshr_b32 s{sT1}, s{sW}, 1")
    I(f"s_lshl2_add_u32 s{sT1}, s{sA}, s{sT1}")
    I(f"s_mul_i32 s{sT1}, s{sT1}, 17408")
    I(f"s_and_b32 s{sT2}, s{sW}, 1")
    if typ == 0:
        I(f"s_lshl4_add_u32 s{sT3}, s{sT2}, s{sT}")
        I(f"s_lshl_b32 s{sT3}, s{sT3}, 9")
        I(f"s_add_u32 s{sK1}, s{sT1}, s{sT3}")
        I(f"s_add_u32 s{sK1}, s{sK1}, {KVP_OFF - MB//2}")
        I(f"s_lshl1_add_u32 s{sT3}, s{sT}, s{sT2}")
        I(f"s_lshl_b32 s{sT3}, s{sT3}, 5")
        I(f"s_add_u32 s{sK2}, s{sT1}, s{sT3}")
        I(f"s_add_u32 s{sK2}, s{sK2}, {KVP_OFF + 16384 - MB//32}")
        I(f"s_lshl_b32 s{sEX}, s{sI}, 11")
        I(f"s_sub_u32 s{sEX}, s{sEX}, {MB - 3*t.SL}")
    else:
        I(f"s_add_u32 s{sK2}, s{sT1}, {KVP_OFF + 16384 - MB}")
        I(f"s_lshl_b32 s{sT2}, s{sT2}, 13")
        I(f"s_add_u32 s{sK1}, s{sT1}, s{sT2}")
        I(f"s_add_u32 s{sK1}, s{sK1}, {KVP_OFF - MB}")
        I(f"s_lshl2_add_u32 s{sT0}, s{sA}, s{sT0}")
        I(f"s_add_u32 s{sT0}, s{sT0}, {2*g}")
        I(f"s_lshl_b32 s{sEX}, s{sT0}, 10")
    I(f"v_lshlrev_b32 v{a}, 2, v{vLN}")
    I(f"s_lshl_b32 s{sT0}, s{sW}, 8")
    I(f"s_lshl_b32 s{sT1}, s{sA}, 11")
    I(f"s_add_u32 s{sT1}, s{sT1}, s{sT0}")
    I(f"s_add_u32 s{sT0}, s{sT0}, {t.WPH}")
    I(f"v_add_u32 v{vWPA}, s{sT0}, v{a}")
    I(f"s_lshr_b32 s{sT0}, s{sI}, 1")
    I(f"s_lshl1_add_u32 s{sT0}, s{sT}, s{sT0}")
    I(f"s_lshl3_add_u32 s{sT0}, s{sT0}, s{sA}")
    I(f"s_lshl_b32 s{sT0}, s{sT0}, 7")
    I(f"s_and_b32 s{sT2}, s{sI}, 1")
    I(f"s_lshl2_add_u32 s{sT0}, s{sT2}, s{sT0}")
    I(f"s_add_u32 s{sFL}, s{sT0}, {FLG + 16*typ + 8*g}")
    if typ == 0 and g == 0:
        I(f"s_cmp_eq_u32 s{sA}, 7")
        I(f"s_cselect_b32 s{sA}, 2.0, s{sHF}")
    I(f"v_mov_b32 v{b}, 0")
    if typ == 1:
        for x in p2addr(t, vLN, c, d): I(x)
    I(f"v_lshlrev_b32 v{vTCH}, 7, v{vLN}")
    if typ == 0:
        I(f"v_mov_b32 v{h}, -1")
        I(f"v_mov_b32 v{h+1}, -1")
        I(f"v_lshrrev_b32 v{c}, 1, v{vM16}")
        I(f"v_lshrrev_b32 v{d}, 5, v{vM16}")
    pstamp(P, 4)
    I("s_waitcnt lgkmcnt(0)")
    if CFG.get("po"):
        I(f"buffer_load_dword v{vWPV}, v{a}, {s(SWP,4)}, s{sT1} offen")
        pdm(CFG["po"][typ][2])
    else:
        for x in dma_x(t, 1):
            for y in x: emit(P, y)
        I(f"buffer_load_dword v{vWPV}, v{a}, {s(SWP,4)}, s{sT1} offen")
        for x in stream_list(t, g)[1:CFG["pro"]]:
            for z in x:
                for y in z: emit(P, y)
    if CFG["t3"] == 2:
        I(f"s_and_b32 s{sT0}, s2, 0xf8")
        I(f"s_add_u32 s{sT0}, s{sT0}, s{sW}")
        I(f"s_mul_i32 s{sT0}, s{sT0}, {2*3072}")
        I("s_mov_b32 exec_hi, 0xffff")
        I(f"buffer_load_dword v{75 if typ else 26}, v{vTCH}, {s(SWQ,4)}, s{sT0} offen")
    if CFG["t3"] == 3:
        I(f"s_and_b32 s{sT0}, s2, 0xf8")
        I(f"s_add_u32 s{sT0}, s{sT0}, s{sW}")
        I(f"s_mul_i32 s{sT0}, s{sT0}, {2*3072}")
        I("s_mov_b32 exec_lo, 0xff00ffff")
        I("s_mov_b32 exec_hi, 0xff")
        I(f"buffer_load_dword v{75 if typ else 26}, v{vTCH}, {s(SWQ,4)}, s{sT0} offen")
    if CFG["t3"] in (1, 4):
        I(f"s_lshr_b32 s{sT0}, s2, 3")
        I(f"s_lshl2_add_u32 s{sT0}, s{sT0}, s{sI}")
        I(f"s_mul_i32 s{sT0}, s{sT0}, {4*3072}")
        I(f"v_lshlrev_b32 v{a}, 3, v{vTCH}")
        I("s_mov_b64 exec, 0xfff")
        if g or CFG["t3"] == 4: I(f"buffer_load_dword v{75 if typ else 26}, v{a}, {s(SWQ,4)}, s{sT0} offen offset:{384 if g else 896}")
    I("s_mov_b64 exec, 1")
    I(f"buffer_store_dword v{b}, off, {s(SWS,4)}, s{sFL} sc1")
    I("s_mov_b64 exec, -1")
    if typ == 0:
        I(f"buffer_store_dwordx2 {v(h,2)}, v{c}, {s(SWS,4)}, s{sK1} offen sc1")
        I("s_mov_b32 exec_lo, 0x10001")
        I("s_mov_b32 exec_hi, 0x10001")
        I(f"buffer_store_dwordx2 {v(h,2)}, v{d}, {s(SWS,4)}, s{sK2} offen sc1")
        I("s_mov_b64 exec, -1")
    for r, m in zip(MS(g), (0xaaaaaaaa, 0xcccccccc, 0xff00ff00, 0xffff0000, 0x0f0f0f0f)):
        I(f"s_mov_b32 s{r}, {m:#x}")
        I(f"s_mov_b32 s{r+1}, {(m if m != 0x0f0f0f0f else 0xf0f0f0f0):#x}")
    pstamp(P, 5)

def P2R(typ): return (28, 29, 30, 31, 26) if typ else (27, 31, 26, 28, 29)
def p2addr(t, ln, a, b):
    vWa, vRD0, vRD1 = P2R(t.typ)[:3]
    base = t.RG[5] if t.typ else PH
    return [f"v_and_b32 v{a}, 7, v{ln}", f"v_lshlrev_b32 v{a}, 4, v{a}", f"v_and_b32 v{b}, 16, v{ln}", f"v_lshlrev_b32 v{b}, 2, v{b}", f"v_xor_b32 v{a}, v{a}, v{b}",
            f"v_lshrrev_b32 v{b}, 3, v{ln}", f"v_lshl_add_u32 v{vWa}, v{b}, 10, v{a}",
            f"v_bfe_u32 v{a}, v{ln}, 1, 1", f"v_and_b32 v{b}, 1, v{ln}", f"v_lshl_or_b32 v{a}, v{b}, 1, v{a}", f"v_lshlrev_b32 v{a}, 3, v{a}",
            f"v_bfe_u32 v{b}, v{ln}, 4, 1", f"v_lshl_add_u32 v{a}, v{b}, 5, v{a}", f"v_and_b32 v{b}, 8, v{ln}", f"v_lshl_add_u32 v{a}, v{b}, 3, v{a}",
            f"v_bfe_u32 v{b}, v{ln}, 2, 2", f"v_lshl_add_u32 v{a}, v{b}, 7, v{a}", f"v_lshrrev_b32 v{b}, 5, v{ln}", f"v_lshl_add_u32 v{a}, v{b}, 10, v{a}",
            f"v_lshl_add_u32 v{a}, s{sMW}, 1, v{a}", f"v_xor_b32 v{b}, 64, v{a}", f"v_add_u32 v{vRD0}, {base}, v{a}", f"v_add_u32 v{vRD1}, {base}, v{b}"]
def MS(g): return [0, SWP, SWP + 2, (SWG if g else SWU), (SWG if g else SWU) + 2]
def softmax(W, O, m=vMX, sm=vSM):
    o = [f"v_max_f32 v{m}, v{W}, v{W+1}", f"v_max_f32 v{sm}, v{W+2}, v{W+3}"]
    for k in range(4, 16, 4):
        o.append(f"v_max3_f32 v{m}, v{m}, v{W+k}, v{W+k+1}")
        o.append(f"v_max3_f32 v{sm}, v{sm}, v{W+k+2}, v{W+k+3}")
    o.append(f"v_max_f32 v{m}, v{m}, v{sm}")
    o.append(f"v_mul_f32 v{m}, v{m}, v{vC1}")
    for k in range(16): o.append(f"v_fma_f32 v{W+k}, v{W+k}, -v{vC1}, v{m}")
    for k in range(16):
        o.append(f"v_exp_f32 v{W+k}, v{W+k}")
        if k == 2: o.append(f"v_add_f32 v{sm}, v{W}, v{W+1}")
        if k > 2: o.append(f"v_add_f32 v{sm}, v{sm}, v{W+k-1}")
    o.append(f"v_add_f32 v{sm}, v{sm}, v{W+15}")
    o.append(f"v_rcp_f32 v{sm}, v{sm}")
    for k in range(8):
        o.append(f"v_mul_f32 v{W+2*k}, v{W+2*k}, v{sm}")
        o.append(f"v_mul_f32 v{W+2*k+1}, v{W+2*k+1}, v{sm}")
        o.append(f"v_cvt_pk_bf16_f32 v{O+k}, v{W+2*k}, v{W+2*k+1}")
    return o

def glu(G, U, n):
    o = []
    for k in range(n): o.append(f"v_mul_f32 v{G+k}, v{G+k}, v{vC1}")
    for k in range(n): o.append(f"v_exp_f32 v{G+k}, v{G+k}")
    for k in range(n): o.append(f"v_fma_f32 v{G+k}, v{G+k}, v{vSTD}, v{vSTD}")
    for k in range(n): o.append(f"v_rcp_f32 v{G+k}, v{G+k}")
    for k in range(n): o.append(f"v_mul_f32 v{G+k}, v{G+k}, v{U+k}")
    for k in range(n // 2): o.append(f"v_cvt_pk_bf16_f32 v{G+k}, v{G+2*k}, v{G+2*k+1}")
    return o

def publish(c, t0, t1, addr, blk, tag):
    return [f"v_and_b32 v{t0}, s{sHI}, v{c}", f"v_sub_f32 v{t1}, v{c}, v{t0}", f"v_cvt_pk_bf16_f32 v{t0}, v{t0}, v{t1}",
            f"ds_write_b32 v{addr}, v{t0} offset:{CSP - MB + blk*1024} #{tag}"]

def stream(P, typ, g, name):
    global vST, vSQ, vU, vSTW, vSTR, vCW
    I = P.I; t = T(typ); D = 3; sn = f"{name}_{typ}{g}"
    o_ = AV if typ else 83
    vST, vSQ, vU, vSTW, vSTR = o_, o_ + 1, [o_ + 2, o_ + 3, o_ + 4, o_ + 5], o_ + 6, o_ + 7
    vCW = AV + 8 if typ else 94
    PB = CFG["qpub"] if typ else "v1"
    if g and CFG.get("pri"): I(f"s_setprio {CFG['pri']}")
    setup(P, t, g)
    S = Sched(D)
    F = "v[32:35]"
    def mm(acc, x, first): return lambda f: f"v_mfma_f32_32x32x16_bf16 {v(acc,16)}, {f}, {v(x,4)}, {'0' if first else v(acc,16)}"
    def cm(c, first): return lambda f: f"v_mfma_f32_16x16x32_bf16 {v(c,4)}, {v(CP,4)}, {f}, {'0' if first else v(c,4)}"
    def tr(ad, im, sec): return [("tr", ad, im), ("tr2", ad, im + sec)]
    main = []; first = {}
    P1 = {}; SQ = {}
    for st in range(8):
        hi, so = t.sp(t.wp(st), t.WB)
        for p in range(4):
            it = Item(mm(AK, XR(st, p), st == 0 and p == 0), tr(vAA[hi][p], so, 512), cm(CD[0], st == 0) if p == 0 else None, name=f"{st}p{p}")
            if p == 0:
                it.bar = st; first[st] = it
                xh, xo = t.sp(t.xp(st), t.XB)
                if st < 2: it.pre = [f"ds_read_b128 {v(XR(st,q),4)}, v{vAX[xh][q]} offset:{xo}" for q in range(4)]
            main.append(it); P1[st, p, 0] = it
        for xs in CFG["sq"][st]:
            for q in (2*g, 2*g+1):
                SQ[xs, q] = Item((lambda x, fi: lambda f: f"v_mfma_f32_32x32x16_bf16 {v(GA[2],16)}, {v(x,4)}, {v(x,4)}, {'0' if fi else v(GA[2],16)}")(XR(xs, q), not SQ), name=f"sq{xs}{q}")
                if xs == 7: main.insert(main.index(P1[st, CFG["sq7"], 0]), SQ[xs, q])
                else: main.append(SQ[xs, q])
    V = {}
    if typ == 0:
        for c in range(8):
            hi, so = t.sp(t.vp(c), t.WB)
            for p in range(4): V[c, p] = Item(mm(AV, XR(c, p), c == 0 and p == 0), tr(vAA[hi][p], so, 512), cm(CD[1], False) if p == 0 else None, name=f"v{c}p{p}")
        for c in (1, 3, 6):
            it = V[c, 0] if c > 1 else V[CFG["v1"]]
            it.bar = f"v{c}"; first[f"v{c}"] = it
        main += [V[c, p] for c in range(6) for p in range(4)] + [V[6,0], V[7,0]] + [V[c, p] for c in (6, 7) for p in (1, 2, 3)]
    nb = 3
    blk = [3*g, 3*g+1, 3*g+2] if typ else [3*g, 3*g+1, 2]
    def gi(st, p, b):
        o = t.g(st)
        if o >= 3 * t.SL: o -= 3 * t.SL
        fst = st == 8 and (p == 0 or (typ == 0 and b == 2 and p == 2*g))
        sm = cm(CD[b], st == 8) if p == 0 else None
        return Item(mm(GA[b], XR(st-8, p), fst), tr(vAG[p], o + blk[b]*32, 4*t.RB), sm, name=f"{st}p{p}b{b}")
    def has(p, b): return typ == 1 or b < 2 or (p >> 1) == g
    G = {}
    for st in range(8, 16):
        for p in range(4):
            for b in range(nb):
                if has(p, b): G[st, p, b] = gi(st, p, b)
    for st in range(8, 13):
        l = [G[st, p, b] for p in range(4) for b in range(nb) if has(p, b)]
        l[0].bar = st; first[st] = l[0]; main += l
    first[PB].pre = [f"ds_read_b128 {v(vMU,4)}, v{vSTR}"]
    def corr(acc, cb, nbar, nm):
        return Item(mm(acc, vMU, False), [("b128", vM16, CSP - MB + cb*1024)], needbar=nbar, name=nm)
    C = [corr(GA[b], blk[b], "cs", f"corr{b}") for b in range(nb)]
    rest = lambda b, sts: [G[st, p, b] for st in sts for p in (1, 2, 3)]
    if typ == 0:
        sh = lambda st: [G[st, 2*g, 2], G[st, 2*g+1, 2]]
        t13 = [G[13,0,0], G[13,0,1]] + sh(13) + rest(0, [13])
        t15 = [G[14,0,0], G[14,0,1]] + sh(14) + sh(15) + [G[15,0,0], G[15,0,1]]
        r0 = rest(0, [14, 15]); r1 = rest(1, [13, 14, 15])
        tail = r0[:5] + [C[2]] + r0[5:] + [C[0]] + r1 + [C[1]]
        C[2].bar = "cs"
    else:
        t13 = [G[13,0,b] for b in range(3)] + rest(0, [13])
        t15 = [G[st,0,b] for st in (14, 15) for b in range(3)]
        r0 = rest(0, [14, 15])
        tail = r0[:5] + [C[0]] + r0[5:] + rest(1, [13, 14, 15]) + [C[1]] + rest(2, [13, 14, 15]) + [C[2]]
        C[0].bar = "cs"
    t13[0].bar = 13; t15[0].bar = 15; first[13] = t13[0]; first[15] = t15[0]
    main += t13 + t15 + tail
    barwait = {0: ["x0", "w0"], 1: ["x1", "w1", "x2"], 7: ["w7"], 15: ["w14", "w15"], "cs": []}
    for st in range(2, 7): barwait[st] = [f"w{st}", f"x{st+1}"]
    for st in range(8, 14): barwait[st] = [f"w{st}"]
    barlg = {PB: ["pub"], "cs": ["cs"]}
    BO = list(range(14))
    if typ == 0:
        barwait[7] = ["w7", "v0"]; barwait["v1"] = ["v1", "v2"]; barwait["v3"] = ["v3", "v4", "v5"]; barwait["v6"] = ["v6", "v7"]
        barlg[8] = ["pubv"]
        BO = list(range(8)) + ["v1", "v3", "v6"] + list(range(8, 14))
    sl = stream_list(t, g); pro = CFG["pro"]
    dm = {b: [] for b in BO[:-1]}
    if CFG.get("po"):
        pro = 14
        for b, l in enumerate(CFG["po"][typ][3:]):
            for nm in l.split(): dm[b] += (dma_x if nm[0] == "x" else dma_w)(t, int(nm[1]))
    if typ == 0:
        for k in range(pro, 14): dm[max(0, (k - 3) // 2)] += sl[k]
        for b, l in CFG["vdm"].items():
            for c in l: dm[b] += dma_v(t, c)
        dm[CFG["g8"]] += dma_g(t, g, 8)
        dm["v3"] += dma_g(t, g, 9); dm["v6"] += dma_g(t, g, 10)
        for b in range(8, 13): dm[b] = dma_g(t, g, b + 3)
    else:
        ql = CFG.get("qlead", 2)
        for k in range(pro, 14): dm[max(0, (k + 1 - 2*ql) // 2)] += sl[k]
        if ql == 3:
            for b in range(5, 13): dm[b] += dma_g(t, g, b + 3)
        else:
            g8 = dma_g(t, g, 8); g9 = dma_g(t, g, 9); g10 = dma_g(t, g, 10)
            dm[5] += g8[:2]; dm[6] = g8[2:] + g9[:2]; dm[7] = g9[2:] + g10[:2]; dm[8] = g10[2:] + dma_g(t, g, 11)
            for b in range(9, 13): dm[b] += dma_g(t, g, b + 3)
    if CFG["b0end"]: dm[0] = [sum(dm[0], [])] if dm[0] else []
    nxt = lambda b: BO[BO.index(b) + 1]
    heavy = []
    def hok(n):
        if not CFG["hstag"]: return True
        if n % 2 != g or n + 1 in S.bs.values(): return False
        return not any(dpos(b, j, len(dm[b]), gg)() == n for b in dm for j in range(len(dm[b])) for gg in (0, 1))
    def dpos(b, j, k, g=g):
        def f():
            L = S.bs[nxt(b)] - S.bs[b]; o = S.bs[b]
            if b == 0 and CFG['b0end']: return o + L - 1
            if b == 0: return o + j if typ else o + min(L - 2, 2 * j + g) if k <= 4 else o + j
            if 2 * k <= L: return o + min(L - 2, int((j + 0.5 * g) * L / k + 0.01))
            return o + min(L - 1, int((j + 0.5 * g) * L / k + 0.01))
        return f
    for b in BO[:-1]:
        for j, x in enumerate(dm[b]): heavy.append(S.add(x, after=b, before=nxt(b), kind="misc", lo=dpos(b, j, len(dm[b])) if CFG["pace" if BO.index(b) < (6 if typ else 8) else "paceg"] or b == 0 else None))
    if g == 1:
        S.add(f"v_mov_b32 v95, s{sXV}", after=2)
        S.add([f"s_cmp_eq_u32 s{sI}, 0", "s_cselect_b32 exec_lo, 1, 0", "s_mov_b32 exec_hi, 0", f"s_and_b32 s{sT3}, s2, 7", f"s_lshl_b32 s{sT3}, s{sT3}, 5",
               f"buffer_atomic_add v95, off, {s(SDB,4)}, s{sT3} sc1", "s_mov_b64 exec, -1"], after=CFG["atm"][typ], lo=(first[7], CFG["atm"][2+typ]), before=8)
    for p in range(4):
        bs = [b for b in range(nb) if has(p, b)]
        S.add(f"v_add_u32 v{vAG[p]}, {3*t.SL}, v{vAG[p]}", lo=(G[10,p,bs[-1]], -D), hi=(G[11,p,0], -D-1))
        nx = G[13,p,0] if not (typ == 0 and p and (p >> 1) == g) else G[13,p,2]
        S.add(f"v_subrev_u32 v{vAG[p]}, {3*t.SL}, v{vAG[p]}", lo=(G[12,p,bs[-1]], -D), hi=(nx, -D-1))
    ns = CFG["ns"][typ]; u = 0; fs = True
    S.node(P1[0,0,0], cm(CD[0], True)(F))
    sp = [2*g, 2*g+1]
    for st in range(8):
        if 1 <= st < 7:
            hi, so = t.sp(t.xp(st + 1), t.XB)
            for q in sp + [x for x in range(4) if x not in sp]:
                S.add(f"ds_read_b128 {v(XR(st+1,q),4)}, v{vAX[hi][q]} offset:{so}", after=st, lo=(first[st], (-2 if st > 1 else 0) if typ else -3), hi=(P1[st+1,q,0], -2), before=None if typ else st + 1)
        if st == 2:
            S.add(f"ds_write_b32 v{vWPA}, v{vWPV}", after=2)
            S.add(f"v_xor_b32 v{vWPV}, 0x80008000, v{vWPV}", after=2)
            S.add(f"ds_write_b32 v{vWPA}, v{vWPV} offset:2048", after=2, before=7)
    for st in range(8):
        for n, q in enumerate(sp):
            if n < ns[st]:
                S.add(cm(CD[2], fs)(v(XR(st, q), 4)), lo=(first[st], 1) if st < 2 else None); fs = False
    if typ == 1:
        S.add(f"v_mov_b32 v{vST}, v{CD[2]}", hi=(first[8], -1))
        S.node(P1[7,0,0], cm(CD[0], False)(F))
        S.adds(publish(CD[0], AV+9, AV+10, vCW, g, "pub"), hi=(first[8], -1))
    for (xs, q), it in SQ.items(): S.node(it, it.mf(F))
    Q_ = GA[2]; ms = MS(g)
    for lv, (stp, dd) in enumerate(((2, 1), (4, 2), (8, 4), (16, 8))):
        S.adds([f"v_cndmask_b32 v{Q_+k}, v{Q_+k}, v{Q_+k+dd}, {s(ms[lv],2)}" for k in range(0, 16, stp)])
    S.add(f"v_cndmask_b32 v{vSQ}, 0, v{Q_}, {s(ms[4],2)}")
    if typ == 0:
        S.add(f"v_mov_b32 v{vST}, v{CD[2]}")
        S.node(P1[7,0,0], cm(CD[0], False)(F))
        S.adds(publish(CD[0], 85, 86, vCW, g, "pub"), before=PB)
    else: S.node(G[8,0,2], mm(GA[2], XR(0,0), True)(F))
    S.add(f"v_permlane32_swap_b32 v{vST}, v{vSQ}")
    S.adds([f"v_add_f32 v{vST}, v{vST}, v{vSQ}", f"ds_write_b32 v{vSTW}, v{vST} #pub"], before=PB)
    sWQ2, sWO2, sWK2, sWZ2 = range(SWG if g else SWU, (SWG if g else SWU) + 4)
    J1, J2 = (75, 77) if typ else (26, 24)
    if CFG["t3"] == 3:
        S.add([f"s_and_b32 s{sT0}, s2, 0xf8", f"s_add_u32 s{sT0}, s{sT0}, s{sW}", f"s_mul_i32 s{sT0}, s{sT0}, {2*3072}", "s_mov_b32 exec_lo, 0xff0000", "s_mov_b32 exec_hi, 0xff00",
               f"buffer_load_dword v{J2}, v{vTCH}, {s(SWQ,4)}, s{sT0} offen", "s_mov_b64 exec, -1"], after=CFG["t3b"], before=CFG["t3b"] + 1)
    S.add([f"s_mov_b32 s{SOUT}, s{SWO+2}", f"s_mov_b32 s{SOUT+1}, s{SWO+3}", f"s_mov_b32 s{SOUT+2}, 2097152", f"s_mov_b32 s{SWO+2}, {512*1024}", f"s_mov_b32 s{SWO+3}, 0x20000"])
    if CFG["th"] & 1:
        S.add([f"s_add_u32 s{sT1}, s{sHF}, {MB}", "s_mov_b64 exec, 0xffffff", f"buffer_load_dword v{J1}, v{vTCH}, {s(SWS,4)}, s{sT1} offen sc1", "s_mov_b64 exec, -1"], after=CFG["thb"], before=8)
        if typ: S.add([f"s_add_u32 s{sT1}, s{sEX}, {MB}", "s_mov_b64 exec, 0xffff", f"buffer_load_dword v76, v{vTCH}, {s(SWS,4)}, s{sT1} offen sc1", "s_mov_b64 exec, -1"], after=CFG["thb"], before=8)
    if CFG["th"] & 4:
        S.add([f"s_add_u32 s{sT1}, s{sHF}, {MB}", "s_mov_b64 exec, 0xffffff", f"buffer_store_dword v{vTCH}, v{vTCH}, {s(SWS,4)}, s{sT1} offen", "s_mov_b64 exec, -1"], after=CFG["thb"], before=8)
        if typ: S.add([f"s_add_u32 s{sT1}, s{sEX}, {MB}", "s_mov_b64 exec, 0xffff", f"buffer_store_dword v{vTCH}, v{vTCH}, {s(SWS,4)}, s{sT1} offen", "s_mov_b64 exec, -1"], after=CFG["thb"], before=8)
    if CFG["th"] & 32:
        z_ = (typ, g) == (0, 0); dm_ = CFG.get('dmm', '')
        S.add([f"v_lshrrev_b32 v{J1}, 1, v{vTCH}", f"v_add_u32 v{J1}, {MB}, v{J1}", f"s_mov_b32 exec_hi, {0 if z_ else 0xffff}", f"buffer_store_dword v{J1}, v{J1}, {s(SWS,4)}, s{sA if z_ else sHF} offen{dm_}"] +
              (["s_mov_b32 exec_hi, 0", f"buffer_store_dword v{J1}, v{J1}, {s(SWS,4)}, s{sEX} offen{dm_}"] if typ else []) + ["s_mov_b64 exec, -1"], after=CFG["thb"], before=8)
    if CFG["th"] & 8:
        for j, b in enumerate(CFG["thl"][typ]):
            S.add(f"buffer_store_dwordx4 {v(CP,4)}, v{vM16}, {s(SWS,4)}, s{(sA if (typ, g) == (0, 0) and j < 2 else sHF) if j < 3 else sEX} offen offset:{(j%3)*1024}{CFG.get('dmm', '')} #dmy", after=b, lo=(first[b], CFG["tho"] + 2*g), kind="misc")
    if CFG["th"] & 2 and g == 0:
        S.add([f"s_and_b32 s{sT0}, s2, 7", f"s_lshr_b32 s{sT1}, s2, 6", f"s_lshl2_add_u32 s{sT0}, s{sT0}, s{sT1}", f"s_mul_i32 s{sT1}, s{sT0}, {236*1024}", f"s_add_u32 s{sT1}, s{sT1}, {MB}",
               f"s_lshl_b32 s{sT0}, s{sI}, 16", f"s_add_u32 s{sT1}, s{sT1}, s{sT0}",
               f"v_lshlrev_b32 v{J2}, 5, v{vTCH}", "s_mov_b64 exec, 0xffff", f"buffer_load_dword v{J2}, v{J2}, {s(SWS,4)}, s{sT1} offen sc1", "s_mov_b64 exec, -1"], after=CFG["thb"], before=8)
    if typ == 1 and "notouch" not in k1.KN:
        S.add([f"s_lshl3_add_u32 s{sT0}, s2, s{sW}", f"s_sub_u32 s{sT0}, s{sT0}, 1024", f"s_lshl_b32 s{sT1}, s{sT0}, 9", "s_mov_b64 exec, 15",
               f"buffer_load_dword v26, v{vTCH}, {s(SWO,4)}, s{sT1} offen", "s_mov_b64 exec, -1"], after=CFG["tch"], before=8)
        S.add([f"s_mul_i32 s{sT1}, s{sT0}, 1408", "s_mov_b64 exec, 0x7ff",
               f"buffer_load_dword v31, v{vTCH}, {s(SWD,4)}, s{sT1} offen", "s_mov_b64 exec, -1"], after=CFG["tch"], before=8)
    if CFG["tx"][typ] is not None:
        J3, J4, vT2 = (78, 79, 77) if typ else (91, 92, vTCH)
        S.add(f"v_lshlrev_b32 v{vT2}, 3, v{vTCH}", before=8)
        kw = dict(after=CFG["tx"][typ], lo=(first[CFG["tx"][typ]], CFG["tx"][2] + 2*g))
        S.add([f"s_and_b32 s{sT0}, s2, 0x78", f"s_add_u32 s{sT0}, s{sT0}, s{sW}", f"s_mul_i32 s{sT1}, s{sT0}, {11*1024}", "s_mov_b64 exec, 0x7ff",
               f"buffer_load_dword v{J4}, v{vT2}, {s(SWD,4)}, s{sT1} offen offset:384", f"s_lshl_b32 s{sT1}, s{sT0}, 12", "s_mov_b64 exec, 15",
               f"buffer_load_dword v{J3}, v{vT2}, {s(SWO,4)}, s{sT1} offen offset:384", "s_mov_b64 exec, -1"], **kw)
    S.add([f"s_and_b32 s{sT0}, s2, 0x38", f"s_cmp_eq_u32 s{sT0}, {(0x18 if typ else 0x38) if CFG['swp'] else 1}", f"s_cselect_b32 s{sT2}, 0xa0, 0", f"s_xor_b32 s{sT2}, s{sT2}, s2",
           f"s_and_b32 s{sT0}, s2, 7", f"s_lshr_b32 s{sT1}, s{sT2}, 6", f"s_lshl2_add_u32 s{sT0}, s{sT0}, s{sT1}", f"s_bfe_u32 s{sT1}, s{sT2}, 0x30003", f"s_lshl_b32 s{sT1}, s{sT1}, 7",
           f"s_lshl3_add_u32 s{sFR}, s{sT0}, s{sW}", f"s_lshl_b32 s{sFR}, s{sFR}, 7", f"s_add_u32 s{sFR}, s{sFR}, {FLG}",
           f"s_lshl_b32 s{sXO}, s{sT0}, 16", f"s_add_u32 s{sXO}, s{sXO}, s{sT1}", f"s_lshl3_add_u32 s{sXO}, s{sI4}, s{sXO}"] + ([f"s_add_u32 s{sXO}, s{sXO}, 32768"] if g else []), lo=(first[8], 1))
    S.add([f"s_mul_i32 s{sHO}, s{sT0}, {236*1024}", f"s_mul_i32 s{sT2}, s{sW}, 6144", f"s_add_u32 s{sHQ}, s{sHO}, s{sT2}", f"s_add_u32 s{sHQ}, s{sHQ}, 32768",
           f"s_mul_i32 s{sT2}, s{sW}, 5", f"s_min_u32 s{sT2}, s{sT2}, 33", f"s_add_u32 s{sT2}, s{sT2}, 48", f"s_lshl_b32 s{sWK2}, s{sT2}, 14", f"s_add_u32 s{sWK2}, s{sWK2}, s{sT1}",
           f"s_lshl_b32 s{sT2}, s{sT2}, 10", f"s_add_u32 s{sHK}, s{sHO}, s{sT2}", f"s_add_u32 s{sHK}, s{sHK}, 32768", f"s_lshl2_add_u32 s{sHO}, s{sMW}, s{sHO}"], lo=(first[8], 2))
    S.add([f"s_mul_i32 s{sWQ2}, s{sW}, {6*16384}", f"s_add_u32 s{sWQ2}, s{sWQ2}, s{sT1}", f"s_lshl_b32 s{sWO2}, s{sW}, 16", f"s_add_u32 s{sWO2}, s{sWO2}, s{sT1}",
           f"s_cmp_eq_u32 s{sW}, 7", f"s_cselect_b32 s{sWZ2}, 0x2000000, s{sWK2}"] +
          ([f"s_lshl_b32 s{sRB}, s{sI}, 14"] if g == 0 else
           [f"s_cmp_lt_u32 s{sI}, {2 if typ else 1}", f"s_cselect_b32 s{sRB}, 0, {t.RG[7] - t.RG[4] - 49152}", f"s_lshl_b32 s{sT2}, s{sI}, 14", f"s_add_u32 s{sRB}, s{sRB}, s{sT2}", f"s_add_u32 s{sRB}, s{sRB}, {t.RG[4]}"]) +
          [f"s_sub_u32 s{sRB}, s{sRB}, {MB}"], lo=(first[8], 3))
    m, q = vMU, vC1
    l8 = (first[PB], -1)
    S.adds([f"v_add_f32 v{m}, v{vMU}, v{vMU+2}", f"v_add_f32 v{q}, v{vMU+1}, v{vMU+3}",
            f"v_mul_f32 v{vSTD}, {fbits(-1.0/512)}, v{m}", f"v_mul_f32 v{q}, {fbits(1.0/512)}, v{q}"], lo=l8)
    S.adds([f"v_cvt_pk_bf16_f32 v{vMU+k}, v{vSTD}, v{vSTD}" for k in range(4)])
    S.adds([f"v_fma_f32 v{q}, -v{vSTD}, v{vSTD}, v{q}", f"v_max_f32 v{q}, 0, v{q}", f"v_add_f32 v{q}, {fbits(1e-5)}, v{q}",
            f"v_rsq_f32 v{vRS}, v{q}", f"v_mul_f32 v{vSTD}, v{q}, v{vRS}", f"v_mul_f32 v{vC1}, {fbits(-LOG2E)}, v{vRS}"])
    ex = []
    S.node(P1[7,3,0], mm(AK, XR(7,3), False)(F))
    ex.append(S.node(corr(AK, g, PB, "corrK"), mm(AK, vMU, False)(F)))
    def w64(w, x, **k):
        return S.add([w] + ([x] if x else []), kind="valu", cost=CFG["wc"] + (1 if x else 0), first=True, **k)
    KB = AK if typ else 96
    S.adds([f"v_cvt_pk_bf16_f32 v{KB+k}, v{AK+2*k}, v{AK+2*k+1}" for k in range(8)])
    pb = "ph"
    if typ == 0:
        W = [GA[2], AK]
        S.node(V[7,0], cm(CD[1], False)(F))
        S.adds(publish(CD[1], 83, 84, vCW, 2 + g, "pubv"), before=8)
        for rho in range(2):
            pk = mm(W[rho], KB + 4*rho, True)
            ex.append(S.node(Item(pk, tr(vWF, 512*rho, 128), needbar=PB, name=f"phi{rho}"), pk(F)))
        for rho in range(2):
            S.adds(softmax(W[rho], W[rho], *((87, 88), (vSM, vWF))[rho]))
            for b_ in range(2):
                w64(f"ds_write_b128 v{vPH}, {v(W[rho]+4*b_,4)} offset:{rho*12288} #ph", None if (rho, b_) == (1, 1) else f"v_xor_b32 v{vPH}, 16, v{vPH}", after="v3", before=pb)
        S.node(G[8,0,0], mm(GA[0], XR(0,0), True)(F)); S.node(G[8,0,1], mm(GA[1], XR(0,0), True)(F)); S.node(G[8,2*g,2], mm(GA[2], XR(0,2*g), True)(F))
        S.node(V[7,3], mm(AV, XR(7,3), False)(F))
        ex.append(S.node(corr(AV, 2 + g, 8, "corrV"), mm(AV, vMU, False)(F)))
        for k in range(8):
            S.adds([f"v_mul_f32 v{AV+2*k}, v{AV+2*k}, v{vRS}", f"v_mul_f32 v{AV+2*k+1}, v{AV+2*k+1}, v{vRS}",
                    f"v_cvt_pk_bf16_f32 v{AV+k}, v{AV+2*k}, v{AV+2*k+1}"])
            if k & 3 == 3: w64(f"ds_write_b128 v{vKB}, {v(AV+k-3,4)} offset:{(k>>2)*12288+64} #ph", None, before=pb)
        S.node(G[8,3,1], mm(GA[1], XR(0,3), False)(F)); S.node(G[8,2*g+1,2], mm(GA[2], XR(0,2*g+1), False)(F))
        W = [AV, XR(0, 0)]
    else:
        for rho in range(2):
            pk = mm(AV, AK + 4*rho, True)
            ex.append(S.node(Item(pk, tr(vWF, 512*rho, 128), needbar=8, name=f"phi{rho}"), pk(F)))
            S.adds(softmax(AV, AK + 8 if rho == 0 else AV))
    if typ == 0:
        pi = main[main.index(first[CFG["phbar"][0]]) + CFG["phbar"][1]]
        if pi.bar is None: pi.bar = pb; barwait[pb] = []
        else:
            for o in S.ops:
                if o.before == pb: o.before = pi.bar
            pb = pi.bar
        barlg[pb] = barlg.get(pb, []) + ["ph"]
        barlg[CFG["wb"][0]] = barlg.get(CFG["wb"][0], []) + ["kvr"]
        DK, DZ, ON = AK, AK + 4, AK + 8
        S.adds([f"v_mov_b32 v{ON+k}, 0x3f803f80" for k in range(4)])
        S.adds([f"v_lshrrev_b32 v{AK+12}, 1, v{vM16}", f"v_lshrrev_b32 v{AK+13}, 5, v{vM16}"])
        S.add([f"s_and_b32 s{sT3}, s{sI}, 1", f"s_lshl_b32 s{sT3}, s{sT3}, 5"], lo=(first[8], 0))
        S.add(f"v_subrev_u32 v{vPH}, s{sT3}, v{vKA}")
        for u4 in range(4):
            A0 = W[u4 >> 1] + 8*(u4 & 1); B0 = A0 + 4; o = u4 * 3072
            S.add([f"ds_read_b64_tr_b16 {v(A0,2)}, v{vKA} offset:{o}", f"ds_read_b64_tr_b16 {v(A0+2,2)}, v{vKA} offset:{o+768}"], after=pb)
            S.add([f"ds_read_b64_tr_b16 {v(B0,2)}, v{vPH} offset:{o+64}", f"ds_read_b64_tr_b16 {v(B0+2,2)}, v{vPH} offset:{o+768+64} #kvr"], after=pb, before=CFG["wb"][0])
            na = f"v_mfma_f32_16x16x32_bf16 {v(DZ,4)}, {v(A0,4)}, {v(ON,4)}, {'0' if u4 == 0 else v(DZ,4)}"
            nb_ = f"v_mfma_f32_16x16x32_bf16 {v(DK,4)}, {v(A0,4)}, {v(B0,4)}, {'0' if u4 == 0 else v(DK,4)}"
            S.adds([na, nb_] if u4 < 3 else [nb_, na])
        S.adds([f"v_cvt_pk_bf16_f32 v{DK}, v{DK}, v{DK+1}", f"v_cvt_pk_bf16_f32 v{DK+1}, v{DK+2}, v{DK+3}"])
        kvst = S.add(f"buffer_store_dwordx2 {v(DK,2)}, v{AK+12}, {s(SWS,4)}, s{sK1} offen sc1 #kvs", kind="misc")
        S.adds([f"v_cvt_pk_bf16_f32 v{DZ}, v{DZ}, v{DZ+1}", f"v_cvt_pk_bf16_f32 v{DZ+1}, v{DZ+2}, v{DZ+3}"])
        S.add(["WAITVM kvs", "s_mov_b32 exec_lo, 0x10001", "s_mov_b32 exec_hi, 0x10001", f"buffer_store_dwordx2 {v(DZ,2)}, v{AK+13}, {s(SWS,4)}, s{sK2} offen sc1", "s_mov_b64 exec, -1"],
              ok=lambda n: kvst.slot is not None and n >= kvst.slot + CFG["zd"])
    vWa, vRD0, vRD1, vFA, vFL = P2R(typ)
    KS = [("q", 0), ("q", 3), ("q", 1), ("q", 4), ("q", 2), ("q", 5)] + [("o", j) for j in range(4)] + [("k", 2), ("k", 0), ("k", 3), ("k", 1), ("k", 4)]
    NS = 2 if typ else 3; NR = 10 if typ else 12
    WR = [128 + 8*k for k in range(10)] if typ else [128 + 8*k for k in range(8)] + [AV, AV + 8, 192, 200]
    WR += WR[:15 - NR]
    RGN = [6 + k % 2 for k in range(12)] + [4, 5, 3] if typ else [5 + k % 3 for k in range(15)]
    rbase = t.RG[5] if typ else PH
    def wdma(k):
        ty, j = KS[k]
        b_ = {"q": sWQ2, "o": sWO2, "k": sWZ2 if j < 2 else sWK2}[ty]; R_ = s(SWO if ty == "o" else SWD, 4)
        return [[f"s_lshl1_add_u32 m0, s{sMW}, {t.RG[RGN[k]]}", f"s_add_u32 s{sO1}, s{b_}, {j*16384}", f"buffer_load_dwordx4 v{vWa}, {R_}, s{sO1} offen lds #W{k}"],
                [f"s_lshl1_add_u32 m0, s{sMW}, {t.RG[RGN[k]]}", f"s_add_u32 s{sO1}, s{b_}, {j*16384 + 7168}", f"buffer_load_dwordx4 v{vWa}, {R_}, s{sO1} offen offset:1024 lds #W{k}"]]
    def wread(k, ad=(vRD0, vRD1), base=rbase):
        o = t.RG[RGN[k]] - base
        return [[f"WAITVM W{k}"] * (1 - cb) * ("noxw" not in k1.KN) + [f"ds_read_b64_tr_b16 {v(WR[k]+4*cb,2)}, v{ad[cb]} offset:{o}", f"ds_read_b64_tr_b16 {v(WR[k]+4*cb+2,2)}, v{ad[cb]} offset:{o+512} #X{k}"] for cb in range(2)]
    if typ == 0:
        S.add(f"v_bfe_u32 v{AK+14}, v{vM16}, 4, 6")
        S.adds(p2addr(t, AK + 14, AK + 15, vRD1))
    Dk = {}; Xk = {}
    def aft(dd, k, l): return lambda n: dd[k].slot is not None and n >= dd[k].slot + l
    for k in range(14 if typ else 15):
        wd_ = wdma(k)
        if typ and k >= 12: kw = dict(after=13 if k == 12 else 15)
        elif k < NS: kw = dict(after=CFG["wb"][typ])
        else: kw = dict(ok=aft(Xk, k - NS, CFG["wg"])); wd_[0] = [f"WAITLG X{k-NS}"] + wd_[0]
        for x in wd_:
            Dk[k] = S.add(x, kind="misc", **kw); Dk[k].R -= {("s", 124), ("s", sO1)}; Dk[k].W -= {("s", 124), ("s", sO1)}; Dk[k].R.add(("x", 9 + (typ and k >= 12))); Dk[k].W.add(("x", 9 + (typ and k >= 12)))
        if k < NR:
            lo = (G[8 + (WR[k] - 128) // 16, 3, nb - 1 if has(3, nb - 1) else 1], 0) if WR[k] >= 128 else None
            for x in wread(k): Xk[k] = S.add(x, kind="misc", ok=aft(Dk, k, CFG["wl"]), lo=lo)
    S.adds([f"v_lshrrev_b32 v{vFA}, 2, v{vM16}", f"v_and_b32 v{vFA}, 28, v{vFA}"])
    vCT = 27 if typ else 30
    if CFG["th"] & 16:
        J = 76 if typ else AK + 12; b_ = CFG["thr"][typ]
        S.add([f"s_mov_b32 s{sT1}, {(-7*MB) & 0xffffffff}", f"v_lshl_add_u32 v{J}, v{vM16}, 3, s{sT1}"] +
              ([f"s_sub_u32 s{sT1}, s{sEX}, s{sHF}", f"s_sub_u32 s{sT1}, s{sT1}, 4096", "s_mov_b32 exec_lo, 0", f"v_add_u32 v{J}, s{sT1}, v{J}", "s_mov_b32 exec_lo, 0xffffff", "s_mov_b32 exec_hi, 0xffff"] if typ else
               [f"s_mov_b64 exec, {0xffffff if g else 0xffff}"]) +
              [f"buffer_load_dword v{J}, v{J}, {s(SWS,4)}, s{sA if (typ, g) == (0, 0) else sHF} offen{CFG.get('thm', ' sc1')}", "s_mov_b64 exec, -1"], after=b_, before={13: 15, 15: "cs"}.get(b_, b_ + 1), lo=(first[b_], CFG["thr"][2] + 2*g), kind="misc", prio=3)
    polls = []
    def fload(): return f"buffer_load_dword v{vFL}, v{vFA}, {s(SWS,4)}, s{sFR} offen sc1"
    def fcheck(ty, lv, own=None):
        polls.append((ty, lv, own)); n_ = len(polls)
        return [f"v_cmp_gt_u32 vcc, {lv}, v{vFL}", f"s_and_b32 s{sT1}, vcc_lo, {0xf0 if ty == 'q' else 0x0f}", f"s_cbranch_scc1 L_{sn}_fp{n_}", f"LABEL L_{sn}_fb{n_}"]
    spolls = []
    def gload(): return f"s_buffer_load_dwordx8 {s(SWO,8)}, {s(SWS,4)}, s{sFR} glc"
    def gmin(ty, lv):
        b = SWO + (4 if ty == "q" else 0)
        return [f"s_min_u32 s{sT1}, s{b}, s{b+1}", f"s_min_u32 s{sC}, s{b+2}, s{b+3}", f"s_min_u32 s{sT1}, s{sT1}, s{sC}", f"s_cmp_eq_u32 s{sMD}, 0", f"s_cselect_b32 s{sT1}, s{sT1}, 0", f"s_cmp_lt_u32 s{sT1}, {lv}"]
    slow = []
    def mst(x, tag=""):
        slow.append(x); n_ = len(slow)
        return [f"s_cmp_lg_u32 s{sMD}, 0", f"s_cbranch_scc1 L_{sn}_ss{n_}", x + (" #" + tag if tag else ""), f"LABEL L_{sn}_sb{n_}"]
    def fstore(lv, tag, r): return [f"v_mov_b32 v{r}, {lv}", f"WAITVM {tag}", "s_mov_b64 exec, 1"] + mst(f"buffer_store_dword v{r}, off, {s(SWS,4)}, s{sFL}") + ["s_mov_b64 exec, -1"]
    HR = [96, 104, 112, 120, 80, 88, 48, 56, 64, 72, 96, 104, 112, 120, 80] if typ else [112, 120, 48, 56, 80, 88, 96, 104, 112, 120, 48, 56, WR[3], 80, 88]
    def hload(k):
        ty, j = KS[k]; b_ = {"q": sHQ, "o": sHO, "k": sR if j < 2 else sHK}[ty]
        return [[f"s_add_u32 s{sO1}, s{b_}, {j*1024 + tb*118*1024}", f"buffer_load_dwordx4 {v(HR[k]+4*tb,4)}, v{vM16}, {s(SWS,4)}, s{sO1} offen"] for tb in range(1 if "halfh" in k1.KN else 2)]
    S.add([f"s_cmp_eq_u32 s{sW}, 7", f"s_cselect_b32 s{sR}, 2.0, s{sHK}"], after=13)
    SEL, DD, ZZ, LD = AV + 8, CP, AV + 12, GA[0]
    vTW, vTZ, vTR = 1, 2, 3
    if typ == 1:
        a, b, c, ln = AK + 1, AK + 2, AK + 3, AK + 4
        o = [f"v_bfe_u32 v{ln}, v{vM16}, 4, 6", f"v_and_b32 v{a}, 15, v{ln}", f"v_lshrrev_b32 v{b}, 1, v{ln}", f"v_and_b32 v{b}, 8, v{b}", f"v_xor_b32 v{b}, v{a}, v{b}",
             f"v_and_b32 v{c}, 1, v{b}", f"v_lshlrev_b32 v{c}, 4, v{c}", f"v_mov_b32 v{a}, 0x3f80", f"v_lshlrev_b32 v{c}, v{c}, v{a}", f"v_lshrrev_b32 v{b}, 1, v{b}"]
        for r in range(4): o += [f"v_cmp_eq_u32 vcc, {r}, v{b}", f"v_cndmask_b32 v{SEL+r}, 0, v{c}, vcc"]
        S.adds(o, lo=(first[12], 0))
        S.add([f"s_lshr_b32 s{sT0}, s{sW}, 1", f"s_lshl_b32 s{sT0}, s{sT0}, 11", f"s_and_b32 s{sT2}, s{sW}, 1", f"s_lshl_b32 s{sT2}, s{sT2}, 5",
               f"s_add_u32 s{sT2}, s{sT2}, s{sT0}", f"s_add_u32 s{sT2}, s{sT2}, {OT}", f"s_sub_u32 s{sT0}, s{sT0}, {MB - OT}"], lo=(first[9], 0))
        S.adds([f"v_add_u32 v{vTZ}, s{sT0}, v{vM16}", f"v_and_b32 v{a}, 7, v{ln}", f"v_lshlrev_b32 v{a}, 7, v{a}", f"v_and_b32 v{b}, 16, v{ln}", f"v_lshl_add_u32 v{a}, v{b}, 2, v{a}",
                f"v_and_b32 v{b}, 8, v{ln}", f"v_add_u32 v{a}, v{a}, v{b}", f"v_lshrrev_b32 v{b}, 1, v{ln}", f"v_and_b32 v{b}, 16, v{b}", f"v_add3_u32 v{vTW}, v{a}, v{b}, s{sT2}",
                f"v_and_b32 v{a}, 19, v{ln}", f"v_bfe_u32 v{b}, v{ln}, 2, 1", f"v_lshl_or_b32 v{a}, v{b}, 3, v{a}", f"v_bfe_u32 v{b}, v{ln}, 3, 1", f"v_lshl_or_b32 v{a}, v{b}, 2, v{a}",
                f"v_lshlrev_b32 v{a}, 6, v{a}", f"v_and_b32 v{b}, 32, v{ln}", f"v_add_u32 v{a}, v{a}, v{b}", f"v_add_u32 v{vTR}, {OT + g*4096}, v{a}"])
    S.add(f"v_lshlrev_b32 v{vFL}, 3, v{vFA}")
    S.add(f"buffer_load_dword v{vCT}, v{vFL}, {s(SDB,4)}, 0 offen", after=12, lo=(first[13], -4), kind="misc")
    cck = [f"s_and_b32 s{sMD}, s2, 7", f"v_readlane_b32 s{sMD}, v{vCT}, s{sMD}", f"v_and_b32 v{vCT}, 0xff, v{vCT}", f"v_cmp_gt_u32 vcc, 32, v{vCT}", f"s_lshl_b32 s{sT1}, s{sXV}, 5", f"s_sub_u32 s{sMD}, s{sMD}, s{sT1}"]
    chk = S.add(cck + [f"s_cbranch_vccnz L_{sn}_cp", f"LABEL L_{sn}_cb"], after=15)
    chk.R |= {("v", vFL)}
    chk.W |= {("s", sT1), ("x", 0)}
    vCW2, vEX, t0 = AK, AK + 1, AK + 2
    S.adds([f"v_lshrrev_b32 v{vCW2}, 6, v{vM16}", f"v_and_b32 v{vCW2}, 12, v{vCW2}", f"v_xor_b32 v{vCW2}, s{sI4}, v{vCW2}", f"v_or_b32 v{vCW2}, v{vCW2}, v{vM16}"], lo=(first[12], 0))
    if typ == 0:
        S.add(f"v_add_u32 v{vEX}, s{sEX}, v{vM16}")
        own = 4*g; oth = 4 - own
        if g == 0: S.node(G[15,0,2], cm(CD[2], False)(F))
        S.node(G[15,2*g+1,2], mm(GA[2], XR(7,0), False)(F))
        for k in range(2): w64(f"ds_write_b128 v{vEX}, {v(GA[2]+oth+8*k,4)} offset:{g*8192+1024*k} #cs", None, before="cs")
        S.node(G[15,0,0], cm(CD[0], False)(F)); S.node(G[15,0,1], cm(CD[1], False)(F))
        for b in range(3 - g): S.adds(publish(CD[b], t0 + 2*b, t0 + 2*b + 1, vCW2, blk[b], "cs"), before="cs", prio=2)
        X = AK + 8
        S.add(f"ds_read_b128 {v(X,4)}, v{vEX} offset:{(1-g)*8192}", after="cs")
        S.add(f"ds_read_b128 {v(X+4,4)}, v{vEX} offset:{(1-g)*8192+1024}", after="cs")
        S.node(C[2], mm(GA[2], vMU, False)(F))
        S.adds([f"v_add_f32 v{X+4*hh+k}, v{X+4*hh+k}, v{GA[2]+8*hh+own+k}" for hh in range(2) for k in range(4)])
        S.adds(glu(X, X + 4, 4))
        S.add(mst(f"buffer_store_dwordx2 {v(X,2)}, v{vM16}, {s(SWS,4)}, s{sHF} offen offset:{(1-g)*2048+8*g}", "hs"), kind="misc", prio=1)
        fin = [(0, C[0], g*1024), (1, C[1], (1+g)*1024)]
    else:
        for b in range(3): S.node(G[15,0,b], cm(CD[b], False)(F))
        for b in range(3): S.adds(publish(CD[b], t0 + 2*b, t0 + 2*b + 1, vCW2, blk[b], "cs"), before="cs", prio=2)
        fin = [(0, r0[-1], 0), (1, C[1], 1024), (2, C[2], 2048)]
        def loads(m=" sc1"):
            o = [[f"buffer_load_dwordx4 {v(ZZ,4)}, v{vM16}, {s(SWS,4)}, s{sK2} offen sc1"]]
            for p in range(8):
                o.append(([f"s_add_u32 s{sT2}, s{sK1}, 4096"] if p == 4 else []) + [f"buffer_load_dwordx4 {v(LD+4*p,4)}, v{vM16}, {s(SWS,4)}, s{sK1 if p < 4 else sT2} offen offset:{(p%4)*1024}{m}"])
            return o
        L_ = loads("")
        S.add(L_[0], kind="misc", lo=lambda: C[2].idx - CFG["qload"] - CFG["qct"]).R |= {("x", 0)}
        zc = S.add([f"v_cmp_eq_u32 vcc, -1, v{ZZ}", "s_nop 1", f"s_cbranch_vccnz L_{sn}_zp", f"LABEL L_{sn}_zb"], lo=lambda: C[2].idx - CFG["qload"] - 1)
        zc.W |= {("s", sT1), ("x", 1)}
    if typ == 0 and CFG["f1"][2]:
        S.add(fload(), kind="misc", lo=lambda: C[2].idx + CFG["f1"][0]).R |= {("x", 0)}
        S.add(fcheck("q", CFG["f1"][2]), lo=lambda: C[2].idx + CFG["f1"][1]).W |= {("x", 1)}
        for k in range(2 * CFG["f1"][2]):
            if k < 4:
                for x in hload(k): S.add(x, kind="misc").R |= {("x", 1)}
    HS = {}
    for b, it, off in fin:
        S.node(it, mm(GA[b], vMU, False)(F))
        S.adds(glu(GA[b], GA[b] + 8, 8))
        if typ == 1 and b == 2:
            for x in L_[1:]: HS["l"] = S.add(x, kind="misc", lo=lambda: C[2].idx - CFG["qload"]); HS["l"].R |= {("x", 1)}
        if b == len(fin) - 1: S.add(fload(), kind="misc").R |= {("v", GA[b] + CFG["f2"]), ("x", 0)}
        HS[b] = S.add(mst(f"buffer_store_dwordx4 {v(GA[b],4)}, v{vM16}, {s(SWS,4)}, s{sA if (typ, g) == (0, 0) else sHF} offen offset:{off}", f"h{b}"), kind="misc", prio=int(b < len(fin) - 1))
        if b in CFG["st"][typ]: S.add(fstore(b + 2 - typ, f"h{b}", vCT), kind="misc", ok=aft(HS, b, CFG["s1"]))
        if typ == 0 and b == 0 and CFG["f1"][2] == 3:
            for k in (4, 5):
                for x in hload(k): S.add(x, kind="misc").R |= {("x", 1)}
    def budget(n, it):
        if n < first[8].idx:
            if typ == 1: return CFG["qb"]
            if n < first["v1"].idx - D: return CFG["pb"]
            return CFG["vb"]
        if n < first[15].idx and typ == 0: return CFG["gb"]
        return 6
    S.budget = budget
    S.dbl = lambda n: n >= first[9].idx
    if typ == 1:
        for b in range(1, 9): S.prebar_budget[b] = CFG["qpb"]
    S.prebar_budget["cs"] = 6
    if typ == 0:
        for b in list(range(1, 8)) + ["v1"]: S.prebar_budget[b] = CFG["ppb"]
        for b in ("v3", "v6", 8): S.prebar_budget[b] = CFG.get("vpb", 0)
    S.dump = "dump" in k1.KN
    S.solve(main, ex)
    order = S.order; N = len(order)
    info = [f"typ{typ} g{g} N={N} bars={S.bs} extras={[(e.item.name, e.item.idx) for e in ex]} slots={len(S.slots)-D}"]
    if typ == 0: info.append(f"kvstore@{kvst.slot}")
    print(" ".join(info))
    nst = [1]
    def em(x):
        if x.startswith("LABEL"): P.label(x.split()[1])
        elif x.startswith("WAITVM"): P.wait_vm(x.split()[1])
        elif x.startswith("WAITLG"): P.wait_lg(x.split()[1])
        else: emit(P, x)
    for n, it, sm, va, mi in S.slots:
        m_ = n + D
        if m_ < N:
            nx = order[m_]
            if nx.bar is not None:
                P.comment(f"--- barrier {nx.bar}")
                if not ("nowait" in k1.KN and nx.bar != 0):
                    for tg in barwait[nx.bar]: P.wait_vm(tg)
                for tg in barlg.get(nx.bar, []): P.wait_lg(tg)
                I("s_barrier")
                nstamp(P, nx.bar, nst)
            f = FR[m_ % 4]
            rd = []
            for k, ad, im in nx.reads:
                rd.append({"tr": f"ds_read_b64_tr_b16 {v(f,2)}, v{ad} offset:{im}", "tr2": f"ds_read_b64_tr_b16 {v(f+2,2)}, v{ad} offset:{im}",
                           "b128": f"ds_read_b128 {v(f,4)}, v{ad} offset:{im}"}[k])
            for x in nx.pre[:1] + rd + nx.pre[1:]: I(x)
        body = []
        if it is not None:
            f = v(FR[n % 4], 4)
            if it.small: body.append(it.small(f))
            if sm: body += sm.texts
            body.append(it.mf(f))
        elif sm: body += sm.texts
        if "nofill" not in k1.KN or n >= N:
            for o in va: body += o.texts
        if it is not None:
            touch = set()
            for x in body:
                i_ = Ins(x.split("#")[0].strip()); touch |= i_.vr | i_.vw
            P.wait_regs(touch)
        for x in body: em(x)
        for o in mi:
            if "nowd" in k1.KN and any("#W" in x for x in o.texts): continue
            if "halfwd" in k1.KN and any("#W" in x and "offset:1024" in x for x in o.texts): continue
            if "noxr" in k1.KN and any("#X" in x for x in o.texts): continue
            if "nodma" in k1.KN and any(" lds" in x for x in o.texts): continue
            for x in o.texts: em(x)
        if n == N - 1:
            nstamp(P, "last", nst)
            if typ == 0 and g == 1 and CFG.get("bl"): P.wait_lg(); I("s_barrier")
    ACC = [208, 224, 240, 32]
    vXA, vXD = 4, 8
    RD = []
    def radr():
        I(f"s_lshl_b32 s{sT0}, s{sMW}, 1")
        I(f"s_sub_u32 s{sT0}, s{sT0}, {MB}")
        I(f"v_add_u32 v5, s{sT0}, v{vM16}")
        I(f"v_add_u32 v6, {t.RG[4]}, v5")
        I(f"v_add_u32 v7, {t.RG[6]}, v5")
        I(f"v_add_u32 v12, s{sRB}, v{vM16}")
    def rwr(q):
        o = []
        for e in range(4):
            r = 2*q + (e >> 1); ad, bs_ = (5, 0) if r < 4 else (6, t.RG[4]) if r < 6 else (7, t.RG[6])
            o.append(f"ds_write_b128 v{ad}, {v(ACC[q]+4*e,4)} offset:{t.RG[r] - bs_ + (e & 1)*1024}")
        return o
    def tok(tk):
        c = tk[0]; r = tk[1:]
        if c == "F": I(fload())
        elif c == "C":
            for x in fcheck(r[0], int(r[1]), int(r[3]) if len(r) > 2 else None): em(x)
        elif c == "L":
            for x in hload(int(r)):
                for y in x: em(y)
        elif c == "S":
            lv, tg = r.split(":")
            for x in fstore(int(lv), tg, vCT): em(x)
        elif c == "B":
            if r == "" or int(r) == g: I("s_barrier")
        elif c == "T": nstamp(P, r, nst)
        elif c == "D":
            for x in wdma(int(r)):
                for y in x: em(y)
        elif c == "X":
            k = int(r); ad = (vRD0, vRD1); base = rbase
            if not 0 <= t.RG[RGN[k]] - rbase < 65000:
                ad = (5, 6); base = t.RG[RGN[k]]
                for cb in range(2): I(f"v_add_u32 v{ad[cb]}, {(base - rbase) & 0xffffffff}, v{(vRD0, vRD1)[cb]}")
            for x in wread(k, ad, base):
                for y in x: em(y)
        elif c == "M":
            k = int(r)
            for tb, cb in ((0, 0), (1, 0), (0, 1), (1, 1)):
                A = ACC[tb*2+cb]
                I(f"v_mfma_f32_32x32x16_bf16 {v(A,16)}, {v(WR[k]+4*cb,4)}, {v(HR[k]+4*tb,4)}, {'0' if k == 0 else v(A,16)}")
        elif c == "P": I(f"s_setprio {r}")
        elif c == "G": I(gload())
        elif c == "R":
            J = vSTD if r == "o" else vC1; sb_ = sEX if r == "o" else sA if (typ, g) == (0, 0) else sHF
            for x in [f"s_mov_b32 s{sT1}, {(-7*MB) & 0xffffffff}", f"v_lshl_add_u32 v{J}, v{vM16}, 3, s{sT1}", f"s_mov_b64 exec, {0xffffff if sb_ == sHF else 0xffff}",
                      f"buffer_load_dword v{J}, v{J}, {s(SWS,4)}, s{sb_} offen{CFG.get('thm', ' sc1')}", "s_mov_b64 exec, -1"]: I(x)
        elif c == "H":
            ty, lv = r[0], int(r[1]); own = int(r[3]) if len(r) > 2 else None
            polls.append((ty, lv, own)); n_ = len(polls); spolls.append(n_)
            P.wait_lg()
            for x in gmin(ty, lv): I(x)
            I(f"s_cbranch_scc1 L_{sn}_gp{n_}"); P.label(f"L_{sn}_fb{n_}")
        elif c == "N":
            radr(); prev = []
            for tb, cb in ((0, 0), (1, 0), (0, 1), (1, 1)):
                q = tb*2+cb; A = ACC[q]
                for j, k in enumerate(range(int(r), 15)):
                    I(f"v_mfma_f32_32x32x16_bf16 {v(A,16)}, {v(WR[k]+4*cb,4)}, {v(HR[k]+4*tb,4)}, {v(A,16)}")
                    if j >= CFG.get("nw", 1) and prev: I(prev.pop(0))
                for x in prev: I(x)
                prev = rwr(q)
            for x in prev: I(x)
            RD.append(1)
        elif c == "x":
            I(f"v_bfe_u32 v{vXA}, v{vM16}, 4, 5")
            I(f"v_bfe_u32 v7, v{vM16}, 9, 1")
            I(f"v_lshlrev_b32 v{vXA}, 10, v{vXA}")
            I(f"v_lshl_add_u32 v{vXA}, v7, 4, v{vXA}")
            I(f"buffer_load_dwordx4 {v(vXD,4)}, v{vXA}, {s(SX,4)}, s{sXO} offen")
        else: raise ValueError(tk)
    if typ == 1:
        nstamp(P, "oph", nst)
        I(f"s_mov_b32 s{sT0}, 0")
        P.label(f"L_{sn}_pre")
        for p in range(8): I(f"v_mfma_f32_16x16x32_bf16 {v(DD,4)}, {v(SEL,4)}, {v(LD+4*p,4)}, {'0' if p == 0 else v(DD,4)}")
        I(f"ds_write_b128 v{vTZ}, {v(ZZ,4)} offset:1024")
        I(f"v_mfma_f32_16x16x32_bf16 {v(LD,4)}, {v(SEL,4)}, {v(ZZ,4)}, {v(DD,4)}")
        I(f"v_cvt_pk_bf16_f32 v{LD+4}, v{DD}, v{DD+1}")
        I(f"v_cvt_pk_bf16_f32 v{LD+5}, v{DD+2}, v{DD+3}")
        I(f"ds_write_b64 v{vTW}, {v(LD+4,2)}")
        I(f"v_cmp_u_f32 vcc, v{LD}, v{LD}")
        I("s_nop 1")
        I(f"s_cbranch_vccnz L_{sn}_rt")
        P.label(f"L_{sn}_go")
        for tk in CFG["qo"][0].split(): tok(tk)
        P.wait_lg()
        I("s_barrier")
        AO = GA[0]; DO = [208, 224]
        for rho in range(2):
            for f in range(2): I(f"ds_read_b128 {v(AO+8*rho+4*f,4)}, v{vTR} offset:{rho*2048+16*f}")
        for rho in range(2):
            ph = AK + 8 if rho == 0 else AV
            for f in range(2):
                I(f"v_mfma_f32_32x32x16_bf16 {v(DO[rho],16)}, {v(AO+8*rho+4*f,4)}, {v(ph+4*f,4)}, {'0' if f == 0 else v(DO[rho],16)}")
        for tk in CFG["qo"][1].split(): tok(tk)
        for rho in range(2):
            Dd = DO[rho]
            for k in range(4): I(f"v_add_f32 v{Dd+8+k}, v{Dd+8+k}, v{Dd+12+k}")
            I(f"v_add_f32 v{Dd+8}, v{Dd+8}, v{Dd+9}")
            I(f"v_add_f32 v{Dd+10}, v{Dd+10}, v{Dd+11}")
            I(f"v_add_f32 v{Dd+8}, v{Dd+8}, v{Dd+10}")
            I(f"v_mov_b32 v{Dd+9}, v{Dd+8}")
            I(f"v_permlane32_swap_b32 v{Dd+8}, v{Dd+9}")
            I(f"v_add_f32 v{Dd+8}, v{Dd+8}, v{Dd+9}")
            I(f"v_add_f32 v{Dd+8}, {fbits(1e-6)}, v{Dd+8}")
            I(f"v_rcp_f32 v{Dd+8}, v{Dd+8}")
            for k in range(8): I(f"v_mul_f32 v{Dd+k}, v{Dd+k}, v{Dd+8}")
            for k in range(4): I(f"v_cvt_pk_bf16_f32 v{Dd+k}, v{Dd+2*k}, v{Dd+2*k+1}")
            for x in mst(f"buffer_store_dwordx4 {v(Dd,4)}, v{vM16}, {s(SWS,4)}, s{sEX} offen offset:{rho*1024}", "ho"): em(x)
    for tk in CFG["p2"][typ].replace("Ts3", CFG.get("ts3", "Ts3")).replace("Ts4", CFG.get("ts4", "Ts4")).split(): tok(tk)
    if not RD:
        radr()
        for q in (0, 2, 1, 3):
            for x in rwr(q): I(x)
    XU = 16
    for k in range(4):
        I(f"v_lshlrev_b32 v{XU+2*k}, 16, v{vXD+k}")
        I(f"v_and_b32 v{XU+2*k+1}, s{sHI}, v{vXD+k}")
    P.wait_lg()
    I("s_barrier")
    nstamp(P, "red", nst)
    for w_ in range(8):
        for e in range(2): I(f"ds_read_b128 {v(128+8*w_+4*e,4)}, v12 offset:{w_*2048+e*1024}")
        if w_ == 6:
            for k in range(8): I(f"v_add_f32 v{XU+k}, v{XU+k}, v{128+k}")
    for w_ in range(1, 8):
        for k in range(8): I(f"v_add_f32 v{XU+k}, v{XU+k}, v{128+8*w_+k}")
    for k in range(4): I(f"v_cvt_pk_bf16_f32 v{XU+k}, v{XU+2*k}, v{XU+2*k+1}")
    I(f"buffer_store_dwordx4 {v(XU,4)}, v{vXA}, {s(SOUT,4)}, s{sXO} offen")
    while nst[0] < 18: nstamp(P, "-", nst)
    P.comment(f"STAMPS {typ}{g} " + " ".join(nst[1:]) + " end")
    dump_stamps(P, 19, SWS, sW, 8, sT0)
    I("s_endpgm")
    def poll(nm, back, sl, body, done, pre=[]):
        P.restore(([], [], [], False))
        P.label(f"L_{sn}_{nm}")
        for x in pre: em(x)
        I(f"s_mov_b32 s{sC}, 0")
        P.label(f"L_{sn}_{nm}l")
        I(f"s_sleep {sl}")
        for x in body: I(x)
        I(f"{done} L_{sn}_{back}")
        I(f"s_add_u32 s{sC}, s{sC}, 1")
        I(f"s_cmp_lt_u32 s{sC}, 20000")
        I(f"s_cbranch_scc1 L_{sn}_{nm}l")
        I(f"s_branch L_{sn}_{back}")
    for n_, x in enumerate(slow):
        P.restore(([], [], [], False))
        P.label(f"L_{sn}_ss{n_+1}")
        I("s_nop 4"); I(x + " sc1"); I("s_nop 4"); I(f"s_branch L_{sn}_sb{n_+1}")
    poll("cp", "cb", 16, [f"buffer_load_dword v{vCT}, v{vFL}, {s(SDB,4)}, 0 offen sc1"] + cck, "s_cbranch_vccz")
    for n_ in spolls:
        ty, lv, own = polls[n_-1]
        P.restore(([], [], [], False))
        P.label(f"L_{sn}_gp{n_}")
        I(f"s_cmp_lg_u32 s{sMD}, 0"); I(f"s_cbranch_scc1 L_{sn}_fp{n_}")
        if own is not None:
            for x in [f"v_mov_b32 v{vCT}, {own}", "s_waitcnt vmcnt(0)", "s_mov_b64 exec, 1", f"buffer_store_dword v{vCT}, off, {s(SWS,4)}, s{sFL}", "s_mov_b64 exec, -1"]: I(x)
        I(f"s_mov_b32 s{sO2}, 0")
        P.label(f"L_{sn}_gl{n_}")
        if CFG.get("gsl"): I(f"s_sleep {CFG['gsl']}")
        I(gload()); I("s_waitcnt lgkmcnt(0)")
        for x in gmin(ty, lv): I(x)
        I(f"s_cbranch_scc0 L_{sn}_fb{n_}")
        I(f"s_add_u32 s{sO2}, s{sO2}, 1"); I(f"s_cmp_lt_u32 s{sO2}, 64"); I(f"s_cbranch_scc1 L_{sn}_gl{n_}")
        I(f"s_branch L_{sn}_fp{n_}")
    for n_, (ty, lv, own) in enumerate(polls):
        pre = [] if own is None else [f"v_mov_b32 v{vCT}, {own}", "s_waitcnt vmcnt(0)", "s_mov_b64 exec, 1", f"s_cmp_lg_u32 s{sMD}, 0", f"s_cbranch_scc1 L_{sn}_fo{n_}", f"buffer_store_dword v{vCT}, off, {s(SWS,4)}, s{sFL}",
                                      f"s_branch L_{sn}_fq{n_}", f"LABEL L_{sn}_fo{n_}", f"buffer_store_dword v{vCT}, off, {s(SWS,4)}, s{sFL} sc1", f"LABEL L_{sn}_fq{n_}", "s_mov_b64 exec, -1"]
        poll(f"fp{n_+1}", f"fb{n_+1}", CFG["fsl"], [fload(), f"v_cmp_gt_u32 vcc, {lv}, v{vFL}", f"s_and_b32 s{sT1}, vcc_lo, {0xf0 if ty == 'q' else 0x0f}"], "s_cbranch_scc0", pre)
    if typ == 1:
        poll("zp", "zb", CFG["zsl"], [loads()[0][0], f"v_cmp_eq_u32 vcc, -1, v{ZZ}", "s_nop 1"], "s_cbranch_vccz")
        P.restore(([], [], [], False))
        P.label(f"L_{sn}_rt")
        I(f"s_add_u32 s{sT0}, s{sT0}, 1")
        I(f"s_cmp_ge_u32 s{sT0}, 20000")
        I(f"s_cbranch_scc1 L_{sn}_go")
        I("s_waitcnt lgkmcnt(0)")
        for x in loads():
            for y in x: I(y)
        I("s_waitcnt vmcnt(0)")
        I(f"s_branch L_{sn}_pre")

def gen_k1(name):
    P = Prog()
    P.raw(f".globl {name}\n.p2align 8\n.type {name},@function\n{name}:")
    prologue(P, name)
    snap = P.snapshot()
    for k in range(4):
        P.restore(snap)
        if k: P.raw(".p2align 6"); P.label(f"L_{name}_r{k}")
        stream(P, k >> 1, k & 1, name)
    P.label(f"L_{name}_end")
    P.I("s_endpgm")
    return P
```

```python
from asmlib import Prog, Ins, v, s
from sched import Sched, Item, Op
import k1
from k1 import fbits, LOG2E, stamp, pstamp, dump_stamps

MB = 122880
HF_OFF = MB
KVP_OFF = 0xC00000
WS_BYTES = 0x1000000
PH = 103040; OT = 106688; CSP = 156288
FLG = 0xD00000
LDS_BYTES = 163840
SDB, SX, SWQ, SWG, SWU, SWS, SWP, SWO, SWD = 4, 8, 12, 16, 20, 24, 28, 44, 48
sW, sT, sA, sTY, sR, sI, sMX, sMW, sMG, sC, sO1, sO2 = range(32, 44)
sHF, sK1, sK2, sHI, sT0, sT1, sT2, sT3 = range(52, 60)
sI4, sEX = 3, 35
sFL = sT; SOUT = SWQ
sHQ, sHO, sHK, sFR = range(SWP, SWP + 4)
sXO, sRB = 0, 1
sXV, sMD = 100, 101
vM16 = 0; vGO = [1, 2, 3]; vAG = [4, 5, 6, 7]; vMU = 8; CP = 12; CD = [16, 18, 20]
vC1, vSTD, vRS, vWF, vPH, vKA, vKB, vSM = range(24, 32)
vMX = vRS
FR = [32, 36, 40, 44]
AK, AV = 48, 64
GA = [80, 96, 112]
vXO, vWO, vLN, vST, vSQ = 80, 81, 82, 83, 84
vU = [85, 86, 87, 88]
vSTW, vSTR, vWPV, vWPA, vTCH, vCW = 89, 90, 91, 92, 93, 94
vAX = [[96, 97, 98, 99], [100, 101, 102, 103]]
vAA = [[104, 105, 106, 107], [108, 109, 110, 111]]
def XR(i, p): return 128 + (4 * i + p) * 4
CFG = dict(gb=6, pb=8, ppb=8, vb=6, paceg=1, b0end=1, pro=3, pace=0, tch=13, gt=0, rot="a", acc2=1, hstag=0, ns=([2]*8, [2]*8), phbar=(9, 10), qload=8, b0=8, hm=" sc1", qb=6, qpb=6, qpub=9,
           vdm={4: [0], 5: [1, 2], 6: [3, 4, 5], 7: [6, 7]}, g8=7, sq=[[0], [1], [2, 3], [4], [5], [6], [7], []], wc=0, qct=14, sq7=1, v1=(0, 2), skip=(3, 5, "v3", "ph", 12))
CFG.update(zd=12, rot="f", thl=((8, 9, 10), (8, 8, 9, 9, 10)), tho=0, th=8, thb=4, xm=1, fm=" sc1", tch=6, phbar=(9, 2), vpb=6, vb=7, gb=7, qload=0, qct=10, zsl=8, fsl=4, wb=(10, 10), wl=10, wg=2, f1=(0, 9, 0), f2=3, s1=12, atm=(7, 6, 2, -9),
           skip=(1, 2, 3, 4, 5, 6, 7, "v1", "v3", "v6", "ph", 9, 10, 11, 12, 15),
           st=((), ()),
           qo=("S3:h2 F T1", "D14"),
           p2=("Tp2 S3:h1 Ts3 Cq3 Tq3 L0 L1 F L2 L3 L4 L5 Cq4 Tq4 L6 L7 M0 M1 L8 L9 M2 Ck3 Tk3 L10 M3 L11 L12 M4 L13 M5 L14 X12 X13 X14 x Tb M6 M7 M8 M9 Tm9 B M10 M11 M12 M13 M14 Td",
               "Tp2 S4:ho Ts4 Cq3 L0 L1 F L2 L3 L4 L5 Cq4 Tq4 L6 L7 L8 L9 M0 Ck3 Tk3 L10 M1 L11 X10 X11 M2 L12 M3 L13 M4 L14 M5 X12 X13 X14 x M6 M7 M8 M9 Tm9 M10 M11 M12 M13 M14 Td"))
CFG.update(t3b=1, dup=1, swp=1, t3=4, tx=(None, 9, 2), f1=(0, 5, 0), s1=5, fsl=2, thl=((8, 8, 8), (8, 8, 8, 8, 8)))
CFG.update(ct=1, bl=1, qo=('S3:h2 T1','F D14'), p2=('Tp2 B0 S3:h1 Ts3 Cq3 Tq3 L0 L1 L2 L3 L4 L5 F M0 M1 M2 M3 Cq4 Tq4 L6 L7 L8 L9 Ck3 Tk3 L10 L11 L12 M4 L13 M5 L14 X12 X13 X14 x Tb M6 M7 M8 M9 Tm9 N10 Td',
           'Tp2 Cq3/4 L0 S4:ho Ts4 L1 L2 L3 L4 L5 F M0 M1 M2 M3 Cq4 Tq4 L6 L7 L8 L9 Ck3 Tk3 L10 L11 L12 L13 M4 L14 X10 X11 M5 X12 X13 X14 x M6 M7 M8 M9 Tm9 N10 Td'))
CFG.update(rb=1, zw=0, zd=1)
STN = []
def nstamp(P, nm, nst):
    if nm in CFG["skip"]: return
    if nst[0] < 18: stamp(P, nst[0]); nst[0] += 1; nst.append(str(nm))
def HM(): return CFG["hm"]

class T:
    def __init__(s, typ):
        s.typ = typ
        s.RB = 192 if typ else 160; s.NP = 12 if typ else 10; s.MUL = 171 if typ else 205
        s.UP = 64 * s.RB + (32 if typ else 128); s.SL = 2 * 64 * s.RB + (64 if typ else 128)
        s.XB = (0, 3 * s.SL) if typ else (20608, 103040)
        s.WB = (16384, 16384 + 3 * s.SL) if typ else (12416, 82432)
        s.ST = 131072 if typ else 98816
        s.WPH = CSP + 2048 if typ else 152192
        s.RG = [0, 16384, 32768, 49152] + ([73920, 90304, 123200, 139584] if typ else [65536, PH, PH + 16384, PH + 32768])
    def xp(s, st): return ((st + 2) % 5) * s.SL if s.typ else (20608, 41216, 119424, 103040, 66048, 82432, 119424, 103040)[st]
    def wp(s, st): return s.xp(st) + 16384 if s.typ else (12416, 57600, 144000, 135808)[st % 4]
    def vp(s, c): return (20608, 41216, 66048, 82432)[c >> 1] + 8192 * (c & 1)
    def sp(s, o, B):
        hi = int(o >= B[1]); assert 0 <= o - B[hi] <= 65000; return hi, o - B[hi]
    def g(s, st): return ((st - 8) % 5) * s.SL

def dma_x(t, st):
    return [[f"s_add_u32 s{sC}, s{sR}, {st}", f"s_and_b32 s{sC}, s{sC}, 7", f"s_add_u32 m0, s{sMX}, {t.xp(st)}", f"s_lshl_b32 s{sO1}, s{sC}, 7",
             f"buffer_load_dwordx4 v{vXO}, {s(SX,4)}, s{sO1} offen lds #x{st}"],
            [f"s_add_u32 s{sO1}, s{sO1}, {16384 - 2048}", f"buffer_load_dwordx4 v{vXO}, {s(SX,4)}, s{sO1} offen offset:2048 lds #x{st}"]]
def dma_w(t, st):
    o = [[f"s_add_u32 s{sC}, s{sR}, {st}", f"s_and_b32 s{sC}, s{sC}, 7", f"s_add_u32 m0, s{sMW}, {t.wp(st)}", f"s_mul_i32 s{sO2}, s{sC}, {64*3072}",
          f"buffer_load_dwordx4 v{vWO}, {s(SWQ,4)}, s{sO2} offen lds #w{st}"]]
    return o
def dma_v(t, c):
    return [[f"s_add_u32 s{sC}, s{sR}, {c}", f"s_and_b32 s{sC}, s{sC}, 7", f"s_add_u32 m0, s{sMW}, {t.vp(c) - 1024}", f"s_mul_i32 s{sO2}, s{sC}, {64*3072}",
          f"buffer_load_dwordx4 v{vWO}, {s(SWQ,4)}, s{sO2} offen offset:1024 lds #v{c}"]]
def dma_g(t, g, st):
    S = s(SWU if g else SWG, 4)
    m = [f"s_add_u32 m0, s{sMG}, {t.g(st)}"] if st >= 12 else []
    o = [[f"s_add_u32 s{sC}, s{sR}, {st}", f"s_and_b32 s{sC}, s{sC}, 7", f"s_add_u32 m0, s{sMG}, {t.g(st)}", f"s_mul_i32 s{sO2}, s{sC}, {64*2752}",
          f"buffer_load_dwordx4 v{vGO[0]}, {S}, s{sO2} offen lds #w{st}"],
         m + [f"buffer_load_dwordx4 v{vGO[1]}, {S}, s{sO2} offen offset:1024 lds #w{st}"]]
    l = f"buffer_load_dwordx4 v{vGO[2]}, {S}, s{sO2} offen offset:2048 lds #w{st}"
    o.append(m + ([l] if t.typ else ["s_mov_b32 exec_hi, 0", l, "s_mov_b32 exec_hi, -1"]))
    return o

def stream_list(t, g):
    o = []
    for st in range(1, 8): o += [dma_x(t, st), dma_w(t, st)]
    return o

def emit(P, t):
    tag = None
    if "#" in t: t, tag = t.split("#"); t = t.strip()
    P.I(t, tag)

def prologue(P, name):
    I = P.I
    stamp(P, 0)
    I("s_cmp_ge_u32 s2, 256")
    I(f"s_cbranch_scc1 L_{name}_end")
    I(f"s_load_dwordx4 s[8:11], s[0:1], 0")
    if CFG.get("ct"):
        I("s_getpc_b64 s[4:5]")
        P.label(f"L_{name}_pc")
        I("s_lshr_b32 s3, s2, 3")
        I("s_lshl_b32 s3, s3, 11")
        I("v_lshrrev_b32 v1, 5, v0")
        I("v_lshl_add_u32 v1, v1, 7, s3")
        I(f"s_mov_b32 s6, L_{name}_end-L_{name}_pc")
        I("s_mov_b32 s7, 0x20000")
        I("buffer_load_dword v127, v1, s[4:7], 0 offen")
    I(f"v_lshrrev_b32 v1, 6, v0")
    I(f"v_and_b32 v{vLN}, 63, v0")
    I(f"v_readfirstlane_b32 s{sW}, v1")
    I(f"s_and_b32 s{sT0}, s2, 1")
    I(f"s_bfe_u32 s{sT1}, s2, 0x30003")
    I(f"s_lshl3_add_u32 s{sT}, s{sT0}, s{sT1}")
    I(f"s_lshr_b32 s{sT2}, s2, 6")
    I(f"s_and_b32 s{sT0}, s2, 6")
    I(f"s_and_b32 s{sT1}, s{sT2}, 1")
    I(f"s_add_u32 s{sA}, s{sT0}, s{sT1}")
    I(f"s_lshl1_add_u32 s{sR}, s{sT2}, s{sT}")
    rot = CFG["rot"]
    if CFG["xm"]:
        I(f"s_and_b32 s{sT0}, s2, 7")
        I(f"s_bfe_u32 s{sT1}, s2, 0x10006")
        I(f"s_lshl1_add_u32 s{sT}, s{sT0}, s{sT1}")
        I(f"s_bfe_u32 s{sA}, s2, 0x30003")
        if CFG.get("ap"): I(f"s_xor_b32 s{sA}, s{sA}, {CFG['ap']}")
        if rot[0] == "e": I(f"s_mov_b32 s{sR}, s{sT0}")
        if rot[0] == "f": I(f"s_add_u32 s{sR}, s{sT0}, s{sA}")
        if rot[0] == "g": I(f"s_lshl2_add_u32 s{sR}, s{sT1}, s{sT0}")
        if rot[0] == "h": I(f"s_lshl1_add_u32 s{sR}, s{sT2}, s{sT0}")
        if rot[0] == "i": I(f"s_lshl2_add_u32 s{sR}, s{sT1}, s{sT0}"); I(f"s_add_u32 s{sR}, s{sR}, s{sA}")
    if rot[0] == "b": I(f"s_add_u32 s{sR}, s{sT2}, s{sT}"); I(f"s_lshl_b32 s{sR}, s{sR}, 1")
    if rot[0] == "c": I(f"s_add_u32 s{sR}, s{sT2}, s{sT}"); I(f"s_lshl_b32 s{sR}, s{sR}, 2")
    if rot[0] == "d": I(f"s_mov_b32 s{sR}, 0")
    if rot[1:] == "x": I(f"s_add_u32 s{sR}, s{sR}, s2")
    if rot[1:] == "y": I(f"s_lshr_b32 s{sC}, s2, 1"); I(f"s_add_u32 s{sR}, s{sR}, s{sC}"); I(f"s_and_b32 s{sC}, s2, 1"); I(f"s_lshl1_add_u32 s{sR}, s{sC}, s{sR}")
    if rot[1:] == "z": I(f"s_add_u32 s{sR}, s{sR}, s{sT0}"); I(f"s_and_b32 s{sC}, s2, 1"); I(f"s_lshl2_add_u32 s{sR}, s{sC}, s{sR}")
    I(f"v_lshrrev_b32 v2, 4, v{vLN}")
    I(f"v_lshrrev_b32 v3, 3, v{vLN}")
    I(f"v_and_b32 v4, 7, v{vLN}")
    I(f"s_and_b32 s{sT0}, s{sW}, 1")
    I(f"s_lshr_b32 s{sT1}, s{sW}, 1")
    I(f"s_lshl2_add_u32 s{sT1}, s{sT1}, s{sT0}")
    I(f"s_lshl_b32 s{sMX}, s{sT1}, 10")
    I(f"s_lshl4_add_u32 s{sT1}, s{sT}, s{sT1}")
    I(f"s_lshl_b32 s{sT1}, s{sT1}, 13")
    I(f"s_lshl_b32 s{sT0}, s{sT0}, 2")
    I(f"v_or_b32 v5, s{sT0}, v2")
    I(f"v_xor_b32 v5, v5, v4")
    I(f"v_lshlrev_b32 v5, 4, v5")
    I(f"v_lshl_add_u32 v5, v3, 10, v5")
    I(f"v_add_u32 v{vXO}, s{sT1}, v5")
    I(f"s_lshl_b32 s{sMW}, s{sW}, 10")
    I(f"s_mul_i32 s{sT0}, s{sW}, {8*3072}")
    I(f"s_lshl_b32 s{sT1}, s{sA}, 7")
    I(f"s_add_u32 s{sT0}, s{sT0}, s{sT1}")
    I(f"s_and_b32 s{sC}, s{sR}, 7")
    I(f"s_lshl_b32 s{sO1}, s{sC}, 7")
    I(f"s_mul_i32 s{sO2}, s{sC}, {64*3072}")
    I(f"s_cmp_lt_u32 s2, 128")
    I(f"s_cselect_b32 s{sT1}, 1024, 0")
    I(f"s_cselect_b32 s{sT3}, 0, {T(1).xp(0) - T(0).xp(0)}")
    I(f"s_cselect_b32 s{sT2}, 0, {T(1).wp(0) - T(0).wp(0)}")
    I(f"s_add_u32 s{sT3}, s{sT3}, {T(0).xp(0)}")
    I(f"s_add_u32 s{sT2}, s{sT2}, {T(0).wp(0)}")
    I(f"s_add_u32 s{sT0}, s{sT0}, s{sT1}")
    I(f"v_and_b32 v5, 1, v2")
    I(f"v_lshlrev_b32 v5, 2, v5")
    I(f"v_xor_b32 v5, v5, v4")
    I(f"v_lshlrev_b32 v5, 4, v5")
    I(f"v_mul_u32_u24 v6, 3072, v3")
    I(f"v_add3_u32 v{vWO}, v5, v6, s{sT0}")
    I(f"s_add_u32 m0, s{sMX}, s{sT3}")
    I(f"s_add_u32 s{sT1}, s{sO1}, {16384 - 2048}")
    I(f"s_mov_b32 s{SWQ+2}, {512*3072}")
    I(f"s_mov_b32 s{SWQ+3}, 0x20000")
    pstamp(P, 1)
    I("s_waitcnt lgkmcnt(0)")
    pstamp(P, 2)
    I(f"s_mov_b32 s{SWQ}, s10")
    I(f"s_mov_b32 s{SWQ+1}, s11")
    I(f"s_mov_b32 s{SX+2}, 2097152")
    I(f"s_mov_b32 s{SX+3}, 0x20000")
    I(f"buffer_load_dwordx4 v{vXO}, {s(SX,4)}, s{sO1} offen lds", "x0")
    I(f"buffer_load_dwordx4 v{vXO}, {s(SX,4)}, s{sT1} offen offset:2048 lds", "x0")
    I(f"s_add_u32 m0, s{sMW}, s{sT2}")
    I(f"buffer_load_dwordx4 v{vWO}, {s(SWQ,4)}, s{sO2} offen lds", "w0")
    for r, o in ((SWP, 16), (SWG, 40), (SWU, 48), (SWS, 80), (SDB, 72), (SWO, 24), (SWD, 56), (SWO + 2, 64)):
        I(f"s_load_dwordx2 {s(r,2)}, s[0:1], {o}")
    pstamp(P, 3)
    I(f"s_and_b32 s{sI}, s{sW}, 3")
    I(f"s_lshr_b32 s{sT0}, s{sW}, 2")
    I(f"s_lshr_b32 s{sT1}, s2, 7")
    I(f"s_lshl1_add_u32 s{sT0}, s{sT1}, s{sT0}")
    for k in (1, 2, 3):
        I(f"s_cmp_eq_u32 s{sT0}, {k}")
        I(f"s_cbranch_scc1 L_{name}_r{k}")

def setup(P, t, g):
    I = P.I; typ = t.typ
    a, b, c, d, h, sb, r, sw, row, j4 = range(112, 122)
    def pdm(l):
        for nm in l.split():
            for z in (dma_x if nm[0] == "x" else dma_w)(t, int(nm[1])):
                for y in z: emit(P, y)
    if CFG.get("po"): pdm(CFG["po"][typ][0])
    for R, n in ((SWP, 16384), (SWG, 512*2752), (SWU, 512*2752), (SWS, WS_BYTES), (SDB, 256), (SWD, 1376*1024)):
        if R == (SWG if g else SWU): continue
        I(f"s_mov_b32 s{R+2}, {n}")
        I(f"s_mov_b32 s{R+3}, 0x20000")
    I(f"s_mov_b32 s{sHI}, 0xffff0000")
    I(f"s_getreg_b32 s{sXV}, hwreg(HW_REG_XCC_ID, 0, 4)")
    I(f"s_mul_i32 s{sMD}, s{sXV}, s{sXV}")
    I(f"s_lshl_b32 s{sMD}, s{sMD}, 9")
    I(f"s_add_u32 s{sXV}, s{sXV}, s{sMD}")
    I(f"s_lshl_b32 s{sXV}, s{sXV}, 8")
    I(f"s_add_u32 s{sXV}, s{sXV}, 1")
    I(f"s_lshl_b32 s{sI4}, s{sI}, 2")
    I(f"v_mov_b32 v{j4}, v2")
    I(f"v_lshrrev_b32 v{h}, 5, v{vLN}")
    I(f"v_and_b32 v{sb}, 1, v2")
    I(f"v_bfe_u32 v{r}, v{vLN}, 2, 2")
    I(f"v_bfe_u32 v{a}, v{vLN}, 1, 1")
    I(f"v_and_b32 v{b}, 1, v{vLN}")
    I(f"v_lshl_or_b32 v{sw}, v{b}, 1, v{a}")
    I(f"v_lshlrev_b32 v{sw}, 3, v{sw}")
    I(f"v_lshl_add_u32 v{row}, v{h}, 3, v{r}")
    I(f"v_lshl_or_b32 v{c}, v{sb}, 1, v{a}")
    I(f"v_lshlrev_b32 v{c}, 3, v{c}")
    I(f"v_lshl_add_u32 v{c}, v{row}, 5, v{c}")
    I(f"v_lshl_add_u32 v{c}, v{b}, 11, v{c}")
    I(f"v_add_u32 v{vWF}, {t.WPH + g*1024}, v{c}")
    if typ == 0:
        I(f"v_bfe_u32 v{c}, v{vLN}, 2, 3")
        I(f"v_lshl_add_u32 v{c}, v{h}, 4, v{c}")
        I(f"v_mul_u32_u24 v{c}, 96, v{c}")
        I(f"v_lshl_add_u32 v{c}, v{b}, 3, v{c}")
        I(f"s_lshr_b32 s{sT0}, s{sI}, 1")
        I(f"s_mul_i32 s{sT0}, s{sT0}, 12288")
        I(f"s_add_u32 s{sT0}, s{sT0}, {PH + 2*g*12288}")
        I(f"s_and_b32 s{sT1}, s{sI}, 1")
        I(f"s_lshl_b32 s{sT1}, s{sT1}, 5")
        I(f"s_add_u32 s{sT1}, s{sT1}, s{sT0}")
        I(f"v_xor_b32 v{d}, v{a}, v{sb}")
        I(f"v_lshlrev_b32 v{d}, 4, v{d}")
        I(f"v_add3_u32 v{vKA}, v{c}, v{d}, s{sT1}")
    I(f"v_and_b32 v{b}, 2, v{r}")
    I(f"v_or_b32 v{b}, v{b}, v{sb}")
    I(f"v_lshl_add_u32 v{b}, v{b}, 5, v{sw}")
    I(f"v_lshl_add_u32 v{b}, v{row}, 7, v{b}")
    I(f"s_lshl_b32 s{sT0}, s{sI}, 11")
    if g: I(f"s_add_u32 s{sT0}, s{sT0}, 64")
    I(f"v_xor_b32 v{vAA[0][0]}, s{sT0}, v{b}")
    I(f"v_and_b32 v{a}, 31, v{vLN}")
    I(f"v_bfe_u32 v{b}, v{vLN}, 1, 3")
    I(f"v_xor_b32 v{b}, v{b}, v{h}")
    I(f"v_lshlrev_b32 v{b}, 4, v{b}")
    I(f"v_lshl_add_u32 v{b}, v{a}, 7, v{b}")
    I(f"s_mul_i32 s{sT0}, s{sI}, {4096 + 32}")
    I(f"v_xor_b32 v{vAX[0][0]}, s{sT0}, v{b}")
    for p in range(1, 4):
        I(f"v_xor_b32 v{vAX[0][p]}, {p*32}, v{vAX[0][0]}")
        I(f"v_xor_b32 v{vAA[0][p]}, {p*2048}, v{vAA[0][0]}")
    for p in range(4):
        I(f"v_add_u32 v{vAX[1][p]}, {t.XB[1]}, v{vAX[0][p]}")
        I(f"v_add_u32 v{vAA[1][p]}, {t.WB[1]}, v{vAA[0][p]}")
        if t.XB[0]: I(f"v_add_u32 v{vAX[0][p]}, {t.XB[0]}, v{vAX[0][p]}")
        I(f"v_add_u32 v{vAA[0][p]}, {t.WB[0]}, v{vAA[0][p]}")
    I(f"s_lshl_b32 s{sT0}, s{sI}, 9")
    I(f"s_add_u32 s{sT0}, s{sT0}, {t.ST}")
    I(f"v_lshlrev_b32 v{b}, 4, v{a}")
    I(f"v_add_u32 v{vSTR}, s{sT0}, v{b}")
    I(f"v_lshl_add_u32 v{vSTW}, v{h}, 2, v{vSTR}")
    I(f"v_lshl_add_u32 v{vSTW}, v{sb}, 3, v{vSTW}")
    if g: I(f"v_xor_b32 v{vSTW}, 8, v{vSTW}")
    if typ == 0:
        I(f"v_mul_u32_u24 v{b}, 96, v{a}")
        I(f"v_and_b32 v{c}, 4, v{a}")
        I(f"v_lshlrev_b32 v{c}, 2, v{c}")
        I(f"s_mul_i32 s{sT0}, s{sI}, 3072")
        I(f"s_add_u32 s{sT0}, s{sT0}, {PH + 2*g*12288}")
        I(f"v_add3_u32 v{b}, v{b}, v{c}, s{sT0}")
        I(f"v_lshl_add_u32 v{vPH}, v{h}, 5, v{b}")
        I(f"v_lshlrev_b32 v{c}, 4, v{h}")
        I(f"v_xor_b32 v{vKB}, v{b}, v{c}")
    if CFG.get("po"): pdm(CFG["po"][typ][1])
    I(f"v_mul_u32_u24 v{b}, {t.RB}, v{row}")
    I(f"v_mul_u32_u24 v{c}, {t.UP}, v{sb}")
    I(f"v_add3_u32 v{b}, v{b}, v{c}, v{sw}")
    for p in range(4):
        I(f"s_xor_b32 s{sT0}, s{sI}, {p}")
        I(f"s_mul_i32 s{sT0}, s{sT0}, {16*t.RB}")
        I(f"v_add_u32 v{vAG[p]}, s{sT0}, v{b}")
    I(f"s_mul_i32 s{sMG}, s{sI}, {16*t.RB}")
    if g: I(f"s_add_u32 s{sMG}, s{sMG}, {t.UP}")
    if typ == 0:
        I(f"s_mul_i32 s{sT2}, s{sA}, 5")
        I(f"s_min_u32 s{sT2}, s{sT2}, 33")
        I(f"s_add_u32 s{sT2}, s{sT2}, 48")
    else: I(f"s_mul_i32 s{sT2}, s{sA}, 6")
    I(f"s_mul_i32 s{sT0}, s{sI}, {16*2752}")
    I(f"s_lshl_b32 s{sT1}, s{sT2}, 5")
    I(f"s_add_u32 s{sT0}, s{sT0}, s{sT1}")
    I(f"s_mov_b32 s{sT1}, {2752 - 16*t.NP}")
    I(f"v_lshlrev_b32 v{a}, 4, v{vLN}")
    I(f"v_add_u32 v{vM16}, {MB}, v{a}")
    I(f"v_add_u32 v{a}, s{sT0}, v{a}")
    I(f"v_mul_u32_u24 v{b}, {t.MUL}, v{vLN}")
    for j in range(3):
        if j: I(f"v_add_u32 v{b}, {64*t.MUL}, v{b}")
        I(f"v_lshrrev_b32 v{c}, 11, v{b}")
        I(f"v_mad_u32_u24 v{vGO[j]}, v{c}, s{sT1}, v{a}")
        if typ == 0 and CFG["dup"]:
            if j == 0:
                I(f"s_cmp_eq_u32 s{sA}, 7")
                I(f"s_cselect_b32 s{sT3}, {4*t.MUL}, 0")
            I(f"v_and_b32 v{c}, 0x7ff, v{b}")
            I(f"v_cmp_gt_u32 vcc, s{sT3}, v{c}")
            I(f"v_cndmask_b32 v{vGO[j]}, v{vGO[j]}, 2.0, vcc")
    I(f"v_and_b32 v{a}, 15, v{vLN}")
    I(f"v_lshlrev_b32 v{b}, 2, v{j4}")
    I(f"v_mov_b32 v{c}, 0x3f803f80")
    I(f"v_cmp_eq_u32 vcc, v{a}, v{b}")
    for k in range(4): I(f"v_cndmask_b32 v{CP+k}, 0, v{c}, vcc")
    I(f"v_xor_b32 v{b}, s{sI4}, v{b}")
    I(f"v_or_b32 v{vCW}, v{b}, v{vM16}")
    I(f"s_lshl2_add_u32 s{sT0}, s{sT}, s{sI}")
    I(f"s_mul_i32 s{sT0}, s{sT0}, 118")
    I(f"s_add_u32 s{sT1}, s{sT0}, s{sT2}")
    I(f"s_add_u32 s{sT1}, s{sT1}, {32 + (3*g if typ else 2*g)}")
    I(f"s_lshl_b32 s{sHF}, s{sT1}, 10")
    I(f"s_lshr_b32 s{sT1}, s{sW}, 1")
    I(f"s_lshl2_add_u32 s{sT1}, s{sA}, s{sT1}")
    I(f"s_mul_i32 s{sT1}, s{sT1}, 17408")
    I(f"s_and_b32 s{sT2}, s{sW}, 1")
    if typ == 0:
        I(f"s_lshl4_add_u32 s{sT3}, s{sT2}, s{sT}")
        I(f"s_lshl_b32 s{sT3}, s{sT3}, 9")
        I(f"s_add_u32 s{sK1}, s{sT1}, s{sT3}")
        I(f"s_add_u32 s{sK1}, s{sK1}, {KVP_OFF - MB//2}")
        I(f"s_lshl1_add_u32 s{sT3}, s{sT}, s{sT2}")
        I(f"s_lshl_b32 s{sT3}, s{sT3}, 5")
        I(f"s_add_u32 s{sK2}, s{sT1}, s{sT3}")
        I(f"s_add_u32 s{sK2}, s{sK2}, {KVP_OFF + 16384 - MB//32}")
        I(f"s_lshl_b32 s{sEX}, s{sI}, 11")
        I(f"s_sub_u32 s{sEX}, s{sEX}, {MB - 3*t.SL}")
    else:
        I(f"s_add_u32 s{sK2}, s{sT1}, {KVP_OFF + 16384 - MB}")
        I(f"s_lshl_b32 s{sT2}, s{sT2}, 13")
        I(f"s_add_u32 s{sK1}, s{sT1}, s{sT2}")
        I(f"s_add_u32 s{sK1}, s{sK1}, {KVP_OFF - MB}")
        I(f"s_lshl2_add_u32 s{sT0}, s{sA}, s{sT0}")
        I(f"s_add_u32 s{sT0}, s{sT0}, {2*g}")
        I(f"s_lshl_b32 s{sEX}, s{sT0}, 10")
    I(f"v_lshlrev_b32 v{a}, 2, v{vLN}")
    I(f"s_lshl_b32 s{sT0}, s{sW}, 8")
    I(f"s_lshl_b32 s{sT1}, s{sA}, 11")
    I(f"s_add_u32 s{sT1}, s{sT1}, s{sT0}")
    I(f"s_add_u32 s{sT0}, s{sT0}, {t.WPH}")
    I(f"v_add_u32 v{vWPA}, s{sT0}, v{a}")
    I(f"s_lshr_b32 s{sT0}, s{sI}, 1")
    I(f"s_lshl1_add_u32 s{sT0}, s{sT}, s{sT0}")
    I(f"s_lshl3_add_u32 s{sT0}, s{sT0}, s{sA}")
    I(f"s_lshl_b32 s{sT0}, s{sT0}, 7")
    I(f"s_and_b32 s{sT2}, s{sI}, 1")
    I(f"s_lshl2_add_u32 s{sT0}, s{sT2}, s{sT0}")
    I(f"s_add_u32 s{sFL}, s{sT0}, {FLG + 16*typ + 8*g}")
    if typ == 0 and g == 0:
        I(f"s_cmp_eq_u32 s{sA}, 7")
        I(f"s_cselect_b32 s{sA}, 2.0, s{sHF}")
    I(f"v_mov_b32 v{b}, 0")
    if typ == 1:
        for x in p2addr(t, vLN, c, d): I(x)
    I(f"v_lshlrev_b32 v{vTCH}, 7, v{vLN}")
    if typ == 0:
        I(f"v_mov_b32 v{h}, -1")
        I(f"v_mov_b32 v{h+1}, -1")
        I(f"v_lshrrev_b32 v{c}, 1, v{vM16}")
        I(f"v_lshrrev_b32 v{d}, 5, v{vM16}")
    pstamp(P, 4)
    I("s_waitcnt lgkmcnt(0)")
    def dmy(js):
        for j in js:
            if j < 3 or typ: I(f"buffer_store_dwordx4 {v(CP,4)}, v{vM16}, {s(SWS,4)}, s{(sA if (typ, g) == (0, 0) and j < 2 else sHF) if j < 3 else sEX} offen offset:{(j%3)*1024}{CFG.get('dmm', '')}")
    if CFG["th"] & 64: dmy(CFG["dj"][0])
    if CFG.get("po"):
        I(f"buffer_load_dword v{vWPV}, v{a}, {s(SWP,4)}, s{sT1} offen")
        pdm(CFG["po"][typ][2])
    else:
        for x in dma_x(t, 1):
            for y in x: emit(P, y)
        I(f"buffer_load_dword v{vWPV}, v{a}, {s(SWP,4)}, s{sT1} offen")
        for x in stream_list(t, g)[1:CFG["pro"]]:
            for z in x:
                for y in z: emit(P, y)
    if CFG["th"] & 64: dmy(CFG["dj"][1])
    if CFG["t3"] == 2:
        I(f"s_and_b32 s{sT0}, s2, 0xf8")
        I(f"s_add_u32 s{sT0}, s{sT0}, s{sW}")
        I(f"s_mul_i32 s{sT0}, s{sT0}, {2*3072}")
        I("s_mov_b32 exec_hi, 0xffff")
        I(f"buffer_load_dword v{75 if typ else 26}, v{vTCH}, {s(SWQ,4)}, s{sT0} offen")
    if CFG["t3"] == 3:
        I(f"s_and_b32 s{sT0}, s2, 0xf8")
        I(f"s_add_u32 s{sT0}, s{sT0}, s{sW}")
        I(f"s_mul_i32 s{sT0}, s{sT0}, {2*3072}")
        I("s_mov_b32 exec_lo, 0xff00ffff")
        I("s_mov_b32 exec_hi, 0xff")
        I(f"buffer_load_dword v{75 if typ else 26}, v{vTCH}, {s(SWQ,4)}, s{sT0} offen")
    if CFG["t3"] in (1, 4):
        I(f"s_lshr_b32 s{sT0}, s2, 3")
        I(f"s_lshl2_add_u32 s{sT0}, s{sT0}, s{sI}")
        I(f"s_mul_i32 s{sT0}, s{sT0}, {4*3072}")
        I(f"v_lshlrev_b32 v{a}, 3, v{vTCH}")
        I("s_mov_b64 exec, 0xfff")
        if g or CFG["t3"] == 4: I(f"buffer_load_dword v{75 if typ else 26}, v{a}, {s(SWQ,4)}, s{sT0} offen offset:{384 if g else 896}")
    I("s_mov_b64 exec, 1")
    I(f"buffer_store_dword v{b}, off, {s(SWS,4)}, s{sFL} sc1")
    I("s_mov_b64 exec, -1")
    if typ == 0:
        I(f"buffer_store_dwordx2 {v(h,2)}, v{c}, {s(SWS,4)}, s{sK1} offen sc1")
        I("s_mov_b32 exec_lo, 0x10001")
        I("s_mov_b32 exec_hi, 0x10001")
        I(f"buffer_store_dwordx2 {v(h,2)}, v{d}, {s(SWS,4)}, s{sK2} offen sc1")
        I("s_mov_b64 exec, -1")
    for r, m in zip(MS(g), (0xaaaaaaaa, 0xcccccccc, 0xff00ff00, 0xffff0000, 0x0f0f0f0f)):
        I(f"s_mov_b32 s{r}, {m:#x}")
        I(f"s_mov_b32 s{r+1}, {(m if m != 0x0f0f0f0f else 0xf0f0f0f0):#x}")
    pstamp(P, 5)

def P2R(typ): return (28, 29, 30, 31, 26) if typ else (27, 31, 26, 28, 29)
def p2addr(t, ln, a, b):
    vWa, vRD0, vRD1 = P2R(t.typ)[:3]
    base = t.RG[5] if t.typ else PH
    return [f"v_and_b32 v{a}, 7, v{ln}", f"v_lshlrev_b32 v{a}, 4, v{a}", f"v_and_b32 v{b}, 16, v{ln}", f"v_lshlrev_b32 v{b}, 2, v{b}", f"v_xor_b32 v{a}, v{a}, v{b}",
            f"v_lshrrev_b32 v{b}, 3, v{ln}", f"v_lshl_add_u32 v{vWa}, v{b}, 10, v{a}",
            ] + ([f"v_and_b32 v{a}, 3, v{ln}"] if CFG.get("rb") else [f"v_bfe_u32 v{a}, v{ln}, 1, 1", f"v_and_b32 v{b}, 1, v{ln}", f"v_lshl_or_b32 v{a}, v{b}, 1, v{a}"]) + [f"v_lshlrev_b32 v{a}, 3, v{a}",
            f"v_bfe_u32 v{b}, v{ln}, 4, 1", f"v_lshl_add_u32 v{a}, v{b}, 5, v{a}", f"v_and_b32 v{b}, 8, v{ln}", f"v_lshl_add_u32 v{a}, v{b}, 3, v{a}",
            f"v_bfe_u32 v{b}, v{ln}, 2, 2", f"v_lshl_add_u32 v{a}, v{b}, 7, v{a}", f"v_lshrrev_b32 v{b}, 5, v{ln}", f"v_lshl_add_u32 v{a}, v{b}, 10, v{a}",
            f"v_lshl_add_u32 v{a}, s{sMW}, 1, v{a}", f"v_xor_b32 v{b}, 64, v{a}", f"v_add_u32 v{vRD0}, {base}, v{a}", f"v_add_u32 v{vRD1}, {base}, v{b}"]
def MS(g): return [0, SWP, SWP + 2, (SWG if g else SWU), (SWG if g else SWU) + 2]
def softmax(W, O, m=vMX, sm=vSM):
    o = [f"v_max_f32 v{m}, v{W}, v{W+1}", f"v_max_f32 v{sm}, v{W+2}, v{W+3}"]
    for k in range(4, 16, 4):
        o.append(f"v_max3_f32 v{m}, v{m}, v{W+k}, v{W+k+1}")
        o.append(f"v_max3_f32 v{sm}, v{sm}, v{W+k+2}, v{W+k+3}")
    o.append(f"v_max_f32 v{m}, v{m}, v{sm}")
    o.append(f"v_mul_f32 v{m}, v{m}, v{vC1}")
    for k in range(16): o.append(f"v_fma_f32 v{W+k}, v{W+k}, -v{vC1}, v{m}")
    for k in range(16):
        o.append(f"v_exp_f32 v{W+k}, v{W+k}")
        if k == 2: o.append(f"v_add_f32 v{sm}, v{W}, v{W+1}")
        if k > 2: o.append(f"v_add_f32 v{sm}, v{sm}, v{W+k-1}")
    o.append(f"v_add_f32 v{sm}, v{sm}, v{W+15}")
    o.append(f"v_rcp_f32 v{sm}, v{sm}")
    for k in range(8):
        o.append(f"v_mul_f32 v{W+2*k}, v{W+2*k}, v{sm}")
        o.append(f"v_mul_f32 v{W+2*k+1}, v{W+2*k+1}, v{sm}")
        o.append(f"v_cvt_pk_bf16_f32 v{O+k}, v{W+2*k}, v{W+2*k+1}")
    return o

def glu(G, U, n):
    o = []
    for k in range(n): o.append(f"v_mul_f32 v{G+k}, v{G+k}, v{vC1}")
    for k in range(n): o.append(f"v_exp_f32 v{G+k}, v{G+k}")
    for k in range(n): o.append(f"v_fma_f32 v{G+k}, v{G+k}, v{vSTD}, v{vSTD}")
    for k in range(n): o.append(f"v_rcp_f32 v{G+k}, v{G+k}")
    for k in range(n): o.append(f"v_mul_f32 v{G+k}, v{G+k}, v{U+k}")
    for k in range(n // 2): o.append(f"v_cvt_pk_bf16_f32 v{G+k}, v{G+2*k}, v{G+2*k+1}")
    return o

def publish(c, t0, t1, addr, blk, tag):
    return [f"v_and_b32 v{t0}, s{sHI}, v{c}", f"v_sub_f32 v{t1}, v{c}, v{t0}", f"v_cvt_pk_bf16_f32 v{t0}, v{t0}, v{t1}",
            f"ds_write_b32 v{addr}, v{t0} offset:{CSP - MB + blk*1024} #{tag}"]

def stream(P, typ, g, name):
    global vST, vSQ, vU, vSTW, vSTR, vCW
    I = P.I; t = T(typ); D = 3; sn = f"{name}_{typ}{g}"
    o_ = AV if typ else 83
    vST, vSQ, vU, vSTW, vSTR = o_, o_ + 1, [o_ + 2, o_ + 3, o_ + 4, o_ + 5], o_ + 6, o_ + 7
    vCW = AV + 8 if typ else 94
    PB = CFG["qpub"] if typ else "v1"
    if g and CFG.get("pri"): I(f"s_setprio {CFG['pri']}")
    setup(P, t, g)
    S = Sched(D)
    F = "v[32:35]"
    def mm(acc, x, first): return lambda f: f"v_mfma_f32_32x32x16_bf16 {v(acc,16)}, {f}, {v(x,4)}, {'0' if first else v(acc,16)}"
    def cm(c, first): return lambda f: f"v_mfma_f32_16x16x32_bf16 {v(c,4)}, {v(CP,4)}, {f}, {'0' if first else v(c,4)}"
    def tr(ad, im, sec): return [("tr", ad, im), ("tr2", ad, im + sec)]
    main = []; first = {}
    P1 = {}; SQ = {}
    for st in range(8):
        hi, so = t.sp(t.wp(st), t.WB)
        for p in range(4):
            it = Item(mm(AK, XR(st, p), st == 0 and p == 0), tr(vAA[hi][p], so, 512), cm(CD[0], st == 0) if p == 0 else None, name=f"{st}p{p}")
            if p == 0:
                it.bar = st; first[st] = it
                xh, xo = t.sp(t.xp(st), t.XB)
                if st < 2: it.pre = [f"ds_read_b128 {v(XR(st,q),4)}, v{vAX[xh][q]} offset:{xo}" for q in range(4)]
            main.append(it); P1[st, p, 0] = it
        for xs in CFG["sq"][st]:
            for q in (2*g, 2*g+1):
                SQ[xs, q] = Item((lambda x, fi: lambda f: f"v_mfma_f32_32x32x16_bf16 {v(GA[2],16)}, {v(x,4)}, {v(x,4)}, {'0' if fi else v(GA[2],16)}")(XR(xs, q), not SQ), name=f"sq{xs}{q}")
                if xs == 7: main.insert(main.index(P1[st, CFG["sq7"], 0]), SQ[xs, q])
                else: main.append(SQ[xs, q])
    V = {}
    if typ == 0:
        for c in range(8):
            hi, so = t.sp(t.vp(c), t.WB)
            for p in range(4): V[c, p] = Item(mm(AV, XR(c, p), c == 0 and p == 0), tr(vAA[hi][p], so, 512), cm(CD[1], False) if p == 0 else None, name=f"v{c}p{p}")
        for c in (1, 3, 6):
            it = V[c, 0] if c > 1 else V[CFG["v1"]]
            it.bar = f"v{c}"; first[f"v{c}"] = it
        main += [V[c, p] for c in range(6) for p in range(4)] + [V[6,0], V[7,0]] + [V[c, p] for c in (6, 7) for p in (1, 2, 3)]
    nb = 3
    blk = [3*g, 3*g+1, 3*g+2] if typ else [3*g, 3*g+1, 2]
    def gi(st, p, b):
        o = t.g(st)
        if o >= 3 * t.SL: o -= 3 * t.SL
        fst = st == 8 and (p == 0 or (typ == 0 and b == 2 and p == 2*g))
        sm = cm(CD[b], st == 8) if p == 0 else None
        return Item(mm(GA[b], XR(st-8, p), fst), tr(vAG[p], o + blk[b]*32, 4*t.RB), sm, name=f"{st}p{p}b{b}")
    def has(p, b): return typ == 1 or b < 2 or (p >> 1) == g
    G = {}
    for st in range(8, 16):
        for p in range(4):
            for b in range(nb):
                if has(p, b): G[st, p, b] = gi(st, p, b)
    for st in range(8, 13):
        l = [G[st, p, b] for p in range(4) for b in range(nb) if has(p, b)]
        l[0].bar = st; first[st] = l[0]; main += l
    first[PB].pre = [f"ds_read_b128 {v(vMU,4)}, v{vSTR}"]
    def corr(acc, cb, nbar, nm):
        return Item(mm(acc, vMU, False), [("b128", vM16, CSP - MB + cb*1024)], needbar=nbar, name=nm)
    C = [corr(GA[b], blk[b], "cs", f"corr{b}") for b in range(nb)]
    rest = lambda b, sts: [G[st, p, b] for st in sts for p in (1, 2, 3)]
    if typ == 0:
        sh = lambda st: [G[st, 2*g, 2], G[st, 2*g+1, 2]]
        t13 = [G[13,0,0], G[13,0,1]] + sh(13) + rest(0, [13])
        t15 = [G[14,0,0], G[14,0,1]] + sh(14) + sh(15) + [G[15,0,0], G[15,0,1]]
        r0 = rest(0, [14, 15]); r1 = rest(1, [13, 14, 15])
        tail = r0[:5] + [C[2]] + r0[5:] + [C[0]] + r1 + [C[1]]
        C[2].bar = "cs"
    else:
        t13 = [G[13,0,b] for b in range(3)] + rest(0, [13])
        t15 = [G[st,0,b] for st in (14, 15) for b in range(3)]
        r0 = rest(0, [14, 15])
        tail = r0[:5] + [C[0]] + r0[5:] + rest(1, [13, 14, 15]) + [C[1]] + rest(2, [13, 14, 15]) + [C[2]]
        C[0].bar = "cs"
    t13[0].bar = 13; t15[0].bar = 15; first[13] = t13[0]; first[15] = t15[0]
    main += t13 + t15 + tail
    barwait = {0: ["x0", "w0"], 1: ["x1", "w1", "x2"], 7: ["w7"], 15: ["w14", "w15"], "cs": []}
    for st in range(2, 7): barwait[st] = [f"w{st}", f"x{st+1}"]
    for st in range(8, 14): barwait[st] = [f"w{st}"]
    barlg = {PB: ["pub"], "cs": ["cs"]}
    BO = list(range(14))
    if typ == 0:
        barwait[7] = ["w7", "v0"]; barwait["v1"] = ["v1", "v2"]; barwait["v3"] = ["v3", "v4", "v5"]; barwait["v6"] = ["v6", "v7"]
        barlg[8] = ["pubv"]
        BO = list(range(8)) + ["v1", "v3", "v6"] + list(range(8, 14))
    sl = stream_list(t, g); pro = CFG["pro"]
    dm = {b: [] for b in BO[:-1]}
    if CFG.get("po"):
        pro = 14
        for b, l in enumerate(CFG["po"][typ][3:]):
            for nm in l.split(): dm[b] += (dma_x if nm[0] == "x" else dma_w)(t, int(nm[1]))
    if typ == 0:
        for k in range(pro, 14): dm[max(0, (k - 3) // 2)] += sl[k]
        for b, l in CFG["vdm"].items():
            for c in l: dm[b] += dma_v(t, c)
        dm[CFG["g8"]] += dma_g(t, g, 8)
        dm["v3"] += dma_g(t, g, 9); dm["v6"] += dma_g(t, g, 10)
        for b in range(8, 13): dm[b] = dma_g(t, g, b + 3)
    else:
        ql = CFG.get("qlead", 2)
        for k in range(pro, 14): dm[max(0, (k + 1 - 2*ql) // 2)] += sl[k]
        if ql == 3:
            for b in range(5, 13): dm[b] += dma_g(t, g, b + 3)
        else:
            g8 = dma_g(t, g, 8); g9 = dma_g(t, g, 9); g10 = dma_g(t, g, 10)
            dm[5] += g8[:2]; dm[6] = g8[2:] + g9[:2]; dm[7] = g9[2:] + g10[:2]; dm[8] = g10[2:] + dma_g(t, g, 11)
            for b in range(9, 13): dm[b] += dma_g(t, g, b + 3)
    if CFG["b0end"]: dm[0] = [sum(dm[0], [])] if dm[0] else []
    nxt = lambda b: BO[BO.index(b) + 1]
    heavy = []
    def hok(n):
        if not CFG["hstag"]: return True
        if n % 2 != g or n + 1 in S.bs.values(): return False
        return not any(dpos(b, j, len(dm[b]), gg)() == n for b in dm for j in range(len(dm[b])) for gg in (0, 1))
    def dpos(b, j, k, g=g):
        def f():
            L = S.bs[nxt(b)] - S.bs[b]; o = S.bs[b]
            if b == 0 and CFG['b0end']: return o + L - 1
            if b == 0: return o + j if typ else o + min(L - 2, 2 * j + g) if k <= 4 else o + j
            if 2 * k <= L: return o + min(L - 2, int((j + 0.5 * g) * L / k + 0.01))
            return o + min(L - 1, int((j + 0.5 * g) * L / k + 0.01))
        return f
    for b in BO[:-1]:
        for j, x in enumerate(dm[b]): heavy.append(S.add(x, after=b, before=nxt(b), kind="misc", lo=dpos(b, j, len(dm[b])) if CFG["pace" if BO.index(b) < (6 if typ else 8) else "paceg"] or b == 0 else None))
    if g == 1:
        S.add(f"v_mov_b32 v95, s{sXV}", after=2)
        S.add([f"s_cmp_eq_u32 s{sI}, 0", "s_cselect_b32 exec_lo, 1, 0", "s_mov_b32 exec_hi, 0", f"s_and_b32 s{sT3}, s2, 7", f"s_lshl_b32 s{sT3}, s{sT3}, 5",
               f"buffer_atomic_add v95, off, {s(SDB,4)}, s{sT3} sc1", "s_mov_b64 exec, -1"], after=CFG["atm"][typ], lo=(first[7], CFG["atm"][2+typ]), before=8)
    for p in range(4):
        bs = [b for b in range(nb) if has(p, b)]
        S.add(f"v_add_u32 v{vAG[p]}, {3*t.SL}, v{vAG[p]}", lo=(G[10,p,bs[-1]], -D), hi=(G[11,p,0], -D-1))
        nx = G[13,p,0] if not (typ == 0 and p and (p >> 1) == g) else G[13,p,2]
        S.add(f"v_subrev_u32 v{vAG[p]}, {3*t.SL}, v{vAG[p]}", lo=(G[12,p,bs[-1]], -D), hi=(nx, -D-1))
    ns = CFG["ns"][typ]; u = 0; fs = True
    S.node(P1[0,0,0], cm(CD[0], True)(F))
    sp = [2*g, 2*g+1]
    for st in range(8):
        if 1 <= st < 7:
            hi, so = t.sp(t.xp(st + 1), t.XB)
            for q in sp + [x for x in range(4) if x not in sp]:
                S.add(f"ds_read_b128 {v(XR(st+1,q),4)}, v{vAX[hi][q]} offset:{so}", after=st, lo=(first[st], (-2 if st > 1 else 0) if typ else -3), hi=(P1[st+1,q,0], -2), before=None if typ else st + 1)
        if st == 2:
            S.add(f"ds_write_b32 v{vWPA}, v{vWPV}", after=2)
            S.add(f"v_xor_b32 v{vWPV}, 0x80008000, v{vWPV}", after=2)
            S.add(f"ds_write_b32 v{vWPA}, v{vWPV} offset:2048", after=2, before=7)
    for st in range(8):
        for n, q in enumerate(sp):
            if n < ns[st]:
                S.add(cm(CD[2], fs)(v(XR(st, q), 4)), lo=(first[st], 1) if st < 2 else None); fs = False
    if typ == 1:
        S.add(f"v_mov_b32 v{vST}, v{CD[2]}", hi=(first[8], -1))
        S.node(P1[7,0,0], cm(CD[0], False)(F))
        S.adds(publish(CD[0], AV+9, AV+10, vCW, g, "pub"), hi=(first[8], -1))
    for (xs, q), it in SQ.items(): S.node(it, it.mf(F))
    Q_ = GA[2]; ms = MS(g)
    for lv, (stp, dd) in enumerate(((2, 1), (4, 2), (8, 4), (16, 8))):
        S.adds([f"v_cndmask_b32 v{Q_+k}, v{Q_+k}, v{Q_+k+dd}, {s(ms[lv],2)}" for k in range(0, 16, stp)])
    S.add(f"v_cndmask_b32 v{vSQ}, 0, v{Q_}, {s(ms[4],2)}")
    if typ == 0:
        S.add(f"v_mov_b32 v{vST}, v{CD[2]}")
        S.node(P1[7,0,0], cm(CD[0], False)(F))
        S.adds(publish(CD[0], 85, 86, vCW, g, "pub"), before=PB)
    else: S.node(G[8,0,2], mm(GA[2], XR(0,0), True)(F))
    S.add(f"v_permlane32_swap_b32 v{vST}, v{vSQ}")
    S.adds([f"v_add_f32 v{vST}, v{vST}, v{vSQ}", f"ds_write_b32 v{vSTW}, v{vST} #pub"], before=PB)
    sWQ2, sWO2, sWK2, sWZ2 = range(SWG if g else SWU, (SWG if g else SWU) + 4)
    J1, J2 = (75, 77) if typ else (26, 24)
    if CFG["t3"] == 3:
        S.add([f"s_and_b32 s{sT0}, s2, 0xf8", f"s_add_u32 s{sT0}, s{sT0}, s{sW}", f"s_mul_i32 s{sT0}, s{sT0}, {2*3072}", "s_mov_b32 exec_lo, 0xff0000", "s_mov_b32 exec_hi, 0xff00",
               f"buffer_load_dword v{J2}, v{vTCH}, {s(SWQ,4)}, s{sT0} offen", "s_mov_b64 exec, -1"], after=CFG["t3b"], before=CFG["t3b"] + 1)
    S.add([f"s_mov_b32 s{SOUT}, s{SWO+2}", f"s_mov_b32 s{SOUT+1}, s{SWO+3}", f"s_mov_b32 s{SOUT+2}, 2097152", f"s_mov_b32 s{SWO+2}, {512*1024}", f"s_mov_b32 s{SWO+3}, 0x20000"])
    if CFG["th"] & 1:
        S.add([f"s_add_u32 s{sT1}, s{sHF}, {MB}", "s_mov_b64 exec, 0xffffff", f"buffer_load_dword v{J1}, v{vTCH}, {s(SWS,4)}, s{sT1} offen sc1", "s_mov_b64 exec, -1"], after=CFG["thb"], before=8)
        if typ: S.add([f"s_add_u32 s{sT1}, s{sEX}, {MB}", "s_mov_b64 exec, 0xffff", f"buffer_load_dword v76, v{vTCH}, {s(SWS,4)}, s{sT1} offen sc1", "s_mov_b64 exec, -1"], after=CFG["thb"], before=8)
    if CFG["th"] & 4:
        S.add([f"s_add_u32 s{sT1}, s{sHF}, {MB}", "s_mov_b64 exec, 0xffffff", f"buffer_store_dword v{vTCH}, v{vTCH}, {s(SWS,4)}, s{sT1} offen", "s_mov_b64 exec, -1"], after=CFG["thb"], before=8)
        if typ: S.add([f"s_add_u32 s{sT1}, s{sEX}, {MB}", "s_mov_b64 exec, 0xffff", f"buffer_store_dword v{vTCH}, v{vTCH}, {s(SWS,4)}, s{sT1} offen", "s_mov_b64 exec, -1"], after=CFG["thb"], before=8)
    if CFG["th"] & 32:
        z_ = (typ, g) == (0, 0); dm_ = CFG.get('dmm', '')
        S.add([f"v_lshrrev_b32 v{J1}, 1, v{vTCH}", f"v_add_u32 v{J1}, {MB}, v{J1}", f"s_mov_b32 exec_hi, {0 if z_ else 0xffff}", f"buffer_store_dword v{J1}, v{J1}, {s(SWS,4)}, s{sA if z_ else sHF} offen{dm_}"] +
              (["s_mov_b32 exec_hi, 0", f"buffer_store_dword v{J1}, v{J1}, {s(SWS,4)}, s{sEX} offen{dm_}"] if typ else []) + ["s_mov_b64 exec, -1"], after=CFG["thb"], before=8)
    if CFG["th"] & 8:
        for j, b in enumerate(CFG["thl"][typ]):
            if b is None: continue
            S.add(f"buffer_store_dwordx4 {v(CP,4)}, v{vM16}, {s(SWS,4)}, s{(sA if (typ, g) == (0, 0) and j < 2 else sHF) if j < 3 else sEX} offen offset:{(j%3)*1024}{CFG.get('dmm', '')} #dmy", after=b, lo=(first[b], CFG["tho"] + 2*g), kind="misc")
    if CFG["th"] & 2 and g == 0:
        S.add([f"s_and_b32 s{sT0}, s2, 7", f"s_lshr_b32 s{sT1}, s2, 6", f"s_lshl2_add_u32 s{sT0}, s{sT0}, s{sT1}", f"s_mul_i32 s{sT1}, s{sT0}, {236*1024}", f"s_add_u32 s{sT1}, s{sT1}, {MB}",
               f"s_lshl_b32 s{sT0}, s{sI}, 16", f"s_add_u32 s{sT1}, s{sT1}, s{sT0}",
               f"v_lshlrev_b32 v{J2}, 5, v{vTCH}", "s_mov_b64 exec, 0xffff", f"buffer_load_dword v{J2}, v{J2}, {s(SWS,4)}, s{sT1} offen sc1", "s_mov_b64 exec, -1"], after=CFG["thb"], before=8)
    if typ == 1 and "notouch" not in k1.KN:
        S.add([f"s_lshl3_add_u32 s{sT0}, s2, s{sW}", f"s_sub_u32 s{sT0}, s{sT0}, 1024", f"s_lshl_b32 s{sT1}, s{sT0}, 9", "s_mov_b64 exec, 15",
               f"buffer_load_dword v26, v{vTCH}, {s(SWO,4)}, s{sT1} offen", "s_mov_b64 exec, -1"], after=CFG["tch"], before=8)
        S.add([f"s_mul_i32 s{sT1}, s{sT0}, 1408", "s_mov_b64 exec, 0x7ff",
               f"buffer_load_dword v31, v{vTCH}, {s(SWD,4)}, s{sT1} offen", "s_mov_b64 exec, -1"], after=CFG["tch"], before=8)
    if CFG["tx"][typ] is not None:
        J3, J4, vT2 = (78, 79, 77) if typ else (91, 92, vTCH)
        S.add(f"v_lshlrev_b32 v{vT2}, 3, v{vTCH}", before=8)
        kw = dict(after=CFG["tx"][typ], lo=(first[CFG["tx"][typ]], CFG["tx"][2] + 2*g))
        S.add([f"s_and_b32 s{sT0}, s2, 0x78", f"s_add_u32 s{sT0}, s{sT0}, s{sW}", f"s_mul_i32 s{sT1}, s{sT0}, {11*1024}", "s_mov_b64 exec, 0x7ff",
               f"buffer_load_dword v{J4}, v{vT2}, {s(SWD,4)}, s{sT1} offen offset:384", f"s_lshl_b32 s{sT1}, s{sT0}, 12", "s_mov_b64 exec, 15",
               f"buffer_load_dword v{J3}, v{vT2}, {s(SWO,4)}, s{sT1} offen offset:384", "s_mov_b64 exec, -1"], **kw)
    S.add([f"s_and_b32 s{sT0}, s2, 0x38", f"s_cmp_eq_u32 s{sT0}, {(0x18 if typ else 0x38) if CFG['swp'] else 1}", f"s_cselect_b32 s{sT2}, 0xa0, 0", f"s_xor_b32 s{sT2}, s{sT2}, s2",
           f"s_and_b32 s{sT0}, s2, 7", f"s_lshr_b32 s{sT1}, s{sT2}, 6", f"s_lshl2_add_u32 s{sT0}, s{sT0}, s{sT1}", f"s_bfe_u32 s{sT1}, s{sT2}, 0x30003", f"s_lshl_b32 s{sT1}, s{sT1}, 7",
           f"s_lshl3_add_u32 s{sFR}, s{sT0}, s{sW}", f"s_lshl_b32 s{sFR}, s{sFR}, 7", f"s_add_u32 s{sFR}, s{sFR}, {FLG}",
           f"s_lshl_b32 s{sXO}, s{sT0}, 16", f"s_add_u32 s{sXO}, s{sXO}, s{sT1}", f"s_lshl3_add_u32 s{sXO}, s{sI4}, s{sXO}"] + ([f"s_add_u32 s{sXO}, s{sXO}, 32768"] if g else []), lo=(first[8], 1))
    S.add([f"s_mul_i32 s{sHO}, s{sT0}, {236*1024}", f"s_mul_i32 s{sT2}, s{sW}, 6144", f"s_add_u32 s{sHQ}, s{sHO}, s{sT2}", f"s_add_u32 s{sHQ}, s{sHQ}, 32768",
           f"s_mul_i32 s{sT2}, s{sW}, 5", f"s_min_u32 s{sT2}, s{sT2}, 33", f"s_add_u32 s{sT2}, s{sT2}, 48", f"s_lshl_b32 s{sWK2}, s{sT2}, 14", f"s_add_u32 s{sWK2}, s{sWK2}, s{sT1}",
           f"s_lshl_b32 s{sT2}, s{sT2}, 10", f"s_add_u32 s{sHK}, s{sHO}, s{sT2}", f"s_add_u32 s{sHK}, s{sHK}, 32768", f"s_lshl2_add_u32 s{sHO}, s{sMW}, s{sHO}"], lo=(first[8], 2))
    S.add([f"s_mul_i32 s{sWQ2}, s{sW}, {6*16384}", f"s_add_u32 s{sWQ2}, s{sWQ2}, s{sT1}", f"s_lshl_b32 s{sWO2}, s{sW}, 16", f"s_add_u32 s{sWO2}, s{sWO2}, s{sT1}",
           f"s_cmp_eq_u32 s{sW}, 7", f"s_cselect_b32 s{sWZ2}, 0x2000000, s{sWK2}"] +
          ([f"s_lshl_b32 s{sRB}, s{sI}, 14"] if g == 0 else
           [f"s_cmp_lt_u32 s{sI}, {2 if typ else 1}", f"s_cselect_b32 s{sRB}, 0, {t.RG[7] - t.RG[4] - 49152}", f"s_lshl_b32 s{sT2}, s{sI}, 14", f"s_add_u32 s{sRB}, s{sRB}, s{sT2}", f"s_add_u32 s{sRB}, s{sRB}, {t.RG[4]}"]) +
          [f"s_sub_u32 s{sRB}, s{sRB}, {MB}"], lo=(first[8], 3))
    m, q = vMU, vC1
    l8 = (first[PB], -1)
    S.adds([f"v_add_f32 v{m}, v{vMU}, v{vMU+2}", f"v_add_f32 v{q}, v{vMU+1}, v{vMU+3}",
            f"v_mul_f32 v{vSTD}, {fbits(-1.0/512)}, v{m}", f"v_mul_f32 v{q}, {fbits(1.0/512)}, v{q}"], lo=l8)
    S.adds([f"v_cvt_pk_bf16_f32 v{vMU+k}, v{vSTD}, v{vSTD}" for k in range(4)])
    S.adds([f"v_fma_f32 v{q}, -v{vSTD}, v{vSTD}, v{q}", f"v_max_f32 v{q}, 0, v{q}", f"v_add_f32 v{q}, {fbits(1e-5)}, v{q}",
            f"v_rsq_f32 v{vRS}, v{q}", f"v_mul_f32 v{vSTD}, v{q}, v{vRS}", f"v_mul_f32 v{vC1}, {fbits(-LOG2E)}, v{vRS}"])
    ex = []
    S.node(P1[7,3,0], mm(AK, XR(7,3), False)(F))
    ex.append(S.node(corr(AK, g, PB, "corrK"), mm(AK, vMU, False)(F)))
    def w64(w, x, **k):
        return S.add([w] + ([x] if x else []), kind="valu", cost=CFG["wc"] + (1 if x else 0), first=True, **k)
    KB = AK if typ else 96
    S.adds([f"v_cvt_pk_bf16_f32 v{KB+k}, v{AK+2*k}, v{AK+2*k+1}" for k in range(8)])
    pb = "ph"
    if typ == 0:
        W = [GA[2], AK]
        S.node(V[7,0], cm(CD[1], False)(F))
        S.adds(publish(CD[1], 83, 84, vCW, 2 + g, "pubv"), before=8)
        for rho in range(2):
            pk = mm(W[rho], KB + 4*rho, True)
            ex.append(S.node(Item(pk, tr(vWF, 512*rho, 128), needbar=PB, name=f"phi{rho}"), pk(F)))
        for rho in range(2):
            S.adds(softmax(W[rho], W[rho], *((87, 88), (vSM, vWF))[rho]))
            for b_ in range(2):
                w64(f"ds_write_b128 v{vPH}, {v(W[rho]+4*b_,4)} offset:{rho*12288} #ph", None if (rho, b_) == (1, 1) else f"v_xor_b32 v{vPH}, 16, v{vPH}", after="v3", before=pb)
        S.node(G[8,0,0], mm(GA[0], XR(0,0), True)(F)); S.node(G[8,0,1], mm(GA[1], XR(0,0), True)(F)); S.node(G[8,2*g,2], mm(GA[2], XR(0,2*g), True)(F))
        S.node(V[7,3], mm(AV, XR(7,3), False)(F))
        ex.append(S.node(corr(AV, 2 + g, 8, "corrV"), mm(AV, vMU, False)(F)))
        for k in range(8):
            S.adds([f"v_mul_f32 v{AV+2*k}, v{AV+2*k}, v{vRS}", f"v_mul_f32 v{AV+2*k+1}, v{AV+2*k+1}, v{vRS}",
                    f"v_cvt_pk_bf16_f32 v{AV+k}, v{AV+2*k}, v{AV+2*k+1}"])
            if k & 3 == 3: w64(f"ds_write_b128 v{vKB}, {v(AV+k-3,4)} offset:{(k>>2)*12288+64} #ph", None, before=pb)
        S.node(G[8,3,1], mm(GA[1], XR(0,3), False)(F)); S.node(G[8,2*g+1,2], mm(GA[2], XR(0,2*g+1), False)(F))
        W = [AV, XR(0, 0)]
    else:
        for rho in range(2):
            pk = mm(AV, AK + 4*rho, True)
            ex.append(S.node(Item(pk, tr(vWF, 512*rho, 128), needbar=8, name=f"phi{rho}"), pk(F)))
            S.adds(softmax(AV, AK + 8 if rho == 0 else AV))
    if typ == 0:
        pi = main[main.index(first[CFG["phbar"][0]]) + CFG["phbar"][1]]
        if pi.bar is None: pi.bar = pb; barwait[pb] = []
        else:
            for o in S.ops:
                if o.before == pb: o.before = pi.bar
            pb = pi.bar
        barlg[pb] = barlg.get(pb, []) + ["ph"]
        barlg[CFG["wb"][0]] = barlg.get(CFG["wb"][0], []) + ["kvr"]
        DK, DZ, ON = AK, AK + 4, AK + 8
        S.adds([f"v_mov_b32 v{ON+k}, 0x3f803f80" for k in range(4)])
        S.adds([f"v_lshrrev_b32 v{AK+12}, 1, v{vM16}", f"v_lshrrev_b32 v{AK+13}, 5, v{vM16}"])
        S.add([f"s_and_b32 s{sT3}, s{sI}, 1", f"s_lshl_b32 s{sT3}, s{sT3}, 5"], lo=(first[8], 0))
        S.add(f"v_subrev_u32 v{vPH}, s{sT3}, v{vKA}")
        for u4 in range(4):
            A0 = W[u4 >> 1] + 8*(u4 & 1); B0 = A0 + 4; o = u4 * 3072
            S.add([f"ds_read_b64_tr_b16 {v(A0,2)}, v{vKA} offset:{o}", f"ds_read_b64_tr_b16 {v(A0+2,2)}, v{vKA} offset:{o+768}"], after=pb)
            S.add([f"ds_read_b64_tr_b16 {v(B0,2)}, v{vPH} offset:{o+64}", f"ds_read_b64_tr_b16 {v(B0+2,2)}, v{vPH} offset:{o+768+64} #kvr"], after=pb, before=CFG["wb"][0])
            na = f"v_mfma_f32_16x16x32_bf16 {v(DZ,4)}, {v(A0,4)}, {v(ON,4)}, {'0' if u4 == 0 else v(DZ,4)}"
            nb_ = f"v_mfma_f32_16x16x32_bf16 {v(DK,4)}, {v(A0,4)}, {v(B0,4)}, {'0' if u4 == 0 else v(DK,4)}"
            S.adds([na, nb_] if u4 < 3 else [nb_, na])
        S.adds([f"v_cvt_pk_bf16_f32 v{DK}, v{DK}, v{DK+1}", f"v_cvt_pk_bf16_f32 v{DK+1}, v{DK+2}, v{DK+3}"])
        kvst = S.add(f"buffer_store_dwordx2 {v(DK,2)}, v{AK+12}, {s(SWS,4)}, s{sK1} offen sc1 #kvs", kind="misc")
        S.adds([f"v_cvt_pk_bf16_f32 v{DZ}, v{DZ}, v{DZ+1}", f"v_cvt_pk_bf16_f32 v{DZ+1}, v{DZ+2}, v{DZ+3}"])
        S.add(["WAITVM kvs"] * CFG.get("zw", 1) + ["s_mov_b32 exec_lo, 0x10001", "s_mov_b32 exec_hi, 0x10001", f"buffer_store_dwordx2 {v(DZ,2)}, v{AK+13}, {s(SWS,4)}, s{sK2} offen sc1", "s_mov_b64 exec, -1"],
              ok=lambda n: kvst.slot is not None and n >= kvst.slot + CFG["zd"])
    vWa, vRD0, vRD1, vFA, vFL = P2R(typ)
    KS = [("q", 0), ("q", 3), ("q", 1), ("q", 4), ("q", 2), ("q", 5)] + [("o", j) for j in range(4)] + [("k", 2), ("k", 0), ("k", 3), ("k", 1), ("k", 4)]
    if CFG.get("ko", (0, 0))[typ]: KS = KS[:6] + KS[10:] + KS[6:10]
    NS = 2 if typ else 3; NR = 10 if typ else 12
    WR = [128 + 8*k for k in range(10)] if typ else [128 + 8*k for k in range(8)] + [AV, AV + 8, 192, 200]
    WR += WR[:15 - NR]
    RGN = [6 + k % 2 for k in range(12)] + [4, 5, 3] if typ else [5 + k % 3 for k in range(15)]
    rbase = t.RG[5] if typ else PH
    def wdma(k):
        ty, j = KS[k]
        b_ = {"q": sWQ2, "o": sWO2, "k": sWZ2 if j < 2 else sWK2}[ty]; R_ = s(SWO if ty == "o" else SWD, 4)
        return [[f"s_lshl1_add_u32 m0, s{sMW}, {t.RG[RGN[k]]}", f"s_add_u32 s{sO1}, s{b_}, {j*16384}", f"buffer_load_dwordx4 v{vWa}, {R_}, s{sO1} offen lds #W{k}"],
                [f"s_lshl1_add_u32 m0, s{sMW}, {t.RG[RGN[k]]}", f"s_add_u32 s{sO1}, s{b_}, {j*16384 + 7168}", f"buffer_load_dwordx4 v{vWa}, {R_}, s{sO1} offen offset:1024 lds #W{k}"]]
    def wread(k, ad=(vRD0, vRD1), base=rbase):
        o = t.RG[RGN[k]] - base
        return [[f"WAITVM W{k}"] * (1 - cb) * ("noxw" not in k1.KN) + [f"ds_read_b64_tr_b16 {v(WR[k]+4*cb,2)}, v{ad[cb]} offset:{o}", f"ds_read_b64_tr_b16 {v(WR[k]+4*cb+2,2)}, v{ad[cb]} offset:{o+512} #X{k}"] for cb in range(2)]
    if typ == 0:
        S.add(f"v_bfe_u32 v{AK+14}, v{vM16}, 4, 6")
        S.adds(p2addr(t, AK + 14, AK + 15, vRD1))
    Dk = {}; Xk = {}
    def aft(dd, k, l): return lambda n: dd[k].slot is not None and n >= dd[k].slot + l
    for k in range(14 if typ else 15):
        if k in CFG.get("dd", ((), ()))[typ]: continue
        wd_ = wdma(k)
        if typ and k >= 12: kw = dict(after=13 if k == 12 else 15)
        elif k < NS: kw = dict(after=CFG["wb"][typ])
        else: kw = dict(ok=aft(Xk, k - NS, CFG["wg"])); wd_[0] = [f"WAITLG X{k-NS}"] + wd_[0]
        for x in wd_:
            Dk[k] = S.add(x, kind="misc", **kw); Dk[k].R -= {("s", 124), ("s", sO1)}; Dk[k].W -= {("s", 124), ("s", sO1)}; Dk[k].R.add(("x", 9 + (typ and k >= 12))); Dk[k].W.add(("x", 9 + (typ and k >= 12)))
        if k < NR:
            lo = (G[8 + (WR[k] - 128) // 16, 3, nb - 1 if has(3, nb - 1) else 1], 0) if WR[k] >= 128 else None
            for x in wread(k): Xk[k] = S.add(x, kind="misc", ok=aft(Dk, k, CFG["wl"]), lo=lo)
    S.adds([f"v_lshrrev_b32 v{vFA}, 2, v{vM16}", f"v_and_b32 v{vFA}, 28, v{vFA}"])
    vCT = 27 if typ else 30
    if CFG["th"] & 16:
        J = 76 if typ else AK + 12; b_ = CFG["thr"][typ]
        S.add([f"s_mov_b32 s{sT1}, {(-7*MB) & 0xffffffff}", f"v_lshl_add_u32 v{J}, v{vM16}, 3, s{sT1}"] +
              ([f"s_sub_u32 s{sT1}, s{sEX}, s{sHF}", f"s_sub_u32 s{sT1}, s{sT1}, 4096", "s_mov_b32 exec_lo, 0", f"v_add_u32 v{J}, s{sT1}, v{J}", "s_mov_b32 exec_lo, 0xffffff", "s_mov_b32 exec_hi, 0xffff"] if typ else
               [f"s_mov_b64 exec, {0xffffff if g else 0xffff}"]) +
              [f"buffer_load_dword v{J}, v{J}, {s(SWS,4)}, s{sA if (typ, g) == (0, 0) else sHF} offen{CFG.get('thm', ' sc1')}", "s_mov_b64 exec, -1"], after=b_, before={13: 15, 15: "cs"}.get(b_, b_ + 1), lo=(first[b_], CFG["thr"][2] + 2*g), kind="misc", prio=3)
    polls = []
    def fload(): return f"buffer_load_dword v{vFL}, v{vFA}, {s(SWS,4)}, s{sFR} offen sc1"
    def fcheck(ty, lv, own=None):
        polls.append((ty, lv, own)); n_ = len(polls)
        return [f"v_cmp_gt_u32 vcc, {lv}, v{vFL}", f"s_and_b32 s{sT1}, vcc_lo, {0xf0 if ty == 'q' else 0x0f}", f"s_cbranch_scc1 L_{sn}_fp{n_}", f"LABEL L_{sn}_fb{n_}"]
    spolls = []
    def gload(): return f"s_buffer_load_dwordx8 {s(SWO,8)}, {s(SWS,4)}, s{sFR} glc"
    def gmin(ty, lv):
        b = SWO + (4 if ty == "q" else 0)
        return [f"s_min_u32 s{sT1}, s{b}, s{b+1}", f"s_min_u32 s{sC}, s{b+2}, s{b+3}", f"s_min_u32 s{sT1}, s{sT1}, s{sC}", f"s_cmp_eq_u32 s{sMD}, 0", f"s_cselect_b32 s{sT1}, s{sT1}, 0", f"s_cmp_lt_u32 s{sT1}, {lv}"]
    slow = []
    def mst(x, tag=""):
        slow.append(x); n_ = len(slow)
        return [f"s_cmp_lg_u32 s{sMD}, 0", f"s_cbranch_scc1 L_{sn}_ss{n_}", x + (" #" + tag if tag else ""), f"LABEL L_{sn}_sb{n_}"]
    def fstore(lv, tag, r): return [f"v_mov_b32 v{r}, {lv}", f"WAITVM {tag}", "s_mov_b64 exec, 1"] + mst(f"buffer_store_dword v{r}, off, {s(SWS,4)}, s{sFL}") + ["s_mov_b64 exec, -1"]
    HR = [96, 104, 112, 120, 80, 88, 48, 56, 64, 72, 96, 104, 112, 120, 80] if typ else [112, 120, 48, 56, 80, 88, 96, 104, 112, 120, 48, 56, WR[3], 80, 88]
    def hload(k):
        ty, j = KS[k]; b_ = {"q": sHQ, "o": sHO, "k": sR if j < 2 else sHK}[ty]
        return [[f"s_add_u32 s{sO1}, s{b_}, {j*1024 + tb*118*1024}", f"buffer_load_dwordx4 {v(HR[k]+4*tb,4)}, v{vM16}, {s(SWS,4)}, s{sO1} offen"] for tb in range(1 if "halfh" in k1.KN else 2)]
    S.add([f"s_cmp_eq_u32 s{sW}, 7", f"s_cselect_b32 s{sR}, 2.0, s{sHK}"], after=13)
    SEL, DD, ZZ, LD = AV + 8, CP, AV + 12, GA[0]
    vTW, vTZ, vTR = 1, 2, 3
    if typ == 1:
        a, b, c, ln = AK + 1, AK + 2, AK + 3, AK + 4
        o = [f"v_bfe_u32 v{ln}, v{vM16}, 4, 6", f"v_and_b32 v{a}, 15, v{ln}", f"v_lshrrev_b32 v{b}, 1, v{ln}", f"v_and_b32 v{b}, 8, v{b}", f"v_xor_b32 v{b}, v{a}, v{b}",
             f"v_and_b32 v{c}, 1, v{b}", f"v_lshlrev_b32 v{c}, 4, v{c}", f"v_mov_b32 v{a}, 0x3f80", f"v_lshlrev_b32 v{c}, v{c}, v{a}", f"v_lshrrev_b32 v{b}, 1, v{b}"]
        for r in range(4): o += [f"v_cmp_eq_u32 vcc, {r}, v{b}", f"v_cndmask_b32 v{SEL+r}, 0, v{c}, vcc"]
        S.adds(o, lo=(first[12], 0))
        S.add([f"s_lshr_b32 s{sT0}, s{sW}, 1", f"s_lshl_b32 s{sT0}, s{sT0}, 11", f"s_and_b32 s{sT2}, s{sW}, 1", f"s_lshl_b32 s{sT2}, s{sT2}, 5",
               f"s_add_u32 s{sT2}, s{sT2}, s{sT0}", f"s_add_u32 s{sT2}, s{sT2}, {OT}", f"s_sub_u32 s{sT0}, s{sT0}, {MB - OT}"], lo=(first[9], 0))
        S.adds([f"v_add_u32 v{vTZ}, s{sT0}, v{vM16}", f"v_and_b32 v{a}, 7, v{ln}", f"v_lshlrev_b32 v{a}, 7, v{a}", f"v_and_b32 v{b}, 16, v{ln}", f"v_lshl_add_u32 v{a}, v{b}, 2, v{a}",
                f"v_and_b32 v{b}, 8, v{ln}", f"v_add_u32 v{a}, v{a}, v{b}", f"v_lshrrev_b32 v{b}, 1, v{ln}", f"v_and_b32 v{b}, 16, v{b}", f"v_add3_u32 v{vTW}, v{a}, v{b}, s{sT2}",
                f"v_and_b32 v{a}, 19, v{ln}", f"v_bfe_u32 v{b}, v{ln}, 2, 1", f"v_lshl_or_b32 v{a}, v{b}, 3, v{a}", f"v_bfe_u32 v{b}, v{ln}, 3, 1", f"v_lshl_or_b32 v{a}, v{b}, 2, v{a}",
                f"v_lshlrev_b32 v{a}, 6, v{a}", f"v_and_b32 v{b}, 32, v{ln}", f"v_add_u32 v{a}, v{a}, v{b}", f"v_add_u32 v{vTR}, {OT + g*4096}, v{a}"])
    QE = CFG.get("qe") if typ else None
    cad = [f"v_lshlrev_b32 v{vCT}, 1, v{vM16}", f"v_and_b32 v{vCT}, 0xe0, v{vCT}"] if QE else []
    if QE: S.add(cad + [f"buffer_load_dword v{vCT}, v{vCT}, {s(SDB,4)}, 0 offen"], after=12, lo=(first[12], QE["cl"]), kind="misc", prio=2)
    else:
        S.add(f"v_lshlrev_b32 v{vFL}, 3, v{vFA}")
        S.add(f"buffer_load_dword v{vCT}, v{vFL}, {s(SDB,4)}, 0 offen", after=12, lo=(first[13], -4), kind="misc")
    cck = [f"s_and_b32 s{sMD}, s2, 7", f"v_readlane_b32 s{sMD}, v{vCT}, s{sMD}", f"v_and_b32 v{vCT}, 0xff, v{vCT}", f"v_cmp_gt_u32 vcc, 32, v{vCT}", f"s_lshl_b32 s{sT1}, s{sXV}, 5", f"s_sub_u32 s{sMD}, s{sMD}, s{sT1}"]
    chk = S.add(cck + [f"s_cbranch_vccnz L_{sn}_cp", f"LABEL L_{sn}_cb"], after=13 if QE else 15)
    if not QE: chk.R |= {("v", vFL)}
    chk.W |= {("s", sT1), ("x", 0)}
    vCW2, vEX, t0 = AK, AK + 1, AK + 2
    S.adds([f"v_lshrrev_b32 v{vCW2}, 6, v{vM16}", f"v_and_b32 v{vCW2}, 12, v{vCW2}", f"v_xor_b32 v{vCW2}, s{sI4}, v{vCW2}", f"v_or_b32 v{vCW2}, v{vCW2}, v{vM16}"], lo=(first[12], 0))
    if typ == 0:
        S.add(f"v_add_u32 v{vEX}, s{sEX}, v{vM16}")
        own = 4*g; oth = 4 - own
        if g == 0: S.node(G[15,0,2], cm(CD[2], False)(F))
        S.node(G[15,2*g+1,2], mm(GA[2], XR(7,0), False)(F))
        for k in range(2): w64(f"ds_write_b128 v{vEX}, {v(GA[2]+oth+8*k,4)} offset:{g*8192+1024*k} #cs", None, before="cs")
        S.node(G[15,0,0], cm(CD[0], False)(F)); S.node(G[15,0,1], cm(CD[1], False)(F))
        for b in range(3 - g): S.adds(publish(CD[b], t0 + 2*b, t0 + 2*b + 1, vCW2, blk[b], "cs"), before="cs", prio=2)
        X = AK + 8
        S.add(f"ds_read_b128 {v(X,4)}, v{vEX} offset:{(1-g)*8192}", after="cs")
        S.add(f"ds_read_b128 {v(X+4,4)}, v{vEX} offset:{(1-g)*8192+1024}", after="cs")
        S.node(C[2], mm(GA[2], vMU, False)(F))
        S.adds([f"v_add_f32 v{X+4*hh+k}, v{X+4*hh+k}, v{GA[2]+8*hh+own+k}" for hh in range(2) for k in range(4)])
        S.adds(glu(X, X + 4, 4))
        S.add(mst(f"buffer_store_dwordx2 {v(X,2)}, v{vM16}, {s(SWS,4)}, s{sHF} offen offset:{(1-g)*2048+8*g}", "hs"), kind="misc", prio=1)
        fin = [(0, C[0], g*1024), (1, C[1], (1+g)*1024)]
    else:
        for b in range(3): S.node(G[15,0,b], cm(CD[b], False)(F))
        for b in range(3): S.adds(publish(CD[b], t0 + 2*b, t0 + 2*b + 1, vCW2, blk[b], "cs"), before="cs", prio=2)
        fin = [(0, r0[-1], 0), (1, C[1], 1024), (2, C[2], 2048)]
        LQ = [208, 224, 240, 48, 52, 16, 20, 12] if QE else [LD + 4*p for p in range(8)]
        if QE: DD = GA[0] + 8
        def loads(m=" sc1"):
            o = [[f"buffer_load_dwordx4 {v(ZZ,4)}, v{vM16}, {s(SWS,4)}, s{sK2} offen sc1"]]
            for p in range(8):
                o.append(([f"s_add_u32 s{sT2}, s{sK1}, 4096"] if p == 4 else []) + [f"buffer_load_dwordx4 {v(LQ[p],4)}, v{vM16}, {s(SWS,4)}, s{sK1 if p < 4 else sT2} offen offset:{(p%4)*1024}{m}"])
            return o
        L_ = loads("")
        zl_ = S.add(L_[0], kind="misc", lo=(lambda: C[0].idx + QE["zl"]) if QE else lambda: C[2].idx - CFG["qload"] - CFG["qct"], prio=2 if QE else 0, lat=QE and QE["zc"]); zl_.R |= {("x", 0)}
        if QE and QE.get("nz"): zl_.W |= {("x", 1)}
        else:
            zc = S.add([f"v_cmp_eq_u32 vcc, -1, v{ZZ}", "s_nop 1", f"s_cbranch_vccnz L_{sn}_zp", f"LABEL L_{sn}_zb"], lo=None if QE else lambda: C[2].idx - CFG["qload"] - 1)
            zc.W |= {("s", sT1), ("x", 1)}
        if QE:
            n2 = QE.get("n2", 1)
            for j in range(1, 9, n2): S.add(sum(L_[j:j+n2], []), kind="misc", after=QE.get("af", "cs"), lo=lambda: C[0].idx + QE.get("kl", -9), prio=QE.get("pr", 2), lat=QE["lat"]).R |= {("x", 1)}
            CK, CV = DD + 4, GA[0] + 4
            preL = [f"v_mfma_f32_16x16x32_bf16 {v(DD,4)}, {v(SEL,4)}, {v(LQ[p],4)}, {'0' if p == 0 else v(DD,4)}" for p in range(8)] + [f"v_mfma_f32_16x16x32_bf16 {v(CK,4)}, {v(SEL,4)}, {v(ZZ,4)}, {v(DD,4)}"]
            preW = [f"v_cvt_pk_bf16_f32 v{CV}, v{DD}, v{DD+1}", f"v_cvt_pk_bf16_f32 v{CV+1}, v{DD+2}, v{DD+3}", f"ds_write_b64 v{vTW}, {v(CV,2)}", f"v_cmp_u_f32 vcc, v{CK}, v{CK}", "s_nop 1"]
            preZ = f"ds_write_b128 v{vTZ}, {v(ZZ,4)} offset:1024"
    if typ == 0 and CFG["f1"][2]:
        S.add(fload(), kind="misc", lo=lambda: C[2].idx + CFG["f1"][0]).R |= {("x", 0)}
        S.add(fcheck("q", CFG["f1"][2]), lo=lambda: C[2].idx + CFG["f1"][1]).W |= {("x", 1)}
        for k in range(2 * CFG["f1"][2]):
            if k < 4:
                for x in hload(k): S.add(x, kind="misc").R |= {("x", 1)}
    HS = {}
    for b, it, off in fin:
        S.node(it, mm(GA[b], vMU, False)(F))
        S.adds(glu(GA[b], GA[b] + 8, 8))
        if QE and b == 0:
            S.add(preZ, kind="misc", after=15).R |= {("x", 1)}
            m2 = QE.get("m2", 1)
            for j in range(0, 9, m2): S.add(preL[j:j+m2], kind="small")
            QE_last = S.add(preW + [f"s_cbranch_vccnz L_{sn}_rt", f"LABEL L_{sn}_go"], kind="misc", prio=2)
            QE_last.W |= {("s", sT0), ("s", sT2)}
        if typ == 1 and b == 2 and not QE:
            for x in L_[1:]: HS["l"] = S.add(x, kind="misc", lo=lambda: C[2].idx - CFG["qload"]); HS["l"].R |= {("x", 1)}
        if b == len(fin) - 1: S.add(fload(), kind="misc").R |= {("v", GA[b] + CFG["f2"]), ("x", 0)}
        HS[b] = S.add(mst(f"buffer_store_dwordx4 {v(GA[b],4)}, v{vM16}, {s(SWS,4)}, s{sA if (typ, g) == (0, 0) else sHF} offen offset:{off}", f"h{b}"), kind="misc", prio=int(b < len(fin) - 1))
        if b in CFG["st"][typ]: S.add(fstore(b + 2 - typ, f"h{b}", vCT), kind="misc", ok=aft(HS, b, CFG["s1"]))
        if typ == 0 and b == 0 and CFG["f1"][2] == 3:
            for k in (4, 5):
                for x in hload(k): S.add(x, kind="misc").R |= {("x", 1)}
    def budget(n, it):
        if n < first[8].idx:
            if typ == 1: return CFG["qb"]
            if n < first["v1"].idx - D: return CFG["pb"]
            return CFG["vb"]
        if n < first[15].idx and typ == 0: return CFG["gb"]
        return 6
    S.budget = budget
    S.dbl = lambda n: n >= first[9].idx
    if typ == 1:
        for b in range(1, 9): S.prebar_budget[b] = CFG["qpb"]
    S.prebar_budget["cs"] = 6
    if typ == 0:
        for b in list(range(1, 8)) + ["v1"]: S.prebar_budget[b] = CFG["ppb"]
        for b in ("v3", "v6", 8): S.prebar_budget[b] = CFG.get("vpb", 0)
    S.dump = "dump" in k1.KN
    S.solve(main, ex)
    order = S.order; N = len(order)
    info = [f"typ{typ} g{g} N={N} bars={S.bs} extras={[(e.item.name, e.item.idx) for e in ex]} slots={len(S.slots)-D}"]
    if typ == 0: info.append(f"kvstore@{kvst.slot}")
    print(" ".join(info))
    nst = [1]
    def em(x):
        if x.startswith("LABEL"): P.label(x.split()[1])
        elif x.startswith("WAITVM"): P.wait_vm(x.split()[1])
        elif x.startswith("WAITLG"): P.wait_lg(x.split()[1])
        else: emit(P, x)
    for n, it, sm, va, mi in S.slots:
        m_ = n + D
        if m_ < N:
            nx = order[m_]
            if nx.bar is not None:
                P.comment(f"--- barrier {nx.bar}")
                if not ("nowait" in k1.KN and nx.bar != 0):
                    for tg in barwait[nx.bar]: P.wait_vm(tg)
                for tg in barlg.get(nx.bar, []): P.wait_lg(tg)
                I("s_barrier")
                nstamp(P, nx.bar, nst)
            f = FR[m_ % 4]
            rd = []
            for k, ad, im in nx.reads:
                rd.append({"tr": f"ds_read_b64_tr_b16 {v(f,2)}, v{ad} offset:{im}", "tr2": f"ds_read_b64_tr_b16 {v(f+2,2)}, v{ad} offset:{im}",
                           "b128": f"ds_read_b128 {v(f,4)}, v{ad} offset:{im}"}[k])
            for x in nx.pre[:1] + rd + nx.pre[1:]: I(x)
        body = []
        if it is not None:
            f = v(FR[n % 4], 4)
            if it.small: body.append(it.small(f))
            if sm: body += sm.texts
            body.append(it.mf(f))
        elif sm: body += sm.texts
        if "nofill" not in k1.KN or n >= N:
            for o in va: body += o.texts
        if it is not None:
            touch = set()
            for x in body:
                i_ = Ins(x.split("#")[0].strip()); touch |= i_.vr | i_.vw
            P.wait_regs(touch)
        for x in body: em(x)
        for o in mi:
            if "nowd" in k1.KN and any("#W" in x for x in o.texts): continue
            if "halfwd" in k1.KN and any("#W" in x and "offset:1024" in x for x in o.texts): continue
            if "noxr" in k1.KN and any("#X" in x for x in o.texts): continue
            if "nodma" in k1.KN and any(" lds" in x for x in o.texts): continue
            for x in o.texts: em(x)
        if typ == 1 and n - N in CFG.get("sq2", ()): nstamp(P, f"n{N-n}", nst)
        if QE and n == N + QE["bar"]:
            assert QE_last.slot <= n and QE["bar"] >= -4, QE_last.slot - N
            P.wait_lg(); I("s_barrier"); nstamp(P, "ob", nst)
            for j, q_ in enumerate((48, 52, 16, 20)): I(f"ds_read_b128 {v(q_,4)}, v{vTR} offset:{(j>>1)*2048+16*(j&1)}")
        if QE and n == N + QE["mf"]:
            for j, q_ in enumerate((48, 52, 16, 20)):
                I(f"v_mfma_f32_32x32x16_bf16 {v(208+16*(j>>1),16)}, {v(q_,4)}, {v((AV if j>>1 else AK+8)+4*(j&1),4)}, {v(208+16*(j>>1),16) if j&1 else '0'}")
        if n == N - 1:
            nstamp(P, "last", nst)
            if typ == 0 and g == 1 and CFG.get("bl"): P.wait_lg(); I("s_barrier")
    ACC = [208, 224, 240, 32]
    vXA, vXD = 4, 8
    RD = []
    def radr():
        I(f"s_lshl_b32 s{sT0}, s{sMW}, 1")
        I(f"s_sub_u32 s{sT0}, s{sT0}, {MB}")
        I(f"v_add_u32 v5, s{sT0}, v{vM16}")
        I(f"v_add_u32 v6, {t.RG[4]}, v5")
        I(f"v_add_u32 v7, {t.RG[6]}, v5")
        if not CFG.get("rb"): I(f"v_add_u32 v12, s{sRB}, v{vM16}")
    def rwr(q):
        o = []
        if CFG.get("rb"):
            for h_ in range(2):
                r = 2*q + h_; ad, bs_ = (5, 0) if r < 4 else (6, t.RG[4]) if r < 6 else (7, t.RG[6]); A = ACC[q] + 8*h_
                o.append("\n".join(f"v_cvt_pk_bf16_f32 v{A+k}, v{A+2*k}, v{A+2*k+1}" for k in range(4)))
                o.append(f"ds_write_b128 v{ad}, {v(A,4)} offset:{t.RG[r] - bs_}")
            return o
        for e in range(4):
            r = 2*q + (e >> 1); ad, bs_ = (5, 0) if r < 4 else (6, t.RG[4]) if r < 6 else (7, t.RG[6])
            o.append(f"ds_write_b128 v{ad}, {v(ACC[q]+4*e,4)} offset:{t.RG[r] - bs_ + (e & 1)*1024}")
        return o
    def tok(tk):
        c = tk[0]; r = tk[1:]
        if c == "F": I(fload())
        elif c == "C":
            for x in fcheck(r[0], int(r[1]), int(r[3]) if len(r) > 2 else None): em(x)
        elif c == "L":
            for x in hload(int(r)):
                for y in x: em(y)
        elif c == "S":
            lv, tg = r.split(":")
            for x in fstore(int(lv), tg, vCT): em(x)
        elif c == "B":
            if r == "" or int(r) == g: I("s_barrier")
        elif c == "T": nstamp(P, r, nst)
        elif c == "D":
            for x in wdma(int(r)):
                for y in x: em(y)
        elif c == "X":
            k = int(r); ad = (vRD0, vRD1); base = rbase
            if not 0 <= t.RG[RGN[k]] - rbase < 65000:
                ad = (5, 6); base = t.RG[RGN[k]]
                for cb in range(2): I(f"v_add_u32 v{ad[cb]}, {(base - rbase) & 0xffffffff}, v{(vRD0, vRD1)[cb]}")
            for x in wread(k, ad, base):
                for y in x: em(y)
        elif c == "M":
            k = int(r)
            for tb, cb in ((0, 0), (1, 0), (0, 1), (1, 1)):
                A = ACC[tb*2+cb]
                I(f"v_mfma_f32_32x32x16_bf16 {v(A,16)}, {v(WR[k]+4*cb,4)}, {v(HR[k]+4*tb,4)}, {'0' if k == 0 else v(A,16)}")
        elif c == "P": I(f"s_setprio {r}")
        elif c == "G": I(gload())
        elif c == "R":
            J = vSTD if r == "o" else vC1; sb_ = sEX if r == "o" else sA if (typ, g) == (0, 0) else sHF
            for x in [f"s_mov_b32 s{sT1}, {(-7*MB) & 0xffffffff}", f"v_lshl_add_u32 v{J}, v{vM16}, 3, s{sT1}", f"s_mov_b64 exec, {0xffffff if sb_ == sHF else 0xffff}",
                      f"buffer_load_dword v{J}, v{J}, {s(SWS,4)}, s{sb_} offen{CFG.get('thm', ' sc1')}", "s_mov_b64 exec, -1"]: I(x)
        elif c == "H":
            ty, lv = r[0], int(r[1]); own = int(r[3]) if len(r) > 2 else None
            polls.append((ty, lv, own)); n_ = len(polls); spolls.append(n_)
            P.wait_lg()
            for x in gmin(ty, lv): I(x)
            I(f"s_cbranch_scc1 L_{sn}_gp{n_}"); P.label(f"L_{sn}_fb{n_}")
        elif c == "N":
            radr(); prev = []
            for tb, cb in ((0, 0), (1, 0), (0, 1), (1, 1)):
                q = tb*2+cb; A = ACC[q]
                for j, k in enumerate(range(int(r), 15)):
                    I(f"v_mfma_f32_32x32x16_bf16 {v(A,16)}, {v(WR[k]+4*cb,4)}, {v(HR[k]+4*tb,4)}, {v(A,16)}")
                    if j >= CFG.get("nw", 1) and prev:
                        for y in prev.pop(0).split("\n"): I(y)
                for x in prev:
                    for y in x.split("\n"): I(y)
                prev = rwr(q)
            if CFG.get("rb"):
                for k in range(4): I(f"v_lshlrev_b32 v{16+2*k}, 16, v{vXD+k}"); I(f"v_and_b32 v{17+2*k}, s{sHI}, v{vXD+k}")
            for x in prev:
                for y in x.split("\n"): I(y)
            RD.append(1)
        elif c == "x" and CFG.get("rb"):
            for y in [f"v_bfe_u32 v13, v{vM16}, 4, 4", f"v_bfe_u32 v7, v{vM16}, 9, 1", f"v_lshlrev_b32 v{vXA}, 10, v13", f"v_lshl_add_u32 v{vXA}, v7, 14, v{vXA}",
                      f"v_bfe_u32 v7, v{vM16}, 8, 1", f"v_lshl_add_u32 v{vXA}, v7, 4, v{vXA}", f"buffer_load_dwordx4 {v(vXD,4)}, v{vXA}, {s(SX,4)}, s{sXO} offen",
                      f"v_bfe_u32 v7, v{vM16}, 8, 2", f"v_mul_u32_u24 v7, 1792, v7", f"v_add3_u32 v12, s{sRB}, v{vM16}, v7",
                      f"v_and_b32 v14, 16, v{vM16}", f"v_mov_b32 v7, 0x3f80", "v_lshlrev_b32 v14, v14, v7", "v_lshrrev_b32 v13, 1, v13"]: I(y)
            for k in range(8): I(f"v_cmp_eq_u32 vcc, {k}, v13"); I(f"v_cndmask_b32 v{168+k}, 0, v14, vcc")
        elif c == "x":
            I(f"v_bfe_u32 v{vXA}, v{vM16}, 4, 5")
            I(f"v_bfe_u32 v7, v{vM16}, 9, 1")
            I(f"v_lshlrev_b32 v{vXA}, 10, v{vXA}")
            I(f"v_lshl_add_u32 v{vXA}, v7, 4, v{vXA}")
            I(f"buffer_load_dwordx4 {v(vXD,4)}, v{vXA}, {s(SX,4)}, s{sXO} offen")
        else: raise ValueError(tk)
    if typ == 1:
        nstamp(P, "oph", nst)
        DO = [208, 224]
        if not QE:
            I(f"s_mov_b32 s{sT0}, 0")
            P.label(f"L_{sn}_pre")
            for p in range(8): I(f"v_mfma_f32_16x16x32_bf16 {v(DD,4)}, {v(SEL,4)}, {v(LD+4*p,4)}, {'0' if p == 0 else v(DD,4)}")
            I(f"ds_write_b128 v{vTZ}, {v(ZZ,4)} offset:1024")
            I(f"v_mfma_f32_16x16x32_bf16 {v(LD,4)}, {v(SEL,4)}, {v(ZZ,4)}, {v(DD,4)}")
            I(f"v_cvt_pk_bf16_f32 v{LD+4}, v{DD}, v{DD+1}")
            I(f"v_cvt_pk_bf16_f32 v{LD+5}, v{DD+2}, v{DD+3}")
            I(f"ds_write_b64 v{vTW}, {v(LD+4,2)}")
            I(f"v_cmp_u_f32 vcc, v{LD}, v{LD}")
            I("s_nop 1")
            I(f"s_cbranch_vccnz L_{sn}_rt")
            P.label(f"L_{sn}_go")
            for tk in CFG["qo"][0].split(): tok(tk)
            P.wait_lg()
            I("s_barrier")
            AO = GA[0]; DO = [208, 224]
            for rho in range(2):
                for f in range(2): I(f"ds_read_b128 {v(AO+8*rho+4*f,4)}, v{vTR} offset:{rho*2048+16*f}")
            for rho in range(2):
                ph = AK + 8 if rho == 0 else AV
                for f in range(2):
                    I(f"v_mfma_f32_32x32x16_bf16 {v(DO[rho],16)}, {v(AO+8*rho+4*f,4)}, {v(ph+4*f,4)}, {'0' if f == 0 else v(DO[rho],16)}")
        for tk in CFG["qo"][1].split(): tok(tk)
        for rho in range(2):
            Dd = DO[rho]
            if rho and QE:
                for tk in CFG["qo"][0].split(): tok(tk)
            for k in range(4): I(f"v_add_f32 v{Dd+8+k}, v{Dd+8+k}, v{Dd+12+k}")
            I(f"v_add_f32 v{Dd+8}, v{Dd+8}, v{Dd+9}")
            I(f"v_add_f32 v{Dd+10}, v{Dd+10}, v{Dd+11}")
            I(f"v_add_f32 v{Dd+8}, v{Dd+8}, v{Dd+10}")
            I(f"v_mov_b32 v{Dd+9}, v{Dd+8}")
            I(f"v_permlane32_swap_b32 v{Dd+8}, v{Dd+9}")
            I(f"v_add_f32 v{Dd+8}, v{Dd+8}, v{Dd+9}")
            I(f"v_add_f32 v{Dd+8}, {fbits(1e-6)}, v{Dd+8}")
            I(f"v_rcp_f32 v{Dd+8}, v{Dd+8}")
            for k in range(8): I(f"v_mul_f32 v{Dd+k}, v{Dd+k}, v{Dd+8}")
            for k in range(4): I(f"v_cvt_pk_bf16_f32 v{Dd+k}, v{Dd+2*k}, v{Dd+2*k+1}")
            for x in mst(f"buffer_store_dwordx4 {v(Dd,4)}, v{vM16}, {s(SWS,4)}, s{sEX} offen offset:{rho*1024}", "ho"): em(x)
    for tk in CFG["p2"][typ].replace("Ts3", CFG.get("ts3", "Ts3")).replace("Ts4", CFG.get("ts4", "Ts4")).replace("N10", CFG.get("n10", ("N10", "N10"))[g]).split(): tok(tk)
    if not RD:
        radr()
        for q in (0, 2, 1, 3):
            for x in rwr(q): I(x)
    XU = 16
    for k in range(0 if CFG.get("rb") else 4):
        I(f"v_lshlrev_b32 v{XU+2*k}, 16, v{vXD+k}")
        I(f"v_and_b32 v{XU+2*k+1}, s{sHI}, v{vXD+k}")
    P.wait_lg()
    I("s_barrier")
    nstamp(P, "red", nst)
    if CFG.get("rb"):
        od = [(c_, hh) for hh in range(2) for c_ in (0, 2, 1, 3)]
        for j, (c_, hh) in enumerate(od): I(f"ds_read_b128 {v(128+4*j,4)}, v12 offset:{hh*8192+c_*256}")
        for j, (c_, hh) in enumerate(od): I(f"v_mfma_f32_16x16x32_bf16 {v(XU+4*(c_>>1),4)}, {v(168+4*(c_&1),4)}, {v(128+4*j,4)}, {v(XU+4*(c_>>1),4)}")
    for w_ in range(0 if CFG.get("rb") else 8):
        for e in range(2): I(f"ds_read_b128 {v(128+8*w_+4*e,4)}, v12 offset:{w_*2048+e*1024}")
        if w_ == 6:
            for k in range(8): I(f"v_add_f32 v{XU+k}, v{XU+k}, v{128+k}")
    for w_ in range(1, 1 if CFG.get("rb") else 8):
        for k in range(8): I(f"v_add_f32 v{XU+k}, v{XU+k}, v{128+8*w_+k}")
    for k in range(4): I(f"v_cvt_pk_bf16_f32 v{XU+k}, v{XU+2*k}, v{XU+2*k+1}")
    I(f"buffer_store_dwordx4 {v(XU,4)}, v{vXA}, {s(SOUT,4)}, s{sXO} offen")
    while nst[0] < 18: nstamp(P, "-", nst)
    P.comment(f"STAMPS {typ}{g} " + " ".join(nst[1:]) + " end")
    dump_stamps(P, 19, SWS, sW, 8, sT0)
    I("s_endpgm")
    def poll(nm, back, sl, body, done, pre=[]):
        P.restore(([], [], [], False))
        P.label(f"L_{sn}_{nm}")
        for x in pre: em(x)
        I(f"s_mov_b32 s{sC}, 0")
        P.label(f"L_{sn}_{nm}l")
        I(f"s_sleep {sl}")
        for x in body: I(x)
        I(f"{done} L_{sn}_{back}")
        I(f"s_add_u32 s{sC}, s{sC}, 1")
        I(f"s_cmp_lt_u32 s{sC}, 20000")
        I(f"s_cbranch_scc1 L_{sn}_{nm}l")
        I(f"s_branch L_{sn}_{back}")
    for n_, x in enumerate(slow):
        P.restore(([], [], [], False))
        P.label(f"L_{sn}_ss{n_+1}")
        I("s_nop 4"); I(x + " sc1"); I("s_nop 4"); I(f"s_branch L_{sn}_sb{n_+1}")
    poll("cp", "cb", 16, cad + [f"buffer_load_dword v{vCT}, v{vCT if QE else vFL}, {s(SDB,4)}, 0 offen sc1"] + cck, "s_cbranch_vccz")
    for n_ in spolls:
        ty, lv, own = polls[n_-1]
        P.restore(([], [], [], False))
        P.label(f"L_{sn}_gp{n_}")
        I(f"s_cmp_lg_u32 s{sMD}, 0"); I(f"s_cbranch_scc1 L_{sn}_fp{n_}")
        if own is not None:
            for x in [f"v_mov_b32 v{vCT}, {own}", "s_waitcnt vmcnt(0)", "s_mov_b64 exec, 1", f"buffer_store_dword v{vCT}, off, {s(SWS,4)}, s{sFL}", "s_mov_b64 exec, -1"]: I(x)
        I(f"s_mov_b32 s{sO2}, 0")
        P.label(f"L_{sn}_gl{n_}")
        if CFG.get("gsl"): I(f"s_sleep {CFG['gsl']}")
        I(gload()); I("s_waitcnt lgkmcnt(0)")
        for x in gmin(ty, lv): I(x)
        I(f"s_cbranch_scc0 L_{sn}_fb{n_}")
        I(f"s_add_u32 s{sO2}, s{sO2}, 1"); I(f"s_cmp_lt_u32 s{sO2}, 64"); I(f"s_cbranch_scc1 L_{sn}_gl{n_}")
        I(f"s_branch L_{sn}_fp{n_}")
    for n_, (ty, lv, own) in enumerate(polls):
        pre = [] if own is None else [f"v_mov_b32 v{vCT}, {own}", "s_waitcnt vmcnt(0)", "s_mov_b64 exec, 1", f"s_cmp_lg_u32 s{sMD}, 0", f"s_cbranch_scc1 L_{sn}_fo{n_}", f"buffer_store_dword v{vCT}, off, {s(SWS,4)}, s{sFL}",
                                      f"s_branch L_{sn}_fq{n_}", f"LABEL L_{sn}_fo{n_}", f"buffer_store_dword v{vCT}, off, {s(SWS,4)}, s{sFL} sc1", f"LABEL L_{sn}_fq{n_}", "s_mov_b64 exec, -1"]
        poll(f"fp{n_+1}", f"fb{n_+1}", CFG["fsl"], [fload(), f"v_cmp_gt_u32 vcc, {lv}, v{vFL}", f"s_and_b32 s{sT1}, vcc_lo, {0xf0 if ty == 'q' else 0x0f}"], "s_cbranch_scc0", pre)
    if typ == 1:
        if not (QE and QE.get("nz")): poll("zp", "zb", CFG["zsl"], [loads()[0][0], f"v_cmp_eq_u32 vcc, -1, v{ZZ}", "s_nop 1"], "s_cbranch_vccz")
        P.restore(([], [], [], False))
        P.label(f"L_{sn}_rt")
        if QE:
            I(f"s_mov_b32 s{sT0}, 0"); I("s_nop 7"); I("s_nop 7")
            P.label(f"L_{sn}_rl")
            I("s_waitcnt lgkmcnt(0)")
            for x in loads():
                for y in x: I(y)
            I("s_waitcnt vmcnt(0)")
            for x in preL + [preZ] + preW: I(x)
            I("s_waitcnt lgkmcnt(0)")
            I(f"s_cbranch_vccz L_{sn}_go")
            I(f"s_add_u32 s{sT0}, s{sT0}, 1")
            I(f"s_cmp_lt_u32 s{sT0}, 20000")
            I(f"s_cbranch_scc1 L_{sn}_rl")
            I(f"s_branch L_{sn}_go")
            return
        I(f"s_add_u32 s{sT0}, s{sT0}, 1")
        I(f"s_cmp_ge_u32 s{sT0}, 20000")
        I(f"s_cbranch_scc1 L_{sn}_go")
        I("s_waitcnt lgkmcnt(0)")
        for x in loads():
            for y in x: I(y)
        I("s_waitcnt vmcnt(0)")
        I(f"s_branch L_{sn}_pre")

def gen_k1(name):
    P = Prog()
    P.raw(f".globl {name}\n.p2align 8\n.type {name},@function\n{name}:")
    prologue(P, name)
    snap = P.snapshot()
    for k in range(4):
        P.restore(snap)
        if k: P.raw(".p2align 6"); P.label(f"L_{name}_r{k}")
        stream(P, k >> 1, k & 1, name)
    P.label(f"L_{name}_end")
    P.I("s_endpgm")
    return P
```

```python
from asmlib import Prog, Ins, v, s
from sched import Sched, Item, Op
import k1
from k1 import fbits, LOG2E, stamp, pstamp, dump_stamps

MB = 122880
HF_OFF = MB
KVP_OFF = 0xC00000
WS_BYTES = 0x1000000
PH = 103040; OT = 106688; CSP = 156288
FLG = 0xD00000
LDS_BYTES = 163840
SDB, SX, SWQ, SWG, SWU, SWS, SWP, SWO, SWD = 4, 8, 12, 16, 20, 24, 28, 44, 48
sW, sT, sA, sTY, sR, sI, sMX, sMW, sMG, sC, sO1, sO2 = range(32, 44)
sHF, sK1, sK2, sHI, sT0, sT1, sT2, sT3 = range(52, 60)
sI4, sEX = 3, 35
sFL = sT; SOUT = SWQ
sHQ, sHO, sHK, sFR = range(SWP, SWP + 4)
sXO, sRB = 0, 1
sXV, sMD = 100, 101
vM16 = 0; vGO = [1, 2, 3]; vAG = [4, 5, 6, 7]; vMU = 8; CP = 12; CD = [16, 18, 20]
vC1, vSTD, vRS, vWF, vPH, vKA, vKB, vSM = range(24, 32)
vMX = vRS
FR = [32, 36, 40, 44]
AK, AV = 48, 64
GA = [80, 96, 112]
vXO, vWO, vLN, vST, vSQ = 80, 81, 82, 83, 84
vU = [85, 86, 87, 88]
vSTW, vSTR, vWPV, vWPA, vTCH, vCW = 89, 90, 91, 92, 93, 94
vAX = [[96, 97, 98, 99], [100, 101, 102, 103]]
vAA = [[104, 105, 106, 107], [108, 109, 110, 111]]
def XR(i, p): return 128 + (4 * i + p) * 4
CFG = dict(gb=6, pb=8, ppb=8, vb=6, paceg=1, b0end=1, pro=3, pace=0, tch=13, gt=0, rot="a", acc2=1, hstag=0, ns=([2]*8, [2]*8), phbar=(9, 10), qload=8, b0=8, hm=" sc1", qb=6, qpb=6, qpub=9,
           vdm={4: [0], 5: [1, 2], 6: [3, 4, 5], 7: [6, 7]}, g8=7, sq=[[0], [1], [2, 3], [4], [5], [6], [7], []], wc=0, qct=14, sq7=1, v1=(0, 2), skip=(3, 5, "v3", "ph", 12))
CFG.update(zd=12, rot="f", thl=((8, 9, 10), (8, 8, 9, 9, 10)), tho=0, th=8, thb=4, xm=1, fm=" sc1", tch=6, phbar=(9, 2), vpb=6, vb=7, gb=7, qload=0, qct=10, zsl=8, fsl=4, wb=(10, 10), wl=10, wg=2, f1=(0, 9, 0), f2=3, s1=12, atm=(7, 6, 2, -9),
           skip=(1, 2, 3, 4, 5, 6, 7, "v1", "v3", "v6", "ph", 9, 10, 11, 12, 15),
           st=((), ()),
           qo=("S3:h2 F T1", "D14"),
           p2=("Tp2 S3:h1 Ts3 Cq3 Tq3 L0 L1 F L2 L3 L4 L5 Cq4 Tq4 L6 L7 M0 M1 L8 L9 M2 Ck3 Tk3 L10 M3 L11 L12 M4 L13 M5 L14 X12 X13 X14 x Tb M6 M7 M8 M9 Tm9 B M10 M11 M12 M13 M14 Td",
               "Tp2 S4:ho Ts4 Cq3 L0 L1 F L2 L3 L4 L5 Cq4 Tq4 L6 L7 L8 L9 M0 Ck3 Tk3 L10 M1 L11 X10 X11 M2 L12 M3 L13 M4 L14 M5 X12 X13 X14 x M6 M7 M8 M9 Tm9 M10 M11 M12 M13 M14 Td"))
CFG.update(t3b=1, dup=1, swp=1, t3=4, tx=(None, 9, 2), f1=(0, 5, 0), s1=5, fsl=2, thl=((8, 8, 8), (8, 8, 8, 8, 8)))
CFG.update(ct=1, bl=1, qo=('S3:h2 T1','F D14'), p2=('Tp2 B0 S3:h1 Ts3 Cq3 Tq3 L0 L1 L2 L3 L4 L5 F M0 M1 M2 M3 Cq4 Tq4 L6 L7 L8 L9 Ck3 Tk3 L10 L11 L12 M4 L13 M5 L14 X12 X13 X14 x Tb M6 M7 M8 M9 Tm9 N10 Td',
           'Tp2 Cq3/4 L0 S4:ho Ts4 L1 L2 L3 L4 L5 F M0 M1 M2 M3 Cq4 Tq4 L6 L7 L8 L9 Ck3 Tk3 L10 L11 L12 L13 M4 L14 X10 X11 M5 X12 X13 X14 x M6 M7 M8 M9 Tm9 N10 Td'))
CFG.update(rb=1, zw=0, zd=1, cold=1, pz=(0, 0, 0, 0))
STN = []
def nstamp(P, nm, nst):
    if nm in CFG["skip"]: return
    if nst[0] < 18: stamp(P, nst[0]); nst[0] += 1; nst.append(str(nm))
def HM(): return CFG["hm"]

class T:
    def __init__(s, typ):
        s.typ = typ
        s.RB = 192 if typ else 160; s.NP = 12 if typ else 10; s.MUL = 171 if typ else 205
        s.UP = 64 * s.RB + (32 if typ else 128); s.SL = 2 * 64 * s.RB + (64 if typ else 128)
        s.XB = (0, 3 * s.SL) if typ else (20608, 103040)
        s.WB = (16384, 16384 + 3 * s.SL) if typ else (12416, 82432)
        s.ST = 131072 if typ else 98816
        s.WPH = CSP + 2048 if typ else 152192
        s.RG = [0, 16384, 32768, 49152] + ([73920, 90304, 123200, 139584] if typ else [65536, PH, PH + 16384, PH + 32768])
    def xp(s, st): return ((st + 2) % 5) * s.SL if s.typ else (20608, 41216, 119424, 103040, 66048, 82432, 119424, 103040)[st]
    def wp(s, st): return s.xp(st) + 16384 if s.typ else (12416, 57600, 144000, 135808)[st % 4]
    def vp(s, c): return (20608, 41216, 66048, 82432)[c >> 1] + 8192 * (c & 1)
    def sp(s, o, B):
        hi = int(o >= B[1]); assert 0 <= o - B[hi] <= 65000; return hi, o - B[hi]
    def g(s, st): return ((st - 8) % 5) * s.SL

def dma_x(t, st):
    return [[f"s_add_u32 s{sC}, s{sR}, {st}", f"s_and_b32 s{sC}, s{sC}, 7", f"s_add_u32 m0, s{sMX}, {t.xp(st)}", f"s_lshl_b32 s{sO1}, s{sC}, 7",
             f"buffer_load_dwordx4 v{vXO}, {s(SX,4)}, s{sO1} offen lds #x{st}"],
            [f"s_add_u32 s{sO1}, s{sO1}, {16384 - 2048}", f"buffer_load_dwordx4 v{vXO}, {s(SX,4)}, s{sO1} offen offset:2048 lds #x{st}"]]
def dma_w(t, st):
    o = [[f"s_add_u32 s{sC}, s{sR}, {st}", f"s_and_b32 s{sC}, s{sC}, 7", f"s_add_u32 m0, s{sMW}, {t.wp(st)}", f"s_mul_i32 s{sO2}, s{sC}, {64*3072}",
          f"buffer_load_dwordx4 v{vWO}, {s(SWQ,4)}, s{sO2} offen lds #w{st}"]]
    return o
def dma_v(t, c):
    return [[f"s_add_u32 s{sC}, s{sR}, {c}", f"s_and_b32 s{sC}, s{sC}, 7", f"s_add_u32 m0, s{sMW}, {t.vp(c) - 1024}", f"s_mul_i32 s{sO2}, s{sC}, {64*3072}",
          f"buffer_load_dwordx4 v{vWO}, {s(SWQ,4)}, s{sO2} offen offset:1024 lds #v{c}"]]
def dma_g(t, g, st):
    S = s(SWU if g else SWG, 4)
    m = [f"s_add_u32 m0, s{sMG}, {t.g(st)}"] if st >= 12 else []
    o = [[f"s_add_u32 s{sC}, s{sR}, {st}", f"s_and_b32 s{sC}, s{sC}, 7", f"s_add_u32 m0, s{sMG}, {t.g(st)}", f"s_mul_i32 s{sO2}, s{sC}, {64*2752}",
          f"buffer_load_dwordx4 v{vGO[0]}, {S}, s{sO2} offen lds #w{st}"],
         m + [f"buffer_load_dwordx4 v{vGO[1]}, {S}, s{sO2} offen offset:1024 lds #w{st}"]]
    l = f"buffer_load_dwordx4 v{vGO[2]}, {S}, s{sO2} offen offset:2048 lds #w{st}"
    o.append(m + ([l] if t.typ else ["s_mov_b32 exec_hi, 0", l, "s_mov_b32 exec_hi, -1"]))
    return o

def stream_list(t, g):
    o = []
    for st in range(1, 8): o += [dma_x(t, st), dma_w(t, st)]
    return o

def emit(P, t):
    tag = None
    if "#" in t: t, tag = t.split("#"); t = t.strip()
    P.I(t, tag)

def prologue(P, name):
    I = P.I
    stamp(P, 0)
    I("s_cmp_ge_u32 s2, 256")
    I(f"s_cbranch_scc1 L_{name}_end")
    I(f"s_load_dwordx4 s[8:11], s[0:1], 0")
    if CFG.get("ct"):
        I("s_getpc_b64 s[4:5]")
        P.label(f"L_{name}_pc")
        I("s_lshr_b32 s3, s2, 3")
        I("s_lshl_b32 s3, s3, 11")
        I("v_lshrrev_b32 v1, 5, v0")
        I("v_lshl_add_u32 v1, v1, 7, s3")
        I(f"s_mov_b32 s6, L_{name}_end-L_{name}_pc")
        I("s_mov_b32 s7, 0x20000")
        I("buffer_load_dword v127, v1, s[4:7], 0 offen")
    I(f"v_lshrrev_b32 v1, 6, v0")
    I(f"v_and_b32 v{vLN}, 63, v0")
    I(f"v_readfirstlane_b32 s{sW}, v1")
    I(f"s_and_b32 s{sT0}, s2, 1")
    I(f"s_bfe_u32 s{sT1}, s2, 0x30003")
    I(f"s_lshl3_add_u32 s{sT}, s{sT0}, s{sT1}")
    I(f"s_lshr_b32 s{sT2}, s2, 6")
    I(f"s_and_b32 s{sT0}, s2, 6")
    I(f"s_and_b32 s{sT1}, s{sT2}, 1")
    I(f"s_add_u32 s{sA}, s{sT0}, s{sT1}")
    I(f"s_lshl1_add_u32 s{sR}, s{sT2}, s{sT}")
    rot = CFG["rot"]
    if CFG["xm"]:
        I(f"s_and_b32 s{sT0}, s2, 7")
        I(f"s_bfe_u32 s{sT1}, s2, 0x10006")
        I(f"s_lshl1_add_u32 s{sT}, s{sT0}, s{sT1}")
        I(f"s_bfe_u32 s{sA}, s2, 0x30003")
        if CFG.get("ap"): I(f"s_xor_b32 s{sA}, s{sA}, {CFG['ap']}")
        if rot[0] == "e": I(f"s_mov_b32 s{sR}, s{sT0}")
        if rot[0] == "f": I(f"s_add_u32 s{sR}, s{sT0}, s{sA}")
        if rot[0] == "g": I(f"s_lshl2_add_u32 s{sR}, s{sT1}, s{sT0}")
        if rot[0] == "h": I(f"s_lshl1_add_u32 s{sR}, s{sT2}, s{sT0}")
        if rot[0] == "i": I(f"s_lshl2_add_u32 s{sR}, s{sT1}, s{sT0}"); I(f"s_add_u32 s{sR}, s{sR}, s{sA}")
    if rot[0] == "b": I(f"s_add_u32 s{sR}, s{sT2}, s{sT}"); I(f"s_lshl_b32 s{sR}, s{sR}, 1")
    if rot[0] == "c": I(f"s_add_u32 s{sR}, s{sT2}, s{sT}"); I(f"s_lshl_b32 s{sR}, s{sR}, 2")
    if rot[0] == "d": I(f"s_mov_b32 s{sR}, 0")
    if rot[1:] == "x": I(f"s_add_u32 s{sR}, s{sR}, s2")
    if rot[1:] == "y": I(f"s_lshr_b32 s{sC}, s2, 1"); I(f"s_add_u32 s{sR}, s{sR}, s{sC}"); I(f"s_and_b32 s{sC}, s2, 1"); I(f"s_lshl1_add_u32 s{sR}, s{sC}, s{sR}")
    if rot[1:] == "z": I(f"s_add_u32 s{sR}, s{sR}, s{sT0}"); I(f"s_and_b32 s{sC}, s2, 1"); I(f"s_lshl2_add_u32 s{sR}, s{sC}, s{sR}")
    I(f"v_lshrrev_b32 v2, 4, v{vLN}")
    I(f"v_lshrrev_b32 v3, 3, v{vLN}")
    I(f"v_and_b32 v4, 7, v{vLN}")
    I(f"s_and_b32 s{sT0}, s{sW}, 1")
    I(f"s_lshr_b32 s{sT1}, s{sW}, 1")
    I(f"s_lshl2_add_u32 s{sT1}, s{sT1}, s{sT0}")
    I(f"s_lshl_b32 s{sMX}, s{sT1}, 10")
    I(f"s_lshl4_add_u32 s{sT1}, s{sT}, s{sT1}")
    I(f"s_lshl_b32 s{sT1}, s{sT1}, 13")
    I(f"s_lshl_b32 s{sT0}, s{sT0}, 2")
    I(f"v_or_b32 v5, s{sT0}, v2")
    I(f"v_xor_b32 v5, v5, v4")
    I(f"v_lshlrev_b32 v5, 4, v5")
    I(f"v_lshl_add_u32 v5, v3, 10, v5")
    I(f"v_add_u32 v{vXO}, s{sT1}, v5")
    I(f"s_lshl_b32 s{sMW}, s{sW}, 10")
    I(f"s_mul_i32 s{sT0}, s{sW}, {8*3072}")
    I(f"s_lshl_b32 s{sT1}, s{sA}, 7")
    I(f"s_add_u32 s{sT0}, s{sT0}, s{sT1}")
    I(f"s_and_b32 s{sC}, s{sR}, 7")
    I(f"s_lshl_b32 s{sO1}, s{sC}, 7")
    I(f"s_mul_i32 s{sO2}, s{sC}, {64*3072}")
    I(f"s_cmp_lt_u32 s2, 128")
    I(f"s_cselect_b32 s{sT1}, 1024, 0")
    I(f"s_cselect_b32 s{sT3}, 0, {T(1).xp(0) - T(0).xp(0)}")
    I(f"s_cselect_b32 s{sT2}, 0, {T(1).wp(0) - T(0).wp(0)}")
    I(f"s_add_u32 s{sT3}, s{sT3}, {T(0).xp(0)}")
    I(f"s_add_u32 s{sT2}, s{sT2}, {T(0).wp(0)}")
    I(f"s_add_u32 s{sT0}, s{sT0}, s{sT1}")
    I(f"v_and_b32 v5, 1, v2")
    I(f"v_lshlrev_b32 v5, 2, v5")
    I(f"v_xor_b32 v5, v5, v4")
    I(f"v_lshlrev_b32 v5, 4, v5")
    I(f"v_mul_u32_u24 v6, 3072, v3")
    I(f"v_add3_u32 v{vWO}, v5, v6, s{sT0}")
    I(f"s_add_u32 m0, s{sMX}, s{sT3}")
    I(f"s_add_u32 s{sT1}, s{sO1}, {16384 - 2048}")
    I(f"s_mov_b32 s{SWQ+2}, {512*3072}")
    I(f"s_mov_b32 s{SWQ+3}, 0x20000")
    pstamp(P, 1)
    I("s_waitcnt lgkmcnt(0)")
    pstamp(P, 2)
    I(f"s_mov_b32 s{SWQ}, s10")
    I(f"s_mov_b32 s{SWQ+1}, s11")
    I(f"s_mov_b32 s{SX+2}, 2097152")
    I(f"s_mov_b32 s{SX+3}, 0x20000")
    I(f"buffer_load_dwordx4 v{vXO}, {s(SX,4)}, s{sO1} offen lds", "x0")
    I(f"buffer_load_dwordx4 v{vXO}, {s(SX,4)}, s{sT1} offen offset:2048 lds", "x0")
    I(f"s_add_u32 m0, s{sMW}, s{sT2}")
    I(f"buffer_load_dwordx4 v{vWO}, {s(SWQ,4)}, s{sO2} offen lds", "w0")
    for r, o in ((SWP, 16), (SWG, 40), (SWU, 48), (SWS, 80), (SDB, 72), (SWO, 24), (SWD, 56), (SWO + 2, 64)):
        I(f"s_load_dwordx2 {s(r,2)}, s[0:1], {o}")
    pstamp(P, 3)
    I(f"s_and_b32 s{sI}, s{sW}, 3")
    I(f"s_lshr_b32 s{sT0}, s{sW}, 2")
    I(f"s_lshr_b32 s{sT1}, s2, 7")
    I(f"s_lshl1_add_u32 s{sT0}, s{sT1}, s{sT0}")
    for k in (1, 2, 3):
        I(f"s_cmp_eq_u32 s{sT0}, {k}")
        I(f"s_cbranch_scc1 L_{name}_r{k}")

def setup(P, t, g):
    I = P.I; typ = t.typ
    a, b, c, d, h, sb, r, sw, row, j4 = range(112, 122)
    def pdm(l):
        for nm in l.split():
            for z in (dma_x if nm[0] == "x" else dma_w)(t, int(nm[1])):
                for y in z: emit(P, y)
    if CFG.get("po"): pdm(CFG["po"][typ][0])
    for R, n in ((SWP, 16384), (SWG, 512*2752), (SWU, 512*2752), (SWS, WS_BYTES), (SDB, 256), (SWD, 1376*1024)):
        if R == (SWG if g else SWU): continue
        I(f"s_mov_b32 s{R+2}, {n}")
        I(f"s_mov_b32 s{R+3}, 0x20000")
    I(f"s_mov_b32 s{sHI}, 0xffff0000")
    I(f"s_getreg_b32 s{sXV}, hwreg(HW_REG_XCC_ID, 0, 4)")
    I(f"s_mul_i32 s{sMD}, s{sXV}, s{sXV}")
    I(f"s_lshl_b32 s{sMD}, s{sMD}, 9")
    I(f"s_add_u32 s{sXV}, s{sXV}, s{sMD}")
    I(f"s_lshl_b32 s{sXV}, s{sXV}, 8")
    I(f"s_add_u32 s{sXV}, s{sXV}, 1")
    I(f"s_lshl_b32 s{sI4}, s{sI}, 2")
    I(f"v_mov_b32 v{j4}, v2")
    I(f"v_lshrrev_b32 v{h}, 5, v{vLN}")
    I(f"v_and_b32 v{sb}, 1, v2")
    I(f"v_bfe_u32 v{r}, v{vLN}, 2, 2")
    I(f"v_bfe_u32 v{a}, v{vLN}, 1, 1")
    I(f"v_and_b32 v{b}, 1, v{vLN}")
    I(f"v_lshl_or_b32 v{sw}, v{b}, 1, v{a}")
    I(f"v_lshlrev_b32 v{sw}, 3, v{sw}")
    I(f"v_lshl_add_u32 v{row}, v{h}, 3, v{r}")
    I(f"v_lshl_or_b32 v{c}, v{sb}, 1, v{a}")
    I(f"v_lshlrev_b32 v{c}, 3, v{c}")
    I(f"v_lshl_add_u32 v{c}, v{row}, 5, v{c}")
    I(f"v_lshl_add_u32 v{c}, v{b}, 11, v{c}")
    I(f"v_add_u32 v{vWF}, {t.WPH + g*1024}, v{c}")
    if typ == 0:
        I(f"v_bfe_u32 v{c}, v{vLN}, 2, 3")
        I(f"v_lshl_add_u32 v{c}, v{h}, 4, v{c}")
        I(f"v_mul_u32_u24 v{c}, 96, v{c}")
        I(f"v_lshl_add_u32 v{c}, v{b}, 3, v{c}")
        I(f"s_lshr_b32 s{sT0}, s{sI}, 1")
        I(f"s_mul_i32 s{sT0}, s{sT0}, 12288")
        I(f"s_add_u32 s{sT0}, s{sT0}, {PH + 2*g*12288}")
        I(f"s_and_b32 s{sT1}, s{sI}, 1")
        I(f"s_lshl_b32 s{sT1}, s{sT1}, 5")
        I(f"s_add_u32 s{sT1}, s{sT1}, s{sT0}")
        I(f"v_xor_b32 v{d}, v{a}, v{sb}")
        I(f"v_lshlrev_b32 v{d}, 4, v{d}")
        I(f"v_add3_u32 v{vKA}, v{c}, v{d}, s{sT1}")
    I(f"v_and_b32 v{b}, 2, v{r}")
    I(f"v_or_b32 v{b}, v{b}, v{sb}")
    I(f"v_lshl_add_u32 v{b}, v{b}, 5, v{sw}")
    I(f"v_lshl_add_u32 v{b}, v{row}, 7, v{b}")
    I(f"s_lshl_b32 s{sT0}, s{sI}, 11")
    if g: I(f"s_add_u32 s{sT0}, s{sT0}, 64")
    I(f"v_xor_b32 v{vAA[0][0]}, s{sT0}, v{b}")
    I(f"v_and_b32 v{a}, 31, v{vLN}")
    I(f"v_bfe_u32 v{b}, v{vLN}, 1, 3")
    I(f"v_xor_b32 v{b}, v{b}, v{h}")
    I(f"v_lshlrev_b32 v{b}, 4, v{b}")
    I(f"v_lshl_add_u32 v{b}, v{a}, 7, v{b}")
    I(f"s_mul_i32 s{sT0}, s{sI}, {4096 + 32}")
    I(f"v_xor_b32 v{vAX[0][0]}, s{sT0}, v{b}")
    for p in range(1, 4):
        I(f"v_xor_b32 v{vAX[0][p]}, {p*32}, v{vAX[0][0]}")
        I(f"v_xor_b32 v{vAA[0][p]}, {p*2048}, v{vAA[0][0]}")
    for p in range(4):
        I(f"v_add_u32 v{vAX[1][p]}, {t.XB[1]}, v{vAX[0][p]}")
        I(f"v_add_u32 v{vAA[1][p]}, {t.WB[1]}, v{vAA[0][p]}")
        if t.XB[0]: I(f"v_add_u32 v{vAX[0][p]}, {t.XB[0]}, v{vAX[0][p]}")
        I(f"v_add_u32 v{vAA[0][p]}, {t.WB[0]}, v{vAA[0][p]}")
    I(f"s_lshl_b32 s{sT0}, s{sI}, 9")
    I(f"s_add_u32 s{sT0}, s{sT0}, {t.ST}")
    I(f"v_lshlrev_b32 v{b}, 4, v{a}")
    I(f"v_add_u32 v{vSTR}, s{sT0}, v{b}")
    I(f"v_lshl_add_u32 v{vSTW}, v{h}, 2, v{vSTR}")
    I(f"v_lshl_add_u32 v{vSTW}, v{sb}, 3, v{vSTW}")
    if g: I(f"v_xor_b32 v{vSTW}, 8, v{vSTW}")
    if typ == 0:
        I(f"v_mul_u32_u24 v{b}, 96, v{a}")
        I(f"v_and_b32 v{c}, 4, v{a}")
        I(f"v_lshlrev_b32 v{c}, 2, v{c}")
        I(f"s_mul_i32 s{sT0}, s{sI}, 3072")
        I(f"s_add_u32 s{sT0}, s{sT0}, {PH + 2*g*12288}")
        I(f"v_add3_u32 v{b}, v{b}, v{c}, s{sT0}")
        I(f"v_lshl_add_u32 v{vPH}, v{h}, 5, v{b}")
        I(f"v_lshlrev_b32 v{c}, 4, v{h}")
        I(f"v_xor_b32 v{vKB}, v{b}, v{c}")
    if CFG.get("po"): pdm(CFG["po"][typ][1])
    I(f"v_mul_u32_u24 v{b}, {t.RB}, v{row}")
    I(f"v_mul_u32_u24 v{c}, {t.UP}, v{sb}")
    I(f"v_add3_u32 v{b}, v{b}, v{c}, v{sw}")
    for p in range(4):
        I(f"s_xor_b32 s{sT0}, s{sI}, {p}")
        I(f"s_mul_i32 s{sT0}, s{sT0}, {16*t.RB}")
        I(f"v_add_u32 v{vAG[p]}, s{sT0}, v{b}")
    I(f"s_mul_i32 s{sMG}, s{sI}, {16*t.RB}")
    if g: I(f"s_add_u32 s{sMG}, s{sMG}, {t.UP}")
    if typ == 0:
        I(f"s_mul_i32 s{sT2}, s{sA}, 5")
        I(f"s_min_u32 s{sT2}, s{sT2}, 33")
        I(f"s_add_u32 s{sT2}, s{sT2}, 48")
    else: I(f"s_mul_i32 s{sT2}, s{sA}, 6")
    I(f"s_mul_i32 s{sT0}, s{sI}, {16*2752}")
    I(f"s_lshl_b32 s{sT1}, s{sT2}, 5")
    I(f"s_add_u32 s{sT0}, s{sT0}, s{sT1}")
    I(f"s_mov_b32 s{sT1}, {2752 - 16*t.NP}")
    I(f"v_lshlrev_b32 v{a}, 4, v{vLN}")
    I(f"v_add_u32 v{vM16}, {MB}, v{a}")
    I(f"v_add_u32 v{a}, s{sT0}, v{a}")
    I(f"v_mul_u32_u24 v{b}, {t.MUL}, v{vLN}")
    for j in range(3):
        if j: I(f"v_add_u32 v{b}, {64*t.MUL}, v{b}")
        I(f"v_lshrrev_b32 v{c}, 11, v{b}")
        I(f"v_mad_u32_u24 v{vGO[j]}, v{c}, s{sT1}, v{a}")
        if typ == 0 and CFG["dup"]:
            if j == 0:
                I(f"s_cmp_eq_u32 s{sA}, 7")
                I(f"s_cselect_b32 s{sT3}, {4*t.MUL}, 0")
            I(f"v_and_b32 v{c}, 0x7ff, v{b}")
            I(f"v_cmp_gt_u32 vcc, s{sT3}, v{c}")
            I(f"v_cndmask_b32 v{vGO[j]}, v{vGO[j]}, 2.0, vcc")
    I(f"v_and_b32 v{a}, 15, v{vLN}")
    I(f"v_lshlrev_b32 v{b}, 2, v{j4}")
    I(f"v_mov_b32 v{c}, 0x3f803f80")
    I(f"v_cmp_eq_u32 vcc, v{a}, v{b}")
    for k in range(4): I(f"v_cndmask_b32 v{CP+k}, 0, v{c}, vcc")
    I(f"v_xor_b32 v{b}, s{sI4}, v{b}")
    I(f"v_or_b32 v{vCW}, v{b}, v{vM16}")
    I(f"s_lshl2_add_u32 s{sT0}, s{sT}, s{sI}")
    I(f"s_mul_i32 s{sT0}, s{sT0}, 118")
    I(f"s_add_u32 s{sT1}, s{sT0}, s{sT2}")
    I(f"s_add_u32 s{sT1}, s{sT1}, {32 + (3*g if typ else 2*g)}")
    I(f"s_lshl_b32 s{sHF}, s{sT1}, 10")
    I(f"s_lshr_b32 s{sT1}, s{sW}, 1")
    I(f"s_lshl2_add_u32 s{sT1}, s{sA}, s{sT1}")
    I(f"s_mul_i32 s{sT1}, s{sT1}, 17408")
    I(f"s_and_b32 s{sT2}, s{sW}, 1")
    if typ == 0:
        I(f"s_lshl4_add_u32 s{sT3}, s{sT2}, s{sT}")
        I(f"s_lshl_b32 s{sT3}, s{sT3}, 9")
        I(f"s_add_u32 s{sK1}, s{sT1}, s{sT3}")
        I(f"s_add_u32 s{sK1}, s{sK1}, {KVP_OFF - MB//2}")
        I(f"s_lshl1_add_u32 s{sT3}, s{sT}, s{sT2}")
        I(f"s_lshl_b32 s{sT3}, s{sT3}, 5")
        I(f"s_add_u32 s{sK2}, s{sT1}, s{sT3}")
        I(f"s_add_u32 s{sK2}, s{sK2}, {KVP_OFF + 16384 - MB//32}")
        I(f"s_lshl_b32 s{sEX}, s{sI}, 11")
        I(f"s_sub_u32 s{sEX}, s{sEX}, {MB - 3*t.SL}")
    else:
        I(f"s_add_u32 s{sK2}, s{sT1}, {KVP_OFF + 16384 - MB}")
        I(f"s_lshl_b32 s{sT2}, s{sT2}, 13")
        I(f"s_add_u32 s{sK1}, s{sT1}, s{sT2}")
        I(f"s_add_u32 s{sK1}, s{sK1}, {KVP_OFF - MB}")
        I(f"s_lshl2_add_u32 s{sT0}, s{sA}, s{sT0}")
        I(f"s_add_u32 s{sT0}, s{sT0}, {2*g}")
        I(f"s_lshl_b32 s{sEX}, s{sT0}, 10")
    I(f"v_lshlrev_b32 v{a}, 2, v{vLN}")
    I(f"s_lshl_b32 s{sT0}, s{sW}, 8")
    I(f"s_lshl_b32 s{sT1}, s{sA}, 11")
    I(f"s_add_u32 s{sT1}, s{sT1}, s{sT0}")
    I(f"s_add_u32 s{sT0}, s{sT0}, {t.WPH}")
    I(f"v_add_u32 v{vWPA}, s{sT0}, v{a}")
    I(f"s_lshr_b32 s{sT0}, s{sI}, 1")
    I(f"s_lshl1_add_u32 s{sT0}, s{sT}, s{sT0}")
    I(f"s_lshl3_add_u32 s{sT0}, s{sT0}, s{sA}")
    I(f"s_lshl_b32 s{sT0}, s{sT0}, 7")
    I(f"s_and_b32 s{sT2}, s{sI}, 1")
    I(f"s_lshl2_add_u32 s{sT0}, s{sT2}, s{sT0}")
    I(f"s_add_u32 s{sFL}, s{sT0}, {FLG + 16*typ + 8*g}")
    if typ == 0 and g == 0:
        I(f"s_cmp_eq_u32 s{sA}, 7")
        I(f"s_cselect_b32 s{sA}, 2.0, s{sHF}")
    I(f"v_mov_b32 v{b}, 0")
    if typ == 1:
        for x in p2addr(t, vLN, c, d): I(x)
    I(f"v_lshlrev_b32 v{vTCH}, 7, v{vLN}")
    if typ == 0:
        I(f"v_mov_b32 v{h}, -1")
        I(f"v_mov_b32 v{h+1}, -1")
        I(f"v_lshrrev_b32 v{c}, 1, v{vM16}")
        I(f"v_lshrrev_b32 v{d}, 5, v{vM16}")
    pstamp(P, 4)
    I("s_waitcnt lgkmcnt(0)")
    def dmy(js):
        for j in js:
            if j < 3 or typ: I(f"buffer_store_dwordx4 {v(CP,4)}, v{vM16}, {s(SWS,4)}, s{(sA if (typ, g) == (0, 0) and j < 2 else sHF) if j < 3 else sEX} offen offset:{(j%3)*1024}{CFG.get('dmm', '')}")
    if CFG["th"] & 64: dmy(CFG["dj"][0])
    if CFG.get("po"):
        I(f"buffer_load_dword v{vWPV}, v{a}, {s(SWP,4)}, s{sT1} offen")
        pdm(CFG["po"][typ][2])
    else:
        for x in dma_x(t, 1):
            for y in x: emit(P, y)
        I(f"buffer_load_dword v{vWPV}, v{a}, {s(SWP,4)}, s{sT1} offen")
        for x in stream_list(t, g)[1:CFG["pro"]]:
            for z in x:
                for y in z: emit(P, y)
    if CFG["th"] & 64: dmy(CFG["dj"][1])
    if CFG["t3"] == 2:
        I(f"s_and_b32 s{sT0}, s2, 0xf8")
        I(f"s_add_u32 s{sT0}, s{sT0}, s{sW}")
        I(f"s_mul_i32 s{sT0}, s{sT0}, {2*3072}")
        I("s_mov_b32 exec_hi, 0xffff")
        I(f"buffer_load_dword v{75 if typ else 26}, v{vTCH}, {s(SWQ,4)}, s{sT0} offen")
    if CFG["t3"] == 3:
        I(f"s_and_b32 s{sT0}, s2, 0xf8")
        I(f"s_add_u32 s{sT0}, s{sT0}, s{sW}")
        I(f"s_mul_i32 s{sT0}, s{sT0}, {2*3072}")
        I("s_mov_b32 exec_lo, 0xff00ffff")
        I("s_mov_b32 exec_hi, 0xff")
        I(f"buffer_load_dword v{75 if typ else 26}, v{vTCH}, {s(SWQ,4)}, s{sT0} offen")
    if CFG["t3"] in (1, 4):
        I(f"s_lshr_b32 s{sT0}, s2, 3")
        I(f"s_lshl2_add_u32 s{sT0}, s{sT0}, s{sI}")
        I(f"s_mul_i32 s{sT0}, s{sT0}, {4*3072}")
        I(f"v_lshlrev_b32 v{a}, 3, v{vTCH}")
        I("s_mov_b64 exec, 0xfff")
        if g or CFG["t3"] == 4: I(f"buffer_load_dword v{75 if typ else 26}, v{a}, {s(SWQ,4)}, s{sT0} offen offset:{384 if g else 896}")
    I("s_mov_b64 exec, 1")
    I(f"buffer_store_dword v{b}, off, {s(SWS,4)}, s{sFL} sc1")
    I("s_mov_b64 exec, -1")
    if typ == 0:
        I(f"buffer_store_dwordx2 {v(h,2)}, v{c}, {s(SWS,4)}, s{sK1} offen sc1")
        I("s_mov_b32 exec_lo, 0x10001")
        I("s_mov_b32 exec_hi, 0x10001")
        I(f"buffer_store_dwordx2 {v(h,2)}, v{d}, {s(SWS,4)}, s{sK2} offen sc1")
        I("s_mov_b64 exec, -1")
    for r, m in zip(MS(g), (0xaaaaaaaa, 0xcccccccc, 0xff00ff00, 0xffff0000, 0x0f0f0f0f)):
        I(f"s_mov_b32 s{r}, {m:#x}")
        I(f"s_mov_b32 s{r+1}, {(m if m != 0x0f0f0f0f else 0xf0f0f0f0):#x}")
    pstamp(P, 5)

def P2R(typ): return (28, 29, 30, 31, 26) if typ else (27, 31, 26, 28, 29)
def p2addr(t, ln, a, b):
    vWa, vRD0, vRD1 = P2R(t.typ)[:3]
    base = t.RG[5] if t.typ else PH
    return [f"v_and_b32 v{a}, 7, v{ln}", f"v_lshlrev_b32 v{a}, 4, v{a}", f"v_and_b32 v{b}, 16, v{ln}", f"v_lshlrev_b32 v{b}, 2, v{b}", f"v_xor_b32 v{a}, v{a}, v{b}",
            f"v_lshrrev_b32 v{b}, 3, v{ln}", f"v_lshl_add_u32 v{vWa}, v{b}, 10, v{a}",
            ] + ([f"v_and_b32 v{a}, 3, v{ln}"] if CFG.get("rb") else [f"v_bfe_u32 v{a}, v{ln}, 1, 1", f"v_and_b32 v{b}, 1, v{ln}", f"v_lshl_or_b32 v{a}, v{b}, 1, v{a}"]) + [f"v_lshlrev_b32 v{a}, 3, v{a}",
            f"v_bfe_u32 v{b}, v{ln}, 4, 1", f"v_lshl_add_u32 v{a}, v{b}, 5, v{a}", f"v_and_b32 v{b}, 8, v{ln}", f"v_lshl_add_u32 v{a}, v{b}, 3, v{a}",
            f"v_bfe_u32 v{b}, v{ln}, 2, 2", f"v_lshl_add_u32 v{a}, v{b}, 7, v{a}", f"v_lshrrev_b32 v{b}, 5, v{ln}", f"v_lshl_add_u32 v{a}, v{b}, 10, v{a}",
            f"v_lshl_add_u32 v{a}, s{sMW}, 1, v{a}", f"v_xor_b32 v{b}, 64, v{a}", f"v_add_u32 v{vRD0}, {base}, v{a}", f"v_add_u32 v{vRD1}, {base}, v{b}"]
def MS(g): return [0, SWP, SWP + 2, (SWG if g else SWU), (SWG if g else SWU) + 2]
def softmax(W, O, m=vMX, sm=vSM):
    o = [f"v_max_f32 v{m}, v{W}, v{W+1}", f"v_max_f32 v{sm}, v{W+2}, v{W+3}"]
    for k in range(4, 16, 4):
        o.append(f"v_max3_f32 v{m}, v{m}, v{W+k}, v{W+k+1}")
        o.append(f"v_max3_f32 v{sm}, v{sm}, v{W+k+2}, v{W+k+3}")
    o.append(f"v_max_f32 v{m}, v{m}, v{sm}")
    o.append(f"v_mul_f32 v{m}, v{m}, v{vC1}")
    for k in range(16): o.append(f"v_fma_f32 v{W+k}, v{W+k}, -v{vC1}, v{m}")
    for k in range(16):
        o.append(f"v_exp_f32 v{W+k}, v{W+k}")
        if k == 2: o.append(f"v_add_f32 v{sm}, v{W}, v{W+1}")
        if k > 2: o.append(f"v_add_f32 v{sm}, v{sm}, v{W+k-1}")
    o.append(f"v_add_f32 v{sm}, v{sm}, v{W+15}")
    o.append(f"v_rcp_f32 v{sm}, v{sm}")
    for k in range(8):
        o.append(f"v_mul_f32 v{W+2*k}, v{W+2*k}, v{sm}")
        o.append(f"v_mul_f32 v{W+2*k+1}, v{W+2*k+1}, v{sm}")
        o.append(f"v_cvt_pk_bf16_f32 v{O+k}, v{W+2*k}, v{W+2*k+1}")
    return o

def glu(G, U, n):
    o = []
    for k in range(n): o.append(f"v_mul_f32 v{G+k}, v{G+k}, v{vC1}")
    for k in range(n): o.append(f"v_exp_f32 v{G+k}, v{G+k}")
    for k in range(n): o.append(f"v_fma_f32 v{G+k}, v{G+k}, v{vSTD}, v{vSTD}")
    for k in range(n): o.append(f"v_rcp_f32 v{G+k}, v{G+k}")
    for k in range(n): o.append(f"v_mul_f32 v{G+k}, v{G+k}, v{U+k}")
    for k in range(n // 2): o.append(f"v_cvt_pk_bf16_f32 v{G+k}, v{G+2*k}, v{G+2*k+1}")
    return o

def publish(c, t0, t1, addr, blk, tag):
    return [f"v_and_b32 v{t0}, s{sHI}, v{c}", f"v_sub_f32 v{t1}, v{c}, v{t0}", f"v_cvt_pk_bf16_f32 v{t0}, v{t0}, v{t1}",
            f"ds_write_b32 v{addr}, v{t0} offset:{CSP - MB + blk*1024} #{tag}"]

def stream(P, typ, g, name):
    global vST, vSQ, vU, vSTW, vSTR, vCW
    I = P.I; t = T(typ); D = 3; sn = f"{name}_{typ}{g}"
    o_ = AV if typ else 83
    vST, vSQ, vU, vSTW, vSTR = o_, o_ + 1, [o_ + 2, o_ + 3, o_ + 4, o_ + 5], o_ + 6, o_ + 7
    vCW = AV + 8 if typ else 94
    PB = CFG["qpub"] if typ else "v1"
    if g and CFG.get("pri"): I(f"s_setprio {CFG['pri']}")
    setup(P, t, g)
    S = Sched(D)
    F = "v[32:35]"
    def mm(acc, x, first): return lambda f: f"v_mfma_f32_32x32x16_bf16 {v(acc,16)}, {f}, {v(x,4)}, {'0' if first else v(acc,16)}"
    def cm(c, first): return lambda f: f"v_mfma_f32_16x16x32_bf16 {v(c,4)}, {v(CP,4)}, {f}, {'0' if first else v(c,4)}"
    def tr(ad, im, sec): return [("tr", ad, im), ("tr2", ad, im + sec)]
    main = []; first = {}
    P1 = {}; SQ = {}
    for st in range(8):
        hi, so = t.sp(t.wp(st), t.WB)
        for p in range(4):
            it = Item(mm(AK, XR(st, p), st == 0 and p == 0), tr(vAA[hi][p], so, 512), cm(CD[0], st == 0) if p == 0 else None, name=f"{st}p{p}")
            if p == 0:
                it.bar = st; first[st] = it
                xh, xo = t.sp(t.xp(st), t.XB)
                if st < 2: it.pre = [f"ds_read_b128 {v(XR(st,q),4)}, v{vAX[xh][q]} offset:{xo}" for q in range(4)]
            main.append(it); P1[st, p, 0] = it
        for xs in CFG["sq"][st]:
            for q in (2*g, 2*g+1):
                SQ[xs, q] = Item((lambda x, fi: lambda f: f"v_mfma_f32_32x32x16_bf16 {v(GA[2],16)}, {v(x,4)}, {v(x,4)}, {'0' if fi else v(GA[2],16)}")(XR(xs, q), not SQ), name=f"sq{xs}{q}")
                if xs == 7: main.insert(main.index(P1[st, CFG["sq7"], 0]), SQ[xs, q])
                else: main.append(SQ[xs, q])
    V = {}
    if typ == 0:
        for c in range(8):
            hi, so = t.sp(t.vp(c), t.WB)
            for p in range(4): V[c, p] = Item(mm(AV, XR(c, p), c == 0 and p == 0), tr(vAA[hi][p], so, 512), cm(CD[1], False) if p == 0 else None, name=f"v{c}p{p}")
        for c in (1, 3, 6):
            it = V[c, 0] if c > 1 else V[CFG["v1"]]
            it.bar = f"v{c}"; first[f"v{c}"] = it
        main += [V[c, p] for c in range(6) for p in range(4)] + [V[6,0], V[7,0]] + [V[c, p] for c in (6, 7) for p in (1, 2, 3)]
    nb = 3
    blk = [3*g, 3*g+1, 3*g+2] if typ else [3*g, 3*g+1, 2]
    def gi(st, p, b):
        o = t.g(st)
        if o >= 3 * t.SL: o -= 3 * t.SL
        fst = st == 8 and (p == 0 or (typ == 0 and b == 2 and p == 2*g))
        sm = cm(CD[b], st == 8) if p == 0 else None
        return Item(mm(GA[b], XR(st-8, p), fst), tr(vAG[p], o + blk[b]*32, 4*t.RB), sm, name=f"{st}p{p}b{b}")
    def has(p, b): return typ == 1 or b < 2 or (p >> 1) == g
    G = {}
    for st in range(8, 16):
        for p in range(4):
            for b in range(nb):
                if has(p, b): G[st, p, b] = gi(st, p, b)
    for st in range(8, 13):
        l = [G[st, p, b] for p in range(4) for b in range(nb) if has(p, b)]
        l[0].bar = st; first[st] = l[0]; main += l
    first[PB].pre = [f"ds_read_b128 {v(vMU,4)}, v{vSTR}"]
    def corr(acc, cb, nbar, nm):
        return Item(mm(acc, vMU, False), [("b128", vM16, CSP - MB + cb*1024)], needbar=nbar, name=nm)
    C = [corr(GA[b], blk[b], "cs", f"corr{b}") for b in range(nb)]
    rest = lambda b, sts: [G[st, p, b] for st in sts for p in (1, 2, 3)]
    if typ == 0:
        sh = lambda st: [G[st, 2*g, 2], G[st, 2*g+1, 2]]
        t13 = [G[13,0,0], G[13,0,1]] + sh(13) + rest(0, [13])
        t15 = [G[14,0,0], G[14,0,1]] + sh(14) + sh(15) + [G[15,0,0], G[15,0,1]]
        r0 = rest(0, [14, 15]); r1 = rest(1, [13, 14, 15])
        tail = r0[:5] + [C[2]] + r0[5:] + [C[0]] + r1 + [C[1]]
        C[2].bar = "cs"
    else:
        t13 = [G[13,0,b] for b in range(3)] + rest(0, [13])
        t15 = [G[st,0,b] for st in (14, 15) for b in range(3)]
        r0 = rest(0, [14, 15])
        tail = r0[:5] + [C[0]] + r0[5:] + rest(1, [13, 14, 15]) + [C[1]] + rest(2, [13, 14, 15]) + [C[2]]
        C[0].bar = "cs"
    t13[0].bar = 13; t15[0].bar = 15; first[13] = t13[0]; first[15] = t15[0]
    main += t13 + t15 + tail
    barwait = {0: ["x0", "w0"], 1: ["x1", "w1", "x2"], 7: ["w7"], 15: ["w14", "w15"], "cs": []}
    for st in range(2, 7): barwait[st] = [f"w{st}", f"x{st+1}"]
    for st in range(8, 14): barwait[st] = [f"w{st}"]
    barlg = {PB: ["pub"], "cs": ["cs"]}
    BO = list(range(14))
    if typ == 0:
        barwait[7] = ["w7", "v0"]; barwait["v1"] = ["v1", "v2"]; barwait["v3"] = ["v3", "v4", "v5"]; barwait["v6"] = ["v6", "v7"]
        barlg[8] = ["pubv"]
        BO = list(range(8)) + ["v1", "v3", "v6"] + list(range(8, 14))
    sl = stream_list(t, g); pro = CFG["pro"]
    dm = {b: [] for b in BO[:-1]}
    if CFG.get("po"):
        pro = 14
        for b, l in enumerate(CFG["po"][typ][3:]):
            for nm in l.split(): dm[b] += (dma_x if nm[0] == "x" else dma_w)(t, int(nm[1]))
    if typ == 0:
        for k in range(pro, 14): dm[max(0, (k - 3) // 2)] += sl[k]
        for b, l in CFG["vdm"].items():
            for c in l: dm[b] += dma_v(t, c)
        dm[CFG["g8"]] += dma_g(t, g, 8)
        dm["v3"] += dma_g(t, g, 9); dm["v6"] += dma_g(t, g, 10)
        for b in range(8, 13): dm[b] = dma_g(t, g, b + 3)
    else:
        ql = CFG.get("qlead", 2)
        for k in range(pro, 14): dm[max(0, (k + 1 - 2*ql) // 2)] += sl[k]
        if ql == 3:
            for b in range(5, 13): dm[b] += dma_g(t, g, b + 3)
        else:
            g8 = dma_g(t, g, 8); g9 = dma_g(t, g, 9); g10 = dma_g(t, g, 10)
            dm[5] += g8[:2]; dm[6] = g8[2:] + g9[:2]; dm[7] = g9[2:] + g10[:2]; dm[8] = g10[2:] + dma_g(t, g, 11)
            for b in range(9, 13): dm[b] += dma_g(t, g, b + 3)
    if CFG["b0end"]: dm[0] = [sum(dm[0], [])] if dm[0] else []
    nxt = lambda b: BO[BO.index(b) + 1]
    heavy = []
    def hok(n):
        if not CFG["hstag"]: return True
        if n % 2 != g or n + 1 in S.bs.values(): return False
        return not any(dpos(b, j, len(dm[b]), gg)() == n for b in dm for j in range(len(dm[b])) for gg in (0, 1))
    def dpos(b, j, k, g=g):
        def f():
            L = S.bs[nxt(b)] - S.bs[b]; o = S.bs[b]
            if b == 0 and CFG['b0end']: return o + L - 1
            if b == 0: return o + j if typ else o + min(L - 2, 2 * j + g) if k <= 4 else o + j
            if 2 * k <= L: return o + min(L - 2, int((j + 0.5 * g) * L / k + 0.01))
            return o + min(L - 1, int((j + 0.5 * g) * L / k + 0.01))
        return f
    for b in BO[:-1]:
        for j, x in enumerate(dm[b]): heavy.append(S.add(x, after=b, before=nxt(b), kind="misc", lo=dpos(b, j, len(dm[b])) if CFG["pace" if BO.index(b) < (6 if typ else 8) else "paceg"] or b == 0 else None))
    if g == 1:
        S.add(f"v_mov_b32 v95, s{sXV}", after=2)
        S.add([f"s_cmp_eq_u32 s{sI}, 0", "s_cselect_b32 exec_lo, 1, 0", "s_mov_b32 exec_hi, 0", f"s_and_b32 s{sT3}, s2, 7", f"s_lshl_b32 s{sT3}, s{sT3}, 5",
               f"buffer_atomic_add v95, off, {s(SDB,4)}, s{sT3} sc1", "s_mov_b64 exec, -1"], after=CFG["atm"][typ], lo=(first[7], CFG["atm"][2+typ]), before=8)
    for p in range(4):
        bs = [b for b in range(nb) if has(p, b)]
        S.add(f"v_add_u32 v{vAG[p]}, {3*t.SL}, v{vAG[p]}", lo=(G[10,p,bs[-1]], -D), hi=(G[11,p,0], -D-1))
        nx = G[13,p,0] if not (typ == 0 and p and (p >> 1) == g) else G[13,p,2]
        S.add(f"v_subrev_u32 v{vAG[p]}, {3*t.SL}, v{vAG[p]}", lo=(G[12,p,bs[-1]], -D), hi=(nx, -D-1))
    ns = CFG["ns"][typ]; u = 0; fs = True
    S.node(P1[0,0,0], cm(CD[0], True)(F))
    sp = [2*g, 2*g+1]
    for st in range(8):
        if 1 <= st < 7:
            hi, so = t.sp(t.xp(st + 1), t.XB)
            for q in sp + [x for x in range(4) if x not in sp]:
                S.add(f"ds_read_b128 {v(XR(st+1,q),4)}, v{vAX[hi][q]} offset:{so}", after=st, lo=(first[st], (-2 if st > 1 else 0) if typ else -3), hi=(P1[st+1,q,0], -2), before=None if typ else st + 1)
        if st == 2:
            S.add(f"ds_write_b32 v{vWPA}, v{vWPV}", after=2)
            S.add(f"v_xor_b32 v{vWPV}, 0x80008000, v{vWPV}", after=2)
            S.add(f"ds_write_b32 v{vWPA}, v{vWPV} offset:2048", after=2, before=7)
    for st in range(8):
        for n, q in enumerate(sp):
            if n < ns[st]:
                S.add(cm(CD[2], fs)(v(XR(st, q), 4)), lo=(first[st], 1) if st < 2 else None); fs = False
    if typ == 1:
        S.add(f"v_mov_b32 v{vST}, v{CD[2]}", hi=(first[8], -1))
        S.node(P1[7,0,0], cm(CD[0], False)(F))
        S.adds(publish(CD[0], AV+9, AV+10, vCW, g, "pub"), hi=(first[8], -1))
    for (xs, q), it in SQ.items(): S.node(it, it.mf(F))
    Q_ = GA[2]; ms = MS(g)
    for lv, (stp, dd) in enumerate(((2, 1), (4, 2), (8, 4), (16, 8))):
        S.adds([f"v_cndmask_b32 v{Q_+k}, v{Q_+k}, v{Q_+k+dd}, {s(ms[lv],2)}" for k in range(0, 16, stp)])
    S.add(f"v_cndmask_b32 v{vSQ}, 0, v{Q_}, {s(ms[4],2)}")
    if typ == 0:
        S.add(f"v_mov_b32 v{vST}, v{CD[2]}")
        S.node(P1[7,0,0], cm(CD[0], False)(F))
        S.adds(publish(CD[0], 85, 86, vCW, g, "pub"), before=PB)
    else: S.node(G[8,0,2], mm(GA[2], XR(0,0), True)(F))
    S.add(f"v_permlane32_swap_b32 v{vST}, v{vSQ}")
    S.adds([f"v_add_f32 v{vST}, v{vST}, v{vSQ}", f"ds_write_b32 v{vSTW}, v{vST} #pub"], before=PB)
    sWQ2, sWO2, sWK2, sWZ2 = range(SWG if g else SWU, (SWG if g else SWU) + 4)
    J1, J2 = (75, 77) if typ else (26, 24)
    if CFG["t3"] == 3:
        S.add([f"s_and_b32 s{sT0}, s2, 0xf8", f"s_add_u32 s{sT0}, s{sT0}, s{sW}", f"s_mul_i32 s{sT0}, s{sT0}, {2*3072}", "s_mov_b32 exec_lo, 0xff0000", "s_mov_b32 exec_hi, 0xff00",
               f"buffer_load_dword v{J2}, v{vTCH}, {s(SWQ,4)}, s{sT0} offen", "s_mov_b64 exec, -1"], after=CFG["t3b"], before=CFG["t3b"] + 1)
    S.add([f"s_mov_b32 s{SOUT}, s{SWO+2}", f"s_mov_b32 s{SOUT+1}, s{SWO+3}", f"s_mov_b32 s{SOUT+2}, 2097152", f"s_mov_b32 s{SWO+2}, {512*1024}", f"s_mov_b32 s{SWO+3}, 0x20000"])
    if CFG["th"] & 1:
        S.add([f"s_add_u32 s{sT1}, s{sHF}, {MB}", "s_mov_b64 exec, 0xffffff", f"buffer_load_dword v{J1}, v{vTCH}, {s(SWS,4)}, s{sT1} offen sc1", "s_mov_b64 exec, -1"], after=CFG["thb"], before=8)
        if typ: S.add([f"s_add_u32 s{sT1}, s{sEX}, {MB}", "s_mov_b64 exec, 0xffff", f"buffer_load_dword v76, v{vTCH}, {s(SWS,4)}, s{sT1} offen sc1", "s_mov_b64 exec, -1"], after=CFG["thb"], before=8)
    if CFG["th"] & 4:
        S.add([f"s_add_u32 s{sT1}, s{sHF}, {MB}", "s_mov_b64 exec, 0xffffff", f"buffer_store_dword v{vTCH}, v{vTCH}, {s(SWS,4)}, s{sT1} offen", "s_mov_b64 exec, -1"], after=CFG["thb"], before=8)
        if typ: S.add([f"s_add_u32 s{sT1}, s{sEX}, {MB}", "s_mov_b64 exec, 0xffff", f"buffer_store_dword v{vTCH}, v{vTCH}, {s(SWS,4)}, s{sT1} offen", "s_mov_b64 exec, -1"], after=CFG["thb"], before=8)
    if CFG["th"] & 32:
        z_ = (typ, g) == (0, 0); dm_ = CFG.get('dmm', '')
        S.add([f"v_lshrrev_b32 v{J1}, 1, v{vTCH}", f"v_add_u32 v{J1}, {MB}, v{J1}", f"s_mov_b32 exec_hi, {0 if z_ else 0xffff}", f"buffer_store_dword v{J1}, v{J1}, {s(SWS,4)}, s{sA if z_ else sHF} offen{dm_}"] +
              (["s_mov_b32 exec_hi, 0", f"buffer_store_dword v{J1}, v{J1}, {s(SWS,4)}, s{sEX} offen{dm_}"] if typ else []) + ["s_mov_b64 exec, -1"], after=CFG["thb"], before=8)
    NV = CFG.get("nv")
    NVP = NV == 1 or "pz" in CFG or (NV == 3 and typ) or (NV == 4 and not typ)
    def dummies():
        PZ = (AV if typ else AK + 12) if NVP else CP
        if NVP: S.adds([f"v_mov_b32 v{PZ+k}, {x}" for k, x in enumerate(CFG.get("pz", (0, 0, 0, 0))) if x is not None])
        for j, b in enumerate(CFG["thl"][typ]):
            if b is None: continue
            S.add(f"buffer_store_dwordx4 {v(PZ,4)}, v{vM16}, {s(SWS,4)}, s{(sA if (typ, g) == (0, 0) and j < 2 else sHF) if j < 3 else sEX} offen offset:{(j%3)*1024}{CFG.get('dmm', '')} #dmy", after=b, lo=(first[b], CFG["tho"] + 2*g), kind="misc")
    if CFG["th"] & 8 and (typ or not NVP): dummies()
    if CFG["th"] & 2 and g == 0:
        S.add([f"s_and_b32 s{sT0}, s2, 7", f"s_lshr_b32 s{sT1}, s2, 6", f"s_lshl2_add_u32 s{sT0}, s{sT0}, s{sT1}", f"s_mul_i32 s{sT1}, s{sT0}, {236*1024}", f"s_add_u32 s{sT1}, s{sT1}, {MB}",
               f"s_lshl_b32 s{sT0}, s{sI}, 16", f"s_add_u32 s{sT1}, s{sT1}, s{sT0}",
               f"v_lshlrev_b32 v{J2}, 5, v{vTCH}", "s_mov_b64 exec, 0xffff", f"buffer_load_dword v{J2}, v{J2}, {s(SWS,4)}, s{sT1} offen sc1", "s_mov_b64 exec, -1"], after=CFG["thb"], before=8)
    if typ == 1 and "notouch" not in k1.KN:
        S.add([f"s_lshl3_add_u32 s{sT0}, s2, s{sW}", f"s_sub_u32 s{sT0}, s{sT0}, 1024", f"s_lshl_b32 s{sT1}, s{sT0}, 9", "s_mov_b64 exec, 15",
               f"buffer_load_dword v26, v{vTCH}, {s(SWO,4)}, s{sT1} offen", "s_mov_b64 exec, -1"], after=CFG["tch"], before=8)
        S.add([f"s_mul_i32 s{sT1}, s{sT0}, 1408", "s_mov_b64 exec, 0x7ff",
               f"buffer_load_dword v31, v{vTCH}, {s(SWD,4)}, s{sT1} offen", "s_mov_b64 exec, -1"], after=CFG["tch"], before=8)
    if CFG["tx"][typ] is not None:
        J3, J4, vT2 = (78, 79, 77) if typ else (91, 92, vTCH)
        S.add(f"v_lshlrev_b32 v{vT2}, 3, v{vTCH}", before=8)
        kw = dict(after=CFG["tx"][typ], lo=(first[CFG["tx"][typ]], CFG["tx"][2] + 2*g))
        S.add([f"s_and_b32 s{sT0}, s2, 0x78", f"s_add_u32 s{sT0}, s{sT0}, s{sW}", f"s_mul_i32 s{sT1}, s{sT0}, {11*1024}", "s_mov_b64 exec, 0x7ff",
               f"buffer_load_dword v{J4}, v{vT2}, {s(SWD,4)}, s{sT1} offen offset:384", f"s_lshl_b32 s{sT1}, s{sT0}, 12", "s_mov_b64 exec, 15",
               f"buffer_load_dword v{J3}, v{vT2}, {s(SWO,4)}, s{sT1} offen offset:384", "s_mov_b64 exec, -1"], **kw)
    WX = CFG.get("wx"); sW2 = sWZ2 if WX else sW
    S.add([f"s_and_b32 s{sT0}, s2, 0x38", f"s_cmp_eq_u32 s{sT0}, {(0x18 if typ else 0x38) if CFG['swp'] else 1}", f"s_cselect_b32 s{sT2}, 0xa0, 0", f"s_xor_b32 s{sT2}, s{sT2}, s2",
           f"s_and_b32 s{sT0}, s2, 7", f"s_lshr_b32 s{sT1}, s{sT2}, 6", f"s_lshl2_add_u32 s{sT0}, s{sT0}, s{sT1}", f"s_bfe_u32 s{sT1}, s{sT2}, 0x30003", f"s_lshl_b32 s{sT1}, s{sT1}, 7"] + ([f"s_lshr_b32 s{sWZ2}, s{sT1}, {WX[0]}", f"s_and_b32 s{sWZ2}, s{sWZ2}, {WX[1]}", f"s_xor_b32 s{sWZ2}, s{sWZ2}, s{sW}"] if WX else []) + [
           f"s_lshl3_add_u32 s{sFR}, s{sT0}, s{sW2}", f"s_lshl_b32 s{sFR}, s{sFR}, 7", f"s_add_u32 s{sFR}, s{sFR}, {FLG}",
           f"s_lshl_b32 s{sXO}, s{sT0}, 16", f"s_add_u32 s{sXO}, s{sXO}, s{sT1}", f"s_lshl3_add_u32 s{sXO}, s{sI4}, s{sXO}"] + ([f"s_add_u32 s{sXO}, s{sXO}, 32768"] if g else []), lo=(first[8], 1))
    S.add([f"s_mul_i32 s{sHO}, s{sT0}, {236*1024}", f"s_mul_i32 s{sT2}, s{sW2}, 6144", f"s_add_u32 s{sHQ}, s{sHO}, s{sT2}", f"s_add_u32 s{sHQ}, s{sHQ}, 32768",
           f"s_mul_i32 s{sT2}, s{sW2}, 5", f"s_min_u32 s{sT2}, s{sT2}, 33", f"s_add_u32 s{sT2}, s{sT2}, 48", f"s_lshl_b32 s{sWK2}, s{sT2}, 14", f"s_add_u32 s{sWK2}, s{sWK2}, s{sT1}",
           f"s_lshl_b32 s{sT2}, s{sT2}, 10", f"s_add_u32 s{sHK}, s{sHO}, s{sT2}", f"s_add_u32 s{sHK}, s{sHK}, 32768", f"s_lshl_b32 s{sT2}, s{sW2}, 12", f"s_add_u32 s{sHO}, s{sHO}, s{sT2}"], lo=(first[8], 2))
    S.add([f"s_mul_i32 s{sWQ2}, s{sW2}, {6*16384}", f"s_add_u32 s{sWQ2}, s{sWQ2}, s{sT1}", f"s_lshl_b32 s{sWO2}, s{sW2}, 16", f"s_add_u32 s{sWO2}, s{sWO2}, s{sT1}",
           f"s_cmp_eq_u32 s{sW2}, 7", f"s_cselect_b32 s{sWZ2}, 0x2000000, s{sWK2}"] +
          ([f"s_lshl_b32 s{sRB}, s{sI}, 14"] if g == 0 else
           [f"s_cmp_lt_u32 s{sI}, {2 if typ else 1}", f"s_cselect_b32 s{sRB}, 0, {t.RG[7] - t.RG[4] - 49152}", f"s_lshl_b32 s{sT2}, s{sI}, 14", f"s_add_u32 s{sRB}, s{sRB}, s{sT2}", f"s_add_u32 s{sRB}, s{sRB}, {t.RG[4]}"]) +
          [f"s_sub_u32 s{sRB}, s{sRB}, {MB}"], lo=(first[8], 3))
    m, q = vMU, vC1
    l8 = (first[PB], -1)
    S.adds([f"v_add_f32 v{m}, v{vMU}, v{vMU+2}", f"v_add_f32 v{q}, v{vMU+1}, v{vMU+3}",
            f"v_mul_f32 v{vSTD}, {fbits(-1.0/512)}, v{m}", f"v_mul_f32 v{q}, {fbits(1.0/512)}, v{q}"], lo=l8)
    S.adds([f"v_cvt_pk_bf16_f32 v{vMU+k}, v{vSTD}, v{vSTD}" for k in range(4)])
    S.adds([f"v_fma_f32 v{q}, -v{vSTD}, v{vSTD}, v{q}", f"v_max_f32 v{q}, 0, v{q}", f"v_add_f32 v{q}, {fbits(1e-5)}, v{q}",
            f"v_rsq_f32 v{vRS}, v{q}", f"v_mul_f32 v{vSTD}, v{q}, v{vRS}", f"v_mul_f32 v{vC1}, {fbits(-LOG2E)}, v{vRS}"])
    ex = []
    S.node(P1[7,3,0], mm(AK, XR(7,3), False)(F))
    ex.append(S.node(corr(AK, g, PB, "corrK"), mm(AK, vMU, False)(F)))
    def w64(w, x, **k):
        return S.add([w] + ([x] if x else []), kind="valu", cost=CFG["wc"] + (1 if x else 0), first=True, **k)
    KB = AK if typ else 96
    S.adds([f"v_cvt_pk_bf16_f32 v{KB+k}, v{AK+2*k}, v{AK+2*k+1}" for k in range(8)])
    pb = "ph"
    if typ == 0:
        W = [GA[2], AK]
        S.node(V[7,0], cm(CD[1], False)(F))
        S.adds(publish(CD[1], 83, 84, vCW, 2 + g, "pubv"), before=8)
        for rho in range(2):
            pk = mm(W[rho], KB + 4*rho, True)
            ex.append(S.node(Item(pk, tr(vWF, 512*rho, 128), needbar=PB, name=f"phi{rho}"), pk(F)))
        for rho in range(2):
            S.adds(softmax(W[rho], W[rho], *((87, 88), (vSM, vWF))[rho]))
            for b_ in range(2):
                w64(f"ds_write_b128 v{vPH}, {v(W[rho]+4*b_,4)} offset:{rho*12288} #ph", None if (rho, b_) == (1, 1) else f"v_xor_b32 v{vPH}, 16, v{vPH}", after="v3", before=pb)
        if NVP: dummies()
        S.node(G[8,0,0], mm(GA[0], XR(0,0), True)(F)); S.node(G[8,0,1], mm(GA[1], XR(0,0), True)(F)); S.node(G[8,2*g,2], mm(GA[2], XR(0,2*g), True)(F))
        S.node(V[7,3], mm(AV, XR(7,3), False)(F))
        ex.append(S.node(corr(AV, 2 + g, 8, "corrV"), mm(AV, vMU, False)(F)))
        for k in range(8):
            S.adds([f"v_mul_f32 v{AV+2*k}, v{AV+2*k}, v{vRS}", f"v_mul_f32 v{AV+2*k+1}, v{AV+2*k+1}, v{vRS}",
                    f"v_cvt_pk_bf16_f32 v{AV+k}, v{AV+2*k}, v{AV+2*k+1}"])
            if k & 3 == 3: w64(f"ds_write_b128 v{vKB}, {v(AV+k-3,4)} offset:{(k>>2)*12288+64} #ph", None, before=pb)
        S.node(G[8,3,1], mm(GA[1], XR(0,3), False)(F)); S.node(G[8,2*g+1,2], mm(GA[2], XR(0,2*g+1), False)(F))
        W = [AV, XR(0, 0)]
    else:
        for rho in range(2):
            pk = mm(AV, AK + 4*rho, True)
            ex.append(S.node(Item(pk, tr(vWF, 512*rho, 128), needbar=8, name=f"phi{rho}"), pk(F)))
            S.adds(softmax(AV, AK + 8 if rho == 0 else AV))
    if typ == 0:
        pi = main[main.index(first[CFG["phbar"][0]]) + CFG["phbar"][1]]
        if pi.bar is None: pi.bar = pb; barwait[pb] = []
        else:
            for o in S.ops:
                if o.before == pb: o.before = pi.bar
            pb = pi.bar
        barlg[pb] = barlg.get(pb, []) + ["ph"]
        barlg[CFG["wb"][0]] = barlg.get(CFG["wb"][0], []) + ["kvr"]
        DK, DZ, ON = AK, AK + 4, AK + 8
        S.adds([f"v_mov_b32 v{ON+k}, 0x3f803f80" for k in range(4)])
        S.adds([f"v_lshrrev_b32 v{AK+12}, 1, v{vM16}", f"v_lshrrev_b32 v{AK+13}, 5, v{vM16}"])
        S.add([f"s_and_b32 s{sT3}, s{sI}, 1", f"s_lshl_b32 s{sT3}, s{sT3}, 5"], lo=(first[8], 0))
        S.add(f"v_subrev_u32 v{vPH}, s{sT3}, v{vKA}")
        for u4 in range(4):
            A0 = W[u4 >> 1] + 8*(u4 & 1); B0 = A0 + 4; o = u4 * 3072
            S.add([f"ds_read_b64_tr_b16 {v(A0,2)}, v{vKA} offset:{o}", f"ds_read_b64_tr_b16 {v(A0+2,2)}, v{vKA} offset:{o+768}"], after=pb)
            S.add([f"ds_read_b64_tr_b16 {v(B0,2)}, v{vPH} offset:{o+64}", f"ds_read_b64_tr_b16 {v(B0+2,2)}, v{vPH} offset:{o+768+64} #kvr"], after=pb, before=CFG["wb"][0])
            na = f"v_mfma_f32_16x16x32_bf16 {v(DZ,4)}, {v(A0,4)}, {v(ON,4)}, {'0' if u4 == 0 else v(DZ,4)}"
            nb_ = f"v_mfma_f32_16x16x32_bf16 {v(DK,4)}, {v(A0,4)}, {v(B0,4)}, {'0' if u4 == 0 else v(DK,4)}"
            S.adds([na, nb_] if u4 < 3 else [nb_, na])
        S.adds([f"v_cvt_pk_bf16_f32 v{DK}, v{DK}, v{DK+1}", f"v_cvt_pk_bf16_f32 v{DK+1}, v{DK+2}, v{DK+3}"])
        kvst = S.add(f"buffer_store_dwordx2 {v(DK,2)}, v{AK+12}, {s(SWS,4)}, s{sK1} offen sc1 #kvs", kind="misc")
        S.adds([f"v_cvt_pk_bf16_f32 v{DZ}, v{DZ}, v{DZ+1}", f"v_cvt_pk_bf16_f32 v{DZ+1}, v{DZ+2}, v{DZ+3}"])
        S.add(["WAITVM kvs"] * CFG.get("zw", 1) + ["s_mov_b32 exec_lo, 0x10001", "s_mov_b32 exec_hi, 0x10001", f"buffer_store_dwordx2 {v(DZ,2)}, v{AK+13}, {s(SWS,4)}, s{sK2} offen sc1", "s_mov_b64 exec, -1"],
              ok=lambda n: kvst.slot is not None and n >= kvst.slot + CFG["zd"])
    vWa, vRD0, vRD1, vFA, vFL = P2R(typ)
    KS = [("q", 0), ("q", 3), ("q", 1), ("q", 4), ("q", 2), ("q", 5)] + [("o", j) for j in range(4)] + [("k", 2), ("k", 0), ("k", 3), ("k", 1), ("k", 4)]
    if CFG.get("ko", (0, 0))[typ]: KS = KS[:6] + KS[10:] + KS[6:10]
    NS = 2 if typ else 3; NR = 10 if typ else 12
    WR = [128 + 8*k for k in range(10)] if typ else [128 + 8*k for k in range(8)] + [AV, AV + 8, 192, 200]
    WR += WR[:15 - NR]
    RGN = [6 + k % 2 for k in range(12)] + [4, 5, 3] if typ else [5 + k % 3 for k in range(15)]
    rbase = t.RG[5] if typ else PH
    def wdma(k):
        ty, j = KS[k]
        b_ = {"q": sWQ2, "o": sWO2, "k": sWZ2 if j < 2 else sWK2}[ty]; R_ = s(SWO if ty == "o" else SWD, 4)
        return [[f"s_lshl1_add_u32 m0, s{sMW}, {t.RG[RGN[k]]}", f"s_add_u32 s{sO1}, s{b_}, {j*16384}", f"buffer_load_dwordx4 v{vWa}, {R_}, s{sO1} offen lds #W{k}"],
                [f"s_lshl1_add_u32 m0, s{sMW}, {t.RG[RGN[k]]}", f"s_add_u32 s{sO1}, s{b_}, {j*16384 + 7168}", f"buffer_load_dwordx4 v{vWa}, {R_}, s{sO1} offen offset:1024 lds #W{k}"]]
    def wread(k, ad=(vRD0, vRD1), base=rbase):
        o = t.RG[RGN[k]] - base
        return [[f"WAITVM W{k}"] * (1 - cb) * ("noxw" not in k1.KN) + [f"ds_read_b64_tr_b16 {v(WR[k]+4*cb,2)}, v{ad[cb]} offset:{o}", f"ds_read_b64_tr_b16 {v(WR[k]+4*cb+2,2)}, v{ad[cb]} offset:{o+512} #X{k}"] for cb in range(2)]
    if typ == 0:
        S.add(f"v_bfe_u32 v{AK+14}, v{vM16}, 4, 6")
        S.adds(p2addr(t, AK + 14, AK + 15, vRD1))
    Dk = {}; Xk = {}
    def aft(dd, k, l): return lambda n: dd[k].slot is not None and n >= dd[k].slot + l
    for k in range(14 if typ else 15):
        if k in CFG.get("dd", ((), ()))[typ]: continue
        wd_ = wdma(k)
        if typ and k >= 12: kw = dict(after=13 if k == 12 else 15)
        elif k < NS: kw = dict(after=CFG["wb"][typ])
        else: kw = dict(ok=aft(Xk, k - NS, CFG["wg"])); wd_[0] = [f"WAITLG X{k-NS}"] + wd_[0]
        for x in wd_:
            Dk[k] = S.add(x, kind="misc", **kw); Dk[k].R -= {("s", 124), ("s", sO1)}; Dk[k].W -= {("s", 124), ("s", sO1)}; Dk[k].R.add(("x", 9 + (typ and k >= 12))); Dk[k].W.add(("x", 9 + (typ and k >= 12)))
        if k < NR:
            lo = (G[8 + (WR[k] - 128) // 16, 3, nb - 1 if has(3, nb - 1) else 1], 0) if WR[k] >= 128 else None
            for x in wread(k): Xk[k] = S.add(x, kind="misc", ok=aft(Dk, k, CFG["wl"]), lo=lo)
    S.adds([f"v_lshrrev_b32 v{vFA}, 2, v{vM16}", f"v_and_b32 v{vFA}, 28, v{vFA}"])
    vCT = 27 if typ else 30
    if CFG["th"] & 16:
        J = 76 if typ else AK + 12; b_ = CFG["thr"][typ]
        S.add([f"s_mov_b32 s{sT1}, {(-7*MB) & 0xffffffff}", f"v_lshl_add_u32 v{J}, v{vM16}, 3, s{sT1}"] +
              ([f"s_sub_u32 s{sT1}, s{sEX}, s{sHF}", f"s_sub_u32 s{sT1}, s{sT1}, 4096", "s_mov_b32 exec_lo, 0", f"v_add_u32 v{J}, s{sT1}, v{J}", "s_mov_b32 exec_lo, 0xffffff", "s_mov_b32 exec_hi, 0xffff"] if typ else
               [f"s_mov_b64 exec, {0xffffff if g else 0xffff}"]) +
              [f"buffer_load_dword v{J}, v{J}, {s(SWS,4)}, s{sA if (typ, g) == (0, 0) else sHF} offen{CFG.get('thm', ' sc1')}", "s_mov_b64 exec, -1"], after=b_, before={13: 15, 15: "cs"}.get(b_, b_ + 1), lo=(first[b_], CFG["thr"][2] + 2*g), kind="misc", prio=3)
    polls = []
    def fload(): return f"buffer_load_dword v{vFL}, v{vFA}, {s(SWS,4)}, s{sFR} offen sc1"
    def fcheck(ty, lv, own=None):
        polls.append((ty, lv, own)); n_ = len(polls)
        return [f"v_cmp_gt_u32 vcc, {lv}, v{vFL}", f"s_and_b32 s{sT1}, vcc_lo, {0xf0 if ty == 'q' else 0x0f}", f"s_cbranch_scc1 L_{sn}_fp{n_}", f"LABEL L_{sn}_fb{n_}"]
    spolls = []
    def gload(): return f"s_buffer_load_dwordx8 {s(SWO,8)}, {s(SWS,4)}, s{sFR} glc"
    def gmin(ty, lv):
        b = SWO + (4 if ty == "q" else 0)
        return [f"s_min_u32 s{sT1}, s{b}, s{b+1}", f"s_min_u32 s{sC}, s{b+2}, s{b+3}", f"s_min_u32 s{sT1}, s{sT1}, s{sC}", f"s_cmp_eq_u32 s{sMD}, 0", f"s_cselect_b32 s{sT1}, s{sT1}, 0", f"s_cmp_lt_u32 s{sT1}, {lv}"]
    slow = []
    def mst(x, tag=""):
        slow.append(x); n_ = len(slow)
        return [f"s_cmp_lg_u32 s{sMD}, 0", f"s_cbranch_scc1 L_{sn}_ss{n_}", x + (" #" + tag if tag else ""), f"LABEL L_{sn}_sb{n_}"]
    def fstore(lv, tag, r): return [f"v_mov_b32 v{r}, {lv}", f"WAITVM {'dmy' if NV and lv < 5 else tag}", "s_mov_b64 exec, 1"] + mst(f"buffer_store_dword v{r}, off, {s(SWS,4)}, s{sFL}") + ["s_mov_b64 exec, -1"]
    HR = [96, 104, 112, 120, 80, 88, 48, 56, 64, 72, 96, 104, 112, 120, 80] if typ else [112, 120, 48, 56, 80, 88, 96, 104, 112, 120, 48, 56, WR[3], 80, 88]
    def hload(k):
        ty, j = KS[k]; b_ = {"q": sHQ, "o": sHO, "k": sR if j < 2 else sHK}[ty]
        return [[f"s_add_u32 s{sO1}, s{b_}, {j*1024 + tb*118*1024}", f"buffer_load_dwordx4 {v(HR[k]+4*tb,4)}, v{vM16}, {s(SWS,4)}, s{sO1} offen"] for tb in range(1 if "halfh" in k1.KN else 2)]
    S.add([f"s_cmp_eq_u32 s{sWZ2}, 0x2000000", f"s_cselect_b32 s{sR}, 2.0, s{sHK}"], after=13)
    SEL, DD, ZZ, LD = AV + 8, CP, AV + 12, GA[0]
    vTW, vTZ, vTR = 1, 2, 3
    if typ == 1:
        a, b, c, ln = AK + 1, AK + 2, AK + 3, AK + 4
        o = [f"v_bfe_u32 v{ln}, v{vM16}, 4, 6", f"v_and_b32 v{a}, 15, v{ln}", f"v_lshrrev_b32 v{b}, 1, v{ln}", f"v_and_b32 v{b}, 8, v{b}", f"v_xor_b32 v{b}, v{a}, v{b}",
             f"v_and_b32 v{c}, 1, v{b}", f"v_lshlrev_b32 v{c}, 4, v{c}", f"v_mov_b32 v{a}, 0x3f80", f"v_lshlrev_b32 v{c}, v{c}, v{a}", f"v_lshrrev_b32 v{b}, 1, v{b}"]
        for r in range(4): o += [f"v_cmp_eq_u32 vcc, {r}, v{b}", f"v_cndmask_b32 v{SEL+r}, 0, v{c}, vcc"]
        S.adds(o, lo=(first[12], 0))
        S.add([f"s_lshr_b32 s{sT0}, s{sW}, 1", f"s_lshl_b32 s{sT0}, s{sT0}, 11", f"s_and_b32 s{sT2}, s{sW}, 1", f"s_lshl_b32 s{sT2}, s{sT2}, 5",
               f"s_add_u32 s{sT2}, s{sT2}, s{sT0}", f"s_add_u32 s{sT2}, s{sT2}, {OT}", f"s_sub_u32 s{sT0}, s{sT0}, {MB - OT}"], lo=(first[9], 0))
        S.adds([f"v_add_u32 v{vTZ}, s{sT0}, v{vM16}", f"v_and_b32 v{a}, 7, v{ln}", f"v_lshlrev_b32 v{a}, 7, v{a}", f"v_and_b32 v{b}, 16, v{ln}", f"v_lshl_add_u32 v{a}, v{b}, 2, v{a}",
                f"v_and_b32 v{b}, 8, v{ln}", f"v_add_u32 v{a}, v{a}, v{b}", f"v_lshrrev_b32 v{b}, 1, v{ln}", f"v_and_b32 v{b}, 16, v{b}", f"v_add3_u32 v{vTW}, v{a}, v{b}, s{sT2}",
                f"v_and_b32 v{a}, 19, v{ln}", f"v_bfe_u32 v{b}, v{ln}, 2, 1", f"v_lshl_or_b32 v{a}, v{b}, 3, v{a}", f"v_bfe_u32 v{b}, v{ln}, 3, 1", f"v_lshl_or_b32 v{a}, v{b}, 2, v{a}",
                f"v_lshlrev_b32 v{a}, 6, v{a}", f"v_and_b32 v{b}, 32, v{ln}", f"v_add_u32 v{a}, v{a}, v{b}", f"v_add_u32 v{vTR}, {OT + g*4096}, v{a}"])
    QE = CFG.get("qe") if typ else None
    cad = [f"v_lshlrev_b32 v{vCT}, 1, v{vM16}", f"v_and_b32 v{vCT}, 0xe0, v{vCT}"] if QE else []
    if QE: S.add(cad + [f"buffer_load_dword v{vCT}, v{vCT}, {s(SDB,4)}, 0 offen"], after=12, lo=(first[12], QE["cl"]), kind="misc", prio=2)
    else:
        S.add(f"v_lshlrev_b32 v{vFL}, 3, v{vFA}")
        S.add(f"buffer_load_dword v{vCT}, v{vFL}, {s(SDB,4)}, 0 offen", after=12, lo=(first[13], -4), kind="misc")
    cck = [f"s_and_b32 s{sMD}, s2, 7", f"v_readlane_b32 s{sMD}, v{vCT}, s{sMD}", f"v_and_b32 v{vCT}, 0xff, v{vCT}", f"v_cmp_gt_u32 vcc, 32, v{vCT}", f"s_lshl_b32 s{sT1}, s{sXV}, 5", f"s_sub_u32 s{sMD}, s{sMD}, s{sT1}"]
    chk = S.add(cck + [f"s_cbranch_vccnz L_{sn}_cp", f"LABEL L_{sn}_cb"], after=13 if QE else 15)
    if not QE: chk.R |= {("v", vFL)}
    chk.W |= {("s", sT1), ("x", 0)}
    vCW2, vEX, t0 = AK, AK + 1, AK + 2
    S.adds([f"v_lshrrev_b32 v{vCW2}, 6, v{vM16}", f"v_and_b32 v{vCW2}, 12, v{vCW2}", f"v_xor_b32 v{vCW2}, s{sI4}, v{vCW2}", f"v_or_b32 v{vCW2}, v{vCW2}, v{vM16}"], lo=(first[12], 0))
    if typ == 0:
        S.add(f"v_add_u32 v{vEX}, s{sEX}, v{vM16}")
        own = 4*g; oth = 4 - own
        if g == 0: S.node(G[15,0,2], cm(CD[2], False)(F))
        S.node(G[15,2*g+1,2], mm(GA[2], XR(7,0), False)(F))
        for k in range(2): w64(f"ds_write_b128 v{vEX}, {v(GA[2]+oth+8*k,4)} offset:{g*8192+1024*k} #cs", None, before="cs")
        S.node(G[15,0,0], cm(CD[0], False)(F)); S.node(G[15,0,1], cm(CD[1], False)(F))
        for b in range(3 - g): S.adds(publish(CD[b], t0 + 2*b, t0 + 2*b + 1, vCW2, blk[b], "cs"), before="cs", prio=2)
        X = AK + 8
        S.add(f"ds_read_b128 {v(X,4)}, v{vEX} offset:{(1-g)*8192}", after="cs")
        S.add(f"ds_read_b128 {v(X+4,4)}, v{vEX} offset:{(1-g)*8192+1024}", after="cs")
        S.node(C[2], mm(GA[2], vMU, False)(F))
        S.adds([f"v_add_f32 v{X+4*hh+k}, v{X+4*hh+k}, v{GA[2]+8*hh+own+k}" for hh in range(2) for k in range(4)])
        S.adds(glu(X, X + 4, 4))
        S.add(mst(f"buffer_store_dwordx2 {v(X,2)}, v{vM16}, {s(SWS,4)}, s{sHF} offen offset:{(1-g)*2048+8*g}", "hs"), kind="misc", prio=1)
        fin = [(0, C[0], g*1024), (1, C[1], (1+g)*1024)]
    else:
        for b in range(3): S.node(G[15,0,b], cm(CD[b], False)(F))
        for b in range(3): S.adds(publish(CD[b], t0 + 2*b, t0 + 2*b + 1, vCW2, blk[b], "cs"), before="cs", prio=2)
        fin = [(0, r0[-1], 0), (1, C[1], 1024), (2, C[2], 2048)]
        LQ = [208, 224, 240, 48, 52, 16, 20, 12] if QE else [LD + 4*p for p in range(8)]
        if QE: DD = GA[0] + 8
        def loads(m=" sc1"):
            o = [[f"buffer_load_dwordx4 {v(ZZ,4)}, v{vM16}, {s(SWS,4)}, s{sK2} offen sc1"]]
            for p in range(8):
                o.append(([f"s_add_u32 s{sT2}, s{sK1}, 4096"] if p == 4 else []) + [f"buffer_load_dwordx4 {v(LQ[p],4)}, v{vM16}, {s(SWS,4)}, s{sK1 if p < 4 else sT2} offen offset:{(p%4)*1024}{m}"])
            return o
        L_ = loads("")
        zl_ = S.add(L_[0], kind="misc", lo=(lambda: C[0].idx + QE["zl"]) if QE else lambda: C[2].idx - CFG["qload"] - CFG["qct"], prio=2 if QE else 0, lat=QE and QE["zc"]); zl_.R |= {("x", 0)}
        if QE and QE.get("nz"): zl_.W |= {("x", 1)}
        else:
            zc = S.add([f"v_cmp_eq_u32 vcc, -1, v{ZZ}", "s_nop 1", f"s_cbranch_vccnz L_{sn}_zp", f"LABEL L_{sn}_zb"], lo=None if QE else lambda: C[2].idx - CFG["qload"] - 1)
            zc.W |= {("s", sT1), ("x", 1)}
        if QE:
            n2 = QE.get("n2", 1)
            for j in range(1, 9, n2): S.add(sum(L_[j:j+n2], []), kind="misc", after=QE.get("af", "cs"), lo=lambda: C[0].idx + QE.get("kl", -9), prio=QE.get("pr", 2), lat=QE["lat"]).R |= {("x", 1)}
            CK, CV = DD + 4, GA[0] + 4
            preL = [f"v_mfma_f32_16x16x32_bf16 {v(DD,4)}, {v(SEL,4)}, {v(LQ[p],4)}, {'0' if p == 0 else v(DD,4)}" for p in range(8)] + [f"v_mfma_f32_16x16x32_bf16 {v(CK,4)}, {v(SEL,4)}, {v(ZZ,4)}, {v(DD,4)}"]
            preW = [f"v_cvt_pk_bf16_f32 v{CV}, v{DD}, v{DD+1}", f"v_cvt_pk_bf16_f32 v{CV+1}, v{DD+2}, v{DD+3}", f"ds_write_b64 v{vTW}, {v(CV,2)}", f"v_cmp_u_f32 vcc, v{CK}, v{CK}", "s_nop 1"]
            preZ = f"ds_write_b128 v{vTZ}, {v(ZZ,4)} offset:1024"
    if typ == 0 and CFG["f1"][2]:
        S.add(fload(), kind="misc", lo=lambda: C[2].idx + CFG["f1"][0]).R |= {("x", 0)}
        S.add(fcheck("q", CFG["f1"][2]), lo=lambda: C[2].idx + CFG["f1"][1]).W |= {("x", 1)}
        for k in range(2 * CFG["f1"][2]):
            if k < 4:
                for x in hload(k): S.add(x, kind="misc").R |= {("x", 1)}
    HS = {}
    for b, it, off in fin:
        S.node(it, mm(GA[b], vMU, False)(F))
        S.adds(glu(GA[b], GA[b] + 8, 8))
        if QE and b == 0:
            S.add(preZ, kind="misc", after=15).R |= {("x", 1)}
            m2 = QE.get("m2", 1)
            for j in range(0, 9, m2): S.add(preL[j:j+m2], kind="small")
            QE_last = S.add(preW + [f"s_cbranch_vccnz L_{sn}_rt", f"LABEL L_{sn}_go"], kind="misc", prio=2)
            QE_last.W |= {("s", sT0), ("s", sT2)}
        if typ == 1 and b == 2 and not QE:
            for x in L_[1:]: HS["l"] = S.add(x, kind="misc", lo=lambda: C[2].idx - CFG["qload"]); HS["l"].R |= {("x", 1)}
        if b == len(fin) - 1: S.add(fload(), kind="misc").R |= {("v", GA[b] + CFG["f2"]), ("x", 0)}
        HS[b] = S.add(mst(f"buffer_store_dwordx4 {v(GA[b],4)}, v{vM16}, {s(SWS,4)}, s{sA if (typ, g) == (0, 0) else sHF} offen offset:{off}", f"h{b}"), kind="misc", prio=int(b < len(fin) - 1))
        if b in CFG["st"][typ]: S.add(fstore(b + 2 - typ, f"h{b}", vCT), kind="misc", ok=aft(HS, b, CFG["s1"]))
        if typ == 0 and b == 0 and CFG["f1"][2] == 3:
            for k in (4, 5):
                for x in hload(k): S.add(x, kind="misc").R |= {("x", 1)}
    def budget(n, it):
        if n < first[8].idx:
            if typ == 1: return CFG["qb"]
            if n < first["v1"].idx - D: return CFG["pb"]
            return CFG["vb"]
        if n < first[15].idx and typ == 0: return CFG["gb"]
        return 6
    S.budget = budget
    S.dbl = lambda n: n >= first[9].idx
    if typ == 1:
        for b in range(1, 9): S.prebar_budget[b] = CFG["qpb"]
    S.prebar_budget["cs"] = 6
    if typ == 0:
        for b in list(range(1, 8)) + ["v1"]: S.prebar_budget[b] = CFG["ppb"]
        for b in ("v3", "v6", 8): S.prebar_budget[b] = CFG.get("vpb", 0)
    S.dump = "dump" in k1.KN
    S.solve(main, ex)
    order = S.order; N = len(order)
    info = [f"typ{typ} g{g} N={N} bars={S.bs} extras={[(e.item.name, e.item.idx) for e in ex]} slots={len(S.slots)-D}"]
    if typ == 0: info.append(f"kvstore@{kvst.slot}")
    print(" ".join(info))
    nst = [1]
    def em(x):
        if x.startswith("LABEL"): P.label(x.split()[1])
        elif x.startswith("WAITVM"): P.wait_vm(x.split()[1])
        elif x.startswith("WAITLG"): P.wait_lg(x.split()[1])
        else: emit(P, x)
    for n, it, sm, va, mi in S.slots:
        m_ = n + D
        if m_ < N:
            nx = order[m_]
            if nx.bar is not None:
                P.comment(f"--- barrier {nx.bar}")
                if not ("nowait" in k1.KN and nx.bar != 0):
                    for tg in barwait[nx.bar]: P.wait_vm(tg)
                for tg in barlg.get(nx.bar, []): P.wait_lg(tg)
                I("s_barrier")
                nstamp(P, nx.bar, nst)
            f = FR[m_ % 4]
            rd = []
            for k, ad, im in nx.reads:
                rd.append({"tr": f"ds_read_b64_tr_b16 {v(f,2)}, v{ad} offset:{im}", "tr2": f"ds_read_b64_tr_b16 {v(f+2,2)}, v{ad} offset:{im}",
                           "b128": f"ds_read_b128 {v(f,4)}, v{ad} offset:{im}"}[k])
            for x in nx.pre[:1] + rd + nx.pre[1:]: I(x)
        body = []
        if it is not None:
            f = v(FR[n % 4], 4)
            if it.small: body.append(it.small(f))
            if sm: body += sm.texts
            body.append(it.mf(f))
        elif sm: body += sm.texts
        if "nofill" not in k1.KN or n >= N:
            for o in va: body += o.texts
        if it is not None:
            touch = set()
            for x in body:
                i_ = Ins(x.split("#")[0].strip()); touch |= i_.vr | i_.vw
            P.wait_regs(touch)
        for x in body: em(x)
        for o in mi:
            if "nowd" in k1.KN and any("#W" in x for x in o.texts): continue
            if "halfwd" in k1.KN and any("#W" in x and "offset:1024" in x for x in o.texts): continue
            if "noxr" in k1.KN and any("#X" in x for x in o.texts): continue
            if "nodma" in k1.KN and any(" lds" in x for x in o.texts): continue
            for x in o.texts: em(x)
        if typ == 1 and n - N in CFG.get("sq2", ()): nstamp(P, f"n{N-n}", nst)
        if QE and n == N + QE["bar"]:
            assert QE_last.slot <= n and QE["bar"] >= -4, QE_last.slot - N
            P.wait_lg(); I("s_barrier"); nstamp(P, "ob", nst)
            for j, q_ in enumerate((48, 52, 16, 20)): I(f"ds_read_b128 {v(q_,4)}, v{vTR} offset:{(j>>1)*2048+16*(j&1)}")
        if QE and n == N + QE["mf"]:
            for j, q_ in enumerate((48, 52, 16, 20)):
                I(f"v_mfma_f32_32x32x16_bf16 {v(208+16*(j>>1),16)}, {v(q_,4)}, {v((AV if j>>1 else AK+8)+4*(j&1),4)}, {v(208+16*(j>>1),16) if j&1 else '0'}")
        if n == N - 1:
            nstamp(P, "last", nst)
            if typ == 0 and g == 1 and CFG.get("bl"): P.wait_lg(); I("s_barrier")
    ACC = [208, 224, 240, 32]
    vXA, vXD = 4, 8
    RD = []
    def radr():
        I(f"s_lshl_b32 s{sT0}, s{sMW}, 1")
        I(f"s_sub_u32 s{sT0}, s{sT0}, {MB}")
        I(f"v_add_u32 v5, s{sT0}, v{vM16}")
        I(f"v_add_u32 v6, {t.RG[4]}, v5")
        I(f"v_add_u32 v7, {t.RG[6]}, v5")
        if not CFG.get("rb"): I(f"v_add_u32 v12, s{sRB}, v{vM16}")
    def rwr(q):
        o = []
        if CFG.get("rb"):
            for h_ in range(2):
                r = 2*q + h_; ad, bs_ = (5, 0) if r < 4 else (6, t.RG[4]) if r < 6 else (7, t.RG[6]); A = ACC[q] + 8*h_
                o.append("\n".join(f"v_cvt_pk_bf16_f32 v{A+k}, v{A+2*k}, v{A+2*k+1}" for k in range(4)))
                o.append(f"ds_write_b128 v{ad}, {v(A,4)} offset:{t.RG[r] - bs_}")
            return o
        for e in range(4):
            r = 2*q + (e >> 1); ad, bs_ = (5, 0) if r < 4 else (6, t.RG[4]) if r < 6 else (7, t.RG[6])
            o.append(f"ds_write_b128 v{ad}, {v(ACC[q]+4*e,4)} offset:{t.RG[r] - bs_ + (e & 1)*1024}")
        return o
    vals = []
    def vchk(qs):
        rs = []; zs = []; o = []
        for k, tb in qs:
            if KS[k] in (("k", 0), ("k", 1)): zs.append(HR[k] + 4*tb)
            else: rs += [HR[k] + 4*tb] + ([HR[k] + 4*tb + 2] if KS[k] == ("k", 2) else [])
        if zs:
            assert len(zs) == 2
            o += [f"s_and_b32 s{sT3}, s{sR}, 2.0", f"v_min_u32 v15, v{zs[0]}, v{zs[1]}", f"v_or_b32 v15, s{sT3}, v15"]; t_ = 15
        else: t_ = rs.pop(0)
        while rs:
            if len(rs) > 1: o.append(f"v_min3_u32 v15, v{t_}, v{rs.pop(0)}, v{rs.pop(0)}")
            else: o.append(f"v_min_u32 v15, v{t_}, v{rs.pop(0)}")
            t_ = 15
        return o + [f"v_cmp_eq_u32 vcc, 0, v{t_}", "s_nop 1"]
    def valid(qs):
        if not NV: return
        vals.append(qs); n_ = len(vals)
        for x in vchk(qs): I(x)
        I(f"s_cbranch_vccnz L_{sn}_vr{n_}"); P.label(f"L_{sn}_vb{n_}")
    def tok(tk):
        if tk[:2] in ("a:", "b:"):
            if "ab".index(tk[0]) != g: return
            tk = tk[2:]
        c = tk[0]; r = tk[1:]
        if c == "F": I(fload())
        elif c == "C":
            for x in fcheck(r[0], int(r[1]), int(r[3]) if len(r) > 2 else None): em(x)
        elif c == "L":
            for x in hload(int(r)):
                for y in x: em(y)
        elif c == "S":
            lv, tg = r.split(":")
            for x in fstore(int(lv), tg, vCT): em(x)
        elif c == "B":
            if r == "" or int(r) == g: I("s_barrier")
        elif c == "T": nstamp(P, r, nst)
        elif c == "D":
            for x in wdma(int(r)):
                for y in x: em(y)
        elif c == "X":
            k = int(r); ad = (vRD0, vRD1); base = rbase
            if not 0 <= t.RG[RGN[k]] - rbase < 65000:
                ad = (5, 6); base = t.RG[RGN[k]]
                for cb in range(2): I(f"v_add_u32 v{ad[cb]}, {(base - rbase) & 0xffffffff}, v{(vRD0, vRD1)[cb]}")
            for x in wread(k, ad, base):
                for y in x: em(y)
        elif c == "M":
            k = int(r); valid([(k, 0), (k, 1)])
            for tb, cb in ((0, 0), (1, 0), (0, 1), (1, 1)):
                A = ACC[tb*2+cb]
                I(f"v_mfma_f32_32x32x16_bf16 {v(A,16)}, {v(WR[k]+4*cb,4)}, {v(HR[k]+4*tb,4)}, {'0' if k == 0 else v(A,16)}")
        elif c == "P": I(f"s_setprio {r}")
        elif c == "G": I(gload())
        elif c == "R":
            J = vSTD if r == "o" else vC1; sb_ = sEX if r == "o" else sA if (typ, g) == (0, 0) else sHF
            for x in [f"s_mov_b32 s{sT1}, {(-7*MB) & 0xffffffff}", f"v_lshl_add_u32 v{J}, v{vM16}, 3, s{sT1}", f"s_mov_b64 exec, {0xffffff if sb_ == sHF else 0xffff}",
                      f"buffer_load_dword v{J}, v{J}, {s(SWS,4)}, s{sb_} offen{CFG.get('thm', ' sc1')}", "s_mov_b64 exec, -1"]: I(x)
        elif c == "H":
            ty, lv = r[0], int(r[1]); own = int(r[3]) if len(r) > 2 else None
            polls.append((ty, lv, own)); n_ = len(polls); spolls.append(n_)
            P.wait_lg()
            for x in gmin(ty, lv): I(x)
            I(f"s_cbranch_scc1 L_{sn}_gp{n_}"); P.label(f"L_{sn}_fb{n_}")
        elif c == "N":
            radr(); prev = []
            for tb, cb in ((0, 0), (1, 0), (0, 1), (1, 1)):
                q = tb*2+cb; A = ACC[q]
                if cb == 0: valid([(k, tb) for k in range(int(r), 15)])
                for j, k in enumerate(range(int(r), 15)):
                    I(f"v_mfma_f32_32x32x16_bf16 {v(A,16)}, {v(WR[k]+4*cb,4)}, {v(HR[k]+4*tb,4)}, {v(A,16)}")
                    if j >= CFG.get("nw", 1) and prev:
                        for y in prev.pop(0).split("\n"): I(y)
                for x in prev:
                    for y in x.split("\n"): I(y)
                prev = rwr(q)
            if CFG.get("rb"):
                for k in range(4): I(f"v_lshlrev_b32 v{16+2*k}, 16, v{vXD+k}"); I(f"v_and_b32 v{17+2*k}, s{sHI}, v{vXD+k}")
            for x in prev:
                for y in x.split("\n"): I(y)
            RD.append(1)
        elif c == "x" and CFG.get("rb"):
            for y in [f"v_bfe_u32 v13, v{vM16}, 4, 4", f"v_bfe_u32 v7, v{vM16}, 9, 1", f"v_lshlrev_b32 v{vXA}, 10, v13", f"v_lshl_add_u32 v{vXA}, v7, 14, v{vXA}",
                      f"v_bfe_u32 v7, v{vM16}, 8, 1", f"v_lshl_add_u32 v{vXA}, v7, 4, v{vXA}", f"buffer_load_dwordx4 {v(vXD,4)}, v{vXA}, {s(SX,4)}, s{sXO} offen",
                      f"v_bfe_u32 v7, v{vM16}, 8, 2", f"v_mul_u32_u24 v7, 1792, v7", f"v_add3_u32 v12, s{sRB}, v{vM16}, v7",
                      f"v_and_b32 v14, 16, v{vM16}", f"v_mov_b32 v7, 0x3f80", "v_lshlrev_b32 v14, v14, v7", "v_lshrrev_b32 v13, 1, v13"]: I(y)
            for k in range(8): I(f"v_cmp_eq_u32 vcc, {k}, v13"); I(f"v_cndmask_b32 v{168+k}, 0, v14, vcc")
        elif c == "x":
            I(f"v_bfe_u32 v{vXA}, v{vM16}, 4, 5")
            I(f"v_bfe_u32 v7, v{vM16}, 9, 1")
            I(f"v_lshlrev_b32 v{vXA}, 10, v{vXA}")
            I(f"v_lshl_add_u32 v{vXA}, v7, 4, v{vXA}")
            I(f"buffer_load_dwordx4 {v(vXD,4)}, v{vXA}, {s(SX,4)}, s{sXO} offen")
        else: raise ValueError(tk)
    if typ == 1:
        nstamp(P, "oph", nst)
        for tk in CFG.get("qp", "").split(): tok(tk)
        DO = [208, 224]
        if not QE:
            I(f"s_mov_b32 s{sT0}, 0")
            P.label(f"L_{sn}_pre")
            for p in range(8): I(f"v_mfma_f32_16x16x32_bf16 {v(DD,4)}, {v(SEL,4)}, {v(LD+4*p,4)}, {'0' if p == 0 else v(DD,4)}")
            I(f"ds_write_b128 v{vTZ}, {v(ZZ,4)} offset:1024")
            I(f"v_mfma_f32_16x16x32_bf16 {v(LD,4)}, {v(SEL,4)}, {v(ZZ,4)}, {v(DD,4)}")
            I(f"v_cvt_pk_bf16_f32 v{LD+4}, v{DD}, v{DD+1}")
            I(f"v_cvt_pk_bf16_f32 v{LD+5}, v{DD+2}, v{DD+3}")
            I(f"ds_write_b64 v{vTW}, {v(LD+4,2)}")
            I(f"v_cmp_u_f32 vcc, v{LD}, v{LD}")
            I("s_nop 1")
            I(f"s_cbranch_vccnz L_{sn}_rt")
            P.label(f"L_{sn}_go")
            for tk in CFG["qo"][0].split(): tok(tk)
            P.wait_lg()
            I("s_barrier")
            AO = GA[0]; DO = [208, 224]
            for rho in range(2):
                for f in range(2): I(f"ds_read_b128 {v(AO+8*rho+4*f,4)}, v{vTR} offset:{rho*2048+16*f}")
            for rho in range(2):
                ph = AK + 8 if rho == 0 else AV
                for f in range(2):
                    I(f"v_mfma_f32_32x32x16_bf16 {v(DO[rho],16)}, {v(AO+8*rho+4*f,4)}, {v(ph+4*f,4)}, {'0' if f == 0 else v(DO[rho],16)}")
        for tk in CFG["qo"][1].split(): tok(tk)
        for rho in range(2):
            Dd = DO[rho]
            if rho and QE:
                for tk in CFG["qo"][0].split(): tok(tk)
            for k in range(4): I(f"v_add_f32 v{Dd+8+k}, v{Dd+8+k}, v{Dd+12+k}")
            I(f"v_add_f32 v{Dd+8}, v{Dd+8}, v{Dd+9}")
            I(f"v_add_f32 v{Dd+10}, v{Dd+10}, v{Dd+11}")
            I(f"v_add_f32 v{Dd+8}, v{Dd+8}, v{Dd+10}")
            I(f"v_mov_b32 v{Dd+9}, v{Dd+8}")
            I(f"v_permlane32_swap_b32 v{Dd+8}, v{Dd+9}")
            I(f"v_add_f32 v{Dd+8}, v{Dd+8}, v{Dd+9}")
            I(f"v_add_f32 v{Dd+8}, {fbits(1e-6)}, v{Dd+8}")
            I(f"v_rcp_f32 v{Dd+8}, v{Dd+8}")
            for k in range(8): I(f"v_mul_f32 v{Dd+k}, v{Dd+k}, v{Dd+8}")
            for k in range(4): I(f"v_cvt_pk_bf16_f32 v{Dd+k}, v{Dd+2*k}, v{Dd+2*k+1}")
            for x in mst(f"buffer_store_dwordx4 {v(Dd,4)}, v{vM16}, {s(SWS,4)}, s{sEX} offen offset:{rho*1024}", "ho"): em(x)
    for tk in CFG["p2"][typ].replace("Ts3", CFG.get("ts3", "Ts3")).replace("Ts4", CFG.get("ts4", "Ts4")).replace("N10", CFG.get("n10", ("N10", "N10"))[g]).split(): tok(tk)
    if not RD:
        radr()
        for q in (0, 2, 1, 3):
            for x in rwr(q): I(x)
    XU = 16
    for k in range(0 if CFG.get("rb") else 4):
        I(f"v_lshlrev_b32 v{XU+2*k}, 16, v{vXD+k}")
        I(f"v_and_b32 v{XU+2*k+1}, s{sHI}, v{vXD+k}")
    P.wait_lg()
    I("s_barrier")
    nstamp(P, "red", nst)
    if CFG.get("rb"):
        od = [(c_, hh) for hh in range(2) for c_ in (0, 2, 1, 3)]
        for j, (c_, hh) in enumerate(od): I(f"ds_read_b128 {v(128+4*j,4)}, v12 offset:{hh*8192+c_*256}")
        for j, (c_, hh) in enumerate(od): I(f"v_mfma_f32_16x16x32_bf16 {v(XU+4*(c_>>1),4)}, {v(168+4*(c_&1),4)}, {v(128+4*j,4)}, {v(XU+4*(c_>>1),4)}")
    for w_ in range(0 if CFG.get("rb") else 8):
        for e in range(2): I(f"ds_read_b128 {v(128+8*w_+4*e,4)}, v12 offset:{w_*2048+e*1024}")
        if w_ == 6:
            for k in range(8): I(f"v_add_f32 v{XU+k}, v{XU+k}, v{128+k}")
    for w_ in range(1, 1 if CFG.get("rb") else 8):
        for k in range(8): I(f"v_add_f32 v{XU+k}, v{XU+k}, v{128+8*w_+k}")
    for k in range(4): I(f"v_cvt_pk_bf16_f32 v{XU+k}, v{XU+2*k}, v{XU+2*k+1}")
    I(f"buffer_store_dwordx4 {v(XU,4)}, v{vXA}, {s(SOUT,4)}, s{sXO} offen")
    while nst[0] < 18: nstamp(P, "-", nst)
    P.comment(f"STAMPS {typ}{g} " + " ".join(nst[1:]) + " end")
    dump_stamps(P, 19, SWS, sW, 8, sT0)
    I("s_endpgm")
    def cold():
        def poll(nm, back, sl, body, done, pre=[]):
            P.restore(([], [], [], False))
            P.label(f"L_{sn}_{nm}")
            for x in pre: em(x)
            I(f"s_mov_b32 s{sC}, 0")
            P.label(f"L_{sn}_{nm}l")
            I(f"s_sleep {sl}")
            for x in body: I(x)
            I(f"{done} L_{sn}_{back}")
            I(f"s_add_u32 s{sC}, s{sC}, 1")
            I(f"s_cmp_lt_u32 s{sC}, 20000")
            I(f"s_cbranch_scc1 L_{sn}_{nm}l")
            I(f"s_branch L_{sn}_{back}")
        for n_, x in enumerate(slow):
            P.restore(([], [], [], False))
            P.label(f"L_{sn}_ss{n_+1}")
            if NV and "store_dword " in x: I("s_waitcnt vmcnt(0)")
            I("s_nop 4"); I(x + " sc1"); I("s_nop 4"); I(f"s_branch L_{sn}_sb{n_+1}")
        poll("cp", "cb", 16, cad + [f"buffer_load_dword v{vCT}, v{vCT if QE else vFL}, {s(SDB,4)}, 0 offen sc1"] + cck, "s_cbranch_vccz")
        for n_, qs in enumerate(vals):
            mk = 0
            for k, tb in qs: mk |= 0x0f if KS[k][0] == "k" else 0xf0
            poll(f"vr{n_+1}", f"vl{n_+1}", CFG["fsl"], [fload(), f"v_cmp_gt_u32 vcc, 5, v{vFL}", f"s_and_b32 s{sT1}, vcc_lo, {mk}"], "s_cbranch_scc0", ["s_waitcnt vmcnt(0)"])
            P.restore(([], [], [], False))
            P.label(f"L_{sn}_vl{n_+1}")
            for k, tb in qs: I(hload(k)[tb][0]); I(hload(k)[tb][1] + " sc1")
            I("s_waitcnt vmcnt(0)"); I(f"s_branch L_{sn}_vb{n_+1}")
        for n_ in spolls:
            ty, lv, own = polls[n_-1]
            P.restore(([], [], [], False))
            P.label(f"L_{sn}_gp{n_}")
            I(f"s_cmp_lg_u32 s{sMD}, 0"); I(f"s_cbranch_scc1 L_{sn}_fp{n_}")
            if own is not None:
                for x in [f"v_mov_b32 v{vCT}, {own}", "s_waitcnt vmcnt(0)", "s_mov_b64 exec, 1", f"buffer_store_dword v{vCT}, off, {s(SWS,4)}, s{sFL}", "s_mov_b64 exec, -1"]: I(x)
            I(f"s_mov_b32 s{sO2}, 0")
            P.label(f"L_{sn}_gl{n_}")
            if CFG.get("gsl"): I(f"s_sleep {CFG['gsl']}")
            I(gload()); I("s_waitcnt lgkmcnt(0)")
            for x in gmin(ty, lv): I(x)
            I(f"s_cbranch_scc0 L_{sn}_fb{n_}")
            I(f"s_add_u32 s{sO2}, s{sO2}, 1"); I(f"s_cmp_lt_u32 s{sO2}, 64"); I(f"s_cbranch_scc1 L_{sn}_gl{n_}")
            I(f"s_branch L_{sn}_fp{n_}")
        for n_, (ty, lv, own) in enumerate(polls):
            pre = [] if own is None else [f"v_mov_b32 v{vCT}, {own}", "s_waitcnt vmcnt(0)", "s_mov_b64 exec, 1", f"s_cmp_lg_u32 s{sMD}, 0", f"s_cbranch_scc1 L_{sn}_fo{n_}", f"buffer_store_dword v{vCT}, off, {s(SWS,4)}, s{sFL}",
                                          f"s_branch L_{sn}_fq{n_}", f"LABEL L_{sn}_fo{n_}", f"buffer_store_dword v{vCT}, off, {s(SWS,4)}, s{sFL} sc1", f"LABEL L_{sn}_fq{n_}", "s_mov_b64 exec, -1"]
            poll(f"fp{n_+1}", f"fb{n_+1}", CFG["fsl"], [fload(), f"v_cmp_gt_u32 vcc, {lv}, v{vFL}", f"s_and_b32 s{sT1}, vcc_lo, {0xf0 if ty == 'q' else 0x0f}"], "s_cbranch_scc0", pre)
        if typ == 1:
            if not (QE and QE.get("nz")): poll("zp", "zb", CFG["zsl"], [loads()[0][0], f"v_cmp_eq_u32 vcc, -1, v{ZZ}", "s_nop 1"], "s_cbranch_vccz")
            P.restore(([], [], [], False))
            P.label(f"L_{sn}_rt")
            if QE:
                I(f"s_mov_b32 s{sT0}, 0"); I("s_nop 7"); I("s_nop 7")
                P.label(f"L_{sn}_rl")
                I("s_waitcnt lgkmcnt(0)")
                for x in loads():
                    for y in x: I(y)
                I("s_waitcnt vmcnt(0)")
                for x in preL + [preZ] + preW: I(x)
                I("s_waitcnt lgkmcnt(0)")
                I(f"s_cbranch_vccz L_{sn}_go")
                I(f"s_add_u32 s{sT0}, s{sT0}, 1")
                I(f"s_cmp_lt_u32 s{sT0}, 20000")
                I(f"s_cbranch_scc1 L_{sn}_rl")
                I(f"s_branch L_{sn}_go")
                return
            I(f"s_add_u32 s{sT0}, s{sT0}, 1")
            I(f"s_cmp_ge_u32 s{sT0}, 20000")
            I(f"s_cbranch_scc1 L_{sn}_go")
            I("s_waitcnt lgkmcnt(0)")
            for x in loads():
                for y in x: I(y)
            I("s_waitcnt vmcnt(0)")
            I(f"s_branch L_{sn}_pre")
    return cold

def gen_k1(name):
    P = Prog()
    P.raw(f".globl {name}\n.p2align 8\n.type {name},@function\n{name}:")
    prologue(P, name)
    snap = P.snapshot(); colds = []
    for k in range(4):
        P.restore(snap)
        if k: P.raw(".p2align 6"); P.label(f"L_{name}_r{k}")
        c_ = stream(P, k >> 1, k & 1, name)
        if CFG.get("cold"): colds.append(c_)
        else: c_()
    for c_ in colds: c_()
    P.label(f"L_{name}_end")
    P.I("s_endpgm")
    return P
```

```python
from asmlib import Prog, Ins, v, s
from sched import Sched, Item, Op
import k1
from k1 import fbits, LOG2E, stamp, pstamp, dump_stamps

MB = 122880
HF_OFF = MB
KVP_OFF = 0xC00000
WS_BYTES = 0x1000000
PH = 103040; OT = 106688; CSP = 156288
FLG = 0xD00000
LDS_BYTES = 163840
SDB, SX, SWQ, SWG, SWU, SWS, SWP, SWO, SWD = 4, 8, 12, 16, 20, 24, 28, 44, 48
sW, sT, sA, sTY, sR, sI, sMX, sMW, sMG, sC, sO1, sO2 = range(32, 44)
sHF, sK1, sK2, sHI, sT0, sT1, sT2, sT3 = range(52, 60)
sI4, sEX = 3, 35
sFL = sT; SOUT = SWQ
sHQ, sHO, sHK, sFR = range(SWP, SWP + 4)
sXO, sRB = 0, 1
sXV, sMD = 100, 101
vM16 = 0; vGO = [1, 2, 3]; vAG = [4, 5, 6, 7]; vMU = 8; CP = 12; CD = [16, 18, 20]
vC1, vSTD, vRS, vWF, vPH, vKA, vKB, vSM = range(24, 32)
vMX = vRS
FR = [32, 36, 40, 44]
AK, AV = 48, 64
GA = [80, 96, 112]
vXO, vWO, vLN, vST, vSQ = 80, 81, 82, 83, 84
vU = [85, 86, 87, 88]
vSTW, vSTR, vWPV, vWPA, vTCH, vCW = 89, 90, 91, 92, 93, 94
vAX = [[96, 97, 98, 99], [100, 101, 102, 103]]
vAA = [[104, 105, 106, 107], [108, 109, 110, 111]]
def XR(i, p): return 128 + (4 * i + p) * 4
CFG = dict(gb=6, pb=8, ppb=8, vb=6, paceg=1, b0end=1, pro=3, pace=0, tch=13, gt=0, rot="a", acc2=1, hstag=0, ns=([2]*8, [2]*8), phbar=(9, 10), qload=8, b0=8, hm=" sc1", qb=6, qpb=6, qpub=9,
           vdm={4: [0], 5: [1, 2], 6: [3, 4, 5], 7: [6, 7]}, g8=7, sq=[[0], [1], [2, 3], [4], [5], [6], [7], []], wc=0, qct=14, sq7=1, v1=(0, 2), skip=(3, 5, "v3", "ph", 12))
CFG.update(zd=12, rot="f", thl=((8, 9, 10), (8, 8, 9, 9, 10)), tho=0, th=8, thb=4, xm=1, fm=" sc1", tch=6, phbar=(9, 2), vpb=6, vb=7, gb=7, qload=0, qct=10, zsl=8, fsl=4, wb=(10, 10), wl=10, wg=2, f1=(0, 9, 0), f2=3, s1=12, atm=(7, 6, 2, -9),
           skip=(1, 2, 3, 4, 5, 6, 7, "v1", "v3", "v6", "ph", 9, 10, 11, 12, 15),
           st=((), ()),
           qo=("S3:h2 F T1", "D14"),
           p2=("Tp2 S3:h1 Ts3 Cq3 Tq3 L0 L1 F L2 L3 L4 L5 Cq4 Tq4 L6 L7 M0 M1 L8 L9 M2 Ck3 Tk3 L10 M3 L11 L12 M4 L13 M5 L14 X12 X13 X14 x Tb M6 M7 M8 M9 Tm9 B M10 M11 M12 M13 M14 Td",
               "Tp2 S4:ho Ts4 Cq3 L0 L1 F L2 L3 L4 L5 Cq4 Tq4 L6 L7 L8 L9 M0 Ck3 Tk3 L10 M1 L11 X10 X11 M2 L12 M3 L13 M4 L14 M5 X12 X13 X14 x M6 M7 M8 M9 Tm9 M10 M11 M12 M13 M14 Td"))
CFG.update(t3b=1, dup=1, swp=1, t3=4, tx=(None, 9, 2), f1=(0, 5, 0), s1=5, fsl=2, thl=((8, 8, 8), (8, 8, 8, 8, 8)))
CFG.update(ct=1, bl=1, qo=('S3:h2 T1','F D14'), p2=('Tp2 B0 S3:h1 Ts3 Cq3 Tq3 L0 L1 L2 L3 L4 L5 F M0 M1 M2 M3 Cq4 Tq4 L6 L7 L8 L9 Ck3 Tk3 L10 L11 L12 M4 L13 M5 L14 X12 X13 X14 x Tb M6 M7 M8 M9 Tm9 N10 Td',
           'Tp2 Cq3/4 L0 S4:ho Ts4 L1 L2 L3 L4 L5 F M0 M1 M2 M3 Cq4 Tq4 L6 L7 L8 L9 Ck3 Tk3 L10 L11 L12 L13 M4 L14 X10 X11 M5 X12 X13 X14 x M6 M7 M8 M9 Tm9 N10 Td'))
CFG.update(rb=1, zw=0, zd=1, cold=1, pz=(0, 0, 0, 0))
STN = []
def nstamp(P, nm, nst):
    if nm in CFG["skip"]: return
    if nst[0] < 18: stamp(P, nst[0]); nst[0] += 1; nst.append(str(nm))
def HM(): return CFG["hm"]

class T:
    def __init__(s, typ):
        s.typ = typ
        s.RB = 192 if typ else 160; s.NP = 12 if typ else 10; s.MUL = 171 if typ else 205
        s.UP = 64 * s.RB + (32 if typ else 128); s.SL = 2 * 64 * s.RB + (64 if typ else 128)
        s.XB = (0, 3 * s.SL) if typ else (20608, 103040)
        s.WB = (16384, 16384 + 3 * s.SL) if typ else (12416, 82432)
        s.ST = 131072 if typ else 98816
        s.WPH = CSP + 2048 if typ else 152192
        s.RG = [0, 16384, 32768, 49152] + ([73920, 90304, 123200, 139584] if typ else [65536, PH, PH + 16384, PH + 32768])
    def xp(s, st): return ((st + 2) % 5) * s.SL if s.typ else (20608, 41216, 119424, 103040, 66048, 82432, 119424, 103040)[st]
    def wp(s, st): return s.xp(st) + 16384 if s.typ else (12416, 57600, 144000, 135808)[st % 4]
    def vp(s, c): return (20608, 41216, 66048, 82432)[c >> 1] + 8192 * (c & 1)
    def sp(s, o, B):
        hi = int(o >= B[1]); assert 0 <= o - B[hi] <= 65000; return hi, o - B[hi]
    def g(s, st): return ((st - 8) % 5) * s.SL

def dma_x(t, st):
    return [[f"s_add_u32 s{sC}, s{sR}, {st}", f"s_and_b32 s{sC}, s{sC}, 7", f"s_add_u32 m0, s{sMX}, {t.xp(st)}", f"s_lshl_b32 s{sO1}, s{sC}, 7",
             f"buffer_load_dwordx4 v{vXO}, {s(SX,4)}, s{sO1} offen lds #x{st}"],
            [f"s_add_u32 s{sO1}, s{sO1}, {16384 - 2048}", f"buffer_load_dwordx4 v{vXO}, {s(SX,4)}, s{sO1} offen offset:2048 lds #x{st}"]]
def dma_w(t, st):
    o = [[f"s_add_u32 s{sC}, s{sR}, {st}", f"s_and_b32 s{sC}, s{sC}, 7", f"s_add_u32 m0, s{sMW}, {t.wp(st)}", f"s_mul_i32 s{sO2}, s{sC}, {64*3072}",
          f"buffer_load_dwordx4 v{vWO}, {s(SWQ,4)}, s{sO2} offen lds #w{st}"]]
    return o
def dma_v(t, c):
    return [[f"s_add_u32 s{sC}, s{sR}, {c}", f"s_and_b32 s{sC}, s{sC}, 7", f"s_add_u32 m0, s{sMW}, {t.vp(c) - 1024}", f"s_mul_i32 s{sO2}, s{sC}, {64*3072}",
          f"buffer_load_dwordx4 v{vWO}, {s(SWQ,4)}, s{sO2} offen offset:1024 lds #v{c}"]]
def dma_g(t, g, st):
    S = s(SWU if g else SWG, 4)
    m = [f"s_add_u32 m0, s{sMG}, {t.g(st)}"] if st >= 12 else []
    o = [[f"s_add_u32 s{sC}, s{sR}, {st}", f"s_and_b32 s{sC}, s{sC}, 7", f"s_add_u32 m0, s{sMG}, {t.g(st)}", f"s_mul_i32 s{sO2}, s{sC}, {64*2752}",
          f"buffer_load_dwordx4 v{vGO[0]}, {S}, s{sO2} offen lds #w{st}"],
         m + [f"buffer_load_dwordx4 v{vGO[1]}, {S}, s{sO2} offen offset:1024 lds #w{st}"]]
    l = f"buffer_load_dwordx4 v{vGO[2]}, {S}, s{sO2} offen offset:2048 lds #w{st}"
    o.append(m + ([l] if t.typ else ["s_mov_b32 exec_hi, 0", l, "s_mov_b32 exec_hi, -1"]))
    return o

def stream_list(t, g):
    o = []
    for st in range(1, 8): o += [dma_x(t, st), dma_w(t, st)]
    return o

def emit(P, t):
    tag = None
    if "#" in t: t, tag = t.split("#"); t = t.strip()
    P.I(t, tag)

def prologue(P, name):
    I = P.I
    stamp(P, 0)
    I("s_cmp_ge_u32 s2, 256")
    I(f"s_cbranch_scc1 L_{name}_end")
    I(f"s_load_dwordx4 s[8:11], s[0:1], 0")
    if CFG.get("ct"):
        I("s_getpc_b64 s[4:5]")
        P.label(f"L_{name}_pc")
        I("s_lshr_b32 s3, s2, 3")
        I("s_lshl_b32 s3, s3, 11")
        I("v_lshrrev_b32 v1, 5, v0")
        I("v_lshl_add_u32 v1, v1, 7, s3")
        I(f"s_mov_b32 s6, L_{name}_end-L_{name}_pc")
        I("s_mov_b32 s7, 0x20000")
        I("buffer_load_dword v127, v1, s[4:7], 0 offen")
    I(f"v_lshrrev_b32 v1, 6, v0")
    I(f"v_and_b32 v{vLN}, 63, v0")
    I(f"v_readfirstlane_b32 s{sW}, v1")
    I(f"s_and_b32 s{sT0}, s2, 1")
    I(f"s_bfe_u32 s{sT1}, s2, 0x30003")
    I(f"s_lshl3_add_u32 s{sT}, s{sT0}, s{sT1}")
    I(f"s_lshr_b32 s{sT2}, s2, 6")
    I(f"s_and_b32 s{sT0}, s2, 6")
    I(f"s_and_b32 s{sT1}, s{sT2}, 1")
    I(f"s_add_u32 s{sA}, s{sT0}, s{sT1}")
    I(f"s_lshl1_add_u32 s{sR}, s{sT2}, s{sT}")
    rot = CFG["rot"]
    if CFG["xm"]:
        I(f"s_and_b32 s{sT0}, s2, 7")
        I(f"s_bfe_u32 s{sT1}, s2, 0x10006")
        I(f"s_lshl1_add_u32 s{sT}, s{sT0}, s{sT1}")
        I(f"s_bfe_u32 s{sA}, s2, 0x30003")
        if CFG.get("ap"): I(f"s_xor_b32 s{sA}, s{sA}, {CFG['ap']}")
        if rot[0] == "e": I(f"s_mov_b32 s{sR}, s{sT0}")
        if rot[0] == "f": I(f"s_add_u32 s{sR}, s{sT0}, s{sA}")
        if rot[0] == "g": I(f"s_lshl2_add_u32 s{sR}, s{sT1}, s{sT0}")
        if rot[0] == "h": I(f"s_lshl1_add_u32 s{sR}, s{sT2}, s{sT0}")
        if rot[0] == "i": I(f"s_lshl2_add_u32 s{sR}, s{sT1}, s{sT0}"); I(f"s_add_u32 s{sR}, s{sR}, s{sA}")
    if rot[0] == "b": I(f"s_add_u32 s{sR}, s{sT2}, s{sT}"); I(f"s_lshl_b32 s{sR}, s{sR}, 1")
    if rot[0] == "c": I(f"s_add_u32 s{sR}, s{sT2}, s{sT}"); I(f"s_lshl_b32 s{sR}, s{sR}, 2")
    if rot[0] == "d": I(f"s_mov_b32 s{sR}, 0")
    if rot[1:] == "x": I(f"s_add_u32 s{sR}, s{sR}, s2")
    if rot[1:] == "y": I(f"s_lshr_b32 s{sC}, s2, 1"); I(f"s_add_u32 s{sR}, s{sR}, s{sC}"); I(f"s_and_b32 s{sC}, s2, 1"); I(f"s_lshl1_add_u32 s{sR}, s{sC}, s{sR}")
    if rot[1:] == "z": I(f"s_add_u32 s{sR}, s{sR}, s{sT0}"); I(f"s_and_b32 s{sC}, s2, 1"); I(f"s_lshl2_add_u32 s{sR}, s{sC}, s{sR}")
    I(f"v_lshrrev_b32 v2, 4, v{vLN}")
    I(f"v_lshrrev_b32 v3, 3, v{vLN}")
    I(f"v_and_b32 v4, 7, v{vLN}")
    I(f"s_and_b32 s{sT0}, s{sW}, 1")
    I(f"s_lshr_b32 s{sT1}, s{sW}, 1")
    I(f"s_lshl2_add_u32 s{sT1}, s{sT1}, s{sT0}")
    I(f"s_lshl_b32 s{sMX}, s{sT1}, 10")
    I(f"s_lshl4_add_u32 s{sT1}, s{sT}, s{sT1}")
    I(f"s_lshl_b32 s{sT1}, s{sT1}, 13")
    I(f"s_lshl_b32 s{sT0}, s{sT0}, 2")
    I(f"v_or_b32 v5, s{sT0}, v2")
    I(f"v_xor_b32 v5, v5, v4")
    I(f"v_lshlrev_b32 v5, 4, v5")
    I(f"v_lshl_add_u32 v5, v3, 10, v5")
    I(f"v_add_u32 v{vXO}, s{sT1}, v5")
    I(f"s_lshl_b32 s{sMW}, s{sW}, 10")
    I(f"s_mul_i32 s{sT0}, s{sW}, {8*3072}")
    I(f"s_lshl_b32 s{sT1}, s{sA}, 7")
    I(f"s_add_u32 s{sT0}, s{sT0}, s{sT1}")
    I(f"s_and_b32 s{sC}, s{sR}, 7")
    I(f"s_lshl_b32 s{sO1}, s{sC}, 7")
    I(f"s_mul_i32 s{sO2}, s{sC}, {64*3072}")
    I(f"s_cmp_lt_u32 s2, 128")
    I(f"s_cselect_b32 s{sT1}, 1024, 0")
    I(f"s_cselect_b32 s{sT3}, 0, {T(1).xp(0) - T(0).xp(0)}")
    I(f"s_cselect_b32 s{sT2}, 0, {T(1).wp(0) - T(0).wp(0)}")
    I(f"s_add_u32 s{sT3}, s{sT3}, {T(0).xp(0)}")
    I(f"s_add_u32 s{sT2}, s{sT2}, {T(0).wp(0)}")
    I(f"s_add_u32 s{sT0}, s{sT0}, s{sT1}")
    I(f"v_and_b32 v5, 1, v2")
    I(f"v_lshlrev_b32 v5, 2, v5")
    I(f"v_xor_b32 v5, v5, v4")
    I(f"v_lshlrev_b32 v5, 4, v5")
    I(f"v_mul_u32_u24 v6, 3072, v3")
    I(f"v_add3_u32 v{vWO}, v5, v6, s{sT0}")
    I(f"s_add_u32 m0, s{sMX}, s{sT3}")
    I(f"s_add_u32 s{sT1}, s{sO1}, {16384 - 2048}")
    I(f"s_mov_b32 s{SWQ+2}, {512*3072}")
    I(f"s_mov_b32 s{SWQ+3}, 0x20000")
    pstamp(P, 1)
    I("s_waitcnt lgkmcnt(0)")
    pstamp(P, 2)
    I(f"s_mov_b32 s{SWQ}, s10")
    I(f"s_mov_b32 s{SWQ+1}, s11")
    I(f"s_mov_b32 s{SX+2}, 2097152")
    I(f"s_mov_b32 s{SX+3}, 0x20000")
    I(f"buffer_load_dwordx4 v{vXO}, {s(SX,4)}, s{sO1} offen lds", "x0")
    I(f"buffer_load_dwordx4 v{vXO}, {s(SX,4)}, s{sT1} offen offset:2048 lds", "x0")
    I(f"s_add_u32 m0, s{sMW}, s{sT2}")
    I(f"buffer_load_dwordx4 v{vWO}, {s(SWQ,4)}, s{sO2} offen lds", "w0")
    for r, o in ((SWP, 16), (SWG, 40), (SWU, 48), (SWS, 80), (SDB, 72), (SWO, 24), (SWD, 56), (SWO + 2, 64)):
        I(f"s_load_dwordx2 {s(r,2)}, s[0:1], {o}")
    pstamp(P, 3)
    I(f"s_and_b32 s{sI}, s{sW}, 3")
    I(f"s_lshr_b32 s{sT0}, s{sW}, 2")
    I(f"s_lshr_b32 s{sT1}, s2, 7")
    I(f"s_lshl1_add_u32 s{sT0}, s{sT1}, s{sT0}")
    for k in (1, 2, 3):
        I(f"s_cmp_eq_u32 s{sT0}, {k}")
        I(f"s_cbranch_scc1 L_{name}_r{k}")

def setup(P, t, g):
    I = P.I; typ = t.typ
    a, b, c, d, h, sb, r, sw, row, j4 = range(112, 122)
    def pdm(l):
        for nm in l.split():
            for z in (dma_x if nm[0] == "x" else dma_w)(t, int(nm[1])):
                for y in z: emit(P, y)
    if CFG.get("po"): pdm(CFG["po"][typ][0])
    for R, n in ((SWP, 16384), (SWG, 512*2752), (SWU, 512*2752), (SWS, WS_BYTES), (SDB, 256), (SWD, 1376*1024)):
        if R == (SWG if g else SWU): continue
        I(f"s_mov_b32 s{R+2}, {n}")
        I(f"s_mov_b32 s{R+3}, 0x20000")
    I(f"s_mov_b32 s{sHI}, 0xffff0000")
    I(f"s_getreg_b32 s{sXV}, hwreg(HW_REG_XCC_ID, 0, 4)")
    I(f"s_mul_i32 s{sMD}, s{sXV}, s{sXV}")
    I(f"s_lshl_b32 s{sMD}, s{sMD}, 9")
    I(f"s_add_u32 s{sXV}, s{sXV}, s{sMD}")
    I(f"s_lshl_b32 s{sXV}, s{sXV}, 8")
    I(f"s_add_u32 s{sXV}, s{sXV}, 1")
    I(f"s_lshl_b32 s{sI4}, s{sI}, 2")
    I(f"v_mov_b32 v{j4}, v2")
    I(f"v_lshrrev_b32 v{h}, 5, v{vLN}")
    I(f"v_and_b32 v{sb}, 1, v2")
    I(f"v_bfe_u32 v{r}, v{vLN}, 2, 2")
    I(f"v_bfe_u32 v{a}, v{vLN}, 1, 1")
    I(f"v_and_b32 v{b}, 1, v{vLN}")
    I(f"v_lshl_or_b32 v{sw}, v{b}, 1, v{a}")
    I(f"v_lshlrev_b32 v{sw}, 3, v{sw}")
    I(f"v_lshl_add_u32 v{row}, v{h}, 3, v{r}")
    I(f"v_lshl_or_b32 v{c}, v{sb}, 1, v{a}")
    I(f"v_lshlrev_b32 v{c}, 3, v{c}")
    I(f"v_lshl_add_u32 v{c}, v{row}, 5, v{c}")
    I(f"v_lshl_add_u32 v{c}, v{b}, 11, v{c}")
    I(f"v_add_u32 v{vWF}, {t.WPH + g*1024}, v{c}")
    if typ == 0:
        I(f"v_bfe_u32 v{c}, v{vLN}, 2, 3")
        I(f"v_lshl_add_u32 v{c}, v{h}, 4, v{c}")
        I(f"v_mul_u32_u24 v{c}, 96, v{c}")
        I(f"v_lshl_add_u32 v{c}, v{b}, 3, v{c}")
        I(f"s_lshr_b32 s{sT0}, s{sI}, 1")
        I(f"s_mul_i32 s{sT0}, s{sT0}, 12288")
        I(f"s_add_u32 s{sT0}, s{sT0}, {PH + 2*g*12288}")
        I(f"s_and_b32 s{sT1}, s{sI}, 1")
        I(f"s_lshl_b32 s{sT1}, s{sT1}, 5")
        I(f"s_add_u32 s{sT1}, s{sT1}, s{sT0}")
        I(f"v_xor_b32 v{d}, v{a}, v{sb}")
        I(f"v_lshlrev_b32 v{d}, 4, v{d}")
        I(f"v_add3_u32 v{vKA}, v{c}, v{d}, s{sT1}")
    I(f"v_and_b32 v{b}, 2, v{r}")
    I(f"v_or_b32 v{b}, v{b}, v{sb}")
    I(f"v_lshl_add_u32 v{b}, v{b}, 5, v{sw}")
    I(f"v_lshl_add_u32 v{b}, v{row}, 7, v{b}")
    I(f"s_lshl_b32 s{sT0}, s{sI}, 11")
    if g: I(f"s_add_u32 s{sT0}, s{sT0}, 64")
    I(f"v_xor_b32 v{vAA[0][0]}, s{sT0}, v{b}")
    I(f"v_and_b32 v{a}, 31, v{vLN}")
    I(f"v_bfe_u32 v{b}, v{vLN}, 1, 3")
    I(f"v_xor_b32 v{b}, v{b}, v{h}")
    I(f"v_lshlrev_b32 v{b}, 4, v{b}")
    I(f"v_lshl_add_u32 v{b}, v{a}, 7, v{b}")
    I(f"s_mul_i32 s{sT0}, s{sI}, {4096 + 32}")
    I(f"v_xor_b32 v{vAX[0][0]}, s{sT0}, v{b}")
    for p in range(1, 4):
        I(f"v_xor_b32 v{vAX[0][p]}, {p*32}, v{vAX[0][0]}")
        I(f"v_xor_b32 v{vAA[0][p]}, {p*2048}, v{vAA[0][0]}")
    for p in range(4):
        I(f"v_add_u32 v{vAX[1][p]}, {t.XB[1]}, v{vAX[0][p]}")
        I(f"v_add_u32 v{vAA[1][p]}, {t.WB[1]}, v{vAA[0][p]}")
        if t.XB[0]: I(f"v_add_u32 v{vAX[0][p]}, {t.XB[0]}, v{vAX[0][p]}")
        I(f"v_add_u32 v{vAA[0][p]}, {t.WB[0]}, v{vAA[0][p]}")
    I(f"s_lshl_b32 s{sT0}, s{sI}, 9")
    I(f"s_add_u32 s{sT0}, s{sT0}, {t.ST}")
    I(f"v_lshlrev_b32 v{b}, 4, v{a}")
    I(f"v_add_u32 v{vSTR}, s{sT0}, v{b}")
    I(f"v_lshl_add_u32 v{vSTW}, v{h}, 2, v{vSTR}")
    I(f"v_lshl_add_u32 v{vSTW}, v{sb}, 3, v{vSTW}")
    if g: I(f"v_xor_b32 v{vSTW}, 8, v{vSTW}")
    if typ == 0:
        I(f"v_mul_u32_u24 v{b}, 96, v{a}")
        I(f"v_and_b32 v{c}, 4, v{a}")
        I(f"v_lshlrev_b32 v{c}, 2, v{c}")
        I(f"s_mul_i32 s{sT0}, s{sI}, 3072")
        I(f"s_add_u32 s{sT0}, s{sT0}, {PH + 2*g*12288}")
        I(f"v_add3_u32 v{b}, v{b}, v{c}, s{sT0}")
        I(f"v_lshl_add_u32 v{vPH}, v{h}, 5, v{b}")
        I(f"v_lshlrev_b32 v{c}, 4, v{h}")
        I(f"v_xor_b32 v{vKB}, v{b}, v{c}")
    if CFG.get("po"): pdm(CFG["po"][typ][1])
    I(f"v_mul_u32_u24 v{b}, {t.RB}, v{row}")
    I(f"v_mul_u32_u24 v{c}, {t.UP}, v{sb}")
    I(f"v_add3_u32 v{b}, v{b}, v{c}, v{sw}")
    for p in range(4):
        I(f"s_xor_b32 s{sT0}, s{sI}, {p}")
        I(f"s_mul_i32 s{sT0}, s{sT0}, {16*t.RB}")
        I(f"v_add_u32 v{vAG[p]}, s{sT0}, v{b}")
    I(f"s_mul_i32 s{sMG}, s{sI}, {16*t.RB}")
    if g: I(f"s_add_u32 s{sMG}, s{sMG}, {t.UP}")
    if typ == 0:
        I(f"s_mul_i32 s{sT2}, s{sA}, 5")
        I(f"s_min_u32 s{sT2}, s{sT2}, 33")
        I(f"s_add_u32 s{sT2}, s{sT2}, 48")
    else: I(f"s_mul_i32 s{sT2}, s{sA}, 6")
    I(f"s_mul_i32 s{sT0}, s{sI}, {16*2752}")
    I(f"s_lshl_b32 s{sT1}, s{sT2}, 5")
    I(f"s_add_u32 s{sT0}, s{sT0}, s{sT1}")
    I(f"s_mov_b32 s{sT1}, {2752 - 16*t.NP}")
    I(f"v_lshlrev_b32 v{a}, 4, v{vLN}")
    I(f"v_add_u32 v{vM16}, {MB}, v{a}")
    I(f"v_add_u32 v{a}, s{sT0}, v{a}")
    I(f"v_mul_u32_u24 v{b}, {t.MUL}, v{vLN}")
    for j in range(3):
        if j: I(f"v_add_u32 v{b}, {64*t.MUL}, v{b}")
        I(f"v_lshrrev_b32 v{c}, 11, v{b}")
        I(f"v_mad_u32_u24 v{vGO[j]}, v{c}, s{sT1}, v{a}")
        if typ == 0 and CFG["dup"]:
            if j == 0:
                I(f"s_cmp_eq_u32 s{sA}, 7")
                I(f"s_cselect_b32 s{sT3}, {4*t.MUL}, 0")
            I(f"v_and_b32 v{c}, 0x7ff, v{b}")
            I(f"v_cmp_gt_u32 vcc, s{sT3}, v{c}")
            I(f"v_cndmask_b32 v{vGO[j]}, v{vGO[j]}, 2.0, vcc")
    I(f"v_and_b32 v{a}, 15, v{vLN}")
    I(f"v_lshlrev_b32 v{b}, 2, v{j4}")
    I(f"v_mov_b32 v{c}, 0x3f803f80")
    I(f"v_cmp_eq_u32 vcc, v{a}, v{b}")
    for k in range(4): I(f"v_cndmask_b32 v{CP+k}, 0, v{c}, vcc")
    I(f"v_xor_b32 v{b}, s{sI4}, v{b}")
    I(f"v_or_b32 v{vCW}, v{b}, v{vM16}")
    I(f"s_lshl2_add_u32 s{sT0}, s{sT}, s{sI}")
    I(f"s_mul_i32 s{sT0}, s{sT0}, 118")
    I(f"s_add_u32 s{sT1}, s{sT0}, s{sT2}")
    I(f"s_add_u32 s{sT1}, s{sT1}, {32 + (3*g if typ else 2*g)}")
    I(f"s_lshl_b32 s{sHF}, s{sT1}, 10")
    I(f"s_lshr_b32 s{sT1}, s{sW}, 1")
    I(f"s_lshl2_add_u32 s{sT1}, s{sA}, s{sT1}")
    I(f"s_mul_i32 s{sT1}, s{sT1}, 17408")
    I(f"s_and_b32 s{sT2}, s{sW}, 1")
    if typ == 0:
        I(f"s_lshl4_add_u32 s{sT3}, s{sT2}, s{sT}")
        I(f"s_lshl_b32 s{sT3}, s{sT3}, 9")
        I(f"s_add_u32 s{sK1}, s{sT1}, s{sT3}")
        I(f"s_add_u32 s{sK1}, s{sK1}, {KVP_OFF - MB//2}")
        I(f"s_lshl1_add_u32 s{sT3}, s{sT}, s{sT2}")
        I(f"s_lshl_b32 s{sT3}, s{sT3}, 5")
        I(f"s_add_u32 s{sK2}, s{sT1}, s{sT3}")
        I(f"s_add_u32 s{sK2}, s{sK2}, {KVP_OFF + 16384 - MB//32}")
        I(f"s_lshl_b32 s{sEX}, s{sI}, 11")
        I(f"s_sub_u32 s{sEX}, s{sEX}, {MB - 3*t.SL}")
    else:
        I(f"s_add_u32 s{sK2}, s{sT1}, {KVP_OFF + 16384 - MB}")
        I(f"s_lshl_b32 s{sT2}, s{sT2}, 13")
        I(f"s_add_u32 s{sK1}, s{sT1}, s{sT2}")
        I(f"s_add_u32 s{sK1}, s{sK1}, {KVP_OFF - MB}")
        I(f"s_lshl2_add_u32 s{sT0}, s{sA}, s{sT0}")
        I(f"s_add_u32 s{sT0}, s{sT0}, {2*g}")
        I(f"s_lshl_b32 s{sEX}, s{sT0}, 10")
    I(f"v_lshlrev_b32 v{a}, 2, v{vLN}")
    I(f"s_lshl_b32 s{sT0}, s{sW}, 8")
    I(f"s_lshl_b32 s{sT1}, s{sA}, 11")
    I(f"s_add_u32 s{sT1}, s{sT1}, s{sT0}")
    I(f"s_add_u32 s{sT0}, s{sT0}, {t.WPH}")
    I(f"v_add_u32 v{vWPA}, s{sT0}, v{a}")
    I(f"s_lshr_b32 s{sT0}, s{sI}, 1")
    I(f"s_lshl1_add_u32 s{sT0}, s{sT}, s{sT0}")
    I(f"s_lshl3_add_u32 s{sT0}, s{sT0}, s{sA}")
    I(f"s_lshl_b32 s{sT0}, s{sT0}, 7")
    I(f"s_and_b32 s{sT2}, s{sI}, 1")
    I(f"s_lshl2_add_u32 s{sT0}, s{sT2}, s{sT0}")
    I(f"s_add_u32 s{sFL}, s{sT0}, {FLG + 16*typ + 8*g}")
    if typ == 0 and g == 0:
        I(f"s_cmp_eq_u32 s{sA}, 7")
        I(f"s_cselect_b32 s{sA}, 2.0, s{sHF}")
    I(f"v_mov_b32 v{b}, 0")
    if typ == 1:
        for x in p2addr(t, vLN, c, d): I(x)
    I(f"v_lshlrev_b32 v{vTCH}, 7, v{vLN}")
    if typ == 0:
        I(f"v_mov_b32 v{h}, -1")
        I(f"v_mov_b32 v{h+1}, -1")
        I(f"v_lshrrev_b32 v{c}, 1, v{vM16}")
        I(f"v_lshrrev_b32 v{d}, 5, v{vM16}")
    pstamp(P, 4)
    I("s_waitcnt lgkmcnt(0)")
    def dmy(js):
        for j in js:
            if j < 3 or typ: I(f"buffer_store_dwordx4 {v(CP,4)}, v{vM16}, {s(SWS,4)}, s{(sA if (typ, g) == (0, 0) and j < 2 else sHF) if j < 3 else sEX} offen offset:{(j%3)*1024}{CFG.get('dmm', '')}")
    if CFG["th"] & 64: dmy(CFG["dj"][0])
    if CFG.get("po"):
        I(f"buffer_load_dword v{vWPV}, v{a}, {s(SWP,4)}, s{sT1} offen")
        pdm(CFG["po"][typ][2])
    else:
        for x in dma_x(t, 1):
            for y in x: emit(P, y)
        I(f"buffer_load_dword v{vWPV}, v{a}, {s(SWP,4)}, s{sT1} offen")
        for x in stream_list(t, g)[1:CFG["pro"]]:
            for z in x:
                for y in z: emit(P, y)
    if CFG["th"] & 64: dmy(CFG["dj"][1])
    if CFG["t3"] == 2:
        I(f"s_and_b32 s{sT0}, s2, 0xf8")
        I(f"s_add_u32 s{sT0}, s{sT0}, s{sW}")
        I(f"s_mul_i32 s{sT0}, s{sT0}, {2*3072}")
        I("s_mov_b32 exec_hi, 0xffff")
        I(f"buffer_load_dword v{75 if typ else 26}, v{vTCH}, {s(SWQ,4)}, s{sT0} offen")
    if CFG["t3"] == 3:
        I(f"s_and_b32 s{sT0}, s2, 0xf8")
        I(f"s_add_u32 s{sT0}, s{sT0}, s{sW}")
        I(f"s_mul_i32 s{sT0}, s{sT0}, {2*3072}")
        I("s_mov_b32 exec_lo, 0xff00ffff")
        I("s_mov_b32 exec_hi, 0xff")
        I(f"buffer_load_dword v{75 if typ else 26}, v{vTCH}, {s(SWQ,4)}, s{sT0} offen")
    if CFG["t3"] in (1, 4):
        I(f"s_lshr_b32 s{sT0}, s2, 3")
        I(f"s_lshl2_add_u32 s{sT0}, s{sT0}, s{sI}")
        I(f"s_mul_i32 s{sT0}, s{sT0}, {4*3072}")
        I(f"v_lshlrev_b32 v{a}, 3, v{vTCH}")
        I("s_mov_b64 exec, 0xfff")
        if g or CFG["t3"] == 4: I(f"buffer_load_dword v{75 if typ else 26}, v{a}, {s(SWQ,4)}, s{sT0} offen offset:{384 if g else 896}")
    I("s_mov_b64 exec, 1")
    I(f"buffer_store_dword v{b}, off, {s(SWS,4)}, s{sFL} sc1")
    I("s_mov_b64 exec, -1")
    if typ == 0:
        I(f"buffer_store_dwordx2 {v(h,2)}, v{c}, {s(SWS,4)}, s{sK1} offen sc1")
        I("s_mov_b32 exec_lo, 0x10001")
        I("s_mov_b32 exec_hi, 0x10001")
        I(f"buffer_store_dwordx2 {v(h,2)}, v{d}, {s(SWS,4)}, s{sK2} offen sc1")
        I("s_mov_b64 exec, -1")
    for r, m in zip(MS(g), (0xaaaaaaaa, 0xcccccccc, 0xff00ff00, 0xffff0000, 0x0f0f0f0f)):
        I(f"s_mov_b32 s{r}, {m:#x}")
        I(f"s_mov_b32 s{r+1}, {(m if m != 0x0f0f0f0f else 0xf0f0f0f0):#x}")
    pstamp(P, 5)

def P2R(typ): return (28, 29, 30, 31, 26) if typ else (27, 31, 26, 28, 29)
def p2addr(t, ln, a, b):
    vWa, vRD0, vRD1 = P2R(t.typ)[:3]
    base = t.RG[5] if t.typ else PH
    return [f"v_and_b32 v{a}, 7, v{ln}", f"v_lshlrev_b32 v{a}, 4, v{a}", f"v_and_b32 v{b}, 16, v{ln}", f"v_lshlrev_b32 v{b}, 2, v{b}", f"v_xor_b32 v{a}, v{a}, v{b}",
            f"v_lshrrev_b32 v{b}, 3, v{ln}", f"v_lshl_add_u32 v{vWa}, v{b}, 10, v{a}",
            ] + ([f"v_and_b32 v{a}, 3, v{ln}"] if CFG.get("rb") else [f"v_bfe_u32 v{a}, v{ln}, 1, 1", f"v_and_b32 v{b}, 1, v{ln}", f"v_lshl_or_b32 v{a}, v{b}, 1, v{a}"]) + [f"v_lshlrev_b32 v{a}, 3, v{a}",
            f"v_bfe_u32 v{b}, v{ln}, 4, 1", f"v_lshl_add_u32 v{a}, v{b}, 5, v{a}", f"v_and_b32 v{b}, 8, v{ln}", f"v_lshl_add_u32 v{a}, v{b}, 3, v{a}",
            f"v_bfe_u32 v{b}, v{ln}, 2, 2", f"v_lshl_add_u32 v{a}, v{b}, 7, v{a}", f"v_lshrrev_b32 v{b}, 5, v{ln}", f"v_lshl_add_u32 v{a}, v{b}, 10, v{a}",
            f"v_lshl_add_u32 v{a}, s{sMW}, 1, v{a}", f"v_xor_b32 v{b}, 64, v{a}", f"v_add_u32 v{vRD0}, {base}, v{a}", f"v_add_u32 v{vRD1}, {base}, v{b}"]
def MS(g): return [0, SWP, SWP + 2, (SWG if g else SWU), (SWG if g else SWU) + 2]
def softmax(W, O, m=vMX, sm=vSM):
    o = [f"v_max_f32 v{m}, v{W}, v{W+1}", f"v_max_f32 v{sm}, v{W+2}, v{W+3}"]
    for k in range(4, 16, 4):
        o.append(f"v_max3_f32 v{m}, v{m}, v{W+k}, v{W+k+1}")
        o.append(f"v_max3_f32 v{sm}, v{sm}, v{W+k+2}, v{W+k+3}")
    o.append(f"v_max_f32 v{m}, v{m}, v{sm}")
    o.append(f"v_mul_f32 v{m}, v{m}, v{vC1}")
    for k in range(16): o.append(f"v_fma_f32 v{W+k}, v{W+k}, -v{vC1}, v{m}")
    for k in range(16):
        o.append(f"v_exp_f32 v{W+k}, v{W+k}")
        if k == 2: o.append(f"v_add_f32 v{sm}, v{W}, v{W+1}")
        if k > 2: o.append(f"v_add_f32 v{sm}, v{sm}, v{W+k-1}")
    o.append(f"v_add_f32 v{sm}, v{sm}, v{W+15}")
    o.append(f"v_rcp_f32 v{sm}, v{sm}")
    for k in range(8):
        o.append(f"v_mul_f32 v{W+2*k}, v{W+2*k}, v{sm}")
        o.append(f"v_mul_f32 v{W+2*k+1}, v{W+2*k+1}, v{sm}")
        o.append(f"v_cvt_pk_bf16_f32 v{O+k}, v{W+2*k}, v{W+2*k+1}")
    return o

def glu(G, U, n):
    o = []
    for k in range(n): o.append(f"v_mul_f32 v{G+k}, v{G+k}, v{vC1}")
    for k in range(n): o.append(f"v_exp_f32 v{G+k}, v{G+k}")
    for k in range(n): o.append(f"v_fma_f32 v{G+k}, v{G+k}, v{vSTD}, v{vSTD}")
    for k in range(n): o.append(f"v_rcp_f32 v{G+k}, v{G+k}")
    for k in range(n): o.append(f"v_mul_f32 v{G+k}, v{G+k}, v{U+k}")
    for k in range(n // 2): o.append(f"v_cvt_pk_bf16_f32 v{G+k}, v{G+2*k}, v{G+2*k+1}")
    return o

def publish(c, t0, t1, addr, blk, tag):
    return [f"v_and_b32 v{t0}, s{sHI}, v{c}", f"v_sub_f32 v{t1}, v{c}, v{t0}", f"v_cvt_pk_bf16_f32 v{t0}, v{t0}, v{t1}",
            f"ds_write_b32 v{addr}, v{t0} offset:{CSP - MB + blk*1024} #{tag}"]

def stream(P, typ, g, name):
    global vST, vSQ, vU, vSTW, vSTR, vCW
    I = P.I; t = T(typ); D = 3; sn = f"{name}_{typ}{g}"
    o_ = AV if typ else 83
    vST, vSQ, vU, vSTW, vSTR = o_, o_ + 1, [o_ + 2, o_ + 3, o_ + 4, o_ + 5], o_ + 6, o_ + 7
    vCW = AV + 8 if typ else 94
    PB = CFG["qpub"] if typ else "v1"
    if g and CFG.get("pri"): I(f"s_setprio {CFG['pri']}")
    setup(P, t, g)
    S = Sched(D)
    F = "v[32:35]"
    def mm(acc, x, first): return lambda f: f"v_mfma_f32_32x32x16_bf16 {v(acc,16)}, {f}, {v(x,4)}, {'0' if first else v(acc,16)}"
    def cm(c, first): return lambda f: f"v_mfma_f32_16x16x32_bf16 {v(c,4)}, {v(CP,4)}, {f}, {'0' if first else v(c,4)}"
    def tr(ad, im, sec): return [("tr", ad, im), ("tr2", ad, im + sec)]
    main = []; first = {}
    P1 = {}; SQ = {}
    for st in range(8):
        hi, so = t.sp(t.wp(st), t.WB)
        for p in range(4):
            it = Item(mm(AK, XR(st, p), st == 0 and p == 0), tr(vAA[hi][p], so, 512), cm(CD[0], st == 0) if p == 0 else None, name=f"{st}p{p}")
            if p == 0:
                it.bar = st; first[st] = it
                xh, xo = t.sp(t.xp(st), t.XB)
                if st < 2: it.pre = [f"ds_read_b128 {v(XR(st,q),4)}, v{vAX[xh][q]} offset:{xo}" for q in range(4)]
            main.append(it); P1[st, p, 0] = it
        for xs in CFG["sq"][st]:
            for q in (2*g, 2*g+1):
                SQ[xs, q] = Item((lambda x, fi: lambda f: f"v_mfma_f32_32x32x16_bf16 {v(GA[2],16)}, {v(x,4)}, {v(x,4)}, {'0' if fi else v(GA[2],16)}")(XR(xs, q), not SQ), name=f"sq{xs}{q}")
                if xs == 7: main.insert(main.index(P1[st, CFG["sq7"], 0]), SQ[xs, q])
                else: main.append(SQ[xs, q])
    V = {}
    if typ == 0:
        for c in range(8):
            hi, so = t.sp(t.vp(c), t.WB)
            for p in range(4): V[c, p] = Item(mm(AV, XR(c, p), c == 0 and p == 0), tr(vAA[hi][p], so, 512), cm(CD[1], False) if p == 0 else None, name=f"v{c}p{p}")
        for c in (1, 3, 6):
            it = V[c, 0] if c > 1 else V[CFG["v1"]]
            it.bar = f"v{c}"; first[f"v{c}"] = it
        main += [V[c, p] for c in range(6) for p in range(4)] + [V[6,0], V[7,0]] + [V[c, p] for c in (6, 7) for p in (1, 2, 3)]
    nb = 3
    blk = [3*g, 3*g+1, 3*g+2] if typ else [3*g, 3*g+1, 2]
    def gi(st, p, b):
        o = t.g(st)
        if o >= 3 * t.SL: o -= 3 * t.SL
        fst = st == 8 and (p == 0 or (typ == 0 and b == 2 and p == 2*g))
        sm = cm(CD[b], st == 8) if p == 0 else None
        return Item(mm(GA[b], XR(st-8, p), fst), tr(vAG[p], o + blk[b]*32, 4*t.RB), sm, name=f"{st}p{p}b{b}")
    def has(p, b): return typ == 1 or b < 2 or (p >> 1) == g
    G = {}
    for st in range(8, 16):
        for p in range(4):
            for b in range(nb):
                if has(p, b): G[st, p, b] = gi(st, p, b)
    for st in range(8, 13):
        l = [G[st, p, b] for p in range(4) for b in range(nb) if has(p, b)]
        l[0].bar = st; first[st] = l[0]; main += l
    first[PB].pre = [f"ds_read_b128 {v(vMU,4)}, v{vSTR}"]
    def corr(acc, cb, nbar, nm):
        return Item(mm(acc, vMU, False), [("b128", vM16, CSP - MB + cb*1024)], needbar=nbar, name=nm)
    C = [corr(GA[b], blk[b], "cs", f"corr{b}") for b in range(nb)]
    rest = lambda b, sts: [G[st, p, b] for st in sts for p in (1, 2, 3)]
    if typ == 0:
        sh = lambda st: [G[st, 2*g, 2], G[st, 2*g+1, 2]]
        t13 = [G[13,0,0], G[13,0,1]] + sh(13) + rest(0, [13])
        t15 = [G[14,0,0], G[14,0,1]] + sh(14) + sh(15) + [G[15,0,0], G[15,0,1]]
        r0 = rest(0, [14, 15]); r1 = rest(1, [13, 14, 15])
        tail = r0[:5] + [C[2]] + r0[5:] + [C[0]] + r1 + [C[1]]
        C[2].bar = "cs"
    else:
        t13 = [G[13,0,b] for b in range(3)] + rest(0, [13])
        t15 = [G[st,0,b] for st in (14, 15) for b in range(3)]
        r0 = rest(0, [14, 15])
        tail = r0[:5] + [C[0]] + r0[5:] + rest(1, [13, 14, 15]) + [C[1]] + rest(2, [13, 14, 15]) + [C[2]]
        C[0].bar = "cs"
    t13[0].bar = 13; t15[0].bar = 15; first[13] = t13[0]; first[15] = t15[0]
    main += t13 + t15 + tail
    barwait = {0: ["x0", "w0"], 1: ["x1", "w1", "x2"], 7: ["w7"], 15: ["w14", "w15"], "cs": []}
    for st in range(2, 7): barwait[st] = [f"w{st}", f"x{st+1}"]
    for st in range(8, 14): barwait[st] = [f"w{st}"]
    barlg = {PB: ["pub"], "cs": ["cs"]}
    BO = list(range(14))
    if typ == 0:
        barwait[7] = ["w7", "v0"]; barwait["v1"] = ["v1", "v2"]; barwait["v3"] = ["v3", "v4", "v5"]; barwait["v6"] = ["v6", "v7"]
        barlg[8] = ["pubv"]
        BO = list(range(8)) + ["v1", "v3", "v6"] + list(range(8, 14))
    sl = stream_list(t, g); pro = CFG["pro"]
    dm = {b: [] for b in BO[:-1]}
    if CFG.get("po"):
        pro = 14
        for b, l in enumerate(CFG["po"][typ][3:]):
            for nm in l.split(): dm[b] += (dma_x if nm[0] == "x" else dma_w)(t, int(nm[1]))
    if typ == 0:
        for k in range(pro, 14): dm[max(0, (k - 3) // 2)] += sl[k]
        for b, l in CFG["vdm"].items():
            for c in l: dm[b] += dma_v(t, c)
        dm[CFG["g8"]] += dma_g(t, g, 8)
        dm["v3"] += dma_g(t, g, 9); dm["v6"] += dma_g(t, g, 10)
        for b in range(8, 13): dm[b] = dma_g(t, g, b + 3)
    else:
        ql = CFG.get("qlead", 2)
        for k in range(pro, 14): dm[max(0, (k + 1 - 2*ql) // 2)] += sl[k]
        if ql == 3:
            for b in range(5, 13): dm[b] += dma_g(t, g, b + 3)
        else:
            g8 = dma_g(t, g, 8); g9 = dma_g(t, g, 9); g10 = dma_g(t, g, 10)
            dm[5] += g8[:2]; dm[6] = g8[2:] + g9[:2]; dm[7] = g9[2:] + g10[:2]; dm[8] = g10[2:] + dma_g(t, g, 11)
            for b in range(9, 13): dm[b] += dma_g(t, g, b + 3)
    if CFG["b0end"]: dm[0] = [sum(dm[0], [])] if dm[0] else []
    nxt = lambda b: BO[BO.index(b) + 1]
    heavy = []
    def hok(n):
        if not CFG["hstag"]: return True
        if n % 2 != g or n + 1 in S.bs.values(): return False
        return not any(dpos(b, j, len(dm[b]), gg)() == n for b in dm for j in range(len(dm[b])) for gg in (0, 1))
    def dpos(b, j, k, g=g):
        def f():
            L = S.bs[nxt(b)] - S.bs[b]; o = S.bs[b]
            if b == 0 and CFG['b0end']: return o + L - 1
            if b == 0: return o + j if typ else o + min(L - 2, 2 * j + g) if k <= 4 else o + j
            if 2 * k <= L: return o + min(L - 2, int((j + 0.5 * g) * L / k + 0.01))
            return o + min(L - 1, int((j + 0.5 * g) * L / k + 0.01))
        return f
    for b in BO[:-1]:
        for j, x in enumerate(dm[b]): heavy.append(S.add(x, after=b, before=nxt(b), kind="misc", lo=dpos(b, j, len(dm[b])) if CFG["pace" if BO.index(b) < (6 if typ else 8) else "paceg"] or b == 0 else None))
    if g == 1:
        S.add(f"v_mov_b32 v95, s{sXV}", after=2)
        S.add([f"s_cmp_eq_u32 s{sI}, 0", "s_cselect_b32 exec_lo, 1, 0", "s_mov_b32 exec_hi, 0", f"s_and_b32 s{sT3}, s2, 7", f"s_lshl_b32 s{sT3}, s{sT3}, 5",
               f"buffer_atomic_add v95, off, {s(SDB,4)}, s{sT3} sc1", "s_mov_b64 exec, -1"], after=CFG["atm"][typ], lo=(first[7], CFG["atm"][2+typ]), before=8)
    for p in range(4):
        bs = [b for b in range(nb) if has(p, b)]
        S.add(f"v_add_u32 v{vAG[p]}, {3*t.SL}, v{vAG[p]}", lo=(G[10,p,bs[-1]], -D), hi=(G[11,p,0], -D-1))
        nx = G[13,p,0] if not (typ == 0 and p and (p >> 1) == g) else G[13,p,2]
        S.add(f"v_subrev_u32 v{vAG[p]}, {3*t.SL}, v{vAG[p]}", lo=(G[12,p,bs[-1]], -D), hi=(nx, -D-1))
    ns = CFG["ns"][typ]; u = 0; fs = True
    S.node(P1[0,0,0], cm(CD[0], True)(F))
    sp = [2*g, 2*g+1]
    for st in range(8):
        if 1 <= st < 7:
            hi, so = t.sp(t.xp(st + 1), t.XB)
            for q in sp + [x for x in range(4) if x not in sp]:
                S.add(f"ds_read_b128 {v(XR(st+1,q),4)}, v{vAX[hi][q]} offset:{so}", after=st, lo=(first[st], (-2 if st > 1 else 0) if typ else -3), hi=(P1[st+1,q,0], -2), before=None if typ else st + 1)
        if st == 2:
            S.add(f"ds_write_b32 v{vWPA}, v{vWPV}", after=2)
            S.add(f"v_xor_b32 v{vWPV}, 0x80008000, v{vWPV}", after=2)
            S.add(f"ds_write_b32 v{vWPA}, v{vWPV} offset:2048", after=2, before=7)
    for st in range(8):
        for n, q in enumerate(sp):
            if n < ns[st]:
                S.add(cm(CD[2], fs)(v(XR(st, q), 4)), lo=(first[st], 1) if st < 2 else None); fs = False
    if typ == 1:
        S.add(f"v_mov_b32 v{vST}, v{CD[2]}", hi=(first[8], -1))
        S.node(P1[7,0,0], cm(CD[0], False)(F))
        S.adds(publish(CD[0], AV+9, AV+10, vCW, g, "pub"), hi=(first[8], -1))
    for (xs, q), it in SQ.items(): S.node(it, it.mf(F))
    Q_ = GA[2]; ms = MS(g)
    for lv, (stp, dd) in enumerate(((2, 1), (4, 2), (8, 4), (16, 8))):
        S.adds([f"v_cndmask_b32 v{Q_+k}, v{Q_+k}, v{Q_+k+dd}, {s(ms[lv],2)}" for k in range(0, 16, stp)])
    S.add(f"v_cndmask_b32 v{vSQ}, 0, v{Q_}, {s(ms[4],2)}")
    if typ == 0:
        S.add(f"v_mov_b32 v{vST}, v{CD[2]}")
        S.node(P1[7,0,0], cm(CD[0], False)(F))
        S.adds(publish(CD[0], 85, 86, vCW, g, "pub"), before=PB)
    else: S.node(G[8,0,2], mm(GA[2], XR(0,0), True)(F))
    S.add(f"v_permlane32_swap_b32 v{vST}, v{vSQ}")
    S.adds([f"v_add_f32 v{vST}, v{vST}, v{vSQ}", f"ds_write_b32 v{vSTW}, v{vST} #pub"], before=PB)
    sWQ2, sWO2, sWK2, sWZ2 = range(SWG if g else SWU, (SWG if g else SWU) + 4)
    J1, J2 = (75, 77) if typ else (26, 24)
    if CFG["t3"] == 3:
        S.add([f"s_and_b32 s{sT0}, s2, 0xf8", f"s_add_u32 s{sT0}, s{sT0}, s{sW}", f"s_mul_i32 s{sT0}, s{sT0}, {2*3072}", "s_mov_b32 exec_lo, 0xff0000", "s_mov_b32 exec_hi, 0xff00",
               f"buffer_load_dword v{J2}, v{vTCH}, {s(SWQ,4)}, s{sT0} offen", "s_mov_b64 exec, -1"], after=CFG["t3b"], before=CFG["t3b"] + 1)
    S.add([f"s_mov_b32 s{SOUT}, s{SWO+2}", f"s_mov_b32 s{SOUT+1}, s{SWO+3}", f"s_mov_b32 s{SOUT+2}, 2097152", f"s_mov_b32 s{SWO+2}, {512*1024}", f"s_mov_b32 s{SWO+3}, 0x20000"])
    if CFG["th"] & 1:
        S.add([f"s_add_u32 s{sT1}, s{sHF}, {MB}", "s_mov_b64 exec, 0xffffff", f"buffer_load_dword v{J1}, v{vTCH}, {s(SWS,4)}, s{sT1} offen sc1", "s_mov_b64 exec, -1"], after=CFG["thb"], before=8)
        if typ: S.add([f"s_add_u32 s{sT1}, s{sEX}, {MB}", "s_mov_b64 exec, 0xffff", f"buffer_load_dword v76, v{vTCH}, {s(SWS,4)}, s{sT1} offen sc1", "s_mov_b64 exec, -1"], after=CFG["thb"], before=8)
    if CFG["th"] & 4:
        S.add([f"s_add_u32 s{sT1}, s{sHF}, {MB}", "s_mov_b64 exec, 0xffffff", f"buffer_store_dword v{vTCH}, v{vTCH}, {s(SWS,4)}, s{sT1} offen", "s_mov_b64 exec, -1"], after=CFG["thb"], before=8)
        if typ: S.add([f"s_add_u32 s{sT1}, s{sEX}, {MB}", "s_mov_b64 exec, 0xffff", f"buffer_store_dword v{vTCH}, v{vTCH}, {s(SWS,4)}, s{sT1} offen", "s_mov_b64 exec, -1"], after=CFG["thb"], before=8)
    if CFG["th"] & 32:
        z_ = (typ, g) == (0, 0); dm_ = CFG.get('dmm', '')
        S.add([f"v_lshrrev_b32 v{J1}, 1, v{vTCH}", f"v_add_u32 v{J1}, {MB}, v{J1}", f"s_mov_b32 exec_hi, {0 if z_ else 0xffff}", f"buffer_store_dword v{J1}, v{J1}, {s(SWS,4)}, s{sA if z_ else sHF} offen{dm_}"] +
              (["s_mov_b32 exec_hi, 0", f"buffer_store_dword v{J1}, v{J1}, {s(SWS,4)}, s{sEX} offen{dm_}"] if typ else []) + ["s_mov_b64 exec, -1"], after=CFG["thb"], before=8)
    NV = CFG.get("nv")
    NVP = NV == 1 or "pz" in CFG or (NV == 3 and typ) or (NV == 4 and not typ)
    def dummies():
        PZ = (AV if typ else AK + 12) if NVP else CP
        if NVP: S.adds([f"v_mov_b32 v{PZ+k}, {x}" for k, x in enumerate(CFG.get("pz", (0, 0, 0, 0))) if x is not None])
        for j, b in enumerate(CFG["thl"][typ]):
            if b is None: continue
            S.add(f"buffer_store_dwordx4 {v(PZ,4)}, v{vM16}, {s(SWS,4)}, s{(sA if (typ, g) == (0, 0) and j < 2 else sHF) if j < 3 else sEX} offen offset:{(j%3)*1024}{CFG.get('dmm', '')} #dmy", after=b, lo=(first[b], CFG["tho"] + 2*g), kind="misc")
    if CFG["th"] & 8 and (typ or not NVP): dummies()
    if CFG["th"] & 2 and g == 0:
        S.add([f"s_and_b32 s{sT0}, s2, 7", f"s_lshr_b32 s{sT1}, s2, 6", f"s_lshl2_add_u32 s{sT0}, s{sT0}, s{sT1}", f"s_mul_i32 s{sT1}, s{sT0}, {236*1024}", f"s_add_u32 s{sT1}, s{sT1}, {MB}",
               f"s_lshl_b32 s{sT0}, s{sI}, 16", f"s_add_u32 s{sT1}, s{sT1}, s{sT0}",
               f"v_lshlrev_b32 v{J2}, 5, v{vTCH}", "s_mov_b64 exec, 0xffff", f"buffer_load_dword v{J2}, v{J2}, {s(SWS,4)}, s{sT1} offen sc1", "s_mov_b64 exec, -1"], after=CFG["thb"], before=8)
    if typ == 1 and "notouch" not in k1.KN:
        S.add([f"s_lshl3_add_u32 s{sT0}, s2, s{sW}", f"s_sub_u32 s{sT0}, s{sT0}, 1024", f"s_lshl_b32 s{sT1}, s{sT0}, 9", "s_mov_b64 exec, 15",
               f"buffer_load_dword v26, v{vTCH}, {s(SWO,4)}, s{sT1} offen", "s_mov_b64 exec, -1"], after=CFG["tch"], before=8)
        S.add([f"s_mul_i32 s{sT1}, s{sT0}, 1408", "s_mov_b64 exec, 0x7ff",
               f"buffer_load_dword v31, v{vTCH}, {s(SWD,4)}, s{sT1} offen", "s_mov_b64 exec, -1"], after=CFG["tch"], before=8)
    if CFG["tx"][typ] is not None:
        J3, J4, vT2 = (78, 79, 77) if typ else (91, 92, vTCH)
        S.add(f"v_lshlrev_b32 v{vT2}, 3, v{vTCH}", before=8)
        kw = dict(after=CFG["tx"][typ], lo=(first[CFG["tx"][typ]], CFG["tx"][2] + 2*g))
        S.add([f"s_and_b32 s{sT0}, s2, 0x78", f"s_add_u32 s{sT0}, s{sT0}, s{sW}", f"s_mul_i32 s{sT1}, s{sT0}, {11*1024}", "s_mov_b64 exec, 0x7ff",
               f"buffer_load_dword v{J4}, v{vT2}, {s(SWD,4)}, s{sT1} offen offset:384", f"s_lshl_b32 s{sT1}, s{sT0}, 12", "s_mov_b64 exec, 15",
               f"buffer_load_dword v{J3}, v{vT2}, {s(SWO,4)}, s{sT1} offen offset:384", "s_mov_b64 exec, -1"], **kw)
    WX = CFG.get("wx"); sW2 = sWZ2 if WX else sW
    S.add([f"s_and_b32 s{sT0}, s2, 0x38", f"s_cmp_eq_u32 s{sT0}, {(0x18 if typ else 0x38) if CFG['swp'] else 1}", f"s_cselect_b32 s{sT2}, 0xa0, 0", f"s_xor_b32 s{sT2}, s{sT2}, s2",
           f"s_and_b32 s{sT0}, s2, 7", f"s_lshr_b32 s{sT1}, s{sT2}, 6", f"s_lshl2_add_u32 s{sT0}, s{sT0}, s{sT1}", f"s_bfe_u32 s{sT1}, s{sT2}, 0x30003", f"s_lshl_b32 s{sT1}, s{sT1}, 7"] + ([f"s_lshr_b32 s{sWZ2}, s{sT1}, {WX[0]}", f"s_and_b32 s{sWZ2}, s{sWZ2}, {WX[1]}", f"s_xor_b32 s{sWZ2}, s{sWZ2}, s{sW}"] if WX else []) + [
           f"s_lshl3_add_u32 s{sFR}, s{sT0}, s{sW2}", f"s_lshl_b32 s{sFR}, s{sFR}, 7", f"s_add_u32 s{sFR}, s{sFR}, {FLG}",
           f"s_lshl_b32 s{sXO}, s{sT0}, 16", f"s_add_u32 s{sXO}, s{sXO}, s{sT1}", ] + ([f"s_lshl_b32 s{sT2}, s{sI}, 13", f"s_add_u32 s{sXO}, s{sXO}, s{sT2}"] if CFG["rb"] == 2 else [f"s_lshl3_add_u32 s{sXO}, s{sI4}, s{sXO}"]) + ([f"s_add_u32 s{sXO}, s{sXO}, 32768"] if g else []), lo=(first[8], 1))
    S.add([f"s_mul_i32 s{sHO}, s{sT0}, {236*1024}", f"s_mul_i32 s{sT2}, s{sW2}, 6144", f"s_add_u32 s{sHQ}, s{sHO}, s{sT2}", f"s_add_u32 s{sHQ}, s{sHQ}, 32768",
           f"s_mul_i32 s{sT2}, s{sW2}, 5", f"s_min_u32 s{sT2}, s{sT2}, 33", f"s_add_u32 s{sT2}, s{sT2}, 48", f"s_lshl_b32 s{sWK2}, s{sT2}, 14", f"s_add_u32 s{sWK2}, s{sWK2}, s{sT1}",
           f"s_lshl_b32 s{sT2}, s{sT2}, 10", f"s_add_u32 s{sHK}, s{sHO}, s{sT2}", f"s_add_u32 s{sHK}, s{sHK}, 32768", f"s_lshl_b32 s{sT2}, s{sW2}, 12", f"s_add_u32 s{sHO}, s{sHO}, s{sT2}"], lo=(first[8], 2))
    S.add([f"s_mul_i32 s{sWQ2}, s{sW2}, {6*16384}", f"s_add_u32 s{sWQ2}, s{sWQ2}, s{sT1}", f"s_lshl_b32 s{sWO2}, s{sW2}, 16", f"s_add_u32 s{sWO2}, s{sWO2}, s{sT1}",
           f"s_cmp_eq_u32 s{sW2}, 7", f"s_cselect_b32 s{sWZ2}, 0x2000000, s{sWK2}"] +
          ([f"s_lshl_b32 s{sRB}, s{sI}, 14"] if g == 0 else
           [f"s_cmp_lt_u32 s{sI}, {2 if typ else 1}", f"s_cselect_b32 s{sRB}, 0, {t.RG[7] - t.RG[4] - 49152}", f"s_lshl_b32 s{sT2}, s{sI}, 14", f"s_add_u32 s{sRB}, s{sRB}, s{sT2}", f"s_add_u32 s{sRB}, s{sRB}, {t.RG[4]}"]) +
          [f"s_sub_u32 s{sRB}, s{sRB}, {MB}"], lo=(first[8], 3))
    m, q = vMU, vC1
    l8 = (first[PB], -1)
    S.adds([f"v_add_f32 v{m}, v{vMU}, v{vMU+2}", f"v_add_f32 v{q}, v{vMU+1}, v{vMU+3}",
            f"v_mul_f32 v{vSTD}, {fbits(-1.0/512)}, v{m}", f"v_mul_f32 v{q}, {fbits(1.0/512)}, v{q}"], lo=l8)
    S.adds([f"v_cvt_pk_bf16_f32 v{vMU+k}, v{vSTD}, v{vSTD}" for k in range(4)])
    S.adds([f"v_fma_f32 v{q}, -v{vSTD}, v{vSTD}, v{q}", f"v_max_f32 v{q}, 0, v{q}", f"v_add_f32 v{q}, {fbits(1e-5)}, v{q}",
            f"v_rsq_f32 v{vRS}, v{q}", f"v_mul_f32 v{vSTD}, v{q}, v{vRS}", f"v_mul_f32 v{vC1}, {fbits(-LOG2E)}, v{vRS}"])
    ex = []
    S.node(P1[7,3,0], mm(AK, XR(7,3), False)(F))
    ex.append(S.node(corr(AK, g, PB, "corrK"), mm(AK, vMU, False)(F)))
    def w64(w, x, **k):
        return S.add([w] + ([x] if x else []), kind="valu", cost=CFG["wc"] + (1 if x else 0), first=True, **k)
    KB = AK if typ else 96
    S.adds([f"v_cvt_pk_bf16_f32 v{KB+k}, v{AK+2*k}, v{AK+2*k+1}" for k in range(8)])
    pb = "ph"
    if typ == 0:
        W = [GA[2], AK]
        S.node(V[7,0], cm(CD[1], False)(F))
        S.adds(publish(CD[1], 83, 84, vCW, 2 + g, "pubv"), before=8)
        for rho in range(2):
            pk = mm(W[rho], KB + 4*rho, True)
            ex.append(S.node(Item(pk, tr(vWF, 512*rho, 128), needbar=PB, name=f"phi{rho}"), pk(F)))
        for rho in range(2):
            S.adds(softmax(W[rho], W[rho], *((87, 88), (vSM, vWF))[rho]))
            for b_ in range(2):
                w64(f"ds_write_b128 v{vPH}, {v(W[rho]+4*b_,4)} offset:{rho*12288} #ph", None if (rho, b_) == (1, 1) else f"v_xor_b32 v{vPH}, 16, v{vPH}", after="v3", before=pb)
        if NVP: dummies()
        S.node(G[8,0,0], mm(GA[0], XR(0,0), True)(F)); S.node(G[8,0,1], mm(GA[1], XR(0,0), True)(F)); S.node(G[8,2*g,2], mm(GA[2], XR(0,2*g), True)(F))
        S.node(V[7,3], mm(AV, XR(7,3), False)(F))
        ex.append(S.node(corr(AV, 2 + g, 8, "corrV"), mm(AV, vMU, False)(F)))
        for k in range(8):
            S.adds([f"v_mul_f32 v{AV+2*k}, v{AV+2*k}, v{vRS}", f"v_mul_f32 v{AV+2*k+1}, v{AV+2*k+1}, v{vRS}",
                    f"v_cvt_pk_bf16_f32 v{AV+k}, v{AV+2*k}, v{AV+2*k+1}"])
            if k & 3 == 3: w64(f"ds_write_b128 v{vKB}, {v(AV+k-3,4)} offset:{(k>>2)*12288+64} #ph", None, before=pb)
        S.node(G[8,3,1], mm(GA[1], XR(0,3), False)(F)); S.node(G[8,2*g+1,2], mm(GA[2], XR(0,2*g+1), False)(F))
        W = [AV, XR(0, 0)]
    else:
        for rho in range(2):
            pk = mm(AV, AK + 4*rho, True)
            ex.append(S.node(Item(pk, tr(vWF, 512*rho, 128), needbar=8, name=f"phi{rho}"), pk(F)))
            S.adds(softmax(AV, AK + 8 if rho == 0 else AV))
    if typ == 0:
        pi = main[main.index(first[CFG["phbar"][0]]) + CFG["phbar"][1]]
        if pi.bar is None: pi.bar = pb; barwait[pb] = []
        else:
            for o in S.ops:
                if o.before == pb: o.before = pi.bar
            pb = pi.bar
        barlg[pb] = barlg.get(pb, []) + ["ph"]
        barlg[CFG["wb"][0]] = barlg.get(CFG["wb"][0], []) + ["kvr"]
        DK, DZ, ON = AK, AK + 4, AK + 8
        S.adds([f"v_mov_b32 v{ON+k}, 0x3f803f80" for k in range(4)])
        S.adds([f"v_lshrrev_b32 v{AK+12}, 1, v{vM16}", f"v_lshrrev_b32 v{AK+13}, 5, v{vM16}"])
        S.add([f"s_and_b32 s{sT3}, s{sI}, 1", f"s_lshl_b32 s{sT3}, s{sT3}, 5"], lo=(first[8], 0))
        S.add(f"v_subrev_u32 v{vPH}, s{sT3}, v{vKA}")
        for u4 in range(4):
            A0 = W[u4 >> 1] + 8*(u4 & 1); B0 = A0 + 4; o = u4 * 3072
            S.add([f"ds_read_b64_tr_b16 {v(A0,2)}, v{vKA} offset:{o}", f"ds_read_b64_tr_b16 {v(A0+2,2)}, v{vKA} offset:{o+768}"], after=pb)
            S.add([f"ds_read_b64_tr_b16 {v(B0,2)}, v{vPH} offset:{o+64}", f"ds_read_b64_tr_b16 {v(B0+2,2)}, v{vPH} offset:{o+768+64} #kvr"], after=pb, before=CFG["wb"][0])
            na = f"v_mfma_f32_16x16x32_bf16 {v(DZ,4)}, {v(A0,4)}, {v(ON,4)}, {'0' if u4 == 0 else v(DZ,4)}"
            nb_ = f"v_mfma_f32_16x16x32_bf16 {v(DK,4)}, {v(A0,4)}, {v(B0,4)}, {'0' if u4 == 0 else v(DK,4)}"
            S.adds([na, nb_] if u4 < 3 else [nb_, na])
        S.adds([f"v_cvt_pk_bf16_f32 v{DK}, v{DK}, v{DK+1}", f"v_cvt_pk_bf16_f32 v{DK+1}, v{DK+2}, v{DK+3}"])
        kvst = S.add(f"buffer_store_dwordx2 {v(DK,2)}, v{AK+12}, {s(SWS,4)}, s{sK1} offen sc1 #kvs", kind="misc")
        S.adds([f"v_cvt_pk_bf16_f32 v{DZ}, v{DZ}, v{DZ+1}", f"v_cvt_pk_bf16_f32 v{DZ+1}, v{DZ+2}, v{DZ+3}"])
        S.add(["WAITVM kvs"] * CFG.get("zw", 1) + ["s_mov_b32 exec_lo, 0x10001", "s_mov_b32 exec_hi, 0x10001", f"buffer_store_dwordx2 {v(DZ,2)}, v{AK+13}, {s(SWS,4)}, s{sK2} offen sc1", "s_mov_b64 exec, -1"],
              ok=lambda n: kvst.slot is not None and n >= kvst.slot + CFG["zd"])
    vWa, vRD0, vRD1, vFA, vFL = P2R(typ)
    KS = [("q", 0), ("q", 3), ("q", 1), ("q", 4), ("q", 2), ("q", 5)] + [("o", j) for j in range(4)] + [("k", 2), ("k", 0), ("k", 3), ("k", 1), ("k", 4)]
    if CFG.get("ko", (0, 0))[typ]: KS = KS[:6] + KS[10:] + KS[6:10]
    NS = 2 if typ else 3; NR = 10 if typ else 12
    WR = [128 + 8*k for k in range(10)] if typ else [128 + 8*k for k in range(8)] + [AV, AV + 8, 192, 200]
    WR += WR[:15 - NR]
    RGN = [6 + k % 2 for k in range(12)] + [4, 5, 3] if typ else [5 + k % 3 for k in range(15)]
    rbase = t.RG[5] if typ else PH
    def wdma(k):
        ty, j = KS[k]
        b_ = {"q": sWQ2, "o": sWO2, "k": sWZ2 if j < 2 else sWK2}[ty]; R_ = s(SWO if ty == "o" else SWD, 4)
        return [[f"s_lshl1_add_u32 m0, s{sMW}, {t.RG[RGN[k]]}", f"s_add_u32 s{sO1}, s{b_}, {j*16384}", f"buffer_load_dwordx4 v{vWa}, {R_}, s{sO1} offen lds #W{k}"],
                [f"s_lshl1_add_u32 m0, s{sMW}, {t.RG[RGN[k]]}", f"s_add_u32 s{sO1}, s{b_}, {j*16384 + 7168}", f"buffer_load_dwordx4 v{vWa}, {R_}, s{sO1} offen offset:1024 lds #W{k}"]]
    def wread(k, ad=(vRD0, vRD1), base=rbase):
        o = t.RG[RGN[k]] - base
        return [[f"WAITVM W{k}"] * (1 - cb) * ("noxw" not in k1.KN) + [f"ds_read_b64_tr_b16 {v(WR[k]+4*cb,2)}, v{ad[cb]} offset:{o}", f"ds_read_b64_tr_b16 {v(WR[k]+4*cb+2,2)}, v{ad[cb]} offset:{o+512} #X{k}"] for cb in range(2)]
    if typ == 0:
        S.add(f"v_bfe_u32 v{AK+14}, v{vM16}, 4, 6")
        S.adds(p2addr(t, AK + 14, AK + 15, vRD1))
    Dk = {}; Xk = {}
    def aft(dd, k, l): return lambda n: dd[k].slot is not None and n >= dd[k].slot + l
    for k in range(14 if typ else 15):
        if k in CFG.get("dd", ((), ()))[typ]: continue
        wd_ = wdma(k)
        if typ and k >= 12: kw = dict(after=13 if k == 12 else 15)
        elif k < NS: kw = dict(after=CFG["wb"][typ])
        else: kw = dict(ok=aft(Xk, k - NS, CFG["wg"])); wd_[0] = [f"WAITLG X{k-NS}"] + wd_[0]
        for x in wd_:
            Dk[k] = S.add(x, kind="misc", **kw); Dk[k].R -= {("s", 124), ("s", sO1)}; Dk[k].W -= {("s", 124), ("s", sO1)}; Dk[k].R.add(("x", 9 + (typ and k >= 12))); Dk[k].W.add(("x", 9 + (typ and k >= 12)))
        if k < NR:
            lo = (G[8 + (WR[k] - 128) // 16, 3, nb - 1 if has(3, nb - 1) else 1], 0) if WR[k] >= 128 else None
            for x in wread(k): Xk[k] = S.add(x, kind="misc", ok=aft(Dk, k, CFG["wl"]), lo=lo)
    S.adds([f"v_lshrrev_b32 v{vFA}, 2, v{vM16}", f"v_and_b32 v{vFA}, 28, v{vFA}"])
    vCT = 27 if typ else 30
    if CFG["th"] & 16:
        J = 76 if typ else AK + 12; b_ = CFG["thr"][typ]
        S.add([f"s_mov_b32 s{sT1}, {(-7*MB) & 0xffffffff}", f"v_lshl_add_u32 v{J}, v{vM16}, 3, s{sT1}"] +
              ([f"s_sub_u32 s{sT1}, s{sEX}, s{sHF}", f"s_sub_u32 s{sT1}, s{sT1}, 4096", "s_mov_b32 exec_lo, 0", f"v_add_u32 v{J}, s{sT1}, v{J}", "s_mov_b32 exec_lo, 0xffffff", "s_mov_b32 exec_hi, 0xffff"] if typ else
               [f"s_mov_b64 exec, {0xffffff if g else 0xffff}"]) +
              [f"buffer_load_dword v{J}, v{J}, {s(SWS,4)}, s{sA if (typ, g) == (0, 0) else sHF} offen{CFG.get('thm', ' sc1')}", "s_mov_b64 exec, -1"], after=b_, before={13: 15, 15: "cs"}.get(b_, b_ + 1), lo=(first[b_], CFG["thr"][2] + 2*g), kind="misc", prio=3)
    polls = []
    def fload(): return f"buffer_load_dword v{vFL}, v{vFA}, {s(SWS,4)}, s{sFR} offen sc1"
    def fcheck(ty, lv, own=None):
        polls.append((ty, lv, own)); n_ = len(polls)
        return [f"v_cmp_gt_u32 vcc, {lv}, v{vFL}", f"s_and_b32 s{sT1}, vcc_lo, {0xf0 if ty == 'q' else 0x0f}", f"s_cbranch_scc1 L_{sn}_fp{n_}", f"LABEL L_{sn}_fb{n_}"]
    spolls = []
    def gload(): return f"s_buffer_load_dwordx8 {s(SWO,8)}, {s(SWS,4)}, s{sFR} glc"
    def gmin(ty, lv):
        b = SWO + (4 if ty == "q" else 0)
        return [f"s_min_u32 s{sT1}, s{b}, s{b+1}", f"s_min_u32 s{sC}, s{b+2}, s{b+3}", f"s_min_u32 s{sT1}, s{sT1}, s{sC}", f"s_cmp_eq_u32 s{sMD}, 0", f"s_cselect_b32 s{sT1}, s{sT1}, 0", f"s_cmp_lt_u32 s{sT1}, {lv}"]
    slow = []
    def mst(x, tag=""):
        slow.append(x); n_ = len(slow)
        return [f"s_cmp_lg_u32 s{sMD}, 0", f"s_cbranch_scc1 L_{sn}_ss{n_}", x + (" #" + tag if tag else ""), f"LABEL L_{sn}_sb{n_}"]
    def fstore(lv, tag, r): return [f"v_mov_b32 v{r}, {lv}", f"WAITVM {'dmy' if NV and lv < 5 else tag}", "s_mov_b64 exec, 1"] + mst(f"buffer_store_dword v{r}, off, {s(SWS,4)}, s{sFL}") + ["s_mov_b64 exec, -1"]
    HR = [96, 104, 112, 120, 80, 88, 48, 56, 64, 72, 96, 104, 112, 120, 80] if typ else [112, 120, 48, 56, 80, 88, 96, 104, 112, 120, 48, 56, WR[3], 80, 88]
    def hload(k):
        ty, j = KS[k]; b_ = {"q": sHQ, "o": sHO, "k": sR if j < 2 else sHK}[ty]
        return [[f"s_add_u32 s{sO1}, s{b_}, {j*1024 + tb*118*1024}", f"buffer_load_dwordx4 {v(HR[k]+4*tb,4)}, v{vM16}, {s(SWS,4)}, s{sO1} offen"] for tb in range(1 if "halfh" in k1.KN else 2)]
    S.add([f"s_cmp_eq_u32 s{sWZ2}, 0x2000000", f"s_cselect_b32 s{sR}, 2.0, s{sHK}"], after=13)
    SEL, DD, ZZ, LD = AV + 8, CP, AV + 12, GA[0]
    vTW, vTZ, vTR = 1, 2, 3
    if typ == 1:
        a, b, c, ln = AK + 1, AK + 2, AK + 3, AK + 4
        o = [f"v_bfe_u32 v{ln}, v{vM16}, 4, 6", f"v_and_b32 v{a}, 15, v{ln}", f"v_lshrrev_b32 v{b}, 1, v{ln}", f"v_and_b32 v{b}, 8, v{b}", f"v_xor_b32 v{b}, v{a}, v{b}",
             f"v_and_b32 v{c}, 1, v{b}", f"v_lshlrev_b32 v{c}, 4, v{c}", f"v_mov_b32 v{a}, 0x3f80", f"v_lshlrev_b32 v{c}, v{c}, v{a}", f"v_lshrrev_b32 v{b}, 1, v{b}"]
        for r in range(4): o += [f"v_cmp_eq_u32 vcc, {r}, v{b}", f"v_cndmask_b32 v{SEL+r}, 0, v{c}, vcc"]
        S.adds(o, lo=(first[12], 0))
        S.add([f"s_lshr_b32 s{sT0}, s{sW}, 1", f"s_lshl_b32 s{sT0}, s{sT0}, 11", f"s_and_b32 s{sT2}, s{sW}, 1", f"s_lshl_b32 s{sT2}, s{sT2}, 5",
               f"s_add_u32 s{sT2}, s{sT2}, s{sT0}", f"s_add_u32 s{sT2}, s{sT2}, {OT}", f"s_sub_u32 s{sT0}, s{sT0}, {MB - OT}"], lo=(first[9], 0))
        S.adds([f"v_add_u32 v{vTZ}, s{sT0}, v{vM16}", f"v_and_b32 v{a}, 7, v{ln}", f"v_lshlrev_b32 v{a}, 7, v{a}", f"v_and_b32 v{b}, 16, v{ln}", f"v_lshl_add_u32 v{a}, v{b}, 2, v{a}",
                f"v_and_b32 v{b}, 8, v{ln}", f"v_add_u32 v{a}, v{a}, v{b}", f"v_lshrrev_b32 v{b}, 1, v{ln}", f"v_and_b32 v{b}, 16, v{b}", f"v_add3_u32 v{vTW}, v{a}, v{b}, s{sT2}",
                f"v_and_b32 v{a}, 19, v{ln}", f"v_bfe_u32 v{b}, v{ln}, 2, 1", f"v_lshl_or_b32 v{a}, v{b}, 3, v{a}", f"v_bfe_u32 v{b}, v{ln}, 3, 1", f"v_lshl_or_b32 v{a}, v{b}, 2, v{a}",
                f"v_lshlrev_b32 v{a}, 6, v{a}", f"v_and_b32 v{b}, 32, v{ln}", f"v_add_u32 v{a}, v{a}, v{b}", f"v_add_u32 v{vTR}, {OT + g*4096}, v{a}"])
    QE = CFG.get("qe") if typ else None
    cad = [f"v_lshlrev_b32 v{vCT}, 1, v{vM16}", f"v_and_b32 v{vCT}, 0xe0, v{vCT}"] if QE else []
    if QE: S.add(cad + [f"buffer_load_dword v{vCT}, v{vCT}, {s(SDB,4)}, 0 offen"], after=12, lo=(first[12], QE["cl"]), kind="misc", prio=2)
    else:
        S.add(f"v_lshlrev_b32 v{vFL}, 3, v{vFA}")
        S.add(f"buffer_load_dword v{vCT}, v{vFL}, {s(SDB,4)}, 0 offen", after=12, lo=(first[13], -4), kind="misc")
    cck = [f"s_and_b32 s{sMD}, s2, 7", f"v_readlane_b32 s{sMD}, v{vCT}, s{sMD}", f"v_and_b32 v{vCT}, 0xff, v{vCT}", f"v_cmp_gt_u32 vcc, 32, v{vCT}", f"s_lshl_b32 s{sT1}, s{sXV}, 5", f"s_sub_u32 s{sMD}, s{sMD}, s{sT1}"]
    chk = S.add(cck + [f"s_cbranch_vccnz L_{sn}_cp", f"LABEL L_{sn}_cb"], after=13 if QE else 15)
    if not QE: chk.R |= {("v", vFL)}
    chk.W |= {("s", sT1), ("x", 0)}
    vCW2, vEX, t0 = AK, AK + 1, AK + 2
    S.adds([f"v_lshrrev_b32 v{vCW2}, 6, v{vM16}", f"v_and_b32 v{vCW2}, 12, v{vCW2}", f"v_xor_b32 v{vCW2}, s{sI4}, v{vCW2}", f"v_or_b32 v{vCW2}, v{vCW2}, v{vM16}"], lo=(first[12], 0))
    if typ == 0:
        S.add(f"v_add_u32 v{vEX}, s{sEX}, v{vM16}")
        own = 4*g; oth = 4 - own
        if g == 0: S.node(G[15,0,2], cm(CD[2], False)(F))
        S.node(G[15,2*g+1,2], mm(GA[2], XR(7,0), False)(F))
        for k in range(2): w64(f"ds_write_b128 v{vEX}, {v(GA[2]+oth+8*k,4)} offset:{g*8192+1024*k} #cs", None, before="cs")
        S.node(G[15,0,0], cm(CD[0], False)(F)); S.node(G[15,0,1], cm(CD[1], False)(F))
        for b in range(3 - g): S.adds(publish(CD[b], t0 + 2*b, t0 + 2*b + 1, vCW2, blk[b], "cs"), before="cs", prio=2)
        X = AK + 8
        S.add(f"ds_read_b128 {v(X,4)}, v{vEX} offset:{(1-g)*8192}", after="cs")
        S.add(f"ds_read_b128 {v(X+4,4)}, v{vEX} offset:{(1-g)*8192+1024}", after="cs")
        S.node(C[2], mm(GA[2], vMU, False)(F))
        S.adds([f"v_add_f32 v{X+4*hh+k}, v{X+4*hh+k}, v{GA[2]+8*hh+own+k}" for hh in range(2) for k in range(4)])
        S.adds(glu(X, X + 4, 4))
        S.add(mst(f"buffer_store_dwordx2 {v(X,2)}, v{vM16}, {s(SWS,4)}, s{sHF} offen offset:{(1-g)*2048+8*g}", "hs"), kind="misc", prio=1)
        fin = [(0, C[0], g*1024), (1, C[1], (1+g)*1024)]
    else:
        for b in range(3): S.node(G[15,0,b], cm(CD[b], False)(F))
        for b in range(3): S.adds(publish(CD[b], t0 + 2*b, t0 + 2*b + 1, vCW2, blk[b], "cs"), before="cs", prio=2)
        fin = [(0, r0[-1], 0), (1, C[1], 1024), (2, C[2], 2048)]
        LQ = [208, 224, 240, 48, 52, 16, 20, 12] if QE else [LD + 4*p for p in range(8)]
        if QE: DD = GA[0] + 8
        def loads(m=" sc1"):
            o = [[f"buffer_load_dwordx4 {v(ZZ,4)}, v{vM16}, {s(SWS,4)}, s{sK2} offen sc1"]]
            for p in range(8):
                o.append(([f"s_add_u32 s{sT2}, s{sK1}, 4096"] if p == 4 else []) + [f"buffer_load_dwordx4 {v(LQ[p],4)}, v{vM16}, {s(SWS,4)}, s{sK1 if p < 4 else sT2} offen offset:{(p%4)*1024}{m}"])
            return o
        L_ = loads("")
        zl_ = S.add(L_[0], kind="misc", lo=(lambda: C[0].idx + QE["zl"]) if QE else lambda: C[2].idx - CFG["qload"] - CFG["qct"], prio=2 if QE else 0, lat=QE and QE["zc"]); zl_.R |= {("x", 0)}
        if QE and QE.get("nz"): zl_.W |= {("x", 1)}
        else:
            zc = S.add([f"v_cmp_eq_u32 vcc, -1, v{ZZ}", "s_nop 1", f"s_cbranch_vccnz L_{sn}_zp", f"LABEL L_{sn}_zb"], lo=None if QE else lambda: C[2].idx - CFG["qload"] - 1)
            zc.W |= {("s", sT1), ("x", 1)}
        if QE:
            n2 = QE.get("n2", 1)
            for j in range(1, 9, n2): S.add(sum(L_[j:j+n2], []), kind="misc", after=QE.get("af", "cs"), lo=lambda: C[0].idx + QE.get("kl", -9), prio=QE.get("pr", 2), lat=QE["lat"]).R |= {("x", 1)}
            CK, CV = DD + 4, GA[0] + 4
            preL = [f"v_mfma_f32_16x16x32_bf16 {v(DD,4)}, {v(SEL,4)}, {v(LQ[p],4)}, {'0' if p == 0 else v(DD,4)}" for p in range(8)] + [f"v_mfma_f32_16x16x32_bf16 {v(CK,4)}, {v(SEL,4)}, {v(ZZ,4)}, {v(DD,4)}"]
            preW = [f"v_cvt_pk_bf16_f32 v{CV}, v{DD}, v{DD+1}", f"v_cvt_pk_bf16_f32 v{CV+1}, v{DD+2}, v{DD+3}", f"ds_write_b64 v{vTW}, {v(CV,2)}", f"v_cmp_u_f32 vcc, v{CK}, v{CK}", "s_nop 1"]
            preZ = f"ds_write_b128 v{vTZ}, {v(ZZ,4)} offset:1024"
    if typ == 0 and CFG["f1"][2]:
        S.add(fload(), kind="misc", lo=lambda: C[2].idx + CFG["f1"][0]).R |= {("x", 0)}
        S.add(fcheck("q", CFG["f1"][2]), lo=lambda: C[2].idx + CFG["f1"][1]).W |= {("x", 1)}
        for k in range(2 * CFG["f1"][2]):
            if k < 4:
                for x in hload(k): S.add(x, kind="misc").R |= {("x", 1)}
    HS = {}
    for b, it, off in fin:
        S.node(it, mm(GA[b], vMU, False)(F))
        S.adds(glu(GA[b], GA[b] + 8, 8))
        if QE and b == 0:
            S.add(preZ, kind="misc", after=15).R |= {("x", 1)}
            m2 = QE.get("m2", 1)
            for j in range(0, 9, m2): S.add(preL[j:j+m2], kind="small")
            QE_last = S.add(preW + [f"s_cbranch_vccnz L_{sn}_rt", f"LABEL L_{sn}_go"], kind="misc", prio=2)
            QE_last.W |= {("s", sT0), ("s", sT2)}
        if typ == 1 and b == 2 and not QE:
            for x in L_[1:]: HS["l"] = S.add(x, kind="misc", lo=lambda: C[2].idx - CFG["qload"]); HS["l"].R |= {("x", 1)}
        if b == len(fin) - 1: S.add(fload(), kind="misc").R |= {("v", GA[b] + CFG["f2"]), ("x", 0)}
        HS[b] = S.add(mst(f"buffer_store_dwordx4 {v(GA[b],4)}, v{vM16}, {s(SWS,4)}, s{sA if (typ, g) == (0, 0) else sHF} offen offset:{off}", f"h{b}"), kind="misc", prio=int(b < len(fin) - 1))
        if b in CFG["st"][typ]: S.add(fstore(b + 2 - typ, f"h{b}", vCT), kind="misc", ok=aft(HS, b, CFG["s1"]))
        if typ == 0 and b == 0 and CFG["f1"][2] == 3:
            for k in (4, 5):
                for x in hload(k): S.add(x, kind="misc").R |= {("x", 1)}
    def budget(n, it):
        if n < first[8].idx:
            if typ == 1: return CFG["qb"]
            if n < first["v1"].idx - D: return CFG["pb"]
            return CFG["vb"]
        if n < first[15].idx and typ == 0: return CFG["gb"]
        return 6
    S.budget = budget
    S.dbl = lambda n: n >= first[9].idx
    if typ == 1:
        for b in range(1, 9): S.prebar_budget[b] = CFG["qpb"]
    S.prebar_budget["cs"] = 6
    if typ == 0:
        for b in list(range(1, 8)) + ["v1"]: S.prebar_budget[b] = CFG["ppb"]
        for b in ("v3", "v6", 8): S.prebar_budget[b] = CFG.get("vpb", 0)
    S.dump = "dump" in k1.KN
    S.solve(main, ex)
    order = S.order; N = len(order)
    info = [f"typ{typ} g{g} N={N} bars={S.bs} extras={[(e.item.name, e.item.idx) for e in ex]} slots={len(S.slots)-D}"]
    if typ == 0: info.append(f"kvstore@{kvst.slot}")
    print(" ".join(info))
    nst = [1]
    def em(x):
        if x.startswith("LABEL"): P.label(x.split()[1])
        elif x.startswith("WAITVM"): P.wait_vm(x.split()[1])
        elif x.startswith("WAITLG"): P.wait_lg(x.split()[1])
        else: emit(P, x)
    for n, it, sm, va, mi in S.slots:
        m_ = n + D
        if m_ < N:
            nx = order[m_]
            if nx.bar is not None:
                P.comment(f"--- barrier {nx.bar}")
                if not ("nowait" in k1.KN and nx.bar != 0):
                    for tg in barwait[nx.bar]: P.wait_vm(tg)
                for tg in barlg.get(nx.bar, []): P.wait_lg(tg)
                I("s_barrier")
                nstamp(P, nx.bar, nst)
            f = FR[m_ % 4]
            rd = []
            for k, ad, im in nx.reads:
                rd.append({"tr": f"ds_read_b64_tr_b16 {v(f,2)}, v{ad} offset:{im}", "tr2": f"ds_read_b64_tr_b16 {v(f+2,2)}, v{ad} offset:{im}",
                           "b128": f"ds_read_b128 {v(f,4)}, v{ad} offset:{im}"}[k])
            for x in nx.pre[:1] + rd + nx.pre[1:]: I(x)
        body = []
        if it is not None:
            f = v(FR[n % 4], 4)
            if it.small: body.append(it.small(f))
            if sm: body += sm.texts
            body.append(it.mf(f))
        elif sm: body += sm.texts
        if "nofill" not in k1.KN or n >= N:
            for o in va: body += o.texts
        if it is not None:
            touch = set()
            for x in body:
                i_ = Ins(x.split("#")[0].strip()); touch |= i_.vr | i_.vw
            P.wait_regs(touch)
        for x in body: em(x)
        for o in mi:
            if "nowd" in k1.KN and any("#W" in x for x in o.texts): continue
            if "halfwd" in k1.KN and any("#W" in x and "offset:1024" in x for x in o.texts): continue
            if "noxr" in k1.KN and any("#X" in x for x in o.texts): continue
            if "nodma" in k1.KN and any(" lds" in x for x in o.texts): continue
            for x in o.texts: em(x)
        if typ == 1 and n - N in CFG.get("sq2", ()): nstamp(P, f"n{N-n}", nst)
        if QE and n == N + QE["bar"]:
            assert QE_last.slot <= n and QE["bar"] >= -4, QE_last.slot - N
            P.wait_lg(); I("s_barrier"); nstamp(P, "ob", nst)
            for j, q_ in enumerate((48, 52, 16, 20)): I(f"ds_read_b128 {v(q_,4)}, v{vTR} offset:{(j>>1)*2048+16*(j&1)}")
        if QE and n == N + QE["mf"]:
            for j, q_ in enumerate((48, 52, 16, 20)):
                I(f"v_mfma_f32_32x32x16_bf16 {v(208+16*(j>>1),16)}, {v(q_,4)}, {v((AV if j>>1 else AK+8)+4*(j&1),4)}, {v(208+16*(j>>1),16) if j&1 else '0'}")
        if n == N - 1:
            nstamp(P, "last", nst)
            if typ == 0 and g == 1 and CFG.get("bl"): P.wait_lg(); I("s_barrier")
    ACC = [208, 224, 240, 32]
    vXA, vXD = 4, 8
    RD = []
    def radr():
        I(f"s_lshl_b32 s{sT0}, s{sMW}, 1")
        I(f"s_sub_u32 s{sT0}, s{sT0}, {MB}")
        I(f"v_add_u32 v5, s{sT0}, v{vM16}")
        I(f"v_add_u32 v6, {t.RG[4]}, v5")
        I(f"v_add_u32 v7, {t.RG[6]}, v5")
        if not CFG.get("rb"): I(f"v_add_u32 v12, s{sRB}, v{vM16}")
    def pad(q): return (128 - t.RG[2*q+1] + t.RG[2*q]) % 256 if CFG["rb"] == 2 else 0
    def rwr(q):
        o = []
        if CFG.get("rb"):
            for h_ in range(2):
                r = 2*q + h_; ad, bs_ = (5, 0) if r < 4 else (6, t.RG[4]) if r < 6 else (7, t.RG[6]); A = ACC[q] + 8*h_
                o.append("\n".join(f"v_cvt_pk_bf16_f32 v{A+k}, v{A+2*k}, v{A+2*k+1}" for k in range(4)))
                o.append(f"ds_write_b128 v{ad}, {v(A,4)} offset:{t.RG[r] - bs_ + h_*pad(q)}")
            return o
        for e in range(4):
            r = 2*q + (e >> 1); ad, bs_ = (5, 0) if r < 4 else (6, t.RG[4]) if r < 6 else (7, t.RG[6])
            o.append(f"ds_write_b128 v{ad}, {v(ACC[q]+4*e,4)} offset:{t.RG[r] - bs_ + (e & 1)*1024}")
        return o
    vals = []; WBL = []
    def vchk(qs):
        rs = []; zs = []; o = []
        for k, tb in qs:
            if KS[k] in (("k", 0), ("k", 1)): zs.append(HR[k] + 4*tb)
            else: rs += [HR[k] + 4*tb] + ([HR[k] + 4*tb + 2] if KS[k] == ("k", 2) else [])
        if zs:
            assert len(zs) == 2
            o += [f"s_and_b32 s{sT3}, s{sR}, 2.0", f"v_min_u32 v15, v{zs[0]}, v{zs[1]}", f"v_or_b32 v15, s{sT3}, v15"]; t_ = 15
        else: t_ = rs.pop(0)
        while rs:
            if len(rs) > 1: o.append(f"v_min3_u32 v15, v{t_}, v{rs.pop(0)}, v{rs.pop(0)}")
            else: o.append(f"v_min_u32 v15, v{t_}, v{rs.pop(0)}")
            t_ = 15
        return o + [f"v_cmp_eq_u32 vcc, 0, v{t_}", "s_nop 1"]
    def valid(qs):
        if not NV: return
        vals.append(qs); n_ = len(vals)
        for x in vchk(qs): I(x)
        I(f"s_cbranch_vccnz L_{sn}_vr{n_}"); P.label(f"L_{sn}_vb{n_}")
    def tok(tk):
        if tk[:2] in ("a:", "b:"):
            if "ab".index(tk[0]) != g: return
            tk = tk[2:]
        c = tk[0]; r = tk[1:]
        if c == "F": I(fload())
        elif c == "C":
            for x in fcheck(r[0], int(r[1]), int(r[3]) if len(r) > 2 else None): em(x)
        elif c == "L":
            for x in hload(int(r)):
                for y in x: em(y)
        elif c == "S":
            lv, tg = r.split(":")
            for x in fstore(int(lv), tg, vCT): em(x)
        elif c == "B":
            if r == "" or int(r) == g: I("s_barrier")
        elif c == "T": nstamp(P, r, nst)
        elif c == "D":
            for x in wdma(int(r)):
                for y in x: em(y)
        elif c == "X":
            k = int(r); ad = (vRD0, vRD1); base = rbase
            if not 0 <= t.RG[RGN[k]] - rbase < 65000:
                ad = (5, 6); base = t.RG[RGN[k]]
                for cb in range(2): I(f"v_add_u32 v{ad[cb]}, {(base - rbase) & 0xffffffff}, v{(vRD0, vRD1)[cb]}")
            for x in wread(k, ad, base):
                for y in x: em(y)
        elif c == "M":
            k = int(r); valid([(k, 0), (k, 1)])
            for tb, cb in ((0, 0), (1, 0), (0, 1), (1, 1)):
                A = ACC[tb*2+cb]
                I(f"v_mfma_f32_32x32x16_bf16 {v(A,16)}, {v(WR[k]+4*cb,4)}, {v(HR[k]+4*tb,4)}, {'0' if k == 0 else v(A,16)}")
        elif c == "W":
            for y in [f"s_lshr_b32 s{sT0}, s2, 3", f"s_and_b32 s{sT0}, s{sT0}, {r}", f"s_or_b32 s{sT0}, s{sT0}, s{sI}", f"s_cbranch_scc0 L_{sn}_wb", f"buffer_load_dword v15, v{vFA}, {s(SWS,4)}, s{sFR} offen"]: I(y)
            P.label(f"L_{sn}_wr"); WBL.append(1)
        elif c == "P": I(f"s_setprio {r}")
        elif c == "G": I(gload())
        elif c == "R":
            J = vSTD if r == "o" else vC1; sb_ = sEX if r == "o" else sA if (typ, g) == (0, 0) else sHF
            for x in [f"s_mov_b32 s{sT1}, {(-7*MB) & 0xffffffff}", f"v_lshl_add_u32 v{J}, v{vM16}, 3, s{sT1}", f"s_mov_b64 exec, {0xffffff if sb_ == sHF else 0xffff}",
                      f"buffer_load_dword v{J}, v{J}, {s(SWS,4)}, s{sb_} offen{CFG.get('thm', ' sc1')}", "s_mov_b64 exec, -1"]: I(x)
        elif c == "H":
            ty, lv = r[0], int(r[1]); own = int(r[3]) if len(r) > 2 else None
            polls.append((ty, lv, own)); n_ = len(polls); spolls.append(n_)
            P.wait_lg()
            for x in gmin(ty, lv): I(x)
            I(f"s_cbranch_scc1 L_{sn}_gp{n_}"); P.label(f"L_{sn}_fb{n_}")
        elif c == "N":
            radr(); prev = []
            for tb, cb in ((0, 0), (1, 0), (0, 1), (1, 1)):
                q = tb*2+cb; A = ACC[q]
                if cb == 0: valid([(k, tb) for k in range(int(r), 15)])
                for j, k in enumerate(range(int(r), 15)):
                    I(f"v_mfma_f32_32x32x16_bf16 {v(A,16)}, {v(WR[k]+4*cb,4)}, {v(HR[k]+4*tb,4)}, {v(A,16)}")
                    if j >= CFG.get("nw", 1) and prev:
                        for y in prev.pop(0).split("\n"): I(y)
                for x in prev:
                    for y in x.split("\n"): I(y)
                prev = rwr(q)
            if CFG.get("rb"):
                for k in range(4): I(f"v_lshlrev_b32 v{16+2*k}, 16, v{vXD+k}"); I(f"v_and_b32 v{17+2*k}, s{sHI}, v{vXD+k}")
            for x in prev:
                for y in x.split("\n"): I(y)
            RD.append(1)
        elif c == "x" and CFG["rb"] == 2:
            hs = [t.RG[4*g+2*cb+1] - t.RG[4*g+2*cb] + pad(2*g+cb) for cb in range(2)]
            for y in [f"v_bfe_u32 v13, v{vM16}, 4, 3", f"v_bfe_u32 v14, v{vM16}, 7, 1", f"v_lshlrev_b32 v{vXA}, 10, v13", f"v_lshl_add_u32 v{vXA}, v14, 5, v{vXA}",
                      f"v_bfe_u32 v7, v{vM16}, 8, 1", f"v_lshl_add_u32 v{vXA}, v7, 4, v{vXA}", f"v_bfe_u32 v7, v{vM16}, 9, 1", f"v_lshl_add_u32 v{vXA}, v7, 6, v{vXA}",
                      f"buffer_load_dwordx4 {v(vXD,4)}, v{vXA}, {s(SX,4)}, s{sXO} offen",
                      f"v_bfe_u32 v7, v{vM16}, 8, 2", "v_lshlrev_b32 v7, 11, v7", "v_lshl_add_u32 v7, v13, 4, v7", f"v_lshl_add_u32 v7, s{sI}, 7, v7",
                      f"v_mul_u32_u24 v12, {hs[0]}, v14", f"v_mul_u32_u24 v13, {hs[1]}, v14", "v_add_u32 v12, v12, v7", "v_add_u32 v13, v13, v7",
                      f"v_add_u32 v12, {t.RG[4*g]}, v12", f"v_add_u32 v13, {t.RG[4*g+2]}, v13",
                      f"v_and_b32 v14, 16, v{vM16}", f"v_mov_b32 v7, 0x3f80", "v_lshlrev_b32 v14, v14, v7", f"v_bfe_u32 v7, v{vM16}, 5, 3"]: I(y)
            for k in range(8): I(f"v_cmp_eq_u32 vcc, {k}, v7"); I(f"v_cndmask_b32 v{168+k}, 0, v14, vcc")
        elif c == "x" and CFG.get("rb"):
            for y in [f"v_bfe_u32 v13, v{vM16}, 4, 4", f"v_bfe_u32 v7, v{vM16}, 9, 1", f"v_lshlrev_b32 v{vXA}, 10, v13", f"v_lshl_add_u32 v{vXA}, v7, 14, v{vXA}",
                      f"v_bfe_u32 v7, v{vM16}, 8, 1", f"v_lshl_add_u32 v{vXA}, v7, 4, v{vXA}", f"buffer_load_dwordx4 {v(vXD,4)}, v{vXA}, {s(SX,4)}, s{sXO} offen",
                      f"v_bfe_u32 v7, v{vM16}, 8, 2", f"v_mul_u32_u24 v7, 1792, v7", f"v_add3_u32 v12, s{sRB}, v{vM16}, v7",
                      f"v_and_b32 v14, 16, v{vM16}", f"v_mov_b32 v7, 0x3f80", "v_lshlrev_b32 v14, v14, v7", "v_lshrrev_b32 v13, 1, v13"]: I(y)
            for k in range(8): I(f"v_cmp_eq_u32 vcc, {k}, v13"); I(f"v_cndmask_b32 v{168+k}, 0, v14, vcc")
        elif c == "x":
            I(f"v_bfe_u32 v{vXA}, v{vM16}, 4, 5")
            I(f"v_bfe_u32 v7, v{vM16}, 9, 1")
            I(f"v_lshlrev_b32 v{vXA}, 10, v{vXA}")
            I(f"v_lshl_add_u32 v{vXA}, v7, 4, v{vXA}")
            I(f"buffer_load_dwordx4 {v(vXD,4)}, v{vXA}, {s(SX,4)}, s{sXO} offen")
        else: raise ValueError(tk)
    if typ == 1:
        nstamp(P, "oph", nst)
        for tk in CFG.get("qp", "").split(): tok(tk)
        DO = [208, 224]
        if not QE:
            I(f"s_mov_b32 s{sT0}, 0")
            P.label(f"L_{sn}_pre")
            for p in range(8): I(f"v_mfma_f32_16x16x32_bf16 {v(DD,4)}, {v(SEL,4)}, {v(LD+4*p,4)}, {'0' if p == 0 else v(DD,4)}")
            I(f"ds_write_b128 v{vTZ}, {v(ZZ,4)} offset:1024")
            I(f"v_mfma_f32_16x16x32_bf16 {v(LD,4)}, {v(SEL,4)}, {v(ZZ,4)}, {v(DD,4)}")
            I(f"v_cvt_pk_bf16_f32 v{LD+4}, v{DD}, v{DD+1}")
            I(f"v_cvt_pk_bf16_f32 v{LD+5}, v{DD+2}, v{DD+3}")
            I(f"ds_write_b64 v{vTW}, {v(LD+4,2)}")
            I(f"v_cmp_u_f32 vcc, v{LD}, v{LD}")
            I("s_nop 1")
            I(f"s_cbranch_vccnz L_{sn}_rt")
            P.label(f"L_{sn}_go")
            for tk in CFG["qo"][0].split(): tok(tk)
            P.wait_lg()
            I("s_barrier")
            AO = GA[0]; DO = [208, 224]
            for rho in range(2):
                for f in range(2): I(f"ds_read_b128 {v(AO+8*rho+4*f,4)}, v{vTR} offset:{rho*2048+16*f}")
            for rho in range(2):
                ph = AK + 8 if rho == 0 else AV
                for f in range(2):
                    I(f"v_mfma_f32_32x32x16_bf16 {v(DO[rho],16)}, {v(AO+8*rho+4*f,4)}, {v(ph+4*f,4)}, {'0' if f == 0 else v(DO[rho],16)}")
        for tk in CFG["qo"][1].split(): tok(tk)
        for rho in range(2):
            Dd = DO[rho]
            if rho and QE:
                for tk in CFG["qo"][0].split(): tok(tk)
            for k in range(4): I(f"v_add_f32 v{Dd+8+k}, v{Dd+8+k}, v{Dd+12+k}")
            I(f"v_add_f32 v{Dd+8}, v{Dd+8}, v{Dd+9}")
            I(f"v_add_f32 v{Dd+10}, v{Dd+10}, v{Dd+11}")
            I(f"v_add_f32 v{Dd+8}, v{Dd+8}, v{Dd+10}")
            I(f"v_mov_b32 v{Dd+9}, v{Dd+8}")
            I(f"v_permlane32_swap_b32 v{Dd+8}, v{Dd+9}")
            I(f"v_add_f32 v{Dd+8}, v{Dd+8}, v{Dd+9}")
            I(f"v_add_f32 v{Dd+8}, {fbits(1e-6)}, v{Dd+8}")
            I(f"v_rcp_f32 v{Dd+8}, v{Dd+8}")
            for k in range(8): I(f"v_mul_f32 v{Dd+k}, v{Dd+k}, v{Dd+8}")
            for k in range(4): I(f"v_cvt_pk_bf16_f32 v{Dd+k}, v{Dd+2*k}, v{Dd+2*k+1}")
            for x in mst(f"buffer_store_dwordx4 {v(Dd,4)}, v{vM16}, {s(SWS,4)}, s{sEX} offen offset:{rho*1024}", "ho"): em(x)
    for tk in CFG["p2"][typ].replace("Ts3", CFG.get("ts3", "Ts3")).replace("Ts4", CFG.get("ts4", "Ts4")).replace("N10", CFG.get("n10", ("N10", "N10"))[g]).replace(" x ", " x " + CFG.get("xw", "") + " ").split(): tok(tk)
    if not RD:
        radr()
        for q in (0, 2, 1, 3):
            for x in rwr(q): I(x)
    XU = 16
    for k in range(0 if CFG.get("rb") else 4):
        I(f"v_lshlrev_b32 v{XU+2*k}, 16, v{vXD+k}")
        I(f"v_and_b32 v{XU+2*k+1}, s{sHI}, v{vXD+k}")
    P.wait_lg()
    I("s_barrier")
    nstamp(P, "red", nst)
    if CFG.get("rb"):
        od = [(c_, hh) for hh in range(2) for c_ in (0, 2, 1, 3)]
        for j, (c_, hh) in enumerate(od): I(f"ds_read_b128 {v(128+4*j,4)}, v{12+(c_&1)} offset:{hh*8192+(c_>>1)*512}" if CFG["rb"] == 2 else f"ds_read_b128 {v(128+4*j,4)}, v12 offset:{hh*8192+c_*256}")
        for j, (c_, hh) in enumerate(od): I(f"v_mfma_f32_16x16x32_bf16 {v(XU+4*(c_>>1),4)}, {v(168+4*(c_&1),4)}, {v(128+4*j,4)}, {v(XU+4*(c_>>1),4)}")
    for w_ in range(0 if CFG.get("rb") else 8):
        for e in range(2): I(f"ds_read_b128 {v(128+8*w_+4*e,4)}, v12 offset:{w_*2048+e*1024}")
        if w_ == 6:
            for k in range(8): I(f"v_add_f32 v{XU+k}, v{XU+k}, v{128+k}")
    for w_ in range(1, 1 if CFG.get("rb") else 8):
        for k in range(8): I(f"v_add_f32 v{XU+k}, v{XU+k}, v{128+8*w_+k}")
    for k in range(4): I(f"v_cvt_pk_bf16_f32 v{XU+k}, v{XU+2*k}, v{XU+2*k+1}")
    I(f"buffer_store_dwordx4 {v(XU,4)}, v{vXA}, {s(SOUT,4)}, s{sXO} offen{CFG.get('om', '')}")
    while nst[0] < 18: nstamp(P, "-", nst)
    P.comment(f"STAMPS {typ}{g} " + " ".join(nst[1:]) + " end")
    dump_stamps(P, 19, SWS, sW, 8, sT0)
    I("s_endpgm")
    def cold():
        def poll(nm, back, sl, body, done, pre=[]):
            P.restore(([], [], [], False))
            P.label(f"L_{sn}_{nm}")
            for x in pre: em(x)
            I(f"s_mov_b32 s{sC}, 0")
            P.label(f"L_{sn}_{nm}l")
            I(f"s_sleep {sl}")
            for x in body: I(x)
            I(f"{done} L_{sn}_{back}")
            I(f"s_add_u32 s{sC}, s{sC}, 1")
            I(f"s_cmp_lt_u32 s{sC}, 20000")
            I(f"s_cbranch_scc1 L_{sn}_{nm}l")
            I(f"s_branch L_{sn}_{back}")
        if WBL:
            P.restore(([], [], [], False)); P.label(f"L_{sn}_wb"); P.raw("    buffer_wbl2 sc1"); I(f"s_branch L_{sn}_wr")
        for n_, x in enumerate(slow):
            P.restore(([], [], [], False))
            P.label(f"L_{sn}_ss{n_+1}")
            if NV and "store_dword " in x: I("s_waitcnt vmcnt(0)")
            I("s_nop 4"); I(x + " sc1"); I("s_nop 4"); I(f"s_branch L_{sn}_sb{n_+1}")
        poll("cp", "cb", 16, cad + [f"buffer_load_dword v{vCT}, v{vCT if QE else vFL}, {s(SDB,4)}, 0 offen sc1"] + cck, "s_cbranch_vccz")
        for n_, qs in enumerate(vals):
            mk = 0
            for k, tb in qs: mk |= 0x0f if KS[k][0] == "k" else 0xf0
            poll(f"vr{n_+1}", f"vl{n_+1}", CFG["fsl"], [fload(), f"v_cmp_gt_u32 vcc, 5, v{vFL}", f"s_and_b32 s{sT1}, vcc_lo, {mk}"], "s_cbranch_scc0", ["s_waitcnt vmcnt(0)"])
            P.restore(([], [], [], False))
            P.label(f"L_{sn}_vl{n_+1}")
            for k, tb in qs: I(hload(k)[tb][0]); I(hload(k)[tb][1] + " sc1")
            I("s_waitcnt vmcnt(0)"); I(f"s_branch L_{sn}_vb{n_+1}")
        for n_ in spolls:
            ty, lv, own = polls[n_-1]
            P.restore(([], [], [], False))
            P.label(f"L_{sn}_gp{n_}")
            I(f"s_cmp_lg_u32 s{sMD}, 0"); I(f"s_cbranch_scc1 L_{sn}_fp{n_}")
            if own is not None:
                for x in [f"v_mov_b32 v{vCT}, {own}", "s_waitcnt vmcnt(0)", "s_mov_b64 exec, 1", f"buffer_store_dword v{vCT}, off, {s(SWS,4)}, s{sFL}", "s_mov_b64 exec, -1"]: I(x)
            I(f"s_mov_b32 s{sO2}, 0")
            P.label(f"L_{sn}_gl{n_}")
            if CFG.get("gsl"): I(f"s_sleep {CFG['gsl']}")
            I(gload()); I("s_waitcnt lgkmcnt(0)")
            for x in gmin(ty, lv): I(x)
            I(f"s_cbranch_scc0 L_{sn}_fb{n_}")
            I(f"s_add_u32 s{sO2}, s{sO2}, 1"); I(f"s_cmp_lt_u32 s{sO2}, 64"); I(f"s_cbranch_scc1 L_{sn}_gl{n_}")
            I(f"s_branch L_{sn}_fp{n_}")
        for n_, (ty, lv, own) in enumerate(polls):
            pre = [] if own is None else [f"v_mov_b32 v{vCT}, {own}", "s_waitcnt vmcnt(0)", "s_mov_b64 exec, 1", f"s_cmp_lg_u32 s{sMD}, 0", f"s_cbranch_scc1 L_{sn}_fo{n_}", f"buffer_store_dword v{vCT}, off, {s(SWS,4)}, s{sFL}",
                                          f"s_branch L_{sn}_fq{n_}", f"LABEL L_{sn}_fo{n_}", f"buffer_store_dword v{vCT}, off, {s(SWS,4)}, s{sFL} sc1", f"LABEL L_{sn}_fq{n_}", "s_mov_b64 exec, -1"]
            poll(f"fp{n_+1}", f"fb{n_+1}", CFG["fsl"], [fload(), f"v_cmp_gt_u32 vcc, {lv}, v{vFL}", f"s_and_b32 s{sT1}, vcc_lo, {0xf0 if ty == 'q' else 0x0f}"], "s_cbranch_scc0", pre)
        if typ == 1:
            if not (QE and QE.get("nz")): poll("zp", "zb", CFG["zsl"], [loads()[0][0], f"v_cmp_eq_u32 vcc, -1, v{ZZ}", "s_nop 1"], "s_cbranch_vccz")
            P.restore(([], [], [], False))
            P.label(f"L_{sn}_rt")
            if QE:
                I(f"s_mov_b32 s{sT0}, 0"); I("s_nop 7"); I("s_nop 7")
                P.label(f"L_{sn}_rl")
                I("s_waitcnt lgkmcnt(0)")
                for x in loads():
                    for y in x: I(y)
                I("s_waitcnt vmcnt(0)")
                for x in preL + [preZ] + preW: I(x)
                I("s_waitcnt lgkmcnt(0)")
                I(f"s_cbranch_vccz L_{sn}_go")
                I(f"s_add_u32 s{sT0}, s{sT0}, 1")
                I(f"s_cmp_lt_u32 s{sT0}, 20000")
                I(f"s_cbranch_scc1 L_{sn}_rl")
                I(f"s_branch L_{sn}_go")
                return
            I(f"s_add_u32 s{sT0}, s{sT0}, 1")
            I(f"s_cmp_ge_u32 s{sT0}, 20000")
            I(f"s_cbranch_scc1 L_{sn}_go")
            I("s_waitcnt lgkmcnt(0)")
            for x in loads():
                for y in x: I(y)
            I("s_waitcnt vmcnt(0)")
            I(f"s_branch L_{sn}_pre")
    return cold

def gen_k1(name):
    P = Prog()
    P.raw(f".globl {name}\n.p2align 8\n.type {name},@function\n{name}:")
    prologue(P, name)
    snap = P.snapshot(); colds = []
    for k in range(4):
        P.restore(snap)
        if k: P.raw(".p2align 6"); P.label(f"L_{name}_r{k}")
        c_ = stream(P, k >> 1, k & 1, name)
        if CFG.get("cold"): colds.append(c_)
        else: c_()
    for c_ in colds: c_()
    P.label(f"L_{name}_end")
    P.I("s_endpgm")
    return P
```

```python
from asmlib import Prog, Ins, v, s
from sched import Sched, Item, Op
import k1
from k1 import fbits, LOG2E, stamp, pstamp, dump_stamps

MB = 122880
HF_OFF = MB
KVP_OFF = 0xC00000
WS_BYTES = 0x1000000
PH = 103040; OT = 106688; CSP = 156288
FLG = 0xD00000
LDS_BYTES = 163840
SDB, SX, SWQ, SWG, SWU, SWS, SWP, SWO, SWD = 4, 8, 12, 16, 20, 24, 28, 44, 48
sW, sT, sA, sTY, sR, sI, sMX, sMW, sMG, sC, sO1, sO2 = range(32, 44)
sHF, sK1, sK2, sHI, sT0, sT1, sT2, sT3 = range(52, 60)
sI4, sEX = 3, 35
sFL = sT; SOUT = SWQ
sHQ, sHO, sHK, sFR = range(SWP, SWP + 4)
sXO, sRB = 0, 1
sXV, sMD = 100, 101
vM16 = 0; vGO = [1, 2, 3]; vAG = [4, 5, 6, 7]; vMU = 8; CP = 12; CD = [16, 18, 20]
vC1, vSTD, vRS, vWF, vPH, vKA, vKB, vSM = range(24, 32)
vMX = vRS
FR = [32, 36, 40, 44]
AK, AV = 48, 64
GA = [80, 96, 112]
vXO, vWO, vLN, vST, vSQ = 80, 81, 82, 83, 84
vU = [85, 86, 87, 88]
vSTW, vSTR, vWPV, vWPA, vTCH, vCW = 89, 90, 91, 92, 93, 94
vAX = [[96, 97, 98, 99], [100, 101, 102, 103]]
vAA = [[104, 105, 106, 107], [108, 109, 110, 111]]
def XR(i, p): return 128 + (4 * i + p) * 4
CFG = dict(gb=6, pb=8, ppb=8, vb=6, paceg=1, b0end=1, pro=3, pace=0, tch=13, gt=0, rot="a", acc2=1, hstag=0, ns=([2]*8, [2]*8), phbar=(9, 10), qload=8, b0=8, hm=" sc1", qb=6, qpb=6, qpub=9,
           vdm={4: [0], 5: [1, 2], 6: [3, 4, 5], 7: [6, 7]}, g8=7, sq=[[0], [1], [2, 3], [4], [5], [6], [7], []], wc=0, qct=14, sq7=1, v1=(0, 2), skip=(3, 5, "v3", "ph", 12))
CFG.update(zd=12, rot="f", thl=((8, 9, 10), (8, 8, 9, 9, 10)), tho=0, th=8, thb=4, xm=1, fm=" sc1", tch=6, phbar=(9, 2), vpb=6, vb=7, gb=7, qload=0, qct=10, zsl=8, fsl=4, wb=(10, 10), wl=10, wg=2, f1=(0, 9, 0), f2=3, s1=12, atm=(7, 6, 2, -9),
           skip=(1, 2, 3, 4, 5, 6, 7, "v1", "v3", "v6", "ph", 9, 10, 11, 12, 15),
           st=((), ()),
           qo=("S3:h2 F T1", "D14"),
           p2=("Tp2 S3:h1 Ts3 Cq3 Tq3 L0 L1 F L2 L3 L4 L5 Cq4 Tq4 L6 L7 M0 M1 L8 L9 M2 Ck3 Tk3 L10 M3 L11 L12 M4 L13 M5 L14 X12 X13 X14 x Tb M6 M7 M8 M9 Tm9 B M10 M11 M12 M13 M14 Td",
               "Tp2 S4:ho Ts4 Cq3 L0 L1 F L2 L3 L4 L5 Cq4 Tq4 L6 L7 L8 L9 M0 Ck3 Tk3 L10 M1 L11 X10 X11 M2 L12 M3 L13 M4 L14 M5 X12 X13 X14 x M6 M7 M8 M9 Tm9 M10 M11 M12 M13 M14 Td"))
CFG.update(t3b=1, dup=1, swp=1, t3=4, tx=(None, 9, 2), f1=(0, 5, 0), s1=5, fsl=2, thl=((8, 8, 8), (8, 8, 8, 8, 8)))
CFG.update(ct=1, bl=1, qo=('S3:h2 T1','F D14'), p2=('Tp2 B0 S3:h1 Ts3 Cq3 Tq3 L0 L1 L2 L3 L4 L5 F M0 M1 M2 M3 Cq4 Tq4 L6 L7 L8 L9 Ck3 Tk3 L10 L11 L12 M4 L13 M5 L14 X12 X13 X14 x Tb M6 M7 M8 M9 Tm9 N10 Td',
           'Tp2 Cq3/4 L0 S4:ho Ts4 L1 L2 L3 L4 L5 F M0 M1 M2 M3 Cq4 Tq4 L6 L7 L8 L9 Ck3 Tk3 L10 L11 L12 L13 M4 L14 X10 X11 M5 X12 X13 X14 x M6 M7 M8 M9 Tm9 N10 Td'))
CFG.update(rb=3, om=' sc1', zw=0, zd=1, cold=1, pz=(0, 0, 0, 0))
STN = []
def nstamp(P, nm, nst):
    if nm in CFG["skip"]: return
    if nst[0] < 18: stamp(P, nst[0]); nst[0] += 1; nst.append(str(nm))
def HM(): return CFG["hm"]

class T:
    def __init__(s, typ):
        s.typ = typ
        s.RB = 192 if typ else 160; s.NP = 12 if typ else 10; s.MUL = 171 if typ else 205
        s.UP = 64 * s.RB + (32 if typ else 128); s.SL = 2 * 64 * s.RB + (64 if typ else 128)
        s.XB = (0, 3 * s.SL) if typ else (20608, 103040)
        s.WB = (16384, 16384 + 3 * s.SL) if typ else (12416, 82432)
        s.ST = 131072 if typ else 98816
        s.WPH = CSP + 2048 if typ else 152192
        s.RG = [0, 16384, 32768, 49152] + ([73920, 90304, 123200, 139584] if typ else [65536, PH, PH + 16384, PH + 32768])
    def xp(s, st): return ((st + 2) % 5) * s.SL if s.typ else (20608, 41216, 119424, 103040, 66048, 82432, 119424, 103040)[st]
    def wp(s, st): return s.xp(st) + 16384 if s.typ else (12416, 57600, 144000, 135808)[st % 4]
    def vp(s, c): return (20608, 41216, 66048, 82432)[c >> 1] + 8192 * (c & 1)
    def sp(s, o, B):
        hi = int(o >= B[1]); assert 0 <= o - B[hi] <= 65000; return hi, o - B[hi]
    def g(s, st): return ((st - 8) % 5) * s.SL

def dma_x(t, st):
    return [[f"s_add_u32 s{sC}, s{sR}, {st}", f"s_and_b32 s{sC}, s{sC}, 7", f"s_add_u32 m0, s{sMX}, {t.xp(st)}", f"s_lshl_b32 s{sO1}, s{sC}, 7",
             f"buffer_load_dwordx4 v{vXO}, {s(SX,4)}, s{sO1} offen lds #x{st}"],
            [f"s_add_u32 s{sO1}, s{sO1}, {16384 - 2048}", f"buffer_load_dwordx4 v{vXO}, {s(SX,4)}, s{sO1} offen offset:2048 lds #x{st}"]]
def dma_w(t, st):
    o = [[f"s_add_u32 s{sC}, s{sR}, {st}", f"s_and_b32 s{sC}, s{sC}, 7", f"s_add_u32 m0, s{sMW}, {t.wp(st)}", f"s_mul_i32 s{sO2}, s{sC}, {64*3072}",
          f"buffer_load_dwordx4 v{vWO}, {s(SWQ,4)}, s{sO2} offen lds #w{st}"]]
    return o
def dma_v(t, c):
    return [[f"s_add_u32 s{sC}, s{sR}, {c}", f"s_and_b32 s{sC}, s{sC}, 7", f"s_add_u32 m0, s{sMW}, {t.vp(c) - 1024}", f"s_mul_i32 s{sO2}, s{sC}, {64*3072}",
          f"buffer_load_dwordx4 v{vWO}, {s(SWQ,4)}, s{sO2} offen offset:1024 lds #v{c}"]]
def dma_g(t, g, st):
    S = s(SWU if g else SWG, 4)
    m = [f"s_add_u32 m0, s{sMG}, {t.g(st)}"] if st >= 12 else []
    o = [[f"s_add_u32 s{sC}, s{sR}, {st}", f"s_and_b32 s{sC}, s{sC}, 7", f"s_add_u32 m0, s{sMG}, {t.g(st)}", f"s_mul_i32 s{sO2}, s{sC}, {64*2752}",
          f"buffer_load_dwordx4 v{vGO[0]}, {S}, s{sO2} offen lds #w{st}"],
         m + [f"buffer_load_dwordx4 v{vGO[1]}, {S}, s{sO2} offen offset:1024 lds #w{st}"]]
    l = f"buffer_load_dwordx4 v{vGO[2]}, {S}, s{sO2} offen offset:2048 lds #w{st}"
    o.append(m + ([l] if t.typ else ["s_mov_b32 exec_hi, 0", l, "s_mov_b32 exec_hi, -1"]))
    return o

def stream_list(t, g):
    o = []
    for st in range(1, 8): o += [dma_x(t, st), dma_w(t, st)]
    return o

def emit(P, t):
    tag = None
    if "#" in t: t, tag = t.split("#"); t = t.strip()
    P.I(t, tag)

def prologue(P, name):
    I = P.I
    stamp(P, 0)
    I("s_cmp_ge_u32 s2, 256")
    I(f"s_cbranch_scc1 L_{name}_end")
    I(f"s_load_dwordx4 s[8:11], s[0:1], 0")
    if CFG.get("ct"):
        I("s_getpc_b64 s[4:5]")
        P.label(f"L_{name}_pc")
        I("s_lshr_b32 s3, s2, 3")
        I("s_lshl_b32 s3, s3, 11")
        I("v_lshrrev_b32 v1, 5, v0")
        I("v_lshl_add_u32 v1, v1, 7, s3")
        I(f"s_mov_b32 s6, L_{name}_end-L_{name}_pc")
        I("s_mov_b32 s7, 0x20000")
        I("buffer_load_dword v127, v1, s[4:7], 0 offen")
    I(f"v_lshrrev_b32 v1, 6, v0")
    I(f"v_and_b32 v{vLN}, 63, v0")
    I(f"v_readfirstlane_b32 s{sW}, v1")
    I(f"s_and_b32 s{sT0}, s2, 1")
    I(f"s_bfe_u32 s{sT1}, s2, 0x30003")
    I(f"s_lshl3_add_u32 s{sT}, s{sT0}, s{sT1}")
    I(f"s_lshr_b32 s{sT2}, s2, 6")
    I(f"s_and_b32 s{sT0}, s2, 6")
    I(f"s_and_b32 s{sT1}, s{sT2}, 1")
    I(f"s_add_u32 s{sA}, s{sT0}, s{sT1}")
    I(f"s_lshl1_add_u32 s{sR}, s{sT2}, s{sT}")
    rot = CFG["rot"]
    if CFG["xm"]:
        I(f"s_and_b32 s{sT0}, s2, 7")
        I(f"s_bfe_u32 s{sT1}, s2, 0x10006")
        I(f"s_lshl1_add_u32 s{sT}, s{sT0}, s{sT1}")
        I(f"s_bfe_u32 s{sA}, s2, 0x30003")
        if CFG.get("ap"): I(f"s_xor_b32 s{sA}, s{sA}, {CFG['ap']}")
        if rot[0] == "e": I(f"s_mov_b32 s{sR}, s{sT0}")
        if rot[0] == "f": I(f"s_add_u32 s{sR}, s{sT0}, s{sA}")
        if rot[0] == "g": I(f"s_lshl2_add_u32 s{sR}, s{sT1}, s{sT0}")
        if rot[0] == "h": I(f"s_lshl1_add_u32 s{sR}, s{sT2}, s{sT0}")
        if rot[0] == "i": I(f"s_lshl2_add_u32 s{sR}, s{sT1}, s{sT0}"); I(f"s_add_u32 s{sR}, s{sR}, s{sA}")
    if rot[0] == "b": I(f"s_add_u32 s{sR}, s{sT2}, s{sT}"); I(f"s_lshl_b32 s{sR}, s{sR}, 1")
    if rot[0] == "c": I(f"s_add_u32 s{sR}, s{sT2}, s{sT}"); I(f"s_lshl_b32 s{sR}, s{sR}, 2")
    if rot[0] == "d": I(f"s_mov_b32 s{sR}, 0")
    if rot[1:] == "x": I(f"s_add_u32 s{sR}, s{sR}, s2")
    if rot[1:] == "y": I(f"s_lshr_b32 s{sC}, s2, 1"); I(f"s_add_u32 s{sR}, s{sR}, s{sC}"); I(f"s_and_b32 s{sC}, s2, 1"); I(f"s_lshl1_add_u32 s{sR}, s{sC}, s{sR}")
    if rot[1:] == "z": I(f"s_add_u32 s{sR}, s{sR}, s{sT0}"); I(f"s_and_b32 s{sC}, s2, 1"); I(f"s_lshl2_add_u32 s{sR}, s{sC}, s{sR}")
    I(f"v_lshrrev_b32 v2, 4, v{vLN}")
    I(f"v_lshrrev_b32 v3, 3, v{vLN}")
    I(f"v_and_b32 v4, 7, v{vLN}")
    I(f"s_and_b32 s{sT0}, s{sW}, 1")
    I(f"s_lshr_b32 s{sT1}, s{sW}, 1")
    I(f"s_lshl2_add_u32 s{sT1}, s{sT1}, s{sT0}")
    I(f"s_lshl_b32 s{sMX}, s{sT1}, 10")
    I(f"s_lshl4_add_u32 s{sT1}, s{sT}, s{sT1}")
    I(f"s_lshl_b32 s{sT1}, s{sT1}, 13")
    I(f"s_lshl_b32 s{sT0}, s{sT0}, 2")
    I(f"v_or_b32 v5, s{sT0}, v2")
    I(f"v_xor_b32 v5, v5, v4")
    I(f"v_lshlrev_b32 v5, 4, v5")
    I(f"v_lshl_add_u32 v5, v3, 10, v5")
    I(f"v_add_u32 v{vXO}, s{sT1}, v5")
    I(f"s_lshl_b32 s{sMW}, s{sW}, 10")
    I(f"s_mul_i32 s{sT0}, s{sW}, {8*3072}")
    I(f"s_lshl_b32 s{sT1}, s{sA}, 7")
    I(f"s_add_u32 s{sT0}, s{sT0}, s{sT1}")
    I(f"s_and_b32 s{sC}, s{sR}, 7")
    I(f"s_lshl_b32 s{sO1}, s{sC}, 7")
    I(f"s_mul_i32 s{sO2}, s{sC}, {64*3072}")
    I(f"s_cmp_lt_u32 s2, 128")
    I(f"s_cselect_b32 s{sT1}, 1024, 0")
    I(f"s_cselect_b32 s{sT3}, 0, {T(1).xp(0) - T(0).xp(0)}")
    I(f"s_cselect_b32 s{sT2}, 0, {T(1).wp(0) - T(0).wp(0)}")
    I(f"s_add_u32 s{sT3}, s{sT3}, {T(0).xp(0)}")
    I(f"s_add_u32 s{sT2}, s{sT2}, {T(0).wp(0)}")
    I(f"s_add_u32 s{sT0}, s{sT0}, s{sT1}")
    I(f"v_and_b32 v5, 1, v2")
    I(f"v_lshlrev_b32 v5, 2, v5")
    I(f"v_xor_b32 v5, v5, v4")
    I(f"v_lshlrev_b32 v5, 4, v5")
    I(f"v_mul_u32_u24 v6, 3072, v3")
    I(f"v_add3_u32 v{vWO}, v5, v6, s{sT0}")
    I(f"s_add_u32 m0, s{sMX}, s{sT3}")
    I(f"s_add_u32 s{sT1}, s{sO1}, {16384 - 2048}")
    I(f"s_mov_b32 s{SWQ+2}, {512*3072}")
    I(f"s_mov_b32 s{SWQ+3}, 0x20000")
    pstamp(P, 1)
    I("s_waitcnt lgkmcnt(0)")
    pstamp(P, 2)
    I(f"s_mov_b32 s{SWQ}, s10")
    I(f"s_mov_b32 s{SWQ+1}, s11")
    I(f"s_mov_b32 s{SX+2}, 2097152")
    I(f"s_mov_b32 s{SX+3}, 0x20000")
    I(f"buffer_load_dwordx4 v{vXO}, {s(SX,4)}, s{sO1} offen lds", "x0")
    I(f"buffer_load_dwordx4 v{vXO}, {s(SX,4)}, s{sT1} offen offset:2048 lds", "x0")
    I(f"s_add_u32 m0, s{sMW}, s{sT2}")
    I(f"buffer_load_dwordx4 v{vWO}, {s(SWQ,4)}, s{sO2} offen lds", "w0")
    for r, o in ((SWP, 16), (SWG, 40), (SWU, 48), (SWS, 80), (SDB, 72), (SWO, 24), (SWD, 56), (SWO + 2, 64)):
        I(f"s_load_dwordx2 {s(r,2)}, s[0:1], {o}")
    pstamp(P, 3)
    I(f"s_and_b32 s{sI}, s{sW}, 3")
    I(f"s_lshr_b32 s{sT0}, s{sW}, 2")
    I(f"s_lshr_b32 s{sT1}, s2, 7")
    I(f"s_lshl1_add_u32 s{sT0}, s{sT1}, s{sT0}")
    for k in (1, 2, 3):
        I(f"s_cmp_eq_u32 s{sT0}, {k}")
        I(f"s_cbranch_scc1 L_{name}_r{k}")

def setup(P, t, g):
    I = P.I; typ = t.typ
    a, b, c, d, h, sb, r, sw, row, j4 = range(112, 122)
    def pdm(l):
        for nm in l.split():
            for z in (dma_x if nm[0] == "x" else dma_w)(t, int(nm[1])):
                for y in z: emit(P, y)
    if CFG.get("po"): pdm(CFG["po"][typ][0])
    for R, n in ((SWP, 16384), (SWG, 512*2752), (SWU, 512*2752), (SWS, WS_BYTES), (SDB, 256), (SWD, 1376*1024)):
        if R == (SWG if g else SWU): continue
        I(f"s_mov_b32 s{R+2}, {n}")
        I(f"s_mov_b32 s{R+3}, 0x20000")
    I(f"s_mov_b32 s{sHI}, 0xffff0000")
    I(f"s_getreg_b32 s{sXV}, hwreg(HW_REG_XCC_ID, 0, 4)")
    I(f"s_mul_i32 s{sMD}, s{sXV}, s{sXV}")
    I(f"s_lshl_b32 s{sMD}, s{sMD}, 9")
    I(f"s_add_u32 s{sXV}, s{sXV}, s{sMD}")
    I(f"s_lshl_b32 s{sXV}, s{sXV}, 8")
    I(f"s_add_u32 s{sXV}, s{sXV}, 1")
    I(f"s_lshl_b32 s{sI4}, s{sI}, 2")
    I(f"v_mov_b32 v{j4}, v2")
    I(f"v_lshrrev_b32 v{h}, 5, v{vLN}")
    I(f"v_and_b32 v{sb}, 1, v2")
    I(f"v_bfe_u32 v{r}, v{vLN}, 2, 2")
    I(f"v_bfe_u32 v{a}, v{vLN}, 1, 1")
    I(f"v_and_b32 v{b}, 1, v{vLN}")
    I(f"v_lshl_or_b32 v{sw}, v{b}, 1, v{a}")
    I(f"v_lshlrev_b32 v{sw}, 3, v{sw}")
    I(f"v_lshl_add_u32 v{row}, v{h}, 3, v{r}")
    I(f"v_lshl_or_b32 v{c}, v{sb}, 1, v{a}")
    I(f"v_lshlrev_b32 v{c}, 3, v{c}")
    I(f"v_lshl_add_u32 v{c}, v{row}, 5, v{c}")
    I(f"v_lshl_add_u32 v{c}, v{b}, 11, v{c}")
    I(f"v_add_u32 v{vWF}, {t.WPH + g*1024}, v{c}")
    if typ == 0:
        I(f"v_bfe_u32 v{c}, v{vLN}, 2, 3")
        I(f"v_lshl_add_u32 v{c}, v{h}, 4, v{c}")
        I(f"v_mul_u32_u24 v{c}, 96, v{c}")
        I(f"v_lshl_add_u32 v{c}, v{b}, 3, v{c}")
        I(f"s_lshr_b32 s{sT0}, s{sI}, 1")
        I(f"s_mul_i32 s{sT0}, s{sT0}, 12288")
        I(f"s_add_u32 s{sT0}, s{sT0}, {PH + 2*g*12288}")
        I(f"s_and_b32 s{sT1}, s{sI}, 1")
        I(f"s_lshl_b32 s{sT1}, s{sT1}, 5")
        I(f"s_add_u32 s{sT1}, s{sT1}, s{sT0}")
        I(f"v_xor_b32 v{d}, v{a}, v{sb}")
        I(f"v_lshlrev_b32 v{d}, 4, v{d}")
        I(f"v_add3_u32 v{vKA}, v{c}, v{d}, s{sT1}")
    I(f"v_and_b32 v{b}, 2, v{r}")
    I(f"v_or_b32 v{b}, v{b}, v{sb}")
    I(f"v_lshl_add_u32 v{b}, v{b}, 5, v{sw}")
    I(f"v_lshl_add_u32 v{b}, v{row}, 7, v{b}")
    I(f"s_lshl_b32 s{sT0}, s{sI}, 11")
    if g: I(f"s_add_u32 s{sT0}, s{sT0}, 64")
    I(f"v_xor_b32 v{vAA[0][0]}, s{sT0}, v{b}")
    I(f"v_and_b32 v{a}, 31, v{vLN}")
    I(f"v_bfe_u32 v{b}, v{vLN}, 1, 3")
    I(f"v_xor_b32 v{b}, v{b}, v{h}")
    I(f"v_lshlrev_b32 v{b}, 4, v{b}")
    I(f"v_lshl_add_u32 v{b}, v{a}, 7, v{b}")
    I(f"s_mul_i32 s{sT0}, s{sI}, {4096 + 32}")
    I(f"v_xor_b32 v{vAX[0][0]}, s{sT0}, v{b}")
    for p in range(1, 4):
        I(f"v_xor_b32 v{vAX[0][p]}, {p*32}, v{vAX[0][0]}")
        I(f"v_xor_b32 v{vAA[0][p]}, {p*2048}, v{vAA[0][0]}")
    for p in range(4):
        I(f"v_add_u32 v{vAX[1][p]}, {t.XB[1]}, v{vAX[0][p]}")
        I(f"v_add_u32 v{vAA[1][p]}, {t.WB[1]}, v{vAA[0][p]}")
        if t.XB[0]: I(f"v_add_u32 v{vAX[0][p]}, {t.XB[0]}, v{vAX[0][p]}")
        I(f"v_add_u32 v{vAA[0][p]}, {t.WB[0]}, v{vAA[0][p]}")
    I(f"s_lshl_b32 s{sT0}, s{sI}, 9")
    I(f"s_add_u32 s{sT0}, s{sT0}, {t.ST}")
    I(f"v_lshlrev_b32 v{b}, 4, v{a}")
    I(f"v_add_u32 v{vSTR}, s{sT0}, v{b}")
    I(f"v_lshl_add_u32 v{vSTW}, v{h}, 2, v{vSTR}")
    I(f"v_lshl_add_u32 v{vSTW}, v{sb}, 3, v{vSTW}")
    if g: I(f"v_xor_b32 v{vSTW}, 8, v{vSTW}")
    if typ == 0:
        I(f"v_mul_u32_u24 v{b}, 96, v{a}")
        I(f"v_and_b32 v{c}, 4, v{a}")
        I(f"v_lshlrev_b32 v{c}, 2, v{c}")
        I(f"s_mul_i32 s{sT0}, s{sI}, 3072")
        I(f"s_add_u32 s{sT0}, s{sT0}, {PH + 2*g*12288}")
        I(f"v_add3_u32 v{b}, v{b}, v{c}, s{sT0}")
        I(f"v_lshl_add_u32 v{vPH}, v{h}, 5, v{b}")
        I(f"v_lshlrev_b32 v{c}, 4, v{h}")
        I(f"v_xor_b32 v{vKB}, v{b}, v{c}")
    if CFG.get("po"): pdm(CFG["po"][typ][1])
    I(f"v_mul_u32_u24 v{b}, {t.RB}, v{row}")
    I(f"v_mul_u32_u24 v{c}, {t.UP}, v{sb}")
    I(f"v_add3_u32 v{b}, v{b}, v{c}, v{sw}")
    for p in range(4):
        I(f"s_xor_b32 s{sT0}, s{sI}, {p}")
        I(f"s_mul_i32 s{sT0}, s{sT0}, {16*t.RB}")
        I(f"v_add_u32 v{vAG[p]}, s{sT0}, v{b}")
    I(f"s_mul_i32 s{sMG}, s{sI}, {16*t.RB}")
    if g: I(f"s_add_u32 s{sMG}, s{sMG}, {t.UP}")
    if typ == 0:
        I(f"s_mul_i32 s{sT2}, s{sA}, 5")
        I(f"s_min_u32 s{sT2}, s{sT2}, 33")
        I(f"s_add_u32 s{sT2}, s{sT2}, 48")
    else: I(f"s_mul_i32 s{sT2}, s{sA}, 6")
    I(f"s_mul_i32 s{sT0}, s{sI}, {16*2752}")
    I(f"s_lshl_b32 s{sT1}, s{sT2}, 5")
    I(f"s_add_u32 s{sT0}, s{sT0}, s{sT1}")
    I(f"s_mov_b32 s{sT1}, {2752 - 16*t.NP}")
    I(f"v_lshlrev_b32 v{a}, 4, v{vLN}")
    I(f"v_add_u32 v{vM16}, {MB}, v{a}")
    I(f"v_add_u32 v{a}, s{sT0}, v{a}")
    I(f"v_mul_u32_u24 v{b}, {t.MUL}, v{vLN}")
    for j in range(3):
        if j: I(f"v_add_u32 v{b}, {64*t.MUL}, v{b}")
        I(f"v_lshrrev_b32 v{c}, 11, v{b}")
        I(f"v_mad_u32_u24 v{vGO[j]}, v{c}, s{sT1}, v{a}")
        if typ == 0 and CFG["dup"]:
            if j == 0:
                I(f"s_cmp_eq_u32 s{sA}, 7")
                I(f"s_cselect_b32 s{sT3}, {4*t.MUL}, 0")
            I(f"v_and_b32 v{c}, 0x7ff, v{b}")
            I(f"v_cmp_gt_u32 vcc, s{sT3}, v{c}")
            I(f"v_cndmask_b32 v{vGO[j]}, v{vGO[j]}, 2.0, vcc")
    I(f"v_and_b32 v{a}, 15, v{vLN}")
    I(f"v_lshlrev_b32 v{b}, 2, v{j4}")
    I(f"v_mov_b32 v{c}, 0x3f803f80")
    I(f"v_cmp_eq_u32 vcc, v{a}, v{b}")
    for k in range(4): I(f"v_cndmask_b32 v{CP+k}, 0, v{c}, vcc")
    I(f"v_xor_b32 v{b}, s{sI4}, v{b}")
    I(f"v_or_b32 v{vCW}, v{b}, v{vM16}")
    I(f"s_lshl2_add_u32 s{sT0}, s{sT}, s{sI}")
    I(f"s_mul_i32 s{sT0}, s{sT0}, 118")
    I(f"s_add_u32 s{sT1}, s{sT0}, s{sT2}")
    I(f"s_add_u32 s{sT1}, s{sT1}, {32 + (3*g if typ else 2*g)}")
    I(f"s_lshl_b32 s{sHF}, s{sT1}, 10")
    I(f"s_lshr_b32 s{sT1}, s{sW}, 1")
    I(f"s_lshl2_add_u32 s{sT1}, s{sA}, s{sT1}")
    I(f"s_mul_i32 s{sT1}, s{sT1}, 17408")
    I(f"s_and_b32 s{sT2}, s{sW}, 1")
    if typ == 0:
        I(f"s_lshl4_add_u32 s{sT3}, s{sT2}, s{sT}")
        I(f"s_lshl_b32 s{sT3}, s{sT3}, 9")
        I(f"s_add_u32 s{sK1}, s{sT1}, s{sT3}")
        I(f"s_add_u32 s{sK1}, s{sK1}, {KVP_OFF - MB//2}")
        I(f"s_lshl1_add_u32 s{sT3}, s{sT}, s{sT2}")
        I(f"s_lshl_b32 s{sT3}, s{sT3}, 5")
        I(f"s_add_u32 s{sK2}, s{sT1}, s{sT3}")
        I(f"s_add_u32 s{sK2}, s{sK2}, {KVP_OFF + 16384 - MB//32}")
        I(f"s_lshl_b32 s{sEX}, s{sI}, 11")
        I(f"s_sub_u32 s{sEX}, s{sEX}, {MB - 3*t.SL}")
    else:
        I(f"s_add_u32 s{sK2}, s{sT1}, {KVP_OFF + 16384 - MB}")
        I(f"s_lshl_b32 s{sT2}, s{sT2}, 13")
        I(f"s_add_u32 s{sK1}, s{sT1}, s{sT2}")
        I(f"s_add_u32 s{sK1}, s{sK1}, {KVP_OFF - MB}")
        I(f"s_lshl2_add_u32 s{sT0}, s{sA}, s{sT0}")
        I(f"s_add_u32 s{sT0}, s{sT0}, {2*g}")
        I(f"s_lshl_b32 s{sEX}, s{sT0}, 10")
    I(f"v_lshlrev_b32 v{a}, 2, v{vLN}")
    I(f"s_lshl_b32 s{sT0}, s{sW}, 8")
    I(f"s_lshl_b32 s{sT1}, s{sA}, 11")
    I(f"s_add_u32 s{sT1}, s{sT1}, s{sT0}")
    I(f"s_add_u32 s{sT0}, s{sT0}, {t.WPH}")
    I(f"v_add_u32 v{vWPA}, s{sT0}, v{a}")
    I(f"s_lshr_b32 s{sT0}, s{sI}, 1")
    I(f"s_lshl1_add_u32 s{sT0}, s{sT}, s{sT0}")
    I(f"s_lshl3_add_u32 s{sT0}, s{sT0}, s{sA}")
    I(f"s_lshl_b32 s{sT0}, s{sT0}, 7")
    I(f"s_and_b32 s{sT2}, s{sI}, 1")
    I(f"s_lshl2_add_u32 s{sT0}, s{sT2}, s{sT0}")
    I(f"s_add_u32 s{sFL}, s{sT0}, {FLG + 16*typ + 8*g}")
    if typ == 0 and g == 0:
        I(f"s_cmp_eq_u32 s{sA}, 7")
        I(f"s_cselect_b32 s{sA}, 2.0, s{sHF}")
    I(f"v_mov_b32 v{b}, 0")
    if typ == 1:
        for x in p2addr(t, vLN, c, d): I(x)
    I(f"v_lshlrev_b32 v{vTCH}, 7, v{vLN}")
    if typ == 0:
        I(f"v_mov_b32 v{h}, -1")
        I(f"v_mov_b32 v{h+1}, -1")
        I(f"v_lshrrev_b32 v{c}, 1, v{vM16}")
        I(f"v_lshrrev_b32 v{d}, 5, v{vM16}")
    pstamp(P, 4)
    I("s_waitcnt lgkmcnt(0)")
    def dmy(js):
        for j in js:
            if j < 3 or typ: I(f"buffer_store_dwordx4 {v(CP,4)}, v{vM16}, {s(SWS,4)}, s{(sA if (typ, g) == (0, 0) and j < 2 else sHF) if j < 3 else sEX} offen offset:{(j%3)*1024}{CFG.get('dmm', '')}")
    if CFG["th"] & 64: dmy(CFG["dj"][0])
    if CFG.get("po"):
        I(f"buffer_load_dword v{vWPV}, v{a}, {s(SWP,4)}, s{sT1} offen")
        pdm(CFG["po"][typ][2])
    else:
        for x in dma_x(t, 1):
            for y in x: emit(P, y)
        I(f"buffer_load_dword v{vWPV}, v{a}, {s(SWP,4)}, s{sT1} offen")
        for x in stream_list(t, g)[1:CFG["pro"]]:
            for z in x:
                for y in z: emit(P, y)
    if CFG["th"] & 64: dmy(CFG["dj"][1])
    if CFG["t3"] == 2:
        I(f"s_and_b32 s{sT0}, s2, 0xf8")
        I(f"s_add_u32 s{sT0}, s{sT0}, s{sW}")
        I(f"s_mul_i32 s{sT0}, s{sT0}, {2*3072}")
        I("s_mov_b32 exec_hi, 0xffff")
        I(f"buffer_load_dword v{75 if typ else 26}, v{vTCH}, {s(SWQ,4)}, s{sT0} offen")
    if CFG["t3"] == 3:
        I(f"s_and_b32 s{sT0}, s2, 0xf8")
        I(f"s_add_u32 s{sT0}, s{sT0}, s{sW}")
        I(f"s_mul_i32 s{sT0}, s{sT0}, {2*3072}")
        I("s_mov_b32 exec_lo, 0xff00ffff")
        I("s_mov_b32 exec_hi, 0xff")
        I(f"buffer_load_dword v{75 if typ else 26}, v{vTCH}, {s(SWQ,4)}, s{sT0} offen")
    if CFG["t3"] in (1, 4):
        I(f"s_lshr_b32 s{sT0}, s2, 3")
        I(f"s_lshl2_add_u32 s{sT0}, s{sT0}, s{sI}")
        I(f"s_mul_i32 s{sT0}, s{sT0}, {4*3072}")
        I(f"v_lshlrev_b32 v{a}, 3, v{vTCH}")
        I("s_mov_b64 exec, 0xfff")
        if g or CFG["t3"] == 4: I(f"buffer_load_dword v{75 if typ else 26}, v{a}, {s(SWQ,4)}, s{sT0} offen offset:{384 if g else 896}")
    I("s_mov_b64 exec, 1")
    I(f"buffer_store_dword v{b}, off, {s(SWS,4)}, s{sFL} sc1")
    I("s_mov_b64 exec, -1")
    if typ == 0:
        I(f"buffer_store_dwordx2 {v(h,2)}, v{c}, {s(SWS,4)}, s{sK1} offen sc1")
        I("s_mov_b32 exec_lo, 0x10001")
        I("s_mov_b32 exec_hi, 0x10001")
        I(f"buffer_store_dwordx2 {v(h,2)}, v{d}, {s(SWS,4)}, s{sK2} offen sc1")
        I("s_mov_b64 exec, -1")
    for r, m in zip(MS(g), (0xaaaaaaaa, 0xcccccccc, 0xff00ff00, 0xffff0000, 0x0f0f0f0f)):
        I(f"s_mov_b32 s{r}, {m:#x}")
        I(f"s_mov_b32 s{r+1}, {(m if m != 0x0f0f0f0f else 0xf0f0f0f0):#x}")
    pstamp(P, 5)

def P2R(typ): return (28, 29, 30, 31, 26) if typ else (27, 31, 26, 28, 29)
def p2addr(t, ln, a, b):
    vWa, vRD0, vRD1 = P2R(t.typ)[:3]
    base = t.RG[5] if t.typ else PH
    if CFG["rb"] == 3:
        return [f"v_and_b32 v{a}, 7, v{ln}", f"v_lshlrev_b32 v{a}, 4, v{a}", f"v_and_b32 v{b}, 16, v{ln}", f"v_lshlrev_b32 v{b}, 1, v{b}", f"v_xor_b32 v{a}, v{a}, v{b}",
            f"v_lshrrev_b32 v{b}, 3, v{ln}", f"v_lshl_add_u32 v{vWa}, v{b}, 10, v{a}",
            f"v_and_b32 v{a}, 16, v{ln}", f"v_and_b32 v{b}, 1, v{ln}", f"v_lshl_add_u32 v{a}, v{b}, 3, v{a}", f"v_and_b32 v{b}, 14, v{ln}", f"v_lshl_add_u32 v{a}, v{b}, 5, v{a}",
            f"v_and_b32 v{b}, 8, v{ln}", f"v_lshl_add_u32 v{a}, v{b}, 2, v{a}", f"v_lshrrev_b32 v{b}, 5, v{ln}", f"v_lshl_add_u32 v{a}, v{b}, 10, v{a}",
            f"v_lshl_add_u32 v{a}, s{sMW}, 1, v{a}", f"v_xor_b32 v{b}, 32, v{a}", f"v_add_u32 v{vRD0}, {base}, v{a}", f"v_add_u32 v{vRD1}, {base}, v{b}"]
    return [f"v_and_b32 v{a}, 7, v{ln}", f"v_lshlrev_b32 v{a}, 4, v{a}", f"v_and_b32 v{b}, 16, v{ln}", f"v_lshlrev_b32 v{b}, 2, v{b}", f"v_xor_b32 v{a}, v{a}, v{b}",
            f"v_lshrrev_b32 v{b}, 3, v{ln}", f"v_lshl_add_u32 v{vWa}, v{b}, 10, v{a}",
            ] + ([f"v_and_b32 v{a}, 3, v{ln}"] if CFG.get("rb") else [f"v_bfe_u32 v{a}, v{ln}, 1, 1", f"v_and_b32 v{b}, 1, v{ln}", f"v_lshl_or_b32 v{a}, v{b}, 1, v{a}"]) + [f"v_lshlrev_b32 v{a}, 3, v{a}",
            f"v_bfe_u32 v{b}, v{ln}, 4, 1", f"v_lshl_add_u32 v{a}, v{b}, 5, v{a}", f"v_and_b32 v{b}, 8, v{ln}", f"v_lshl_add_u32 v{a}, v{b}, 3, v{a}",
            f"v_bfe_u32 v{b}, v{ln}, 2, 2", f"v_lshl_add_u32 v{a}, v{b}, 7, v{a}", f"v_lshrrev_b32 v{b}, 5, v{ln}", f"v_lshl_add_u32 v{a}, v{b}, 10, v{a}",
            f"v_lshl_add_u32 v{a}, s{sMW}, 1, v{a}", f"v_xor_b32 v{b}, 64, v{a}", f"v_add_u32 v{vRD0}, {base}, v{a}", f"v_add_u32 v{vRD1}, {base}, v{b}"]
def MS(g): return [0, SWP, SWP + 2, (SWG if g else SWU), (SWG if g else SWU) + 2]
def softmax(W, O, m=vMX, sm=vSM):
    o = [f"v_max_f32 v{m}, v{W}, v{W+1}", f"v_max_f32 v{sm}, v{W+2}, v{W+3}"]
    for k in range(4, 16, 4):
        o.append(f"v_max3_f32 v{m}, v{m}, v{W+k}, v{W+k+1}")
        o.append(f"v_max3_f32 v{sm}, v{sm}, v{W+k+2}, v{W+k+3}")
    o.append(f"v_max_f32 v{m}, v{m}, v{sm}")
    o.append(f"v_mul_f32 v{m}, v{m}, v{vC1}")
    for k in range(16): o.append(f"v_fma_f32 v{W+k}, v{W+k}, -v{vC1}, v{m}")
    for k in range(16):
        o.append(f"v_exp_f32 v{W+k}, v{W+k}")
        if k == 2: o.append(f"v_add_f32 v{sm}, v{W}, v{W+1}")
        if k > 2: o.append(f"v_add_f32 v{sm}, v{sm}, v{W+k-1}")
    o.append(f"v_add_f32 v{sm}, v{sm}, v{W+15}")
    o.append(f"v_rcp_f32 v{sm}, v{sm}")
    for k in range(8):
        o.append(f"v_mul_f32 v{W+2*k}, v{W+2*k}, v{sm}")
        o.append(f"v_mul_f32 v{W+2*k+1}, v{W+2*k+1}, v{sm}")
        o.append(f"v_cvt_pk_bf16_f32 v{O+k}, v{W+2*k}, v{W+2*k+1}")
    return o

def glu(G, U, n):
    o = []
    for k in range(n): o.append(f"v_mul_f32 v{G+k}, v{G+k}, v{vC1}")
    for k in range(n): o.append(f"v_exp_f32 v{G+k}, v{G+k}")
    for k in range(n): o.append(f"v_fma_f32 v{G+k}, v{G+k}, v{vSTD}, v{vSTD}")
    for k in range(n): o.append(f"v_rcp_f32 v{G+k}, v{G+k}")
    for k in range(n): o.append(f"v_mul_f32 v{G+k}, v{G+k}, v{U+k}")
    for k in range(n // 2): o.append(f"v_cvt_pk_bf16_f32 v{G+k}, v{G+2*k}, v{G+2*k+1}")
    return o

def publish(c, t0, t1, addr, blk, tag):
    return [f"v_and_b32 v{t0}, s{sHI}, v{c}", f"v_sub_f32 v{t1}, v{c}, v{t0}", f"v_cvt_pk_bf16_f32 v{t0}, v{t0}, v{t1}",
            f"ds_write_b32 v{addr}, v{t0} offset:{CSP - MB + blk*1024} #{tag}"]

def stream(P, typ, g, name):
    global vST, vSQ, vU, vSTW, vSTR, vCW
    I = P.I; t = T(typ); D = 3; sn = f"{name}_{typ}{g}"
    o_ = AV if typ else 83
    vST, vSQ, vU, vSTW, vSTR = o_, o_ + 1, [o_ + 2, o_ + 3, o_ + 4, o_ + 5], o_ + 6, o_ + 7
    vCW = AV + 8 if typ else 94
    PB = CFG["qpub"] if typ else "v1"
    if g and CFG.get("pri"): I(f"s_setprio {CFG['pri']}")
    setup(P, t, g)
    S = Sched(D)
    F = "v[32:35]"
    def mm(acc, x, first): return lambda f: f"v_mfma_f32_32x32x16_bf16 {v(acc,16)}, {f}, {v(x,4)}, {'0' if first else v(acc,16)}"
    def cm(c, first): return lambda f: f"v_mfma_f32_16x16x32_bf16 {v(c,4)}, {v(CP,4)}, {f}, {'0' if first else v(c,4)}"
    def tr(ad, im, sec): return [("tr", ad, im), ("tr2", ad, im + sec)]
    main = []; first = {}
    P1 = {}; SQ = {}
    for st in range(8):
        hi, so = t.sp(t.wp(st), t.WB)
        for p in range(4):
            it = Item(mm(AK, XR(st, p), st == 0 and p == 0), tr(vAA[hi][p], so, 512), cm(CD[0], st == 0) if p == 0 else None, name=f"{st}p{p}")
            if p == 0:
                it.bar = st; first[st] = it
                xh, xo = t.sp(t.xp(st), t.XB)
                if st < 2: it.pre = [f"ds_read_b128 {v(XR(st,q),4)}, v{vAX[xh][q]} offset:{xo}" for q in range(4)]
            main.append(it); P1[st, p, 0] = it
        for xs in CFG["sq"][st]:
            for q in (2*g, 2*g+1):
                SQ[xs, q] = Item((lambda x, fi: lambda f: f"v_mfma_f32_32x32x16_bf16 {v(GA[2],16)}, {v(x,4)}, {v(x,4)}, {'0' if fi else v(GA[2],16)}")(XR(xs, q), not SQ), name=f"sq{xs}{q}")
                if xs == 7: main.insert(main.index(P1[st, CFG["sq7"], 0]), SQ[xs, q])
                else: main.append(SQ[xs, q])
    V = {}
    if typ == 0:
        for c in range(8):
            hi, so = t.sp(t.vp(c), t.WB)
            for p in range(4): V[c, p] = Item(mm(AV, XR(c, p), c == 0 and p == 0), tr(vAA[hi][p], so, 512), cm(CD[1], False) if p == 0 else None, name=f"v{c}p{p}")
        for c in (1, 3, 6):
            it = V[c, 0] if c > 1 else V[CFG["v1"]]
            it.bar = f"v{c}"; first[f"v{c}"] = it
        main += [V[c, p] for c in range(6) for p in range(4)] + [V[6,0], V[7,0]] + [V[c, p] for c in (6, 7) for p in (1, 2, 3)]
    nb = 3
    blk = [3*g, 3*g+1, 3*g+2] if typ else [3*g, 3*g+1, 2]
    def gi(st, p, b):
        o = t.g(st)
        if o >= 3 * t.SL: o -= 3 * t.SL
        fst = st == 8 and (p == 0 or (typ == 0 and b == 2 and p == 2*g))
        sm = cm(CD[b], st == 8) if p == 0 else None
        return Item(mm(GA[b], XR(st-8, p), fst), tr(vAG[p], o + blk[b]*32, 4*t.RB), sm, name=f"{st}p{p}b{b}")
    def has(p, b): return typ == 1 or b < 2 or (p >> 1) == g
    G = {}
    for st in range(8, 16):
        for p in range(4):
            for b in range(nb):
                if has(p, b): G[st, p, b] = gi(st, p, b)
    for st in range(8, 13):
        l = [G[st, p, b] for p in range(4) for b in range(nb) if has(p, b)]
        l[0].bar = st; first[st] = l[0]; main += l
    first[PB].pre = [f"ds_read_b128 {v(vMU,4)}, v{vSTR}"]
    def corr(acc, cb, nbar, nm):
        return Item(mm(acc, vMU, False), [("b128", vM16, CSP - MB + cb*1024)], needbar=nbar, name=nm)
    C = [corr(GA[b], blk[b], "cs", f"corr{b}") for b in range(nb)]
    rest = lambda b, sts: [G[st, p, b] for st in sts for p in (1, 2, 3)]
    if typ == 0:
        sh = lambda st: [G[st, 2*g, 2], G[st, 2*g+1, 2]]
        t13 = [G[13,0,0], G[13,0,1]] + sh(13) + rest(0, [13])
        t15 = [G[14,0,0], G[14,0,1]] + sh(14) + sh(15) + [G[15,0,0], G[15,0,1]]
        r0 = rest(0, [14, 15]); r1 = rest(1, [13, 14, 15])
        tail = r0[:5] + [C[2]] + r0[5:] + [C[0]] + r1 + [C[1]]
        C[2].bar = "cs"
    else:
        t13 = [G[13,0,b] for b in range(3)] + rest(0, [13])
        t15 = [G[st,0,b] for st in (14, 15) for b in range(3)]
        r0 = rest(0, [14, 15])
        tail = r0[:5] + [C[0]] + r0[5:] + rest(1, [13, 14, 15]) + [C[1]] + rest(2, [13, 14, 15]) + [C[2]]
        C[0].bar = "cs"
    t13[0].bar = 13; t15[0].bar = 15; first[13] = t13[0]; first[15] = t15[0]
    main += t13 + t15 + tail
    barwait = {0: ["x0", "w0"], 1: ["x1", "w1", "x2"], 7: ["w7"], 15: ["w14", "w15"], "cs": []}
    for st in range(2, 7): barwait[st] = [f"w{st}", f"x{st+1}"]
    for st in range(8, 14): barwait[st] = [f"w{st}"]
    barlg = {PB: ["pub"], "cs": ["cs"]}
    BO = list(range(14))
    if typ == 0:
        barwait[7] = ["w7", "v0"]; barwait["v1"] = ["v1", "v2"]; barwait["v3"] = ["v3", "v4", "v5"]; barwait["v6"] = ["v6", "v7"]
        barlg[8] = ["pubv"]
        BO = list(range(8)) + ["v1", "v3", "v6"] + list(range(8, 14))
    sl = stream_list(t, g); pro = CFG["pro"]
    dm = {b: [] for b in BO[:-1]}
    if CFG.get("po"):
        pro = 14
        for b, l in enumerate(CFG["po"][typ][3:]):
            for nm in l.split(): dm[b] += (dma_x if nm[0] == "x" else dma_w)(t, int(nm[1]))
    if typ == 0:
        for k in range(pro, 14): dm[max(0, (k - 3) // 2)] += sl[k]
        for b, l in CFG["vdm"].items():
            for c in l: dm[b] += dma_v(t, c)
        dm[CFG["g8"]] += dma_g(t, g, 8)
        dm["v3"] += dma_g(t, g, 9); dm["v6"] += dma_g(t, g, 10)
        for b in range(8, 13): dm[b] = dma_g(t, g, b + 3)
    else:
        ql = CFG.get("qlead", 2)
        for k in range(pro, 14): dm[max(0, (k + 1 - 2*ql) // 2)] += sl[k]
        if ql == 3:
            for b in range(5, 13): dm[b] += dma_g(t, g, b + 3)
        else:
            g8 = dma_g(t, g, 8); g9 = dma_g(t, g, 9); g10 = dma_g(t, g, 10)
            dm[5] += g8[:2]; dm[6] = g8[2:] + g9[:2]; dm[7] = g9[2:] + g10[:2]; dm[8] = g10[2:] + dma_g(t, g, 11)
            for b in range(9, 13): dm[b] += dma_g(t, g, b + 3)
    if CFG["b0end"]: dm[0] = [sum(dm[0], [])] if dm[0] else []
    nxt = lambda b: BO[BO.index(b) + 1]
    heavy = []
    def hok(n):
        if not CFG["hstag"]: return True
        if n % 2 != g or n + 1 in S.bs.values(): return False
        return not any(dpos(b, j, len(dm[b]), gg)() == n for b in dm for j in range(len(dm[b])) for gg in (0, 1))
    def dpos(b, j, k, g=g):
        def f():
            L = S.bs[nxt(b)] - S.bs[b]; o = S.bs[b]
            if b == 0 and CFG['b0end']: return o + L - 1
            if b == 0: return o + j if typ else o + min(L - 2, 2 * j + g) if k <= 4 else o + j
            if 2 * k <= L: return o + min(L - 2, int((j + 0.5 * g) * L / k + 0.01))
            return o + min(L - 1, int((j + 0.5 * g) * L / k + 0.01))
        return f
    for b in BO[:-1]:
        for j, x in enumerate(dm[b]): heavy.append(S.add(x, after=b, before=nxt(b), kind="misc", lo=dpos(b, j, len(dm[b])) if CFG["pace" if BO.index(b) < (6 if typ else 8) else "paceg"] or b == 0 else None))
    if g == 1:
        S.add(f"v_mov_b32 v95, s{sXV}", after=2)
        S.add([f"s_cmp_eq_u32 s{sI}, 0", "s_cselect_b32 exec_lo, 1, 0", "s_mov_b32 exec_hi, 0", f"s_and_b32 s{sT3}, s2, 7", f"s_lshl_b32 s{sT3}, s{sT3}, 5",
               f"buffer_atomic_add v95, off, {s(SDB,4)}, s{sT3} sc1", "s_mov_b64 exec, -1"], after=CFG["atm"][typ], lo=(first[7], CFG["atm"][2+typ]), before=8)
    for p in range(4):
        bs = [b for b in range(nb) if has(p, b)]
        S.add(f"v_add_u32 v{vAG[p]}, {3*t.SL}, v{vAG[p]}", lo=(G[10,p,bs[-1]], -D), hi=(G[11,p,0], -D-1))
        nx = G[13,p,0] if not (typ == 0 and p and (p >> 1) == g) else G[13,p,2]
        S.add(f"v_subrev_u32 v{vAG[p]}, {3*t.SL}, v{vAG[p]}", lo=(G[12,p,bs[-1]], -D), hi=(nx, -D-1))
    ns = CFG["ns"][typ]; u = 0; fs = True
    S.node(P1[0,0,0], cm(CD[0], True)(F))
    sp = [2*g, 2*g+1]
    for st in range(8):
        if 1 <= st < 7:
            hi, so = t.sp(t.xp(st + 1), t.XB)
            for q in sp + [x for x in range(4) if x not in sp]:
                S.add(f"ds_read_b128 {v(XR(st+1,q),4)}, v{vAX[hi][q]} offset:{so}", after=st, lo=(first[st], (-2 if st > 1 else 0) if typ else -3), hi=(P1[st+1,q,0], -2), before=None if typ else st + 1)
        if st == 2:
            S.add(f"ds_write_b32 v{vWPA}, v{vWPV}", after=2)
            S.add(f"v_xor_b32 v{vWPV}, 0x80008000, v{vWPV}", after=2)
            S.add(f"ds_write_b32 v{vWPA}, v{vWPV} offset:2048", after=2, before=7)
    for st in range(8):
        for n, q in enumerate(sp):
            if n < ns[st]:
                S.add(cm(CD[2], fs)(v(XR(st, q), 4)), lo=(first[st], 1) if st < 2 else None); fs = False
    if typ == 1:
        S.add(f"v_mov_b32 v{vST}, v{CD[2]}", hi=(first[8], -1))
        S.node(P1[7,0,0], cm(CD[0], False)(F))
        S.adds(publish(CD[0], AV+9, AV+10, vCW, g, "pub"), hi=(first[8], -1))
    for (xs, q), it in SQ.items(): S.node(it, it.mf(F))
    Q_ = GA[2]; ms = MS(g)
    for lv, (stp, dd) in enumerate(((2, 1), (4, 2), (8, 4), (16, 8))):
        S.adds([f"v_cndmask_b32 v{Q_+k}, v{Q_+k}, v{Q_+k+dd}, {s(ms[lv],2)}" for k in range(0, 16, stp)])
    S.add(f"v_cndmask_b32 v{vSQ}, 0, v{Q_}, {s(ms[4],2)}")
    if typ == 0:
        S.add(f"v_mov_b32 v{vST}, v{CD[2]}")
        S.node(P1[7,0,0], cm(CD[0], False)(F))
        S.adds(publish(CD[0], 85, 86, vCW, g, "pub"), before=PB)
    else: S.node(G[8,0,2], mm(GA[2], XR(0,0), True)(F))
    S.add(f"v_permlane32_swap_b32 v{vST}, v{vSQ}")
    S.adds([f"v_add_f32 v{vST}, v{vST}, v{vSQ}", f"ds_write_b32 v{vSTW}, v{vST} #pub"], before=PB)
    sWQ2, sWO2, sWK2, sWZ2 = range(SWG if g else SWU, (SWG if g else SWU) + 4)
    J1, J2 = (75, 77) if typ else (26, 24)
    if CFG["t3"] == 3:
        S.add([f"s_and_b32 s{sT0}, s2, 0xf8", f"s_add_u32 s{sT0}, s{sT0}, s{sW}", f"s_mul_i32 s{sT0}, s{sT0}, {2*3072}", "s_mov_b32 exec_lo, 0xff0000", "s_mov_b32 exec_hi, 0xff00",
               f"buffer_load_dword v{J2}, v{vTCH}, {s(SWQ,4)}, s{sT0} offen", "s_mov_b64 exec, -1"], after=CFG["t3b"], before=CFG["t3b"] + 1)
    S.add([f"s_mov_b32 s{SOUT}, s{SWO+2}", f"s_mov_b32 s{SOUT+1}, s{SWO+3}", f"s_mov_b32 s{SOUT+2}, 2097152", f"s_mov_b32 s{SWO+2}, {512*1024}", f"s_mov_b32 s{SWO+3}, 0x20000"])
    if CFG["th"] & 1:
        S.add([f"s_add_u32 s{sT1}, s{sHF}, {MB}", "s_mov_b64 exec, 0xffffff", f"buffer_load_dword v{J1}, v{vTCH}, {s(SWS,4)}, s{sT1} offen sc1", "s_mov_b64 exec, -1"], after=CFG["thb"], before=8)
        if typ: S.add([f"s_add_u32 s{sT1}, s{sEX}, {MB}", "s_mov_b64 exec, 0xffff", f"buffer_load_dword v76, v{vTCH}, {s(SWS,4)}, s{sT1} offen sc1", "s_mov_b64 exec, -1"], after=CFG["thb"], before=8)
    if CFG["th"] & 4:
        S.add([f"s_add_u32 s{sT1}, s{sHF}, {MB}", "s_mov_b64 exec, 0xffffff", f"buffer_store_dword v{vTCH}, v{vTCH}, {s(SWS,4)}, s{sT1} offen", "s_mov_b64 exec, -1"], after=CFG["thb"], before=8)
        if typ: S.add([f"s_add_u32 s{sT1}, s{sEX}, {MB}", "s_mov_b64 exec, 0xffff", f"buffer_store_dword v{vTCH}, v{vTCH}, {s(SWS,4)}, s{sT1} offen", "s_mov_b64 exec, -1"], after=CFG["thb"], before=8)
    if CFG["th"] & 32:
        z_ = (typ, g) == (0, 0); dm_ = CFG.get('dmm', '')
        S.add([f"v_lshrrev_b32 v{J1}, 1, v{vTCH}", f"v_add_u32 v{J1}, {MB}, v{J1}", f"s_mov_b32 exec_hi, {0 if z_ else 0xffff}", f"buffer_store_dword v{J1}, v{J1}, {s(SWS,4)}, s{sA if z_ else sHF} offen{dm_}"] +
              (["s_mov_b32 exec_hi, 0", f"buffer_store_dword v{J1}, v{J1}, {s(SWS,4)}, s{sEX} offen{dm_}"] if typ else []) + ["s_mov_b64 exec, -1"], after=CFG["thb"], before=8)
    NV = CFG.get("nv")
    NVP = NV == 1 or "pz" in CFG or (NV == 3 and typ) or (NV == 4 and not typ)
    def dummies():
        PZ = (AV if typ else AK + 12) if NVP else CP
        if NVP: S.adds([f"v_mov_b32 v{PZ+k}, {x}" for k, x in enumerate(CFG.get("pz", (0, 0, 0, 0))) if x is not None])
        for j, b in enumerate(CFG["thl"][typ]):
            if b is None: continue
            S.add(f"buffer_store_dwordx4 {v(PZ,4)}, v{vM16}, {s(SWS,4)}, s{(sA if (typ, g) == (0, 0) and j < 2 else sHF) if j < 3 else sEX} offen offset:{(j%3)*1024}{CFG.get('dmm', '')} #dmy", after=b, lo=(first[b], CFG["tho"] + 2*g), kind="misc")
    if CFG["th"] & 8 and (typ or not NVP): dummies()
    if CFG["th"] & 2 and g == 0:
        S.add([f"s_and_b32 s{sT0}, s2, 7", f"s_lshr_b32 s{sT1}, s2, 6", f"s_lshl2_add_u32 s{sT0}, s{sT0}, s{sT1}", f"s_mul_i32 s{sT1}, s{sT0}, {236*1024}", f"s_add_u32 s{sT1}, s{sT1}, {MB}",
               f"s_lshl_b32 s{sT0}, s{sI}, 16", f"s_add_u32 s{sT1}, s{sT1}, s{sT0}",
               f"v_lshlrev_b32 v{J2}, 5, v{vTCH}", "s_mov_b64 exec, 0xffff", f"buffer_load_dword v{J2}, v{J2}, {s(SWS,4)}, s{sT1} offen sc1", "s_mov_b64 exec, -1"], after=CFG["thb"], before=8)
    if typ == 1 and "notouch" not in k1.KN:
        S.add([f"s_lshl3_add_u32 s{sT0}, s2, s{sW}", f"s_sub_u32 s{sT0}, s{sT0}, 1024", f"s_lshl_b32 s{sT1}, s{sT0}, 9", "s_mov_b64 exec, 15",
               f"buffer_load_dword v26, v{vTCH}, {s(SWO,4)}, s{sT1} offen", "s_mov_b64 exec, -1"], after=CFG["tch"], before=8)
        S.add([f"s_mul_i32 s{sT1}, s{sT0}, 1408", "s_mov_b64 exec, 0x7ff",
               f"buffer_load_dword v31, v{vTCH}, {s(SWD,4)}, s{sT1} offen", "s_mov_b64 exec, -1"], after=CFG["tch"], before=8)
    if CFG["tx"][typ] is not None:
        J3, J4, vT2 = (78, 79, 77) if typ else (91, 92, vTCH)
        S.add(f"v_lshlrev_b32 v{vT2}, 3, v{vTCH}", before=8)
        kw = dict(after=CFG["tx"][typ], lo=(first[CFG["tx"][typ]], CFG["tx"][2] + 2*g))
        S.add([f"s_and_b32 s{sT0}, s2, 0x78", f"s_add_u32 s{sT0}, s{sT0}, s{sW}", f"s_mul_i32 s{sT1}, s{sT0}, {11*1024}", "s_mov_b64 exec, 0x7ff",
               f"buffer_load_dword v{J4}, v{vT2}, {s(SWD,4)}, s{sT1} offen offset:384", f"s_lshl_b32 s{sT1}, s{sT0}, 12", "s_mov_b64 exec, 15",
               f"buffer_load_dword v{J3}, v{vT2}, {s(SWO,4)}, s{sT1} offen offset:384", "s_mov_b64 exec, -1"], **kw)
    WX = CFG.get("wx"); sW2 = sWZ2 if WX else sW
    S.add([f"s_and_b32 s{sT0}, s2, 0x38", f"s_cmp_eq_u32 s{sT0}, {(0x18 if typ else 0x38) if CFG['swp'] else 1}", f"s_cselect_b32 s{sT2}, 0xa0, 0", f"s_xor_b32 s{sT2}, s{sT2}, s2",
           f"s_and_b32 s{sT0}, s2, 7", f"s_lshr_b32 s{sT1}, s{sT2}, 6", f"s_lshl2_add_u32 s{sT0}, s{sT0}, s{sT1}", f"s_bfe_u32 s{sT1}, s{sT2}, 0x30003", f"s_lshl_b32 s{sT1}, s{sT1}, 7"] + ([f"s_lshr_b32 s{sWZ2}, s{sT1}, {WX[0]}", f"s_and_b32 s{sWZ2}, s{sWZ2}, {WX[1]}", f"s_xor_b32 s{sWZ2}, s{sWZ2}, s{sW}"] if WX else []) + [
           f"s_lshl3_add_u32 s{sFR}, s{sT0}, s{sW2}", f"s_lshl_b32 s{sFR}, s{sFR}, 7", f"s_add_u32 s{sFR}, s{sFR}, {FLG}",
           f"s_lshl_b32 s{sXO}, s{sT0}, 16", f"s_add_u32 s{sXO}, s{sXO}, s{sT1}", ] + ([f"s_lshl_b32 s{sT2}, s{sI}, 13", f"s_add_u32 s{sXO}, s{sXO}, s{sT2}"] if CFG["rb"] >= 2 else [f"s_lshl3_add_u32 s{sXO}, s{sI4}, s{sXO}"]) + ([f"s_add_u32 s{sXO}, s{sXO}, 32768"] if g else []), lo=(first[8], 1))
    S.add([f"s_mul_i32 s{sHO}, s{sT0}, {236*1024}", f"s_mul_i32 s{sT2}, s{sW2}, 6144", f"s_add_u32 s{sHQ}, s{sHO}, s{sT2}", f"s_add_u32 s{sHQ}, s{sHQ}, 32768",
           f"s_mul_i32 s{sT2}, s{sW2}, 5", f"s_min_u32 s{sT2}, s{sT2}, 33", f"s_add_u32 s{sT2}, s{sT2}, 48", f"s_lshl_b32 s{sWK2}, s{sT2}, 14", f"s_add_u32 s{sWK2}, s{sWK2}, s{sT1}",
           f"s_lshl_b32 s{sT2}, s{sT2}, 10", f"s_add_u32 s{sHK}, s{sHO}, s{sT2}", f"s_add_u32 s{sHK}, s{sHK}, 32768", f"s_lshl_b32 s{sT2}, s{sW2}, 12", f"s_add_u32 s{sHO}, s{sHO}, s{sT2}"], lo=(first[8], 2))
    S.add([f"s_mul_i32 s{sWQ2}, s{sW2}, {6*16384}", f"s_add_u32 s{sWQ2}, s{sWQ2}, s{sT1}", f"s_lshl_b32 s{sWO2}, s{sW2}, 16", f"s_add_u32 s{sWO2}, s{sWO2}, s{sT1}",
           f"s_cmp_eq_u32 s{sW2}, 7", f"s_cselect_b32 s{sWZ2}, 0x2000000, s{sWK2}"] +
          ([f"s_lshl_b32 s{sRB}, s{sI}, 14"] if g == 0 else
           [f"s_cmp_lt_u32 s{sI}, {2 if typ else 1}", f"s_cselect_b32 s{sRB}, 0, {t.RG[7] - t.RG[4] - 49152}", f"s_lshl_b32 s{sT2}, s{sI}, 14", f"s_add_u32 s{sRB}, s{sRB}, s{sT2}", f"s_add_u32 s{sRB}, s{sRB}, {t.RG[4]}"]) +
          [f"s_sub_u32 s{sRB}, s{sRB}, {MB}"], lo=(first[8], 3))
    m, q = vMU, vC1
    l8 = (first[PB], -1)
    S.adds([f"v_add_f32 v{m}, v{vMU}, v{vMU+2}", f"v_add_f32 v{q}, v{vMU+1}, v{vMU+3}",
            f"v_mul_f32 v{vSTD}, {fbits(-1.0/512)}, v{m}", f"v_mul_f32 v{q}, {fbits(1.0/512)}, v{q}"], lo=l8)
    S.adds([f"v_cvt_pk_bf16_f32 v{vMU+k}, v{vSTD}, v{vSTD}" for k in range(4)])
    S.adds([f"v_fma_f32 v{q}, -v{vSTD}, v{vSTD}, v{q}", f"v_max_f32 v{q}, 0, v{q}", f"v_add_f32 v{q}, {fbits(1e-5)}, v{q}",
            f"v_rsq_f32 v{vRS}, v{q}", f"v_mul_f32 v{vSTD}, v{q}, v{vRS}", f"v_mul_f32 v{vC1}, {fbits(-LOG2E)}, v{vRS}"])
    ex = []
    S.node(P1[7,3,0], mm(AK, XR(7,3), False)(F))
    ex.append(S.node(corr(AK, g, PB, "corrK"), mm(AK, vMU, False)(F)))
    def w64(w, x, **k):
        return S.add([w] + ([x] if x else []), kind="valu", cost=CFG["wc"] + (1 if x else 0), first=True, **k)
    KB = AK if typ else 96
    S.adds([f"v_cvt_pk_bf16_f32 v{KB+k}, v{AK+2*k}, v{AK+2*k+1}" for k in range(8)])
    pb = "ph"
    if typ == 0:
        W = [GA[2], AK]
        S.node(V[7,0], cm(CD[1], False)(F))
        S.adds(publish(CD[1], 83, 84, vCW, 2 + g, "pubv"), before=8)
        for rho in range(2):
            pk = mm(W[rho], KB + 4*rho, True)
            ex.append(S.node(Item(pk, tr(vWF, 512*rho, 128), needbar=PB, name=f"phi{rho}"), pk(F)))
        for rho in range(2):
            S.adds(softmax(W[rho], W[rho], *((87, 88), (vSM, vWF))[rho]))
            for b_ in range(2):
                w64(f"ds_write_b128 v{vPH}, {v(W[rho]+4*b_,4)} offset:{rho*12288} #ph", None if (rho, b_) == (1, 1) else f"v_xor_b32 v{vPH}, 16, v{vPH}", after="v3", before=pb)
        if NVP: dummies()
        S.node(G[8,0,0], mm(GA[0], XR(0,0), True)(F)); S.node(G[8,0,1], mm(GA[1], XR(0,0), True)(F)); S.node(G[8,2*g,2], mm(GA[2], XR(0,2*g), True)(F))
        S.node(V[7,3], mm(AV, XR(7,3), False)(F))
        ex.append(S.node(corr(AV, 2 + g, 8, "corrV"), mm(AV, vMU, False)(F)))
        for k in range(8):
            S.adds([f"v_mul_f32 v{AV+2*k}, v{AV+2*k}, v{vRS}", f"v_mul_f32 v{AV+2*k+1}, v{AV+2*k+1}, v{vRS}",
                    f"v_cvt_pk_bf16_f32 v{AV+k}, v{AV+2*k}, v{AV+2*k+1}"])
            if k & 3 == 3: w64(f"ds_write_b128 v{vKB}, {v(AV+k-3,4)} offset:{(k>>2)*12288+64} #ph", None, before=pb)
        S.node(G[8,3,1], mm(GA[1], XR(0,3), False)(F)); S.node(G[8,2*g+1,2], mm(GA[2], XR(0,2*g+1), False)(F))
        W = [AV, XR(0, 0)]
    else:
        for rho in range(2):
            pk = mm(AV, AK + 4*rho, True)
            ex.append(S.node(Item(pk, tr(vWF, 512*rho, 128), needbar=8, name=f"phi{rho}"), pk(F)))
            S.adds(softmax(AV, AK + 8 if rho == 0 else AV))
    if typ == 0:
        pi = main[main.index(first[CFG["phbar"][0]]) + CFG["phbar"][1]]
        if pi.bar is None: pi.bar = pb; barwait[pb] = []
        else:
            for o in S.ops:
                if o.before == pb: o.before = pi.bar
            pb = pi.bar
        barlg[pb] = barlg.get(pb, []) + ["ph"]
        barlg[CFG["wb"][0]] = barlg.get(CFG["wb"][0], []) + ["kvr"]
        DK, DZ, ON = AK, AK + 4, AK + 8
        S.adds([f"v_mov_b32 v{ON+k}, 0x3f803f80" for k in range(4)])
        S.adds([f"v_lshrrev_b32 v{AK+12}, 1, v{vM16}", f"v_lshrrev_b32 v{AK+13}, 5, v{vM16}"])
        S.add([f"s_and_b32 s{sT3}, s{sI}, 1", f"s_lshl_b32 s{sT3}, s{sT3}, 5"], lo=(first[8], 0))
        S.add(f"v_subrev_u32 v{vPH}, s{sT3}, v{vKA}")
        for u4 in range(4):
            A0 = W[u4 >> 1] + 8*(u4 & 1); B0 = A0 + 4; o = u4 * 3072
            S.add([f"ds_read_b64_tr_b16 {v(A0,2)}, v{vKA} offset:{o}", f"ds_read_b64_tr_b16 {v(A0+2,2)}, v{vKA} offset:{o+768}"], after=pb)
            S.add([f"ds_read_b64_tr_b16 {v(B0,2)}, v{vPH} offset:{o+64}", f"ds_read_b64_tr_b16 {v(B0+2,2)}, v{vPH} offset:{o+768+64} #kvr"], after=pb, before=CFG["wb"][0])
            na = f"v_mfma_f32_16x16x32_bf16 {v(DZ,4)}, {v(A0,4)}, {v(ON,4)}, {'0' if u4 == 0 else v(DZ,4)}"
            nb_ = f"v_mfma_f32_16x16x32_bf16 {v(DK,4)}, {v(A0,4)}, {v(B0,4)}, {'0' if u4 == 0 else v(DK,4)}"
            S.adds([na, nb_] if u4 < 3 else [nb_, na])
        S.adds([f"v_cvt_pk_bf16_f32 v{DK}, v{DK}, v{DK+1}", f"v_cvt_pk_bf16_f32 v{DK+1}, v{DK+2}, v{DK+3}"])
        kvst = S.add(f"buffer_store_dwordx2 {v(DK,2)}, v{AK+12}, {s(SWS,4)}, s{sK1} offen sc1 #kvs", kind="misc")
        S.adds([f"v_cvt_pk_bf16_f32 v{DZ}, v{DZ}, v{DZ+1}", f"v_cvt_pk_bf16_f32 v{DZ+1}, v{DZ+2}, v{DZ+3}"])
        S.add(["WAITVM kvs"] * CFG.get("zw", 1) + ["s_mov_b32 exec_lo, 0x10001", "s_mov_b32 exec_hi, 0x10001", f"buffer_store_dwordx2 {v(DZ,2)}, v{AK+13}, {s(SWS,4)}, s{sK2} offen sc1", "s_mov_b64 exec, -1"],
              ok=lambda n: kvst.slot is not None and n >= kvst.slot + CFG["zd"])
    vWa, vRD0, vRD1, vFA, vFL = P2R(typ)
    KS = [("q", 0), ("q", 3), ("q", 1), ("q", 4), ("q", 2), ("q", 5)] + [("o", j) for j in range(4)] + [("k", 2), ("k", 0), ("k", 3), ("k", 1), ("k", 4)]
    if CFG.get("ko", (0, 0))[typ]: KS = KS[:6] + KS[10:] + KS[6:10]
    NS = 2 if typ else 3; NR = 10 if typ else 12
    WR = [128 + 8*k for k in range(10)] if typ else [128 + 8*k for k in range(8)] + [AV, AV + 8, 192, 200]
    WR += WR[:15 - NR]
    RGN = [6 + k % 2 for k in range(12)] + [4, 5, 3] if typ else [5 + k % 3 for k in range(15)]
    rbase = t.RG[5] if typ else PH
    def wdma(k):
        ty, j = KS[k]
        b_ = {"q": sWQ2, "o": sWO2, "k": sWZ2 if j < 2 else sWK2}[ty]; R_ = s(SWO if ty == "o" else SWD, 4)
        return [[f"s_lshl1_add_u32 m0, s{sMW}, {t.RG[RGN[k]]}", f"s_add_u32 s{sO1}, s{b_}, {j*16384}", f"buffer_load_dwordx4 v{vWa}, {R_}, s{sO1} offen lds #W{k}"],
                [f"s_lshl1_add_u32 m0, s{sMW}, {t.RG[RGN[k]]}", f"s_add_u32 s{sO1}, s{b_}, {j*16384 + 7168}", f"buffer_load_dwordx4 v{vWa}, {R_}, s{sO1} offen offset:1024 lds #W{k}"]]
    def wread(k, ad=(vRD0, vRD1), base=rbase):
        o = t.RG[RGN[k]] - base
        return [[f"WAITVM W{k}"] * (1 - cb) * ("noxw" not in k1.KN) + [f"ds_read_b64_tr_b16 {v(WR[k]+4*cb,2)}, v{ad[cb]} offset:{o}", f"ds_read_b64_tr_b16 {v(WR[k]+4*cb+2,2)}, v{ad[cb]} offset:{o+512} #X{k}"] for cb in range(2)]
    if typ == 0:
        S.add(f"v_bfe_u32 v{AK+14}, v{vM16}, 4, 6")
        S.adds(p2addr(t, AK + 14, AK + 15, vRD1))
    Dk = {}; Xk = {}
    def aft(dd, k, l): return lambda n: dd[k].slot is not None and n >= dd[k].slot + l
    for k in range(14 if typ else 15):
        if k in CFG.get("dd", ((), ()))[typ]: continue
        wd_ = wdma(k)
        if typ and k >= 12: kw = dict(after=13 if k == 12 else 15)
        elif k < NS: kw = dict(after=CFG["wb"][typ])
        else: kw = dict(ok=aft(Xk, k - NS, CFG["wg"])); wd_[0] = [f"WAITLG X{k-NS}"] + wd_[0]
        for x in wd_:
            Dk[k] = S.add(x, kind="misc", **kw); Dk[k].R -= {("s", 124), ("s", sO1)}; Dk[k].W -= {("s", 124), ("s", sO1)}; Dk[k].R.add(("x", 9 + (typ and k >= 12))); Dk[k].W.add(("x", 9 + (typ and k >= 12)))
        if k < NR:
            lo = (G[8 + (WR[k] - 128) // 16, 3, nb - 1 if has(3, nb - 1) else 1], 0) if WR[k] >= 128 else None
            for x in wread(k): Xk[k] = S.add(x, kind="misc", ok=aft(Dk, k, CFG["wl"]), lo=lo)
    S.adds([f"v_lshrrev_b32 v{vFA}, 2, v{vM16}", f"v_and_b32 v{vFA}, 28, v{vFA}"])
    vCT = 27 if typ else 30
    if CFG["th"] & 16:
        J = 76 if typ else AK + 12; b_ = CFG["thr"][typ]
        S.add([f"s_mov_b32 s{sT1}, {(-7*MB) & 0xffffffff}", f"v_lshl_add_u32 v{J}, v{vM16}, 3, s{sT1}"] +
              ([f"s_sub_u32 s{sT1}, s{sEX}, s{sHF}", f"s_sub_u32 s{sT1}, s{sT1}, 4096", "s_mov_b32 exec_lo, 0", f"v_add_u32 v{J}, s{sT1}, v{J}", "s_mov_b32 exec_lo, 0xffffff", "s_mov_b32 exec_hi, 0xffff"] if typ else
               [f"s_mov_b64 exec, {0xffffff if g else 0xffff}"]) +
              [f"buffer_load_dword v{J}, v{J}, {s(SWS,4)}, s{sA if (typ, g) == (0, 0) else sHF} offen{CFG.get('thm', ' sc1')}", "s_mov_b64 exec, -1"], after=b_, before={13: 15, 15: "cs"}.get(b_, b_ + 1), lo=(first[b_], CFG["thr"][2] + 2*g), kind="misc", prio=3)
    polls = []
    def fload(): return f"buffer_load_dword v{vFL}, v{vFA}, {s(SWS,4)}, s{sFR} offen sc1"
    def fcheck(ty, lv, own=None):
        polls.append((ty, lv, own)); n_ = len(polls)
        return [f"v_cmp_gt_u32 vcc, {lv}, v{vFL}", f"s_and_b32 s{sT1}, vcc_lo, {0xf0 if ty == 'q' else 0x0f}", f"s_cbranch_scc1 L_{sn}_fp{n_}", f"LABEL L_{sn}_fb{n_}"]
    spolls = []
    def gload(): return f"s_buffer_load_dwordx8 {s(SWO,8)}, {s(SWS,4)}, s{sFR} glc"
    def gmin(ty, lv):
        b = SWO + (4 if ty == "q" else 0)
        return [f"s_min_u32 s{sT1}, s{b}, s{b+1}", f"s_min_u32 s{sC}, s{b+2}, s{b+3}", f"s_min_u32 s{sT1}, s{sT1}, s{sC}", f"s_cmp_eq_u32 s{sMD}, 0", f"s_cselect_b32 s{sT1}, s{sT1}, 0", f"s_cmp_lt_u32 s{sT1}, {lv}"]
    slow = []
    def mst(x, tag=""):
        slow.append(x); n_ = len(slow)
        return [f"s_cmp_lg_u32 s{sMD}, 0", f"s_cbranch_scc1 L_{sn}_ss{n_}", x + (CFG.get("hn", "") + " #" + tag if tag else ""), f"LABEL L_{sn}_sb{n_}"]
    def fstore(lv, tag, r): return [f"v_mov_b32 v{r}, {lv}", f"WAITVM {'dmy' if NV and lv < 5 else tag}", "s_mov_b64 exec, 1"] + mst(f"buffer_store_dword v{r}, off, {s(SWS,4)}, s{sFL}") + ["s_mov_b64 exec, -1"]
    HR = [96, 104, 112, 120, 80, 88, 48, 56, 64, 72, 96, 104, 112, 120, 80] if typ else [112, 120, 48, 56, 80, 88, 96, 104, 112, 120, 48, 56, WR[3], 80, 88]
    def hload(k):
        ty, j = KS[k]; b_ = {"q": sHQ, "o": sHO, "k": sR if j < 2 else sHK}[ty]
        return [[f"s_add_u32 s{sO1}, s{b_}, {j*1024 + tb*118*1024}", f"buffer_load_dwordx4 {v(HR[k]+4*tb,4)}, v{vM16}, {s(SWS,4)}, s{sO1} offen"] for tb in range(1 if "halfh" in k1.KN else 2)]
    S.add([f"s_cmp_eq_u32 s{sWZ2}, 0x2000000", f"s_cselect_b32 s{sR}, 2.0, s{sHK}"], after=13)
    SEL, DD, ZZ, LD = AV + 8, CP, AV + 12, GA[0]
    vTW, vTZ, vTR = 1, 2, 3
    if typ == 1:
        a, b, c, ln = AK + 1, AK + 2, AK + 3, AK + 4
        o = [f"v_bfe_u32 v{ln}, v{vM16}, 4, 6", f"v_and_b32 v{a}, 15, v{ln}", f"v_lshrrev_b32 v{b}, 1, v{ln}", f"v_and_b32 v{b}, 8, v{b}", f"v_xor_b32 v{b}, v{a}, v{b}",
             f"v_and_b32 v{c}, 1, v{b}", f"v_lshlrev_b32 v{c}, 4, v{c}", f"v_mov_b32 v{a}, 0x3f80", f"v_lshlrev_b32 v{c}, v{c}, v{a}", f"v_lshrrev_b32 v{b}, 1, v{b}"]
        for r in range(4): o += [f"v_cmp_eq_u32 vcc, {r}, v{b}", f"v_cndmask_b32 v{SEL+r}, 0, v{c}, vcc"]
        S.adds(o, lo=(first[12], 0))
        S.add([f"s_lshr_b32 s{sT0}, s{sW}, 1", f"s_lshl_b32 s{sT0}, s{sT0}, 11", f"s_and_b32 s{sT2}, s{sW}, 1", f"s_lshl_b32 s{sT2}, s{sT2}, 5",
               f"s_add_u32 s{sT2}, s{sT2}, s{sT0}", f"s_add_u32 s{sT2}, s{sT2}, {OT}", f"s_sub_u32 s{sT0}, s{sT0}, {MB - OT}"], lo=(first[9], 0))
        S.adds([f"v_add_u32 v{vTZ}, s{sT0}, v{vM16}", f"v_and_b32 v{a}, 7, v{ln}", f"v_lshlrev_b32 v{a}, 7, v{a}", f"v_and_b32 v{b}, 16, v{ln}", f"v_lshl_add_u32 v{a}, v{b}, 2, v{a}",
                f"v_and_b32 v{b}, 8, v{ln}", f"v_add_u32 v{a}, v{a}, v{b}", f"v_lshrrev_b32 v{b}, 1, v{ln}", f"v_and_b32 v{b}, 16, v{b}", f"v_add3_u32 v{vTW}, v{a}, v{b}, s{sT2}",
                f"v_and_b32 v{a}, 19, v{ln}", f"v_bfe_u32 v{b}, v{ln}, 2, 1", f"v_lshl_or_b32 v{a}, v{b}, 3, v{a}", f"v_bfe_u32 v{b}, v{ln}, 3, 1", f"v_lshl_or_b32 v{a}, v{b}, 2, v{a}",
                f"v_lshlrev_b32 v{a}, 6, v{a}", f"v_and_b32 v{b}, 32, v{ln}", f"v_add_u32 v{a}, v{a}, v{b}", f"v_add_u32 v{vTR}, {OT + g*4096}, v{a}"])
    QE = CFG.get("qe") if typ else None
    cad = [f"v_lshlrev_b32 v{vCT}, 1, v{vM16}", f"v_and_b32 v{vCT}, 0xe0, v{vCT}"] if QE else []
    if QE: S.add(cad + [f"buffer_load_dword v{vCT}, v{vCT}, {s(SDB,4)}, 0 offen"], after=12, lo=(first[12], QE["cl"]), kind="misc", prio=2)
    else:
        S.add(f"v_lshlrev_b32 v{vFL}, 3, v{vFA}")
        S.add(f"buffer_load_dword v{vCT}, v{vFL}, {s(SDB,4)}, 0 offen", after=12, lo=(first[13], -4), kind="misc")
    cck = [f"s_and_b32 s{sMD}, s2, 7", f"v_readlane_b32 s{sMD}, v{vCT}, s{sMD}", f"v_and_b32 v{vCT}, 0xff, v{vCT}", f"v_cmp_gt_u32 vcc, 32, v{vCT}", f"s_lshl_b32 s{sT1}, s{sXV}, 5", f"s_sub_u32 s{sMD}, s{sMD}, s{sT1}"]
    chk = S.add(cck + [f"s_cbranch_vccnz L_{sn}_cp", f"LABEL L_{sn}_cb"], after=13 if QE else 15)
    if not QE: chk.R |= {("v", vFL)}
    chk.W |= {("s", sT1), ("x", 0)}
    vCW2, vEX, t0 = AK, AK + 1, AK + 2
    S.adds([f"v_lshrrev_b32 v{vCW2}, 6, v{vM16}", f"v_and_b32 v{vCW2}, 12, v{vCW2}", f"v_xor_b32 v{vCW2}, s{sI4}, v{vCW2}", f"v_or_b32 v{vCW2}, v{vCW2}, v{vM16}"], lo=(first[12], 0))
    if typ == 0:
        S.add(f"v_add_u32 v{vEX}, s{sEX}, v{vM16}")
        own = 4*g; oth = 4 - own
        if g == 0: S.node(G[15,0,2], cm(CD[2], False)(F))
        S.node(G[15,2*g+1,2], mm(GA[2], XR(7,0), False)(F))
        for k in range(2): w64(f"ds_write_b128 v{vEX}, {v(GA[2]+oth+8*k,4)} offset:{g*8192+1024*k} #cs", None, before="cs")
        S.node(G[15,0,0], cm(CD[0], False)(F)); S.node(G[15,0,1], cm(CD[1], False)(F))
        for b in range(3 - g): S.adds(publish(CD[b], t0 + 2*b, t0 + 2*b + 1, vCW2, blk[b], "cs"), before="cs", prio=2)
        X = AK + 8
        S.add(f"ds_read_b128 {v(X,4)}, v{vEX} offset:{(1-g)*8192}", after="cs")
        S.add(f"ds_read_b128 {v(X+4,4)}, v{vEX} offset:{(1-g)*8192+1024}", after="cs")
        S.node(C[2], mm(GA[2], vMU, False)(F))
        S.adds([f"v_add_f32 v{X+4*hh+k}, v{X+4*hh+k}, v{GA[2]+8*hh+own+k}" for hh in range(2) for k in range(4)])
        S.adds(glu(X, X + 4, 4))
        S.add(mst(f"buffer_store_dwordx2 {v(X,2)}, v{vM16}, {s(SWS,4)}, s{sHF} offen offset:{(1-g)*2048+8*g}", "hs"), kind="misc", prio=1)
        fin = [(0, C[0], g*1024), (1, C[1], (1+g)*1024)]
    else:
        for b in range(3): S.node(G[15,0,b], cm(CD[b], False)(F))
        for b in range(3): S.adds(publish(CD[b], t0 + 2*b, t0 + 2*b + 1, vCW2, blk[b], "cs"), before="cs", prio=2)
        fin = [(0, r0[-1], 0), (1, C[1], 1024), (2, C[2], 2048)]
        LQ = [208, 224, 240, 48, 52, 16, 20, 12] if QE else [LD + 4*p for p in range(8)]
        if QE: DD = GA[0] + 8
        def loads(m=" sc1"):
            o = [[f"buffer_load_dwordx4 {v(ZZ,4)}, v{vM16}, {s(SWS,4)}, s{sK2} offen sc1"]]
            for p in range(8):
                o.append(([f"s_add_u32 s{sT2}, s{sK1}, 4096"] if p == 4 else []) + [f"buffer_load_dwordx4 {v(LQ[p],4)}, v{vM16}, {s(SWS,4)}, s{sK1 if p < 4 else sT2} offen offset:{(p%4)*1024}{m}"])
            return o
        L_ = loads("")
        zl_ = S.add(L_[0], kind="misc", lo=(lambda: C[0].idx + QE["zl"]) if QE else lambda: C[2].idx - CFG["qload"] - CFG["qct"], prio=2 if QE else 0, lat=QE and QE["zc"]); zl_.R |= {("x", 0)}
        if QE and QE.get("nz"): zl_.W |= {("x", 1)}
        else:
            zc = S.add([f"v_cmp_eq_u32 vcc, -1, v{ZZ}", "s_nop 1", f"s_cbranch_vccnz L_{sn}_zp", f"LABEL L_{sn}_zb"], lo=None if QE else lambda: C[2].idx - CFG["qload"] - 1)
            zc.W |= {("s", sT1), ("x", 1)}
        if QE:
            n2 = QE.get("n2", 1)
            for j in range(1, 9, n2): S.add(sum(L_[j:j+n2], []), kind="misc", after=QE.get("af", "cs"), lo=lambda: C[0].idx + QE.get("kl", -9), prio=QE.get("pr", 2), lat=QE["lat"]).R |= {("x", 1)}
            CK, CV = DD + 4, GA[0] + 4
            preL = [f"v_mfma_f32_16x16x32_bf16 {v(DD,4)}, {v(SEL,4)}, {v(LQ[p],4)}, {'0' if p == 0 else v(DD,4)}" for p in range(8)] + [f"v_mfma_f32_16x16x32_bf16 {v(CK,4)}, {v(SEL,4)}, {v(ZZ,4)}, {v(DD,4)}"]
            preW = [f"v_cvt_pk_bf16_f32 v{CV}, v{DD}, v{DD+1}", f"v_cvt_pk_bf16_f32 v{CV+1}, v{DD+2}, v{DD+3}", f"ds_write_b64 v{vTW}, {v(CV,2)}", f"v_cmp_u_f32 vcc, v{CK}, v{CK}", "s_nop 1"]
            preZ = f"ds_write_b128 v{vTZ}, {v(ZZ,4)} offset:1024"
    if typ == 0 and CFG["f1"][2]:
        S.add(fload(), kind="misc", lo=lambda: C[2].idx + CFG["f1"][0]).R |= {("x", 0)}
        S.add(fcheck("q", CFG["f1"][2]), lo=lambda: C[2].idx + CFG["f1"][1]).W |= {("x", 1)}
        for k in range(2 * CFG["f1"][2]):
            if k < 4:
                for x in hload(k): S.add(x, kind="misc").R |= {("x", 1)}
    HS = {}
    for b, it, off in fin:
        S.node(it, mm(GA[b], vMU, False)(F))
        S.adds(glu(GA[b], GA[b] + 8, 8))
        if QE and b == 0:
            S.add(preZ, kind="misc", after=15).R |= {("x", 1)}
            m2 = QE.get("m2", 1)
            for j in range(0, 9, m2): S.add(preL[j:j+m2], kind="small")
            QE_last = S.add(preW + [f"s_cbranch_vccnz L_{sn}_rt", f"LABEL L_{sn}_go"], kind="misc", prio=2)
            QE_last.W |= {("s", sT0), ("s", sT2)}
        if typ == 1 and b == 2 and not QE:
            for x in L_[1:]: HS["l"] = S.add(x, kind="misc", lo=lambda: C[2].idx - CFG["qload"]); HS["l"].R |= {("x", 1)}
        if b == len(fin) - 1: S.add(fload(), kind="misc").R |= {("v", GA[b] + CFG["f2"]), ("x", 0)}
        HS[b] = S.add(mst(f"buffer_store_dwordx4 {v(GA[b],4)}, v{vM16}, {s(SWS,4)}, s{sA if (typ, g) == (0, 0) else sHF} offen offset:{off}", f"h{b}"), kind="misc", prio=int(b < len(fin) - 1))
        if b in CFG["st"][typ]: S.add(fstore(b + 2 - typ, f"h{b}", vCT), kind="misc", ok=aft(HS, b, CFG["s1"]))
        if typ == 0 and b == 0 and CFG["f1"][2] == 3:
            for k in (4, 5):
                for x in hload(k): S.add(x, kind="misc").R |= {("x", 1)}
    def budget(n, it):
        if n < first[8].idx:
            if typ == 1: return CFG["qb"]
            if n < first["v1"].idx - D: return CFG["pb"]
            return CFG["vb"]
        if n < first[15].idx and typ == 0: return CFG["gb"]
        return 6
    S.budget = budget
    S.dbl = lambda n: n >= first[9].idx
    if typ == 1:
        for b in range(1, 9): S.prebar_budget[b] = CFG["qpb"]
    S.prebar_budget["cs"] = 6
    if typ == 0:
        for b in list(range(1, 8)) + ["v1"]: S.prebar_budget[b] = CFG["ppb"]
        for b in ("v3", "v6", 8): S.prebar_budget[b] = CFG.get("vpb", 0)
    S.dump = "dump" in k1.KN
    S.solve(main, ex)
    order = S.order; N = len(order)
    info = [f"typ{typ} g{g} N={N} bars={S.bs} extras={[(e.item.name, e.item.idx) for e in ex]} slots={len(S.slots)-D}"]
    if typ == 0: info.append(f"kvstore@{kvst.slot}")
    print(" ".join(info))
    nst = [1]
    def em(x):
        if x.startswith("LABEL"): P.label(x.split()[1])
        elif x.startswith("WAITVM"): P.wait_vm(x.split()[1])
        elif x.startswith("WAITLG"): P.wait_lg(x.split()[1])
        else: emit(P, x)
    for n, it, sm, va, mi in S.slots:
        m_ = n + D
        if m_ < N:
            nx = order[m_]
            if nx.bar is not None:
                P.comment(f"--- barrier {nx.bar}")
                if not ("nowait" in k1.KN and nx.bar != 0):
                    for tg in barwait[nx.bar]: P.wait_vm(tg)
                for tg in barlg.get(nx.bar, []): P.wait_lg(tg)
                I("s_barrier")
                nstamp(P, nx.bar, nst)
            f = FR[m_ % 4]
            rd = []
            for k, ad, im in nx.reads:
                rd.append({"tr": f"ds_read_b64_tr_b16 {v(f,2)}, v{ad} offset:{im}", "tr2": f"ds_read_b64_tr_b16 {v(f+2,2)}, v{ad} offset:{im}",
                           "b128": f"ds_read_b128 {v(f,4)}, v{ad} offset:{im}"}[k])
            for x in nx.pre[:1] + rd + nx.pre[1:]: I(x)
        body = []
        if it is not None:
            f = v(FR[n % 4], 4)
            if it.small: body.append(it.small(f))
            if sm: body += sm.texts
            body.append(it.mf(f))
        elif sm: body += sm.texts
        if "nofill" not in k1.KN or n >= N:
            for o in va: body += o.texts
        if it is not None:
            touch = set()
            for x in body:
                i_ = Ins(x.split("#")[0].strip()); touch |= i_.vr | i_.vw
            P.wait_regs(touch)
        for x in body: em(x)
        for o in mi:
            if "nowd" in k1.KN and any("#W" in x for x in o.texts): continue
            if "halfwd" in k1.KN and any("#W" in x and "offset:1024" in x for x in o.texts): continue
            if "noxr" in k1.KN and any("#X" in x for x in o.texts): continue
            if "nodma" in k1.KN and any(" lds" in x for x in o.texts): continue
            for x in o.texts: em(x)
        if typ == 1 and n - N in CFG.get("sq2", ()): nstamp(P, f"n{N-n}", nst)
        if QE and n == N + QE["bar"]:
            assert QE_last.slot <= n and QE["bar"] >= -4, QE_last.slot - N
            P.wait_lg(); I("s_barrier"); nstamp(P, "ob", nst)
            for j, q_ in enumerate((48, 52, 16, 20)): I(f"ds_read_b128 {v(q_,4)}, v{vTR} offset:{(j>>1)*2048+16*(j&1)}")
        if QE and n == N + QE["mf"]:
            for j, q_ in enumerate((48, 52, 16, 20)):
                I(f"v_mfma_f32_32x32x16_bf16 {v(208+16*(j>>1),16)}, {v(q_,4)}, {v((AV if j>>1 else AK+8)+4*(j&1),4)}, {v(208+16*(j>>1),16) if j&1 else '0'}")
        if n == N - 1:
            nstamp(P, "last", nst)
            if typ == 0 and g == 1 and CFG.get("bl"): P.wait_lg(); I("s_barrier")
    ACC = [208, 224, 240, 32]
    vXA, vXD = 4, 8
    RD = []
    def radr():
        I(f"s_lshl_b32 s{sT0}, s{sMW}, 1")
        I(f"s_sub_u32 s{sT0}, s{sT0}, {MB}")
        I(f"v_add_u32 v5, s{sT0}, v{vM16}")
        I(f"v_add_u32 v6, {t.RG[4]}, v5")
        I(f"v_add_u32 v7, {t.RG[6]}, v5")
        if not CFG.get("rb"): I(f"v_add_u32 v12, s{sRB}, v{vM16}")
    def pad(q): return (128 - t.RG[2*q+1] + t.RG[2*q]) % 256 if CFG["rb"] == 2 else 0
    def pad3(r): return (64*(r & 3) - t.RG[r]) % 256 if CFG["rb"] == 3 else 0
    def rwr(q):
        o = []
        if CFG.get("rb"):
            for h_ in range(2):
                r = 2*q + h_; ad, bs_ = (5, 0) if r < 4 else (6, t.RG[4]) if r < 6 else (7, t.RG[6]); A = ACC[q] + 8*h_
                o.append("\n".join(f"v_cvt_pk_bf16_f32 v{A+k}, v{A+2*k}, v{A+2*k+1}" for k in range(4)))
                o.append(f"ds_write_b128 v{ad}, {v(A,4)} offset:{t.RG[r] - bs_ + h_*pad(q) + pad3(r)}")
            return o
        for e in range(4):
            r = 2*q + (e >> 1); ad, bs_ = (5, 0) if r < 4 else (6, t.RG[4]) if r < 6 else (7, t.RG[6])
            o.append(f"ds_write_b128 v{ad}, {v(ACC[q]+4*e,4)} offset:{t.RG[r] - bs_ + (e & 1)*1024}")
        return o
    vals = []; WBL = []
    def vchk(qs):
        rs = []; zs = []; o = []
        for k, tb in qs:
            if KS[k] in (("k", 0), ("k", 1)): zs.append(HR[k] + 4*tb)
            else: rs += [HR[k] + 4*tb] + ([HR[k] + 4*tb + 2] if KS[k] == ("k", 2) else [])
        if zs:
            zs = zs * 2
            o += [f"s_and_b32 s{sT3}, s{sR}, 2.0", f"v_min_u32 v15, v{zs[0]}, v{zs[1]}", f"v_or_b32 v15, s{sT3}, v15"]; t_ = 15
        else: t_ = rs.pop(0)
        while rs:
            if len(rs) > 1: o.append(f"v_min3_u32 v15, v{t_}, v{rs.pop(0)}, v{rs.pop(0)}")
            else: o.append(f"v_min_u32 v15, v{t_}, v{rs.pop(0)}")
            t_ = 15
        return o + [f"v_cmp_eq_u32 vcc, 0, v{t_}", "s_nop 1"]
    def valid(qs):
        if not NV: return
        vals.append(qs); n_ = len(vals)
        for x in vchk(qs): I(x)
        I(f"s_cbranch_vccnz L_{sn}_vr{n_}"); P.label(f"L_{sn}_vb{n_}")
    def tok(tk):
        if tk[:2] in ("a:", "b:"):
            if "ab".index(tk[0]) != g: return
            tk = tk[2:]
        c = tk[0]; r = tk[1:]
        if c == "F": I(fload())
        elif c == "C":
            for x in fcheck(r[0], int(r[1]), int(r[3]) if len(r) > 2 else None): em(x)
        elif c == "L":
            for x in hload(int(r)):
                for y in x: em(y)
        elif c == "S":
            lv, tg = r.split(":")
            for x in fstore(int(lv), tg, vCT): em(x)
        elif c == "B":
            if r == "" or int(r) == g: I("s_barrier")
        elif c == "T": nstamp(P, r, nst)
        elif c == "D":
            for x in wdma(int(r)):
                for y in x: em(y)
        elif c == "X":
            k = int(r); ad = (vRD0, vRD1); base = rbase
            if not 0 <= t.RG[RGN[k]] - rbase < 65000:
                ad = (5, 6); base = t.RG[RGN[k]]
                for cb in range(2): I(f"v_add_u32 v{ad[cb]}, {(base - rbase) & 0xffffffff}, v{(vRD0, vRD1)[cb]}")
            for x in wread(k, ad, base):
                for y in x: em(y)
        elif c == "M":
            k = int(r); valid([(k, 0), (k, 1)])
            for tb, cb in ((0, 0), (1, 0), (0, 1), (1, 1)):
                A = ACC[tb*2+cb]
                I(f"v_mfma_f32_32x32x16_bf16 {v(A,16)}, {v(WR[k]+4*cb,4)}, {v(HR[k]+4*tb,4)}, {'0' if k == 0 else v(A,16)}")
        elif c == "W":
            for y in [f"s_lshr_b32 s{sT0}, s2, 3", f"s_and_b32 s{sT0}, s{sT0}, {r}", f"s_or_b32 s{sT0}, s{sT0}, s{sI}", f"s_cbranch_scc0 L_{sn}_wb", f"buffer_load_dword v15, v{vFA}, {s(SWS,4)}, s{sFR} offen"]: I(y)
            P.label(f"L_{sn}_wr"); WBL.append(1)
        elif c == "P": I(f"s_setprio {r}")
        elif c == "G": I(gload())
        elif c == "R":
            J = vSTD if r == "o" else vC1; sb_ = sEX if r == "o" else sA if (typ, g) == (0, 0) else sHF
            for x in [f"s_mov_b32 s{sT1}, {(-7*MB) & 0xffffffff}", f"v_lshl_add_u32 v{J}, v{vM16}, 3, s{sT1}", f"s_mov_b64 exec, {0xffffff if sb_ == sHF else 0xffff}",
                      f"buffer_load_dword v{J}, v{J}, {s(SWS,4)}, s{sb_} offen{CFG.get('thm', ' sc1')}", "s_mov_b64 exec, -1"]: I(x)
        elif c == "H":
            ty, lv = r[0], int(r[1]); own = int(r[3]) if len(r) > 2 else None
            polls.append((ty, lv, own)); n_ = len(polls); spolls.append(n_)
            P.wait_lg()
            for x in gmin(ty, lv): I(x)
            I(f"s_cbranch_scc1 L_{sn}_gp{n_}"); P.label(f"L_{sn}_fb{n_}")
        elif c == "N":
            radr(); prev = []
            for tb, cb in ((0, 0), (1, 0), (0, 1), (1, 1)):
                q = tb*2+cb; A = ACC[q]
                if cb == 0: valid([(k, tb) for k in range(int(r), 15)])
                for j, k in enumerate(range(int(r), 15)):
                    I(f"v_mfma_f32_32x32x16_bf16 {v(A,16)}, {v(WR[k]+4*cb,4)}, {v(HR[k]+4*tb,4)}, {v(A,16)}")
                    if j >= CFG.get("nw", 1) and prev:
                        for y in prev.pop(0).split("\n"): I(y)
                for x in prev:
                    for y in x.split("\n"): I(y)
                prev = rwr(q)
            if CFG.get("rb"):
                for k in range(4): I(f"v_lshlrev_b32 v{16+2*k}, 16, v{vXD+k}"); I(f"v_and_b32 v{17+2*k}, s{sHI}, v{vXD+k}")
            for x in prev:
                for y in x.split("\n"): I(y)
            RD.append(1)
        elif c == "x" and CFG["rb"] == 3:
            B_ = [t.RG[4*g+j] + pad3(4*g+j) for j in range(4)]
            for y in [f"v_and_b32 v{vXA}, 48, v{vM16}", f"v_bfe_u32 v13, v{vM16}, 6, 2", f"v_lshl_add_u32 v{vXA}, v13, 10, v{vXA}",
                      f"v_bfe_u32 v7, v{vM16}, 8, 1", f"v_lshl_add_u32 v{vXA}, v7, 6, v{vXA}", f"v_bfe_u32 v7, v{vM16}, 9, 1", f"v_lshl_add_u32 v{vXA}, v7, 12, v{vXA}",
                      f"buffer_load_dwordx4 {v(vXD,4)}, v{vXA}, {s(SX,4)}, s{sXO} offen",
                      f"v_bfe_u32 v7, v{vM16}, 8, 2", "v_lshlrev_b32 v7, 11, v7", "v_lshl_add_u32 v7, v13, 4, v7", f"v_lshl_add_u32 v7, s{sI}, 7, v7",
                      f"v_bfe_u32 v13, v{vM16}, 4, 2", f"v_mov_b32 v12, {B_[0]}"]: I(y)
            for j in range(1, 4): I(f"v_mov_b32 v14, {B_[j]}"); I(f"v_cmp_eq_u32 vcc, {j}, v13"); I("v_cndmask_b32 v12, v12, v14, vcc")
            for y in ["v_add_u32 v12, v12, v7", f"v_and_b32 v14, 16, v{vM16}", f"v_mov_b32 v7, 0x3f80", "v_lshlrev_b32 v14, v14, v7", f"v_bfe_u32 v7, v{vM16}, 5, 3"]: I(y)
            for k in range(8): I(f"v_cmp_eq_u32 vcc, {k}, v7"); I(f"v_cndmask_b32 v{168+k}, 0, v14, vcc")
        elif c == "x" and CFG["rb"] == 2:
            hs = [t.RG[4*g+2*cb+1] - t.RG[4*g+2*cb] + pad(2*g+cb) for cb in range(2)]
            for y in [f"v_bfe_u32 v13, v{vM16}, 4, 3", f"v_bfe_u32 v14, v{vM16}, 7, 1", f"v_lshlrev_b32 v{vXA}, 10, v13", f"v_lshl_add_u32 v{vXA}, v14, 5, v{vXA}",
                      f"v_bfe_u32 v7, v{vM16}, 8, 1", f"v_lshl_add_u32 v{vXA}, v7, 4, v{vXA}", f"v_bfe_u32 v7, v{vM16}, 9, 1", f"v_lshl_add_u32 v{vXA}, v7, 6, v{vXA}",
                      f"buffer_load_dwordx4 {v(vXD,4)}, v{vXA}, {s(SX,4)}, s{sXO} offen",
                      f"v_bfe_u32 v7, v{vM16}, 8, 2", "v_lshlrev_b32 v7, 11, v7", "v_lshl_add_u32 v7, v13, 4, v7", f"v_lshl_add_u32 v7, s{sI}, 7, v7",
                      f"v_mul_u32_u24 v12, {hs[0]}, v14", f"v_mul_u32_u24 v13, {hs[1]}, v14", "v_add_u32 v12, v12, v7", "v_add_u32 v13, v13, v7",
                      f"v_add_u32 v12, {t.RG[4*g]}, v12", f"v_add_u32 v13, {t.RG[4*g+2]}, v13",
                      f"v_and_b32 v14, 16, v{vM16}", f"v_mov_b32 v7, 0x3f80", "v_lshlrev_b32 v14, v14, v7", f"v_bfe_u32 v7, v{vM16}, 5, 3"]: I(y)
            for k in range(8): I(f"v_cmp_eq_u32 vcc, {k}, v7"); I(f"v_cndmask_b32 v{168+k}, 0, v14, vcc")
        elif c == "x" and CFG.get("rb"):
            for y in [f"v_bfe_u32 v13, v{vM16}, 4, 4", f"v_bfe_u32 v7, v{vM16}, 9, 1", f"v_lshlrev_b32 v{vXA}, 10, v13", f"v_lshl_add_u32 v{vXA}, v7, 14, v{vXA}",
                      f"v_bfe_u32 v7, v{vM16}, 8, 1", f"v_lshl_add_u32 v{vXA}, v7, 4, v{vXA}", f"buffer_load_dwordx4 {v(vXD,4)}, v{vXA}, {s(SX,4)}, s{sXO} offen",
                      f"v_bfe_u32 v7, v{vM16}, 8, 2", f"v_mul_u32_u24 v7, 1792, v7", f"v_add3_u32 v12, s{sRB}, v{vM16}, v7",
                      f"v_and_b32 v14, 16, v{vM16}", f"v_mov_b32 v7, 0x3f80", "v_lshlrev_b32 v14, v14, v7", "v_lshrrev_b32 v13, 1, v13"]: I(y)
            for k in range(8): I(f"v_cmp_eq_u32 vcc, {k}, v13"); I(f"v_cndmask_b32 v{168+k}, 0, v14, vcc")
        elif c == "x":
            I(f"v_bfe_u32 v{vXA}, v{vM16}, 4, 5")
            I(f"v_bfe_u32 v7, v{vM16}, 9, 1")
            I(f"v_lshlrev_b32 v{vXA}, 10, v{vXA}")
            I(f"v_lshl_add_u32 v{vXA}, v7, 4, v{vXA}")
            I(f"buffer_load_dwordx4 {v(vXD,4)}, v{vXA}, {s(SX,4)}, s{sXO} offen")
        else: raise ValueError(tk)
    if typ == 1:
        nstamp(P, "oph", nst)
        for tk in CFG.get("qp", "").split(): tok(tk)
        DO = [208, 224]
        if not QE:
            I(f"s_mov_b32 s{sT0}, 0")
            P.label(f"L_{sn}_pre")
            for p in range(8): I(f"v_mfma_f32_16x16x32_bf16 {v(DD,4)}, {v(SEL,4)}, {v(LD+4*p,4)}, {'0' if p == 0 else v(DD,4)}")
            I(f"ds_write_b128 v{vTZ}, {v(ZZ,4)} offset:1024")
            I(f"v_mfma_f32_16x16x32_bf16 {v(LD,4)}, {v(SEL,4)}, {v(ZZ,4)}, {v(DD,4)}")
            I(f"v_cvt_pk_bf16_f32 v{LD+4}, v{DD}, v{DD+1}")
            I(f"v_cvt_pk_bf16_f32 v{LD+5}, v{DD+2}, v{DD+3}")
            I(f"ds_write_b64 v{vTW}, {v(LD+4,2)}")
            I(f"v_cmp_u_f32 vcc, v{LD}, v{LD}")
            I("s_nop 1")
            I(f"s_cbranch_vccnz L_{sn}_rt")
            P.label(f"L_{sn}_go")
            for tk in CFG["qo"][0].split(): tok(tk)
            P.wait_lg()
            I("s_barrier")
            AO = GA[0]; DO = [208, 224]
            for rho in range(2):
                for f in range(2): I(f"ds_read_b128 {v(AO+8*rho+4*f,4)}, v{vTR} offset:{rho*2048+16*f}")
            for rho in range(2):
                ph = AK + 8 if rho == 0 else AV
                for f in range(2):
                    I(f"v_mfma_f32_32x32x16_bf16 {v(DO[rho],16)}, {v(AO+8*rho+4*f,4)}, {v(ph+4*f,4)}, {'0' if f == 0 else v(DO[rho],16)}")
        for tk in CFG["qo"][1].split(): tok(tk)
        for rho in range(2):
            Dd = DO[rho]
            if rho and QE:
                for tk in CFG["qo"][0].split(): tok(tk)
            for k in range(4): I(f"v_add_f32 v{Dd+8+k}, v{Dd+8+k}, v{Dd+12+k}")
            I(f"v_add_f32 v{Dd+8}, v{Dd+8}, v{Dd+9}")
            I(f"v_add_f32 v{Dd+10}, v{Dd+10}, v{Dd+11}")
            I(f"v_add_f32 v{Dd+8}, v{Dd+8}, v{Dd+10}")
            I(f"v_mov_b32 v{Dd+9}, v{Dd+8}")
            I(f"v_permlane32_swap_b32 v{Dd+8}, v{Dd+9}")
            I(f"v_add_f32 v{Dd+8}, v{Dd+8}, v{Dd+9}")
            I(f"v_add_f32 v{Dd+8}, {fbits(1e-6)}, v{Dd+8}")
            I(f"v_rcp_f32 v{Dd+8}, v{Dd+8}")
            for k in range(8): I(f"v_mul_f32 v{Dd+k}, v{Dd+k}, v{Dd+8}")
            for k in range(4): I(f"v_cvt_pk_bf16_f32 v{Dd+k}, v{Dd+2*k}, v{Dd+2*k+1}")
            for x in mst(f"buffer_store_dwordx4 {v(Dd,4)}, v{vM16}, {s(SWS,4)}, s{sEX} offen offset:{rho*1024}", "ho"): em(x)
    for tk in CFG["p2"][typ].replace("Ts3", CFG.get("ts3", "Ts3")).replace("Ts4", CFG.get("ts4", "Ts4")).replace("N10", CFG.get("n10", ("N10", "N10"))[g]).replace(" x ", " x " + CFG.get("xw", "") + " ").split(): tok(tk)
    if not RD:
        radr()
        for q in (0, 2, 1, 3):
            for x in rwr(q): I(x)
    XU = 16
    for k in range(0 if CFG.get("rb") else 4):
        I(f"v_lshlrev_b32 v{XU+2*k}, 16, v{vXD+k}")
        I(f"v_and_b32 v{XU+2*k+1}, s{sHI}, v{vXD+k}")
    P.wait_lg()
    I("s_barrier")
    nstamp(P, "red", nst)
    if CFG.get("rb"):
        od = [(c_, hh) for hh in range(2) for c_ in (0, 2, 1, 3)]
        for j, (c_, hh) in enumerate(od): I(f"ds_read_b128 {v(128+4*j,4)}, v{12+(c_&1)} offset:{hh*8192+(c_>>1)*512}" if CFG["rb"] == 2 else f"ds_read_b128 {v(128+4*j,4)}, v12 offset:{hh*8192+((c_>>1)*512+(c_&1)*64 if CFG['rb'] == 3 else c_*256)}")
        for j, (c_, hh) in enumerate(od): I(f"v_mfma_f32_16x16x32_bf16 {v(XU+4*(c_>>1),4)}, {v(168+4*(c_&1),4)}, {v(128+4*j,4)}, {v(XU+4*(c_>>1),4)}")
    for w_ in range(0 if CFG.get("rb") else 8):
        for e in range(2): I(f"ds_read_b128 {v(128+8*w_+4*e,4)}, v12 offset:{w_*2048+e*1024}")
        if w_ == 6:
            for k in range(8): I(f"v_add_f32 v{XU+k}, v{XU+k}, v{128+k}")
    for w_ in range(1, 1 if CFG.get("rb") else 8):
        for k in range(8): I(f"v_add_f32 v{XU+k}, v{XU+k}, v{128+8*w_+k}")
    for k in range(4): I(f"v_cvt_pk_bf16_f32 v{XU+k}, v{XU+2*k}, v{XU+2*k+1}")
    I(f"buffer_store_dwordx4 {v(XU,4)}, v{vXA}, {s(SOUT,4)}, s{sXO} offen{CFG.get('om', '')}")
    while nst[0] < 18: nstamp(P, "-", nst)
    P.comment(f"STAMPS {typ}{g} " + " ".join(nst[1:]) + " end")
    dump_stamps(P, 19, SWS, sW, 8, sT0)
    I("s_endpgm")
    def cold():
        def poll(nm, back, sl, body, done, pre=[]):
            P.restore(([], [], [], False))
            P.label(f"L_{sn}_{nm}")
            for x in pre: em(x)
            I(f"s_mov_b32 s{sC}, 0")
            P.label(f"L_{sn}_{nm}l")
            I(f"s_sleep {sl}")
            for x in body: I(x)
            I(f"{done} L_{sn}_{back}")
            I(f"s_add_u32 s{sC}, s{sC}, 1")
            I(f"s_cmp_lt_u32 s{sC}, 20000")
            I(f"s_cbranch_scc1 L_{sn}_{nm}l")
            I(f"s_branch L_{sn}_{back}")
        if WBL:
            P.restore(([], [], [], False)); P.label(f"L_{sn}_wb"); P.raw("    buffer_wbl2 sc1"); I(f"s_branch L_{sn}_wr")
        for n_, x in enumerate(slow):
            P.restore(([], [], [], False))
            P.label(f"L_{sn}_ss{n_+1}")
            if NV and "store_dword " in x: I("s_waitcnt vmcnt(0)")
            I("s_nop 4"); I(x + " sc1"); I("s_nop 4"); I(f"s_branch L_{sn}_sb{n_+1}")
        poll("cp", "cb", 16, cad + [f"buffer_load_dword v{vCT}, v{vCT if QE else vFL}, {s(SDB,4)}, 0 offen sc1"] + cck, "s_cbranch_vccz")
        for n_, qs in enumerate(vals):
            mk = 0
            for k, tb in qs: mk |= 0x0f if KS[k][0] == "k" else 0xf0
            poll(f"vr{n_+1}", f"vl{n_+1}", CFG["fsl"], [fload(), f"v_cmp_gt_u32 vcc, 5, v{vFL}", f"s_and_b32 s{sT1}, vcc_lo, {mk}"], "s_cbranch_scc0", ["s_waitcnt vmcnt(0)"])
            P.restore(([], [], [], False))
            P.label(f"L_{sn}_vl{n_+1}")
            for k, tb in qs: I(hload(k)[tb][0]); I(hload(k)[tb][1] + " sc1")
            I("s_waitcnt vmcnt(0)"); I(f"s_branch L_{sn}_vb{n_+1}")
        for n_ in spolls:
            ty, lv, own = polls[n_-1]
            P.restore(([], [], [], False))
            P.label(f"L_{sn}_gp{n_}")
            I(f"s_cmp_lg_u32 s{sMD}, 0"); I(f"s_cbranch_scc1 L_{sn}_fp{n_}")
            if own is not None:
                for x in [f"v_mov_b32 v{vCT}, {own}", "s_waitcnt vmcnt(0)", "s_mov_b64 exec, 1", f"buffer_store_dword v{vCT}, off, {s(SWS,4)}, s{sFL}", "s_mov_b64 exec, -1"]: I(x)
            I(f"s_mov_b32 s{sO2}, 0")
            P.label(f"L_{sn}_gl{n_}")
            if CFG.get("gsl"): I(f"s_sleep {CFG['gsl']}")
            I(gload()); I("s_waitcnt lgkmcnt(0)")
            for x in gmin(ty, lv): I(x)
            I(f"s_cbranch_scc0 L_{sn}_fb{n_}")
            I(f"s_add_u32 s{sO2}, s{sO2}, 1"); I(f"s_cmp_lt_u32 s{sO2}, 64"); I(f"s_cbranch_scc1 L_{sn}_gl{n_}")
            I(f"s_branch L_{sn}_fp{n_}")
        for n_, (ty, lv, own) in enumerate(polls):
            pre = [] if own is None else [f"v_mov_b32 v{vCT}, {own}", "s_waitcnt vmcnt(0)", "s_mov_b64 exec, 1", f"s_cmp_lg_u32 s{sMD}, 0", f"s_cbranch_scc1 L_{sn}_fo{n_}", f"buffer_store_dword v{vCT}, off, {s(SWS,4)}, s{sFL}",
                                          f"s_branch L_{sn}_fq{n_}", f"LABEL L_{sn}_fo{n_}", f"buffer_store_dword v{vCT}, off, {s(SWS,4)}, s{sFL} sc1", f"LABEL L_{sn}_fq{n_}", "s_mov_b64 exec, -1"]
            poll(f"fp{n_+1}", f"fb{n_+1}", CFG["fsl"], [fload(), f"v_cmp_gt_u32 vcc, {lv}, v{vFL}", f"s_and_b32 s{sT1}, vcc_lo, {0xf0 if ty == 'q' else 0x0f}"], "s_cbranch_scc0", pre)
        if typ == 1:
            if not (QE and QE.get("nz")): poll("zp", "zb", CFG["zsl"], [loads()[0][0], f"v_cmp_eq_u32 vcc, -1, v{ZZ}", "s_nop 1"], "s_cbranch_vccz")
            P.restore(([], [], [], False))
            P.label(f"L_{sn}_rt")
            if QE:
                I(f"s_mov_b32 s{sT0}, 0"); I("s_nop 7"); I("s_nop 7")
                P.label(f"L_{sn}_rl")
                I("s_waitcnt lgkmcnt(0)")
                for x in loads():
                    for y in x: I(y)
                I("s_waitcnt vmcnt(0)")
                for x in preL + [preZ] + preW: I(x)
                I("s_waitcnt lgkmcnt(0)")
                I(f"s_cbranch_vccz L_{sn}_go")
                I(f"s_add_u32 s{sT0}, s{sT0}, 1")
                I(f"s_cmp_lt_u32 s{sT0}, 20000")
                I(f"s_cbranch_scc1 L_{sn}_rl")
                I(f"s_branch L_{sn}_go")
                return
            I(f"s_add_u32 s{sT0}, s{sT0}, 1")
            I(f"s_cmp_ge_u32 s{sT0}, 20000")
            I(f"s_cbranch_scc1 L_{sn}_go")
            I("s_waitcnt lgkmcnt(0)")
            for x in loads():
                for y in x: I(y)
            I("s_waitcnt vmcnt(0)")
            I(f"s_branch L_{sn}_pre")
    return cold

def gen_k1(name):
    P = Prog()
    P.raw(f".globl {name}\n.p2align 8\n.type {name},@function\n{name}:")
    prologue(P, name)
    snap = P.snapshot(); colds = []
    for k in range(4):
        P.restore(snap)
        if k: P.raw(".p2align 6"); P.label(f"L_{name}_r{k}")
        c_ = stream(P, k >> 1, k & 1, name)
        if CFG.get("cold"): colds.append(c_)
        else: c_()
    for c_ in colds: c_()
    P.label(f"L_{name}_end")
    P.I("s_endpgm")
    return P
```

```python
from asmlib import Prog, Ins, v, s
from sched import Sched, Item, Op
import k1
from k1 import fbits, LOG2E, stamp, pstamp, dump_stamps

MB = 122880
HF_OFF = MB
KVP_OFF = 0xC00000
WS_BYTES = 0x1000000
PH = 103040; OT = 106688; CSP = 156288
FLG = 0xD00000
LDS_BYTES = 163840
SDB, SX, SWQ, SWG, SWU, SWS, SWP, SWO, SWD = 4, 8, 12, 16, 20, 24, 28, 44, 48
sW, sT, sA, sTY, sR, sI, sMX, sMW, sMG, sC, sO1, sO2 = range(32, 44)
sHF, sK1, sK2, sHI, sT0, sT1, sT2, sT3 = range(52, 60)
sI4, sEX = 3, 35
sFL = sT; SOUT = SWQ
sHQ, sHO, sHK, sFR = range(SWP, SWP + 4)
sXO, sRB = 0, 1
sXV, sMD = 100, 101
vM16 = 0; vGO = [1, 2, 3]; vAG = [4, 5, 6, 7]; vMU = 8; CP = 12; CD = [16, 18, 20]
vC1, vSTD, vRS, vWF, vPH, vKA, vKB, vSM = range(24, 32)
vMX = vRS
FR = [32, 36, 40, 44]
AK, AV = 48, 64
GA = [80, 96, 112]
vXO, vWO, vLN, vST, vSQ = 80, 81, 82, 83, 84
vU = [85, 86, 87, 88]
vSTW, vSTR, vWPV, vWPA, vTCH, vCW = 89, 90, 91, 92, 93, 94
vAX = [[96, 97, 98, 99], [100, 101, 102, 103]]
vAA = [[104, 105, 106, 107], [108, 109, 110, 111]]
def XR(i, p): return 128 + (4 * i + p) * 4
CFG = dict(gb=6, pb=8, ppb=8, vb=6, paceg=1, b0end=1, pro=3, pace=0, tch=13, gt=0, rot="a", acc2=1, hstag=0, ns=([2]*8, [2]*8), phbar=(9, 10), qload=8, b0=8, hm=" sc1", qb=6, qpb=6, qpub=9,
           vdm={4: [0], 5: [1, 2], 6: [3, 4, 5], 7: [6, 7]}, g8=7, sq=[[0], [1], [2, 3], [4], [5], [6], [7], []], wc=0, qct=14, sq7=1, v1=(0, 2), skip=(3, 5, "v3", "ph", 12))
CFG.update(zd=12, rot="f", thl=((8, 9, 10), (8, 8, 9, 9, 10)), tho=0, th=8, thb=4, xm=1, fm=" sc1", tch=6, phbar=(9, 2), vpb=6, vb=7, gb=7, qload=0, qct=10, zsl=8, fsl=4, wb=(10, 10), wl=10, wg=2, f1=(0, 9, 0), f2=3, s1=12, atm=(7, 6, 2, -9),
           skip=(1, 2, 3, 4, 5, 6, 7, "v1", "v3", "v6", "ph", 9, 10, 11, 12, 15),
           st=((), ()),
           qo=("S3:h2 F T1", "D14"),
           p2=("Tp2 S3:h1 Ts3 Cq3 Tq3 L0 L1 F L2 L3 L4 L5 Cq4 Tq4 L6 L7 M0 M1 L8 L9 M2 Ck3 Tk3 L10 M3 L11 L12 M4 L13 M5 L14 X12 X13 X14 x Tb M6 M7 M8 M9 Tm9 B M10 M11 M12 M13 M14 Td",
               "Tp2 S4:ho Ts4 Cq3 L0 L1 F L2 L3 L4 L5 Cq4 Tq4 L6 L7 L8 L9 M0 Ck3 Tk3 L10 M1 L11 X10 X11 M2 L12 M3 L13 M4 L14 M5 X12 X13 X14 x M6 M7 M8 M9 Tm9 M10 M11 M12 M13 M14 Td"))
CFG.update(t3b=1, dup=1, swp=1, t3=4, tx=(None, 9, 2), f1=(0, 5, 0), s1=5, fsl=2, thl=((8, 8, 8), (8, 8, 8, 8, 8)))
CFG.update(ct=1, bl=1, qo=('S3:h2 T1','F D14'), p2=('Tp2 B0 S3:h1 Ts3 Cq3 Tq3 L0 L1 L2 L3 L4 L5 F M0 M1 M2 M3 Cq4 Tq4 L6 L7 L8 L9 Ck3 Tk3 L10 L11 L12 M4 L13 M5 L14 X12 X13 X14 x Tb M6 M7 M8 M9 Tm9 N10 Td',
           'Tp2 Cq3/4 L0 S4:ho Ts4 L1 L2 L3 L4 L5 F M0 M1 M2 M3 Cq4 Tq4 L6 L7 L8 L9 Ck3 Tk3 L10 L11 L12 L13 M4 L14 X10 X11 M5 X12 X13 X14 x M6 M7 M8 M9 Tm9 N10 Td'))
CFG.update(rb=3, om=' sc1', zw=0, zd=1, cold=1, pz=(0, 0, 0, 0))
CFG.update(p2=('Tp2 B0 S3:h1 Ts3 Cq3 Tq3 L0 L1 L2 L3 L4 L5 F M0 M1 M2 M3 X12 X13 X14 Cq4 Tq4 L6 M4 L7 L8 M5 L9 x Ck3 Tk3 L10 M6 L11 M7 L12 M8 L13 M9 L14 Tb Tm9 M10 M11 M12 N13 Td',
           'Tp2 Cq3/4 L0 S4:ho Ts4 L1 L2 L3 L4 L5 F M0 M1 M2 M3 X10 X11 X12 X13 Cq4 Tq4 L6 M4 L7 L8 M5 L9 X14 x Ck3 Tk3 L10 M6 L11 M7 L12 M8 L13 M9 L14 Tm9 M10 M11 M12 N13 Td'))
CFG.update(zp=2, qload=4, qct=10, qs=[0, 1, 2, 3, 5, 6, 7, 8])
STN = []
def nstamp(P, nm, nst):
    if nm in CFG["skip"]: return
    if nst[0] < 18: stamp(P, nst[0]); nst[0] += 1; nst.append(str(nm))
def HM(): return CFG["hm"]

class T:
    def __init__(s, typ):
        s.typ = typ
        s.RB = 192 if typ else 160; s.NP = 12 if typ else 10; s.MUL = 171 if typ else 205
        s.UP = 64 * s.RB + (32 if typ else 128); s.SL = 2 * 64 * s.RB + (64 if typ else 128)
        s.XB = (0, 3 * s.SL) if typ else (20608, 103040)
        s.WB = (16384, 16384 + 3 * s.SL) if typ else (12416, 82432)
        s.ST = 131072 if typ else 98816
        s.WPH = CSP + 2048 if typ else 152192
        s.RG = [0, 16384, 32768, 49152] + ([73920, 90304, 123200, 139584] if typ else [65536, PH, PH + 16384, PH + 32768])
    def xp(s, st): return ((st + 2) % 5) * s.SL if s.typ else (20608, 41216, 119424, 103040, 66048, 82432, 119424, 103040)[st]
    def wp(s, st): return s.xp(st) + 16384 if s.typ else (12416, 57600, 144000, 135808)[st % 4]
    def vp(s, c): return (20608, 41216, 66048, 82432)[c >> 1] + 8192 * (c & 1)
    def sp(s, o, B):
        hi = int(o >= B[1]); assert 0 <= o - B[hi] <= 65000; return hi, o - B[hi]
    def g(s, st): return ((st - 8) % 5) * s.SL

def dma_x(t, st):
    return [[f"s_add_u32 s{sC}, s{sR}, {st}", f"s_and_b32 s{sC}, s{sC}, 7", f"s_add_u32 m0, s{sMX}, {t.xp(st)}", f"s_lshl_b32 s{sO1}, s{sC}, 7",
             f"buffer_load_dwordx4 v{vXO}, {s(SX,4)}, s{sO1} offen lds #x{st}"],
            [f"s_add_u32 s{sO1}, s{sO1}, {16384 - 2048}", f"buffer_load_dwordx4 v{vXO}, {s(SX,4)}, s{sO1} offen offset:2048 lds #x{st}"]]
def dma_w(t, st):
    o = [[f"s_add_u32 s{sC}, s{sR}, {st}", f"s_and_b32 s{sC}, s{sC}, 7", f"s_add_u32 m0, s{sMW}, {t.wp(st)}", f"s_mul_i32 s{sO2}, s{sC}, {64*3072}",
          f"buffer_load_dwordx4 v{vWO}, {s(SWQ,4)}, s{sO2} offen lds #w{st}"]]
    return o
def dma_v(t, c):
    return [[f"s_add_u32 s{sC}, s{sR}, {c}", f"s_and_b32 s{sC}, s{sC}, 7", f"s_add_u32 m0, s{sMW}, {t.vp(c) - 1024}", f"s_mul_i32 s{sO2}, s{sC}, {64*3072}",
          f"buffer_load_dwordx4 v{vWO}, {s(SWQ,4)}, s{sO2} offen offset:1024 lds #v{c}"]]
def dma_g(t, g, st):
    S = s(SWU if g else SWG, 4)
    m = [f"s_add_u32 m0, s{sMG}, {t.g(st)}"] if st >= 12 else []
    o = [[f"s_add_u32 s{sC}, s{sR}, {st}", f"s_and_b32 s{sC}, s{sC}, 7", f"s_add_u32 m0, s{sMG}, {t.g(st)}", f"s_mul_i32 s{sO2}, s{sC}, {64*2752}",
          f"buffer_load_dwordx4 v{vGO[0]}, {S}, s{sO2} offen lds #w{st}"],
         m + [f"buffer_load_dwordx4 v{vGO[1]}, {S}, s{sO2} offen offset:1024 lds #w{st}"]]
    l = f"buffer_load_dwordx4 v{vGO[2]}, {S}, s{sO2} offen offset:2048 lds #w{st}"
    o.append(m + ([l] if t.typ else ["s_mov_b32 exec_hi, 0", l, "s_mov_b32 exec_hi, -1"]))
    return o

def stream_list(t, g):
    o = []
    for st in range(1, 8): o += [dma_x(t, st), dma_w(t, st)]
    return o

def emit(P, t):
    tag = None
    if "#" in t: t, tag = t.split("#"); t = t.strip()
    P.I(t, tag)

def prologue(P, name):
    I = P.I
    stamp(P, 0)
    I("s_cmp_ge_u32 s2, 256")
    I(f"s_cbranch_scc1 L_{name}_end")
    I(f"s_load_dwordx4 s[8:11], s[0:1], 0")
    if CFG.get("ct"):
        I("s_getpc_b64 s[4:5]")
        P.label(f"L_{name}_pc")
        I("s_lshr_b32 s3, s2, 3")
        I("s_lshl_b32 s3, s3, 11")
        I("v_lshrrev_b32 v1, 5, v0")
        I("v_lshl_add_u32 v1, v1, 7, s3")
        I(f"s_mov_b32 s6, L_{name}_end-L_{name}_pc")
        I("s_mov_b32 s7, 0x20000")
        I("buffer_load_dword v127, v1, s[4:7], 0 offen")
    I(f"v_lshrrev_b32 v1, 6, v0")
    I(f"v_and_b32 v{vLN}, 63, v0")
    I(f"v_readfirstlane_b32 s{sW}, v1")
    I(f"s_and_b32 s{sT0}, s2, 1")
    I(f"s_bfe_u32 s{sT1}, s2, 0x30003")
    I(f"s_lshl3_add_u32 s{sT}, s{sT0}, s{sT1}")
    I(f"s_lshr_b32 s{sT2}, s2, 6")
    I(f"s_and_b32 s{sT0}, s2, 6")
    I(f"s_and_b32 s{sT1}, s{sT2}, 1")
    I(f"s_add_u32 s{sA}, s{sT0}, s{sT1}")
    I(f"s_lshl1_add_u32 s{sR}, s{sT2}, s{sT}")
    rot = CFG["rot"]
    if CFG["xm"]:
        I(f"s_and_b32 s{sT0}, s2, 7")
        I(f"s_bfe_u32 s{sT1}, s2, 0x10006")
        I(f"s_lshl1_add_u32 s{sT}, s{sT0}, s{sT1}")
        I(f"s_bfe_u32 s{sA}, s2, 0x30003")
        if CFG.get("ap"): I(f"s_xor_b32 s{sA}, s{sA}, {CFG['ap']}")
        if rot[0] == "e": I(f"s_mov_b32 s{sR}, s{sT0}")
        if rot[0] == "f": I(f"s_add_u32 s{sR}, s{sT0}, s{sA}")
        if rot[0] == "g": I(f"s_lshl2_add_u32 s{sR}, s{sT1}, s{sT0}")
        if rot[0] == "h": I(f"s_lshl1_add_u32 s{sR}, s{sT2}, s{sT0}")
        if rot[0] == "i": I(f"s_lshl2_add_u32 s{sR}, s{sT1}, s{sT0}"); I(f"s_add_u32 s{sR}, s{sR}, s{sA}")
    if rot[0] == "b": I(f"s_add_u32 s{sR}, s{sT2}, s{sT}"); I(f"s_lshl_b32 s{sR}, s{sR}, 1")
    if rot[0] == "c": I(f"s_add_u32 s{sR}, s{sT2}, s{sT}"); I(f"s_lshl_b32 s{sR}, s{sR}, 2")
    if rot[0] == "d": I(f"s_mov_b32 s{sR}, 0")
    if rot[1:] == "x": I(f"s_add_u32 s{sR}, s{sR}, s2")
    if rot[1:] == "y": I(f"s_lshr_b32 s{sC}, s2, 1"); I(f"s_add_u32 s{sR}, s{sR}, s{sC}"); I(f"s_and_b32 s{sC}, s2, 1"); I(f"s_lshl1_add_u32 s{sR}, s{sC}, s{sR}")
    if rot[1:] == "z": I(f"s_add_u32 s{sR}, s{sR}, s{sT0}"); I(f"s_and_b32 s{sC}, s2, 1"); I(f"s_lshl2_add_u32 s{sR}, s{sC}, s{sR}")
    I(f"v_lshrrev_b32 v2, 4, v{vLN}")
    I(f"v_lshrrev_b32 v3, 3, v{vLN}")
    I(f"v_and_b32 v4, 7, v{vLN}")
    I(f"s_and_b32 s{sT0}, s{sW}, 1")
    I(f"s_lshr_b32 s{sT1}, s{sW}, 1")
    I(f"s_lshl2_add_u32 s{sT1}, s{sT1}, s{sT0}")
    I(f"s_lshl_b32 s{sMX}, s{sT1}, 10")
    I(f"s_lshl4_add_u32 s{sT1}, s{sT}, s{sT1}")
    I(f"s_lshl_b32 s{sT1}, s{sT1}, 13")
    I(f"s_lshl_b32 s{sT0}, s{sT0}, 2")
    I(f"v_or_b32 v5, s{sT0}, v2")
    I(f"v_xor_b32 v5, v5, v4")
    I(f"v_lshlrev_b32 v5, 4, v5")
    I(f"v_lshl_add_u32 v5, v3, 10, v5")
    I(f"v_add_u32 v{vXO}, s{sT1}, v5")
    I(f"s_lshl_b32 s{sMW}, s{sW}, 10")
    I(f"s_mul_i32 s{sT0}, s{sW}, {8*3072}")
    I(f"s_lshl_b32 s{sT1}, s{sA}, 7")
    I(f"s_add_u32 s{sT0}, s{sT0}, s{sT1}")
    I(f"s_and_b32 s{sC}, s{sR}, 7")
    I(f"s_lshl_b32 s{sO1}, s{sC}, 7")
    I(f"s_mul_i32 s{sO2}, s{sC}, {64*3072}")
    I(f"s_cmp_lt_u32 s2, 128")
    I(f"s_cselect_b32 s{sT1}, 1024, 0")
    I(f"s_cselect_b32 s{sT3}, 0, {T(1).xp(0) - T(0).xp(0)}")
    I(f"s_cselect_b32 s{sT2}, 0, {T(1).wp(0) - T(0).wp(0)}")
    I(f"s_add_u32 s{sT3}, s{sT3}, {T(0).xp(0)}")
    I(f"s_add_u32 s{sT2}, s{sT2}, {T(0).wp(0)}")
    I(f"s_add_u32 s{sT0}, s{sT0}, s{sT1}")
    I(f"v_and_b32 v5, 1, v2")
    I(f"v_lshlrev_b32 v5, 2, v5")
    I(f"v_xor_b32 v5, v5, v4")
    I(f"v_lshlrev_b32 v5, 4, v5")
    I(f"v_mul_u32_u24 v6, 3072, v3")
    I(f"v_add3_u32 v{vWO}, v5, v6, s{sT0}")
    I(f"s_add_u32 m0, s{sMX}, s{sT3}")
    I(f"s_add_u32 s{sT1}, s{sO1}, {16384 - 2048}")
    I(f"s_mov_b32 s{SWQ+2}, {512*3072}")
    I(f"s_mov_b32 s{SWQ+3}, 0x20000")
    pstamp(P, 1)
    I("s_waitcnt lgkmcnt(0)")
    pstamp(P, 2)
    I(f"s_mov_b32 s{SWQ}, s10")
    I(f"s_mov_b32 s{SWQ+1}, s11")
    I(f"s_mov_b32 s{SX+2}, 2097152")
    I(f"s_mov_b32 s{SX+3}, 0x20000")
    I(f"buffer_load_dwordx4 v{vXO}, {s(SX,4)}, s{sO1} offen lds", "x0")
    I(f"buffer_load_dwordx4 v{vXO}, {s(SX,4)}, s{sT1} offen offset:2048 lds", "x0")
    I(f"s_add_u32 m0, s{sMW}, s{sT2}")
    I(f"buffer_load_dwordx4 v{vWO}, {s(SWQ,4)}, s{sO2} offen lds", "w0")
    for r, o in ((SWP, 16), (SWG, 40), (SWU, 48), (SWS, 80), (SDB, 72), (SWO, 24), (SWD, 56), (SWO + 2, 64)):
        I(f"s_load_dwordx2 {s(r,2)}, s[0:1], {o}")
    pstamp(P, 3)
    I(f"s_and_b32 s{sI}, s{sW}, 3")
    I(f"s_lshr_b32 s{sT0}, s{sW}, 2")
    I(f"s_lshr_b32 s{sT1}, s2, 7")
    I(f"s_lshl1_add_u32 s{sT0}, s{sT1}, s{sT0}")
    for k in (1, 2, 3):
        I(f"s_cmp_eq_u32 s{sT0}, {k}")
        I(f"s_cbranch_scc1 L_{name}_r{k}")

def setup(P, t, g):
    I = P.I; typ = t.typ
    a, b, c, d, h, sb, r, sw, row, j4 = range(112, 122)
    def pdm(l):
        for nm in l.split():
            for z in (dma_x if nm[0] == "x" else dma_w)(t, int(nm[1])):
                for y in z: emit(P, y)
    if CFG.get("po"): pdm(CFG["po"][typ][0])
    for R, n in ((SWP, 16384), (SWG, 512*2752), (SWU, 512*2752), (SWS, WS_BYTES), (SDB, 256), (SWD, 1376*1024)):
        if R == (SWG if g else SWU): continue
        I(f"s_mov_b32 s{R+2}, {n}")
        I(f"s_mov_b32 s{R+3}, 0x20000")
    I(f"s_mov_b32 s{sHI}, 0xffff0000")
    I(f"s_getreg_b32 s{sXV}, hwreg(HW_REG_XCC_ID, 0, 4)")
    I(f"s_mul_i32 s{sMD}, s{sXV}, s{sXV}")
    I(f"s_lshl_b32 s{sMD}, s{sMD}, 9")
    I(f"s_add_u32 s{sXV}, s{sXV}, s{sMD}")
    I(f"s_lshl_b32 s{sXV}, s{sXV}, 8")
    I(f"s_add_u32 s{sXV}, s{sXV}, 1")
    I(f"s_lshl_b32 s{sI4}, s{sI}, 2")
    I(f"v_mov_b32 v{j4}, v2")
    I(f"v_lshrrev_b32 v{h}, 5, v{vLN}")
    I(f"v_and_b32 v{sb}, 1, v2")
    I(f"v_bfe_u32 v{r}, v{vLN}, 2, 2")
    I(f"v_bfe_u32 v{a}, v{vLN}, 1, 1")
    I(f"v_and_b32 v{b}, 1, v{vLN}")
    I(f"v_lshl_or_b32 v{sw}, v{b}, 1, v{a}")
    I(f"v_lshlrev_b32 v{sw}, 3, v{sw}")
    I(f"v_lshl_add_u32 v{row}, v{h}, 3, v{r}")
    I(f"v_lshl_or_b32 v{c}, v{sb}, 1, v{a}")
    I(f"v_lshlrev_b32 v{c}, 3, v{c}")
    I(f"v_lshl_add_u32 v{c}, v{row}, 5, v{c}")
    I(f"v_lshl_add_u32 v{c}, v{b}, 11, v{c}")
    I(f"v_add_u32 v{vWF}, {t.WPH + g*1024}, v{c}")
    if typ == 0:
        I(f"v_bfe_u32 v{c}, v{vLN}, 2, 3")
        I(f"v_lshl_add_u32 v{c}, v{h}, 4, v{c}")
        I(f"v_mul_u32_u24 v{c}, 96, v{c}")
        I(f"v_lshl_add_u32 v{c}, v{b}, 3, v{c}")
        I(f"s_lshr_b32 s{sT0}, s{sI}, 1")
        I(f"s_mul_i32 s{sT0}, s{sT0}, 12288")
        I(f"s_add_u32 s{sT0}, s{sT0}, {PH + 2*g*12288}")
        I(f"s_and_b32 s{sT1}, s{sI}, 1")
        I(f"s_lshl_b32 s{sT1}, s{sT1}, 5")
        I(f"s_add_u32 s{sT1}, s{sT1}, s{sT0}")
        I(f"v_xor_b32 v{d}, v{a}, v{sb}")
        I(f"v_lshlrev_b32 v{d}, 4, v{d}")
        I(f"v_add3_u32 v{vKA}, v{c}, v{d}, s{sT1}")
    I(f"v_and_b32 v{b}, 2, v{r}")
    I(f"v_or_b32 v{b}, v{b}, v{sb}")
    I(f"v_lshl_add_u32 v{b}, v{b}, 5, v{sw}")
    I(f"v_lshl_add_u32 v{b}, v{row}, 7, v{b}")
    I(f"s_lshl_b32 s{sT0}, s{sI}, 11")
    if g: I(f"s_add_u32 s{sT0}, s{sT0}, 64")
    I(f"v_xor_b32 v{vAA[0][0]}, s{sT0}, v{b}")
    I(f"v_and_b32 v{a}, 31, v{vLN}")
    I(f"v_bfe_u32 v{b}, v{vLN}, 1, 3")
    I(f"v_xor_b32 v{b}, v{b}, v{h}")
    I(f"v_lshlrev_b32 v{b}, 4, v{b}")
    I(f"v_lshl_add_u32 v{b}, v{a}, 7, v{b}")
    I(f"s_mul_i32 s{sT0}, s{sI}, {4096 + 32}")
    I(f"v_xor_b32 v{vAX[0][0]}, s{sT0}, v{b}")
    for p in range(1, 4):
        I(f"v_xor_b32 v{vAX[0][p]}, {p*32}, v{vAX[0][0]}")
        I(f"v_xor_b32 v{vAA[0][p]}, {p*2048}, v{vAA[0][0]}")
    for p in range(4):
        I(f"v_add_u32 v{vAX[1][p]}, {t.XB[1]}, v{vAX[0][p]}")
        I(f"v_add_u32 v{vAA[1][p]}, {t.WB[1]}, v{vAA[0][p]}")
        if t.XB[0]: I(f"v_add_u32 v{vAX[0][p]}, {t.XB[0]}, v{vAX[0][p]}")
        I(f"v_add_u32 v{vAA[0][p]}, {t.WB[0]}, v{vAA[0][p]}")
    I(f"s_lshl_b32 s{sT0}, s{sI}, 9")
    I(f"s_add_u32 s{sT0}, s{sT0}, {t.ST}")
    I(f"v_lshlrev_b32 v{b}, 4, v{a}")
    I(f"v_add_u32 v{vSTR}, s{sT0}, v{b}")
    I(f"v_lshl_add_u32 v{vSTW}, v{h}, 2, v{vSTR}")
    I(f"v_lshl_add_u32 v{vSTW}, v{sb}, 3, v{vSTW}")
    if g: I(f"v_xor_b32 v{vSTW}, 8, v{vSTW}")
    if typ == 0:
        I(f"v_mul_u32_u24 v{b}, 96, v{a}")
        I(f"v_and_b32 v{c}, 4, v{a}")
        I(f"v_lshlrev_b32 v{c}, 2, v{c}")
        I(f"s_mul_i32 s{sT0}, s{sI}, 3072")
        I(f"s_add_u32 s{sT0}, s{sT0}, {PH + 2*g*12288}")
        I(f"v_add3_u32 v{b}, v{b}, v{c}, s{sT0}")
        I(f"v_lshl_add_u32 v{vPH}, v{h}, 5, v{b}")
        I(f"v_lshlrev_b32 v{c}, 4, v{h}")
        I(f"v_xor_b32 v{vKB}, v{b}, v{c}")
    if CFG.get("po"): pdm(CFG["po"][typ][1])
    I(f"v_mul_u32_u24 v{b}, {t.RB}, v{row}")
    I(f"v_mul_u32_u24 v{c}, {t.UP}, v{sb}")
    I(f"v_add3_u32 v{b}, v{b}, v{c}, v{sw}")
    for p in range(4):
        I(f"s_xor_b32 s{sT0}, s{sI}, {p}")
        I(f"s_mul_i32 s{sT0}, s{sT0}, {16*t.RB}")
        I(f"v_add_u32 v{vAG[p]}, s{sT0}, v{b}")
    I(f"s_mul_i32 s{sMG}, s{sI}, {16*t.RB}")
    if g: I(f"s_add_u32 s{sMG}, s{sMG}, {t.UP}")
    if typ == 0:
        I(f"s_mul_i32 s{sT2}, s{sA}, 5")
        I(f"s_min_u32 s{sT2}, s{sT2}, 33")
        I(f"s_add_u32 s{sT2}, s{sT2}, 48")
    else: I(f"s_mul_i32 s{sT2}, s{sA}, 6")
    I(f"s_mul_i32 s{sT0}, s{sI}, {16*2752}")
    I(f"s_lshl_b32 s{sT1}, s{sT2}, 5")
    I(f"s_add_u32 s{sT0}, s{sT0}, s{sT1}")
    I(f"s_mov_b32 s{sT1}, {2752 - 16*t.NP}")
    I(f"v_lshlrev_b32 v{a}, 4, v{vLN}")
    I(f"v_add_u32 v{vM16}, {MB}, v{a}")
    I(f"v_add_u32 v{a}, s{sT0}, v{a}")
    I(f"v_mul_u32_u24 v{b}, {t.MUL}, v{vLN}")
    for j in range(3):
        if j: I(f"v_add_u32 v{b}, {64*t.MUL}, v{b}")
        I(f"v_lshrrev_b32 v{c}, 11, v{b}")
        I(f"v_mad_u32_u24 v{vGO[j]}, v{c}, s{sT1}, v{a}")
        if typ == 0 and CFG["dup"]:
            if j == 0:
                I(f"s_cmp_eq_u32 s{sA}, 7")
                I(f"s_cselect_b32 s{sT3}, {4*t.MUL}, 0")
            I(f"v_and_b32 v{c}, 0x7ff, v{b}")
            I(f"v_cmp_gt_u32 vcc, s{sT3}, v{c}")
            I(f"v_cndmask_b32 v{vGO[j]}, v{vGO[j]}, 2.0, vcc")
    I(f"v_and_b32 v{a}, 15, v{vLN}")
    I(f"v_lshlrev_b32 v{b}, 2, v{j4}")
    I(f"v_mov_b32 v{c}, 0x3f803f80")
    I(f"v_cmp_eq_u32 vcc, v{a}, v{b}")
    for k in range(4): I(f"v_cndmask_b32 v{CP+k}, 0, v{c}, vcc")
    I(f"v_xor_b32 v{b}, s{sI4}, v{b}")
    I(f"v_or_b32 v{vCW}, v{b}, v{vM16}")
    I(f"s_lshl2_add_u32 s{sT0}, s{sT}, s{sI}")
    I(f"s_mul_i32 s{sT0}, s{sT0}, 118")
    I(f"s_add_u32 s{sT1}, s{sT0}, s{sT2}")
    I(f"s_add_u32 s{sT1}, s{sT1}, {32 + (3*g if typ else 2*g)}")
    I(f"s_lshl_b32 s{sHF}, s{sT1}, 10")
    I(f"s_lshr_b32 s{sT1}, s{sW}, 1")
    I(f"s_lshl2_add_u32 s{sT1}, s{sA}, s{sT1}")
    I(f"s_mul_i32 s{sT1}, s{sT1}, 17408")
    I(f"s_and_b32 s{sT2}, s{sW}, 1")
    if typ == 0:
        I(f"s_lshl4_add_u32 s{sT3}, s{sT2}, s{sT}")
        I(f"s_lshl_b32 s{sT3}, s{sT3}, 9")
        I(f"s_add_u32 s{sK1}, s{sT1}, s{sT3}")
        I(f"s_add_u32 s{sK1}, s{sK1}, {KVP_OFF - MB//2}")
        I(f"s_lshl1_add_u32 s{sT3}, s{sT}, s{sT2}")
        I(f"s_lshl_b32 s{sT3}, s{sT3}, 5")
        I(f"s_add_u32 s{sK2}, s{sT1}, s{sT3}")
        I(f"s_add_u32 s{sK2}, s{sK2}, {KVP_OFF + 16384 - MB//32}")
        I(f"s_lshl_b32 s{sEX}, s{sI}, 11")
        I(f"s_sub_u32 s{sEX}, s{sEX}, {MB - 3*t.SL}")
    else:
        I(f"s_add_u32 s{sK2}, s{sT1}, {KVP_OFF + 16384 - MB}")
        I(f"s_lshl_b32 s{sT2}, s{sT2}, 13")
        I(f"s_add_u32 s{sK1}, s{sT1}, s{sT2}")
        I(f"s_add_u32 s{sK1}, s{sK1}, {KVP_OFF - MB}")
        I(f"s_lshl2_add_u32 s{sT0}, s{sA}, s{sT0}")
        I(f"s_add_u32 s{sT0}, s{sT0}, {2*g}")
        I(f"s_lshl_b32 s{sEX}, s{sT0}, 10")
    I(f"v_lshlrev_b32 v{a}, 2, v{vLN}")
    I(f"s_lshl_b32 s{sT0}, s{sW}, 8")
    I(f"s_lshl_b32 s{sT1}, s{sA}, 11")
    I(f"s_add_u32 s{sT1}, s{sT1}, s{sT0}")
    I(f"s_add_u32 s{sT0}, s{sT0}, {t.WPH}")
    I(f"v_add_u32 v{vWPA}, s{sT0}, v{a}")
    I(f"s_lshr_b32 s{sT0}, s{sI}, 1")
    I(f"s_lshl1_add_u32 s{sT0}, s{sT}, s{sT0}")
    I(f"s_lshl3_add_u32 s{sT0}, s{sT0}, s{sA}")
    I(f"s_lshl_b32 s{sT0}, s{sT0}, 7")
    I(f"s_and_b32 s{sT2}, s{sI}, 1")
    I(f"s_lshl2_add_u32 s{sT0}, s{sT2}, s{sT0}")
    I(f"s_add_u32 s{sFL}, s{sT0}, {FLG + 16*typ + 8*g}")
    if typ == 0 and g == 0:
        I(f"s_cmp_eq_u32 s{sA}, 7")
        I(f"s_cselect_b32 s{sA}, 2.0, s{sHF}")
    I(f"v_mov_b32 v{b}, 0")
    if typ == 1:
        for x in p2addr(t, vLN, c, d): I(x)
    I(f"v_lshlrev_b32 v{vTCH}, 7, v{vLN}")
    if typ == 0:
        I(f"v_mov_b32 v{h}, -1")
        I(f"v_mov_b32 v{h+1}, -1")
        I(f"v_lshrrev_b32 v{c}, 1, v{vM16}")
        I(f"v_lshrrev_b32 v{d}, 5, v{vM16}")
    pstamp(P, 4)
    I("s_waitcnt lgkmcnt(0)")
    def dmy(js):
        for j in js:
            if j < 3 or typ: I(f"buffer_store_dwordx4 {v(CP,4)}, v{vM16}, {s(SWS,4)}, s{(sA if (typ, g) == (0, 0) and j < 2 else sHF) if j < 3 else sEX} offen offset:{(j%3)*1024}{CFG.get('dmm', '')}")
    if CFG["th"] & 64: dmy(CFG["dj"][0])
    if CFG.get("po"):
        I(f"buffer_load_dword v{vWPV}, v{a}, {s(SWP,4)}, s{sT1} offen")
        pdm(CFG["po"][typ][2])
    else:
        for x in dma_x(t, 1):
            for y in x: emit(P, y)
        I(f"buffer_load_dword v{vWPV}, v{a}, {s(SWP,4)}, s{sT1} offen")
        for x in stream_list(t, g)[1:CFG["pro"]]:
            for z in x:
                for y in z: emit(P, y)
    if CFG["th"] & 64: dmy(CFG["dj"][1])
    if CFG["t3"] == 2:
        I(f"s_and_b32 s{sT0}, s2, 0xf8")
        I(f"s_add_u32 s{sT0}, s{sT0}, s{sW}")
        I(f"s_mul_i32 s{sT0}, s{sT0}, {2*3072}")
        I("s_mov_b32 exec_hi, 0xffff")
        I(f"buffer_load_dword v{75 if typ else 26}, v{vTCH}, {s(SWQ,4)}, s{sT0} offen")
    if CFG["t3"] == 3:
        I(f"s_and_b32 s{sT0}, s2, 0xf8")
        I(f"s_add_u32 s{sT0}, s{sT0}, s{sW}")
        I(f"s_mul_i32 s{sT0}, s{sT0}, {2*3072}")
        I("s_mov_b32 exec_lo, 0xff00ffff")
        I("s_mov_b32 exec_hi, 0xff")
        I(f"buffer_load_dword v{75 if typ else 26}, v{vTCH}, {s(SWQ,4)}, s{sT0} offen")
    if CFG["t3"] in (1, 4):
        I(f"s_lshr_b32 s{sT0}, s2, 3")
        I(f"s_lshl2_add_u32 s{sT0}, s{sT0}, s{sI}")
        I(f"s_mul_i32 s{sT0}, s{sT0}, {4*3072}")
        I(f"v_lshlrev_b32 v{a}, 3, v{vTCH}")
        I("s_mov_b64 exec, 0xfff")
        if g or CFG["t3"] == 4: I(f"buffer_load_dword v{75 if typ else 26}, v{a}, {s(SWQ,4)}, s{sT0} offen offset:{384 if g else 896}")
    I("s_mov_b64 exec, 1")
    I(f"buffer_store_dword v{b}, off, {s(SWS,4)}, s{sFL} sc1")
    I("s_mov_b64 exec, -1")
    if typ == 0:
        I(f"buffer_store_dwordx2 {v(h,2)}, v{c}, {s(SWS,4)}, s{sK1} offen sc1")
        I("s_mov_b32 exec_lo, 0x10001")
        I("s_mov_b32 exec_hi, 0x10001")
        I(f"buffer_store_dwordx2 {v(h,2)}, v{d}, {s(SWS,4)}, s{sK2} offen sc1")
        I("s_mov_b64 exec, -1")
    for r, m in zip(MS(g), (0xaaaaaaaa, 0xcccccccc, 0xff00ff00, 0xffff0000, 0x0f0f0f0f)):
        I(f"s_mov_b32 s{r}, {m:#x}")
        I(f"s_mov_b32 s{r+1}, {(m if m != 0x0f0f0f0f else 0xf0f0f0f0):#x}")
    pstamp(P, 5)

def P2R(typ): return (28, 29, 30, 31, 26) if typ else (27, 31, 26, 28, 29)
def p2addr(t, ln, a, b):
    vWa, vRD0, vRD1 = P2R(t.typ)[:3]
    base = t.RG[5] if t.typ else PH
    if CFG["rb"] == 3:
        return [f"v_and_b32 v{a}, 7, v{ln}", f"v_lshlrev_b32 v{a}, 4, v{a}", f"v_and_b32 v{b}, 16, v{ln}", f"v_lshlrev_b32 v{b}, 1, v{b}", f"v_xor_b32 v{a}, v{a}, v{b}",
            f"v_lshrrev_b32 v{b}, 3, v{ln}", f"v_lshl_add_u32 v{vWa}, v{b}, 10, v{a}",
            f"v_and_b32 v{a}, 16, v{ln}", f"v_and_b32 v{b}, 1, v{ln}", f"v_lshl_add_u32 v{a}, v{b}, 3, v{a}", f"v_and_b32 v{b}, 14, v{ln}", f"v_lshl_add_u32 v{a}, v{b}, 5, v{a}",
            f"v_and_b32 v{b}, 8, v{ln}", f"v_lshl_add_u32 v{a}, v{b}, 2, v{a}", f"v_lshrrev_b32 v{b}, 5, v{ln}", f"v_lshl_add_u32 v{a}, v{b}, 10, v{a}",
            f"v_lshl_add_u32 v{a}, s{sMW}, 1, v{a}", f"v_xor_b32 v{b}, 32, v{a}", f"v_add_u32 v{vRD0}, {base}, v{a}", f"v_add_u32 v{vRD1}, {base}, v{b}"]
    return [f"v_and_b32 v{a}, 7, v{ln}", f"v_lshlrev_b32 v{a}, 4, v{a}", f"v_and_b32 v{b}, 16, v{ln}", f"v_lshlrev_b32 v{b}, 2, v{b}", f"v_xor_b32 v{a}, v{a}, v{b}",
            f"v_lshrrev_b32 v{b}, 3, v{ln}", f"v_lshl_add_u32 v{vWa}, v{b}, 10, v{a}",
            ] + ([f"v_and_b32 v{a}, 3, v{ln}"] if CFG.get("rb") else [f"v_bfe_u32 v{a}, v{ln}, 1, 1", f"v_and_b32 v{b}, 1, v{ln}", f"v_lshl_or_b32 v{a}, v{b}, 1, v{a}"]) + [f"v_lshlrev_b32 v{a}, 3, v{a}",
            f"v_bfe_u32 v{b}, v{ln}, 4, 1", f"v_lshl_add_u32 v{a}, v{b}, 5, v{a}", f"v_and_b32 v{b}, 8, v{ln}", f"v_lshl_add_u32 v{a}, v{b}, 3, v{a}",
            f"v_bfe_u32 v{b}, v{ln}, 2, 2", f"v_lshl_add_u32 v{a}, v{b}, 7, v{a}", f"v_lshrrev_b32 v{b}, 5, v{ln}", f"v_lshl_add_u32 v{a}, v{b}, 10, v{a}",
            f"v_lshl_add_u32 v{a}, s{sMW}, 1, v{a}", f"v_xor_b32 v{b}, 64, v{a}", f"v_add_u32 v{vRD0}, {base}, v{a}", f"v_add_u32 v{vRD1}, {base}, v{b}"]
def MS(g): return [0, SWP, SWP + 2, (SWG if g else SWU), (SWG if g else SWU) + 2]
def softmax(W, O, m=vMX, sm=vSM):
    o = [f"v_max_f32 v{m}, v{W}, v{W+1}", f"v_max_f32 v{sm}, v{W+2}, v{W+3}"]
    for k in range(4, 16, 4):
        o.append(f"v_max3_f32 v{m}, v{m}, v{W+k}, v{W+k+1}")
        o.append(f"v_max3_f32 v{sm}, v{sm}, v{W+k+2}, v{W+k+3}")
    o.append(f"v_max_f32 v{m}, v{m}, v{sm}")
    o.append(f"v_mul_f32 v{m}, v{m}, v{vC1}")
    for k in range(16): o.append(f"v_fma_f32 v{W+k}, v{W+k}, -v{vC1}, v{m}")
    for k in range(16):
        o.append(f"v_exp_f32 v{W+k}, v{W+k}")
        if k == 2: o.append(f"v_add_f32 v{sm}, v{W}, v{W+1}")
        if k > 2: o.append(f"v_add_f32 v{sm}, v{sm}, v{W+k-1}")
    o.append(f"v_add_f32 v{sm}, v{sm}, v{W+15}")
    o.append(f"v_rcp_f32 v{sm}, v{sm}")
    for k in range(8):
        o.append(f"v_mul_f32 v{W+2*k}, v{W+2*k}, v{sm}")
        o.append(f"v_mul_f32 v{W+2*k+1}, v{W+2*k+1}, v{sm}")
        o.append(f"v_cvt_pk_bf16_f32 v{O+k}, v{W+2*k}, v{W+2*k+1}")
    return o

def glu(G, U, n):
    o = []
    for k in range(n): o.append(f"v_mul_f32 v{G+k}, v{G+k}, v{vC1}")
    for k in range(n): o.append(f"v_exp_f32 v{G+k}, v{G+k}")
    for k in range(n): o.append(f"v_fma_f32 v{G+k}, v{G+k}, v{vSTD}, v{vSTD}")
    for k in range(n): o.append(f"v_rcp_f32 v{G+k}, v{G+k}")
    for k in range(n): o.append(f"v_mul_f32 v{G+k}, v{G+k}, v{U+k}")
    for k in range(n // 2): o.append(f"v_cvt_pk_bf16_f32 v{G+k}, v{G+2*k}, v{G+2*k+1}")
    return o

def publish(c, t0, t1, addr, blk, tag):
    return [f"v_and_b32 v{t0}, s{sHI}, v{c}", f"v_sub_f32 v{t1}, v{c}, v{t0}", f"v_cvt_pk_bf16_f32 v{t0}, v{t0}, v{t1}",
            f"ds_write_b32 v{addr}, v{t0} offset:{CSP - MB + blk*1024} #{tag}"]

def stream(P, typ, g, name):
    global vST, vSQ, vU, vSTW, vSTR, vCW
    I = P.I; t = T(typ); D = 3; sn = f"{name}_{typ}{g}"
    o_ = AV if typ else 83
    vST, vSQ, vU, vSTW, vSTR = o_, o_ + 1, [o_ + 2, o_ + 3, o_ + 4, o_ + 5], o_ + 6, o_ + 7
    vCW = AV + 8 if typ else 94
    PB = CFG["qpub"] if typ else "v1"
    if g and CFG.get("pri"): I(f"s_setprio {CFG['pri']}")
    setup(P, t, g)
    S = Sched(D)
    F = "v[32:35]"
    def mm(acc, x, first): return lambda f: f"v_mfma_f32_32x32x16_bf16 {v(acc,16)}, {f}, {v(x,4)}, {'0' if first else v(acc,16)}"
    def cm(c, first): return lambda f: f"v_mfma_f32_16x16x32_bf16 {v(c,4)}, {v(CP,4)}, {f}, {'0' if first else v(c,4)}"
    def tr(ad, im, sec): return [("tr", ad, im), ("tr2", ad, im + sec)]
    main = []; first = {}
    P1 = {}; SQ = {}
    for st in range(8):
        hi, so = t.sp(t.wp(st), t.WB)
        for p in range(4):
            it = Item(mm(AK, XR(st, p), st == 0 and p == 0), tr(vAA[hi][p], so, 512), cm(CD[0], st == 0) if p == 0 else None, name=f"{st}p{p}")
            if p == 0:
                it.bar = st; first[st] = it
                xh, xo = t.sp(t.xp(st), t.XB)
                if st < 2: it.pre = [f"ds_read_b128 {v(XR(st,q),4)}, v{vAX[xh][q]} offset:{xo}" for q in range(4)]
            main.append(it); P1[st, p, 0] = it
        for xs in CFG["sq"][st]:
            for q in (2*g, 2*g+1):
                SQ[xs, q] = Item((lambda x, fi: lambda f: f"v_mfma_f32_32x32x16_bf16 {v(GA[2],16)}, {v(x,4)}, {v(x,4)}, {'0' if fi else v(GA[2],16)}")(XR(xs, q), not SQ), name=f"sq{xs}{q}")
                if xs == 7: main.insert(main.index(P1[st, CFG["sq7"], 0]), SQ[xs, q])
                else: main.append(SQ[xs, q])
    V = {}
    if typ == 0:
        for c in range(8):
            hi, so = t.sp(t.vp(c), t.WB)
            for p in range(4): V[c, p] = Item(mm(AV, XR(c, p), c == 0 and p == 0), tr(vAA[hi][p], so, 512), cm(CD[1], False) if p == 0 else None, name=f"v{c}p{p}")
        for c in (1, 3, 6):
            it = V[c, 0] if c > 1 else V[CFG["v1"]]
            it.bar = f"v{c}"; first[f"v{c}"] = it
        main += [V[c, p] for c in range(6) for p in range(4)] + [V[6,0], V[7,0]] + [V[c, p] for c in (6, 7) for p in (1, 2, 3)]
    nb = 3
    blk = [3*g, 3*g+1, 3*g+2] if typ else [3*g, 3*g+1, 2]
    def gi(st, p, b):
        o = t.g(st)
        if o >= 3 * t.SL: o -= 3 * t.SL
        fst = st == 8 and (p == 0 or (typ == 0 and b == 2 and p == 2*g))
        sm = cm(CD[b], st == 8) if p == 0 else None
        return Item(mm(GA[b], XR(st-8, p), fst), tr(vAG[p], o + blk[b]*32, 4*t.RB), sm, name=f"{st}p{p}b{b}")
    def has(p, b): return typ == 1 or b < 2 or (p >> 1) == g
    G = {}
    for st in range(8, 16):
        for p in range(4):
            for b in range(nb):
                if has(p, b): G[st, p, b] = gi(st, p, b)
    for st in range(8, 13):
        l = [G[st, p, b] for p in range(4) for b in range(nb) if has(p, b)]
        l[0].bar = st; first[st] = l[0]; main += l
    first[PB].pre = [f"ds_read_b128 {v(vMU,4)}, v{vSTR}"]
    def corr(acc, cb, nbar, nm):
        return Item(mm(acc, vMU, False), [("b128", vM16, CSP - MB + cb*1024)], needbar=nbar, name=nm)
    C = [corr(GA[b], blk[b], "cs", f"corr{b}") for b in range(nb)]
    rest = lambda b, sts: [G[st, p, b] for st in sts for p in (1, 2, 3)]
    if typ == 0:
        sh = lambda st: [G[st, 2*g, 2], G[st, 2*g+1, 2]]
        t13 = [G[13,0,0], G[13,0,1]] + sh(13) + rest(0, [13])
        t15 = [G[14,0,0], G[14,0,1]] + sh(14) + sh(15) + [G[15,0,0], G[15,0,1]]
        r0 = rest(0, [14, 15]); r1 = rest(1, [13, 14, 15])
        tail = r0[:5] + [C[2]] + r0[5:] + [C[0]] + r1 + [C[1]]
        C[2].bar = "cs"
    else:
        t13 = [G[13,0,b] for b in range(3)] + rest(0, [13])
        t15 = [G[st,0,b] for st in (14, 15) for b in range(3)]
        r0 = rest(0, [14, 15])
        tail = r0[:5] + [C[0]] + r0[5:] + rest(1, [13, 14, 15]) + [C[1]] + rest(2, [13, 14, 15]) + [C[2]]
        C[0].bar = "cs"
    t13[0].bar = 13; t15[0].bar = 15; first[13] = t13[0]; first[15] = t15[0]
    main += t13 + t15 + tail
    barwait = {0: ["x0", "w0"], 1: ["x1", "w1", "x2"], 7: ["w7"], 15: ["w14", "w15"], "cs": []}
    for st in range(2, 7): barwait[st] = [f"w{st}", f"x{st+1}"]
    for st in range(8, 14): barwait[st] = [f"w{st}"]
    barlg = {PB: ["pub"], "cs": ["cs"]}
    BO = list(range(14))
    if typ == 0:
        barwait[7] = ["w7", "v0"]; barwait["v1"] = ["v1", "v2"]; barwait["v3"] = ["v3", "v4", "v5"]; barwait["v6"] = ["v6", "v7"]
        barlg[8] = ["pubv"]
        BO = list(range(8)) + ["v1", "v3", "v6"] + list(range(8, 14))
    sl = stream_list(t, g); pro = CFG["pro"]
    dm = {b: [] for b in BO[:-1]}
    if CFG.get("po"):
        pro = 14
        for b, l in enumerate(CFG["po"][typ][3:]):
            for nm in l.split(): dm[b] += (dma_x if nm[0] == "x" else dma_w)(t, int(nm[1]))
    if typ == 0:
        for k in range(pro, 14): dm[max(0, (k - 3) // 2)] += sl[k]
        for b, l in CFG["vdm"].items():
            for c in l: dm[b] += dma_v(t, c)
        dm[CFG["g8"]] += dma_g(t, g, 8)
        dm["v3"] += dma_g(t, g, 9); dm["v6"] += dma_g(t, g, 10)
        for b in range(8, 13): dm[b] = dma_g(t, g, b + 3)
    else:
        ql = CFG.get("qlead", 2)
        for k in range(pro, 14): dm[max(0, (k + 1 - 2*ql) // 2)] += sl[k]
        if ql == 3:
            for b in range(5, 13): dm[b] += dma_g(t, g, b + 3)
        else:
            g8 = dma_g(t, g, 8); g9 = dma_g(t, g, 9); g10 = dma_g(t, g, 10)
            dm[5] += g8[:2]; dm[6] = g8[2:] + g9[:2]; dm[7] = g9[2:] + g10[:2]; dm[8] = g10[2:] + dma_g(t, g, 11)
            for b in range(9, 13): dm[b] += dma_g(t, g, b + 3)
    if CFG["b0end"]: dm[0] = [sum(dm[0], [])] if dm[0] else []
    nxt = lambda b: BO[BO.index(b) + 1]
    heavy = []
    def hok(n):
        if not CFG["hstag"]: return True
        if n % 2 != g or n + 1 in S.bs.values(): return False
        return not any(dpos(b, j, len(dm[b]), gg)() == n for b in dm for j in range(len(dm[b])) for gg in (0, 1))
    def dpos(b, j, k, g=g):
        def f():
            L = S.bs[nxt(b)] - S.bs[b]; o = S.bs[b]
            if b == 0 and CFG['b0end']: return o + L - 1
            if b == 0: return o + j if typ else o + min(L - 2, 2 * j + g) if k <= 4 else o + j
            if 2 * k <= L: return o + min(L - 2, int((j + 0.5 * g) * L / k + 0.01))
            return o + min(L - 1, int((j + 0.5 * g) * L / k + 0.01))
        return f
    for b in BO[:-1]:
        for j, x in enumerate(dm[b]): heavy.append(S.add(x, after=b, before=nxt(b), kind="misc", lo=dpos(b, j, len(dm[b])) if CFG["pace" if BO.index(b) < (6 if typ else 8) else "paceg"] or b == 0 else None))
    if g == 1:
        S.add(f"v_mov_b32 v95, s{sXV}", after=2)
        S.add([f"s_cmp_eq_u32 s{sI}, 0", "s_cselect_b32 exec_lo, 1, 0", "s_mov_b32 exec_hi, 0", f"s_and_b32 s{sT3}, s2, 7", f"s_lshl_b32 s{sT3}, s{sT3}, 5",
               f"buffer_atomic_add v95, off, {s(SDB,4)}, s{sT3} sc1", "s_mov_b64 exec, -1"], after=CFG["atm"][typ], lo=(first[7], CFG["atm"][2+typ]), before=8)
    for p in range(4):
        bs = [b for b in range(nb) if has(p, b)]
        S.add(f"v_add_u32 v{vAG[p]}, {3*t.SL}, v{vAG[p]}", lo=(G[10,p,bs[-1]], -D), hi=(G[11,p,0], -D-1))
        nx = G[13,p,0] if not (typ == 0 and p and (p >> 1) == g) else G[13,p,2]
        S.add(f"v_subrev_u32 v{vAG[p]}, {3*t.SL}, v{vAG[p]}", lo=(G[12,p,bs[-1]], -D), hi=(nx, -D-1))
    ns = CFG["ns"][typ]; u = 0; fs = True
    S.node(P1[0,0,0], cm(CD[0], True)(F))
    sp = [2*g, 2*g+1]
    for st in range(8):
        if 1 <= st < 7:
            hi, so = t.sp(t.xp(st + 1), t.XB)
            for q in sp + [x for x in range(4) if x not in sp]:
                S.add(f"ds_read_b128 {v(XR(st+1,q),4)}, v{vAX[hi][q]} offset:{so}", after=st, lo=(first[st], (-2 if st > 1 else 0) if typ else -3), hi=(P1[st+1,q,0], -2), before=None if typ else st + 1)
        if st == 2:
            S.add(f"ds_write_b32 v{vWPA}, v{vWPV}", after=2)
            S.add(f"v_xor_b32 v{vWPV}, 0x80008000, v{vWPV}", after=2)
            S.add(f"ds_write_b32 v{vWPA}, v{vWPV} offset:2048", after=2, before=7)
    for st in range(8):
        for n, q in enumerate(sp):
            if n < ns[st]:
                S.add(cm(CD[2], fs)(v(XR(st, q), 4)), lo=(first[st], 1) if st < 2 else None); fs = False
    if typ == 1:
        S.add(f"v_mov_b32 v{vST}, v{CD[2]}", hi=(first[8], -1))
        S.node(P1[7,0,0], cm(CD[0], False)(F))
        S.adds(publish(CD[0], AV+9, AV+10, vCW, g, "pub"), hi=(first[8], -1))
    for (xs, q), it in SQ.items(): S.node(it, it.mf(F))
    Q_ = GA[2]; ms = MS(g)
    for lv, (stp, dd) in enumerate(((2, 1), (4, 2), (8, 4), (16, 8))):
        S.adds([f"v_cndmask_b32 v{Q_+k}, v{Q_+k}, v{Q_+k+dd}, {s(ms[lv],2)}" for k in range(0, 16, stp)])
    S.add(f"v_cndmask_b32 v{vSQ}, 0, v{Q_}, {s(ms[4],2)}")
    if typ == 0:
        S.add(f"v_mov_b32 v{vST}, v{CD[2]}")
        S.node(P1[7,0,0], cm(CD[0], False)(F))
        S.adds(publish(CD[0], 85, 86, vCW, g, "pub"), before=PB)
    else: S.node(G[8,0,2], mm(GA[2], XR(0,0), True)(F))
    S.add(f"v_permlane32_swap_b32 v{vST}, v{vSQ}")
    S.adds([f"v_add_f32 v{vST}, v{vST}, v{vSQ}", f"ds_write_b32 v{vSTW}, v{vST} #pub"], before=PB)
    sWQ2, sWO2, sWK2, sWZ2 = range(SWG if g else SWU, (SWG if g else SWU) + 4)
    J1, J2 = (75, 77) if typ else (26, 24)
    if CFG["t3"] == 3:
        S.add([f"s_and_b32 s{sT0}, s2, 0xf8", f"s_add_u32 s{sT0}, s{sT0}, s{sW}", f"s_mul_i32 s{sT0}, s{sT0}, {2*3072}", "s_mov_b32 exec_lo, 0xff0000", "s_mov_b32 exec_hi, 0xff00",
               f"buffer_load_dword v{J2}, v{vTCH}, {s(SWQ,4)}, s{sT0} offen", "s_mov_b64 exec, -1"], after=CFG["t3b"], before=CFG["t3b"] + 1)
    S.add([f"s_mov_b32 s{SOUT}, s{SWO+2}", f"s_mov_b32 s{SOUT+1}, s{SWO+3}", f"s_mov_b32 s{SOUT+2}, 2097152", f"s_mov_b32 s{SWO+2}, {512*1024}", f"s_mov_b32 s{SWO+3}, 0x20000"])
    if CFG["th"] & 1:
        S.add([f"s_add_u32 s{sT1}, s{sHF}, {MB}", "s_mov_b64 exec, 0xffffff", f"buffer_load_dword v{J1}, v{vTCH}, {s(SWS,4)}, s{sT1} offen sc1", "s_mov_b64 exec, -1"], after=CFG["thb"], before=8)
        if typ: S.add([f"s_add_u32 s{sT1}, s{sEX}, {MB}", "s_mov_b64 exec, 0xffff", f"buffer_load_dword v76, v{vTCH}, {s(SWS,4)}, s{sT1} offen sc1", "s_mov_b64 exec, -1"], after=CFG["thb"], before=8)
    if CFG["th"] & 4:
        S.add([f"s_add_u32 s{sT1}, s{sHF}, {MB}", "s_mov_b64 exec, 0xffffff", f"buffer_store_dword v{vTCH}, v{vTCH}, {s(SWS,4)}, s{sT1} offen", "s_mov_b64 exec, -1"], after=CFG["thb"], before=8)
        if typ: S.add([f"s_add_u32 s{sT1}, s{sEX}, {MB}", "s_mov_b64 exec, 0xffff", f"buffer_store_dword v{vTCH}, v{vTCH}, {s(SWS,4)}, s{sT1} offen", "s_mov_b64 exec, -1"], after=CFG["thb"], before=8)
    if CFG["th"] & 32:
        z_ = (typ, g) == (0, 0); dm_ = CFG.get('dmm', '')
        S.add([f"v_lshrrev_b32 v{J1}, 1, v{vTCH}", f"v_add_u32 v{J1}, {MB}, v{J1}", f"s_mov_b32 exec_hi, {0 if z_ else 0xffff}", f"buffer_store_dword v{J1}, v{J1}, {s(SWS,4)}, s{sA if z_ else sHF} offen{dm_}"] +
              (["s_mov_b32 exec_hi, 0", f"buffer_store_dword v{J1}, v{J1}, {s(SWS,4)}, s{sEX} offen{dm_}"] if typ else []) + ["s_mov_b64 exec, -1"], after=CFG["thb"], before=8)
    NV = CFG.get("nv")
    NVP = NV == 1 or "pz" in CFG or (NV == 3 and typ) or (NV == 4 and not typ)
    def dummies():
        PZ = (AV if typ else AK + 12) if NVP else CP
        if NVP: S.adds([f"v_mov_b32 v{PZ+k}, {x}" for k, x in enumerate(CFG.get("pz", (0, 0, 0, 0))) if x is not None])
        for j, b in enumerate(CFG["thl"][typ]):
            if b is None: continue
            S.add(f"buffer_store_dwordx4 {v(PZ,4)}, v{vM16}, {s(SWS,4)}, s{(sA if (typ, g) == (0, 0) and j < 2 else sHF) if j < 3 else sEX} offen offset:{(j%3)*1024}{CFG.get('dmm', '')} #dmy", after=b, lo=(first[b], CFG["tho"] + 2*g), kind="misc")
    if CFG["th"] & 8 and (typ or not NVP): dummies()
    if CFG["th"] & 2 and g == 0:
        S.add([f"s_and_b32 s{sT0}, s2, 7", f"s_lshr_b32 s{sT1}, s2, 6", f"s_lshl2_add_u32 s{sT0}, s{sT0}, s{sT1}", f"s_mul_i32 s{sT1}, s{sT0}, {236*1024}", f"s_add_u32 s{sT1}, s{sT1}, {MB}",
               f"s_lshl_b32 s{sT0}, s{sI}, 16", f"s_add_u32 s{sT1}, s{sT1}, s{sT0}",
               f"v_lshlrev_b32 v{J2}, 5, v{vTCH}", "s_mov_b64 exec, 0xffff", f"buffer_load_dword v{J2}, v{J2}, {s(SWS,4)}, s{sT1} offen sc1", "s_mov_b64 exec, -1"], after=CFG["thb"], before=8)
    if typ == 1 and "notouch" not in k1.KN:
        S.add([f"s_lshl3_add_u32 s{sT0}, s2, s{sW}", f"s_sub_u32 s{sT0}, s{sT0}, 1024", f"s_lshl_b32 s{sT1}, s{sT0}, 9", "s_mov_b64 exec, 15",
               f"buffer_load_dword v26, v{vTCH}, {s(SWO,4)}, s{sT1} offen", "s_mov_b64 exec, -1"], after=CFG["tch"], before=8)
        S.add([f"s_mul_i32 s{sT1}, s{sT0}, 1408", "s_mov_b64 exec, 0x7ff",
               f"buffer_load_dword v31, v{vTCH}, {s(SWD,4)}, s{sT1} offen", "s_mov_b64 exec, -1"], after=CFG["tch"], before=8)
    if CFG["tx"][typ] is not None:
        J3, J4, vT2 = (78, 79, 77) if typ else (91, 92, vTCH)
        S.add(f"v_lshlrev_b32 v{vT2}, 3, v{vTCH}", before=8)
        kw = dict(after=CFG["tx"][typ], lo=(first[CFG["tx"][typ]], CFG["tx"][2] + 2*g))
        S.add([f"s_and_b32 s{sT0}, s2, 0x78", f"s_add_u32 s{sT0}, s{sT0}, s{sW}", f"s_mul_i32 s{sT1}, s{sT0}, {11*1024}", "s_mov_b64 exec, 0x7ff",
               f"buffer_load_dword v{J4}, v{vT2}, {s(SWD,4)}, s{sT1} offen offset:384", f"s_lshl_b32 s{sT1}, s{sT0}, 12", "s_mov_b64 exec, 15",
               f"buffer_load_dword v{J3}, v{vT2}, {s(SWO,4)}, s{sT1} offen offset:384", "s_mov_b64 exec, -1"], **kw)
    WX = CFG.get("wx"); sW2 = sWZ2 if WX else sW
    S.add([f"s_and_b32 s{sT0}, s2, 0x38", f"s_cmp_eq_u32 s{sT0}, {(0x18 if typ else 0x38) if CFG['swp'] else 1}", f"s_cselect_b32 s{sT2}, 0xa0, 0", f"s_xor_b32 s{sT2}, s{sT2}, s2",
           f"s_and_b32 s{sT0}, s2, 7", f"s_lshr_b32 s{sT1}, s{sT2}, 6", f"s_lshl2_add_u32 s{sT0}, s{sT0}, s{sT1}", f"s_bfe_u32 s{sT1}, s{sT2}, 0x30003", f"s_lshl_b32 s{sT1}, s{sT1}, 7"] + ([f"s_lshr_b32 s{sWZ2}, s{sT1}, {WX[0]}", f"s_and_b32 s{sWZ2}, s{sWZ2}, {WX[1]}", f"s_xor_b32 s{sWZ2}, s{sWZ2}, s{sW}"] if WX else []) + [
           f"s_lshl3_add_u32 s{sFR}, s{sT0}, s{sW2}", f"s_lshl_b32 s{sFR}, s{sFR}, 7", f"s_add_u32 s{sFR}, s{sFR}, {FLG}",
           f"s_lshl_b32 s{sXO}, s{sT0}, 16", f"s_add_u32 s{sXO}, s{sXO}, s{sT1}", ] + ([f"s_lshl_b32 s{sT2}, s{sI}, 13", f"s_add_u32 s{sXO}, s{sXO}, s{sT2}"] if CFG["rb"] >= 2 else [f"s_lshl3_add_u32 s{sXO}, s{sI4}, s{sXO}"]) + ([f"s_add_u32 s{sXO}, s{sXO}, 32768"] if g else []), lo=(first[8], 1))
    S.add([f"s_mul_i32 s{sHO}, s{sT0}, {236*1024}", f"s_mul_i32 s{sT2}, s{sW2}, 6144", f"s_add_u32 s{sHQ}, s{sHO}, s{sT2}", f"s_add_u32 s{sHQ}, s{sHQ}, 32768",
           f"s_mul_i32 s{sT2}, s{sW2}, 5", f"s_min_u32 s{sT2}, s{sT2}, 33", f"s_add_u32 s{sT2}, s{sT2}, 48", f"s_lshl_b32 s{sWK2}, s{sT2}, 14", f"s_add_u32 s{sWK2}, s{sWK2}, s{sT1}",
           f"s_lshl_b32 s{sT2}, s{sT2}, 10", f"s_add_u32 s{sHK}, s{sHO}, s{sT2}", f"s_add_u32 s{sHK}, s{sHK}, 32768", f"s_lshl_b32 s{sT2}, s{sW2}, 12", f"s_add_u32 s{sHO}, s{sHO}, s{sT2}"], lo=(first[8], 2))
    S.add([f"s_mul_i32 s{sWQ2}, s{sW2}, {6*16384}", f"s_add_u32 s{sWQ2}, s{sWQ2}, s{sT1}", f"s_lshl_b32 s{sWO2}, s{sW2}, 16", f"s_add_u32 s{sWO2}, s{sWO2}, s{sT1}",
           f"s_cmp_eq_u32 s{sW2}, 7", f"s_cselect_b32 s{sWZ2}, 0x2000000, s{sWK2}"] +
          ([f"s_lshl_b32 s{sRB}, s{sI}, 14"] if g == 0 else
           [f"s_cmp_lt_u32 s{sI}, {2 if typ else 1}", f"s_cselect_b32 s{sRB}, 0, {t.RG[7] - t.RG[4] - 49152}", f"s_lshl_b32 s{sT2}, s{sI}, 14", f"s_add_u32 s{sRB}, s{sRB}, s{sT2}", f"s_add_u32 s{sRB}, s{sRB}, {t.RG[4]}"]) +
          [f"s_sub_u32 s{sRB}, s{sRB}, {MB}"], lo=(first[8], 3))
    m, q = vMU, vC1
    l8 = (first[PB], -1)
    S.adds([f"v_add_f32 v{m}, v{vMU}, v{vMU+2}", f"v_add_f32 v{q}, v{vMU+1}, v{vMU+3}",
            f"v_mul_f32 v{vSTD}, {fbits(-1.0/512)}, v{m}", f"v_mul_f32 v{q}, {fbits(1.0/512)}, v{q}"], lo=l8)
    S.adds([f"v_cvt_pk_bf16_f32 v{vMU+k}, v{vSTD}, v{vSTD}" for k in range(4)])
    S.adds([f"v_fma_f32 v{q}, -v{vSTD}, v{vSTD}, v{q}", f"v_max_f32 v{q}, 0, v{q}", f"v_add_f32 v{q}, {fbits(1e-5)}, v{q}",
            f"v_rsq_f32 v{vRS}, v{q}", f"v_mul_f32 v{vSTD}, v{q}, v{vRS}", f"v_mul_f32 v{vC1}, {fbits(-LOG2E)}, v{vRS}"])
    ex = []
    S.node(P1[7,3,0], mm(AK, XR(7,3), False)(F))
    ex.append(S.node(corr(AK, g, PB, "corrK"), mm(AK, vMU, False)(F)))
    def w64(w, x, **k):
        return S.add([w] + ([x] if x else []), kind="valu", cost=CFG["wc"] + (1 if x else 0), first=True, **k)
    KB = AK if typ else 96
    S.adds([f"v_cvt_pk_bf16_f32 v{KB+k}, v{AK+2*k}, v{AK+2*k+1}" for k in range(8)])
    pb = "ph"
    if typ == 0:
        W = [GA[2], AK]
        S.node(V[7,0], cm(CD[1], False)(F))
        S.adds(publish(CD[1], 83, 84, vCW, 2 + g, "pubv"), before=8)
        for rho in range(2):
            pk = mm(W[rho], KB + 4*rho, True)
            ex.append(S.node(Item(pk, tr(vWF, 512*rho, 128), needbar=PB, name=f"phi{rho}"), pk(F)))
        for rho in range(2):
            S.adds(softmax(W[rho], W[rho], *((87, 88), (vSM, vWF))[rho]))
            for b_ in range(2):
                w64(f"ds_write_b128 v{vPH}, {v(W[rho]+4*b_,4)} offset:{rho*12288} #ph", None if (rho, b_) == (1, 1) else f"v_xor_b32 v{vPH}, 16, v{vPH}", after="v3", before=pb)
        if NVP: dummies()
        S.node(G[8,0,0], mm(GA[0], XR(0,0), True)(F)); S.node(G[8,0,1], mm(GA[1], XR(0,0), True)(F)); S.node(G[8,2*g,2], mm(GA[2], XR(0,2*g), True)(F))
        S.node(V[7,3], mm(AV, XR(7,3), False)(F))
        ex.append(S.node(corr(AV, 2 + g, 8, "corrV"), mm(AV, vMU, False)(F)))
        for k in range(8):
            S.adds([f"v_mul_f32 v{AV+2*k}, v{AV+2*k}, v{vRS}", f"v_mul_f32 v{AV+2*k+1}, v{AV+2*k+1}, v{vRS}",
                    f"v_cvt_pk_bf16_f32 v{AV+k}, v{AV+2*k}, v{AV+2*k+1}"])
            if k & 3 == 3: w64(f"ds_write_b128 v{vKB}, {v(AV+k-3,4)} offset:{(k>>2)*12288+64} #ph", None, before=pb)
        S.node(G[8,3,1], mm(GA[1], XR(0,3), False)(F)); S.node(G[8,2*g+1,2], mm(GA[2], XR(0,2*g+1), False)(F))
        W = [AV, XR(0, 0)]
    else:
        for rho in range(2):
            pk = mm(AV, AK + 4*rho, True)
            ex.append(S.node(Item(pk, tr(vWF, 512*rho, 128), needbar=8, name=f"phi{rho}"), pk(F)))
            S.adds(softmax(AV, AK + 8 if rho == 0 else AV))
    if typ == 0:
        pi = main[main.index(first[CFG["phbar"][0]]) + CFG["phbar"][1]]
        if pi.bar is None: pi.bar = pb; barwait[pb] = []
        else:
            for o in S.ops:
                if o.before == pb: o.before = pi.bar
            pb = pi.bar
        barlg[pb] = barlg.get(pb, []) + ["ph"]
        barlg[CFG["wb"][0]] = barlg.get(CFG["wb"][0], []) + ["kvr"]
        DK, DZ, ON = AK, AK + 4, AK + 8
        S.adds([f"v_mov_b32 v{ON+k}, 0x3f803f80" for k in range(4)])
        S.adds([f"v_lshrrev_b32 v{AK+12}, 1, v{vM16}", f"v_lshrrev_b32 v{AK+13}, 5, v{vM16}"])
        S.add([f"s_and_b32 s{sT3}, s{sI}, 1", f"s_lshl_b32 s{sT3}, s{sT3}, 5"], lo=(first[8], 0))
        S.add(f"v_subrev_u32 v{vPH}, s{sT3}, v{vKA}")
        for u4 in range(4):
            A0 = W[u4 >> 1] + 8*(u4 & 1); B0 = A0 + 4; o = u4 * 3072
            S.add([f"ds_read_b64_tr_b16 {v(A0,2)}, v{vKA} offset:{o}", f"ds_read_b64_tr_b16 {v(A0+2,2)}, v{vKA} offset:{o+768}"], after=pb)
            S.add([f"ds_read_b64_tr_b16 {v(B0,2)}, v{vPH} offset:{o+64}", f"ds_read_b64_tr_b16 {v(B0+2,2)}, v{vPH} offset:{o+768+64} #kvr"], after=pb, before=CFG["wb"][0])
            na = f"v_mfma_f32_16x16x32_bf16 {v(DZ,4)}, {v(A0,4)}, {v(ON,4)}, {'0' if u4 == 0 else v(DZ,4)}"
            nb_ = f"v_mfma_f32_16x16x32_bf16 {v(DK,4)}, {v(A0,4)}, {v(B0,4)}, {'0' if u4 == 0 else v(DK,4)}"
            S.adds([na, nb_] if u4 < 3 else [nb_, na])
        S.adds([f"v_cvt_pk_bf16_f32 v{DK}, v{DK}, v{DK+1}", f"v_cvt_pk_bf16_f32 v{DK+1}, v{DK+2}, v{DK+3}"])
        kvst = S.add(f"buffer_store_dwordx2 {v(DK,2)}, v{AK+12}, {s(SWS,4)}, s{sK1} offen sc1 #kvs", kind="misc")
        S.adds([f"v_cvt_pk_bf16_f32 v{DZ}, v{DZ}, v{DZ+1}", f"v_cvt_pk_bf16_f32 v{DZ+1}, v{DZ+2}, v{DZ+3}"])
        S.add(["WAITVM kvs"] * CFG.get("zw", 1) + ["s_mov_b32 exec_lo, 0x10001", "s_mov_b32 exec_hi, 0x10001", f"buffer_store_dwordx2 {v(DZ,2)}, v{AK+13}, {s(SWS,4)}, s{sK2} offen sc1", "s_mov_b64 exec, -1"],
              ok=lambda n: kvst.slot is not None and n >= kvst.slot + CFG["zd"])
    vWa, vRD0, vRD1, vFA, vFL = P2R(typ)
    KS = [("q", 0), ("q", 3), ("q", 1), ("q", 4), ("q", 2), ("q", 5)] + [("o", j) for j in range(4)] + [("k", 2), ("k", 0), ("k", 3), ("k", 1), ("k", 4)]
    if CFG.get("ko", (0, 0))[typ]: KS = KS[:6] + KS[10:] + KS[6:10]
    NS = 2 if typ else 3; NR = 10 if typ else 12
    WR = [128 + 8*k for k in range(10)] if typ else [128 + 8*k for k in range(8)] + [AV, AV + 8, 192, 200]
    WR += WR[:15 - NR]
    RGN = [6 + k % 2 for k in range(12)] + [4, 5, 3] if typ else [5 + k % 3 for k in range(15)]
    rbase = t.RG[5] if typ else PH
    def wdma(k):
        ty, j = KS[k]
        b_ = {"q": sWQ2, "o": sWO2, "k": sWZ2 if j < 2 else sWK2}[ty]; R_ = s(SWO if ty == "o" else SWD, 4)
        return [[f"s_lshl1_add_u32 m0, s{sMW}, {t.RG[RGN[k]]}", f"s_add_u32 s{sO1}, s{b_}, {j*16384}", f"buffer_load_dwordx4 v{vWa}, {R_}, s{sO1} offen lds #W{k}"],
                [f"s_lshl1_add_u32 m0, s{sMW}, {t.RG[RGN[k]]}", f"s_add_u32 s{sO1}, s{b_}, {j*16384 + 7168}", f"buffer_load_dwordx4 v{vWa}, {R_}, s{sO1} offen offset:1024 lds #W{k}"]]
    def wread(k, ad=(vRD0, vRD1), base=rbase):
        o = t.RG[RGN[k]] - base
        return [[f"WAITVM W{k}"] * (1 - cb) * ("noxw" not in k1.KN) + [f"ds_read_b64_tr_b16 {v(WR[k]+4*cb,2)}, v{ad[cb]} offset:{o}", f"ds_read_b64_tr_b16 {v(WR[k]+4*cb+2,2)}, v{ad[cb]} offset:{o+512} #X{k}"] for cb in range(2)]
    if typ == 0:
        S.add(f"v_bfe_u32 v{AK+14}, v{vM16}, 4, 6")
        S.adds(p2addr(t, AK + 14, AK + 15, vRD1))
    Dk = {}; Xk = {}
    def aft(dd, k, l): return lambda n: dd[k].slot is not None and n >= dd[k].slot + l
    for k in range(14 if typ else 15):
        if k in CFG.get("dd", ((), ()))[typ]: continue
        wd_ = wdma(k)
        if typ and k >= 12: kw = dict(after=13 if k == 12 else 15)
        elif k < NS: kw = dict(after=CFG["wb"][typ])
        else: kw = dict(ok=aft(Xk, k - NS, CFG["wg"])); wd_[0] = [f"WAITLG X{k-NS}"] + wd_[0]
        for x in wd_:
            Dk[k] = S.add(x, kind="misc", **kw); Dk[k].R -= {("s", 124), ("s", sO1)}; Dk[k].W -= {("s", 124), ("s", sO1)}; Dk[k].R.add(("x", 9 + (typ and k >= 12))); Dk[k].W.add(("x", 9 + (typ and k >= 12)))
        if k < NR:
            lo = (G[8 + (WR[k] - 128) // 16, 3, nb - 1 if has(3, nb - 1) else 1], 0) if WR[k] >= 128 else None
            for x in wread(k): Xk[k] = S.add(x, kind="misc", ok=aft(Dk, k, CFG["wl"]), lo=lo)
    S.adds([f"v_lshrrev_b32 v{vFA}, 2, v{vM16}", f"v_and_b32 v{vFA}, 28, v{vFA}"])
    vCT = 27 if typ else 30
    if CFG["th"] & 16:
        J = 76 if typ else AK + 12; b_ = CFG["thr"][typ]
        S.add([f"s_mov_b32 s{sT1}, {(-7*MB) & 0xffffffff}", f"v_lshl_add_u32 v{J}, v{vM16}, 3, s{sT1}"] +
              ([f"s_sub_u32 s{sT1}, s{sEX}, s{sHF}", f"s_sub_u32 s{sT1}, s{sT1}, 4096", "s_mov_b32 exec_lo, 0", f"v_add_u32 v{J}, s{sT1}, v{J}", "s_mov_b32 exec_lo, 0xffffff", "s_mov_b32 exec_hi, 0xffff"] if typ else
               [f"s_mov_b64 exec, {0xffffff if g else 0xffff}"]) +
              [f"buffer_load_dword v{J}, v{J}, {s(SWS,4)}, s{sA if (typ, g) == (0, 0) else sHF} offen{CFG.get('thm', ' sc1')}", "s_mov_b64 exec, -1"], after=b_, before={13: 15, 15: "cs"}.get(b_, b_ + 1), lo=(first[b_], CFG["thr"][2] + 2*g), kind="misc", prio=3)
    polls = []
    def fload(): return f"buffer_load_dword v{vFL}, v{vFA}, {s(SWS,4)}, s{sFR} offen sc1"
    def fcheck(ty, lv, own=None):
        polls.append((ty, lv, own)); n_ = len(polls)
        return [f"v_cmp_gt_u32 vcc, {lv}, v{vFL}", f"s_and_b32 s{sT1}, vcc_lo, {0xf0 if ty == 'q' else 0x0f}", f"s_cbranch_scc1 L_{sn}_fp{n_}", f"LABEL L_{sn}_fb{n_}"]
    spolls = []
    def gload(): return f"s_buffer_load_dwordx8 {s(SWO,8)}, {s(SWS,4)}, s{sFR} glc"
    def gmin(ty, lv):
        b = SWO + (4 if ty == "q" else 0)
        return [f"s_min_u32 s{sT1}, s{b}, s{b+1}", f"s_min_u32 s{sC}, s{b+2}, s{b+3}", f"s_min_u32 s{sT1}, s{sT1}, s{sC}", f"s_cmp_eq_u32 s{sMD}, 0", f"s_cselect_b32 s{sT1}, s{sT1}, 0", f"s_cmp_lt_u32 s{sT1}, {lv}"]
    slow = []
    def mst(x, tag=""):
        slow.append(x); n_ = len(slow)
        return [f"s_cmp_lg_u32 s{sMD}, 0", f"s_cbranch_scc1 L_{sn}_ss{n_}", x + (CFG.get("hn", "") + " #" + tag if tag else ""), f"LABEL L_{sn}_sb{n_}"]
    def fstore(lv, tag, r): return [f"v_mov_b32 v{r}, {lv}", f"WAITVM {'dmy' if NV and lv < 5 else tag}", "s_mov_b64 exec, 1"] + mst(f"buffer_store_dword v{r}, off, {s(SWS,4)}, s{sFL}") + ["s_mov_b64 exec, -1"]
    HR = [96, 104, 112, 120, 80, 88, 48, 56, 64, 72, 96, 104, 112, 120, 80] if typ else [112, 120, 48, 56, 80, 88, 96, 104, 112, 120, 48, 56, WR[3], 80, 88]
    def hload(k):
        ty, j = KS[k]; b_ = {"q": sHQ, "o": sHO, "k": sR if j < 2 else sHK}[ty]
        return [[f"s_add_u32 s{sO1}, s{b_}, {j*1024 + tb*118*1024}", f"buffer_load_dwordx4 {v(HR[k]+4*tb,4)}, v{vM16}, {s(SWS,4)}, s{sO1} offen{CFG.get('hl', '')}"] for tb in range(1 if "halfh" in k1.KN else 2)]
    S.add([f"s_cmp_eq_u32 s{sWZ2}, 0x2000000", f"s_cselect_b32 s{sR}, 2.0, s{sHK}"], after=13)
    SEL, DD, ZZ, LD = AV + 8, CP, AV + 12, GA[0]
    vTW, vTZ, vTR = 1, 2, 3
    if typ == 1:
        a, b, c, ln = AK + 1, AK + 2, AK + 3, AK + 4
        o = [f"v_bfe_u32 v{ln}, v{vM16}, 4, 6", f"v_and_b32 v{a}, 15, v{ln}", f"v_lshrrev_b32 v{b}, 1, v{ln}", f"v_and_b32 v{b}, 8, v{b}", f"v_xor_b32 v{b}, v{a}, v{b}",
             f"v_and_b32 v{c}, 1, v{b}", f"v_lshlrev_b32 v{c}, 4, v{c}", f"v_mov_b32 v{a}, 0x3f80", f"v_lshlrev_b32 v{c}, v{c}, v{a}", f"v_lshrrev_b32 v{b}, 1, v{b}"]
        for r in range(4): o += [f"v_cmp_eq_u32 vcc, {r}, v{b}", f"v_cndmask_b32 v{SEL+r}, 0, v{c}, vcc"]
        S.adds(o, lo=(first[12], 0))
        S.add([f"s_lshr_b32 s{sT0}, s{sW}, 1", f"s_lshl_b32 s{sT0}, s{sT0}, 11", f"s_and_b32 s{sT2}, s{sW}, 1", f"s_lshl_b32 s{sT2}, s{sT2}, 5",
               f"s_add_u32 s{sT2}, s{sT2}, s{sT0}", f"s_add_u32 s{sT2}, s{sT2}, {OT}", f"s_sub_u32 s{sT0}, s{sT0}, {MB - OT}"], lo=(first[9], 0))
        S.adds([f"v_add_u32 v{vTZ}, s{sT0}, v{vM16}", f"v_and_b32 v{a}, 7, v{ln}", f"v_lshlrev_b32 v{a}, 7, v{a}", f"v_and_b32 v{b}, 16, v{ln}", f"v_lshl_add_u32 v{a}, v{b}, 2, v{a}",
                f"v_and_b32 v{b}, 8, v{ln}", f"v_add_u32 v{a}, v{a}, v{b}", f"v_lshrrev_b32 v{b}, 1, v{ln}", f"v_and_b32 v{b}, 16, v{b}", f"v_add3_u32 v{vTW}, v{a}, v{b}, s{sT2}",
                f"v_and_b32 v{a}, 19, v{ln}", f"v_bfe_u32 v{b}, v{ln}, 2, 1", f"v_lshl_or_b32 v{a}, v{b}, 3, v{a}", f"v_bfe_u32 v{b}, v{ln}, 3, 1", f"v_lshl_or_b32 v{a}, v{b}, 2, v{a}",
                f"v_lshlrev_b32 v{a}, 6, v{a}", f"v_and_b32 v{b}, 32, v{ln}", f"v_add_u32 v{a}, v{a}, v{b}", f"v_add_u32 v{vTR}, {OT + g*4096}, v{a}"])
    QE = CFG.get("qe") if typ else None
    cad = [f"v_lshlrev_b32 v{vCT}, 1, v{vM16}", f"v_and_b32 v{vCT}, 0xe0, v{vCT}"] if QE else []
    if QE: S.add(cad + [f"buffer_load_dword v{vCT}, v{vCT}, {s(SDB,4)}, 0 offen"], after=12, lo=(first[12], QE["cl"]), kind="misc", prio=2)
    else:
        S.add(f"v_lshlrev_b32 v{vFL}, 3, v{vFA}")
        S.add(f"buffer_load_dword v{vCT}, v{vFL}, {s(SDB,4)}, 0 offen", after=12, lo=(first[13], -4), kind="misc")
    cck = [f"s_and_b32 s{sMD}, s2, 7", f"v_readlane_b32 s{sMD}, v{vCT}, s{sMD}", f"v_and_b32 v{vCT}, 0xff, v{vCT}", f"v_cmp_gt_u32 vcc, 32, v{vCT}", f"s_lshl_b32 s{sT1}, s{sXV}, 5", f"s_sub_u32 s{sMD}, s{sMD}, s{sT1}"]
    chk = S.add(cck + [f"s_cbranch_vccnz L_{sn}_cp", f"LABEL L_{sn}_cb"], after=13 if QE else 15)
    if not QE: chk.R |= {("v", vFL)}
    chk.W |= {("s", sT1), ("x", 0)}
    vCW2, vEX, t0 = AK, AK + 1, AK + 2
    S.adds([f"v_lshrrev_b32 v{vCW2}, 6, v{vM16}", f"v_and_b32 v{vCW2}, 12, v{vCW2}", f"v_xor_b32 v{vCW2}, s{sI4}, v{vCW2}", f"v_or_b32 v{vCW2}, v{vCW2}, v{vM16}"], lo=(first[12], 0))
    if typ == 0:
        S.add(f"v_add_u32 v{vEX}, s{sEX}, v{vM16}")
        own = 4*g; oth = 4 - own
        if g == 0: S.node(G[15,0,2], cm(CD[2], False)(F))
        S.node(G[15,2*g+1,2], mm(GA[2], XR(7,0), False)(F))
        for k in range(2): w64(f"ds_write_b128 v{vEX}, {v(GA[2]+oth+8*k,4)} offset:{g*8192+1024*k} #cs", None, before="cs")
        S.node(G[15,0,0], cm(CD[0], False)(F)); S.node(G[15,0,1], cm(CD[1], False)(F))
        for b in range(3 - g): S.adds(publish(CD[b], t0 + 2*b, t0 + 2*b + 1, vCW2, blk[b], "cs"), before="cs", prio=2)
        X = AK + 8
        S.add(f"ds_read_b128 {v(X,4)}, v{vEX} offset:{(1-g)*8192}", after="cs")
        S.add(f"ds_read_b128 {v(X+4,4)}, v{vEX} offset:{(1-g)*8192+1024}", after="cs")
        S.node(C[2], mm(GA[2], vMU, False)(F))
        S.adds([f"v_add_f32 v{X+4*hh+k}, v{X+4*hh+k}, v{GA[2]+8*hh+own+k}" for hh in range(2) for k in range(4)])
        S.adds(glu(X, X + 4, 4))
        S.add(mst(f"buffer_store_dwordx2 {v(X,2)}, v{vM16}, {s(SWS,4)}, s{sHF} offen offset:{(1-g)*2048+8*g}", "hs"), kind="misc", prio=1)
        fin = [(0, C[0], g*1024), (1, C[1], (1+g)*1024)]
    else:
        for b in range(3): S.node(G[15,0,b], cm(CD[b], False)(F))
        for b in range(3): S.adds(publish(CD[b], t0 + 2*b, t0 + 2*b + 1, vCW2, blk[b], "cs"), before="cs", prio=2)
        fin = [(0, r0[-1], 0), (1, C[1], 1024), (2, C[2], 2048)]
        LQ = [208, 224, 240, 48, 52, 16, 20, 12] if QE else [LD + 4*p for p in range(8)]
        if QE: DD = GA[0] + 8
        def loads(m=" sc1"):
            o = [[f"buffer_load_dwordx4 {v(ZZ,4)}, v{vM16}, {s(SWS,4)}, s{sK2} offen sc1"]]
            for p in range(8):
                o.append(([f"s_add_u32 s{sT2}, s{sK1}, 4096"] if p == 4 else []) + [f"buffer_load_dwordx4 {v(LQ[p],4)}, v{vM16}, {s(SWS,4)}, s{sK1 if p < 4 else sT2} offen offset:{(p%4)*1024}{m}"])
            return o
        L_ = loads("")
        zl_ = S.add(L_[0], kind="misc", lo=(lambda: C[0].idx + QE["zl"]) if QE else lambda: C[2].idx - CFG["qload"] - CFG["qct"], prio=2 if QE else CFG.get("zp", 0), lat=QE and QE["zc"]); zl_.R |= {("x", 0)}
        if QE and QE.get("nz"): zl_.W |= {("x", 1)}
        else:
            zc = S.add([f"v_cmp_eq_u32 vcc, -1, v{ZZ}", "s_nop 1", f"s_cbranch_vccnz L_{sn}_zp", f"LABEL L_{sn}_zb"], lo=None if QE else lambda: C[2].idx - CFG["qload"] - 1)
            zc.W |= {("s", sT1), ("x", 1)}
        if QE:
            n2 = QE.get("n2", 1)
            for j in range(1, 9, n2): S.add(sum(L_[j:j+n2], []), kind="misc", after=QE.get("af", "cs"), lo=lambda: C[0].idx + QE.get("kl", -9), prio=QE.get("pr", 2), lat=QE["lat"]).R |= {("x", 1)}
            CK, CV = DD + 4, GA[0] + 4
            preL = [f"v_mfma_f32_16x16x32_bf16 {v(DD,4)}, {v(SEL,4)}, {v(LQ[p],4)}, {'0' if p == 0 else v(DD,4)}" for p in range(8)] + [f"v_mfma_f32_16x16x32_bf16 {v(CK,4)}, {v(SEL,4)}, {v(ZZ,4)}, {v(DD,4)}"]
            preW = [f"v_cvt_pk_bf16_f32 v{CV}, v{DD}, v{DD+1}", f"v_cvt_pk_bf16_f32 v{CV+1}, v{DD+2}, v{DD+3}", f"ds_write_b64 v{vTW}, {v(CV,2)}", f"v_cmp_u_f32 vcc, v{CK}, v{CK}", "s_nop 1"]
            preZ = f"ds_write_b128 v{vTZ}, {v(ZZ,4)} offset:1024"
    if typ == 0 and CFG["f1"][2]:
        S.add(fload(), kind="misc", lo=lambda: C[2].idx + CFG["f1"][0]).R |= {("x", 0)}
        S.add(fcheck("q", CFG["f1"][2]), lo=lambda: C[2].idx + CFG["f1"][1]).W |= {("x", 1)}
        for k in range(2 * CFG["f1"][2]):
            if k < 4:
                for x in hload(k): S.add(x, kind="misc").R |= {("x", 1)}
    HS = {}
    for b, it, off in fin:
        S.node(it, mm(GA[b], vMU, False)(F))
        S.adds(glu(GA[b], GA[b] + 8, 8))
        if QE and b == 0:
            S.add(preZ, kind="misc", after=15).R |= {("x", 1)}
            m2 = QE.get("m2", 1)
            for j in range(0, 9, m2): S.add(preL[j:j+m2], kind="small")
            QE_last = S.add(preW + [f"s_cbranch_vccnz L_{sn}_rt", f"LABEL L_{sn}_go"], kind="misc", prio=2)
            QE_last.W |= {("s", sT0), ("s", sT2)}
        if typ == 1 and b == 2 and not QE:
            for p_, x in enumerate(L_[1:]): HS["l"] = S.add(x, kind="misc", lo=lambda p_=p_: C[2].idx - CFG["qload"] + CFG.get("qs", [0]*8)[p_]); HS["l"].R |= {("x", 1)}
        if b == len(fin) - 1: S.add(fload(), kind="misc").R |= {("v", GA[b] + CFG["f2"]), ("x", 0)}
        HS[b] = S.add(mst(f"buffer_store_dwordx4 {v(GA[b],4)}, v{vM16}, {s(SWS,4)}, s{sA if (typ, g) == (0, 0) else sHF} offen offset:{off}", f"h{b}"), kind="misc", prio=int(b < len(fin) - 1))
        if b in CFG["st"][typ]: S.add(fstore(b + 2 - typ, f"h{b}", vCT), kind="misc", ok=aft(HS, b, CFG["s1"]))
        if typ == 0 and b == 0 and CFG["f1"][2] == 3:
            for k in (4, 5):
                for x in hload(k): S.add(x, kind="misc").R |= {("x", 1)}
    def budget(n, it):
        if n < first[8].idx:
            if typ == 1: return CFG["qb"]
            if n < first["v1"].idx - D: return CFG["pb"]
            return CFG["vb"]
        if n < first[15].idx and typ == 0: return CFG["gb"]
        return 6
    S.budget = budget
    S.dbl = lambda n: n >= first[9].idx
    if typ == 1:
        for b in range(1, 9): S.prebar_budget[b] = CFG["qpb"]
    S.prebar_budget["cs"] = 6
    if typ == 0:
        for b in list(range(1, 8)) + ["v1"]: S.prebar_budget[b] = CFG["ppb"]
        for b in ("v3", "v6", 8): S.prebar_budget[b] = CFG.get("vpb", 0)
    S.dump = "dump" in k1.KN
    S.solve(main, ex)
    order = S.order; N = len(order)
    info = [f"typ{typ} g{g} N={N} bars={S.bs} extras={[(e.item.name, e.item.idx) for e in ex]} slots={len(S.slots)-D}"]
    if typ == 0: info.append(f"kvstore@{kvst.slot}")
    print(" ".join(info))
    nst = [1]
    def em(x):
        if x.startswith("LABEL"): P.label(x.split()[1])
        elif x.startswith("WAITVM"): P.wait_vm(x.split()[1])
        elif x.startswith("WAITLG"): P.wait_lg(x.split()[1])
        else: emit(P, x)
    for n, it, sm, va, mi in S.slots:
        m_ = n + D
        if m_ < N:
            nx = order[m_]
            if nx.bar is not None:
                P.comment(f"--- barrier {nx.bar}")
                if not ("nowait" in k1.KN and nx.bar != 0):
                    for tg in barwait[nx.bar]: P.wait_vm(tg)
                for tg in barlg.get(nx.bar, []): P.wait_lg(tg)
                I("s_barrier")
                nstamp(P, nx.bar, nst)
            f = FR[m_ % 4]
            rd = []
            for k, ad, im in nx.reads:
                rd.append({"tr": f"ds_read_b64_tr_b16 {v(f,2)}, v{ad} offset:{im}", "tr2": f"ds_read_b64_tr_b16 {v(f+2,2)}, v{ad} offset:{im}",
                           "b128": f"ds_read_b128 {v(f,4)}, v{ad} offset:{im}"}[k])
            for x in nx.pre[:1] + rd + nx.pre[1:]: I(x)
        body = []
        if it is not None:
            f = v(FR[n % 4], 4)
            if it.small: body.append(it.small(f))
            if sm: body += sm.texts
            body.append(it.mf(f))
        elif sm: body += sm.texts
        if "nofill" not in k1.KN or n >= N:
            for o in va: body += o.texts
        if it is not None:
            touch = set()
            for x in body:
                i_ = Ins(x.split("#")[0].strip()); touch |= i_.vr | i_.vw
            P.wait_regs(touch)
        for x in body: em(x)
        for o in mi:
            if "nowd" in k1.KN and any("#W" in x for x in o.texts): continue
            if "halfwd" in k1.KN and any("#W" in x and "offset:1024" in x for x in o.texts): continue
            if "noxr" in k1.KN and any("#X" in x for x in o.texts): continue
            if "nodma" in k1.KN and any(" lds" in x for x in o.texts): continue
            for x in o.texts: em(x)
        if typ == 1 and n - N in CFG.get("sq2", ()): nstamp(P, f"n{N-n}", nst)
        if QE and n == N + QE["bar"]:
            assert QE_last.slot <= n and QE["bar"] >= -4, QE_last.slot - N
            P.wait_lg(); I("s_barrier"); nstamp(P, "ob", nst)
            for j, q_ in enumerate((48, 52, 16, 20)): I(f"ds_read_b128 {v(q_,4)}, v{vTR} offset:{(j>>1)*2048+16*(j&1)}")
        if QE and n == N + QE["mf"]:
            for j, q_ in enumerate((48, 52, 16, 20)):
                I(f"v_mfma_f32_32x32x16_bf16 {v(208+16*(j>>1),16)}, {v(q_,4)}, {v((AV if j>>1 else AK+8)+4*(j&1),4)}, {v(208+16*(j>>1),16) if j&1 else '0'}")
        if n == N - 1:
            nstamp(P, "last", nst)
            if typ == 0 and g == 1 and CFG.get("bl"): P.wait_lg(); I("s_barrier")
    ACC = [208, 224, 240, 32]
    vXA, vXD = 4, 8
    RD = []
    def radr():
        I(f"s_lshl_b32 s{sT0}, s{sMW}, 1")
        I(f"s_sub_u32 s{sT0}, s{sT0}, {MB}")
        I(f"v_add_u32 v5, s{sT0}, v{vM16}")
        I(f"v_add_u32 v6, {t.RG[4]}, v5")
        I(f"v_add_u32 v7, {t.RG[6]}, v5")
        if not CFG.get("rb"): I(f"v_add_u32 v12, s{sRB}, v{vM16}")
    def pad(q): return (128 - t.RG[2*q+1] + t.RG[2*q]) % 256 if CFG["rb"] == 2 else 0
    def pad3(r): return (64*(r & 3) - t.RG[r]) % 256 if CFG["rb"] == 3 else 0
    def rwr(q):
        o = []
        if CFG.get("rb"):
            for h_ in range(2):
                r = 2*q + h_; ad, bs_ = (5, 0) if r < 4 else (6, t.RG[4]) if r < 6 else (7, t.RG[6]); A = ACC[q] + 8*h_
                o.append("\n".join(f"v_cvt_pk_bf16_f32 v{A+k}, v{A+2*k}, v{A+2*k+1}" for k in range(4)))
                o.append(f"ds_write_b128 v{ad}, {v(A,4)} offset:{t.RG[r] - bs_ + h_*pad(q) + pad3(r)}")
            return o
        for e in range(4):
            r = 2*q + (e >> 1); ad, bs_ = (5, 0) if r < 4 else (6, t.RG[4]) if r < 6 else (7, t.RG[6])
            o.append(f"ds_write_b128 v{ad}, {v(ACC[q]+4*e,4)} offset:{t.RG[r] - bs_ + (e & 1)*1024}")
        return o
    vals = []; WBL = []
    def vchk(qs):
        rs = []; zs = []; o = []
        for k, tb in qs:
            if KS[k] in (("k", 0), ("k", 1)): zs.append(HR[k] + 4*tb)
            else: rs += [HR[k] + 4*tb] + ([HR[k] + 4*tb + 2] if KS[k] == ("k", 2) else [])
        if zs:
            zs = zs * 2
            o += [f"s_and_b32 s{sT3}, s{sR}, 2.0", f"v_min_u32 v15, v{zs[0]}, v{zs[1]}", f"v_or_b32 v15, s{sT3}, v15"]; t_ = 15
        else: t_ = rs.pop(0)
        while rs:
            if len(rs) > 1: o.append(f"v_min3_u32 v15, v{t_}, v{rs.pop(0)}, v{rs.pop(0)}")
            else: o.append(f"v_min_u32 v15, v{t_}, v{rs.pop(0)}")
            t_ = 15
        return o + [f"v_cmp_eq_u32 vcc, 0, v{t_}", "s_nop 1"]
    def valid(qs):
        if not NV: return
        vals.append(qs); n_ = len(vals)
        for x in vchk(qs): I(x)
        I(f"s_cbranch_vccnz L_{sn}_vr{n_}"); P.label(f"L_{sn}_vb{n_}")
    def tok(tk):
        if tk[:2] in ("a:", "b:"):
            if "ab".index(tk[0]) != g: return
            tk = tk[2:]
        c = tk[0]; r = tk[1:]
        if c == "F": I(fload())
        elif c == "C":
            for x in fcheck(r[0], int(r[1]), int(r[3]) if len(r) > 2 else None): em(x)
        elif c == "L":
            for x in hload(int(r)):
                for y in x: em(y)
        elif c == "S":
            lv, tg = r.split(":")
            for x in fstore(int(lv), tg, vCT): em(x)
        elif c == "B":
            if r == "" or int(r) == g: I("s_barrier")
        elif c == "T": nstamp(P, r, nst)
        elif c == "D":
            for x in wdma(int(r)):
                for y in x: em(y)
        elif c == "X":
            k = int(r); ad = (vRD0, vRD1); base = rbase
            if not 0 <= t.RG[RGN[k]] - rbase < 65000:
                ad = (5, 6); base = t.RG[RGN[k]]
                for cb in range(2): I(f"v_add_u32 v{ad[cb]}, {(base - rbase) & 0xffffffff}, v{(vRD0, vRD1)[cb]}")
            for x in wread(k, ad, base):
                for y in x: em(y)
        elif c == "M":
            k = int(r); valid([(k, 0), (k, 1)])
            for tb, cb in ((0, 0), (1, 0), (0, 1), (1, 1)):
                A = ACC[tb*2+cb]
                I(f"v_mfma_f32_32x32x16_bf16 {v(A,16)}, {v(WR[k]+4*cb,4)}, {v(HR[k]+4*tb,4)}, {'0' if k == 0 else v(A,16)}")
        elif c == "W":
            for y in [f"s_lshr_b32 s{sT0}, s2, 3", f"s_and_b32 s{sT0}, s{sT0}, {r}", f"s_or_b32 s{sT0}, s{sT0}, s{sI}", f"s_cbranch_scc0 L_{sn}_wb", f"buffer_load_dword v15, v{vFA}, {s(SWS,4)}, s{sFR} offen"]: I(y)
            P.label(f"L_{sn}_wr"); WBL.append(1)
        elif c == "P": I(f"s_setprio {r}")
        elif c == "G": I(gload())
        elif c == "R":
            J = vSTD if r == "o" else vC1; sb_ = sEX if r == "o" else sA if (typ, g) == (0, 0) else sHF
            for x in [f"s_mov_b32 s{sT1}, {(-7*MB) & 0xffffffff}", f"v_lshl_add_u32 v{J}, v{vM16}, 3, s{sT1}", f"s_mov_b64 exec, {0xffffff if sb_ == sHF else 0xffff}",
                      f"buffer_load_dword v{J}, v{J}, {s(SWS,4)}, s{sb_} offen{CFG.get('thm', ' sc1')}", "s_mov_b64 exec, -1"]: I(x)
        elif c == "H":
            ty, lv = r[0], int(r[1]); own = int(r[3]) if len(r) > 2 else None
            polls.append((ty, lv, own)); n_ = len(polls); spolls.append(n_)
            P.wait_lg()
            for x in gmin(ty, lv): I(x)
            I(f"s_cbranch_scc1 L_{sn}_gp{n_}"); P.label(f"L_{sn}_fb{n_}")
        elif c == "N":
            radr(); prev = []
            for tb, cb in ((0, 0), (1, 0), (0, 1), (1, 1)):
                q = tb*2+cb; A = ACC[q]
                if cb == 0: valid([(k, tb) for k in range(int(r), 15)])
                for j, k in enumerate(range(int(r), 15)):
                    I(f"v_mfma_f32_32x32x16_bf16 {v(A,16)}, {v(WR[k]+4*cb,4)}, {v(HR[k]+4*tb,4)}, {v(A,16)}")
                    if j >= CFG.get("nw", 1) and prev:
                        for y in prev.pop(0).split("\n"): I(y)
                for x in prev:
                    for y in x.split("\n"): I(y)
                prev = rwr(q)
            if CFG.get("rb"):
                for k in range(4): I(f"v_lshlrev_b32 v{16+2*k}, 16, v{vXD+k}"); I(f"v_and_b32 v{17+2*k}, s{sHI}, v{vXD+k}")
            for x in prev:
                for y in x.split("\n"): I(y)
            RD.append(1)
        elif c == "x" and CFG["rb"] == 3:
            B_ = [t.RG[4*g+j] + pad3(4*g+j) for j in range(4)]
            for y in [f"v_and_b32 v{vXA}, 48, v{vM16}", f"v_bfe_u32 v13, v{vM16}, 6, 2", f"v_lshl_add_u32 v{vXA}, v13, 10, v{vXA}",
                      f"v_bfe_u32 v7, v{vM16}, 8, 1", f"v_lshl_add_u32 v{vXA}, v7, 6, v{vXA}", f"v_bfe_u32 v7, v{vM16}, 9, 1", f"v_lshl_add_u32 v{vXA}, v7, 12, v{vXA}",
                      f"buffer_load_dwordx4 {v(vXD,4)}, v{vXA}, {s(SX,4)}, s{sXO} offen",
                      f"v_bfe_u32 v7, v{vM16}, 8, 2", "v_lshlrev_b32 v7, 11, v7", "v_lshl_add_u32 v7, v13, 4, v7", f"v_lshl_add_u32 v7, s{sI}, 7, v7",
                      f"v_bfe_u32 v13, v{vM16}, 4, 2", f"v_mov_b32 v12, {B_[0]}"]: I(y)
            for j in range(1, 4): I(f"v_mov_b32 v14, {B_[j]}"); I(f"v_cmp_eq_u32 vcc, {j}, v13"); I("v_cndmask_b32 v12, v12, v14, vcc")
            for y in ["v_add_u32 v12, v12, v7", f"v_and_b32 v14, 16, v{vM16}", f"v_mov_b32 v7, 0x3f80", "v_lshlrev_b32 v14, v14, v7", f"v_bfe_u32 v7, v{vM16}, 5, 3"]: I(y)
            for k in range(8): I(f"v_cmp_eq_u32 vcc, {k}, v7"); I(f"v_cndmask_b32 v{168+k}, 0, v14, vcc")
        elif c == "x" and CFG["rb"] == 2:
            hs = [t.RG[4*g+2*cb+1] - t.RG[4*g+2*cb] + pad(2*g+cb) for cb in range(2)]
            for y in [f"v_bfe_u32 v13, v{vM16}, 4, 3", f"v_bfe_u32 v14, v{vM16}, 7, 1", f"v_lshlrev_b32 v{vXA}, 10, v13", f"v_lshl_add_u32 v{vXA}, v14, 5, v{vXA}",
                      f"v_bfe_u32 v7, v{vM16}, 8, 1", f"v_lshl_add_u32 v{vXA}, v7, 4, v{vXA}", f"v_bfe_u32 v7, v{vM16}, 9, 1", f"v_lshl_add_u32 v{vXA}, v7, 6, v{vXA}",
                      f"buffer_load_dwordx4 {v(vXD,4)}, v{vXA}, {s(SX,4)}, s{sXO} offen",
                      f"v_bfe_u32 v7, v{vM16}, 8, 2", "v_lshlrev_b32 v7, 11, v7", "v_lshl_add_u32 v7, v13, 4, v7", f"v_lshl_add_u32 v7, s{sI}, 7, v7",
                      f"v_mul_u32_u24 v12, {hs[0]}, v14", f"v_mul_u32_u24 v13, {hs[1]}, v14", "v_add_u32 v12, v12, v7", "v_add_u32 v13, v13, v7",
                      f"v_add_u32 v12, {t.RG[4*g]}, v12", f"v_add_u32 v13, {t.RG[4*g+2]}, v13",
                      f"v_and_b32 v14, 16, v{vM16}", f"v_mov_b32 v7, 0x3f80", "v_lshlrev_b32 v14, v14, v7", f"v_bfe_u32 v7, v{vM16}, 5, 3"]: I(y)
            for k in range(8): I(f"v_cmp_eq_u32 vcc, {k}, v7"); I(f"v_cndmask_b32 v{168+k}, 0, v14, vcc")
        elif c == "x" and CFG.get("rb"):
            for y in [f"v_bfe_u32 v13, v{vM16}, 4, 4", f"v_bfe_u32 v7, v{vM16}, 9, 1", f"v_lshlrev_b32 v{vXA}, 10, v13", f"v_lshl_add_u32 v{vXA}, v7, 14, v{vXA}",
                      f"v_bfe_u32 v7, v{vM16}, 8, 1", f"v_lshl_add_u32 v{vXA}, v7, 4, v{vXA}", f"buffer_load_dwordx4 {v(vXD,4)}, v{vXA}, {s(SX,4)}, s{sXO} offen",
                      f"v_bfe_u32 v7, v{vM16}, 8, 2", f"v_mul_u32_u24 v7, 1792, v7", f"v_add3_u32 v12, s{sRB}, v{vM16}, v7",
                      f"v_and_b32 v14, 16, v{vM16}", f"v_mov_b32 v7, 0x3f80", "v_lshlrev_b32 v14, v14, v7", "v_lshrrev_b32 v13, 1, v13"]: I(y)
            for k in range(8): I(f"v_cmp_eq_u32 vcc, {k}, v13"); I(f"v_cndmask_b32 v{168+k}, 0, v14, vcc")
        elif c == "x":
            I(f"v_bfe_u32 v{vXA}, v{vM16}, 4, 5")
            I(f"v_bfe_u32 v7, v{vM16}, 9, 1")
            I(f"v_lshlrev_b32 v{vXA}, 10, v{vXA}")
            I(f"v_lshl_add_u32 v{vXA}, v7, 4, v{vXA}")
            I(f"buffer_load_dwordx4 {v(vXD,4)}, v{vXA}, {s(SX,4)}, s{sXO} offen")
        else: raise ValueError(tk)
    if typ == 1:
        nstamp(P, "oph", nst)
        for tk in CFG.get("qp", "").split(): tok(tk)
        DO = [208, 224]
        if not QE:
            I(f"s_mov_b32 s{sT0}, 0")
            P.label(f"L_{sn}_pre")
            for p in range(8): I(f"v_mfma_f32_16x16x32_bf16 {v(DD,4)}, {v(SEL,4)}, {v(LD+4*p,4)}, {'0' if p == 0 else v(DD,4)}")
            I(f"ds_write_b128 v{vTZ}, {v(ZZ,4)} offset:1024")
            I(f"v_mfma_f32_16x16x32_bf16 {v(LD,4)}, {v(SEL,4)}, {v(ZZ,4)}, {v(DD,4)}")
            I(f"v_cvt_pk_bf16_f32 v{LD+4}, v{DD}, v{DD+1}")
            I(f"v_cvt_pk_bf16_f32 v{LD+5}, v{DD+2}, v{DD+3}")
            I(f"ds_write_b64 v{vTW}, {v(LD+4,2)}")
            I(f"v_cmp_u_f32 vcc, v{LD}, v{LD}")
            I("s_nop 1")
            I(f"s_cbranch_vccnz L_{sn}_rt")
            P.label(f"L_{sn}_go")
            for tk in CFG["qo"][0].split(): tok(tk)
            P.wait_lg()
            I("s_barrier")
            AO = GA[0]; DO = [208, 224]
            for rho in range(2):
                for f in range(2): I(f"ds_read_b128 {v(AO+8*rho+4*f,4)}, v{vTR} offset:{rho*2048+16*f}")
            for rho in range(2):
                ph = AK + 8 if rho == 0 else AV
                for f in range(2):
                    I(f"v_mfma_f32_32x32x16_bf16 {v(DO[rho],16)}, {v(AO+8*rho+4*f,4)}, {v(ph+4*f,4)}, {'0' if f == 0 else v(DO[rho],16)}")
        for tk in CFG["qo"][1].split(): tok(tk)
        for rho in range(2):
            Dd = DO[rho]
            if rho and QE:
                for tk in CFG["qo"][0].split(): tok(tk)
            for k in range(4): I(f"v_add_f32 v{Dd+8+k}, v{Dd+8+k}, v{Dd+12+k}")
            I(f"v_add_f32 v{Dd+8}, v{Dd+8}, v{Dd+9}")
            I(f"v_add_f32 v{Dd+10}, v{Dd+10}, v{Dd+11}")
            I(f"v_add_f32 v{Dd+8}, v{Dd+8}, v{Dd+10}")
            I(f"v_mov_b32 v{Dd+9}, v{Dd+8}")
            I(f"v_permlane32_swap_b32 v{Dd+8}, v{Dd+9}")
            I(f"v_add_f32 v{Dd+8}, v{Dd+8}, v{Dd+9}")
            I(f"v_add_f32 v{Dd+8}, {fbits(1e-6)}, v{Dd+8}")
            I(f"v_rcp_f32 v{Dd+8}, v{Dd+8}")
            for k in range(8): I(f"v_mul_f32 v{Dd+k}, v{Dd+k}, v{Dd+8}")
            for k in range(4): I(f"v_cvt_pk_bf16_f32 v{Dd+k}, v{Dd+2*k}, v{Dd+2*k+1}")
            for x in mst(f"buffer_store_dwordx4 {v(Dd,4)}, v{vM16}, {s(SWS,4)}, s{sEX} offen offset:{rho*1024}", "ho"): em(x)
    hd = CFG.get("hd", (None, None))[typ]
    for tk in (CFG["p2"][typ] if hd is None else hd + " F M0" + CFG["p2"][typ].split(" F M0")[1]).replace("Ts3", CFG.get("ts3", "Ts3")).replace("Ts4", CFG.get("ts4", "Ts4")).replace("N10", CFG.get("n10", ("N10", "N10"))[g]).replace(" x ", " x " + CFG.get("xw", "") + " ").split(): tok(tk)
    if not RD:
        radr()
        for q in (0, 2, 1, 3):
            for x in rwr(q): I(x)
    XU = 16
    for k in range(0 if CFG.get("rb") else 4):
        I(f"v_lshlrev_b32 v{XU+2*k}, 16, v{vXD+k}")
        I(f"v_and_b32 v{XU+2*k+1}, s{sHI}, v{vXD+k}")
    P.wait_lg()
    I("s_barrier")
    nstamp(P, "red", nst)
    if CFG.get("rb"):
        od = [(c_, hh) for hh in range(2) for c_ in (0, 2, 1, 3)]
        for j, (c_, hh) in enumerate(od): I(f"ds_read_b128 {v(128+4*j,4)}, v{12+(c_&1)} offset:{hh*8192+(c_>>1)*512}" if CFG["rb"] == 2 else f"ds_read_b128 {v(128+4*j,4)}, v12 offset:{hh*8192+((c_>>1)*512+(c_&1)*64 if CFG['rb'] == 3 else c_*256)}")
        for j, (c_, hh) in enumerate(od): I(f"v_mfma_f32_16x16x32_bf16 {v(XU+4*(c_>>1),4)}, {v(168+4*(c_&1),4)}, {v(128+4*j,4)}, {v(XU+4*(c_>>1),4)}")
    for w_ in range(0 if CFG.get("rb") else 8):
        for e in range(2): I(f"ds_read_b128 {v(128+8*w_+4*e,4)}, v12 offset:{w_*2048+e*1024}")
        if w_ == 6:
            for k in range(8): I(f"v_add_f32 v{XU+k}, v{XU+k}, v{128+k}")
    for w_ in range(1, 1 if CFG.get("rb") else 8):
        for k in range(8): I(f"v_add_f32 v{XU+k}, v{XU+k}, v{128+8*w_+k}")
    for k in range(4): I(f"v_cvt_pk_bf16_f32 v{XU+k}, v{XU+2*k}, v{XU+2*k+1}")
    I(f"buffer_store_dwordx4 {v(XU,4)}, v{vXA}, {s(SOUT,4)}, s{sXO} offen{CFG.get('om', '')}")
    while nst[0] < 18: nstamp(P, "-", nst)
    P.comment(f"STAMPS {typ}{g} " + " ".join(nst[1:]) + " end")
    dump_stamps(P, 19, SWS, sW, 8, sT0)
    I("s_endpgm")
    def cold():
        def poll(nm, back, sl, body, done, pre=[]):
            P.restore(([], [], [], False))
            P.label(f"L_{sn}_{nm}")
            for x in pre: em(x)
            I(f"s_mov_b32 s{sC}, 0")
            P.label(f"L_{sn}_{nm}l")
            I(f"s_sleep {sl}")
            for x in body: I(x)
            I(f"{done} L_{sn}_{back}")
            I(f"s_add_u32 s{sC}, s{sC}, 1")
            I(f"s_cmp_lt_u32 s{sC}, 20000")
            I(f"s_cbranch_scc1 L_{sn}_{nm}l")
            I(f"s_branch L_{sn}_{back}")
        if WBL:
            P.restore(([], [], [], False)); P.label(f"L_{sn}_wb"); P.raw("    buffer_wbl2 sc1"); I(f"s_branch L_{sn}_wr")
        for n_, x in enumerate(slow):
            P.restore(([], [], [], False))
            P.label(f"L_{sn}_ss{n_+1}")
            if NV and "store_dword " in x: I("s_waitcnt vmcnt(0)")
            I("s_nop 4"); I(x + " sc1"); I("s_nop 4"); I(f"s_branch L_{sn}_sb{n_+1}")
        poll("cp", "cb", 16, cad + [f"buffer_load_dword v{vCT}, v{vCT if QE else vFL}, {s(SDB,4)}, 0 offen sc1"] + cck, "s_cbranch_vccz")
        for n_, qs in enumerate(vals):
            mk = 0
            for k, tb in qs: mk |= 0x0f if KS[k][0] == "k" else 0xf0
            poll(f"vr{n_+1}", f"vl{n_+1}", CFG["fsl"], [fload(), f"v_cmp_gt_u32 vcc, 5, v{vFL}", f"s_and_b32 s{sT1}, vcc_lo, {mk}"], "s_cbranch_scc0", ["s_waitcnt vmcnt(0)"])
            P.restore(([], [], [], False))
            P.label(f"L_{sn}_vl{n_+1}")
            for k, tb in qs: I(hload(k)[tb][0]); I(hload(k)[tb][1] + " sc1")
            I("s_waitcnt vmcnt(0)"); I(f"s_branch L_{sn}_vb{n_+1}")
        for n_ in spolls:
            ty, lv, own = polls[n_-1]
            P.restore(([], [], [], False))
            P.label(f"L_{sn}_gp{n_}")
            I(f"s_cmp_lg_u32 s{sMD}, 0"); I(f"s_cbranch_scc1 L_{sn}_fp{n_}")
            if own is not None:
                for x in [f"v_mov_b32 v{vCT}, {own}", "s_waitcnt vmcnt(0)", "s_mov_b64 exec, 1", f"buffer_store_dword v{vCT}, off, {s(SWS,4)}, s{sFL}", "s_mov_b64 exec, -1"]: I(x)
            I(f"s_mov_b32 s{sO2}, 0")
            P.label(f"L_{sn}_gl{n_}")
            if CFG.get("gsl"): I(f"s_sleep {CFG['gsl']}")
            I(gload()); I("s_waitcnt lgkmcnt(0)")
            for x in gmin(ty, lv): I(x)
            I(f"s_cbranch_scc0 L_{sn}_fb{n_}")
            I(f"s_add_u32 s{sO2}, s{sO2}, 1"); I(f"s_cmp_lt_u32 s{sO2}, 64"); I(f"s_cbranch_scc1 L_{sn}_gl{n_}")
            I(f"s_branch L_{sn}_fp{n_}")
        for n_, (ty, lv, own) in enumerate(polls):
            pre = [] if own is None else [f"v_mov_b32 v{vCT}, {own}", "s_waitcnt vmcnt(0)", "s_mov_b64 exec, 1", f"s_cmp_lg_u32 s{sMD}, 0", f"s_cbranch_scc1 L_{sn}_fo{n_}", f"buffer_store_dword v{vCT}, off, {s(SWS,4)}, s{sFL}",
                                          f"s_branch L_{sn}_fq{n_}", f"LABEL L_{sn}_fo{n_}", f"buffer_store_dword v{vCT}, off, {s(SWS,4)}, s{sFL} sc1", f"LABEL L_{sn}_fq{n_}", "s_mov_b64 exec, -1"]
            poll(f"fp{n_+1}", f"fb{n_+1}", CFG["fsl"], [fload(), f"v_cmp_gt_u32 vcc, {lv}, v{vFL}", f"s_and_b32 s{sT1}, vcc_lo, {0xf0 if ty == 'q' else 0x0f}"], "s_cbranch_scc0", pre)
        if typ == 1:
            if not (QE and QE.get("nz")): poll("zp", "zb", CFG["zsl"], [loads()[0][0], f"v_cmp_eq_u32 vcc, -1, v{ZZ}", "s_nop 1"], "s_cbranch_vccz")
            P.restore(([], [], [], False))
            P.label(f"L_{sn}_rt")
            if QE:
                I(f"s_mov_b32 s{sT0}, 0"); I("s_nop 7"); I("s_nop 7")
                P.label(f"L_{sn}_rl")
                I("s_waitcnt lgkmcnt(0)")
                for x in loads():
                    for y in x: I(y)
                I("s_waitcnt vmcnt(0)")
                for x in preL + [preZ] + preW: I(x)
                I("s_waitcnt lgkmcnt(0)")
                I(f"s_cbranch_vccz L_{sn}_go")
                I(f"s_add_u32 s{sT0}, s{sT0}, 1")
                I(f"s_cmp_lt_u32 s{sT0}, 20000")
                I(f"s_cbranch_scc1 L_{sn}_rl")
                I(f"s_branch L_{sn}_go")
                return
            I(f"s_add_u32 s{sT0}, s{sT0}, 1")
            I(f"s_cmp_ge_u32 s{sT0}, 20000")
            I(f"s_cbranch_scc1 L_{sn}_go")
            I("s_waitcnt lgkmcnt(0)")
            for x in loads():
                for y in x: I(y)
            I("s_waitcnt vmcnt(0)")
            I(f"s_branch L_{sn}_pre")
    return cold

def gen_k1(name):
    P = Prog()
    P.raw(f".globl {name}\n.p2align 8\n.type {name},@function\n{name}:")
    prologue(P, name)
    snap = P.snapshot(); colds = []
    for k in range(4):
        P.restore(snap)
        if k: P.raw(".p2align 6"); P.label(f"L_{name}_r{k}")
        c_ = stream(P, k >> 1, k & 1, name)
        if CFG.get("cold"): colds.append(c_)
        else: c_()
    for c_ in colds: c_()
    P.label(f"L_{name}_end")
    P.I("s_endpgm")
    return P
```
